```python
import torch

def _softmax(x, axis=-1):
    return torch.softmax(x, dim=axis)
def _gelu(x):
    return torch.nn.functional.gelu(x, approximate="tanh")
def _silu(x):
    return torch.nn.functional.silu(x)
def _sigmoid(x):
    return torch.sigmoid(x)
def _layernorm(x, axis=-1, eps=1e-5):
    m = x.mean(dim=axis, keepdim=True)
    v = x.var(dim=axis, keepdim=True, unbiased=False)
    return (x - m) / torch.sqrt(v + eps)
def _scatter_add(tgt, idx, src, axis=0):
    return tgt.clone().index_add_(axis, idx, src)
def _segment_sum(src, seg, n):
    out = torch.zeros((n,) + src.shape[1:], dtype=src.dtype)
    return out.index_add_(0, seg, src)
def _pad(x, pw):
    flat = tuple(v for pair in reversed(pw) for v in pair)
    return torch.nn.functional.pad(x, flat)

kernel_name = 'sequential_preLN__mha_block__geglu_ffn__prompt'

def setup_inputs():

    _w = (lambda a: (lambda t: t.to(torch.bfloat16) if t.is_floating_point() else t)(torch.as_tensor(a)))
    def _A_setup():
        B, S, D, H = 1, 2048, 512, 32
        return {
            "x": _w((lambda *s: torch.randn(*s, dtype=torch.bfloat16) * 0.05)(B, S, D)),
            "wqkv": _w((lambda *s: torch.randn(*s, dtype=torch.bfloat16) * 0.05)(D, 3 * D)),
            "wo": _w((lambda *s: torch.randn(*s, dtype=torch.bfloat16) * 0.05)(D, D)),
        }
    _A_in = _A_setup()

    def _B_setup():
        B, S, D, F = 1, 2048, 512, 1792
        return {
            "x": _w((lambda *s: torch.randn(*s, dtype=torch.bfloat16) * 0.05)(B, S, D)),
            "w_gate": _w((lambda *s: torch.randn(*s, dtype=torch.bfloat16) * 0.05)(D, F)),
            "w_up": _w((lambda *s: torch.randn(*s, dtype=torch.bfloat16) * 0.05)(D, F)),
            "w_down": _w((lambda *s: torch.randn(*s, dtype=torch.bfloat16) * 0.05)(F, D)),
        }
    _B_in = _B_setup()

    return {
        "A_x": _A_in["x"],
        "A_wqkv": _A_in["wqkv"],
        "A_wo": _A_in["wo"],
        "B_x": _B_in["x"],
        "B_w_gate": _B_in["w_gate"],
        "B_w_up": _B_in["w_up"],
        "B_w_down": _B_in["w_down"],
    }

def reference(A_x, A_wqkv, A_wo, B_x, B_w_gate, B_w_up, B_w_down):
    def _A_ref(x, wqkv, wo):
        B, S, D = x.shape
        H = 32
        Dh = D // H
        qkv = (lambda x, *d: x.permute(*d))((x @ wqkv).reshape(B, S, 3, H, Dh), 2, 0, 3, 1, 4)
        q, k, v = qkv[0], qkv[1], qkv[2]
        scores = torch.einsum("bhqd,bhkd->bhqk", q, k) * (Dh ** -0.5)
        p = _softmax(scores, axis=-1)
        o = torch.einsum("bhqk,bhkd->bhqd", p, v)
        return (lambda x, *d: x.permute(*d))(o, 0, 2, 1, 3).reshape(B, S, D) @ wo

    def _B_ref(x, w_gate, w_up, w_down):
        return (_gelu(x @ w_gate) * (x @ w_up)) @ w_down

    x = A_x
    h = x + _A_ref(_layernorm(x, axis=-1), A_wqkv, A_wo)
    h2 = h + _B_ref(_layernorm(h, axis=-1), B_w_gate, B_w_up, B_w_down)
    return h2
```

```python
import re

class Asm:
    def __init__(self):
        self.lines = []
    def __call__(self, s):
        for ln in s.split("\n"):
            ln = ln.strip()
            if ln:
                self.lines.append("    " + ln)
    def label(self, l):
        self.lines.append(l + ":")
    def raw(self, s):
        self.lines.append(s)
    def comment(self, s):
        self.lines.append("    ; " + s)
    def text(self):
        return "\n".join(self.lines) + "\n"

def vr(b, n=1, f="v"):
    return f"{f}{b}" if n == 1 else f"{f}[{b}:{b+n-1}]"
def ar(b, n=1):
    return vr(b, n, "a")
def sr(b, n=1):
    return vr(b, n, "s")

_REG = re.compile(r"\b([vas])(?:(\d+)|\[(\d+):(\d+)\])")
def regs_of(op):
    out = set()
    for m in _REG.finditer(op):
        f = m.group(1)
        if m.group(2) is not None:
            out.add((f, int(m.group(2))))
        else:
            for i in range(int(m.group(3)), int(m.group(4)) + 1):
                out.add((f, i))
    if re.search(r"\bvcc\b", op):
        out.add(("s", "vcc"))
    if re.search(r"\bm0\b", op):
        out.add(("s", "m0"))
    if re.search(r"\bexec\b", op):
        out.add(("s", "exec"))
    return out

TRANS = ("v_exp_f32", "v_log_f32", "v_rcp_f32", "v_rsq_f32", "v_sqrt_f32", "v_sin_f32", "v_cos_f32")

class Ins:
    def __init__(self, text, idx):
        self.text = text; self.idx = idx
        t = text.split(";")[0].strip()
        parts = t.split(None, 1)
        self.mn = parts[0]
        ops = parts[1] if len(parts) > 1 else ""
        self.ops = [o.strip() for o in re.split(r",(?![^\[]*\])", ops)] if ops else []
        mn = self.mn
        self.is_mfma = mn.startswith("v_mfma")
        self.is_valu = mn.startswith("v_") and not self.is_mfma
        self.is_trans = any(mn.startswith(x) for x in TRANS)
        self.is_dot = mn.startswith("v_dot")
        self.is_salu = mn.startswith("s_")
        self.is_ds = mn.startswith("ds_")
        self.is_vmem = mn.startswith(("buffer_", "global_", "flat_"))
        self.is_perm = mn.startswith("v_permlane")
        self.is_dpp = "_dpp" in mn or " row_" in t or "quad_perm" in t
        self.states = 1
        if mn == "s_nop":
            self.states = int(self.ops[0], 0) + 1
        self.w = set(); self.r = set()
        self.A = self.B = self.C = set()
        o = self.ops
        if self.is_mfma:
            self.w = regs_of(o[0]); self.A = regs_of(o[1]); self.B = regs_of(o[2]); self.C = regs_of(o[3])
            self.r = self.A | self.B | self.C
            self.passes = 8 if "32x32x16" in mn else 4 if "16x16x32" in mn else None
            assert self.passes, mn
        elif self.is_valu:
            if self.is_perm:
                self.w = regs_of(o[0]) | regs_of(o[1]); self.r = set(self.w)
            elif mn.startswith("v_cmp"):
                self.w = regs_of(o[0]); self.r = set().union(*[regs_of(x) for x in o[1:]])
            elif mn.startswith(("v_add_co", "v_sub_co", "v_addc_co", "v_subb_co")):
                self.w = regs_of(o[0]) | regs_of(o[1]); self.r = set().union(*[regs_of(x) for x in o[2:]])
            else:
                self.w = regs_of(o[0]); self.r = set().union(*[regs_of(x) for x in o[1:]]) if len(o) > 1 else set()
                if mn.startswith(("v_fmac", "v_dot2c", "v_pk_fmac")) or self.is_dpp:
                    self.r |= self.w
        elif self.is_ds:
            if mn.startswith(("ds_read", "ds_bpermute", "ds_permute", "ds_swizzle")):
                self.w = regs_of(o[0]); self.r = set().union(*[regs_of(x) for x in o[1:]])
            else:
                self.r = set().union(*[regs_of(x) for x in o])
        elif self.is_vmem:
            self.lds = bool(re.search(r"\blds\b", t)) or "load_lds" in mn
            if "load" in mn and not self.lds:
                self.w = regs_of(o[0]); self.r = set().union(*[regs_of(x) for x in o[1:]])
            else:
                self.r = set().union(*[regs_of(x) for x in o]) if o else set()
                if self.lds: self.r.add(("s", "m0"))
            self.wide_store = ("store" in mn and ("x4" in mn or "x3" in mn))
            if self.wide_store:
                self.sdata = regs_of(o[0]) if mn.startswith("buffer") else regs_of(o[1])
        elif self.is_salu:
            if mn.startswith(("s_cmp", "s_cbranch", "s_branch", "s_waitcnt", "s_barrier", "s_nop", "s_endpgm", "s_setprio", "s_sleep", "s_bitcmp")):
                self.r = set().union(*[regs_of(x) for x in o]) if o else set()
            else:
                self.w = regs_of(o[0]); self.r = set().union(*[regs_of(x) for x in o[1:]]) if len(o) > 1 else set()

def need(p, c):
    n = 0
    vw = {x for x in p.w if x[0] in "va"}
    sw = {x for x in p.w if x[0] == "s"}
    if p.is_valu:
        if c.is_mfma and (vw & c.r): n = max(n, 2)
        if p.is_trans and c.is_valu and not c.is_trans and (vw & c.r): n = max(n, 1)
        if p.is_trans and (c.is_vmem or c.is_ds) and (vw & c.r): n = max(n, 1)
        if c.is_perm and (vw & c.r): n = max(n, 2)
        if c.is_dpp and (vw & c.r): n = max(n, 2)
        if c.mn.startswith(("v_readlane", "v_readfirstlane")) and (vw & c.r): n = max(n, 1)
        if sw:
            if c.is_vmem and (sw & c.r): n = max(n, 5)
            if c.is_valu and (sw & c.r): n = max(n, 2)
            if c.mn.startswith(("v_readlane", "v_writelane")) and (sw & c.r): n = max(n, 4)
            if c.is_salu and (sw & c.r): n = max(n, 1)
        if p.is_dot:
            if (c.is_valu or c.is_mfma or c.is_vmem or c.is_ds) and (vw & (c.r | c.w)):
                same = c.mn == p.mn
                if same:
                    ab = set().union(*[regs_of(x) for x in c.ops[1:3]])
                    if vw & ab: n = max(n, 3)
                else:
                    n = max(n, 3)
    if p.is_mfma:
        k = {4: 0, 8: 1}[p.passes]
        if c.is_mfma:
            if vw & (c.A | c.B): n = max(n, (8, 12)[k])
            if vw & c.C:
                if not (c.C == vw and c.passes == p.passes): n = max(n, (6, 10)[k])
            if (vw & c.w) and not (c.C == vw): n = max(n, (6, 10)[k])
        elif c.is_valu or c.is_vmem or c.is_ds:
            if vw & (c.r | c.w): n = max(n, (8, 12)[k])
            if c.is_valu and (p.C & c.w): n = max(n, (3, 7)[k])
    if p.is_salu and ("s", "m0") in p.w and c.is_vmem and getattr(c, "lds", False): n = max(n, 1)
    if p.is_vmem and getattr(p, "wide_store", False):
        if (p.sdata & c.w):
            n = max(n, 2 if c.is_valu else 1)
    return n

def check_hazards(lines, name="", window=24):
    ins = []
    for i, l in enumerate(lines):
        t = l.split(";")[0].strip()
        if not t or t.endswith(":") or t.startswith("."):
            continue
        ins.append(Ins(t, i))
    bad = 0
    for j, c in enumerate(ins):
        dist = 0
        for i in range(j - 1, max(-1, j - window - 1), -1):
            p = ins[i]
            if p.mn in ("s_branch", "s_endpgm"): break
            n = need(p, c)
            if n > dist:
                print(f"HAZARD[{name}] need {n} have {dist}:\n    P: {p.text}\n    C: {c.text}")
                bad += 1
            dist += p.states
            if dist >= 20: break
    return bad
```

```python
import sys, math, struct
from asmlib import *

NAME = "sequential_preLN__mha_block__geglu_ffn__prompt"

QF, KF, VF, OF, HF = 0x000000, 0x200000, 0x400000, 0x600000, 0x800000
ST  = 0xA00000
CSF = 0xA80000
WOF = 0xB00000
WGF = 0xC00000
WDF = 0x1000000
GF  = 0x1200000
WS_SIZE = 0x10000000

def f32(x):
    return "0x%08x" % struct.unpack("<I", struct.pack("<f", x))[0]

LOG2E = 1.4426950408889634
EPS = 1e-5

def srd(a, s, base, size):
    a(f"s_mov_b32 s{s}, s{base}")
    a(f"s_mov_b32 s{s+1}, s{base+1}")
    a(f"s_mov_b32 s{s+2}, {hex(size)}")
    a(f"s_mov_b32 s{s+3}, 0x00020000")

def kernel_head(a, name):
    a.raw(f".globl {name}")
    a.raw(".p2align 8")
    a.raw(f".type {name},@function")
    a.raw(f"{name}:")

def kd(name, nvgpr, accum, nsgpr=64):
    return f""".amdhsa_kernel {name}
  .amdhsa_next_free_vgpr {nvgpr}
  .amdhsa_next_free_sgpr {nsgpr}
  .amdhsa_accum_offset {accum}
  .amdhsa_group_segment_fixed_size 0
  .amdhsa_kernarg_size 80
  .amdhsa_user_sgpr_count 2
  .amdhsa_user_sgpr_kernarg_segment_ptr 1
  .amdhsa_system_sgpr_workgroup_id_x 1
.end_amdhsa_kernel
"""

def MF32(d, A, B, C=None):
    C = d if C is None else C
    return f"v_mfma_f32_32x32x16_bf16 {d}, {A}, {B}, {C}"

def halfsum(a, v, t):
    a(f"v_mov_b32 v{t}, v{v}")
    a("s_nop 1")
    a(f"v_permlane32_swap_b32 v{v}, v{t}")
    a(f"v_add_f32 v{v}, v{v}, v{t}")

def k1():
    a = Asm(); n = "k1_qkv_kernel"
    kernel_head(a, n)
    SLOT = 28672; SCR = 5 * SLOT; SCR2 = SCR + 1536
    a("s_cmp_ge_u32 s2, 256")
    a("s_cbranch_scc1 K1_END")
    a("s_load_dwordx4 s[4:7], s[0:1], 0")
    a("s_load_dwordx2 s[20:21], s[0:1], 72")
    a("v_lshrrev_b32 v1, 6, v0")
    a("v_and_b32 v0, 63, v0")
    a("v_readfirstlane_b32 s22, v1")
    a("s_and_b32 s23, s2, 3")
    a("s_lshl_b32 s23, s23, 2")
    a("s_bfe_u32 s29, s2, 0x20003")
    a("s_add_u32 s23, s23, s29")
    a("s_bfe_u32 s24, s2, 0x10002")
    a("s_lshl_b32 s24, s24, 3")
    a("s_lshr_b32 s29, s2, 5")
    a("s_add_u32 s24, s24, s29")
    a("s_lshl_b32 s25, s23, 17")
    a("s_lshl_b32 s29, s22, 15")
    a("s_add_u32 s25, s25, s29")
    a("s_mul_i32 s26, s22, 49152")
    a("s_lshl_b32 s29, s24, 6")
    a("s_add_u32 s26, s26, s29")
    a("s_lshl_b32 s27, s22, 12")
    a("s_lshl_b32 s28, s22, 10")
    a("s_add_u32 s28, s28, 16384")
    a("s_mov_b32 s30, 0x3f803f80")
    a("v_lshrrev_b32 v5, 3, v0")
    a("v_lshlrev_b32 v2, 10, v5")
    a("v_and_b32 v6, 7, v0")
    a("v_lshrrev_b32 v7, 4, v0")
    a("v_xor_b32 v6, v6, v7")
    a("v_lshl_add_u32 v2, v6, 4, v2")
    a("v_xor_b32 v3, 64, v2")
    a("v_add_u32 v3, 8192, v3")
    a("v_lshrrev_b32 v5, 2, v0")
    a("v_mul_u32_u24 v4, 3072, v5")
    a("v_and_b32 v6, 3, v0")
    a("v_lshl_add_u32 v4, v6, 4, v4")
    a("s_waitcnt lgkmcnt(0)")
    srd(a, 8, 4, 2048 * 512 * 2)
    srd(a, 12, 6, 512 * 1536 * 2)
    srd(a, 16, 20, WS_SIZE)

    def dma(c):
        slot = (c % 5) * SLOT
        for p in range(3):
            a(f"s_add_u32 m0, s28, {slot + p * 4096}")
            a(f"s_add_u32 s29, s26, {c * 64 * 3072 + p * 1024}")
            a(f"buffer_load_dwordx4 v4, s[12:15], s29 offen lds")
        for i in range(4):
            a(f"s_add_u32 m0, s27, {slot + i * 1024}")
            a(f"s_add_u32 s29, s25, {(i // 2) * 16384 + c * 128}")
            a(f"buffer_load_dwordx4 v{2 + (i % 2)}, s[8:11], s29 offen lds")
    for c in range(5):
        dma(c)
    a("v_and_b32 v5, 31, v0")
    a("v_lshrrev_b32 v6, 5, v0")
    a("v_bfe_u32 v7, v0, 1, 3")
    a("v_xor_b32 v7, v7, v6")
    a("v_lshlrev_b32 v5, 7, v5")
    a("v_add_u32 v5, s27, v5")
    for s in range(4):
        a(f"v_xor_b32 v1, {2 * s}, v7")
        a(f"v_lshl_add_u32 v{8 + s}, v1, 4, v5")
        a(f"v_add_u32 v{12 + s}, {2 * SLOT}, v{8 + s}")
        a(f"v_add_u32 v{16 + s}, {4 * SLOT}, v{8 + s}")
    a("v_bfe_u32 v1, v0, 2, 2")
    a("v_lshl_add_u32 v1, v6, 3, v1")
    a("v_lshlrev_b32 v20, 6, v1")
    a("v_bfe_u32 v1, v0, 4, 1")
    a("v_lshl_add_u32 v20, v1, 5, v20")
    a("v_and_b32 v1, 3, v0")
    a("v_lshl_add_u32 v20, v1, 3, v20")
    a(f"v_add_u32 v21, {2 * SLOT}, v20")
    a(f"v_add_u32 v22, {4 * SLOT}, v20")
    for i in range(24, 31):
        a(f"v_mov_b32 v{i}, 0")
    ACC = 32
    def xf(c, s): return 80 + (c % 2) * 64 + s * 16
    def wf(c, s, p): return xf(c, s) + 4 + p * 4
    def reads(c, s):
        slot = c % 5; st = slot // 2; off = (slot % 2) * SLOT
        a(f"ds_read_b128 {vr(xf(c, s), 4)}, v{8 + 4 * st + s} offset:{off}")
        for p in range(3):
            for u in range(2):
                a(f"ds_read_b64_tr_b16 {vr(wf(c, s, p) + 2 * u, 2)}, v{20 + st} offset:{off + 16384 + p * 4096 + s * 1024 + u * 256}")
    def mfmas(c, s):
        first = (c == 0 and s == 0)
        X = vr(xf(c, s), 4)
        for p in range(3):
            D = vr(ACC + 16 * p, 16); W = vr(wf(c, s, p), 4)
            A, B = (W, X) if p < 2 else (X, W)
            a(MF32(D, A, B, "0" if first else None))
    def dots(c):
        for s in range(4):
            for i in range(4):
                r = xf(c, s) + i
                a(f"v_dot2c_f32_bf16 v{24 + i % 2}, s30, v{r}")
                a(f"v_dot2c_f32_bf16 v{26 + i % 2}, v{r}, v{r}")
        for s in range(4):
            a(f"s_cmp_lg_u32 s22, {s}")
            a(f"s_cbranch_scc1 K1_CS_{c}_{s}")
            for i in range(4):
                for p in range(3):
                    a(f"v_dot2c_f32_bf16 v{28 + p}, s30, v{wf(c, s, p) + i}")
            a.label(f"K1_CS_{c}_{s}")
    vm = [28, 21, 21, 21, 21, 14, 7, 0]
    for c in range(8):
        a(f"s_waitcnt vmcnt({vm[c]})")
        a("s_barrier")
        reads(c, 0); reads(c, 1)
        if 1 <= c <= 3:
            dma(c + 4)
        if c >= 1:
            dots(c - 1)
        a("s_waitcnt lgkmcnt(7)")
        mfmas(c, 0)
        reads(c, 2)
        a("s_waitcnt lgkmcnt(7)")
        mfmas(c, 1)
        reads(c, 3)
        a("s_waitcnt lgkmcnt(7)")
        mfmas(c, 2)
        a("s_waitcnt lgkmcnt(0)")
        mfmas(c, 3)
    dots(7)
    a("v_and_b32 v5, 31, v0")
    a("v_lshlrev_b32 v6, 4, v5")
    a("s_lshl_b32 s29, s22, 2")
    a(f"s_add_u32 s29, s29, {SCR}")
    a("v_add_u32 v7, s29, v6")
    for p in range(3):
        halfsum(a, 28 + p, 1)
        a(f"ds_write_b32 v7, v{28 + p} offset:{p * 512}")
    a("v_add_f32 v24, v24, v25")
    a("v_add_f32 v26, v26, v27")
    halfsum(a, 24, 1)
    halfsum(a, 26, 1)
    a(f"v_mul_f32 v24, {f32(1/512)}, v24")
    a(f"v_mul_f32 v26, {f32(1/512)}, v26")
    a("v_fma_f32 v26, -v24, v24, v26")
    a("v_max_f32 v26, 0, v26")
    a(f"v_add_f32 v26, {f32(EPS)}, v26")
    a("v_rsq_f32 v26, v26")
    a("s_lshl_b32 s29, s22, 7")
    a(f"s_add_u32 s29, s29, {SCR2}")
    a("v_lshlrev_b32 v1, 2, v5")
    a("v_add_u32 v1, s29, v1")
    a("ds_write_b32 v1, v26")
    a("v_lshrrev_b32 v1, 5, v0")
    a("v_lshlrev_b32 v1, 4, v1")
    a("v_add_u32 v1, s29, v1")
    a(f"v_add_u32 v6, {SCR}, v6")
    a("s_waitcnt lgkmcnt(0)")
    a("s_barrier")
    for p in range(3):
        a(f"ds_read_b128 {vr(80 + 4 * p, 4)}, v6 offset:{p * 512}")
    for g in range(4):
        a(f"ds_read_b128 {vr(96 + 4 * g, 4)}, v1 offset:{g * 32}")
    a("v_mul_f32 v24, -0.5, v24")
    a("v_cvt_pk_bf16_f32 v25, v24, v24")
    a("v_lshlrev_b32 v25, 16, v25")
    a("v_sub_f32 v27, v24, v25")
    a("v_cvt_pk_bf16_f32 v112, v25, v27")
    a("v_mov_b32 v114, 0")
    a("v_mov_b32 v115, 0")
    a("v_mov_b32 v113, v112")
    a(f"v_mul_f32 v27, {f32(0.25 * LOG2E)}, v26")
    a("s_waitcnt lgkmcnt(4)")
    for p in range(3):
        b = 80 + 4 * p; f = 116 + 4 * p
        a(f"v_add_f32 v{b}, v{b}, v{b+1}")
        a(f"v_add_f32 v{b+2}, v{b+2}, v{b+3}")
        a(f"v_add_f32 v{b}, v{b}, v{b+2}")
        a(f"v_cvt_pk_bf16_f32 v{f}, v{b}, v{b}")
        a(f"v_lshlrev_b32 v{b+1}, 16, v{f}")
        a(f"v_sub_f32 v{b+1}, v{b}, v{b+1}")
        a(f"v_cvt_pk_bf16_f32 v{f+1}, v{b+1}, v{b+1}")
        a(f"v_mov_b32 v{f+2}, 0")
        a(f"v_mov_b32 v{f+3}, 0")
    a("s_nop 1")
    a(MF32(vr(ACC, 16), vr(116, 4), vr(112, 4)))
    a(MF32(vr(ACC + 16, 16), vr(120, 4), vr(112, 4)))
    a(MF32(vr(ACC + 32, 16), vr(112, 4), vr(124, 4)))
    a("s_lshl_b32 s29, s23, 2")
    a("s_add_u32 s29, s29, s22")
    a("s_lshl_b32 s29, s29, 10")
    a("s_lshl_b32 s31, s24, 17")
    a("s_add_u32 s29, s29, s31")
    a("s_add_u32 s31, s29, 65536")
    a(f"s_add_u32 s32, s29, {KF}")
    a(f"s_add_u32 s33, s29, {KF + 65536}")
    a(f"s_add_u32 s34, s29, {VF}")
    a("v_lshlrev_b32 v2, 4, v0")
    a("v_bfe_u32 v3, v0, 4, 1")
    a("v_lshlrev_b32 v3, 16, v3")
    a("v_lshrrev_b32 v4, 5, v0")
    a("v_lshl_add_u32 v3, v4, 8, v3")
    a("v_and_b32 v4, 15, v0")
    a("v_lshl_add_u32 v3, v4, 4, v3")
    a("s_waitcnt lgkmcnt(0)")
    for p in range(3):
        b = ACC + 16 * p; o = 128 + 8 * p
        for i in range(16):
            sc = "v27" if p == 0 else "v26" if p == 1 else f"v{96 + i}"
            a(f"v_mul_f32 v{b+i}, {sc}, v{b+i}")
        for i in range(8):
            a(f"v_cvt_pk_bf16_f32 v{o+i}, v{b+2*i}, v{b+2*i+1}")
        if p < 2:
            a(f"buffer_store_dwordx4 {vr(o, 4)}, v2, s[16:19], s{29 if p == 0 else 32} offen")
            a(f"buffer_store_dwordx4 {vr(o + 4, 4)}, v2, s[16:19], s{31 if p == 0 else 33} offen")
        else:
            a(f"buffer_store_dwordx4 {vr(o, 4)}, v3, s[16:19], s34 offen")
            a(f"buffer_store_dwordx4 {vr(o + 4, 4)}, v3, s[16:19], s34 offen offset:512")
    a.label("K1_END")
    a("s_endpgm")
    return n, a, kd(n, 208, 208), (256, 256, SCR2 + 512)

def k2():
    a = Asm(); n = "k2_attn_kernel"
    kernel_head(a, n)
    Q = 4; NEGM = 16; S = [32, 48]; O = 64; P = 80; KR = 96; VR = 112; PI = 144; PO = 176
    a("s_cmp_ge_u32 s2, 256")
    a("s_cbranch_scc1 K2_END")
    a("s_load_dwordx2 s[4:5], s[0:1], 72")
    a("s_load_dwordx2 s[6:7], s[0:1], 16")
    a("s_load_dwordx4 s[40:43], s[0:1], 32")
    a("s_load_dwordx2 s[44:45], s[0:1], 48")
    a("v_lshrrev_b32 v1, 6, v0")
    a("v_and_b32 v0, 63, v0")
    a("v_readfirstlane_b32 s22, v1")
    a("s_and_b32 s23, s2, 7")
    a("s_lshl_b32 s23, s23, 2")
    a("s_bfe_u32 s29, s2, 0x20003")
    a("s_add_u32 s23, s23, s29")
    a("s_lshr_b32 s24, s2, 5")
    a("s_lshl_b32 s25, s23, 16")
    a("s_lshl_b32 s26, s22, 10")
    a("s_add_u32 s27, s25, s26")
    a("s_lshl_b32 s28, s24, 13")
    a("s_add_u32 s28, s28, s27")
    a("v_lshlrev_b32 v2, 4, v0")
    a("s_waitcnt lgkmcnt(0)")
    srd(a, 8, 4, WS_SIZE)
    a(f"buffer_load_dwordx4 {vr(Q, 4)}, v2, s[8:11], s28 offen")
    for i in range(8):
        a(f"s_add_u32 m0, s26, {i * 8192}")
        a(f"s_add_u32 s29, s27, {KF + i * 8192}")
        a("buffer_load_dwordx4 v2, s[8:11], s29 offen lds")
        a(f"s_add_u32 m0, s26, {65536 + i * 8192}")
        a(f"s_add_u32 s29, s27, {VF + i * 8192}")
        a("buffer_load_dwordx4 v2, s[8:11], s29 offen lds")
    a("s_mov_b32 s36, 0")
    srd(a, 12, 6, 512 * 512 * 2)
    a("s_mov_b32 s37, 1024")
    a("s_mov_b32 s38, 0")
    a("s_mov_b32 s39, 0")
    a("s_mov_b32 s46, 32768")
    a("s_mov_b32 s47, 2")
    a("s_cmp_ge_u32 s22, 3")
    a("s_cbranch_scc1 K2_JOB_DONE")
    a("s_mul_i32 s30, s2, 3")
    a("s_add_u32 s30, s30, s22")
    a("s_cmp_ge_u32 s30, 736")
    a("s_cbranch_scc1 K2_JOB_DONE")
    a("s_mov_b32 s36, 1")
    a("s_cmp_ge_u32 s30, 288")
    a("s_cbranch_scc1 K2_JOB_GU")
    a(f"s_mov_b32 s39, {WOF}")
    a("s_cmp_lt_u32 s30, 64")
    a("s_cbranch_scc1 K2_JOB_OD")
    a("s_sub_u32 s30, s30, 64")
    srd(a, 12, 44, 1792 * 512 * 2)
    a("s_mov_b32 s46, 114688")
    a(f"s_mov_b32 s39, {WDF}")
    a.label("K2_JOB_OD")
    a("s_and_b32 s31, s30, 1")
    a("s_lshr_b32 s30, s30, 1")
    a("s_lshl_b32 s38, s30, 14")
    a("s_lshl_b32 s32, s31, 9")
    a("s_add_u32 s38, s38, s32")
    a("s_mul_i32 s32, s31, s46")
    a("s_lshl_b32 s32, s32, 3")
    a("s_add_u32 s39, s39, s32")
    a("s_lshl_b32 s32, s30, 10")
    a("s_add_u32 s39, s39, s32")
    a("s_branch K2_JOB_DONE")
    a.label("K2_JOB_GU")
    a("s_sub_u32 s30, s30, 288")
    a("s_lshr_b32 s31, s30, 5")
    a("s_and_b32 s30, s30, 31")
    a("s_mov_b32 s37, 3584")
    a("s_mov_b32 s47, 1")
    srd(a, 12, 40, 512 * 1792 * 2)
    a(f"s_mov_b32 s39, {WGF}")
    a("s_cmp_lt_u32 s31, 7")
    a("s_cbranch_scc1 K2_JOB_G")
    a("s_sub_u32 s31, s31, 7")
    a("s_mov_b32 s12, s42")
    a("s_mov_b32 s13, s43")
    a(f"s_mov_b32 s39, {WGF + 256}")
    a.label("K2_JOB_G")
    a("s_mul_i32 s38, s30, 57344")
    a("s_lshl_b32 s32, s31, 9")
    a("s_add_u32 s38, s38, s32")
    a("s_lshl_b32 s32, s31, 19")
    a("s_add_u32 s39, s39, s32")
    a("s_lshl_b32 s32, s30, 10")
    a("s_add_u32 s39, s39, s32")
    a.label("K2_JOB_DONE")
    a("v_and_b32 v10, 31, v0")
    a("v_lshrrev_b32 v11, 5, v0")
    a("v_mul_lo_u32 v8, v11, s37")
    a("v_lshlrev_b32 v8, 2, v8")
    a("v_lshl_add_u32 v8, v10, 4, v8")
    a("v_lshrrev_b32 v9, s47, v10")
    a("v_lshlrev_b32 v12, s47, v9")
    a("v_sub_u32 v12, v10, v12")
    a("v_mul_lo_u32 v9, v9, s46")
    a("v_lshl_add_u32 v9, v11, 9, v9")
    a("v_lshl_add_u32 v9, v12, 7, v9")
    a("v_and_b32 v12, 15, v0")
    a("v_lshl_add_u32 v12, v11, 4, v12")
    a("v_lshlrev_b32 v12, 4, v12")
    a("v_add_u32 v13, 65536, v12")
    a("s_mov_b32 s34, 0x0000ffff")
    a("s_mov_b32 s35, 0x0000ffff")
    a("s_mov_b32 s48, 0x05040100")
    a("s_mov_b32 s49, 0x07060302")
    a(f"s_mov_b32 s50, {f32(2.0**60)}")
    a("s_mov_b32 s51, 1")
    a("s_mov_b32 s52, 3")
    for i in range(32):
        a(f"v_mov_b32 v{VR + i}, 0x3f803f80")
    a("s_waitcnt vmcnt(14)")
    a("s_barrier")
    a(f"ds_read_b128 {vr(KR, 4)}, v2")
    a("s_waitcnt lgkmcnt(0)")
    a(MF32(vr(S[0], 16), vr(KR, 4), vr(Q, 4), "0"))
    a("s_nop 11")
    s0 = S[0]
    a(f"v_max3_f32 v14, v{s0}, v{s0+1}, v{s0+2}")
    for i in range(3, 15, 2):
        a(f"v_max3_f32 v14, v14, v{s0+i}, v{s0+i+1}")
    a(f"v_max_f32 v14, v14, v{s0+15}")
    a.label("K2_RESTART")
    a("v_mov_b32 v15, v14")
    a("s_nop 1")
    a("v_permlane32_swap_b32 v14, v15")
    a("v_max_f32 v14, v14, v15")
    for i in range(16):
        a(f"v_sub_f32 v{NEGM + i}, 0, v14")
    for i in range(16):
        a(f"v_mov_b32 v{O + i}, 0")
    for i in range(4, 8):
        a(f"v_mov_b32 v{P + i}, 0")
    a("v_mov_b32 v3, v2")
    a("v_mov_b32 v1, v13")
    def kread(t): a(f"ds_read_b128 {vr(KR + 4 * (t % 4), 4)}, v3 offset:{t * 1024}")
    def vread(t):
        a("s_mov_b64 exec, s[34:35]")
        for j in range(2):
            a(f"ds_read_b128 {vr(VR + 8 * (t % 4) + 4 * j, 4)}, v1 offset:{t * 1024 + j * 512}")
        a("s_mov_b64 exec, -1")
    kread(0); kread(1); vread(0); kread(2); vread(1)
    a("s_mov_b32 s33, 0")
    a("s_waitcnt lgkmcnt(6)")
    a(MF32(vr(S[0], 16), vr(KR, 4), vr(Q, 4), vr(NEGM, 16)))
    a("s_nop 9")
    a.raw(".p2align 6")
    a.label("K2_LOOP")
    body = Asm()
    b = body
    for t in range(4):
        Sc = S[t % 2]; Sn = S[(t + 1) % 2]
        E = lambda i: b(f"v_exp_f32 v{Sc+i}, v{Sc+i}")
        C = lambda i: b(f"v_cvt_pk_bf16_f32 v{P+i}, v{Sc+2*i}, v{Sc+2*i+1}")
        b("s_waitcnt lgkmcnt(3)")
        b(MF32(vr(Sn, 16), vr(KR + 4 * ((t + 1) % 4), 4), vr(Q, 4), vr(NEGM, 16)))
        for i in range(5): E(i)
        b(MF32(vr(O, 16), vr(VR + 8 * ((t - 1) % 4) + 4, 4), vr(P + 4, 4)))
        b(f"ds_read_b128 {vr(KR + 4 * ((t + 3) % 4), 4)}, v3 offset:{(t + 3) * 1024}")
        b("s_mov_b64 exec, s[34:35]")
        for j in range(2):
            b(f"ds_read_b128 {vr(VR + 8 * ((t + 2) % 4) + 4 * j, 4)}, v1 offset:{(t + 2) * 1024 + j * 512}")
        b("s_mov_b64 exec, -1")
        for i in range(5, 8): E(i)
        for i in range(4): C(i)
        E(8); E(9)
        b(MF32(vr(O, 16), vr(VR + 8 * (t % 4), 4), vr(P, 4)))
        for i in range(10, 16): E(i)
        if t == 3:
            b("v_add_u32 v3, 4096, v3")
            b("v_add_u32 v1, 4096, v1")
        for i in range(4, 8): C(i)
    a.lines += body.lines
    a("s_add_u32 s33, s33, 1")
    a("s_cmp_eq_u32 s33, s51")
    a("s_cbranch_scc1 K2_SYNC_A")
    a("s_cmp_eq_u32 s33, s52")
    a("s_cbranch_scc1 K2_SYNC_B")
    a("s_cmp_lt_u32 s33, 16")
    a("s_cbranch_scc1 K2_LOOP")
    bad = check_hazards(body.lines + body.lines, "k2loop")
    a(MF32(vr(O, 16), vr(VR + 8 * 3 + 4, 4), vr(P + 4, 4)))
    a("s_waitcnt lgkmcnt(0)")
    a("s_nop 10")
    a(f"v_cmp_gt_f32 vcc, s50, v{O + 8}")
    a("s_nop 1")
    a("s_cmp_eq_u64 vcc, -1")
    a("s_cbranch_scc0 K2_FALLBACK")
    a.label("K2_FIN")
    a(f"v_rcp_f32 v14, v{O + 8}")
    a("s_lshl_b32 s29, s24, 3")
    a("s_add_u32 s29, s29, s22")
    a("s_lshl_b32 s29, s29, 15")
    a("s_lshl_b32 s30, s23, 10")
    a("s_add_u32 s29, s29, s30")
    a(f"s_add_u32 s29, s29, {OF}")
    for i in range(8):
        a(f"v_mul_f32 v{O+i}, v14, v{O+i}")
    for i in range(4):
        a(f"v_cvt_pk_bf16_f32 v{P+i}, v{O+2*i}, v{O+2*i+1}")
    a(f"buffer_store_dwordx4 {vr(P, 4)}, v2, s[8:11], s29 offen")
    a("s_endpgm")
    a.label("K2_SYNC_A")
    a("s_waitcnt vmcnt(12)")
    a("s_barrier")
    a("s_cmp_eq_u32 s36, 0")
    a("s_cbranch_scc1 K2_LOOP")
    rows = [0, 1, 2, 3, 8, 9, 10, 11]
    a("s_mov_b32 s29, s38")
    for i in range(8):
        a(f"buffer_load_dwordx4 {vr(PI + 4 * i, 4)}, v8, s[12:15], s29 offen")
        if i < 7:
            if rows[i + 1] - rows[i] == 1:
                a("s_add_u32 s29, s29, s37")
            else:
                a("s_mul_i32 s30, s37, 5")
                a("s_add_u32 s29, s29, s30")
    a("s_branch K2_LOOP")
    a.label("K2_SYNC_B")
    a("s_waitcnt vmcnt(0)")
    a("s_barrier")
    a("s_cmp_eq_u32 s36, 0")
    a("s_cbranch_scc1 K2_LOOP")
    for j in range(8):
        q, e = j // 2, j % 2
        for m in range(4):
            a(f"v_perm_b32 v{PO + 4 * j + m}, v{PI + 4 * (2 * m + 1) + q}, v{PI + 4 * (2 * m) + q}, s{48 + e}")
        a(f"buffer_store_dwordx4 {vr(PO + 4 * j, 4)}, v9, s[8:11], s39 offen offset:{j * 16}")
    a("s_branch K2_LOOP")
    a.label("K2_FALLBACK")
    a("s_cmp_eq_u32 s51, 100")
    a("s_cbranch_scc1 K2_FIN")
    a("s_mov_b32 s51, 100")
    a("s_mov_b32 s52, 100")
    a("v_mov_b32 v3, v2")
    a("v_mov_b32 v14, 0xff800000")
    a("s_mov_b32 s33, 0")
    a.label("K2_FB_LOOP")
    a(f"ds_read_b128 {vr(KR, 4)}, v3")
    a("v_add_u32 v3, 1024, v3")
    a("s_waitcnt lgkmcnt(0)")
    a(MF32(vr(S[0], 16), vr(KR, 4), vr(Q, 4), "0"))
    a("s_nop 11")
    for i in range(0, 16, 2):
        a(f"v_max3_f32 v14, v14, v{s0+i}, v{s0+i+1}")
    a("s_add_u32 s33, s33, 1")
    a("s_cmp_lt_u32 s33, 64")
    a("s_cbranch_scc1 K2_FB_LOOP")
    a("s_branch K2_RESTART")
    a.label("K2_END")
    a("s_endpgm")
    return n, a, kd(n, 208, 208), (256, 512, 131072 + 8192)

def k35(which):
    a = Asm()
    three = which == 3
    n = "k3_oproj_kernel" if three else "k5_down_kernel"
    L = "K3" if three else "K5"
    NS = 32 if three else 112
    KS = NS // 4
    ASRC = WOF if three else WDF
    BSRC = OF if three else GF
    DEPTH = 8
    kernel_head(a, n)
    ACC = 16; BUF = 80; RES = 208
    a("s_cmp_ge_u32 s2, 256")
    a(f"s_cbranch_scc1 {L}_END")
    a("s_load_dwordx2 s[4:5], s[0:1], 72")
    a(f"s_load_dwordx2 s[6:7], s[0:1], {0 if three else 56}")
    a("v_lshrrev_b32 v1, 6, v0")
    a("v_and_b32 v0, 63, v0")
    a("v_readfirstlane_b32 s22, v1")
    a("v_lshlrev_b32 v2, 4, v0")
    a("s_and_b32 s23, s2, 3")
    a("s_lshl_b32 s23, s23, 3")
    a("s_bfe_u32 s29, s2, 0x30003")
    a("s_add_u32 s23, s23, s29")
    a("s_bfe_u32 s24, s2, 0x10002")
    a("s_lshl_b32 s24, s24, 2")
    a("s_lshr_b32 s29, s2, 6")
    a("s_add_u32 s24, s24, s29")
    if three:
        a("s_cmp_eq_u32 s22, 4")
        a("s_cbranch_scc1 K3_CS")
    a("s_and_b32 s25, s22, 1")
    a("s_lshr_b32 s26, s22, 1")
    a("s_lshl_b32 s27, s24, 1")
    a("s_add_u32 s27, s27, s25")
    a("s_lshl_b32 s28, s23, 1")
    a("s_add_u32 s28, s28, s26")
    a(f"s_mul_i32 s29, s22, {KS * 1024}")
    a(f"s_mul_i32 s30, s27, {NS * 1024}")
    a("s_add_u32 s30, s30, s29")
    a(f"s_add_u32 s30, s30, {ASRC}")
    a("s_xor_b32 s31, s27, 1")
    a(f"s_mul_i32 s31, s31, {NS * 1024}")
    a("s_add_u32 s31, s31, s29")
    a(f"s_add_u32 s31, s31, {ASRC}")
    a(f"s_mul_i32 s32, s28, {NS * 1024}")
    a("s_add_u32 s32, s32, s29")
    a(f"s_add_u32 s32, s32, {BSRC}")
    a("s_xor_b32 s33, s28, 1")
    a(f"s_mul_i32 s33, s33, {NS * 1024}")
    a("s_add_u32 s33, s33, s29")
    a(f"s_add_u32 s33, s33, {BSRC}")
    a("v_and_b32 v3, 31, v0")
    a("v_lshlrev_b32 v3, 10, v3")
    a("v_lshrrev_b32 v4, 5, v0")
    a("v_lshl_add_u32 v3, v4, 4, v3")
    a("s_lshl_b32 s34, s28, 15")
    a("s_lshl_b32 s35, s27, 6")
    a("s_add_u32 s34, s34, s35")
    a("s_lshl_b32 s35, s28, 15")
    a("s_lshl_b32 s36, s27, 11")
    a("s_add_u32 s35, s35, s36")
    a(f"s_add_u32 s35, s35, {HF}")
    a("s_waitcnt lgkmcnt(0)")
    srd(a, 8, 4, WS_SIZE)
    srd(a, 12, 6, 2048 * 512 * 2)
    def loads(s):
        b = BUF + 16 * (s % DEPTH)
        if s % 4 == 0 and s > 0:
            for r in range(30, 34):
                a(f"s_add_u32 s{r}, s{r}, 4096")
        for i, r in enumerate((32, 30, 33, 31)):
            a(f"buffer_load_dwordx4 {vr(b + 4 * i, 4)}, v2, s[8:11], s{r} offen offset:{(s % 4) * 1024}")
    def mfmas(s):
        b = BUF + 16 * (s % DEPTH)
        B0, A0, B1, A1 = (vr(b + 4 * i, 4) for i in range(4))
        C = "0" if s == 0 else None
        a(MF32(vr(ACC, 16), A0, B0, C))
        a(MF32(vr(ACC + 32, 16), A0, B1, C))
        a(MF32(vr(ACC + 16, 16), A1, B0, C))
        a(MF32(vr(ACC + 48, 16), A1, B1, C))
    def resload():
        for j in range(2):
            if three:
                a(f"buffer_load_dwordx4 {vr(RES + 4 * j, 4)}, v3, s[12:15], s34 offen offset:{j * 32}")
            else:
                a(f"buffer_load_dwordx4 {vr(RES + 4 * j, 4)}, v2, s[8:11], s35 offen offset:{j * 1024}")
    nl = min(DEPTH, KS)
    for s in range(nl):
        loads(s)
    issued = nl; res_done = False
    if issued == KS:
        resload(); res_done = True
    a("v_mov_b32 v5, v2")
    for s in range(KS):
        out = (issued - s - 1) * 4 + (2 if res_done else 0)
        a(f"s_waitcnt vmcnt({out})")
        mfmas(s)
        if issued < KS:
            loads(issued); issued += 1
            if issued == KS:
                resload(); res_done = True
    for t in range(1, 4):
        a(f"s_xor_b32 s29, s22, {t}")
        a("s_mul_i32 s29, s29, 12288")
        a(f"v_add_u32 v{5 + t}, s29, v2")
    a("s_mul_i32 s29, s22, 12288")
    a("v_add_u32 v5, s29, v2")
    a("s_nop 7")
    for t in (2, 1, 3):
        for q in range(4):
            a(f"ds_write_b128 v{5 + t}, {vr(ACC + 16 * t + 4 * q, 4)} offset:{(t - 1) * 4096 + q * 1024}")
    a("s_waitcnt lgkmcnt(0)")
    a("s_barrier")
    for t in range(3):
        for q in range(4):
            a(f"ds_read_b128 {vr(BUF + 16 * t + 4 * q, 4)}, v5 offset:{t * 4096 + q * 1024}")
    a("s_waitcnt vmcnt(0)")
    if three:
        for j in range(2):
            a(f"v_permlane32_swap_b32 v{RES + 4 * j}, v{RES + 4 * j + 2}")
            a(f"v_permlane32_swap_b32 v{RES + 4 * j + 1}, v{RES + 4 * j + 3}")
    a("s_mov_b32 s29, 0xffff0000")
    for i in range(8):
        a(f"v_lshlrev_b32 v{RES + 8}, 16, v{RES + i}")
        a(f"v_and_b32 v{RES + 9}, s29, v{RES + i}")
        a(f"v_add_f32 v{ACC + 2 * i}, v{ACC + 2 * i}, v{RES + 8}")
        a(f"v_add_f32 v{ACC + 2 * i + 1}, v{ACC + 2 * i + 1}, v{RES + 9}")
    for t in range(3):
        a(f"s_waitcnt lgkmcnt({8 - 4 * t})")
        for i in range(16):
            a(f"v_add_f32 v{ACC + i}, v{ACC + i}, v{BUF + 16 * t + i}")
    o = ACC + 16
    for i in range(8):
        a(f"v_cvt_pk_bf16_f32 v{o + i}, v{ACC + 2 * i}, v{ACC + 2 * i + 1}")
    if three:
        for j in range(2):
            a(f"buffer_store_dwordx4 {vr(o + 4 * j, 4)}, v2, s[8:11], s35 offen offset:{j * 1024}")
        a("s_mov_b32 s30, 0x3f803f80")
        a("v_mov_b32 v8, 0")
        a("v_mov_b32 v9, 0")
        for i in range(8):
            a(f"v_dot2c_f32_bf16 v8, s30, v{o + i}")
            a(f"v_dot2c_f32_bf16 v9, v{o + i}, v{o + i}")
        a("s_lshl_b32 s29, s28, 12")
        a("s_bfe_u32 s30, s27, 0x20001")
        a("s_lshl_b32 s30, s30, 10")
        a("s_add_u32 s29, s29, s30")
        a("s_lshr_b32 s30, s27, 3")
        a("s_lshl_b32 s30, s30, 9")
        a("s_add_u32 s29, s29, s30")
        a("s_and_b32 s30, s27, 1")
        a("s_lshl_b32 s30, s30, 3")
        a("s_add_u32 s29, s29, s30")
        a(f"s_add_u32 s29, s29, {ST}")
        a("v_and_b32 v3, 31, v0")
        a("v_lshlrev_b32 v3, 4, v3")
        halfsum(a, 8, 1)
        halfsum(a, 9, 1)
        a("buffer_store_dwordx2 v[8:9], v3, s[8:11], s29 offen")
        a("s_endpgm")
        a.label("K3_CS")
        a("s_cmp_ge_u32 s2, 224")
        a("s_cbranch_scc1 K3_END")
        a("s_lshl_b32 s30, s2, 14")
        a(f"s_add_u32 s30, s30, {WGF}")
        a("s_lshl_b32 s31, s2, 9")
        a(f"s_add_u32 s31, s31, {CSF}")
        for i in range(4):
            a(f"v_mov_b32 v{4 + i}, 0x3f803f80")
        a("s_waitcnt lgkmcnt(0)")
        srd(a, 8, 4, WS_SIZE)
        for s in range(16):
            if s % 4 == 0 and s > 0:
                a("s_add_u32 s30, s30, 4096")
            a(f"buffer_load_dwordx4 {vr(BUF + 4 * s, 4)}, v2, s[8:11], s30 offen offset:{(s % 4) * 1024}")
        for s in range(16):
            a(f"s_waitcnt vmcnt({15 - s})")
            a(MF32(vr(ACC, 16), vr(4, 4), vr(BUF + 4 * s, 4), "0" if s == 0 else None))
        a("v_and_b32 v3, 31, v0")
        a("v_lshlrev_b32 v3, 4, v3")
        a("v_mov_b32 v10, 0")
        a("v_mov_b32 v11, 0")
        a("s_nop 7")
        a(f"v_cvt_pk_bf16_f32 v8, v{ACC}, v{ACC}")
        a("v_lshlrev_b32 v9, 16, v8")
        a(f"v_sub_f32 v9, v{ACC}, v9")
        a("v_cvt_pk_bf16_f32 v9, v9, v9")
        a("buffer_store_dwordx4 v[8:11], v3, s[8:11], s31 offen")
    else:
        a("s_nop 0")
        for j in range(2):
            a(f"v_permlane32_swap_b32 v{o + 4 * j}, v{o + 4 * j + 2}")
            a(f"v_permlane32_swap_b32 v{o + 4 * j + 1}, v{o + 4 * j + 3}")
        for j in range(2):
            a(f"buffer_store_dwordx4 {vr(o + 4 * j, 4)}, v3, s[12:15], s34 offen offset:{j * 32}")
    a.label(f"{L}_END")
    a("s_endpgm")
    return n, a, kd(n, 224, 224), (256, 320 if three else 256, 49152)

def k4():
    a = Asm(); n = "k4_gateup_kernel"
    kernel_head(a, n)
    SLOT = 28672
    ACC = 16; WB = 128; CSR = 184; STR = 212; T = 228
    a("s_cmp_ge_u32 s2, 256")
    a("s_cbranch_scc1 K4_END")
    a("s_load_dwordx2 s[4:5], s[0:1], 72")
    a("v_lshrrev_b32 v1, 6, v0")
    a("v_and_b32 v0, 63, v0")
    a("v_readfirstlane_b32 s22, v1")
    a("v_lshlrev_b32 v2, 4, v0")
    a("s_and_b32 s23, s2, 1")
    a("s_lshl_b32 s23, s23, 3")
    a("s_bfe_u32 s29, s2, 0x30003")
    a("s_add_u32 s23, s23, s29")
    a("s_bfe_u32 s24, s2, 0x20001")
    a("s_lshl_b32 s24, s24, 2")
    a("s_lshr_b32 s29, s2, 6")
    a("s_add_u32 s24, s24, s29")
    a("s_lshl_b32 s25, s23, 2")
    a("s_add_u32 s25, s25, s22")
    a("s_lshl_b32 s26, s25, 15")
    a(f"s_add_u32 s26, s26, {HF}")
    a(f"s_mul_i32 s27, s24, {7 * 32768}")
    a("s_lshl_b32 s28, s22, 10")
    a("s_add_u32 s27, s27, s28")
    a(f"s_add_u32 s27, s27, {WGF}")
    a("s_lshl_b32 s30, s25, 12")
    a(f"s_add_u32 s30, s30, {ST}")
    a("s_mul_i32 s31, s24, 7168")
    a(f"s_add_u32 s31, s31, {CSF}")
    a(f"v_add_u32 v3, {2 * SLOT}, v2")
    a(f"v_add_u32 v4, {4 * SLOT}, v2")
    a("s_waitcnt lgkmcnt(0)")
    srd(a, 8, 4, WS_SIZE)
    def stage_loads(c):
        slot = (c % 5) * SLOT
        a(f"s_add_u32 s29, s26, {c * 4096}")
        for i in range(4):
            a(f"buffer_load_dwordx4 {ar(16 * c + 4 * i, 4)}, v2, s[8:11], s29 offen offset:{i * 1024}")
        for ft in range(7):
            a(f"s_add_u32 m0, s28, {slot + ft * 4096}")
            a(f"s_add_u32 s29, s27, {ft * 32768 + c * 4096}")
            a("buffer_load_dwordx4 v2, s[8:11], s29 offen lds")
    def extra_loads():
        for q in range(4):
            a(f"buffer_load_dwordx4 {vr(STR + 4 * q, 4)}, v2, s[8:11], s30 offen offset:{q * 1024}")
        for ft in range(7):
            if ft == 4:
                a("s_add_u32 s31, s31, 4096")
            a(f"buffer_load_dwordx4 {vr(CSR + 4 * ft, 4)}, v2, s[8:11], s31 offen offset:{(ft % 4) * 1024}")
    for c in range(5):
        stage_loads(c)
    def reads(c, s):
        slot = c % 5; st = slot // 2; off = (slot % 2) * SLOT
        ks = 4 * c + s
        for ft in range(7):
            a(f"ds_read_b128 {vr(WB + 28 * (ks % 2) + 4 * ft, 4)}, v{2 + st} offset:{off + ft * 4096 + s * 1024}")
    def mfmas(c, s):
        ks = 4 * c + s
        for ft in range(7):
            a(MF32(vr(ACC + 16 * ft, 16), vr(WB + 28 * (ks % 2) + 4 * ft, 4), ar(4 * ks, 4), "0" if ks == 0 else None))
    vm = [44, 33, 33, 33, 33, 33, 22, 11]
    for c in range(8):
        a(f"s_waitcnt vmcnt({vm[c]})")
        a("s_barrier")
        reads(c, 0)
        if 1 <= c <= 3:
            stage_loads(c + 4)
        if c == 4:
            extra_loads()
        for s in range(4):
            if s < 3:
                reads(c, s + 1)
                a("s_waitcnt lgkmcnt(7)")
            else:
                a("s_waitcnt lgkmcnt(0)")
            mfmas(c, s)
    a("s_waitcnt vmcnt(0)")
    for q in range(1, 4):
        for i in range(4):
            a(f"v_add_f32 v{STR + i}, v{STR + i}, v{STR + 4 * q + i}")
    a(f"v_add_f32 v8, v{STR}, v{STR + 2}")
    a(f"v_add_f32 v9, v{STR + 1}, v{STR + 3}")
    halfsum(a, 8, 1)
    halfsum(a, 9, 1)
    a(f"v_mul_f32 v8, {f32(-1/512)}, v8")
    a(f"v_mul_f32 v9, {f32(1/512)}, v9")
    a("v_fma_f32 v9, -v8, v8, v9")
    a("v_max_f32 v9, 0, v9")
    a(f"v_add_f32 v9, {f32(EPS)}, v9")
    a("v_rsq_f32 v10, v9")
    a("v_cvt_pk_bf16_f32 v11, v8, v8")
    a("v_lshlrev_b32 v11, 16, v11")
    a("v_sub_f32 v12, v8, v11")
    a(f"v_cvt_pk_bf16_f32 v{T}, v11, v12")
    a(f"v_mov_b32 v{T+2}, 0")
    a(f"v_mov_b32 v{T+3}, 0")
    a(f"v_mov_b32 v{T+1}, v{T}")
    K1C = 2 * math.sqrt(2 / math.pi) * LOG2E
    a(f"v_mul_f32 v11, {f32(-K1C)}, v10")
    a("v_mul_f32 v12, v10, v10")
    for ft in range(7):
        a(MF32(vr(ACC + 16 * ft, 16), vr(CSR + 4 * ft, 4), vr(T, 4)))
    a("v_mul_f32 v12, v12, v11")
    a(f"v_mul_f32 v12, {f32(0.044715)}, v12")
    a(f"s_mul_i32 s29, s25, {112 * 1024}")
    a("s_mul_i32 s30, s24, 7168")
    a("s_add_u32 s29, s29, s30")
    a(f"s_add_u32 s29, s29, {GF}")
    for ft in range(7):
        g = ACC + 16 * ft; u = g + 8; z = WB + 16 * (ft % 2)
        for i in range(8): a(f"v_mul_f32 v{z+i}, v{g+i}, v{g+i}")
        for i in range(8): a(f"v_fma_f32 v{z+i}, v{z+i}, v12, v11")
        for i in range(8): a(f"v_mul_f32 v{z+i}, v{z+i}, v{g+i}")
        for i in range(8): a(f"v_exp_f32 v{z+i}, v{z+i}")
        for i in range(8): a(f"v_mul_f32 v{g+i}, v{g+i}, v{u+i}")
        for i in range(8): a(f"v_fma_f32 v{z+i}, v{z+i}, v9, v9")
        for i in range(8): a(f"v_rcp_f32 v{z+i}, v{z+i}")
        a("s_nop 0")
        for i in range(8): a(f"v_mul_f32 v{g+i}, v{g+i}, v{z+i}")
        for i in range(4): a(f"v_cvt_pk_bf16_f32 v{z+8+i}, v{g+2*i}, v{g+2*i+1}")
        if ft == 4:
            a("s_add_u32 s29, s29, 4096")
        a(f"buffer_store_dwordx4 {vr(z + 8, 4)}, v2, s[8:11], s29 offen offset:{(ft % 4) * 1024}")
    a.label("K4_END")
    a("s_endpgm")
    return n, a, kd(n, 240 + 128, 240), (256, 256, 5 * SLOT)

def main(out):
    ks = [k1(), k2(), k35(3), k4(), k35(5)]
    hdr = open("cdna_kernels/" + NAME + ".s.ref").read().split("\n")
    hdr = [l for l in hdr if l.startswith(";") and "@launch" not in l and "Override" not in l and "grid=ceil" not in l]
    txt = "\n".join(hdr) + "\n"
    for n, a, d, (g, b, lds) in ks:
        txt += f"; @launch kernel={n} grid=({g},1,1) block=({b},1,1) lds={lds}\n"
    txt += '.amdgcn_target "amdgcn-amd-amdhsa--gfx950"\n.text\n'
    bad = 0
    for n, a, d, _ in ks:
        bad += check_hazards(a.lines, n)
        txt += a.text()
    txt += '.section .rodata,"a"\n'
    for n, a, d, _ in ks:
        txt += ".p2align 6\n" + d
    open(out, "w").write(txt)
    print("hazards:", bad)

if __name__ == "__main__":
    main(sys.argv[1] if len(sys.argv) > 1 else "cdna_kernels/" + NAME + ".s")
```

```python
import sys, math, struct
from asmlib import *

NAME = "sequential_preLN__mha_block__geglu_ffn__prompt"

QF, KF, VF, OF, HF = 0x000000, 0x200000, 0x400000, 0x600000, 0x800000
ST  = 0xA00000
CSF = 0xA80000
WOF = 0xB00000
WGF = 0xC00000
WDF = 0x1000000
GF  = 0x1200000
WS_SIZE = 0x10000000

def f32(x):
    return "0x%08x" % struct.unpack("<I", struct.pack("<f", x))[0]

LOG2E = 1.4426950408889634
EPS = 1e-5

def srd(a, s, base, size):
    a(f"s_mov_b32 s{s}, s{base}")
    a(f"s_mov_b32 s{s+1}, s{base+1}")
    a(f"s_mov_b32 s{s+2}, {hex(size)}")
    a(f"s_mov_b32 s{s+3}, 0x00020000")

def kernel_head(a, name):
    a.raw(f".globl {name}")
    a.raw(".p2align 8")
    a.raw(f".type {name},@function")
    a.raw(f"{name}:")

def kd(name, nvgpr, accum, nsgpr=100):
    return f""".amdhsa_kernel {name}
  .amdhsa_next_free_vgpr {nvgpr}
  .amdhsa_next_free_sgpr {nsgpr}
  .amdhsa_accum_offset {accum}
  .amdhsa_group_segment_fixed_size 0
  .amdhsa_kernarg_size 80
  .amdhsa_user_sgpr_count 2
  .amdhsa_user_sgpr_kernarg_segment_ptr 1
  .amdhsa_system_sgpr_workgroup_id_x 1
.end_amdhsa_kernel
"""

STAMP = False
K1_ROT = 1
K1_TW = [-1, 0, 1]
K4_SL = 26
K2_S3 = 11
K2_WD = 0
K1_D = 2
K4_D = 2
K4_XB = 12
K4_TOUCH = 1
K2_S2 = 4
K1_TOUCH = 1
ST_FLAGS = ['', '', '', '', '']
K2_Y = 28
SIDE_SC = 'sc1'
K1_UP = 14
K4_UP = 22
DBGOFF = 0x2000000
def stamp(a, i):
    if not STAMP: return
    a(f"s_memrealtime s[{64 + 4 * i}:{65 + 4 * i}]")
    a(f"s_memtime s[{66 + 4 * i}:{67 + 4 * i}]")
    if i != 0:
        a("s_waitcnt lgkmcnt(0)")
def stamp_end(a, kidx, n, srdreg, wavereg=22):
    if not STAMP: return
    a("s_waitcnt vmcnt(0)")
    stamp(a, n)
    a("s_lshl_b32 s60, s2, 3")
    a(f"s_add_u32 s60, s60, s{wavereg}")
    a("s_lshl_b32 s60, s60, 6")
    a(f"s_add_u32 s60, s60, {DBGOFF + kidx * 0x40000}")
    a("v_mov_b32 v0, 0")
    for j in range(2 * n + 2):
        a(f"v_mov_b32 v1, s{64 + 2 * j}")
        a(f"buffer_store_dword v1, v0, s[{srdreg}:{srdreg+3}], s60 offen offset:{4 * j}")

def MF32(d, A, B, C=None):
    C = d if C is None else C
    return f"v_mfma_f32_32x32x16_bf16 {d}, {A}, {B}, {C}"

def halfsum(a, v, t):
    a(f"v_mov_b32 v{t}, v{v}")
    a("s_nop 1")
    a(f"v_permlane32_swap_b32 v{v}, v{t}")
    a(f"v_add_f32 v{v}, v{v}, v{t}")


def k1():
    a = Asm(); n = "k1_qkv_kernel"
    kernel_head(a, n)
    SLOT = 28672; SCR = 5 * SLOT; SCR2 = SCR + 1536; SCR3 = SCR2 + 512
    D = K1_D
    a("s_cmp_ge_u32 s2, 256")
    a("s_cbranch_scc1 K1_END")
    stamp(a, 0)
    a("s_load_dwordx4 s[4:7], s[0:1], 0")
    a("s_load_dwordx2 s[20:21], s[0:1], 72")
    a("v_lshrrev_b32 v1, 6, v0")
    a("v_and_b32 v0, 63, v0")
    a("v_readfirstlane_b32 s35, v1")
    a("s_and_b32 s23, s2, 3")
    a("s_lshl_b32 s23, s23, 2")
    a("s_bfe_u32 s29, s2, 0x20003")
    a("s_add_u32 s23, s23, s29")
    a("s_bfe_u32 s24, s2, 0x10002")
    a("s_lshl_b32 s24, s24, 3")
    a("s_lshr_b32 s29, s2, 5")
    a("s_add_u32 s24, s24, s29")
    a("s_and_b32 s22, s35, 3")
    a("s_lshl_b32 s27, s22, 12")
    a("s_lshl_b32 s40, s2, 1")
    a("s_and_b32 s29, s2, 4")
    a("s_add_u32 s40, s40, s29")
    if not K1_ROT: a("s_mov_b32 s40, 0")
    a("s_cmp_lt_u32 s35, 4")
    a("s_cbranch_scc1 K1_RDADDR")
    a("s_lshl_b32 s25, s23, 17")
    a("s_lshl_b32 s29, s22, 15")
    a("s_add_u32 s25, s25, s29")
    a("s_mul_i32 s26, s22, 49152")
    a("s_lshl_b32 s29, s24, 6")
    a("s_add_u32 s26, s26, s29")
    a("s_lshl_b32 s28, s22, 10")
    a("s_add_u32 s28, s28, 16384")
    a("s_mov_b32 s30, 0x3f803f80")
    a("v_lshrrev_b32 v5, 3, v0")
    a("v_lshlrev_b32 v2, 10, v5")
    a("v_and_b32 v6, 7, v0")
    a("v_lshrrev_b32 v7, 4, v0")
    a("v_xor_b32 v6, v6, v7")
    a("v_lshl_add_u32 v2, v6, 4, v2")
    a("v_xor_b32 v3, 64, v2")
    a("v_add_u32 v3, 8192, v3")
    a("v_lshrrev_b32 v5, 2, v0")
    a("v_mul_u32_u24 v4, 3072, v5")
    a("v_and_b32 v6, 3, v0")
    a("v_lshl_add_u32 v4, v6, 4, v4")
    a("s_waitcnt lgkmcnt(0)")
    srd(a, 8, 4, 2048 * 512 * 2)
    srd(a, 12, 6, 512 * 1536 * 2)
    def dma(c):
        slot = (c % 5) * SLOT
        a(f"s_add_u32 s41, s40, {c}")
        a("s_and_b32 s41, s41, 7")
        a("s_lshl_b32 s42, s41, 7")
        a("s_add_u32 s42, s42, s25")
        a(f"s_mul_i32 s41, s41, {64 * 3072}")
        a("s_add_u32 s41, s41, s26")
        for p in range(3):
            a(f"s_add_u32 m0, s28, {slot + p * 4096}")
            a(f"s_add_u32 s29, s41, {p * 1024}")
            a(f"buffer_load_dwordx4 v4, s[12:15], s29 offen lds")
        for i in range(4):
            a(f"s_add_u32 m0, s27, {slot + i * 1024}")
            a(f"s_add_u32 s29, s42, {(i // 2) * 16384}")
            a(f"buffer_load_dwordx4 v{2 + (i % 2)}, s[8:11], s29 offen lds")
    for c in range(D + 1):
        dma(c)
    a.label("K1_RDADDR")
    a("v_and_b32 v5, 31, v0")
    a("v_lshrrev_b32 v6, 5, v0")
    a("v_bfe_u32 v7, v0, 1, 3")
    a("v_xor_b32 v7, v7, v6")
    a("v_lshlrev_b32 v5, 7, v5")
    a("v_add_u32 v5, s27, v5")
    for s in range(4):
        a(f"v_xor_b32 v1, {2 * s}, v7")
        a(f"v_lshl_add_u32 v{8 + s}, v1, 4, v5")
        a(f"v_add_u32 v{12 + s}, {2 * SLOT}, v{8 + s}")
        a(f"v_add_u32 v{16 + s}, {4 * SLOT}, v{8 + s}")
    a("v_bfe_u32 v1, v0, 2, 2")
    a("v_lshl_add_u32 v1, v6, 3, v1")
    a("v_lshlrev_b32 v20, 6, v1")
    a("v_bfe_u32 v1, v0, 4, 1")
    a("v_lshl_add_u32 v20, v1, 5, v20")
    a("v_and_b32 v1, 3, v0")
    a("v_lshl_add_u32 v20, v1, 3, v20")
    a("s_cmp_lt_u32 s35, 4")
    a("s_cbranch_scc1 K1_MM")
    a("s_lshl_b32 s29, s22, 10")
    a("v_add_u32 v20, s29, v20")
    a(f"v_add_u32 v21, {2 * SLOT}, v20")
    a(f"v_add_u32 v22, {4 * SLOT}, v20")
    for i in range(28, 31):
        a(f"v_mov_b32 v{i}, 0")
    WB = 48
    for c in range(8):
        slot = c % 5; st = slot // 2; off = (slot % 2) * SLOT
        a(f"s_waitcnt vmcnt({7 * (min(c + D, 7) - c)})")
        a("s_barrier")
        for p in range(3):
            for u in range(2):
                a(f"ds_read_b64_tr_b16 {vr(WB + 4 * p + 2 * u, 2)}, v{20 + st} offset:{off + 16384 + p * 4096 + u * 256}")
        if c + D + 1 < 8:
            dma(c + D + 1)
        a("s_waitcnt lgkmcnt(0)")
        for i in range(4):
            for p in range(3):
                a(f"v_dot2c_f32_bf16 v{28 + p}, s30, v{WB + 4 * p + i}")
    a("v_and_b32 v5, 31, v0")
    a("v_lshlrev_b32 v6, 4, v5")
    a("s_lshl_b32 s29, s22, 2")
    a(f"s_add_u32 s29, s29, {SCR}")
    a("v_add_u32 v7, s29, v6")
    for p in range(3):
        halfsum(a, 28 + p, 1)
        a(f"ds_write_b32 v7, v{28 + p} offset:{p * 512}")
    a("s_waitcnt lgkmcnt(0)")
    a("s_barrier")
    a("s_endpgm")
    a.label("K1_MM")
    a(f"v_add_u32 v21, {2 * SLOT}, v20")
    a(f"v_add_u32 v22, {4 * SLOT}, v20")
    a("s_mov_b32 s30, 0x3f803f80")
    for i in range(24, 28):
        a(f"v_mov_b32 v{i}, 0")
    a("v_and_b32 v5, 31, v0")
    a("v_lshlrev_b32 v6, 4, v5")
    a(f"v_add_u32 v6, {SCR}, v6")
    a("s_lshl_b32 s29, s22, 7")
    a(f"s_add_u32 s29, s29, {SCR2}")
    a("v_lshlrev_b32 v7, 2, v5")
    a("v_add_u32 v7, s29, v7")
    a("v_lshrrev_b32 v1, 5, v0")
    a("v_lshlrev_b32 v1, 4, v1")
    a("v_add_u32 v1, s29, v1")
    a("s_lshl_b32 s29, s23, 2")
    a("s_add_u32 s29, s29, s22")
    a("s_lshl_b32 s29, s29, 10")
    a("s_lshl_b32 s31, s24, 17")
    a("s_add_u32 s29, s29, s31")
    a("s_add_u32 s31, s29, 65536")
    a(f"s_add_u32 s32, s29, {KF}")
    a(f"s_add_u32 s33, s29, {KF + 65536}")
    a(f"s_add_u32 s34, s29, {VF}")
    a("v_lshlrev_b32 v2, 4, v0")
    a("v_bfe_u32 v3, v0, 4, 1")
    a("v_lshlrev_b32 v3, 16, v3")
    a("v_lshrrev_b32 v4, 5, v0")
    a("v_lshl_add_u32 v3, v4, 8, v3")
    a("v_and_b32 v4, 15, v0")
    a("v_lshl_add_u32 v3, v4, 4, v3")
    a("s_waitcnt lgkmcnt(0)")
    srd(a, 16, 20, WS_SIZE)
    TQ = {}
    if K1_TOUCH:
        srd(a, 8, 4, 2048 * 512 * 2)
        a("s_lshr_b32 s37, s2, 3")
        a("v_and_b32 v28, 3, v0")
        a("s_mov_b32 s39, 256")
        a("s_and_b32 s36, s2, 3")
        a("s_lshl_b32 s36, s36, 19")
        a("s_lshl_b32 s38, s37, 14")
        a("s_add_u32 s36, s36, s38")
        a("v_bfe_u32 v23, v0, 1, 4")
        a("v_lshlrev_b32 v23, 10, v23")
        a("v_and_b32 v29, 1, v0")
        a("v_lshl_add_u32 v23, v29, 7, v23")
        a("s_cmp_lg_u32 s22, 0")
        a("s_cbranch_scc1 K1_TD")
        srd(a, 8, 6, 512 * 1536 * 2)
        a(f"s_mov_b32 s39, {128 * 3072}")
        a("s_mul_i32 s36, s37, 12288")
        a("s_bfe_u32 s38, s2, 0x10002")
        a("s_lshl_b32 s38, s38, 9")
        a("s_add_u32 s36, s36, s38")
        a("v_lshrrev_b32 v23, 4, v0")
        a("v_mul_u32_u24 v23, 3072, v23")
        a("v_bfe_u32 v30, v0, 2, 2")
        a("v_min_u32 v30, 2, v30")
        a("v_lshl_add_u32 v23, v30, 10, v23")
        a("v_lshl_add_u32 v23, v28, 7, v23")
        a.label("K1_TD")
        def touch(n_):
            return ["s_cmp_ge_u32 s22, 2", f"s_cbranch_scc1 K1_TS{n_}",
                    "s_lshr_b32 s38, s40, 1", f"s_add_u32 s38, s38, {n_ + 1}", "s_and_b32 s38, s38, 3",
                    "s_mul_i32 s38, s38, s39", "s_add_u32 s38, s38, s36",
                    "buffer_load_dword v31, v23, s[8:11], s38 offen", f"K1_TS{n_}:"]
        for n_, when in enumerate(K1_TW):
            if when < 0:
                for x in touch(n_): a(x)
            else:
                TQ.setdefault(when, []).extend(touch(n_))
    ACC = 32
    def xf(ks): return 80 + (ks % 8) * 4
    def wf(ks, p): return 112 + (ks % 3) * 12 + p * 4
    def reads(ks):
        c, s = ks // 4, ks % 4
        slot = c % 5; st = slot // 2; off = (slot % 2) * SLOT
        out = [f"ds_read_b128 {vr(xf(ks), 4)}, v{8 + 4 * st + s} offset:{off}"]
        for p in range(3):
            for u in range(2):
                out.append(f"ds_read_b64_tr_b16 {vr(wf(ks, p) + 2 * u, 2)}, v{20 + st} offset:{off + 16384 + p * 4096 + s * 1024 + u * 256}")
        return out
    def mfmas(ks):
        X = vr(xf(ks), 4); out = []
        for p in range(3):
            D_ = vr(ACC + 16 * p, 16); W = vr(wf(ks, p), 4)
            A, B = (W, X) if p < 2 else (X, W)
            out.append(MF32(D_, A, B, "0" if ks == 0 else None))
        return out
    def dots(k0, k1_):
        for ks in range(k0, k1_):
            for i in range(4):
                a(f"v_dot2c_f32_bf16 v{24 + i % 2}, s30, v{xf(ks) + i}")
                a(f"v_dot2c_f32_bf16 v{26 + i % 2}, v{xf(ks) + i}, v{xf(ks) + i}")
    a("s_barrier")
    stamp(a, 1)
    for r in reads(0) + reads(1): a(r)
    for x in TQ.get(0, []): a(x)
    for ks in range(32):
        c, s = ks // 4, ks % 4
        M = mfmas(ks); R = reads(ks + 2) if ks + 2 < 32 else []
        if s == 2:
            dots(max(ks - 3, 0), ks)
            a("s_waitcnt lgkmcnt(0)")
            dots(ks, ks + 1)
            if c == 7: dots(ks + 1, ks + 2)
            a(M[0])
            if c < 7:
                a("s_barrier")
                if c < 5: stamp(a, 2 + c)
                for x in TQ.get(c + 1, []): a(x)
        else:
            a(f"s_waitcnt lgkmcnt({7 if ks < 31 else 0})")
            a(M[0])
        E = []
        if ks >= 30:
            if ks == 30:
                E = ["v_add_f32 v24, v24, v25", "v_add_f32 v26, v26, v27", "v_mov_b32 v25, v24", "v_mov_b32 v27, v26", "s_nop 0",
                     "v_permlane32_swap_b32 v24, v25", "v_permlane32_swap_b32 v26, v27", "v_add_f32 v24, v24, v25", "v_add_f32 v26, v26, v27",
                     f"v_mul_f32 v24, {f32(1/512)}, v24", f"v_mul_f32 v26, {f32(1/512)}, v26", "v_fma_f32 v26, -v24, v24, v26",
                     "v_max_f32 v26, 0, v26", f"v_add_f32 v26, {f32(EPS)}, v26", "v_rsq_f32 v26, v26"]
                E = ["s_nop 1"] + E
            else:
                E = ["ds_write_b32 v7, v26", "v_mul_f32 v24, -0.5, v24", "v_cvt_pk_bf16_f32 v25, v24, v24", "v_lshlrev_b32 v25, 16, v25",
                     "v_sub_f32 v27, v24, v25", "v_cvt_pk_bf16_f32 v148, v25, v27", "v_mov_b32 v150, 0", "v_mov_b32 v151, 0",
                     "v_mov_b32 v149, v148", f"v_mul_f32 v28, {f32(0.25 * LOG2E)}, v26", "v_mov_b32 v27, v26", "v_mov_b32 v29, v28"]
            R = E
            n3 = (len(R) + 2) // 3
        else:
            n3 = 3
        for r in R[:n3]: a(r)
        a(M[1])
        for r in R[n3:2 * n3]: a(r)
        a(M[2])
        for r in R[2 * n3:]: a(r)
    a("s_waitcnt lgkmcnt(0)")
    a("s_barrier")
    for p in range(3):
        a(f"ds_read_b128 {vr(80 + 4 * p, 4)}, v6 offset:{p * 512}")
    for g in range(4):
        a(f"ds_read_b128 {vr(96 + 4 * g, 4)}, v1 offset:{g * 32}")
    CF = 152
    for p in range(3):
        a(f"v_mov_b32 v{CF + 4 * p + 2}, 0")
        a(f"v_mov_b32 v{CF + 4 * p + 3}, 0")
    for p in range(3):
        b = 80 + 4 * p; f = CF + 4 * p
        a(f"s_waitcnt lgkmcnt({6 - p})")
        a(f"v_add_f32 v{b}, v{b}, v{b+1}")
        a(f"v_add_f32 v{b+2}, v{b+2}, v{b+3}")
        a(f"v_add_f32 v{b}, v{b}, v{b+2}")
        a(f"v_cvt_pk_bf16_f32 v{f}, v{b}, v{b}")
        a(f"v_lshlrev_b32 v{b+1}, 16, v{f}")
        a(f"v_sub_f32 v{b+1}, v{b}, v{b+1}")
        a(f"v_cvt_pk_bf16_f32 v{f+1}, v{b+1}, v{b+1}")
        if p >= 1:
            q = p - 1
            a(MF32(vr(ACC + 16 * q, 16), vr(CF + 4 * q, 4), vr(148, 4)))
    a("s_waitcnt lgkmcnt(0)")
    a("s_nop 0")
    a(MF32(vr(ACC + 32, 16), vr(148, 4), vr(CF + 8, 4)))
    a("s_nop 1")
    for p in range(3):
        b = ACC + 16 * p; o = 112 + 8 * p
        for i in range(0, 16, 2):
            sc = "v[28:29]" if p == 0 else "v[26:27]" if p == 1 else vr(96 + i, 2)
            a(f"v_pk_mul_f32 {vr(b + i, 2)}, {sc}, {vr(b + i, 2)}")
        for i in range(8):
            a(f"v_cvt_pk_bf16_f32 v{o+i}, v{b+2*i}, v{b+2*i+1}")
        if p < 2:
            a(f"buffer_store_dwordx4 {vr(o, 4)}, v2, s[16:19], s{29 if p == 0 else 32} offen")
            a(f"buffer_store_dwordx4 {vr(o + 4, 4)}, v2, s[16:19], s{31 if p == 0 else 33} offen")
        else:
            a(f"buffer_store_dwordx4 {vr(o, 4)}, v3, s[16:19], s34 offen")
            a(f"buffer_store_dwordx4 {vr(o + 4, 4)}, v3, s[16:19], s34 offen offset:512")
    stamp_end(a, 0, 7, 16)
    a.label("K1_END")
    a("s_endpgm")
    return n, a, kd(n, 168, 168), (256, 512, SCR3 + 512)

def k2():
    a = Asm(); n = "k2_attn_kernel"
    kernel_head(a, n)
    Q = 4; NEGM = 16; S = [32, 48]; O = 64; P = 80; KR = 96; VR = 112
    a("s_cmp_ge_u32 s2, 256")
    a("s_cbranch_scc1 K2_END")
    stamp(a, 0)
    a("s_load_dwordx2 s[4:5], s[0:1], 72")
    a("v_lshrrev_b32 v1, 6, v0")
    a("v_and_b32 v0, 63, v0")
    a("v_readfirstlane_b32 s22, v1")
    a("s_and_b32 s23, s2, 7")
    a("s_lshl_b32 s23, s23, 2")
    a("s_bfe_u32 s29, s2, 0x20003")
    a("s_add_u32 s23, s23, s29")
    a("s_lshr_b32 s24, s2, 5")
    a("s_lshl_b32 s25, s23, 16")
    a("v_lshlrev_b32 v2, 4, v0")
    a("s_cmp_eq_u32 s22, 8")
    a("s_cbranch_scc1 K2_HELP")
    a("s_lshl_b32 s26, s22, 10")
    a("s_add_u32 s27, s25, s26")
    a("s_lshl_b32 s28, s24, 13")
    a("s_add_u32 s28, s28, s27")
    a(f"s_add_u32 s29, s27, {KF}")
    a(f"s_add_u32 s30, s27, {VF}")
    a("s_mov_b32 m0, s26")
    a("s_waitcnt lgkmcnt(0)")
    srd(a, 8, 4, WS_SIZE)
    a("buffer_load_dwordx4 v2, s[8:11], s29 offen lds")
    a(f"buffer_load_dwordx4 {vr(Q, 4)}, v2, s[8:11], s28 offen")
    a("s_add_u32 m0, s26, 65536")
    a("s_nop 0")
    a("buffer_load_dwordx4 v2, s[8:11], s30 offen lds")
    a("v_lshrrev_b32 v11, 5, v0")
    a("v_and_b32 v12, 15, v0")
    a("v_lshl_add_u32 v12, v11, 4, v12")
    a("v_lshlrev_b32 v12, 4, v12")
    a("v_add_u32 v13, 65536, v12")
    a("s_mov_b32 s34, 0x0000ffff")
    a("s_mov_b32 s35, 0x0000ffff")
    a(f"s_mov_b32 s50, {f32(2.0**60)}")
    a("s_mov_b32 s51, 1")
    a("s_mov_b32 s52, 0")
    for i in range(32):
        a(f"v_mov_b32 v{VR + i}, 0x3f803f80")
    def zero_state():
        for i in range(16):
            a(f"v_mov_b32 v{O + i}, 0")
        for i in range(4, 8):
            a(f"v_mov_b32 v{P + i}, 0")
        a("v_mov_b32 v3, v2")
        a("v_mov_b32 v1, v13")
        a("s_mov_b32 s33, 0")
    def kread(t): a(f"ds_read_b128 {vr(KR + 4 * (t % 4), 4)}, v3 offset:{t * 1024}")
    def vread(t):
        a("s_mov_b64 exec, s[34:35]")
        for j in range(2):
            a(f"ds_read_b128 {vr(VR + 8 * (t % 4) + 4 * j, 4)}, v1 offset:{t * 1024 + j * 512}")
        a("s_mov_b64 exec, -1")
    def prime():
        kread(0); kread(1); vread(0); kread(2); vread(1)
    zero_state()
    a("s_waitcnt vmcnt(0)")
    a("s_barrier")
    stamp(a, 1)
    prime()
    a("s_waitcnt lgkmcnt(6)")
    s0 = S[0]
    a(MF32(vr(s0, 16), vr(KR, 4), vr(Q, 4), "0"))
    a("s_nop 11")
    for i in range(5):
        a(f"v_max3_f32 v{NEGM + i}, v{s0+3*i}, v{s0+3*i+1}, v{s0+3*i+2}")
    a(f"v_max3_f32 v14, v{NEGM}, v{NEGM+1}, v{s0+15}")
    a(f"v_max3_f32 v15, v{NEGM+2}, v{NEGM+3}, v{NEGM+4}")
    a("v_max_f32 v14, v14, v15")
    a.label("K2_RESTART")
    a("v_mov_b32 v15, v14")
    a("s_nop 1")
    a("v_permlane32_swap_b32 v14, v15")
    a("v_max_f32 v14, v14, v15")
    for i in range(16):
        a(f"v_sub_f32 v{NEGM + i}, 0, v14")
    a("s_nop 1")
    a(MF32(vr(S[0], 16), vr(KR, 4), vr(Q, 4), vr(NEGM, 16)))
    a("s_nop 8")
    a.raw(".p2align 6")
    a.label("K2_LOOP")
    body = Asm(); b = body
    for t in range(4):
        Sc = S[t % 2]; Sn = S[(t + 1) % 2]
        E = lambda i: b(f"v_exp_f32 v{Sc+i}, v{Sc+i}")
        C = lambda i: b(f"v_cvt_pk_bf16_f32 v{P+i}, v{Sc+2*i}, v{Sc+2*i+1}")
        b("s_waitcnt lgkmcnt(3)")
        b(MF32(vr(Sn, 16), vr(KR + 4 * ((t + 1) % 4), 4), vr(Q, 4), vr(NEGM, 16)))
        for i in range(5): E(i)
        b(MF32(vr(O, 16), vr(VR + 8 * ((t - 1) % 4) + 4, 4), vr(P + 4, 4)))
        b(f"ds_read_b128 {vr(KR + 4 * ((t + 3) % 4), 4)}, v3 offset:{(t + 3) * 1024}")
        b("s_mov_b64 exec, s[34:35]")
        for j in range(2):
            b(f"ds_read_b128 {vr(VR + 8 * ((t + 2) % 4) + 4 * j, 4)}, v1 offset:{(t + 2) * 1024 + j * 512}")
        b("s_mov_b64 exec, -1")
        for i in range(5, 8): E(i)
        for i in range(4): C(i)
        E(8); E(9)
        b(MF32(vr(O, 16), vr(VR + 8 * (t % 4), 4), vr(P, 4)))
        for i in range(10, 16): E(i)
        if t == 3:
            b("v_add_u32 v3, 4096, v3")
            b("v_add_u32 v1, 4096, v1")
        for i in range(4, 8): C(i)
    if K2_Y:
        bl = []
        for cnt, ln in enumerate(body.lines):
            if cnt == 0: bl.append("    s_setprio 0")
            if cnt == K2_Y: bl.append("    s_setprio 1")
            bl.append(ln)
        body.lines = bl
    a.lines += body.lines
    a("s_add_u32 s33, s33, 1")
    a("s_cmp_lt_u32 s33, s51")
    a("s_cbranch_scc1 K2_LOOP")
    a("s_cmp_lt_u32 s33, 16")
    a("s_cbranch_scc1 K2_SYNC")
    check_hazards(body.lines + body.lines, "k2loop")
    a(MF32(vr(O, 16), vr(VR + 8 * 3 + 4, 4), vr(P + 4, 4)))
    a("s_lshl_b32 s29, s24, 3")
    a("s_add_u32 s29, s29, s22")
    a("s_lshl_b32 s29, s29, 15")
    a("s_lshl_b32 s30, s23, 10")
    a("s_add_u32 s29, s29, s30")
    a(f"s_add_u32 s29, s29, {OF}")
    a("s_waitcnt lgkmcnt(0)")
    a("s_nop 4")
    a(f"v_cmp_gt_f32 vcc, s50, v{O + 8}")
    a(f"v_rcp_f32 v14, v{O + 8}")
    a("s_nop 0")
    a("s_cmp_eq_u64 vcc, -1")
    a("s_cbranch_scc0 K2_FALLBACK")
    a.label("K2_FIN")
    stamp(a, 4)
    for i in range(8):
        a(f"v_mul_f32 v{O+i}, v14, v{O+i}")
    for i in range(4):
        a(f"v_cvt_pk_bf16_f32 v{P+i}, v{O+2*i}, v{O+2*i+1}")
    a(f"buffer_store_dwordx4 {vr(P, 4)}, v2, s[8:11], s29 offen")
    stamp_end(a, 1, 5, 8)
    a("s_endpgm")
    a.label("K2_SYNC")
    a("s_barrier")
    a(f"s_cmp_eq_u32 s33, {K2_S2}")
    a(f"s_cselect_b32 s51, {K2_S3}, 16")
    a("s_cmp_eq_u32 s33, 1")
    a(f"s_cselect_b32 s51, {K2_S2}, s51")
    if STAMP:
        a("s_cbranch_scc0 K2_ST3")
        stamp(a, 2)
        a("s_branch K2_LOOP")
        a.label("K2_ST3")
        stamp(a, 3)
    a("s_branch K2_LOOP")
    a.label("K2_FALLBACK")
    a("s_cmp_eq_u32 s52, 1")
    a("s_cbranch_scc1 K2_FIN")
    a("s_mov_b32 s52, 1")
    a("v_mov_b32 v3, v2")
    a("v_mov_b32 v14, 0xff800000")
    a("s_mov_b32 s33, 0")
    a.label("K2_FB_LOOP")
    a(f"ds_read_b128 {vr(KR, 4)}, v3")
    a("v_add_u32 v3, 1024, v3")
    a("s_waitcnt lgkmcnt(0)")
    a(MF32(vr(S[0], 16), vr(KR, 4), vr(Q, 4), "0"))
    a("s_nop 11")
    for i in range(0, 16, 2):
        a(f"v_max3_f32 v14, v14, v{s0+i}, v{s0+i+1}")
    a("s_add_u32 s33, s33, 1")
    a("s_cmp_lt_u32 s33, 64")
    a("s_cbranch_scc1 K2_FB_LOOP")
    zero_state()
    prime()
    a("s_waitcnt lgkmcnt(6)")
    a("s_branch K2_RESTART")
    a.label("K2_HELP")
    a("s_setprio 3")
    a("s_load_dwordx2 s[54:55], s[0:1], 0")
    a("s_load_dwordx2 s[6:7], s[0:1], 16")
    a("s_load_dwordx4 s[40:43], s[0:1], 32")
    a("s_load_dwordx2 s[44:45], s[0:1], 48")
    a(f"s_add_u32 s27, s25, {KF + 8192}")
    a("s_mov_b32 s26, 8192")
    a("s_waitcnt lgkmcnt(0)")
    srd(a, 8, 4, WS_SIZE)
    def dma_loop(lbl, end):
        a.label(lbl)
        a("s_mov_b32 m0, s26")
        a(f"s_add_u32 s29, s27, {VF - KF}")
        for i in range(4):
            a(f"buffer_load_dwordx4 v2, s[8:11], s27 offen offset:{i * 1024} lds")
        a("s_add_u32 m0, s26, 65536")
        a("s_add_u32 s26, s26, 4096")
        for i in range(4):
            a(f"buffer_load_dwordx4 v2, s[8:11], s29 offen offset:{i * 1024} lds")
        a("s_add_u32 s27, s27, 4096")
        a(f"s_cmp_lt_u32 s26, {end}")
        a(f"s_cbranch_scc1 {lbl}")
    dma_loop("K2_H1", 32768)
    a("s_barrier")
    a("s_waitcnt vmcnt(0)")
    a("s_barrier")
    dma_loop("K2_H2", 65536)
    a("s_waitcnt vmcnt(0)")
    a("s_barrier")
    SCR = 131072 + 8192
    a("v_lshrrev_b32 v10, 2, v0")
    a("v_and_b32 v11, 3, v0")
    a("v_lshlrev_b32 v11, 4, v11")
    a("v_lshrrev_b32 v12, 5, v0")
    a("v_bfe_u32 v13, v0, 2, 2")
    a("v_lshl_add_u32 v12, v12, 2, v13")
    a("v_lshlrev_b32 v12, 6, v12")
    a("v_and_b32 v13, 3, v0")
    a("v_lshl_add_u32 v12, v13, 3, v12")
    a(f"v_add_u32 v12, {SCR}, v12")
    a("v_bfe_u32 v13, v0, 4, 1")
    a("v_lshl_add_u32 v14, v13, 5, v12")
    a("v_lshl_add_u32 v15, v13, 12, v12")
    a("s_mul_i32 s36, s2, 3")
    for jb in range(3):
        L = f"K2_J{jb}"
        dst, strd, typ = 56 + 3 * jb, 57 + 3 * jb, 58 + 3 * jb
        if STAMP: dst, strd, typ = 88 + 3 * jb, 89 + 3 * jb, 90 + 3 * jb
        a(f"s_mov_b32 s{typ}, 0")
        a(f"s_add_u32 s30, s36, {jb}")
        a("s_cmp_ge_u32 s30, 736")
        a(f"s_cbranch_scc1 {L}_END")
        a(f"s_mov_b32 s{strd}, 32768")
        a("s_cmp_ge_u32 s30, 288")
        a(f"s_cbranch_scc1 {L}_GU")
        a(f"s_mov_b32 s{typ}, 1")
        srd(a, 12, 6, 512 * 512 * 2)
        a(f"s_mov_b32 s{dst}, {WOF}")
        a("s_cmp_lt_u32 s30, 64")
        a(f"s_cbranch_scc1 {L}_OD")
        a("s_sub_u32 s30, s30, 64")
        srd(a, 12, 44, 1792 * 512 * 2)
        a(f"s_mov_b32 s{strd}, 114688")
        a(f"s_mov_b32 s{dst}, {WDF}")
        a.label(f"{L}_OD")
        a("s_mov_b64 s[16:17], s[12:13]")
        a("s_mov_b32 s18, s14")
        a("s_mov_b32 s19, 0x00020000")
        a("s_mov_b32 s37, 1024")
        a("s_and_b32 s31, s30, 1")
        a("s_lshr_b32 s30, s30, 1")
        a("s_lshl_b32 s38, s30, 14")
        a("s_lshl_b32 s32, s31, 9")
        a("s_add_u32 s38, s38, s32")
        a("s_add_u32 s39, s38, 256")
        a(f"s_branch {L}_GO")
        a.label(f"{L}_GU")
        a(f"s_mov_b32 s{typ}, 2")
        a("s_sub_u32 s30, s30, 288")
        a("s_lshr_b32 s31, s30, 5")
        a("s_and_b32 s30, s30, 31")
        a("s_mov_b32 s37, 3584")
        srd(a, 12, 40, 512 * 1792 * 2)
        srd(a, 16, 42, 512 * 1792 * 2)
        a(f"s_mov_b32 s{dst}, {WGF}")
        a("s_mul_i32 s38, s30, 57344")
        a("s_lshl_b32 s32, s31, 8")
        a("s_add_u32 s38, s38, s32")
        a("s_mov_b32 s39, s38")
        a.label(f"{L}_GO")
        a(f"s_mul_i32 s32, s31, s{strd}")
        a("s_lshl_b32 s32, s32, 3")
        a(f"s_add_u32 s{dst}, s{dst}, s32")
        a("s_lshl_b32 s32, s30, 10")
        a(f"s_add_u32 s{dst}, s{dst}, s32")
        a("v_mul_lo_u32 v8, v10, s37")
        a("v_add_u32 v8, v8, v11")
        for i in range(8):
            a(f"s_mov_b32 m0, {SCR + jb * 8192 + i * 1024}")
            so = 38 if i < 4 else 39
            a("s_nop 0")
            a(f"buffer_load_dwordx4 v8, s[{12 if i < 4 else 16}:{15 if i < 4 else 19}], s{so} offen lds")
            a(f"s_add_u32 s{so}, s{so}, 64")
        a.label(f"{L}_END")
    a("s_waitcnt vmcnt(0)")
    for jb in range(3):
        L = f"K2_K{jb}"
        dst, strd, typ = 56 + 3 * jb, 57 + 3 * jb, 58 + 3 * jb
        if STAMP: dst, strd, typ = 88 + 3 * jb, 89 + 3 * jb, 90 + 3 * jb
        R = 16 + 32 * jb
        a(f"s_cmp_eq_u32 s{typ}, 0")
        a(f"s_cbranch_scc1 {L}_END")
        a(f"s_cmp_eq_u32 s{typ}, 2")
        a(f"s_cbranch_scc1 {L}_GU")
        for j in range(8):
            for u in range(2):
                a(f"ds_read_b64_tr_b16 {vr(R + 4 * j + 2 * u, 2)}, v14 offset:{jb * 8192 + j * 1024 + u * 512}")
        a(f"s_branch {L}_ST")
        a.label(f"{L}_GU")
        for j in range(8):
            for u in range(2):
                a(f"ds_read_b64_tr_b16 {vr(R + 4 * j + 2 * u, 2)}, v15 offset:{jb * 8192 + (j // 2) * 1024 + (j % 2) * 32 + u * 512}")
        a.label(f"{L}_ST")
        a("s_waitcnt lgkmcnt(0)")
        for j in range(8):
            a(f"buffer_store_dwordx4 {vr(R + 4 * j, 4)}, v2, s[8:11], s{dst} offen {SIDE_SC}")
            a(f"s_add_u32 s{dst}, s{dst}, s{strd}")
        a.label(f"{L}_END")
    a.label("K2_JOBS_DONE")
    if K2_S3 < 16:
        a("s_barrier")
        a("s_lshr_b32 s30, s2, 3")
        a("v_lshlrev_b32 v13, 7, v0")
        a("s_bfe_u32 s31, s2, 0x20001")
        a(f"s_mul_i32 s31, s31, {28 * 32768}")
        a("s_mul_i32 s32, s30, 28672")
        a("s_add_u32 s31, s31, s32")
        a(f"s_add_u32 s31, s31, {WGF}")
        for i in range(4):
            a("buffer_load_dword v14, v13, s[8:11], s31 offen")
            a(f"s_add_u32 s31, s31, {8192 if i < 2 else 4096}")
        a("s_lshl_b32 s31, s30, 14")
        a(f"s_add_u32 s31, s31, {WOF}")
        a("buffer_load_dword v14, v13, s[8:11], s31 offen")
        a("s_add_u32 s31, s31, 8192")
        a("buffer_load_dword v14, v13, s[8:11], s31 offen")
        srd(a, 12, 54, 2048 * 512 * 2)
        a("s_and_b32 s31, s2, 7")
        a("s_lshl_b32 s31, s31, 18")
        a("s_lshl_b32 s32, s30, 13")
        a("s_add_u32 s31, s31, s32")
        a("buffer_load_dword v14, v13, s[12:15], s31 offen")
        if K2_WD:
            a(f"s_mul_i32 s31, s30, {57344}")
            a(f"s_add_u32 s31, s31, {WDF}")
            for i in range(K2_WD):
                a("buffer_load_dword v14, v13, s[8:11], s31 offen")
                a("s_add_u32 s31, s31, 8192")
    a.label("K2_END")
    a("s_endpgm")
    return n, a, kd(n, 144, 144, 100), (256, 576, 163840)

def k35(which):
    a = Asm()
    three = which == 3
    n = "k3_oproj_kernel" if three else "k5_down_kernel"
    L = "K3" if three else "K5"
    NS = 32 if three else 112
    KS = NS // 4
    ASRC = WOF if three else WDF
    BSRC = OF if three else GF
    DEPTH = 8
    kernel_head(a, n)
    ACC = 16; BUF = 80; RES = 208
    a("s_cmp_ge_u32 s2, 256")
    a(f"s_cbranch_scc1 {L}_END")
    stamp(a, 0)
    a("s_load_dwordx2 s[4:5], s[0:1], 72")
    a(f"s_load_dwordx2 s[6:7], s[0:1], {0 if three else 56}")
    a("v_lshrrev_b32 v1, 6, v0")
    a("v_and_b32 v0, 63, v0")
    a("v_readfirstlane_b32 s22, v1")
    a("v_lshlrev_b32 v2, 4, v0")
    a("s_and_b32 s23, s2, 7")
    a("s_lshl_b32 s23, s23, 2")
    a("s_bfe_u32 s29, s2, 0x20003")
    a("s_add_u32 s23, s23, s29")
    a("s_lshr_b32 s24, s2, 5")
    if three:
        a("s_cmp_eq_u32 s22, 4")
        a("s_cbranch_scc1 K3_CS")
    a("s_and_b32 s25, s22, 1")
    a("s_lshr_b32 s26, s22, 1")
    a("s_lshl_b32 s27, s24, 1")
    a("s_add_u32 s27, s27, s25")
    a("s_lshl_b32 s28, s23, 1")
    a("s_add_u32 s28, s28, s26")
    a(f"s_mul_i32 s29, s22, {KS * 1024}")
    a(f"s_mul_i32 s30, s27, {NS * 1024}")
    a("s_add_u32 s30, s30, s29")
    a(f"s_add_u32 s30, s30, {ASRC}")
    a("s_xor_b32 s31, s27, 1")
    a(f"s_mul_i32 s31, s31, {NS * 1024}")
    a("s_add_u32 s31, s31, s29")
    a(f"s_add_u32 s31, s31, {ASRC}")
    a(f"s_mul_i32 s32, s28, {NS * 1024}")
    a("s_add_u32 s32, s32, s29")
    a(f"s_add_u32 s32, s32, {BSRC}")
    a("s_xor_b32 s33, s28, 1")
    a(f"s_mul_i32 s33, s33, {NS * 1024}")
    a("s_add_u32 s33, s33, s29")
    a(f"s_add_u32 s33, s33, {BSRC}")
    a("v_and_b32 v3, 31, v0")
    a("v_lshlrev_b32 v3, 10, v3")
    a("v_lshrrev_b32 v4, 5, v0")
    a("v_lshl_add_u32 v3, v4, 4, v3")
    a("s_lshl_b32 s34, s28, 15")
    a("s_lshl_b32 s35, s27, 6")
    a("s_add_u32 s34, s34, s35")
    a("s_lshl_b32 s35, s28, 15")
    a("s_lshl_b32 s36, s27, 11")
    a("s_add_u32 s35, s35, s36")
    a(f"s_add_u32 s35, s35, {HF}")
    a("s_waitcnt lgkmcnt(0)")
    srd(a, 8, 4, WS_SIZE)
    srd(a, 12, 6, 2048 * 512 * 2)
    def loads(s):
        b = BUF + 16 * (s % DEPTH)
        if s % 4 == 0 and s > 0:
            for r in range(30, 34):
                a(f"s_add_u32 s{r}, s{r}, 4096")
        for i, r in enumerate((32, 30, 33, 31)):
            a(f"buffer_load_dwordx4 {vr(b + 4 * i, 4)}, v2, s[8:11], s{r} offen offset:{(s % 4) * 1024}")
    def mfmas(s):
        b = BUF + 16 * (s % DEPTH)
        B0, A0, B1, A1 = (vr(b + 4 * i, 4) for i in range(4))
        C = "0" if s == 0 else None
        a(MF32(vr(ACC, 16), A0, B0, C))
        a(MF32(vr(ACC + 32, 16), A0, B1, C))
        a(MF32(vr(ACC + 16, 16), A1, B0, C))
        a(MF32(vr(ACC + 48, 16), A1, B1, C))
    def resload():
        for j in range(2):
            if three:
                a(f"buffer_load_dwordx4 {vr(RES + 4 * j, 4)}, v3, s[12:15], s34 offen offset:{j * 32}")
            else:
                a(f"buffer_load_dwordx4 {vr(RES + 4 * j, 4)}, v2, s[8:11], s35 offen offset:{j * 1024}")
    nl = min(DEPTH, KS)
    for s in range(nl):
        loads(s)
    issued = nl; res_done = False
    if issued == KS:
        resload(); res_done = True
    a("v_mov_b32 v5, v2")
    for s in range(KS):
        out = (issued - s - 1) * 4 + (2 if res_done else 0)
        a(f"s_waitcnt vmcnt({out})")
        if s == 0: stamp(a, 1)
        mfmas(s)
        if issued < KS:
            loads(issued); issued += 1
            if issued == KS:
                resload(); res_done = True
    stamp(a, 2)
    for t in range(1, 4):
        a(f"s_xor_b32 s29, s22, {t}")
        a("s_mul_i32 s29, s29, 12288")
        a(f"v_add_u32 v{5 + t}, s29, v2")
    a("s_mul_i32 s29, s22, 12288")
    a("v_add_u32 v5, s29, v2")
    a("s_nop 7")
    for t in (2, 1, 3):
        for q in range(4):
            a(f"ds_write_b128 v{5 + t}, {vr(ACC + 16 * t + 4 * q, 4)} offset:{(t - 1) * 4096 + q * 1024}")
    a("s_waitcnt lgkmcnt(0)")
    a("s_barrier")
    for t in range(3):
        for q in range(4):
            a(f"ds_read_b128 {vr(BUF + 16 * t + 4 * q, 4)}, v5 offset:{t * 4096 + q * 1024}")
    a("s_waitcnt vmcnt(0)")
    if three:
        for j in range(2):
            a(f"v_permlane32_swap_b32 v{RES + 4 * j}, v{RES + 4 * j + 2}")
            a(f"v_permlane32_swap_b32 v{RES + 4 * j + 1}, v{RES + 4 * j + 3}")
    a("s_mov_b32 s29, 0xffff0000")
    for i in range(8):
        a(f"v_lshlrev_b32 v{RES + 8}, 16, v{RES + i}")
        a(f"v_and_b32 v{RES + 9}, s29, v{RES + i}")
        a(f"v_add_f32 v{ACC + 2 * i}, v{ACC + 2 * i}, v{RES + 8}")
        a(f"v_add_f32 v{ACC + 2 * i + 1}, v{ACC + 2 * i + 1}, v{RES + 9}")
    for t in range(3):
        a(f"s_waitcnt lgkmcnt({8 - 4 * t})")
        for i in range(16):
            a(f"v_add_f32 v{ACC + i}, v{ACC + i}, v{BUF + 16 * t + i}")
    o = ACC + 16
    for i in range(8):
        a(f"v_cvt_pk_bf16_f32 v{o + i}, v{ACC + 2 * i}, v{ACC + 2 * i + 1}")
    if three:
        for j in range(2):
            a(f"buffer_store_dwordx4 {vr(o + 4 * j, 4)}, v2, s[8:11], s35 offen offset:{j * 1024}")
        a("s_mov_b32 s30, 0x3f803f80")
        a("v_mov_b32 v8, 0")
        a("v_mov_b32 v9, 0")
        for i in range(8):
            a(f"v_dot2c_f32_bf16 v8, s30, v{o + i}")
            a(f"v_dot2c_f32_bf16 v9, v{o + i}, v{o + i}")
        a("s_lshl_b32 s29, s28, 12")
        a("s_bfe_u32 s30, s27, 0x20001")
        a("s_lshl_b32 s30, s30, 10")
        a("s_add_u32 s29, s29, s30")
        a("s_lshr_b32 s30, s27, 3")
        a("s_lshl_b32 s30, s30, 9")
        a("s_add_u32 s29, s29, s30")
        a("s_and_b32 s30, s27, 1")
        a("s_lshl_b32 s30, s30, 3")
        a("s_add_u32 s29, s29, s30")
        a(f"s_add_u32 s29, s29, {ST}")
        a("v_and_b32 v3, 31, v0")
        a("v_lshlrev_b32 v3, 4, v3")
        halfsum(a, 8, 1)
        halfsum(a, 9, 1)
        a("buffer_store_dwordx2 v[8:9], v3, s[8:11], s29 offen")
        stamp_end(a, 2, 3, 8)
        a("s_endpgm")
        a.label("K3_CS")
        a("s_cmp_ge_u32 s2, 224")
        a("s_cbranch_scc1 K3_END")
        a("s_bfe_u32 s30, s2, 0x20001")
        a("s_mul_i32 s30, s30, 28")
        a("s_lshr_b32 s31, s2, 3")
        a("s_add_u32 s30, s30, s31")
        a("s_lshl_b32 s30, s30, 1")
        a("s_and_b32 s31, s2, 1")
        a("s_add_u32 s31, s31, s30")
        a("s_lshl_b32 s30, s31, 14")
        a(f"s_add_u32 s30, s30, {WGF}")
        a("s_lshl_b32 s31, s31, 9")
        a(f"s_add_u32 s31, s31, {CSF}")
        for i in range(4):
            a(f"v_mov_b32 v{4 + i}, 0x3f803f80")
        a("s_waitcnt lgkmcnt(0)")
        srd(a, 8, 4, WS_SIZE)
        for s in range(16):
            if s % 4 == 0 and s > 0:
                a("s_add_u32 s30, s30, 4096")
            a(f"buffer_load_dwordx4 {vr(BUF + 4 * s, 4)}, v2, s[8:11], s30 offen offset:{(s % 4) * 1024}")
        for s in range(16):
            a(f"s_waitcnt vmcnt({15 - s})")
            a(MF32(vr(ACC, 16), vr(4, 4), vr(BUF + 4 * s, 4), "0" if s == 0 else None))
        a("v_and_b32 v3, 31, v0")
        a("v_lshlrev_b32 v3, 4, v3")
        a("v_mov_b32 v10, 0")
        a("v_mov_b32 v11, 0")
        a("s_nop 7")
        a(f"v_cvt_pk_bf16_f32 v8, v{ACC}, v{ACC}")
        a("v_lshlrev_b32 v9, 16, v8")
        a(f"v_sub_f32 v9, v{ACC}, v9")
        a("v_cvt_pk_bf16_f32 v9, v9, v9")
        a("buffer_store_dwordx4 v[8:11], v3, s[8:11], s31 offen")
    else:
        a("s_nop 0")
        for j in range(2):
            a(f"v_permlane32_swap_b32 v{o + 4 * j}, v{o + 4 * j + 2}")
            a(f"v_permlane32_swap_b32 v{o + 4 * j + 1}, v{o + 4 * j + 3}")
        for j in range(2):
            a(f"buffer_store_dwordx4 {vr(o + 4 * j, 4)}, v3, s[12:15], s34 offen offset:{j * 32}")
        stamp_end(a, 4, 3, 8)
    a.label(f"{L}_END")
    a("s_endpgm")
    return n, a, kd(n, 224, 224), (256, 320 if three else 256, 49152)


def k4():
    a = Asm(); n = "k4_gateup_kernel"
    kernel_head(a, n)
    SLOT = 32768; D = K4_D
    K1C = 2 * math.sqrt(2 / math.pi) * LOG2E
    a("s_cmp_ge_u32 s2, 256")
    a("s_cbranch_scc1 K4_END")
    stamp(a, 0)
    a("s_load_dwordx2 s[4:5], s[0:1], 72")
    a("v_lshrrev_b32 v1, 6, v0")
    a("v_and_b32 v0, 63, v0")
    a("v_readfirstlane_b32 s35, v1")
    a("v_lshlrev_b32 v2, 4, v0")
    a("s_and_b32 s23, s2, 1")
    a("s_lshl_b32 s23, s23, 3")
    a("s_bfe_u32 s29, s2, 0x30003")
    a("s_add_u32 s23, s23, s29")
    a("s_bfe_u32 s24, s2, 0x20001")
    a("s_lshl_b32 s24, s24, 2")
    a("s_lshr_b32 s29, s2, 6")
    a("s_add_u32 s24, s24, s29")
    a("s_and_b32 s22, s35, 3")
    a("s_lshl_b32 s25, s23, 2")
    a("s_add_u32 s25, s25, s22")
    a("s_lshl_b32 s28, s22, 12")
    a("s_cmp_lt_u32 s35, 4")
    a("s_cbranch_scc1 K4_COMMON")
    a("s_lshl_b32 s26, s25, 15")
    a(f"s_add_u32 s26, s26, {HF}")
    a(f"s_mul_i32 s27, s24, {7 * 32768}")
    a(f"s_add_u32 s27, s27, {WGF}")
    a("s_lshl_b32 s36, s22, 15")
    a("s_add_u32 s36, s36, s27")
    a("s_lshl_b32 s37, s22, 13")
    a("s_add_u32 s38, s37, s27")
    a("s_waitcnt lgkmcnt(0)")
    srd(a, 8, 4, WS_SIZE)
    def dma(j):
        slot = (j % 5) * SLOT
        if j < 8:
            grp = [(f"s_add_u32 m0, s28, {slot}", f"s_add_u32 s29, s26, {j * 4096}"),
                   (f"s_add_u32 m0, s28, {slot + 16384}", f"s_add_u32 s29, s36, {j * 4096}")]
        else:
            grp = [(f"s_add_u32 m0, s37, {slot + g * 4096}", f"s_add_u32 s29, s38, {(j - 4) * 32768 + g * 4096}") for g in range(2)]
        for m, so in grp:
            a(m); a(so)
            for i in range(4):
                a(f"buffer_load_dwordx4 v2, s[8:11], s29 offen offset:{i * 1024} lds")
    for j in range(D + 1):
        dma(j)
    a.label("K4_COMMON")
    a("v_add_u32 v3, 65536, v2")
    a("v_add_u32 v4, 131072, v2")
    for k in range(3):
        a(f"v_add_u32 v{5 + k}, s28, v{2 + k}")
    a("s_lshl_b32 s30, s25, 12")
    a(f"s_add_u32 s30, s30, {ST}")
    a("s_mul_i32 s31, s24, 7168")
    a(f"s_add_u32 s32, s31, {GF}")
    a(f"s_add_u32 s31, s31, {CSF}")
    a(f"s_mul_i32 s29, s25, {112 * 1024}")
    a("s_add_u32 s32, s32, s29")
    def hread(dst, j, s):
        slot = j % 5
        return f"ds_read_b128 {vr(dst, 4)}, v{5 + slot // 2} offset:{(slot % 2) * SLOT + s * 1024}"
    def wread(dst, j, off):
        slot = j % 5
        return f"ds_read_b128 {vr(dst, 4)}, v{2 + slot // 2} offset:{(slot % 2) * SLOT + off}"
    def stat_loads(STR, CSR, f0, nf):
        out = [f"buffer_load_dwordx4 {vr(STR + 4 * q, 4)}, v2, s[8:11], s30 offen offset:{q * 1024}" for q in range(4)]
        out += [f"buffer_load_dwordx4 {vr(CSR + 4 * i, 4)}, v2, s[8:11], s31 offen offset:{i * 1024}" for i in range(nf)]
        return out
    def stats(STR, T):
        o = []
        for q in range(1, 4):
            for i in range(4):
                o.append(f"v_add_f32 v{STR + i}, v{STR + i}, v{STR + 4 * q + i}")
        o += [f"v_add_f32 v8, v{STR}, v{STR + 2}", f"v_add_f32 v9, v{STR + 1}, v{STR + 3}",
              "v_mov_b32 v10, v8", "v_mov_b32 v11, v9", "s_nop 0",
              "v_permlane32_swap_b32 v8, v10", "v_permlane32_swap_b32 v9, v11",
              "v_add_f32 v8, v8, v10", "v_add_f32 v9, v9, v11",
              f"v_mul_f32 v8, {f32(-1/512)}, v8", f"v_mul_f32 v9, {f32(1/512)}, v9",
              "v_fma_f32 v9, -v8, v8, v9", "v_max_f32 v9, 0, v9", f"v_add_f32 v9, {f32(EPS)}, v9",
              "v_rsq_f32 v10, v9", "v_cvt_pk_bf16_f32 v11, v8, v8", "v_lshlrev_b32 v11, 16, v11",
              "v_sub_f32 v12, v8, v11", f"v_cvt_pk_bf16_f32 v{T}, v11, v12",
              f"v_mov_b32 v{T+2}, 0", f"v_mov_b32 v{T+3}, 0", f"v_mov_b32 v{T+1}, v{T}",
              f"v_mul_f32 v11, {f32(-K1C)}, v10", "v_mul_f32 v12, v10, v10", "v_mul_f32 v12, v12, v11",
              f"v_mul_f32 v12, {f32(0.044715)}, v12"]
        return o
    def epi(g, z, off):
        u = g + 8; o = []
        o += [f"v_mul_f32 v{z+i}, v{g+i}, v{g+i}" for i in range(8)]
        o += [f"v_fma_f32 v{z+i}, v{z+i}, v12, v11" for i in range(8)]
        o += [f"v_mul_f32 v{z+i}, v{z+i}, v{g+i}" for i in range(8)]
        for i in range(8):
            o += [f"v_exp_f32 v{z+i}, v{z+i}", f"v_mul_f32 v{g+i}, v{g+i}, v{u+i}"]
        o += [f"v_fma_f32 v{z+i}, v{z+i}, v9, v9" for i in range(8)]
        o += [f"v_rcp_f32 v{z+i}, v{z+i}" for i in range(8)]
        o += ["s_nop 0"]
        o += [f"v_mul_f32 v{g+i}, v{g+i}, v{z+i}" for i in range(8)]
        o += [f"v_cvt_pk_bf16_f32 v{u+i}, v{g+2*i}, v{g+2*i+1}" for i in range(4)]
        o += [f"buffer_store_dwordx4 {vr(u, 4)}, v2, s[8:11], s32 offen offset:{off}"]
        return o
    a("s_cmp_lt_u32 s35, 4")
    a("s_cbranch_scc1 K4_A")
    H = 16; ACCB = 144; WR = 192; CSB = 224; TB = 236; ZB = 240; STB = ACCB + 32
    a("s_add_u32 s31, s31, 4096")
    a("s_add_u32 s32, s32, 4096")
    for j in range(8):
        a(f"s_waitcnt vmcnt({8 * D}) lgkmcnt(0)")
        a("s_barrier")
        if j == 0: stamp(a, 1)
        for s in range(4):
            a(hread(H + 16 * j + 4 * s, j, s))
        dma(j + D + 1) if j + D + 1 <= 10 else None
    last = min(7 + D + 1, 10)
    for j in range(last + 1, 11):
        dma(j)
    for l in stat_loads(STB, CSB, 4, 3): a(l)
    nt = 0
    a(f"s_waitcnt vmcnt({8 + 7 + nt}) lgkmcnt(0)")
    a("s_barrier")
    a("s_setprio 2")
    stamp(a, 2)
    NR = 8
    seq = [(f, ks) for f in range(3) for ks in range(32)]
    def wr_(i): return WR + 4 * (i % NR)
    def rd(i):
        f, ks = seq[i]
        return wread(wr_(i), 8 + f, ks * 1024)
    for i in range(NR - 1): a(rd(i))
    fill = []
    for i, (f, ks) in enumerate(seq):
        if i + NR - 1 < len(seq):
            if seq[i + NR - 1] == (2, 0): pass
            a(rd(i + NR - 1))
            a(f"s_waitcnt lgkmcnt({NR - 1})")
        else:
            a(f"s_waitcnt lgkmcnt({len(seq) - 1 - i})")
        a(MF32(vr(ACCB + 16 * f, 16), vr(wr_(i), 4), vr(H + 4 * ks, 4), "0" if ks == 0 else None))
        if i == K4_XB:
            a(f"s_waitcnt vmcnt({nt})")
            a("s_barrier")
            fill += stats(STB, TB) + ["s_nop 1"]
            if K4_TOUCH:
                fill += ["s_lshr_b32 s29, s2, 3", "s_lshl_b32 s29, s29, 2", "s_add_u32 s29, s29, s22",
                         "s_mul_i32 s29, s29, 14336", f"s_add_u32 s29, s29, {WDF}", "v_lshlrev_b32 v13, 7, v0",
                         "buffer_load_dword v14, v13, s[8:11], s29 offen", "s_add_u32 s29, s29, 6144", "DELAY", "DELAY",
                         "buffer_load_dword v14, v13, s[8:11], s29 offen"]
        if ks == 31:
            assert not [x for x in fill if "v_rsq" in x or f"v{TB+1}," in x]
            a(MF32(vr(ACCB + 16 * f, 16), vr(CSB + 4 * f, 4), vr(TB, 4)))
            if f < 2:
                fill += ["DELAY"] * 4 + epi(ACCB + 16 * f, ZB, f * 1024)
        budget = 5
        while fill and budget > 0:
            x = fill.pop(0)
            if x == "DELAY": break
            a(x); budget -= 2 if ("v_exp" in x or "v_rcp" in x or "v_rsq" in x) else 1
    for x in fill: a(x)
    stamp(a, 3)
    a("s_nop 11")
    for x in epi(ACCB + 32, ZB, 2048): a(x)
    stamp_end(a, 3, 4, 8, 35)
    a("s_endpgm")
    a.label("K4_A")
    ACC = 16; BF = 80; CSA = 120; STA = 136; TA = 152; ZA = 156
    a("s_waitcnt lgkmcnt(0)")
    srd(a, 8, 4, WS_SIZE)
    def reads(ks):
        j, s = ks // 4, ks % 4; b = BF + 20 * (ks % 2)
        return [hread(b, j, s)] + [wread(b + 4 + 4 * ft, j, 16384 + ft * 4096 + s * 1024) for ft in range(4)]
    def mfmas(ks):
        b = BF + 20 * (ks % 2)
        return [MF32(vr(ACC + 16 * ft, 16), vr(b + 4 + 4 * ft, 4), vr(b, 4), "0" if ks == 0 else None) for ft in range(4)]
    a("s_barrier")
    stamp(a, 1)
    for r in reads(0): a(r)
    SL = stat_loads(STA, CSA, 0, 4)
    for ks in range(32):
        j, s = ks // 4, ks % 4
        M = mfmas(ks); R = reads(ks + 1) if ks < 31 else []
        a("s_waitcnt lgkmcnt(0)")
        a(M[0])
        if s == 3:
            a("s_barrier")
        for r in R[:3]: a(r)
        a(M[1])
        for r in R[3:]: a(r)
        a(M[2])
        if K4_SL <= ks < K4_SL + 4:
            a(SL.pop(0))
        a(M[3])
        if K4_SL <= ks < K4_SL + 4:
            a(SL.pop(0))
    stamp(a, 2)
    a("s_barrier")
    a("s_waitcnt vmcnt(4)")
    for x in stats(STA, TA): a(x)
    a("s_waitcnt vmcnt(0)")
    for ft in range(4):
        a(MF32(vr(ACC + 16 * ft, 16), vr(CSA + 4 * ft, 4), vr(TA, 4)))
    stamp(a, 3)
    a("s_nop 8")
    for ft in range(4):
        for x in epi(ACC + 16 * ft, ZA, ft * 1024): a(x)
    stamp_end(a, 3, 4, 8, 35)
    a.label("K4_END")
    a("s_endpgm")
    return n, a, kd(n, 248, 248), (256, 512, 5 * SLOT)

def main(out):
    ks = [k1(), k2(), k35(3), k4(), k35(5)]
    hdr = open("cdna_kernels/" + NAME + ".s.ref").read().split("\n")
    hdr = [l for l in hdr if l.startswith(";") and "@launch" not in l and "Override" not in l and "grid=ceil" not in l]
    txt = "\n".join(hdr) + "\n"
    for n, a, d, (g, b, lds) in ks:
        txt += f"; @launch kernel={n} grid=({g},1,1) block=({b},1,1) lds={lds}\n"
    txt += '.amdgcn_target "amdgcn-amd-amdhsa--gfx950"\n.text\n'
    bad = 0
    for ki, (n, a, d, _) in enumerate(ks):
        fl = ST_FLAGS[ki]
        if fl:
            a.lines = [l + " " + fl if ("buffer_store_dwordx" in l and "sc1" not in l) else l for l in a.lines]
        bad += check_hazards(a.lines, n)
        txt += a.text()
    txt += '.section .rodata,"a"\n'
    for n, a, d, _ in ks:
        txt += ".p2align 6\n" + d
    open(out, "w").write(txt)
    print("hazards:", bad)

if __name__ == "__main__":
    if "stamp" in sys.argv: STAMP = True
    for arg in sys.argv[2:]:
        if "=" in arg:
            k_, v_ = arg.split("=", 1)
            globals()[k_] = eval(v_)
    main(sys.argv[1] if len(sys.argv) > 1 else "cdna_kernels/" + NAME + ".s")
```

```python
import sys, math, struct
from asmlib import *

NAME = "sequential_preLN__mha_block__geglu_ffn__prompt"

QF, KF, VF, OF, HF = 0x000000, 0x200000, 0x400000, 0x600000, 0x800000
ST  = 0xA00000
CSF = 0xA80000
WOF = 0xB00000
WGF = 0xC00000
WDF = 0x1000000
GF  = 0x1200000
WS_SIZE = 0x10000000

def f32(x):
    return "0x%08x" % struct.unpack("<I", struct.pack("<f", x))[0]

LOG2E = 1.4426950408889634
EPS = 1e-5

def srd(a, s, base, size):
    a(f"s_mov_b32 s{s}, s{base}")
    a(f"s_mov_b32 s{s+1}, s{base+1}")
    a(f"s_mov_b32 s{s+2}, {hex(size)}")
    a(f"s_mov_b32 s{s+3}, 0x00020000")

def kernel_head(a, name):
    a.raw(f".globl {name}")
    a.raw(".p2align 8")
    a.raw(f".type {name},@function")
    a.raw(f"{name}:")

def kd(name, nvgpr, accum, nsgpr=100):
    return f""".amdhsa_kernel {name}
  .amdhsa_next_free_vgpr {nvgpr}
  .amdhsa_next_free_sgpr {nsgpr}
  .amdhsa_accum_offset {accum}
  .amdhsa_group_segment_fixed_size 0
  .amdhsa_kernarg_size 80
  .amdhsa_user_sgpr_count 2
  .amdhsa_user_sgpr_kernarg_segment_ptr 1
  .amdhsa_system_sgpr_workgroup_id_x 1
.end_amdhsa_kernel
"""

STAMP = False
CODE_TOUCH = 1
K1_ROT = 1
K1_TW = [-1, 0, 1]
K4_SL = 26
K2_S3 = 11
K2_WD = 0
K1_D = 1
K4_D = 2
K4_XB = 12
K4_TOUCH = 1
K2_S2 = 4
K1_TOUCH = 1
ST_FLAGS = ['', '', '', '', '']
K2_Y = 28
SIDE_SC = 'sc1'
K1_UP = 14
K4_UP = 22
DBGOFF = 0x2000000
def stamp(a, i):
    if not STAMP: return
    a(f"s_memrealtime s[{64 + 4 * i}:{65 + 4 * i}]")
    a(f"s_memtime s[{66 + 4 * i}:{67 + 4 * i}]")
    if i != 0:
        a("s_waitcnt lgkmcnt(0)")
def stamp_end(a, kidx, n, srdreg, wavereg=22):
    if not STAMP: return
    a("s_waitcnt vmcnt(0)")
    stamp(a, n)
    a("s_lshl_b32 s60, s2, 3")
    a(f"s_add_u32 s60, s60, s{wavereg}")
    a("s_lshl_b32 s60, s60, 6")
    a(f"s_add_u32 s60, s60, {DBGOFF + kidx * 0x40000}")
    a("v_mov_b32 v0, 0")
    for j in range(2 * n + 2):
        a(f"v_mov_b32 v1, s{64 + 2 * j}")
        a(f"buffer_store_dword v1, v0, s[{srdreg}:{srdreg+3}], s60 offen offset:{4 * j}")

def MF32(d, A, B, C=None):
    C = d if C is None else C
    return f"v_mfma_f32_32x32x16_bf16 {d}, {A}, {B}, {C}"

def halfsum(a, v, t):
    a(f"v_mov_b32 v{t}, v{v}")
    a("s_nop 1")
    a(f"v_permlane32_swap_b32 v{v}, v{t}")
    a(f"v_add_f32 v{v}, v{v}, v{t}")


def k1():
    a = Asm(); n = "k1_qkv_kernel"
    kernel_head(a, n)
    SLOT = 28672; SCR = 5 * SLOT; SCR2 = SCR + 1536; SCR3 = SCR2 + 512
    D = K1_D
    a("s_cmp_ge_u32 s2, 256")
    a("s_cbranch_scc1 K1_END")
    stamp(a, 0)
    a("s_load_dwordx4 s[4:7], s[0:1], 0")
    a("s_load_dwordx2 s[20:21], s[0:1], 72")
    a("v_lshrrev_b32 v1, 6, v0")
    a("v_and_b32 v0, 63, v0")
    a("v_readfirstlane_b32 s35, v1")
    a("s_and_b32 s23, s2, 3")
    a("s_lshl_b32 s23, s23, 2")
    a("s_bfe_u32 s29, s2, 0x20003")
    a("s_add_u32 s23, s23, s29")
    a("s_bfe_u32 s24, s2, 0x10002")
    a("s_lshl_b32 s24, s24, 3")
    a("s_lshr_b32 s29, s2, 5")
    a("s_add_u32 s24, s24, s29")
    a("s_and_b32 s22, s35, 3")
    a("s_lshl_b32 s27, s22, 12")
    a("s_lshl_b32 s40, s2, 1")
    a("s_and_b32 s29, s2, 4")
    a("s_add_u32 s40, s40, s29")
    if not K1_ROT: a("s_mov_b32 s40, 0")
    a("s_cmp_lt_u32 s35, 4")
    a("s_cbranch_scc1 K1_RDADDR")
    a("s_lshl_b32 s25, s23, 17")
    a("s_lshl_b32 s29, s22, 15")
    a("s_add_u32 s25, s25, s29")
    a("s_mul_i32 s26, s22, 49152")
    a("s_lshl_b32 s29, s24, 6")
    a("s_add_u32 s26, s26, s29")
    a("s_lshl_b32 s28, s22, 10")
    a("s_add_u32 s28, s28, 16384")
    a("s_mov_b32 s30, 0x3f803f80")
    a("v_lshrrev_b32 v5, 3, v0")
    a("v_lshlrev_b32 v2, 10, v5")
    a("v_and_b32 v6, 7, v0")
    a("v_lshrrev_b32 v7, 4, v0")
    a("v_xor_b32 v6, v6, v7")
    a("v_lshl_add_u32 v2, v6, 4, v2")
    a("v_xor_b32 v3, 64, v2")
    a("v_add_u32 v3, 8192, v3")
    a("v_lshrrev_b32 v5, 2, v0")
    a("v_mul_u32_u24 v4, 3072, v5")
    a("v_and_b32 v6, 3, v0")
    a("v_lshl_add_u32 v4, v6, 4, v4")
    a("s_waitcnt lgkmcnt(0)")
    srd(a, 8, 4, 2048 * 512 * 2)
    srd(a, 12, 6, 512 * 1536 * 2)
    def dma(c):
        slot = (c % 5) * SLOT
        a(f"s_add_u32 s41, s40, {c}")
        a("s_and_b32 s41, s41, 7")
        a("s_lshl_b32 s42, s41, 7")
        a("s_add_u32 s42, s42, s25")
        a(f"s_mul_i32 s41, s41, {64 * 3072}")
        a("s_add_u32 s41, s41, s26")
        for p in range(3):
            a(f"s_add_u32 m0, s28, {slot + p * 4096}")
            a(f"s_add_u32 s29, s41, {p * 1024}")
            a(f"buffer_load_dwordx4 v4, s[12:15], s29 offen lds")
        for i in range(4):
            a(f"s_add_u32 m0, s27, {slot + i * 1024}")
            a(f"s_add_u32 s29, s42, {(i // 2) * 16384}")
            a(f"buffer_load_dwordx4 v{2 + (i % 2)}, s[8:11], s29 offen lds")
    for c in range(D + 1):
        dma(c)
    a.label("K1_RDADDR")
    a("v_and_b32 v5, 31, v0")
    a("v_lshrrev_b32 v6, 5, v0")
    a("v_bfe_u32 v7, v0, 1, 3")
    a("v_xor_b32 v7, v7, v6")
    a("v_lshlrev_b32 v5, 7, v5")
    a("v_add_u32 v5, s27, v5")
    for s in range(4):
        a(f"v_xor_b32 v1, {2 * s}, v7")
        a(f"v_lshl_add_u32 v{8 + s}, v1, 4, v5")
        a(f"v_add_u32 v{12 + s}, {2 * SLOT}, v{8 + s}")
        a(f"v_add_u32 v{16 + s}, {4 * SLOT}, v{8 + s}")
    a("v_bfe_u32 v1, v0, 2, 2")
    a("v_lshl_add_u32 v1, v6, 3, v1")
    a("v_lshlrev_b32 v20, 6, v1")
    a("v_bfe_u32 v1, v0, 4, 1")
    a("v_lshl_add_u32 v20, v1, 5, v20")
    a("v_and_b32 v1, 3, v0")
    a("v_lshl_add_u32 v20, v1, 3, v20")
    a("s_cmp_lt_u32 s35, 4")
    a("s_cbranch_scc1 K1_MM")
    a("s_lshl_b32 s29, s22, 10")
    a("v_add_u32 v20, s29, v20")
    a(f"v_add_u32 v21, {2 * SLOT}, v20")
    a(f"v_add_u32 v22, {4 * SLOT}, v20")
    for i in range(28, 31):
        a(f"v_mov_b32 v{i}, 0")
    WB = 48
    for c in range(8):
        slot = c % 5; st = slot // 2; off = (slot % 2) * SLOT
        a(f"s_waitcnt vmcnt({7 * (min(c + D, 7) - c)})")
        a("s_barrier")
        for p in range(3):
            for u in range(2):
                a(f"ds_read_b64_tr_b16 {vr(WB + 4 * p + 2 * u, 2)}, v{20 + st} offset:{off + 16384 + p * 4096 + u * 256}")
        if c + D + 1 < 8:
            dma(c + D + 1)
        a("s_waitcnt lgkmcnt(0)")
        for i in range(4):
            for p in range(3):
                a(f"v_dot2c_f32_bf16 v{28 + p}, s30, v{WB + 4 * p + i}")
    a("v_and_b32 v5, 31, v0")
    a("v_lshlrev_b32 v6, 4, v5")
    a("s_lshl_b32 s29, s22, 2")
    a(f"s_add_u32 s29, s29, {SCR}")
    a("v_add_u32 v7, s29, v6")
    for p in range(3):
        halfsum(a, 28 + p, 1)
        a(f"ds_write_b32 v7, v{28 + p} offset:{p * 512}")
    a("s_waitcnt lgkmcnt(0)")
    a("s_barrier")
    a("s_endpgm")
    a.label("K1_MM")
    if CODE_TOUCH:
        a("s_getpc_b64 s[44:45]")
        a.label("K1_PC")
        a("s_sub_u32 s44, s44, K1_PC-k1_qkv_kernel")
        a("s_subb_u32 s45, s45, 0")
        a("s_lshl_b32 s46, s22, 13")
        a("v_lshlrev_b32 v23, 7, v0")
        a("v_add_u32 v23, s46, v23")
        for i in range(CODE_TOUCH):
            a("v_min_u32 v24, CODE_END-k1_qkv_kernel-4, v23")
            a("global_load_dword v31, v24, s[44:45]")
            a("v_add_u32 v23, 32768, v23")
    a(f"v_add_u32 v21, {2 * SLOT}, v20")
    a(f"v_add_u32 v22, {4 * SLOT}, v20")
    a("s_mov_b32 s30, 0x3f803f80")
    for i in range(24, 28):
        a(f"v_mov_b32 v{i}, 0")
    a("v_and_b32 v5, 31, v0")
    a("v_lshlrev_b32 v6, 4, v5")
    a(f"v_add_u32 v6, {SCR}, v6")
    a("s_lshl_b32 s29, s22, 7")
    a(f"s_add_u32 s29, s29, {SCR2}")
    a("v_lshlrev_b32 v7, 2, v5")
    a("v_add_u32 v7, s29, v7")
    a("v_lshrrev_b32 v1, 5, v0")
    a("v_lshlrev_b32 v1, 4, v1")
    a("v_add_u32 v1, s29, v1")
    a("s_lshl_b32 s29, s23, 2")
    a("s_add_u32 s29, s29, s22")
    a("s_lshl_b32 s29, s29, 10")
    a("s_lshl_b32 s31, s24, 17")
    a("s_add_u32 s29, s29, s31")
    a("s_add_u32 s31, s29, 65536")
    a(f"s_add_u32 s32, s29, {KF}")
    a(f"s_add_u32 s33, s29, {KF + 65536}")
    a(f"s_add_u32 s34, s29, {VF}")
    a("v_lshlrev_b32 v2, 4, v0")
    a("v_bfe_u32 v3, v0, 4, 1")
    a("v_lshlrev_b32 v3, 16, v3")
    a("v_lshrrev_b32 v4, 5, v0")
    a("v_lshl_add_u32 v3, v4, 8, v3")
    a("v_and_b32 v4, 15, v0")
    a("v_lshl_add_u32 v3, v4, 4, v3")
    a("s_waitcnt lgkmcnt(0)")
    srd(a, 16, 20, WS_SIZE)
    TQ = {}
    if K1_TOUCH:
        srd(a, 8, 4, 2048 * 512 * 2)
        a("s_lshr_b32 s37, s2, 3")
        a("v_and_b32 v28, 3, v0")
        a("s_mov_b32 s39, 256")
        a("s_and_b32 s36, s2, 3")
        a("s_lshl_b32 s36, s36, 19")
        a("s_lshl_b32 s38, s37, 14")
        a("s_add_u32 s36, s36, s38")
        a("v_bfe_u32 v23, v0, 1, 4")
        a("v_lshlrev_b32 v23, 10, v23")
        a("v_and_b32 v29, 1, v0")
        a("v_lshl_add_u32 v23, v29, 7, v23")
        a("s_cmp_lg_u32 s22, 0")
        a("s_cbranch_scc1 K1_TD")
        srd(a, 8, 6, 512 * 1536 * 2)
        a(f"s_mov_b32 s39, {128 * 3072}")
        a("s_mul_i32 s36, s37, 12288")
        a("s_bfe_u32 s38, s2, 0x10002")
        a("s_lshl_b32 s38, s38, 9")
        a("s_add_u32 s36, s36, s38")
        a("v_lshrrev_b32 v23, 4, v0")
        a("v_mul_u32_u24 v23, 3072, v23")
        a("v_bfe_u32 v30, v0, 2, 2")
        a("v_min_u32 v30, 2, v30")
        a("v_lshl_add_u32 v23, v30, 10, v23")
        a("v_lshl_add_u32 v23, v28, 7, v23")
        a.label("K1_TD")
        def touch(n_):
            return ["s_cmp_ge_u32 s22, 2", f"s_cbranch_scc1 K1_TS{n_}",
                    "s_lshr_b32 s38, s40, 1", f"s_add_u32 s38, s38, {n_ + 1}", "s_and_b32 s38, s38, 3",
                    "s_mul_i32 s38, s38, s39", "s_add_u32 s38, s38, s36",
                    "buffer_load_dword v31, v23, s[8:11], s38 offen", f"K1_TS{n_}:"]
        for n_, when in enumerate(K1_TW):
            if when < 0:
                for x in touch(n_): a(x)
            else:
                TQ.setdefault(when, []).extend(touch(n_))
    ACC = 32
    def xf(ks): return 80 + (ks % 8) * 4
    def wf(ks, p): return 112 + (ks % 3) * 12 + p * 4
    def reads(ks):
        c, s = ks // 4, ks % 4
        slot = c % 5; st = slot // 2; off = (slot % 2) * SLOT
        out = [f"ds_read_b128 {vr(xf(ks), 4)}, v{8 + 4 * st + s} offset:{off}"]
        for p in range(3):
            for u in range(2):
                out.append(f"ds_read_b64_tr_b16 {vr(wf(ks, p) + 2 * u, 2)}, v{20 + st} offset:{off + 16384 + p * 4096 + s * 1024 + u * 256}")
        return out
    def mfmas(ks):
        X = vr(xf(ks), 4); out = []
        for p in range(3):
            D_ = vr(ACC + 16 * p, 16); W = vr(wf(ks, p), 4)
            A, B = (W, X) if p < 2 else (X, W)
            out.append(MF32(D_, A, B, "0" if ks == 0 else None))
        return out
    def dots(k0, k1_):
        for ks in range(k0, k1_):
            for i in range(4):
                a(f"v_dot2c_f32_bf16 v{24 + i % 2}, s30, v{xf(ks) + i}")
                a(f"v_dot2c_f32_bf16 v{26 + i % 2}, v{xf(ks) + i}, v{xf(ks) + i}")
    a("s_barrier")
    stamp(a, 1)
    for r in reads(0) + reads(1): a(r)
    for x in TQ.get(0, []): a(x)
    for ks in range(32):
        c, s = ks // 4, ks % 4
        M = mfmas(ks); R = reads(ks + 2) if ks + 2 < 32 else []
        if s == 2:
            dots(max(ks - 3, 0), ks)
            a("s_waitcnt lgkmcnt(0)")
            dots(ks, ks + 1)
            if c == 7: dots(ks + 1, ks + 2)
            a(M[0])
            if c < 7:
                a("s_barrier")
                if c < 5: stamp(a, 2 + c)
                for x in TQ.get(c + 1, []): a(x)
        else:
            a(f"s_waitcnt lgkmcnt({7 if ks < 31 else 0})")
            a(M[0])
        E = []
        if ks >= 30:
            if ks == 30:
                E = ["v_add_f32 v24, v24, v25", "v_add_f32 v26, v26, v27", "v_mov_b32 v25, v24", "v_mov_b32 v27, v26", "s_nop 0",
                     "v_permlane32_swap_b32 v24, v25", "v_permlane32_swap_b32 v26, v27", "v_add_f32 v24, v24, v25", "v_add_f32 v26, v26, v27",
                     f"v_mul_f32 v24, {f32(1/512)}, v24", f"v_mul_f32 v26, {f32(1/512)}, v26", "v_fma_f32 v26, -v24, v24, v26",
                     "v_max_f32 v26, 0, v26", f"v_add_f32 v26, {f32(EPS)}, v26", "v_rsq_f32 v26, v26"]
                E = ["s_nop 1"] + E
            else:
                E = ["ds_write_b32 v7, v26", "v_mul_f32 v24, -0.5, v24", "v_cvt_pk_bf16_f32 v25, v24, v24", "v_lshlrev_b32 v25, 16, v25",
                     "v_sub_f32 v27, v24, v25", "v_cvt_pk_bf16_f32 v148, v25, v27", "v_mov_b32 v150, 0", "v_mov_b32 v151, 0",
                     "v_mov_b32 v149, v148", f"v_mul_f32 v28, {f32(0.25 * LOG2E)}, v26", "v_mov_b32 v27, v26", "v_mov_b32 v29, v28"]
            R = E
            n3 = (len(R) + 2) // 3
        else:
            n3 = 3
        for r in R[:n3]: a(r)
        a(M[1])
        for r in R[n3:2 * n3]: a(r)
        a(M[2])
        for r in R[2 * n3:]: a(r)
    a("s_waitcnt lgkmcnt(0)")
    a("s_barrier")
    for p in range(3):
        a(f"ds_read_b128 {vr(80 + 4 * p, 4)}, v6 offset:{p * 512}")
    for g in range(4):
        a(f"ds_read_b128 {vr(96 + 4 * g, 4)}, v1 offset:{g * 32}")
    CF = 152
    for p in range(3):
        a(f"v_mov_b32 v{CF + 4 * p + 2}, 0")
        a(f"v_mov_b32 v{CF + 4 * p + 3}, 0")
    for p in range(3):
        b = 80 + 4 * p; f = CF + 4 * p
        a(f"s_waitcnt lgkmcnt({6 - p})")
        a(f"v_add_f32 v{b}, v{b}, v{b+1}")
        a(f"v_add_f32 v{b+2}, v{b+2}, v{b+3}")
        a(f"v_add_f32 v{b}, v{b}, v{b+2}")
        a(f"v_cvt_pk_bf16_f32 v{f}, v{b}, v{b}")
        a(f"v_lshlrev_b32 v{b+1}, 16, v{f}")
        a(f"v_sub_f32 v{b+1}, v{b}, v{b+1}")
        a(f"v_cvt_pk_bf16_f32 v{f+1}, v{b+1}, v{b+1}")
        if p >= 1:
            q = p - 1
            a(MF32(vr(ACC + 16 * q, 16), vr(CF + 4 * q, 4), vr(148, 4)))
    a("s_waitcnt lgkmcnt(0)")
    a("s_nop 0")
    a(MF32(vr(ACC + 32, 16), vr(148, 4), vr(CF + 8, 4)))
    a("s_nop 1")
    for p in range(3):
        b = ACC + 16 * p; o = 112 + 8 * p
        for i in range(0, 16, 2):
            sc = "v[28:29]" if p == 0 else "v[26:27]" if p == 1 else vr(96 + i, 2)
            a(f"v_pk_mul_f32 {vr(b + i, 2)}, {sc}, {vr(b + i, 2)}")
        for i in range(8):
            a(f"v_cvt_pk_bf16_f32 v{o+i}, v{b+2*i}, v{b+2*i+1}")
        if p < 2:
            a(f"buffer_store_dwordx4 {vr(o, 4)}, v2, s[16:19], s{29 if p == 0 else 32} offen")
            a(f"buffer_store_dwordx4 {vr(o + 4, 4)}, v2, s[16:19], s{31 if p == 0 else 33} offen")
        else:
            a(f"buffer_store_dwordx4 {vr(o, 4)}, v3, s[16:19], s34 offen")
            a(f"buffer_store_dwordx4 {vr(o + 4, 4)}, v3, s[16:19], s34 offen offset:512")
    stamp_end(a, 0, 7, 16)
    a.label("K1_END")
    a("s_endpgm")
    return n, a, kd(n, 168, 168), (256, 512, SCR3 + 512)

def k2():
    a = Asm(); n = "k2_attn_kernel"
    kernel_head(a, n)
    Q = 4; NEGM = 16; S = [32, 48]; O = 64; P = 80; KR = 96; VR = 112
    a("s_cmp_ge_u32 s2, 256")
    a("s_cbranch_scc1 K2_END")
    stamp(a, 0)
    a("s_load_dwordx2 s[4:5], s[0:1], 72")
    a("v_lshrrev_b32 v1, 6, v0")
    a("v_and_b32 v0, 63, v0")
    a("v_readfirstlane_b32 s22, v1")
    a("s_and_b32 s23, s2, 7")
    a("s_lshl_b32 s23, s23, 2")
    a("s_bfe_u32 s29, s2, 0x20003")
    a("s_add_u32 s23, s23, s29")
    a("s_lshr_b32 s24, s2, 5")
    a("s_lshl_b32 s25, s23, 16")
    a("v_lshlrev_b32 v2, 4, v0")
    a("s_cmp_eq_u32 s22, 8")
    a("s_cbranch_scc1 K2_HELP")
    a("s_lshl_b32 s26, s22, 10")
    a("s_add_u32 s27, s25, s26")
    a("s_lshl_b32 s28, s24, 13")
    a("s_add_u32 s28, s28, s27")
    a(f"s_add_u32 s29, s27, {KF}")
    a(f"s_add_u32 s30, s27, {VF}")
    a("s_mov_b32 m0, s26")
    a("s_waitcnt lgkmcnt(0)")
    srd(a, 8, 4, WS_SIZE)
    a("buffer_load_dwordx4 v2, s[8:11], s29 offen lds")
    a(f"buffer_load_dwordx4 {vr(Q, 4)}, v2, s[8:11], s28 offen")
    a("s_add_u32 m0, s26, 65536")
    a("s_nop 0")
    a("buffer_load_dwordx4 v2, s[8:11], s30 offen lds")
    a("v_lshrrev_b32 v11, 5, v0")
    a("v_and_b32 v12, 15, v0")
    a("v_lshl_add_u32 v12, v11, 4, v12")
    a("v_lshlrev_b32 v12, 4, v12")
    a("v_add_u32 v13, 65536, v12")
    a("s_mov_b32 s34, 0x0000ffff")
    a("s_mov_b32 s35, 0x0000ffff")
    a(f"s_mov_b32 s50, {f32(2.0**60)}")
    a("s_mov_b32 s51, 1")
    a("s_mov_b32 s52, 0")
    for i in range(32):
        a(f"v_mov_b32 v{VR + i}, 0x3f803f80")
    def zero_state():
        for i in range(16):
            a(f"v_mov_b32 v{O + i}, 0")
        for i in range(4, 8):
            a(f"v_mov_b32 v{P + i}, 0")
        a("v_mov_b32 v3, v2")
        a("v_mov_b32 v1, v13")
        a("s_mov_b32 s33, 0")
    def kread(t): a(f"ds_read_b128 {vr(KR + 4 * (t % 4), 4)}, v3 offset:{t * 1024}")
    def vread(t):
        a("s_mov_b64 exec, s[34:35]")
        for j in range(2):
            a(f"ds_read_b128 {vr(VR + 8 * (t % 4) + 4 * j, 4)}, v1 offset:{t * 1024 + j * 512}")
        a("s_mov_b64 exec, -1")
    def prime():
        kread(0); kread(1); vread(0); kread(2); vread(1)
    zero_state()
    a("s_waitcnt vmcnt(0)")
    a("s_barrier")
    stamp(a, 1)
    prime()
    a("s_waitcnt lgkmcnt(6)")
    s0 = S[0]
    a(MF32(vr(s0, 16), vr(KR, 4), vr(Q, 4), "0"))
    a("s_nop 11")
    for i in range(5):
        a(f"v_max3_f32 v{NEGM + i}, v{s0+3*i}, v{s0+3*i+1}, v{s0+3*i+2}")
    a(f"v_max3_f32 v14, v{NEGM}, v{NEGM+1}, v{s0+15}")
    a(f"v_max3_f32 v15, v{NEGM+2}, v{NEGM+3}, v{NEGM+4}")
    a("v_max_f32 v14, v14, v15")
    a.label("K2_RESTART")
    a("v_mov_b32 v15, v14")
    a("s_nop 1")
    a("v_permlane32_swap_b32 v14, v15")
    a("v_max_f32 v14, v14, v15")
    for i in range(16):
        a(f"v_sub_f32 v{NEGM + i}, 0, v14")
    a("s_nop 1")
    a(MF32(vr(S[0], 16), vr(KR, 4), vr(Q, 4), vr(NEGM, 16)))
    a("s_nop 8")
    a.raw(".p2align 6")
    a.label("K2_LOOP")
    body = Asm(); b = body
    for t in range(4):
        Sc = S[t % 2]; Sn = S[(t + 1) % 2]
        E = lambda i: b(f"v_exp_f32 v{Sc+i}, v{Sc+i}")
        C = lambda i: b(f"v_cvt_pk_bf16_f32 v{P+i}, v{Sc+2*i}, v{Sc+2*i+1}")
        b("s_waitcnt lgkmcnt(3)")
        b(MF32(vr(Sn, 16), vr(KR + 4 * ((t + 1) % 4), 4), vr(Q, 4), vr(NEGM, 16)))
        for i in range(5): E(i)
        b(MF32(vr(O, 16), vr(VR + 8 * ((t - 1) % 4) + 4, 4), vr(P + 4, 4)))
        b(f"ds_read_b128 {vr(KR + 4 * ((t + 3) % 4), 4)}, v3 offset:{(t + 3) * 1024}")
        b("s_mov_b64 exec, s[34:35]")
        for j in range(2):
            b(f"ds_read_b128 {vr(VR + 8 * ((t + 2) % 4) + 4 * j, 4)}, v1 offset:{(t + 2) * 1024 + j * 512}")
        b("s_mov_b64 exec, -1")
        for i in range(5, 8): E(i)
        for i in range(4): C(i)
        E(8); E(9)
        b(MF32(vr(O, 16), vr(VR + 8 * (t % 4), 4), vr(P, 4)))
        for i in range(10, 16): E(i)
        if t == 3:
            b("v_add_u32 v3, 4096, v3")
            b("v_add_u32 v1, 4096, v1")
        for i in range(4, 8): C(i)
    if K2_Y:
        bl = []
        for cnt, ln in enumerate(body.lines):
            if cnt == 0: bl.append("    s_setprio 0")
            if cnt == K2_Y: bl.append("    s_setprio 1")
            bl.append(ln)
        body.lines = bl
    a.lines += body.lines
    a("s_add_u32 s33, s33, 1")
    a("s_cmp_lt_u32 s33, s51")
    a("s_cbranch_scc1 K2_LOOP")
    a("s_cmp_lt_u32 s33, 16")
    a("s_cbranch_scc1 K2_SYNC")
    check_hazards(body.lines + body.lines, "k2loop")
    a(MF32(vr(O, 16), vr(VR + 8 * 3 + 4, 4), vr(P + 4, 4)))
    a("s_lshl_b32 s29, s24, 3")
    a("s_add_u32 s29, s29, s22")
    a("s_lshl_b32 s29, s29, 15")
    a("s_lshl_b32 s30, s23, 10")
    a("s_add_u32 s29, s29, s30")
    a(f"s_add_u32 s29, s29, {OF}")
    a("s_waitcnt lgkmcnt(0)")
    a("s_nop 4")
    a(f"v_cmp_gt_f32 vcc, s50, v{O + 8}")
    a(f"v_rcp_f32 v14, v{O + 8}")
    a("s_nop 0")
    a("s_cmp_eq_u64 vcc, -1")
    a("s_cbranch_scc0 K2_FALLBACK")
    a.label("K2_FIN")
    stamp(a, 4)
    for i in range(8):
        a(f"v_mul_f32 v{O+i}, v14, v{O+i}")
    for i in range(4):
        a(f"v_cvt_pk_bf16_f32 v{P+i}, v{O+2*i}, v{O+2*i+1}")
    a(f"buffer_store_dwordx4 {vr(P, 4)}, v2, s[8:11], s29 offen")
    stamp_end(a, 1, 5, 8)
    a("s_endpgm")
    a.label("K2_SYNC")
    a("s_barrier")
    a(f"s_cmp_eq_u32 s33, {K2_S2}")
    a(f"s_cselect_b32 s51, {K2_S3}, 16")
    a("s_cmp_eq_u32 s33, 1")
    a(f"s_cselect_b32 s51, {K2_S2}, s51")
    if STAMP:
        a("s_cbranch_scc0 K2_ST3")
        stamp(a, 2)
        a("s_branch K2_LOOP")
        a.label("K2_ST3")
        stamp(a, 3)
    a("s_branch K2_LOOP")
    a.label("K2_FALLBACK")
    a("s_cmp_eq_u32 s52, 1")
    a("s_cbranch_scc1 K2_FIN")
    a("s_mov_b32 s52, 1")
    a("v_mov_b32 v3, v2")
    a("v_mov_b32 v14, 0xff800000")
    a("s_mov_b32 s33, 0")
    a.label("K2_FB_LOOP")
    a(f"ds_read_b128 {vr(KR, 4)}, v3")
    a("v_add_u32 v3, 1024, v3")
    a("s_waitcnt lgkmcnt(0)")
    a(MF32(vr(S[0], 16), vr(KR, 4), vr(Q, 4), "0"))
    a("s_nop 11")
    for i in range(0, 16, 2):
        a(f"v_max3_f32 v14, v14, v{s0+i}, v{s0+i+1}")
    a("s_add_u32 s33, s33, 1")
    a("s_cmp_lt_u32 s33, 64")
    a("s_cbranch_scc1 K2_FB_LOOP")
    zero_state()
    prime()
    a("s_waitcnt lgkmcnt(6)")
    a("s_branch K2_RESTART")
    a.label("K2_HELP")
    a("s_setprio 3")
    a("s_load_dwordx2 s[54:55], s[0:1], 0")
    a("s_load_dwordx2 s[6:7], s[0:1], 16")
    a("s_load_dwordx4 s[40:43], s[0:1], 32")
    a("s_load_dwordx2 s[44:45], s[0:1], 48")
    a(f"s_add_u32 s27, s25, {KF + 8192}")
    a("s_mov_b32 s26, 8192")
    a("s_waitcnt lgkmcnt(0)")
    srd(a, 8, 4, WS_SIZE)
    def dma_loop(lbl, end):
        a.label(lbl)
        a("s_mov_b32 m0, s26")
        a(f"s_add_u32 s29, s27, {VF - KF}")
        for i in range(4):
            a(f"buffer_load_dwordx4 v2, s[8:11], s27 offen offset:{i * 1024} lds")
        a("s_add_u32 m0, s26, 65536")
        a("s_add_u32 s26, s26, 4096")
        for i in range(4):
            a(f"buffer_load_dwordx4 v2, s[8:11], s29 offen offset:{i * 1024} lds")
        a("s_add_u32 s27, s27, 4096")
        a(f"s_cmp_lt_u32 s26, {end}")
        a(f"s_cbranch_scc1 {lbl}")
    dma_loop("K2_H1", 32768)
    a("s_barrier")
    a("s_waitcnt vmcnt(0)")
    a("s_barrier")
    dma_loop("K2_H2", 65536)
    a("s_waitcnt vmcnt(0)")
    a("s_barrier")
    SCR = 131072 + 8192
    a("v_lshrrev_b32 v10, 2, v0")
    a("v_and_b32 v11, 3, v0")
    a("v_lshlrev_b32 v11, 4, v11")
    a("v_lshrrev_b32 v12, 5, v0")
    a("v_bfe_u32 v13, v0, 2, 2")
    a("v_lshl_add_u32 v12, v12, 2, v13")
    a("v_lshlrev_b32 v12, 6, v12")
    a("v_and_b32 v13, 3, v0")
    a("v_lshl_add_u32 v12, v13, 3, v12")
    a(f"v_add_u32 v12, {SCR}, v12")
    a("v_bfe_u32 v13, v0, 4, 1")
    a("v_lshl_add_u32 v14, v13, 5, v12")
    a("v_lshl_add_u32 v15, v13, 12, v12")
    a("s_mul_i32 s36, s2, 3")
    for jb in range(3):
        L = f"K2_J{jb}"
        dst, strd, typ = 56 + 3 * jb, 57 + 3 * jb, 58 + 3 * jb
        if STAMP: dst, strd, typ = 88 + 3 * jb, 89 + 3 * jb, 90 + 3 * jb
        a(f"s_mov_b32 s{typ}, 0")
        a(f"s_add_u32 s30, s36, {jb}")
        a("s_cmp_ge_u32 s30, 736")
        a(f"s_cbranch_scc1 {L}_END")
        a(f"s_mov_b32 s{strd}, 32768")
        a("s_cmp_ge_u32 s30, 288")
        a(f"s_cbranch_scc1 {L}_GU")
        a(f"s_mov_b32 s{typ}, 1")
        srd(a, 12, 6, 512 * 512 * 2)
        a(f"s_mov_b32 s{dst}, {WOF}")
        a("s_cmp_lt_u32 s30, 64")
        a(f"s_cbranch_scc1 {L}_OD")
        a("s_sub_u32 s30, s30, 64")
        srd(a, 12, 44, 1792 * 512 * 2)
        a(f"s_mov_b32 s{strd}, 114688")
        a(f"s_mov_b32 s{dst}, {WDF}")
        a.label(f"{L}_OD")
        a("s_mov_b64 s[16:17], s[12:13]")
        a("s_mov_b32 s18, s14")
        a("s_mov_b32 s19, 0x00020000")
        a("s_mov_b32 s37, 1024")
        a("s_and_b32 s31, s30, 1")
        a("s_lshr_b32 s30, s30, 1")
        a("s_lshl_b32 s38, s30, 14")
        a("s_lshl_b32 s32, s31, 9")
        a("s_add_u32 s38, s38, s32")
        a("s_add_u32 s39, s38, 256")
        a(f"s_branch {L}_GO")
        a.label(f"{L}_GU")
        a(f"s_mov_b32 s{typ}, 2")
        a("s_sub_u32 s30, s30, 288")
        a("s_lshr_b32 s31, s30, 5")
        a("s_and_b32 s30, s30, 31")
        a("s_mov_b32 s37, 3584")
        srd(a, 12, 40, 512 * 1792 * 2)
        srd(a, 16, 42, 512 * 1792 * 2)
        a(f"s_mov_b32 s{dst}, {WGF}")
        a("s_mul_i32 s38, s30, 57344")
        a("s_lshl_b32 s32, s31, 8")
        a("s_add_u32 s38, s38, s32")
        a("s_mov_b32 s39, s38")
        a.label(f"{L}_GO")
        a(f"s_mul_i32 s32, s31, s{strd}")
        a("s_lshl_b32 s32, s32, 3")
        a(f"s_add_u32 s{dst}, s{dst}, s32")
        a("s_lshl_b32 s32, s30, 10")
        a(f"s_add_u32 s{dst}, s{dst}, s32")
        a("v_mul_lo_u32 v8, v10, s37")
        a("v_add_u32 v8, v8, v11")
        for i in range(8):
            a(f"s_mov_b32 m0, {SCR + jb * 8192 + i * 1024}")
            so = 38 if i < 4 else 39
            a("s_nop 0")
            a(f"buffer_load_dwordx4 v8, s[{12 if i < 4 else 16}:{15 if i < 4 else 19}], s{so} offen lds")
            a(f"s_add_u32 s{so}, s{so}, 64")
        a.label(f"{L}_END")
    a("s_waitcnt vmcnt(0)")
    for jb in range(3):
        L = f"K2_K{jb}"
        dst, strd, typ = 56 + 3 * jb, 57 + 3 * jb, 58 + 3 * jb
        if STAMP: dst, strd, typ = 88 + 3 * jb, 89 + 3 * jb, 90 + 3 * jb
        R = 16 + 32 * jb
        a(f"s_cmp_eq_u32 s{typ}, 0")
        a(f"s_cbranch_scc1 {L}_END")
        a(f"s_cmp_eq_u32 s{typ}, 2")
        a(f"s_cbranch_scc1 {L}_GU")
        for j in range(8):
            for u in range(2):
                a(f"ds_read_b64_tr_b16 {vr(R + 4 * j + 2 * u, 2)}, v14 offset:{jb * 8192 + j * 1024 + u * 512}")
        a(f"s_branch {L}_ST")
        a.label(f"{L}_GU")
        for j in range(8):
            for u in range(2):
                a(f"ds_read_b64_tr_b16 {vr(R + 4 * j + 2 * u, 2)}, v15 offset:{jb * 8192 + (j // 2) * 1024 + (j % 2) * 32 + u * 512}")
        a.label(f"{L}_ST")
        a("s_waitcnt lgkmcnt(0)")
        for j in range(8):
            a(f"buffer_store_dwordx4 {vr(R + 4 * j, 4)}, v2, s[8:11], s{dst} offen {SIDE_SC}")
            a(f"s_add_u32 s{dst}, s{dst}, s{strd}")
        a.label(f"{L}_END")
    a.label("K2_JOBS_DONE")
    if K2_S3 < 16:
        a("s_barrier")
        a("s_lshr_b32 s30, s2, 3")
        a("v_lshlrev_b32 v13, 7, v0")
        a("s_bfe_u32 s31, s2, 0x20001")
        a(f"s_mul_i32 s31, s31, {28 * 32768}")
        a("s_mul_i32 s32, s30, 28672")
        a("s_add_u32 s31, s31, s32")
        a(f"s_add_u32 s31, s31, {WGF}")
        for i in range(4):
            a("buffer_load_dword v14, v13, s[8:11], s31 offen")
            a(f"s_add_u32 s31, s31, {8192 if i < 2 else 4096}")
        a("s_lshl_b32 s31, s30, 14")
        a(f"s_add_u32 s31, s31, {WOF}")
        a("buffer_load_dword v14, v13, s[8:11], s31 offen")
        a("s_add_u32 s31, s31, 8192")
        a("buffer_load_dword v14, v13, s[8:11], s31 offen")
        srd(a, 12, 54, 2048 * 512 * 2)
        a("s_and_b32 s31, s2, 7")
        a("s_lshl_b32 s31, s31, 18")
        a("s_lshl_b32 s32, s30, 13")
        a("s_add_u32 s31, s31, s32")
        a("buffer_load_dword v14, v13, s[12:15], s31 offen")
        if K2_WD:
            a(f"s_mul_i32 s31, s30, {57344}")
            a(f"s_add_u32 s31, s31, {WDF}")
            for i in range(K2_WD):
                a("buffer_load_dword v14, v13, s[8:11], s31 offen")
                a("s_add_u32 s31, s31, 8192")
    a.label("K2_END")
    a("s_endpgm")
    return n, a, kd(n, 144, 144, 100), (256, 576, 163840)

def k35(which):
    a = Asm()
    three = which == 3
    n = "k3_oproj_kernel" if three else "k5_down_kernel"
    L = "K3" if three else "K5"
    NS = 32 if three else 112
    KS = NS // 4
    ASRC = WOF if three else WDF
    BSRC = OF if three else GF
    DEPTH = 8
    kernel_head(a, n)
    ACC = 16; BUF = 80; RES = 208
    a("s_cmp_ge_u32 s2, 256")
    a(f"s_cbranch_scc1 {L}_END")
    stamp(a, 0)
    a("s_load_dwordx2 s[4:5], s[0:1], 72")
    a(f"s_load_dwordx2 s[6:7], s[0:1], {0 if three else 56}")
    a("v_lshrrev_b32 v1, 6, v0")
    a("v_and_b32 v0, 63, v0")
    a("v_readfirstlane_b32 s22, v1")
    a("v_lshlrev_b32 v2, 4, v0")
    a("s_and_b32 s23, s2, 7")
    a("s_lshl_b32 s23, s23, 2")
    a("s_bfe_u32 s29, s2, 0x20003")
    a("s_add_u32 s23, s23, s29")
    a("s_lshr_b32 s24, s2, 5")
    if three:
        a("s_cmp_eq_u32 s22, 4")
        a("s_cbranch_scc1 K3_CS")
    a("s_and_b32 s25, s22, 1")
    a("s_lshr_b32 s26, s22, 1")
    a("s_lshl_b32 s27, s24, 1")
    a("s_add_u32 s27, s27, s25")
    a("s_lshl_b32 s28, s23, 1")
    a("s_add_u32 s28, s28, s26")
    a(f"s_mul_i32 s29, s22, {KS * 1024}")
    a(f"s_mul_i32 s30, s27, {NS * 1024}")
    a("s_add_u32 s30, s30, s29")
    a(f"s_add_u32 s30, s30, {ASRC}")
    a("s_xor_b32 s31, s27, 1")
    a(f"s_mul_i32 s31, s31, {NS * 1024}")
    a("s_add_u32 s31, s31, s29")
    a(f"s_add_u32 s31, s31, {ASRC}")
    a(f"s_mul_i32 s32, s28, {NS * 1024}")
    a("s_add_u32 s32, s32, s29")
    a(f"s_add_u32 s32, s32, {BSRC}")
    a("s_xor_b32 s33, s28, 1")
    a(f"s_mul_i32 s33, s33, {NS * 1024}")
    a("s_add_u32 s33, s33, s29")
    a(f"s_add_u32 s33, s33, {BSRC}")
    a("v_and_b32 v3, 31, v0")
    a("v_lshlrev_b32 v3, 10, v3")
    a("v_lshrrev_b32 v4, 5, v0")
    a("v_lshl_add_u32 v3, v4, 4, v3")
    a("s_lshl_b32 s34, s28, 15")
    a("s_lshl_b32 s35, s27, 6")
    a("s_add_u32 s34, s34, s35")
    a("s_lshl_b32 s35, s28, 15")
    a("s_lshl_b32 s36, s27, 11")
    a("s_add_u32 s35, s35, s36")
    a(f"s_add_u32 s35, s35, {HF}")
    a("s_waitcnt lgkmcnt(0)")
    srd(a, 8, 4, WS_SIZE)
    srd(a, 12, 6, 2048 * 512 * 2)
    def loads(s):
        b = BUF + 16 * (s % DEPTH)
        if s % 4 == 0 and s > 0:
            for r in range(30, 34):
                a(f"s_add_u32 s{r}, s{r}, 4096")
        for i, r in enumerate((32, 30, 33, 31)):
            a(f"buffer_load_dwordx4 {vr(b + 4 * i, 4)}, v2, s[8:11], s{r} offen offset:{(s % 4) * 1024}")
    def mfmas(s):
        b = BUF + 16 * (s % DEPTH)
        B0, A0, B1, A1 = (vr(b + 4 * i, 4) for i in range(4))
        C = "0" if s == 0 else None
        a(MF32(vr(ACC, 16), A0, B0, C))
        a(MF32(vr(ACC + 32, 16), A0, B1, C))
        a(MF32(vr(ACC + 16, 16), A1, B0, C))
        a(MF32(vr(ACC + 48, 16), A1, B1, C))
    def resload():
        for j in range(2):
            if three:
                a(f"buffer_load_dwordx4 {vr(RES + 4 * j, 4)}, v3, s[12:15], s34 offen offset:{j * 32}")
            else:
                a(f"buffer_load_dwordx4 {vr(RES + 4 * j, 4)}, v2, s[8:11], s35 offen offset:{j * 1024}")
    nl = min(DEPTH, KS)
    for s in range(nl):
        loads(s)
    issued = nl; res_done = False
    if issued == KS:
        resload(); res_done = True
    a("v_mov_b32 v5, v2")
    for s in range(KS):
        out = (issued - s - 1) * 4 + (2 if res_done else 0)
        a(f"s_waitcnt vmcnt({out})")
        if s == 0: stamp(a, 1)
        mfmas(s)
        if issued < KS:
            loads(issued); issued += 1
            if issued == KS:
                resload(); res_done = True
    stamp(a, 2)
    for t in range(1, 4):
        a(f"s_xor_b32 s29, s22, {t}")
        a("s_mul_i32 s29, s29, 12288")
        a(f"v_add_u32 v{5 + t}, s29, v2")
    a("s_mul_i32 s29, s22, 12288")
    a("v_add_u32 v5, s29, v2")
    a("s_nop 7")
    for t in (2, 1, 3):
        for q in range(4):
            a(f"ds_write_b128 v{5 + t}, {vr(ACC + 16 * t + 4 * q, 4)} offset:{(t - 1) * 4096 + q * 1024}")
    a("s_waitcnt lgkmcnt(0)")
    a("s_barrier")
    for t in range(3):
        for q in range(4):
            a(f"ds_read_b128 {vr(BUF + 16 * t + 4 * q, 4)}, v5 offset:{t * 4096 + q * 1024}")
    a("s_waitcnt vmcnt(0)")
    if three:
        for j in range(2):
            a(f"v_permlane32_swap_b32 v{RES + 4 * j}, v{RES + 4 * j + 2}")
            a(f"v_permlane32_swap_b32 v{RES + 4 * j + 1}, v{RES + 4 * j + 3}")
    a("s_mov_b32 s29, 0xffff0000")
    for i in range(8):
        a(f"v_lshlrev_b32 v{RES + 8}, 16, v{RES + i}")
        a(f"v_and_b32 v{RES + 9}, s29, v{RES + i}")
        a(f"v_add_f32 v{ACC + 2 * i}, v{ACC + 2 * i}, v{RES + 8}")
        a(f"v_add_f32 v{ACC + 2 * i + 1}, v{ACC + 2 * i + 1}, v{RES + 9}")
    for t in range(3):
        a(f"s_waitcnt lgkmcnt({8 - 4 * t})")
        for i in range(16):
            a(f"v_add_f32 v{ACC + i}, v{ACC + i}, v{BUF + 16 * t + i}")
    o = ACC + 16
    for i in range(8):
        a(f"v_cvt_pk_bf16_f32 v{o + i}, v{ACC + 2 * i}, v{ACC + 2 * i + 1}")
    if three:
        for j in range(2):
            a(f"buffer_store_dwordx4 {vr(o + 4 * j, 4)}, v2, s[8:11], s35 offen offset:{j * 1024}")
        a("s_mov_b32 s30, 0x3f803f80")
        a("v_mov_b32 v8, 0")
        a("v_mov_b32 v9, 0")
        for i in range(8):
            a(f"v_dot2c_f32_bf16 v8, s30, v{o + i}")
            a(f"v_dot2c_f32_bf16 v9, v{o + i}, v{o + i}")
        a("s_lshl_b32 s29, s28, 12")
        a("s_bfe_u32 s30, s27, 0x20001")
        a("s_lshl_b32 s30, s30, 10")
        a("s_add_u32 s29, s29, s30")
        a("s_lshr_b32 s30, s27, 3")
        a("s_lshl_b32 s30, s30, 9")
        a("s_add_u32 s29, s29, s30")
        a("s_and_b32 s30, s27, 1")
        a("s_lshl_b32 s30, s30, 3")
        a("s_add_u32 s29, s29, s30")
        a(f"s_add_u32 s29, s29, {ST}")
        a("v_and_b32 v3, 31, v0")
        a("v_lshlrev_b32 v3, 4, v3")
        halfsum(a, 8, 1)
        halfsum(a, 9, 1)
        a("buffer_store_dwordx2 v[8:9], v3, s[8:11], s29 offen")
        stamp_end(a, 2, 3, 8)
        a("s_endpgm")
        a.label("K3_CS")
        a("s_cmp_ge_u32 s2, 224")
        a("s_cbranch_scc1 K3_END")
        a("s_bfe_u32 s30, s2, 0x20001")
        a("s_mul_i32 s30, s30, 28")
        a("s_lshr_b32 s31, s2, 3")
        a("s_add_u32 s30, s30, s31")
        a("s_lshl_b32 s30, s30, 1")
        a("s_and_b32 s31, s2, 1")
        a("s_add_u32 s31, s31, s30")
        a("s_lshl_b32 s30, s31, 14")
        a(f"s_add_u32 s30, s30, {WGF}")
        a("s_lshl_b32 s31, s31, 9")
        a(f"s_add_u32 s31, s31, {CSF}")
        for i in range(4):
            a(f"v_mov_b32 v{4 + i}, 0x3f803f80")
        a("s_waitcnt lgkmcnt(0)")
        srd(a, 8, 4, WS_SIZE)
        for s in range(16):
            if s % 4 == 0 and s > 0:
                a("s_add_u32 s30, s30, 4096")
            a(f"buffer_load_dwordx4 {vr(BUF + 4 * s, 4)}, v2, s[8:11], s30 offen offset:{(s % 4) * 1024}")
        for s in range(16):
            a(f"s_waitcnt vmcnt({15 - s})")
            a(MF32(vr(ACC, 16), vr(4, 4), vr(BUF + 4 * s, 4), "0" if s == 0 else None))
        a("v_and_b32 v3, 31, v0")
        a("v_lshlrev_b32 v3, 4, v3")
        a("v_mov_b32 v10, 0")
        a("v_mov_b32 v11, 0")
        a("s_nop 7")
        a(f"v_cvt_pk_bf16_f32 v8, v{ACC}, v{ACC}")
        a("v_lshlrev_b32 v9, 16, v8")
        a(f"v_sub_f32 v9, v{ACC}, v9")
        a("v_cvt_pk_bf16_f32 v9, v9, v9")
        a("buffer_store_dwordx4 v[8:11], v3, s[8:11], s31 offen")
    else:
        a("s_nop 0")
        for j in range(2):
            a(f"v_permlane32_swap_b32 v{o + 4 * j}, v{o + 4 * j + 2}")
            a(f"v_permlane32_swap_b32 v{o + 4 * j + 1}, v{o + 4 * j + 3}")
        for j in range(2):
            a(f"buffer_store_dwordx4 {vr(o + 4 * j, 4)}, v3, s[12:15], s34 offen offset:{j * 32}")
        stamp_end(a, 4, 3, 8)
    a.label(f"{L}_END")
    a("s_endpgm")
    return n, a, kd(n, 224, 224), (256, 320 if three else 256, 49152)


def k4():
    a = Asm(); n = "k4_gateup_kernel"
    kernel_head(a, n)
    SLOT = 32768; D = K4_D
    K1C = 2 * math.sqrt(2 / math.pi) * LOG2E
    a("s_cmp_ge_u32 s2, 256")
    a("s_cbranch_scc1 K4_END")
    stamp(a, 0)
    a("s_load_dwordx2 s[4:5], s[0:1], 72")
    a("v_lshrrev_b32 v1, 6, v0")
    a("v_and_b32 v0, 63, v0")
    a("v_readfirstlane_b32 s35, v1")
    a("v_lshlrev_b32 v2, 4, v0")
    a("s_and_b32 s23, s2, 1")
    a("s_lshl_b32 s23, s23, 3")
    a("s_bfe_u32 s29, s2, 0x30003")
    a("s_add_u32 s23, s23, s29")
    a("s_bfe_u32 s24, s2, 0x20001")
    a("s_lshl_b32 s24, s24, 2")
    a("s_lshr_b32 s29, s2, 6")
    a("s_add_u32 s24, s24, s29")
    a("s_and_b32 s22, s35, 3")
    a("s_lshl_b32 s25, s23, 2")
    a("s_add_u32 s25, s25, s22")
    a("s_lshl_b32 s28, s22, 12")
    a("s_cmp_lt_u32 s35, 4")
    a("s_cbranch_scc1 K4_COMMON")
    a("s_lshl_b32 s26, s25, 15")
    a(f"s_add_u32 s26, s26, {HF}")
    a(f"s_mul_i32 s27, s24, {7 * 32768}")
    a(f"s_add_u32 s27, s27, {WGF}")
    a("s_lshl_b32 s36, s22, 15")
    a("s_add_u32 s36, s36, s27")
    a("s_lshl_b32 s37, s22, 13")
    a("s_add_u32 s38, s37, s27")
    a("s_waitcnt lgkmcnt(0)")
    srd(a, 8, 4, WS_SIZE)
    def dma(j):
        slot = (j % 5) * SLOT
        if j < 8:
            grp = [(f"s_add_u32 m0, s28, {slot}", f"s_add_u32 s29, s26, {j * 4096}"),
                   (f"s_add_u32 m0, s28, {slot + 16384}", f"s_add_u32 s29, s36, {j * 4096}")]
        else:
            grp = [(f"s_add_u32 m0, s37, {slot + g * 4096}", f"s_add_u32 s29, s38, {(j - 4) * 32768 + g * 4096}") for g in range(2)]
        for m, so in grp:
            a(m); a(so)
            for i in range(4):
                a(f"buffer_load_dwordx4 v2, s[8:11], s29 offen offset:{i * 1024} lds")
    for j in range(D + 1):
        dma(j)
    a.label("K4_COMMON")
    a("v_add_u32 v3, 65536, v2")
    a("v_add_u32 v4, 131072, v2")
    for k in range(3):
        a(f"v_add_u32 v{5 + k}, s28, v{2 + k}")
    a("s_lshl_b32 s30, s25, 12")
    a(f"s_add_u32 s30, s30, {ST}")
    a("s_mul_i32 s31, s24, 7168")
    a(f"s_add_u32 s32, s31, {GF}")
    a(f"s_add_u32 s31, s31, {CSF}")
    a(f"s_mul_i32 s29, s25, {112 * 1024}")
    a("s_add_u32 s32, s32, s29")
    def hread(dst, j, s):
        slot = j % 5
        return f"ds_read_b128 {vr(dst, 4)}, v{5 + slot // 2} offset:{(slot % 2) * SLOT + s * 1024}"
    def wread(dst, j, off):
        slot = j % 5
        return f"ds_read_b128 {vr(dst, 4)}, v{2 + slot // 2} offset:{(slot % 2) * SLOT + off}"
    def stat_loads(STR, CSR, f0, nf):
        out = [f"buffer_load_dwordx4 {vr(STR + 4 * q, 4)}, v2, s[8:11], s30 offen offset:{q * 1024}" for q in range(4)]
        out += [f"buffer_load_dwordx4 {vr(CSR + 4 * i, 4)}, v2, s[8:11], s31 offen offset:{i * 1024}" for i in range(nf)]
        return out
    def stats(STR, T):
        o = []
        for q in range(1, 4):
            for i in range(4):
                o.append(f"v_add_f32 v{STR + i}, v{STR + i}, v{STR + 4 * q + i}")
        o += [f"v_add_f32 v8, v{STR}, v{STR + 2}", f"v_add_f32 v9, v{STR + 1}, v{STR + 3}",
              "v_mov_b32 v10, v8", "v_mov_b32 v11, v9", "s_nop 0",
              "v_permlane32_swap_b32 v8, v10", "v_permlane32_swap_b32 v9, v11",
              "v_add_f32 v8, v8, v10", "v_add_f32 v9, v9, v11",
              f"v_mul_f32 v8, {f32(-1/512)}, v8", f"v_mul_f32 v9, {f32(1/512)}, v9",
              "v_fma_f32 v9, -v8, v8, v9", "v_max_f32 v9, 0, v9", f"v_add_f32 v9, {f32(EPS)}, v9",
              "v_rsq_f32 v10, v9", "v_cvt_pk_bf16_f32 v11, v8, v8", "v_lshlrev_b32 v11, 16, v11",
              "v_sub_f32 v12, v8, v11", f"v_cvt_pk_bf16_f32 v{T}, v11, v12",
              f"v_mov_b32 v{T+2}, 0", f"v_mov_b32 v{T+3}, 0", f"v_mov_b32 v{T+1}, v{T}",
              f"v_mul_f32 v11, {f32(-K1C)}, v10", "v_mul_f32 v12, v10, v10", "v_mul_f32 v12, v12, v11",
              f"v_mul_f32 v12, {f32(0.044715)}, v12"]
        return o
    def epi(g, z, off):
        u = g + 8; o = []
        o += [f"v_mul_f32 v{z+i}, v{g+i}, v{g+i}" for i in range(8)]
        o += [f"v_fma_f32 v{z+i}, v{z+i}, v12, v11" for i in range(8)]
        o += [f"v_mul_f32 v{z+i}, v{z+i}, v{g+i}" for i in range(8)]
        for i in range(8):
            o += [f"v_exp_f32 v{z+i}, v{z+i}", f"v_mul_f32 v{g+i}, v{g+i}, v{u+i}"]
        o += [f"v_fma_f32 v{z+i}, v{z+i}, v9, v9" for i in range(8)]
        o += [f"v_rcp_f32 v{z+i}, v{z+i}" for i in range(8)]
        o += ["s_nop 0"]
        o += [f"v_mul_f32 v{g+i}, v{g+i}, v{z+i}" for i in range(8)]
        o += [f"v_cvt_pk_bf16_f32 v{u+i}, v{g+2*i}, v{g+2*i+1}" for i in range(4)]
        o += [f"buffer_store_dwordx4 {vr(u, 4)}, v2, s[8:11], s32 offen offset:{off}"]
        return o
    a("s_cmp_lt_u32 s35, 4")
    a("s_cbranch_scc1 K4_A")
    H = 16; ACCB = 144; WR = 192; CSB = 224; TB = 236; ZB = 240; STB = ACCB + 32
    a("s_add_u32 s31, s31, 4096")
    a("s_add_u32 s32, s32, 4096")
    for j in range(8):
        a(f"s_waitcnt vmcnt({8 * D}) lgkmcnt(0)")
        a("s_barrier")
        if j == 0: stamp(a, 1)
        for s in range(4):
            a(hread(H + 16 * j + 4 * s, j, s))
        dma(j + D + 1) if j + D + 1 <= 10 else None
    last = min(7 + D + 1, 10)
    for j in range(last + 1, 11):
        dma(j)
    for l in stat_loads(STB, CSB, 4, 3): a(l)
    nt = 0
    a(f"s_waitcnt vmcnt({8 + 7 + nt}) lgkmcnt(0)")
    a("s_barrier")
    a("s_setprio 2")
    stamp(a, 2)
    NR = 8
    seq = [(f, ks) for f in range(3) for ks in range(32)]
    def wr_(i): return WR + 4 * (i % NR)
    def rd(i):
        f, ks = seq[i]
        return wread(wr_(i), 8 + f, ks * 1024)
    for i in range(NR - 1): a(rd(i))
    fill = []
    for i, (f, ks) in enumerate(seq):
        if i + NR - 1 < len(seq):
            if seq[i + NR - 1] == (2, 0): pass
            a(rd(i + NR - 1))
            a(f"s_waitcnt lgkmcnt({NR - 1})")
        else:
            a(f"s_waitcnt lgkmcnt({len(seq) - 1 - i})")
        a(MF32(vr(ACCB + 16 * f, 16), vr(wr_(i), 4), vr(H + 4 * ks, 4), "0" if ks == 0 else None))
        if i == K4_XB:
            a(f"s_waitcnt vmcnt({nt})")
            a("s_barrier")
            fill += stats(STB, TB) + ["s_nop 1"]
            if K4_TOUCH:
                fill += ["s_lshr_b32 s29, s2, 3", "s_lshl_b32 s29, s29, 2", "s_add_u32 s29, s29, s22",
                         "s_mul_i32 s29, s29, 14336", f"s_add_u32 s29, s29, {WDF}", "v_lshlrev_b32 v13, 7, v0",
                         "buffer_load_dword v14, v13, s[8:11], s29 offen", "s_add_u32 s29, s29, 6144", "DELAY", "DELAY",
                         "buffer_load_dword v14, v13, s[8:11], s29 offen"]
        if ks == 31:
            assert not [x for x in fill if "v_rsq" in x or f"v{TB+1}," in x]
            a(MF32(vr(ACCB + 16 * f, 16), vr(CSB + 4 * f, 4), vr(TB, 4)))
            if f < 2:
                fill += ["DELAY"] * 4 + epi(ACCB + 16 * f, ZB, f * 1024)
        budget = 5
        while fill and budget > 0:
            x = fill.pop(0)
            if x == "DELAY": break
            a(x); budget -= 2 if ("v_exp" in x or "v_rcp" in x or "v_rsq" in x) else 1
    for x in fill: a(x)
    stamp(a, 3)
    a("s_nop 11")
    for x in epi(ACCB + 32, ZB, 2048): a(x)
    stamp_end(a, 3, 4, 8, 35)
    a("s_endpgm")
    a.label("K4_A")
    ACC = 16; BF = 80; CSA = 120; STA = 136; TA = 152; ZA = 156
    a("s_waitcnt lgkmcnt(0)")
    srd(a, 8, 4, WS_SIZE)
    def reads(ks):
        j, s = ks // 4, ks % 4; b = BF + 20 * (ks % 2)
        return [hread(b, j, s)] + [wread(b + 4 + 4 * ft, j, 16384 + ft * 4096 + s * 1024) for ft in range(4)]
    def mfmas(ks):
        b = BF + 20 * (ks % 2)
        return [MF32(vr(ACC + 16 * ft, 16), vr(b + 4 + 4 * ft, 4), vr(b, 4), "0" if ks == 0 else None) for ft in range(4)]
    a("s_barrier")
    stamp(a, 1)
    for r in reads(0): a(r)
    SL = stat_loads(STA, CSA, 0, 4)
    for ks in range(32):
        j, s = ks // 4, ks % 4
        M = mfmas(ks); R = reads(ks + 1) if ks < 31 else []
        a("s_waitcnt lgkmcnt(0)")
        a(M[0])
        if s == 3:
            a("s_barrier")
        for r in R[:3]: a(r)
        a(M[1])
        for r in R[3:]: a(r)
        a(M[2])
        if K4_SL <= ks < K4_SL + 4:
            a(SL.pop(0))
        a(M[3])
        if K4_SL <= ks < K4_SL + 4:
            a(SL.pop(0))
    stamp(a, 2)
    a("s_barrier")
    a("s_waitcnt vmcnt(4)")
    for x in stats(STA, TA): a(x)
    a("s_waitcnt vmcnt(0)")
    for ft in range(4):
        a(MF32(vr(ACC + 16 * ft, 16), vr(CSA + 4 * ft, 4), vr(TA, 4)))
    stamp(a, 3)
    a("s_nop 8")
    for ft in range(4):
        for x in epi(ACC + 16 * ft, ZA, ft * 1024): a(x)
    stamp_end(a, 3, 4, 8, 35)
    a.label("K4_END")
    a("s_endpgm")
    return n, a, kd(n, 248, 248), (256, 512, 5 * SLOT)

def main(out):
    ks = [k1(), k2(), k35(3), k4(), k35(5)]
    hdr = open("cdna_kernels/" + NAME + ".s.ref").read().split("\n")
    hdr = [l for l in hdr if l.startswith(";") and "@launch" not in l and "Override" not in l and "grid=ceil" not in l]
    txt = "\n".join(hdr) + "\n"
    for n, a, d, (g, b, lds) in ks:
        txt += f"; @launch kernel={n} grid=({g},1,1) block=({b},1,1) lds={lds}\n"
    txt += '.amdgcn_target "amdgcn-amd-amdhsa--gfx950"\n.text\n'
    bad = 0
    for ki, (n, a, d, _) in enumerate(ks):
        fl = ST_FLAGS[ki]
        if fl:
            a.lines = [l + " " + fl if ("buffer_store_dwordx" in l and "sc1" not in l) else l for l in a.lines]
        bad += check_hazards(a.lines, n)
        txt += a.text()
    txt += "CODE_END:\n"
    txt += '.section .rodata,"a"\n'
    for n, a, d, _ in ks:
        txt += ".p2align 6\n" + d
    open(out, "w").write(txt)
    print("hazards:", bad)

if __name__ == "__main__":
    if "stamp" in sys.argv: STAMP = True
    for arg in sys.argv[2:]:
        if "=" in arg:
            k_, v_ = arg.split("=", 1)
            globals()[k_] = eval(v_)
    main(sys.argv[1] if len(sys.argv) > 1 else "cdna_kernels/" + NAME + ".s")
```

```python
import sys, math, struct
from asmlib import *

NAME = "sequential_preLN__mha_block__geglu_ffn__prompt"

QF, KF, VF, OF, HF = 0x000000, 0x200000, 0x400000, 0x600000, 0x800000
ST  = 0xA00000
CSF = 0xA80000
WOF = 0xB00000
WGF = 0xC00000
WDF = 0x1000000
GF  = 0x1200000
WS_SIZE = 0x10000000
FL2 = 0xB00000
FL3 = 0xB02000

def f32(x):
    return "0x%08x" % struct.unpack("<I", struct.pack("<f", x))[0]

LOG2E = 1.4426950408889634
EPS = 1e-5

def srd(a, s, base, size):
    a(f"s_mov_b32 s{s}, s{base}")
    a(f"s_mov_b32 s{s+1}, s{base+1}")
    a(f"s_mov_b32 s{s+2}, {hex(size)}")
    a(f"s_mov_b32 s{s+3}, 0x00020000")

def kernel_head(a, name):
    a.raw(f".globl {name}")
    a.raw(".p2align 8")
    a.raw(f".type {name},@function")
    a.raw(f"{name}:")

def kd(name, nvgpr, accum, nsgpr=100):
    return f""".amdhsa_kernel {name}
  .amdhsa_next_free_vgpr {nvgpr}
  .amdhsa_next_free_sgpr {nsgpr}
  .amdhsa_accum_offset {accum}
  .amdhsa_group_segment_fixed_size 0
  .amdhsa_kernarg_size 80
  .amdhsa_user_sgpr_count 2
  .amdhsa_user_sgpr_kernarg_segment_ptr 1
  .amdhsa_system_sgpr_workgroup_id_x 1
.end_amdhsa_kernel
"""

STAMP = False
LD_SC = 'sc1'
GSTAMP = 0
G_P2 = 8
GB3 = 12
GA3 = 0
POLL_SLEEP = 6
B_FILL = 4
K2_TCH = 1
G_SC = ''
CODE_TOUCH = 0
K1_ROT = 1
K1_TW = [-1, 0, 1]
K4_SL = 26
K2_S3 = 11
K2_WD = 0
K1_D = 1
K4_D = 2
K4_XB = 12
K4_TOUCH = 1
K2_S2 = 4
K1_TOUCH = 1
ST_FLAGS = ['', '', '', '', '']
K2_Y = 28
SIDE_SC = 'sc1'
K1_UP = 14
K4_UP = 22
DBGOFF = 0x2000000
def stamp(a, i):
    if not STAMP: return
    a(f"s_memrealtime s[{64 + 4 * i}:{65 + 4 * i}]")
    a(f"s_memtime s[{66 + 4 * i}:{67 + 4 * i}]")
    if i != 0:
        a("s_waitcnt lgkmcnt(0)")
def stamp_end(a, kidx, n, srdreg, wavereg=22):
    if not STAMP: return
    a("s_waitcnt vmcnt(0)")
    stamp(a, n)
    a("s_lshl_b32 s60, s2, 3")
    a(f"s_add_u32 s60, s60, s{wavereg}")
    a("s_lshl_b32 s60, s60, 6")
    a(f"s_add_u32 s60, s60, {DBGOFF + kidx * 0x40000}")
    a("v_mov_b32 v0, 0")
    for j in range(2 * n + 2):
        a(f"v_mov_b32 v1, s{64 + 2 * j}")
        a(f"buffer_store_dword v1, v0, s[{srdreg}:{srdreg+3}], s60 offen offset:{4 * j}")

def MF32(d, A, B, C=None):
    C = d if C is None else C
    return f"v_mfma_f32_32x32x16_bf16 {d}, {A}, {B}, {C}"

def halfsum(a, v, t):
    a(f"v_mov_b32 v{t}, v{v}")
    a("s_nop 1")
    a(f"v_permlane32_swap_b32 v{v}, v{t}")
    a(f"v_add_f32 v{v}, v{v}, v{t}")


def k1():
    a = Asm(); n = "k1_qkv_kernel"
    kernel_head(a, n)
    SLOT = 28672; SCR = 5 * SLOT; SCR2 = SCR + 1536; SCR3 = SCR2 + 512
    D = K1_D
    a("s_cmp_ge_u32 s2, 256")
    a("s_cbranch_scc1 K1_END")
    stamp(a, 0)
    a("s_load_dwordx4 s[4:7], s[0:1], 0")
    a("s_load_dwordx2 s[20:21], s[0:1], 72")
    a("v_lshrrev_b32 v1, 6, v0")
    a("v_and_b32 v0, 63, v0")
    a("v_readfirstlane_b32 s35, v1")
    a("s_and_b32 s23, s2, 3")
    a("s_lshl_b32 s23, s23, 2")
    a("s_bfe_u32 s29, s2, 0x20003")
    a("s_add_u32 s23, s23, s29")
    a("s_bfe_u32 s24, s2, 0x10002")
    a("s_lshl_b32 s24, s24, 3")
    a("s_lshr_b32 s29, s2, 5")
    a("s_add_u32 s24, s24, s29")
    a("s_and_b32 s22, s35, 3")
    a("s_lshl_b32 s27, s22, 12")
    a("s_lshl_b32 s40, s2, 1")
    a("s_and_b32 s29, s2, 4")
    a("s_add_u32 s40, s40, s29")
    if not K1_ROT: a("s_mov_b32 s40, 0")
    a("s_cmp_lt_u32 s35, 4")
    a("s_cbranch_scc1 K1_RDADDR")
    a("s_lshl_b32 s25, s23, 17")
    a("s_lshl_b32 s29, s22, 15")
    a("s_add_u32 s25, s25, s29")
    a("s_mul_i32 s26, s22, 49152")
    a("s_lshl_b32 s29, s24, 6")
    a("s_add_u32 s26, s26, s29")
    a("s_lshl_b32 s28, s22, 10")
    a("s_add_u32 s28, s28, 16384")
    a("s_mov_b32 s30, 0x3f803f80")
    a("v_lshrrev_b32 v5, 3, v0")
    a("v_lshlrev_b32 v2, 10, v5")
    a("v_and_b32 v6, 7, v0")
    a("v_lshrrev_b32 v7, 4, v0")
    a("v_xor_b32 v6, v6, v7")
    a("v_lshl_add_u32 v2, v6, 4, v2")
    a("v_xor_b32 v3, 64, v2")
    a("v_add_u32 v3, 8192, v3")
    a("v_lshrrev_b32 v5, 2, v0")
    a("v_mul_u32_u24 v4, 3072, v5")
    a("v_and_b32 v6, 3, v0")
    a("v_lshl_add_u32 v4, v6, 4, v4")
    a("s_waitcnt lgkmcnt(0)")
    srd(a, 8, 4, 2048 * 512 * 2)
    srd(a, 12, 6, 512 * 1536 * 2)
    def dma(c):
        slot = (c % 5) * SLOT
        a(f"s_add_u32 s41, s40, {c}")
        a("s_and_b32 s41, s41, 7")
        a("s_lshl_b32 s42, s41, 7")
        a("s_add_u32 s42, s42, s25")
        a(f"s_mul_i32 s41, s41, {64 * 3072}")
        a("s_add_u32 s41, s41, s26")
        for p in range(3):
            a(f"s_add_u32 m0, s28, {slot + p * 4096}")
            a(f"s_add_u32 s29, s41, {p * 1024}")
            a(f"buffer_load_dwordx4 v4, s[12:15], s29 offen lds")
        for i in range(4):
            a(f"s_add_u32 m0, s27, {slot + i * 1024}")
            a(f"s_add_u32 s29, s42, {(i // 2) * 16384}")
            a(f"buffer_load_dwordx4 v{2 + (i % 2)}, s[8:11], s29 offen lds")
    for c in range(D + 1):
        dma(c)
    a.label("K1_RDADDR")
    a("v_and_b32 v5, 31, v0")
    a("v_lshrrev_b32 v6, 5, v0")
    a("v_bfe_u32 v7, v0, 1, 3")
    a("v_xor_b32 v7, v7, v6")
    a("v_lshlrev_b32 v5, 7, v5")
    a("v_add_u32 v5, s27, v5")
    for s in range(4):
        a(f"v_xor_b32 v1, {2 * s}, v7")
        a(f"v_lshl_add_u32 v{8 + s}, v1, 4, v5")
        a(f"v_add_u32 v{12 + s}, {2 * SLOT}, v{8 + s}")
        a(f"v_add_u32 v{16 + s}, {4 * SLOT}, v{8 + s}")
    a("v_bfe_u32 v1, v0, 2, 2")
    a("v_lshl_add_u32 v1, v6, 3, v1")
    a("v_lshlrev_b32 v20, 6, v1")
    a("v_bfe_u32 v1, v0, 4, 1")
    a("v_lshl_add_u32 v20, v1, 5, v20")
    a("v_and_b32 v1, 3, v0")
    a("v_lshl_add_u32 v20, v1, 3, v20")
    a("s_cmp_lt_u32 s35, 4")
    a("s_cbranch_scc1 K1_MM")
    a("s_lshl_b32 s29, s22, 10")
    a("v_add_u32 v20, s29, v20")
    a(f"v_add_u32 v21, {2 * SLOT}, v20")
    a(f"v_add_u32 v22, {4 * SLOT}, v20")
    for i in range(28, 31):
        a(f"v_mov_b32 v{i}, 0")
    WB = 48
    for c in range(8):
        slot = c % 5; st = slot // 2; off = (slot % 2) * SLOT
        a(f"s_waitcnt vmcnt({7 * (min(c + D, 7) - c)})")
        a("s_barrier")
        for p in range(3):
            for u in range(2):
                a(f"ds_read_b64_tr_b16 {vr(WB + 4 * p + 2 * u, 2)}, v{20 + st} offset:{off + 16384 + p * 4096 + u * 256}")
        if c + D + 1 < 8:
            dma(c + D + 1)
        a("s_waitcnt lgkmcnt(0)")
        for i in range(4):
            for p in range(3):
                a(f"v_dot2c_f32_bf16 v{28 + p}, s30, v{WB + 4 * p + i}")
    a("v_and_b32 v5, 31, v0")
    a("v_lshlrev_b32 v6, 4, v5")
    a("s_lshl_b32 s29, s22, 2")
    a(f"s_add_u32 s29, s29, {SCR}")
    a("v_add_u32 v7, s29, v6")
    for p in range(3):
        halfsum(a, 28 + p, 1)
        a(f"ds_write_b32 v7, v{28 + p} offset:{p * 512}")
    a("s_waitcnt lgkmcnt(0)")
    a("s_barrier")
    a("s_endpgm")
    a.label("K1_MM")
    if CODE_TOUCH:
        a("s_getpc_b64 s[44:45]")
        a.label("K1_PC")
        a("s_sub_u32 s44, s44, K1_PC-k1_qkv_kernel")
        a("s_subb_u32 s45, s45, 0")
        a("s_lshl_b32 s46, s22, 13")
        a("v_lshlrev_b32 v23, 7, v0")
        a("v_add_u32 v23, s46, v23")
        for i in range(CODE_TOUCH):
            a("v_min_u32 v24, CODE_END-k1_qkv_kernel-4, v23")
            a("global_load_dword v31, v24, s[44:45]")
            a("v_add_u32 v23, 32768, v23")
    a(f"v_add_u32 v21, {2 * SLOT}, v20")
    a(f"v_add_u32 v22, {4 * SLOT}, v20")
    a("s_mov_b32 s30, 0x3f803f80")
    for i in range(24, 28):
        a(f"v_mov_b32 v{i}, 0")
    a("v_and_b32 v5, 31, v0")
    a("v_lshlrev_b32 v6, 4, v5")
    a(f"v_add_u32 v6, {SCR}, v6")
    a("s_lshl_b32 s29, s22, 7")
    a(f"s_add_u32 s29, s29, {SCR2}")
    a("v_lshlrev_b32 v7, 2, v5")
    a("v_add_u32 v7, s29, v7")
    a("v_lshrrev_b32 v1, 5, v0")
    a("v_lshlrev_b32 v1, 4, v1")
    a("v_add_u32 v1, s29, v1")
    a("s_lshl_b32 s29, s23, 2")
    a("s_add_u32 s29, s29, s22")
    a("s_lshl_b32 s29, s29, 10")
    a("s_lshl_b32 s31, s24, 17")
    a("s_add_u32 s29, s29, s31")
    a("s_add_u32 s31, s29, 65536")
    a(f"s_add_u32 s32, s29, {KF}")
    a(f"s_add_u32 s33, s29, {KF + 65536}")
    a(f"s_add_u32 s34, s29, {VF}")
    a("v_lshlrev_b32 v2, 4, v0")
    a("v_bfe_u32 v3, v0, 4, 1")
    a("v_lshlrev_b32 v3, 16, v3")
    a("v_lshrrev_b32 v4, 5, v0")
    a("v_lshl_add_u32 v3, v4, 8, v3")
    a("v_and_b32 v4, 15, v0")
    a("v_lshl_add_u32 v3, v4, 4, v3")
    a("s_waitcnt lgkmcnt(0)")
    srd(a, 16, 20, WS_SIZE)
    a("s_cmp_ge_u32 s2, 3")
    a("s_cbranch_scc1 K1_NZ")
    a("s_lshl_b32 s36, s2, 2")
    a("s_add_u32 s36, s36, s22")
    a("s_lshl_b32 s36, s36, 10")
    a(f"s_add_u32 s36, s36, {FL2}")
    a("buffer_store_dwordx4 v[24:27], v2, s[16:19], s36 offen")
    a.label("K1_NZ")
    TQ = {}
    if K1_TOUCH:
        srd(a, 8, 4, 2048 * 512 * 2)
        a("s_lshr_b32 s37, s2, 3")
        a("v_and_b32 v28, 3, v0")
        a("s_mov_b32 s39, 256")
        a("s_and_b32 s36, s2, 3")
        a("s_lshl_b32 s36, s36, 19")
        a("s_lshl_b32 s38, s37, 14")
        a("s_add_u32 s36, s36, s38")
        a("v_bfe_u32 v23, v0, 1, 4")
        a("v_lshlrev_b32 v23, 10, v23")
        a("v_and_b32 v29, 1, v0")
        a("v_lshl_add_u32 v23, v29, 7, v23")
        a("s_cmp_lg_u32 s22, 0")
        a("s_cbranch_scc1 K1_TD")
        srd(a, 8, 6, 512 * 1536 * 2)
        a(f"s_mov_b32 s39, {128 * 3072}")
        a("s_mul_i32 s36, s37, 12288")
        a("s_bfe_u32 s38, s2, 0x10002")
        a("s_lshl_b32 s38, s38, 9")
        a("s_add_u32 s36, s36, s38")
        a("v_lshrrev_b32 v23, 4, v0")
        a("v_mul_u32_u24 v23, 3072, v23")
        a("v_bfe_u32 v30, v0, 2, 2")
        a("v_min_u32 v30, 2, v30")
        a("v_lshl_add_u32 v23, v30, 10, v23")
        a("v_lshl_add_u32 v23, v28, 7, v23")
        a.label("K1_TD")
        def touch(n_):
            return ["s_cmp_ge_u32 s22, 2", f"s_cbranch_scc1 K1_TS{n_}",
                    "s_lshr_b32 s38, s40, 1", f"s_add_u32 s38, s38, {n_ + 1}", "s_and_b32 s38, s38, 3",
                    "s_mul_i32 s38, s38, s39", "s_add_u32 s38, s38, s36",
                    "buffer_load_dword v31, v23, s[8:11], s38 offen", f"K1_TS{n_}:"]
        for n_, when in enumerate(K1_TW):
            if when < 0:
                for x in touch(n_): a(x)
            else:
                TQ.setdefault(when, []).extend(touch(n_))
    ACC = 32
    def xf(ks): return 80 + (ks % 8) * 4
    def wf(ks, p): return 112 + (ks % 3) * 12 + p * 4
    def reads(ks):
        c, s = ks // 4, ks % 4
        slot = c % 5; st = slot // 2; off = (slot % 2) * SLOT
        out = [f"ds_read_b128 {vr(xf(ks), 4)}, v{8 + 4 * st + s} offset:{off}"]
        for p in range(3):
            for u in range(2):
                out.append(f"ds_read_b64_tr_b16 {vr(wf(ks, p) + 2 * u, 2)}, v{20 + st} offset:{off + 16384 + p * 4096 + s * 1024 + u * 256}")
        return out
    def mfmas(ks):
        X = vr(xf(ks), 4); out = []
        for p in range(3):
            D_ = vr(ACC + 16 * p, 16); W = vr(wf(ks, p), 4)
            A, B = (W, X) if p < 2 else (X, W)
            out.append(MF32(D_, A, B, "0" if ks == 0 else None))
        return out
    def dots(k0, k1_):
        for ks in range(k0, k1_):
            for i in range(4):
                a(f"v_dot2c_f32_bf16 v{24 + i % 2}, s30, v{xf(ks) + i}")
                a(f"v_dot2c_f32_bf16 v{26 + i % 2}, v{xf(ks) + i}, v{xf(ks) + i}")
    a("s_barrier")
    stamp(a, 1)
    for r in reads(0) + reads(1): a(r)
    for x in TQ.get(0, []): a(x)
    for ks in range(32):
        c, s = ks // 4, ks % 4
        M = mfmas(ks); R = reads(ks + 2) if ks + 2 < 32 else []
        if s == 2:
            dots(max(ks - 3, 0), ks)
            a("s_waitcnt lgkmcnt(0)")
            dots(ks, ks + 1)
            if c == 7: dots(ks + 1, ks + 2)
            a(M[0])
            if c < 7:
                a("s_barrier")
                if c < 5: stamp(a, 2 + c)
                for x in TQ.get(c + 1, []): a(x)
        else:
            a(f"s_waitcnt lgkmcnt({7 if ks < 31 else 0})")
            a(M[0])
        E = []
        if ks >= 30:
            if ks == 30:
                E = ["v_add_f32 v24, v24, v25", "v_add_f32 v26, v26, v27", "v_mov_b32 v25, v24", "v_mov_b32 v27, v26", "s_nop 0",
                     "v_permlane32_swap_b32 v24, v25", "v_permlane32_swap_b32 v26, v27", "v_add_f32 v24, v24, v25", "v_add_f32 v26, v26, v27",
                     f"v_mul_f32 v24, {f32(1/512)}, v24", f"v_mul_f32 v26, {f32(1/512)}, v26", "v_fma_f32 v26, -v24, v24, v26",
                     "v_max_f32 v26, 0, v26", f"v_add_f32 v26, {f32(EPS)}, v26", "v_rsq_f32 v26, v26"]
                E = ["s_nop 1"] + E
            else:
                E = ["ds_write_b32 v7, v26", "v_mul_f32 v24, -0.5, v24", "v_cvt_pk_bf16_f32 v25, v24, v24", "v_lshlrev_b32 v25, 16, v25",
                     "v_sub_f32 v27, v24, v25", "v_cvt_pk_bf16_f32 v148, v25, v27", "v_mov_b32 v150, 0", "v_mov_b32 v151, 0",
                     "v_mov_b32 v149, v148", f"v_mul_f32 v28, {f32(0.25 * LOG2E)}, v26", "v_mov_b32 v27, v26", "v_mov_b32 v29, v28"]
            R = E
            n3 = (len(R) + 2) // 3
        else:
            n3 = 3
        for r in R[:n3]: a(r)
        a(M[1])
        for r in R[n3:2 * n3]: a(r)
        a(M[2])
        for r in R[2 * n3:]: a(r)
    a("s_waitcnt lgkmcnt(0)")
    a("s_barrier")
    for p in range(3):
        a(f"ds_read_b128 {vr(80 + 4 * p, 4)}, v6 offset:{p * 512}")
    for g in range(4):
        a(f"ds_read_b128 {vr(96 + 4 * g, 4)}, v1 offset:{g * 32}")
    CF = 152
    for p in range(3):
        a(f"v_mov_b32 v{CF + 4 * p + 2}, 0")
        a(f"v_mov_b32 v{CF + 4 * p + 3}, 0")
    for p in range(3):
        b = 80 + 4 * p; f = CF + 4 * p
        a(f"s_waitcnt lgkmcnt({6 - p})")
        a(f"v_add_f32 v{b}, v{b}, v{b+1}")
        a(f"v_add_f32 v{b+2}, v{b+2}, v{b+3}")
        a(f"v_add_f32 v{b}, v{b}, v{b+2}")
        a(f"v_cvt_pk_bf16_f32 v{f}, v{b}, v{b}")
        a(f"v_lshlrev_b32 v{b+1}, 16, v{f}")
        a(f"v_sub_f32 v{b+1}, v{b}, v{b+1}")
        a(f"v_cvt_pk_bf16_f32 v{f+1}, v{b+1}, v{b+1}")
        if p >= 1:
            q = p - 1
            a(MF32(vr(ACC + 16 * q, 16), vr(CF + 4 * q, 4), vr(148, 4)))
    a("s_waitcnt lgkmcnt(0)")
    a("s_nop 0")
    a(MF32(vr(ACC + 32, 16), vr(148, 4), vr(CF + 8, 4)))
    a("s_nop 1")
    for p in range(3):
        b = ACC + 16 * p; o = 112 + 8 * p
        for i in range(0, 16, 2):
            sc = "v[28:29]" if p == 0 else "v[26:27]" if p == 1 else vr(96 + i, 2)
            a(f"v_pk_mul_f32 {vr(b + i, 2)}, {sc}, {vr(b + i, 2)}")
        for i in range(8):
            a(f"v_cvt_pk_bf16_f32 v{o+i}, v{b+2*i}, v{b+2*i+1}")
        if p < 2:
            a(f"buffer_store_dwordx4 {vr(o, 4)}, v2, s[16:19], s{29 if p == 0 else 32} offen")
            a(f"buffer_store_dwordx4 {vr(o + 4, 4)}, v2, s[16:19], s{31 if p == 0 else 33} offen")
        else:
            a(f"buffer_store_dwordx4 {vr(o, 4)}, v3, s[16:19], s34 offen")
            a(f"buffer_store_dwordx4 {vr(o + 4, 4)}, v3, s[16:19], s34 offen offset:512")
    stamp_end(a, 0, 7, 16)
    a.label("K1_END")
    a("s_endpgm")
    return n, a, kd(n, 168, 168), (256, 512, SCR3 + 512)


def k234():
    a = Asm(); n = "k2_mid_kernel"
    kernel_head(a, n)
    Q = 4; NEGM = 16; S = [32, 48]; O = 64; P = 80; KR = 88; VR = 100; W = 128
    SCR = 131072
    K1C = 2 * math.sqrt(2 / math.pi) * LOG2E
    vm = []
    def V(ins, tag=None):
        a(ins); vm.append(tag)
    def vmwait(tag, extra=""):
        idx = max(i for i, t in enumerate(vm) if t == tag)
        a(f"s_waitcnt vmcnt({len(vm) - 1 - idx}){extra}")
    a("s_cmp_ge_u32 s2, 256")
    a("s_cbranch_scc1 K2_END")
    stamp(a, 0)
    a("s_load_dwordx2 s[4:5], s[0:1], 72")
    a("s_load_dwordx4 s[40:43], s[0:1], 32")
    a("s_load_dwordx2 s[44:45], s[0:1], 16")
    a("s_load_dwordx2 s[46:47], s[0:1], 0")
    a("s_load_dwordx2 s[48:49], s[0:1], 48")
    a("v_lshrrev_b32 v1, 6, v0")
    a("v_and_b32 v0, 63, v0")
    a("v_readfirstlane_b32 s22, v1")
    a("s_and_b32 s23, s2, 7")
    a("s_lshl_b32 s23, s23, 2")
    a("s_bfe_u32 s29, s2, 0x20003")
    a("s_add_u32 s23, s23, s29")
    a("s_lshr_b32 s24, s2, 5")
    a("s_lshl_b32 s25, s23, 16")
    a("v_lshlrev_b32 v2, 4, v0")
    a("s_lshl_b32 s26, s22, 10")
    a("s_add_u32 s27, s25, s26")
    a("s_lshl_b32 s28, s24, 13")
    a("s_add_u32 s28, s28, s27")
    a(f"s_add_u32 s27, s27, {KF}")
    a("s_mov_b32 m0, s26")
    a(f"s_add_u32 s30, s27, {VF - KF}")
    a("s_waitcnt lgkmcnt(0)")
    srd(a, 8, 4, WS_SIZE)
    V("buffer_load_dwordx4 v2, s[8:11], s27 offen lds", "c0")
    V(f"buffer_load_dwordx4 {vr(Q, 4)}, v2, s[8:11], s28 offen", "c0")
    a("s_add_u32 m0, s26, 65536")
    a("s_nop 0")
    V("buffer_load_dwordx4 v2, s[8:11], s30 offen lds", "c0")
    def kvdma(c, isv):
        a(f"s_add_u32 m0, s26, {c * 8192 + isv * 65536}")
        a(f"s_add_u32 s29, s27, {c * 8192 + isv * (VF - KF)}")
        V("buffer_load_dwordx4 v2, s[8:11], s29 offen lds", f"c{c}")
    kvdma(1, 0); kvdma(1, 1)
    a("s_and_b32 s36, s2, 3")
    a("s_lshl_b32 s36, s36, 2")
    a("s_bfe_u32 s29, s2, 0x20003")
    a("s_add_u32 s36, s36, s29")
    a("s_bfe_u32 s37, s2, 0x10002")
    a("s_lshl_b32 s37, s37, 3")
    a("s_add_u32 s37, s37, s24")
    a("s_min_u32 s38, s22, 6")
    a("s_mul_i32 s39, s37, 7")
    a("s_add_u32 s39, s39, s38")
    a("s_lshl_b32 s54, s39, 5")
    srd(a, 12, 40, 512 * 1792 * 2)
    srd(a, 16, 42, 512 * 1792 * 2)
    a("s_lshl_b32 s55, s22, 12")
    a(f"s_add_u32 s55, s55, {SCR}")
    a("v_lshrrev_b32 v8, 1, v0")
    a("v_mul_u32_u24 v8, 3584, v8")
    a("v_and_b32 v1, 1, v0")
    a("v_lshl_add_u32 v8, v1, 4, v8")
    a("v_lshrrev_b32 v11, 5, v0")
    a("v_bfe_u32 v1, v0, 2, 2")
    a("v_lshl_add_u32 v10, v11, 2, v1")
    a("v_lshlrev_b32 v9, 5, v10")
    a("v_and_b32 v1, 3, v0")
    a("v_lshl_add_u32 v9, v1, 3, v9")
    a("v_bfe_u32 v1, v0, 4, 1")
    a("v_lshl_add_u32 v9, v1, 10, v9")
    a("v_add_u32 v9, s55, v9")
    a("v_and_b32 v12, 15, v0")
    a("v_lshl_add_u32 v12, v11, 4, v12")
    a("v_lshlrev_b32 v12, 4, v12")
    a("v_add_u32 v3, 65536, v12")
    a("s_mov_b32 s34, 0x0000ffff")
    a("s_mov_b32 s35, 0x0000ffff")
    a(f"s_mov_b32 s50, {f32(2.0**60)}")
    for i in range(24):
        a(f"v_mov_b32 v{VR + i}, 0x3f803f80")
    for i in range(16):
        a(f"v_mov_b32 v{O + i}, 0")
    for i in range(4, 8):
        a(f"v_mov_b32 v{P + i}, 0")
    def kread(t): return f"ds_read_b128 {vr(KR + 4 * (t % 3), 4)}, v2 offset:{t * 1024}"
    def vread(t):
        return ["s_mov_b64 exec, s[34:35]"] + \
               [f"ds_read_b128 {vr(VR + 8 * (t % 3) + 4 * j, 4)}, v3 offset:{t * 1024 + j * 512}" for j in range(2)] + \
               ["s_mov_b64 exec, -1"]
    vmwait("c0")
    a("s_barrier")
    a(kread(0)); a(kread(1))
    for x in vread(0): a(x)
    a(kread(2))
    for x in vread(1): a(x)
    a("s_waitcnt lgkmcnt(6)")
    s0 = S[0]
    a(MF32(vr(s0, 16), vr(KR, 4), vr(Q, 4), "0"))
    a("s_nop 11")
    for i in range(5):
        a(f"v_max3_f32 v{NEGM + i}, v{s0+3*i}, v{s0+3*i+1}, v{s0+3*i+2}")
    a(f"v_max3_f32 v14, v{NEGM}, v{NEGM+1}, v{s0+15}")
    a(f"v_max3_f32 v15, v{NEGM+2}, v{NEGM+3}, v{NEGM+4}")
    a("v_max_f32 v14, v14, v15")
    def set_negm():
        a("v_mov_b32 v15, v14")
        a("s_nop 1")
        a("v_permlane32_swap_b32 v14, v15")
        a("v_max_f32 v14, v14, v15")
        for i in range(16):
            a(f"v_sub_f32 v{NEGM + i}, 0, v14")
        a("s_nop 1")
    set_negm()
    a(MF32(vr(S[0], 16), vr(KR, 4), vr(Q, 4), vr(NEGM, 16)))
    a("s_nop 8")
    T0 = 12
    cnt = [0]
    def b(ins):
        if K2_Y:
            if cnt[0] == 0: a("s_setprio 0")
            if cnt[0] == K2_Y: a("s_setprio 1")
        cnt[0] += 1
        a(ins)
    for t in range(64):
        if t % 4 == 0: cnt[0] = 0
        Sc = S[t % 2]; Sn = S[(t + 1) % 2]
        E = lambda i: b(f"v_exp_f32 v{Sc+i}, v{Sc+i}")
        C = lambda i: b(f"v_cvt_pk_bf16_f32 v{P+i}, v{Sc+2*i}, v{Sc+2*i+1}")
        if t == 5: vmwait("c1"); a("s_barrier")
        if t == 13: vmwait("c5"); a("s_barrier")
        if t == 24: vmwait("c7"); a("s_barrier")
        nrd = lambda u: (1 if u + 3 < 64 else 0) + (2 if u + 2 < 64 else 0)
        b(f"s_waitcnt lgkmcnt({nrd(t - 1) if t > 0 else 3})")
        if t < 63:
            b(MF32(vr(Sn, 16), vr(KR + 4 * ((t + 1) % 3), 4), vr(Q, 4), vr(NEGM, 16)))
        for i in range(5): E(i)
        b(MF32(vr(O, 16), vr(VR + 8 * ((t - 1) % 3) + 4, 4), vr(P + 4, 4)))
        u, ph = divmod(t - T0 - 5, 3)
        if t >= T0 + 5 and ph == 0 and u < 16:
            vmwait(f"w{u}")
            for s in range(2):
                for e in range(2):
                    a(f"ds_read_b64_tr_b16 {vr(W + 8 * u + 4 * s + 2 * e, 2)}, v9 offset:{(u % 2) * 2048 + s * 512 + e * 256}")
        if t + 3 < 64: b(kread(t + 3))
        if t + 2 < 64:
            for x in vread(t + 2): b(x)
        for i in range(5, 8): E(i)
        for i in range(4): C(i)
        E(8); E(9)
        b(MF32(vr(O, 16), vr(VR + 8 * (t % 3), 4), vr(P, 4)))
        if t < 12: kvdma(2 + t // 2, t % 2)
        u, ph = divmod(t - T0, 3)
        if t >= T0 and ph == 0 and u < 16:
            a(f"s_add_u32 m0, s55, {(u % 2) * 2048}")
            a(f"s_add_u32 s29, s54, {u * 32 * 3584}")
            V("buffer_load_dwordx4 v8, s[12:15], s29 offen lds", f"w{u}")
            a(f"s_add_u32 m0, s55, {(u % 2) * 2048 + 1024}")
            a("s_nop 0")
            V("buffer_load_dwordx4 v8, s[16:19], s29 offen lds", f"w{u}")
        if t == 59 and K2_TCH:
            a("s_lshr_b32 s29, s2, 3")
            a("s_lshl_b32 s29, s29, 14")
            a("s_lshl_b32 s31, s22, 11")
            a("s_add_u32 s29, s29, s31")
            srd(a, 56, 44, 512 * 512 * 2)
            a("v_and_b32 v12, 15, v0")
            a("v_lshlrev_b32 v12, 7, v12")
            V("buffer_load_dword v124, v12, s[56:59], s29 offen", "tch")
        for i in range(10, 16): E(i)
        for i in range(4, 8): C(i)
    a("s_setprio 0")
    a("s_lshl_b32 s29, s24, 3")
    a("s_add_u32 s29, s29, s22")
    a(MF32(vr(O, 16), vr(VR + 8 * (63 % 3) + 4, 4), vr(P + 4, 4)))
    a("s_lshl_b32 s31, s29, 7")
    a("s_lshl_b32 s30, s23, 2")
    a("s_add_u32 s31, s31, s30")
    a(f"s_add_u32 s31, s31, {FL2}")
    a("s_lshl_b32 s29, s29, 15")
    a("s_lshl_b32 s30, s23, 10")
    a("s_add_u32 s29, s29, s30")
    a(f"s_add_u32 s29, s29, {OF}")
    a("v_mov_b32 v12, 0")
    a("v_mov_b32 v13, 1")
    a("s_waitcnt lgkmcnt(0)")
    a("s_nop 0")
    a(f"v_cmp_gt_f32 vcc, s50, v{O + 8}")
    a("s_nop 1")
    a("s_cmp_eq_u64 vcc, -1")
    a("s_cbranch_scc0 K2_FALLBACK")
    a.label("K2_FIN")
    a(f"v_rcp_f32 v14, v{O + 8}")
    a("s_nop 0")
    for i in range(8):
        a(f"v_mul_f32 v{O+i}, v14, v{O+i}")
    for i in range(4):
        a(f"v_cvt_pk_bf16_f32 v{P+i}, v{O+2*i}, v{O+2*i+1}")
    a(f"buffer_store_dwordx4 {vr(P, 4)}, v2, s[8:11], s29 offen sc1")
    stamp(a, 1)
    srd(a, 12, 44, 512 * 512 * 2)
    srd(a, 16, 46, 2048 * 512 * 2)
    a("s_and_b32 s25, s22, 1")
    a("s_bfe_u32 s26, s22, 0x10001")
    a("s_lshr_b32 s27, s22, 2")
    a("s_lshl_b32 s28, s24, 1")
    a("s_add_u32 s28, s28, s25")
    a("s_lshl_b32 s30, s23, 1")
    a("s_add_u32 s30, s30, s26")
    a("v_lshrrev_b32 v8, 2, v0")
    a("v_lshlrev_b32 v8, 10, v8")
    a("v_and_b32 v1, 3, v0")
    a("v_lshl_add_u32 v8, v1, 4, v8")
    a("v_lshlrev_b32 v9, 6, v10")
    a("v_lshl_add_u32 v9, v1, 3, v9")
    a("v_bfe_u32 v1, v0, 4, 1")
    a("v_lshl_add_u32 v9, v1, 5, v9")
    a("s_lshl_b32 s32, s25, 15")
    a("s_lshl_b32 s33, s27, 14")
    a("s_add_u32 s32, s32, s33")
    a("v_add_u32 v9, s32, v9")
    a("v_and_b32 v3, 31, v0")
    a("v_lshlrev_b32 v3, 10, v3")
    a("v_lshl_add_u32 v3, v11, 4, v3")
    a("s_lshl_b32 s51, s30, 15")
    a("s_lshl_b32 s33, s28, 6")
    a("s_add_u32 s51, s51, s33")
    RES = 112
    a("s_waitcnt vmcnt(0)")
    a("s_mov_b64 exec, 1")
    a("buffer_store_dword v13, v12, s[8:11], s31 offen sc1")
    a("s_mov_b64 exec, -1")
    for j in range(2):
        a(f"buffer_load_dwordx4 {vr(RES + 4 * j, 4)}, v3, s[16:19], s51 offen offset:{j * 32}")
    a("s_barrier")
    a("s_lshl_b32 s33, s26, 13")
    a("s_add_u32 s52, s32, s33")
    a("s_lshl_b32 s53, s27, 1")
    a("s_add_u32 s53, s53, s26")
    a("s_lshl_b32 s53, s53, 17")
    a("s_lshl_b32 s33, s28, 6")
    a("s_add_u32 s53, s53, s33")
    for i in range(8):
        a(f"s_add_u32 m0, s52, {i * 1024}")
        a(f"s_add_u32 s29, s53, {i * 16384}")
        a("buffer_load_dwordx4 v8, s[12:15], s29 offen lds")
    def poll(lbl, sreg):
        a("v_lshlrev_b32 v14, 2, v0")
        a("s_mov_b32 s33, 0")
        a.label(lbl)
        if POLL_SLEEP: a(f"s_sleep {POLL_SLEEP}")
        a(f"buffer_load_dword v15, v14, s[8:11], s{sreg} offen sc1")
        a("s_add_u32 s33, s33, 1")
        a("s_waitcnt vmcnt(0)")
        a("v_cmp_eq_u32 vcc, 1, v15")
        a("s_cmp_gt_u32 s33, 0x40000")
        a(f"s_cbranch_scc1 {lbl}_X")
        a("s_cmp_eq_u64 vcc, -1")
        a(f"s_cbranch_scc0 {lbl}")
        a.label(f"{lbl}_X")
    a("s_cmp_eq_u32 s22, 7")
    a("s_cbranch_scc1 K2_POLL2")
    a("s_mov_b32 s29, 0x3f803f80")
    for i in range(4): a(f"v_mov_b32 v{124 + i}, 0")
    for i in range(128):
        a(f"v_dot2c_f32_bf16 v{124 + i % 4}, s29, v{W + i}")
    a("s_nop 2")
    a("v_add_f32 v124, v124, v125")
    a("v_add_f32 v126, v126, v127")
    a("v_add_f32 v126, v124, v126")
    a("v_cvt_pk_bf16_f32 v124, v126, v126")
    a("v_lshlrev_b32 v125, 16, v124")
    a("v_sub_f32 v125, v126, v125")
    a("v_cvt_pk_bf16_f32 v125, v125, v125")
    a("v_mov_b32 v126, 0")
    a("v_mov_b32 v127, 0")
    a("s_branch K2_B2")
    a.label("K2_POLL2")
    a("s_lshl_b32 s29, s23, 8")
    a(f"s_add_u32 s29, s29, {FL2}")
    poll("K2_P2", 29)
    a.label("K2_B2")
    a("s_waitcnt vmcnt(0)")
    a("s_barrier")
    stamp(a, 2)
    a("s_lshl_b32 s29, s25, 15")
    a("s_lshl_b32 s33, s26, 14")
    a("s_add_u32 s29, s29, s33")
    a("s_lshl_b32 s33, s27, 12")
    a("s_add_u32 s29, s29, s33")
    a("s_lshl_b32 s33, s23, 16")
    a("s_add_u32 s33, s33, s29")
    a(f"s_add_u32 s33, s33, {OF}")
    for stg in range(2):
        a(f"s_add_u32 m0, s29, {65536 + stg * 8192}")
        if stg: a("s_add_u32 s33, s33, 8192")
        else: a("s_nop 0")
        for i in range(4):
            a(f"buffer_load_dwordx4 v2, s[8:11], s33 offen offset:{i * 1024} {LD_SC} lds")
    A3 = 16; WO = 32; OB = 96
    for s in range(16):
        for e in range(2):
            a(f"ds_read_b64_tr_b16 {vr(WO + 4 * s + 2 * e, 2)}, v9 offset:{s * 1024 + e * 512}")
    a("s_lshl_b32 s29, s26, 15")
    a("s_lshl_b32 s33, s27, 14")
    a("s_add_u32 s29, s29, s33")
    a("s_add_u32 s29, s29, 65536")
    a("v_add_u32 v8, s29, v2")
    a("s_and_b32 s29, s22, 3")
    a("s_lshl_b32 s29, s29, 12")
    a(f"s_add_u32 s29, s29, {SCR}")
    a("v_add_u32 v9, s29, v2")
    for j in range(2):
        a(f"v_permlane32_swap_b32 v{RES + 4 * j}, v{RES + 4 * j + 2}")
        a(f"v_permlane32_swap_b32 v{RES + 4 * j + 1}, v{RES + 4 * j + 3}")
    for stg in range(2):
        a(f"s_waitcnt vmcnt({4 - 4 * stg}) lgkmcnt(0)")
        a("s_barrier")
        rd = lambda s: f"ds_read_b128 {vr(OB + 4 * (s % 4), 4)}, v8 offset:{s * 1024}"
        for s in range(8 * stg, 8 * stg + 3): a(rd(s))
        for s in range(8 * stg, 8 * stg + 8):
            left = 8 * stg + 7 - s
            if left >= 3: a(rd(s + 3))
            a(f"s_waitcnt lgkmcnt({min(left, 3)})")
            a(MF32(vr(A3, 16), vr(WO + 4 * s, 4), vr(OB + 4 * (s % 4), 4), "0" if s == 0 else None))
    stamp(a, 3)
    a("s_cmp_lt_u32 s22, 4")
    a("s_cbranch_scc1 K2_O_LO")
    a("s_nop 9")
    for q in range(4):
        a(f"ds_write_b128 v9, {vr(A3 + 4 * q, 4)} offset:{q * 1024}")
    a("s_waitcnt lgkmcnt(0)")
    a("s_barrier")
    a("s_cmp_eq_u32 s22, 7")
    a("s_cbranch_scc0 K2_B3")
    a("s_lshl_b32 s29, s36, 8")
    a(f"s_add_u32 s29, s29, {FL3}")
    poll("K2_P3", 29)
    a("s_branch K2_B3")
    a.label("K2_O_LO")
    a("s_mov_b32 s29, 0xffff0000")
    for i in range(8):
        a(f"v_lshlrev_b32 v{48 + 2 * i}, 16, v{RES + i}")
        a(f"v_and_b32 v{49 + 2 * i}, s29, v{RES + i}")
    for i in range(16):
        a(f"v_add_f32 v{A3 + i}, v{A3 + i}, v{48 + i}")
    a("s_lshl_b32 s52, s30, 15")
    a("s_lshl_b32 s33, s28, 11")
    a("s_add_u32 s52, s52, s33")
    a(f"s_add_u32 s52, s52, {HF}")
    a("s_lshl_b32 s53, s30, 12")
    a("s_lshl_b32 s33, s28, 8")
    a("s_add_u32 s53, s53, s33")
    a(f"s_add_u32 s53, s53, {ST}")
    a("s_lshl_b32 s31, s30, 6")
    a("s_lshl_b32 s33, s28, 2")
    a("s_add_u32 s31, s31, s33")
    a(f"s_add_u32 s31, s31, {FL3}")
    a("v_lshlrev_b32 v3, 3, v0")
    a("s_mov_b32 s29, 0x3f803f80")
    a("v_mov_b32 v14, 0")
    a("v_mov_b32 v15, 0")
    a("s_barrier")
    for q in range(4):
        a(f"ds_read_b128 {vr(32 + 4 * q, 4)}, v9 offset:{q * 1024}")
    o = 64
    for q in range(4):
        a(f"s_waitcnt lgkmcnt({3 - q})")
        for i in range(4 * q, 4 * q + 4):
            a(f"v_add_f32 v{A3 + i}, v{A3 + i}, v{32 + i}")
        for i in range(2 * q, 2 * q + 2):
            a(f"v_cvt_pk_bf16_f32 v{o + i}, v{A3 + 2 * i}, v{A3 + 2 * i + 1}")
        if q % 2:
            j = q // 2
            a(f"buffer_store_dwordx4 {vr(o + 4 * j, 4)}, v2, s[8:11], s52 offen offset:{j * 1024} sc1")
    for i in range(8):
        a(f"v_dot2c_f32_bf16 v14, s29, v{o + i}")
        a(f"v_dot2c_f32_bf16 v15, v{o + i}, v{o + i}")
    a("s_nop 2")
    a("v_mov_b32 v16, v14")
    a("v_mov_b32 v17, v15")
    a("s_nop 0")
    a("v_permlane32_swap_b32 v14, v16")
    a("v_permlane32_swap_b32 v15, v17")
    a("v_add_f32 v14, v14, v16")
    a("v_add_f32 v15, v15, v17")
    a("s_mov_b64 exec, 0xffffffff")
    a("buffer_store_dwordx2 v[14:15], v3, s[8:11], s53 offen sc1")
    a("s_waitcnt vmcnt(0)")
    a("s_mov_b64 exec, 1")
    a("buffer_store_dword v13, v12, s[8:11], s31 offen sc1")
    a("s_mov_b64 exec, -1")
    a.label("K2_B3")
    stamp(a, 4)
    a("v_add_u32 v3, 65536, v2")
    a("v_and_b32 v8, 31, v0")
    a("v_lshlrev_b32 v8, 4, v8")
    a(f"v_add_u32 v8, {SCR}, v8")
    a(f"s_mul_i32 s32, s36, {4 * 112 * 1024}")
    a("s_lshl_b32 s33, s39, 10")
    a("s_add_u32 s32, s32, s33")
    a(f"s_add_u32 s32, s32, {GF}")
    a("s_and_b32 s25, s22, 3")
    a("s_lshl_b32 s30, s36, 2")
    a("s_add_u32 s30, s30, s25")
    def hread(dst, tt, s):
        return f"ds_read_b128 {vr(dst, 4)}, v{2 + tt // 2} offset:{(tt % 2) * 32768 + s * 1024}"
    def epi(g, z, st, tt):
        u = g + 8; o = []
        ve, a0, a1 = f"v{st+1}", f"v{st+2}", f"v{st+3}"
        o += [f"v_mul_f32 v{z+i}, v{g+i}, v{g+i}" for i in range(8)]
        o += [f"v_fma_f32 v{z+i}, v{z+i}, {a1}, {a0}" for i in range(8)]
        o += [f"v_mul_f32 v{z+i}, v{z+i}, v{g+i}" for i in range(8)]
        for i in range(8):
            o += [f"v_exp_f32 v{z+i}, v{z+i}", f"v_mul_f32 v{g+i}, v{g+i}, v{u+i}"]
        o += [f"v_fma_f32 v{z+i}, v{z+i}, {ve}, {ve}" for i in range(8)]
        o += [f"v_rcp_f32 v{z+i}, v{z+i}" for i in range(8)]
        o += [f"s_add_u32 s29, s32, {tt * 112 * 1024}"]
        o += [f"v_mul_f32 v{g+i}, v{g+i}, v{z+i}" for i in range(8)]
        o += [f"v_cvt_pk_bf16_f32 v{u+i}, v{g+2*i}, v{g+2*i+1}" for i in range(4)]
        o += [f"buffer_store_dwordx4 {vr(u, 4)}, v2, s[8:11], s29 offen {G_SC}"]
        return o
    ACC = 16; HB = 32; ZB = 80; SB = 88; TB = 92; NR = 12; STR = [96, 100, 104, 108]
    a(f"v_mov_b32 v{TB + 2}, 0")
    a(f"v_mov_b32 v{TB + 3}, 0")
    def tile(tt, hooks, pre=None, last=False, late=False):
        a("s_setprio 1")
        rd = lambda ks: hread(HB + 4 * (ks % NR), tt, ks)
        if pre is None:
            for ks in range(NR - 1): a(rd(ks))
        for ks in range(32):
            if ks + NR - 1 < 32: a(rd(ks + NR - 1))
            if ks % 4 == 0:
                a(f"s_waitcnt lgkmcnt({min(ks + NR - 1, 31) - (ks + 3)})")
            a(MF32(vr(ACC, 16), vr(W + 4 * ks, 4), vr(HB + 4 * (ks % NR), 4), "0" if ks == 0 else None))
            if ks == G_P2: a("s_setprio 2")
            if not late:
                if ks == 22: a(f"ds_read_b128 {vr(SB, 4)}, v8 offset:{tt * 512}")
                if ks == 29:
                    a(f"v_mov_b32 v{TB}, v{SB}")
                    a(f"v_mov_b32 v{TB + 1}, v{SB}")
            for x in hooks.get(ks, []): a(x)
        if late:
            a(f"ds_read_b128 {vr(SB, 4)}, v8 offset:{tt * 512}")
            a("s_waitcnt lgkmcnt(0)")
            a(f"v_mov_b32 v{TB}, v{SB}")
            a(f"v_mov_b32 v{TB + 1}, v{SB}")
            a("s_nop 1")
        a(MF32(vr(ACC, 16), vr(124, 4), vr(TB, 4)))
        a("s_setprio 0")
        for x in hooks.get("post", []): a(x)
        if not last:
            for ks in range(NR - 1): a(hread(HB + 4 * ks, tt + 1, ks))
        else:
            a("s_nop 10")
        for x in epi(ACC, ZB, SB, tt): a(x)
    a("s_cmp_lt_u32 s22, 4")
    a("s_cbranch_scc1 K2_GA")
    a("s_lshl_b32 s28, s25, 13")
    a("s_lshl_b32 s26, s36, 17")
    a("s_add_u32 s26, s26, s28")
    a(f"s_add_u32 s26, s26, {HF}")
    a("s_barrier")
    stamp(a, 5)
    def hdma(tt):
        for g in range(2):
            a(f"s_add_u32 m0, s28, {tt * 32768 + g * 4096}")
            a(f"s_add_u32 s29, s26, {tt * 32768 + g * 4096}")
            for i in range(4):
                a(f"buffer_load_dwordx4 v2, s[8:11], s29 offen offset:{i * 1024} {LD_SC} lds")
    hdma(0); hdma(1)
    a("s_waitcnt vmcnt(8)")
    a("s_barrier")
    if GSTAMP: stamp(a, 3)
    hdma(2); hdma(3)
    a("s_waitcnt vmcnt(16)")
    a("s_barrier")
    if GSTAMP: stamp(a, 4)
    a("s_cmp_eq_u32 s22, 7")
    a("s_cbranch_scc1 K2_W7")
    tile(0, {GB3: ["s_waitcnt vmcnt(0)", "s_barrier"]})
    tile(1, {}, pre=1); tile(2, {}, pre=1)
    stamp(a, 6)
    tile(3, {}, pre=1, last=True)
    stamp_end(a, 1, 7, 8)
    a("s_endpgm")
    a.label("K2_W7")
    a("s_waitcnt vmcnt(0)")
    a("s_barrier")
    if K4_TOUCH:
        srd(a, 12, 48, 1792 * 512 * 2)
        a("s_lshr_b32 s29, s2, 3")
        a("s_mul_i32 s29, s29, 57344")
        a("v_lshlrev_b32 v13, 7, v0")
        for i in range(7):
            a("buffer_load_dword v14, v13, s[12:15], s29 offen")
            a("s_add_u32 s29, s29, 8192")
    a("s_endpgm")
    a.label("K2_GA")
    a("s_lshl_b32 s26, s30, 12")
    a(f"s_add_u32 s26, s26, {ST}")
    a("s_lshl_b32 s28, s25, 9")
    a("v_add_u32 v9, s28, v8")
    a("v_and_b32 v1, 31, v0")
    a("v_lshlrev_b32 v1, 3, v1")
    a("v_lshl_add_u32 v1, v11, 11, v1")
    a("s_barrier")
    stamp(a, 5)
    for q in range(8):
        a(f"buffer_load_dwordx2 {vr(STR[q // 2] + 2 * (q % 2), 2)}, v1, s[8:11], s26 offen offset:{q * 256} sc1")
    r0 = STR[0]
    SQ = ["s_waitcnt vmcnt(0)"]
    for q in range(1, 4):
        SQ += [f"v_add_f32 v{r0 + i}, v{r0 + i}, v{STR[q] + i}" for i in range(4)]
    SQ += [f"v_add_f32 v12, v{r0}, v{r0 + 2}", f"v_add_f32 v13, v{r0 + 1}, v{r0 + 3}",
           "v_mov_b32 v14, v12", "v_mov_b32 v15, v13", "s_nop 0",
           "v_permlane32_swap_b32 v12, v14", "v_permlane32_swap_b32 v13, v15",
           "v_add_f32 v12, v12, v14", "v_add_f32 v13, v13, v15",
           f"v_mul_f32 v12, {f32(-1/512)}, v12", f"v_mul_f32 v13, {f32(1/512)}, v13",
           "v_fma_f32 v13, -v12, v12, v13", "v_max_f32 v13, 0, v13", f"v_add_f32 v{r0 + 1}, {f32(EPS)}, v13",
           f"v_rsq_f32 v14, v{r0 + 1}", "v_cvt_pk_bf16_f32 v15, v12, v12", "v_lshlrev_b32 v15, 16, v15",
           "v_sub_f32 v12, v12, v15", f"v_cvt_pk_bf16_f32 v{r0}, v15, v12",
           f"v_mul_f32 v{r0 + 2}, {f32(-K1C)}, v14", "v_mul_f32 v14, v14, v14", f"v_mul_f32 v14, v14, v{r0 + 2}",
           f"v_mul_f32 v{r0 + 3}, {f32(0.044715)}, v14"]
    hooks = {}
    for k_ in range(10):
        hooks[8 + k_] = SQ[4 * k_: 4 * k_ + 4]
    hooks[29] = [f"ds_write_b128 v9, {vr(r0, 4)}"]
    hooks[31] = ["s_waitcnt lgkmcnt(0)", "s_barrier"]
    a("s_barrier")
    if GSTAMP: stamp(a, 3)
    tile(0, hooks, late=True)
    if GSTAMP: stamp(a, 4)
    tile(1, {GA3: ["s_barrier"]}, pre=1); tile(2, {}, pre=1)
    stamp(a, 6)
    tile(3, {}, pre=1, last=True)
    stamp_end(a, 1, 7, 8)
    a("s_endpgm")
    a.label("K2_FALLBACK")
    a("v_mov_b32 v1, v2")
    a("v_mov_b32 v14, 0xff800000")
    a("s_mov_b32 s33, 0")
    a.label("K2_FB1")
    a(f"ds_read_b128 {vr(KR, 4)}, v1")
    a("v_add_u32 v1, 1024, v1")
    a("s_waitcnt lgkmcnt(0)")
    a(MF32(vr(s0, 16), vr(KR, 4), vr(Q, 4), "0"))
    a("s_nop 11")
    for i in range(0, 16, 2):
        a(f"v_max3_f32 v14, v14, v{s0+i}, v{s0+i+1}")
    a("s_add_u32 s33, s33, 1")
    a("s_cmp_lt_u32 s33, 64")
    a("s_cbranch_scc1 K2_FB1")
    set_negm()
    for i in range(16):
        a(f"v_mov_b32 v{O + i}, 0")
    a("v_mov_b32 v1, v2")
    a("s_mov_b32 s33, 0")
    a.label("K2_FB2")
    a(f"ds_read_b128 {vr(KR, 4)}, v1")
    a("s_mov_b64 exec, s[34:35]")
    a(f"ds_read_b128 {vr(VR, 4)}, v3")
    a(f"ds_read_b128 {vr(VR + 4, 4)}, v3 offset:512")
    a("s_mov_b64 exec, -1")
    a("v_add_u32 v1, 1024, v1")
    a("v_add_u32 v3, 1024, v3")
    a("s_waitcnt lgkmcnt(0)")
    a(MF32(vr(s0, 16), vr(KR, 4), vr(Q, 4), vr(NEGM, 16)))
    a("s_nop 11")
    for i in range(16): a(f"v_exp_f32 v{s0+i}, v{s0+i}")
    a("s_nop 0")
    for i in range(8): a(f"v_cvt_pk_bf16_f32 v{P+i}, v{s0+2*i}, v{s0+2*i+1}")
    a("s_nop 1")
    a(MF32(vr(O, 16), vr(VR, 4), vr(P, 4)))
    a(MF32(vr(O, 16), vr(VR + 4, 4), vr(P + 4, 4)))
    a("s_add_u32 s33, s33, 1")
    a("s_cmp_lt_u32 s33, 64")
    a("s_cbranch_scc1 K2_FB2")
    a("s_nop 11")
    a("s_branch K2_FIN")
    a.label("K2_END")
    a("s_endpgm")
    return n, a, kd(n, 256, 256), (256, 512, 163840)

def k5():
    a = Asm(); n = "k3_down_kernel"
    NS = 112; KS = 28; DEPTH = 8
    kernel_head(a, n)
    ACC = 16; GB = 80; WB = 144; RES = 160
    RED = 65536
    a("s_cmp_ge_u32 s2, 256")
    a("s_cbranch_scc1 K5_END")
    stamp(a, 0)
    a("s_load_dwordx2 s[4:5], s[0:1], 72")
    a("s_load_dwordx4 s[40:43], s[0:1], 48")
    a("v_lshrrev_b32 v1, 6, v0")
    a("v_and_b32 v0, 63, v0")
    a("v_readfirstlane_b32 s22, v1")
    a("v_lshlrev_b32 v2, 4, v0")
    a("s_and_b32 s23, s2, 7")
    a("s_lshl_b32 s23, s23, 2")
    a("s_bfe_u32 s29, s2, 0x20003")
    a("s_add_u32 s23, s23, s29")
    a("s_lshr_b32 s24, s2, 5")
    a("s_and_b32 s25, s22, 1")
    a("s_lshr_b32 s26, s22, 1")
    a("s_lshl_b32 s27, s24, 1")
    a("s_add_u32 s27, s27, s25")
    a("s_lshl_b32 s28, s23, 1")
    a("s_add_u32 s28, s28, s26")
    a(f"s_mul_i32 s29, s22, {KS * 1024}")
    a(f"s_mul_i32 s32, s28, {NS * 1024}")
    a("s_add_u32 s32, s32, s29")
    a(f"s_add_u32 s32, s32, {GF}")
    a("s_xor_b32 s33, s28, 1")
    a(f"s_mul_i32 s33, s33, {NS * 1024}")
    a("s_add_u32 s33, s33, s29")
    a(f"s_add_u32 s33, s33, {GF}")
    a(f"s_mul_i32 s29, s22, {KS * 16384}")
    a("s_lshl_b32 s30, s27, 6")
    a("s_xor_b32 s31, s30, 64")
    a("s_add_u32 s30, s30, s29")
    a("s_add_u32 s31, s31, s29")
    a("s_lshl_b32 s36, s22, 14")
    a("v_lshrrev_b32 v8, 2, v0")
    a("v_lshlrev_b32 v8, 10, v8")
    a("v_and_b32 v1, 3, v0")
    a("v_lshl_add_u32 v8, v1, 4, v8")
    a("s_waitcnt lgkmcnt(0)")
    srd(a, 8, 4, WS_SIZE)
    srd(a, 16, 40, 1792 * 512 * 2)
    srd(a, 12, 42, 2048 * 512 * 2)
    def loads(s):
        b = GB + 8 * (s % DEPTH)
        if s % 4 == 0 and s > 0:
            a("s_add_u32 s32, s32, 4096")
            a("s_add_u32 s33, s33, 4096")
        for i in range(2):
            a(f"s_add_u32 m0, s36, {(s % DEPTH) * 2048 + i * 1024}")
            a(f"s_add_u32 s29, s{30 + i}, {s * 16384}")
            a("buffer_load_dwordx4 v8, s[16:19], s29 offen lds")
        for i in range(2):
            a(f"buffer_load_dwordx4 {vr(b + 4 * i, 4)}, v2, s[8:11], s{32 + i} offen offset:{(s % 4) * 1024}")
    for s in range(DEPTH - 1):
        loads(s)
    a("v_lshrrev_b32 v4, 5, v0")
    a("v_bfe_u32 v1, v0, 2, 2")
    a("v_lshl_add_u32 v9, v4, 2, v1")
    a("v_lshlrev_b32 v9, 6, v9")
    a("v_and_b32 v1, 3, v0")
    a("v_lshl_add_u32 v9, v1, 3, v9")
    a("v_bfe_u32 v1, v0, 4, 1")
    a("v_lshl_add_u32 v9, v1, 5, v9")
    a("v_add_u32 v9, s36, v9")
    a("v_and_b32 v3, 31, v0")
    a("v_lshlrev_b32 v3, 10, v3")
    a("v_lshl_add_u32 v3, v4, 4, v3")
    a("s_lshl_b32 s34, s28, 15")
    a("s_lshl_b32 s35, s27, 6")
    a("s_add_u32 s34, s34, s35")
    a("s_lshl_b32 s35, s28, 15")
    a("s_lshl_b32 s37, s27, 11")
    a("s_add_u32 s35, s35, s37")
    a(f"s_add_u32 s35, s35, {HF}")
    for t in range(1, 4):
        a(f"s_xor_b32 s29, s22, {t}")
        a("s_mul_i32 s29, s29, 12288")
        a(f"s_add_u32 s29, s29, {RED}")
        a(f"v_add_u32 v{4 + t}, s29, v2")
    a("s_mul_i32 s29, s22, 12288")
    a(f"s_add_u32 s29, s29, {RED}")
    a("v_add_u32 v4, s29, v2")
    def trreads(s):
        for i in range(2):
            for e in range(2):
                a(f"ds_read_b64_tr_b16 {vr(WB + 8 * (s % 2) + 4 * i + 2 * e, 2)}, v9 offset:{(s % DEPTH) * 2048 + i * 1024 + e * 512}")
    def mfmas(s):
        g = GB + 8 * (s % DEPTH); w = WB + 8 * (s % 2)
        B0, B1, A0, A1 = vr(g, 4), vr(g + 4, 4), vr(w, 4), vr(w + 4, 4)
        C = "0" if s == 0 else None
        a(MF32(vr(ACC, 16), A0, B0, C))
        a(MF32(vr(ACC + 32, 16), A0, B1, C))
        a(MF32(vr(ACC + 16, 16), A1, B0, C))
        a(MF32(vr(ACC + 48, 16), A1, B1, C))
    issued = DEPTH - 1; res = 0
    a(f"s_waitcnt vmcnt({(issued - 1) * 4})")
    stamp(a, 1)
    trreads(0)
    for s in range(KS):
        if issued < KS:
            loads(issued); issued += 1
            if issued == KS:
                for j in range(2):
                    a(f"buffer_load_dwordx4 {vr(RES + 4 * j, 4)}, v2, s[8:11], s35 offen offset:{j * 1024}")
                res = 2
        if s + 1 < KS:
            a(f"s_waitcnt vmcnt({(issued - s - 2) * 4 + res})")
            trreads(s + 1)
            a("s_waitcnt lgkmcnt(4)")
        else:
            a("s_waitcnt lgkmcnt(0)")
        mfmas(s)
    stamp(a, 2)
    a("s_waitcnt vmcnt(0)")
    a("s_mov_b32 s29, 0xffff0000")
    for i in range(8):
        a(f"v_lshlrev_b32 v{RES + 8 + 2 * i}, 16, v{RES + i}")
        a(f"v_and_b32 v{RES + 9 + 2 * i}, s29, v{RES + i}")
    for t in (2, 1, 3):
        for q in range(4):
            a(f"ds_write_b128 v{4 + t}, {vr(ACC + 16 * t + 4 * q, 4)} offset:{(t - 1) * 4096 + q * 1024}")
    for i in range(16):
        a(f"v_add_f32 v{ACC + i}, v{ACC + i}, v{RES + 8 + i}")
    a("s_waitcnt lgkmcnt(0)")
    a("s_barrier")
    for t in range(3):
        for q in range(4):
            a(f"ds_read_b128 {vr(GB + 16 * t + 4 * q, 4)}, v4 offset:{t * 4096 + q * 1024}")
    for t in range(3):
        a(f"s_waitcnt lgkmcnt({8 - 4 * t})")
        for i in range(0, 16, 2):
            a(f"v_pk_add_f32 {vr(ACC + i, 2)}, {vr(ACC + i, 2)}, {vr(GB + 16 * t + i, 2)}")
    o = ACC + 16
    for i in range(8):
        a(f"v_cvt_pk_bf16_f32 v{o + i}, v{ACC + 2 * i}, v{ACC + 2 * i + 1}")
    a("s_nop 0")
    for j in range(2):
        a(f"v_permlane32_swap_b32 v{o + 4 * j}, v{o + 4 * j + 2}")
        a(f"v_permlane32_swap_b32 v{o + 4 * j + 1}, v{o + 4 * j + 3}")
    for j in range(2):
        a(f"buffer_store_dwordx4 {vr(o + 4 * j, 4)}, v3, s[12:15], s34 offen offset:{j * 32}")
    stamp_end(a, 2, 3, 8)
    a.label("K5_END")
    a("s_endpgm")
    return n, a, kd(n, 192, 192), (256, 256, RED + 49152)

def main(out):
    ks = [k1(), k234(), k5()]
    hdr = open("cdna_kernels/" + NAME + ".s.ref").read().split("\n")
    hdr = [l for l in hdr if l.startswith(";") and "@launch" not in l and "Override" not in l and "grid=ceil" not in l]
    txt = "\n".join(hdr) + "\n"
    for n, a, d, (g, b, lds) in ks:
        txt += f"; @launch kernel={n} grid=({g},1,1) block=({b},1,1) lds={lds}\n"
    txt += '.amdgcn_target "amdgcn-amd-amdhsa--gfx950"\n.text\n'
    bad = 0
    for ki, (n, a, d, _) in enumerate(ks):
        fl = ST_FLAGS[ki]
        if fl:
            a.lines = [l + " " + fl if ("buffer_store_dwordx" in l and "sc1" not in l) else l for l in a.lines]
        bad += check_hazards(a.lines, n)
        txt += a.text()
    txt += "CODE_END:\n"
    txt += '.section .rodata,"a"\n'
    for n, a, d, _ in ks:
        txt += ".p2align 6\n" + d
    open(out, "w").write(txt)
    print("hazards:", bad)

if __name__ == "__main__":
    if "stamp" in sys.argv: STAMP = True
    for arg in sys.argv[2:]:
        if "=" in arg:
            k_, v_ = arg.split("=", 1)
            globals()[k_] = eval(v_)
    main(sys.argv[1] if len(sys.argv) > 1 else "cdna_kernels/" + NAME + ".s")
```

```python
import sys, math, struct
from asmlib import *

NAME = "sequential_preLN__mha_block__geglu_ffn__prompt"

QF, KF, VF, OF, HF = 0x000000, 0x200000, 0x400000, 0x600000, 0x800000
ST  = 0xA00000
CSF = 0xA80000
WOF = 0xB00000
WGF = 0xC00000
WDF = 0x1000000
GF  = 0x1200000
WS_SIZE = 0x10000000
FL2 = 0xB00000
FL3 = 0xB02000

def f32(x):
    return "0x%08x" % struct.unpack("<I", struct.pack("<f", x))[0]

LOG2E = 1.4426950408889634
EPS = 1e-5

def srd(a, s, base, size):
    a(f"s_mov_b32 s{s}, s{base}")
    a(f"s_mov_b32 s{s+1}, s{base+1}")
    a(f"s_mov_b32 s{s+2}, {hex(size)}")
    a(f"s_mov_b32 s{s+3}, 0x00020000")

def kernel_head(a, name):
    a.raw(f".globl {name}")
    a.raw(".p2align 8")
    a.raw(f".type {name},@function")
    a.raw(f"{name}:")

def kd(name, nvgpr, accum, nsgpr=100):
    return f""".amdhsa_kernel {name}
  .amdhsa_next_free_vgpr {nvgpr}
  .amdhsa_next_free_sgpr {nsgpr}
  .amdhsa_accum_offset {accum}
  .amdhsa_group_segment_fixed_size 0
  .amdhsa_kernarg_size 80
  .amdhsa_user_sgpr_count 2
  .amdhsa_user_sgpr_kernarg_segment_ptr 1
  .amdhsa_system_sgpr_workgroup_id_x 1
.end_amdhsa_kernel
"""

STAMP = False
DBGK1 = 0
LD_SC = ''
GSTAMP = 0
G_P2 = 8
GB3 = 12
GA3 = 0
POLL_SLEEP = 6
B_FILL = 4
K2_TCH = 1
G_SC = 'sc1'
CODE_TOUCH = 0
K1_ROT = 1
K1_TW = [-1, 0, 1]
K4_SL = 26
K2_S3 = 11
K2_WD = 0
K1_D = 1
K4_D = 2
K4_XB = 12
K4_TOUCH = 1
K2_S2 = 4
K1_TOUCH = 1
ST_FLAGS = ['', '', '', '', '']
K2_Y = 28
SIDE_SC = 'sc1'
K1_UP = 14
K4_UP = 22
DBGOFF = 0x2000000
def stamp(a, i):
    if not STAMP: return
    a(f"s_memrealtime s[{64 + 4 * i}:{65 + 4 * i}]")
    a(f"s_memtime s[{66 + 4 * i}:{67 + 4 * i}]")
    if i != 0:
        a("s_waitcnt lgkmcnt(0)")
def stamp_end(a, kidx, n, srdreg, wavereg=22):
    if not STAMP: return
    a("s_waitcnt vmcnt(0)")
    stamp(a, n)
    a("s_lshl_b32 s60, s2, 3")
    a(f"s_add_u32 s60, s60, s{wavereg}")
    a("s_lshl_b32 s60, s60, 6")
    a(f"s_add_u32 s60, s60, {DBGOFF + kidx * 0x40000}")
    a("v_mov_b32 v0, 0")
    for j in range(2 * n + 2):
        a(f"v_mov_b32 v1, s{64 + 2 * j}")
        a(f"buffer_store_dword v1, v0, s[{srdreg}:{srdreg+3}], s60 offen offset:{4 * j}")

def MF32(d, A, B, C=None):
    C = d if C is None else C
    return f"v_mfma_f32_32x32x16_bf16 {d}, {A}, {B}, {C}"

def halfsum(a, v, t):
    a(f"v_mov_b32 v{t}, v{v}")
    a("s_nop 1")
    a(f"v_permlane32_swap_b32 v{v}, v{t}")
    a(f"v_add_f32 v{v}, v{v}, v{t}")


def k1():
    a = Asm(); n = "k1_qkv_kernel"
    kernel_head(a, n)
    SLOT = 28672; SCR = 5 * SLOT; SCR2 = SCR + 1536; SCR3 = SCR2 + 512
    D = K1_D
    a("s_cmp_ge_u32 s2, 256")
    a("s_cbranch_scc1 K1_END")
    stamp(a, 0)
    if DBGK1:
        a("s_memrealtime s[64:65]")
        a("s_memtime s[66:67]")
    a("s_load_dwordx4 s[4:7], s[0:1], 0")
    a("s_load_dwordx2 s[20:21], s[0:1], 72")
    a("v_lshrrev_b32 v1, 6, v0")
    a("v_and_b32 v0, 63, v0")
    a("v_readfirstlane_b32 s35, v1")
    a("s_and_b32 s23, s2, 3")
    a("s_lshl_b32 s23, s23, 2")
    a("s_bfe_u32 s29, s2, 0x20003")
    a("s_add_u32 s23, s23, s29")
    a("s_bfe_u32 s24, s2, 0x10002")
    a("s_lshl_b32 s24, s24, 3")
    a("s_lshr_b32 s29, s2, 5")
    a("s_add_u32 s24, s24, s29")
    a("s_and_b32 s22, s35, 3")
    a("s_lshl_b32 s27, s22, 12")
    a("s_lshl_b32 s40, s2, 1")
    a("s_and_b32 s29, s2, 4")
    a("s_add_u32 s40, s40, s29")
    if not K1_ROT: a("s_mov_b32 s40, 0")
    a("s_cmp_lt_u32 s35, 4")
    a("s_cbranch_scc1 K1_RDADDR")
    a("s_lshl_b32 s25, s23, 17")
    a("s_lshl_b32 s29, s22, 15")
    a("s_add_u32 s25, s25, s29")
    a("s_mul_i32 s26, s22, 49152")
    a("s_lshl_b32 s29, s24, 6")
    a("s_add_u32 s26, s26, s29")
    a("s_lshl_b32 s28, s22, 10")
    a("s_add_u32 s28, s28, 16384")
    a("s_mov_b32 s30, 0x3f803f80")
    a("v_lshrrev_b32 v5, 3, v0")
    a("v_lshlrev_b32 v2, 10, v5")
    a("v_and_b32 v6, 7, v0")
    a("v_lshrrev_b32 v7, 4, v0")
    a("v_xor_b32 v6, v6, v7")
    a("v_lshl_add_u32 v2, v6, 4, v2")
    a("v_xor_b32 v3, 64, v2")
    a("v_add_u32 v3, 8192, v3")
    a("v_lshrrev_b32 v5, 2, v0")
    a("v_mul_u32_u24 v4, 3072, v5")
    a("v_and_b32 v6, 3, v0")
    a("v_lshl_add_u32 v4, v6, 4, v4")
    a("s_waitcnt lgkmcnt(0)")
    srd(a, 8, 4, 2048 * 512 * 2)
    srd(a, 12, 6, 512 * 1536 * 2)
    def dma(c):
        slot = (c % 5) * SLOT
        a(f"s_add_u32 s41, s40, {c}")
        a("s_and_b32 s41, s41, 7")
        a("s_lshl_b32 s42, s41, 7")
        a("s_add_u32 s42, s42, s25")
        a(f"s_mul_i32 s41, s41, {64 * 3072}")
        a("s_add_u32 s41, s41, s26")
        for p in range(3):
            a(f"s_add_u32 m0, s28, {slot + p * 4096}")
            a(f"s_add_u32 s29, s41, {p * 1024}")
            a(f"buffer_load_dwordx4 v4, s[12:15], s29 offen lds")
        for i in range(4):
            a(f"s_add_u32 m0, s27, {slot + i * 1024}")
            a(f"s_add_u32 s29, s42, {(i // 2) * 16384}")
            a(f"buffer_load_dwordx4 v{2 + (i % 2)}, s[8:11], s29 offen lds")
    for c in range(D + 1):
        dma(c)
    a.label("K1_RDADDR")
    a("v_and_b32 v5, 31, v0")
    a("v_lshrrev_b32 v6, 5, v0")
    a("v_bfe_u32 v7, v0, 1, 3")
    a("v_xor_b32 v7, v7, v6")
    a("v_lshlrev_b32 v5, 7, v5")
    a("v_add_u32 v5, s27, v5")
    for s in range(4):
        a(f"v_xor_b32 v1, {2 * s}, v7")
        a(f"v_lshl_add_u32 v{8 + s}, v1, 4, v5")
        a(f"v_add_u32 v{12 + s}, {2 * SLOT}, v{8 + s}")
        a(f"v_add_u32 v{16 + s}, {4 * SLOT}, v{8 + s}")
    a("v_bfe_u32 v1, v0, 2, 2")
    a("v_lshl_add_u32 v1, v6, 3, v1")
    a("v_lshlrev_b32 v20, 6, v1")
    a("v_bfe_u32 v1, v0, 4, 1")
    a("v_lshl_add_u32 v20, v1, 5, v20")
    a("v_and_b32 v1, 3, v0")
    a("v_lshl_add_u32 v20, v1, 3, v20")
    a("s_cmp_lt_u32 s35, 4")
    a("s_cbranch_scc1 K1_MM")
    a("s_lshl_b32 s29, s22, 10")
    a("v_add_u32 v20, s29, v20")
    a(f"v_add_u32 v21, {2 * SLOT}, v20")
    a(f"v_add_u32 v22, {4 * SLOT}, v20")
    for i in range(28, 31):
        a(f"v_mov_b32 v{i}, 0")
    WB = 48
    for c in range(8):
        slot = c % 5; st = slot // 2; off = (slot % 2) * SLOT
        a(f"s_waitcnt vmcnt({7 * (min(c + D, 7) - c)})")
        a("s_barrier")
        for p in range(3):
            for u in range(2):
                a(f"ds_read_b64_tr_b16 {vr(WB + 4 * p + 2 * u, 2)}, v{20 + st} offset:{off + 16384 + p * 4096 + u * 256}")
        if c + D + 1 < 8:
            dma(c + D + 1)
        a("s_waitcnt lgkmcnt(0)")
        for i in range(4):
            for p in range(3):
                a(f"v_dot2c_f32_bf16 v{28 + p}, s30, v{WB + 4 * p + i}")
    a("v_and_b32 v5, 31, v0")
    a("v_lshlrev_b32 v6, 4, v5")
    a("s_lshl_b32 s29, s22, 2")
    a(f"s_add_u32 s29, s29, {SCR}")
    a("v_add_u32 v7, s29, v6")
    for p in range(3):
        halfsum(a, 28 + p, 1)
        a(f"ds_write_b32 v7, v{28 + p} offset:{p * 512}")
    a("s_waitcnt lgkmcnt(0)")
    a("s_barrier")
    a("s_endpgm")
    a.label("K1_MM")
    if CODE_TOUCH:
        a("s_getpc_b64 s[44:45]")
        a.label("K1_PC")
        a("s_sub_u32 s44, s44, K1_PC-k1_qkv_kernel")
        a("s_subb_u32 s45, s45, 0")
        a("s_lshl_b32 s46, s22, 13")
        a("v_lshlrev_b32 v23, 7, v0")
        a("v_add_u32 v23, s46, v23")
        for i in range(CODE_TOUCH):
            a("v_min_u32 v24, CODE_END-k1_qkv_kernel-4, v23")
            a("global_load_dword v31, v24, s[44:45]")
            a("v_add_u32 v23, 32768, v23")
    a(f"v_add_u32 v21, {2 * SLOT}, v20")
    a(f"v_add_u32 v22, {4 * SLOT}, v20")
    a("s_mov_b32 s30, 0x3f803f80")
    for i in range(24, 28):
        a(f"v_mov_b32 v{i}, 0")
    a("v_and_b32 v5, 31, v0")
    a("v_lshlrev_b32 v6, 4, v5")
    a(f"v_add_u32 v6, {SCR}, v6")
    a("s_lshl_b32 s29, s22, 7")
    a(f"s_add_u32 s29, s29, {SCR2}")
    a("v_lshlrev_b32 v7, 2, v5")
    a("v_add_u32 v7, s29, v7")
    a("v_lshrrev_b32 v1, 5, v0")
    a("v_lshlrev_b32 v1, 4, v1")
    a("v_add_u32 v1, s29, v1")
    a("s_lshl_b32 s29, s23, 2")
    a("s_add_u32 s29, s29, s22")
    a("s_lshl_b32 s29, s29, 10")
    a("s_lshl_b32 s31, s24, 17")
    a("s_add_u32 s29, s29, s31")
    a("s_add_u32 s31, s29, 65536")
    a(f"s_add_u32 s32, s29, {KF}")
    a(f"s_add_u32 s33, s29, {KF + 65536}")
    a(f"s_add_u32 s34, s29, {VF}")
    a("v_lshlrev_b32 v2, 4, v0")
    a("v_bfe_u32 v3, v0, 4, 1")
    a("v_lshlrev_b32 v3, 16, v3")
    a("v_lshrrev_b32 v4, 5, v0")
    a("v_lshl_add_u32 v3, v4, 8, v3")
    a("v_and_b32 v4, 15, v0")
    a("v_lshl_add_u32 v3, v4, 4, v3")
    a("s_waitcnt lgkmcnt(0)")
    srd(a, 16, 20, WS_SIZE)
    a("s_cmp_ge_u32 s2, 3")
    a("s_cbranch_scc1 K1_NZ")
    a("s_lshl_b32 s36, s2, 2")
    a("s_add_u32 s36, s36, s22")
    a("s_lshl_b32 s36, s36, 10")
    a(f"s_add_u32 s36, s36, {FL2}")
    a("buffer_store_dwordx4 v[24:27], v2, s[16:19], s36 offen")
    a.label("K1_NZ")
    TQ = {}
    if K1_TOUCH:
        srd(a, 8, 4, 2048 * 512 * 2)
        a("s_lshr_b32 s37, s2, 3")
        a("v_and_b32 v28, 3, v0")
        a("s_mov_b32 s39, 256")
        a("s_and_b32 s36, s2, 3")
        a("s_lshl_b32 s36, s36, 19")
        a("s_lshl_b32 s38, s37, 14")
        a("s_add_u32 s36, s36, s38")
        a("v_bfe_u32 v23, v0, 1, 4")
        a("v_lshlrev_b32 v23, 10, v23")
        a("v_and_b32 v29, 1, v0")
        a("v_lshl_add_u32 v23, v29, 7, v23")
        a("s_cmp_lg_u32 s22, 0")
        a("s_cbranch_scc1 K1_TD")
        srd(a, 8, 6, 512 * 1536 * 2)
        a(f"s_mov_b32 s39, {128 * 3072}")
        a("s_mul_i32 s36, s37, 12288")
        a("s_bfe_u32 s38, s2, 0x10002")
        a("s_lshl_b32 s38, s38, 9")
        a("s_add_u32 s36, s36, s38")
        a("v_lshrrev_b32 v23, 4, v0")
        a("v_mul_u32_u24 v23, 3072, v23")
        a("v_bfe_u32 v30, v0, 2, 2")
        a("v_min_u32 v30, 2, v30")
        a("v_lshl_add_u32 v23, v30, 10, v23")
        a("v_lshl_add_u32 v23, v28, 7, v23")
        a.label("K1_TD")
        def touch(n_):
            return ["s_cmp_ge_u32 s22, 2", f"s_cbranch_scc1 K1_TS{n_}",
                    "s_lshr_b32 s38, s40, 1", f"s_add_u32 s38, s38, {n_ + 1}", "s_and_b32 s38, s38, 3",
                    "s_mul_i32 s38, s38, s39", "s_add_u32 s38, s38, s36",
                    "buffer_load_dword v31, v23, s[8:11], s38 offen", f"K1_TS{n_}:"]
        for n_, when in enumerate(K1_TW):
            if when < 0:
                for x in touch(n_): a(x)
            else:
                TQ.setdefault(when, []).extend(touch(n_))
    ACC = 32
    def xf(ks): return 80 + (ks % 8) * 4
    def wf(ks, p): return 112 + (ks % 3) * 12 + p * 4
    def reads(ks):
        c, s = ks // 4, ks % 4
        slot = c % 5; st = slot // 2; off = (slot % 2) * SLOT
        out = [f"ds_read_b128 {vr(xf(ks), 4)}, v{8 + 4 * st + s} offset:{off}"]
        for p in range(3):
            for u in range(2):
                out.append(f"ds_read_b64_tr_b16 {vr(wf(ks, p) + 2 * u, 2)}, v{20 + st} offset:{off + 16384 + p * 4096 + s * 1024 + u * 256}")
        return out
    def mfmas(ks):
        X = vr(xf(ks), 4); out = []
        for p in range(3):
            D_ = vr(ACC + 16 * p, 16); W = vr(wf(ks, p), 4)
            A, B = (W, X) if p < 2 else (X, W)
            out.append(MF32(D_, A, B, "0" if ks == 0 else None))
        return out
    def dots(k0, k1_):
        for ks in range(k0, k1_):
            for i in range(4):
                a(f"v_dot2c_f32_bf16 v{24 + i % 2}, s30, v{xf(ks) + i}")
                a(f"v_dot2c_f32_bf16 v{26 + i % 2}, v{xf(ks) + i}, v{xf(ks) + i}")
    a("s_barrier")
    stamp(a, 1)
    for r in reads(0) + reads(1): a(r)
    for x in TQ.get(0, []): a(x)
    for ks in range(32):
        c, s = ks // 4, ks % 4
        M = mfmas(ks); R = reads(ks + 2) if ks + 2 < 32 else []
        if s == 2:
            dots(max(ks - 3, 0), ks)
            a("s_waitcnt lgkmcnt(0)")
            dots(ks, ks + 1)
            if c == 7: dots(ks + 1, ks + 2)
            a(M[0])
            if c < 7:
                a("s_barrier")
                if c < 5: stamp(a, 2 + c)
                for x in TQ.get(c + 1, []): a(x)
        else:
            a(f"s_waitcnt lgkmcnt({7 if ks < 31 else 0})")
            a(M[0])
        E = []
        if ks >= 30:
            if ks == 30:
                E = ["v_add_f32 v24, v24, v25", "v_add_f32 v26, v26, v27", "v_mov_b32 v25, v24", "v_mov_b32 v27, v26", "s_nop 0",
                     "v_permlane32_swap_b32 v24, v25", "v_permlane32_swap_b32 v26, v27", "v_add_f32 v24, v24, v25", "v_add_f32 v26, v26, v27",
                     f"v_mul_f32 v24, {f32(1/512)}, v24", f"v_mul_f32 v26, {f32(1/512)}, v26", "v_fma_f32 v26, -v24, v24, v26",
                     "v_max_f32 v26, 0, v26", f"v_add_f32 v26, {f32(EPS)}, v26", "v_rsq_f32 v26, v26"]
                E = ["s_nop 1"] + E
            else:
                E = ["ds_write_b32 v7, v26", "v_mul_f32 v24, -0.5, v24", "v_cvt_pk_bf16_f32 v25, v24, v24", "v_lshlrev_b32 v25, 16, v25",
                     "v_sub_f32 v27, v24, v25", "v_cvt_pk_bf16_f32 v148, v25, v27", "v_mov_b32 v150, 0", "v_mov_b32 v151, 0",
                     "v_mov_b32 v149, v148", f"v_mul_f32 v28, {f32(0.25 * LOG2E)}, v26", "v_mov_b32 v27, v26", "v_mov_b32 v29, v28"]
            R = E
            n3 = (len(R) + 2) // 3
        else:
            n3 = 3
        for r in R[:n3]: a(r)
        a(M[1])
        for r in R[n3:2 * n3]: a(r)
        a(M[2])
        for r in R[2 * n3:]: a(r)
    a("s_waitcnt lgkmcnt(0)")
    a("s_barrier")
    for p in range(3):
        a(f"ds_read_b128 {vr(80 + 4 * p, 4)}, v6 offset:{p * 512}")
    for g in range(4):
        a(f"ds_read_b128 {vr(96 + 4 * g, 4)}, v1 offset:{g * 32}")
    CF = 152
    for p in range(3):
        a(f"v_mov_b32 v{CF + 4 * p + 2}, 0")
        a(f"v_mov_b32 v{CF + 4 * p + 3}, 0")
    for p in range(3):
        b = 80 + 4 * p; f = CF + 4 * p
        a(f"s_waitcnt lgkmcnt({6 - p})")
        a(f"v_add_f32 v{b}, v{b}, v{b+1}")
        a(f"v_add_f32 v{b+2}, v{b+2}, v{b+3}")
        a(f"v_add_f32 v{b}, v{b}, v{b+2}")
        a(f"v_cvt_pk_bf16_f32 v{f}, v{b}, v{b}")
        a(f"v_lshlrev_b32 v{b+1}, 16, v{f}")
        a(f"v_sub_f32 v{b+1}, v{b}, v{b+1}")
        a(f"v_cvt_pk_bf16_f32 v{f+1}, v{b+1}, v{b+1}")
        if p >= 1:
            q = p - 1
            a(MF32(vr(ACC + 16 * q, 16), vr(CF + 4 * q, 4), vr(148, 4)))
    a("s_waitcnt lgkmcnt(0)")
    a("s_nop 0")
    a(MF32(vr(ACC + 32, 16), vr(148, 4), vr(CF + 8, 4)))
    a("s_nop 1")
    for p in range(3):
        b = ACC + 16 * p; o = 112 + 8 * p
        for i in range(0, 16, 2):
            sc = "v[28:29]" if p == 0 else "v[26:27]" if p == 1 else vr(96 + i, 2)
            a(f"v_pk_mul_f32 {vr(b + i, 2)}, {sc}, {vr(b + i, 2)}")
        for i in range(8):
            a(f"v_cvt_pk_bf16_f32 v{o+i}, v{b+2*i}, v{b+2*i+1}")
        if p < 2:
            a(f"buffer_store_dwordx4 {vr(o, 4)}, v2, s[16:19], s{29 if p == 0 else 32} offen")
            a(f"buffer_store_dwordx4 {vr(o + 4, 4)}, v2, s[16:19], s{31 if p == 0 else 33} offen")
        else:
            a(f"buffer_store_dwordx4 {vr(o, 4)}, v3, s[16:19], s34 offen")
            a(f"buffer_store_dwordx4 {vr(o + 4, 4)}, v3, s[16:19], s34 offen offset:512")
    stamp_end(a, 0, 7, 16)
    if DBGK1:
        a("s_waitcnt vmcnt(0)")
        a("s_memrealtime s[68:69]")
        a("s_memtime s[70:71]")
        a("s_load_dwordx2 s[72:73], s[0:1], 64")
        a("s_waitcnt lgkmcnt(0)")
        srd(a, 76, 72, 256)
        a("s_sub_u32 s68, s68, s64")
        a("s_sub_u32 s70, s70, s66")
        a("s_and_b32 s74, s2, 31")
        a("s_cmp_lg_u32 s74, 0")
        a("s_cbranch_scc1 K1_END")
        a("s_lshr_b32 s74, s2, 2")
        a("v_mov_b32 v0, 0")
        a("v_mov_b32 v2, s68")
        a("v_mov_b32 v3, s70")
        a("buffer_store_dwordx2 v[2:3], v0, s[76:79], s74 offen")
    a.label("K1_END")
    a("s_endpgm")
    return n, a, kd(n, 168, 168), (256, 512, SCR3 + 512)


def k234():
    a = Asm(); n = "k2_mid_kernel"
    kernel_head(a, n)
    Q = 4; NEGM = 16; S = [32, 48]; O = 64; P = 80; KR = 88; VR = 100; W = 128
    SCR = 131072
    K1C = 2 * math.sqrt(2 / math.pi) * LOG2E
    vm = []
    def V(ins, tag=None):
        a(ins); vm.append(tag)
    def vmwait(tag, extra=""):
        idx = max(i for i, t in enumerate(vm) if t == tag)
        a(f"s_waitcnt vmcnt({len(vm) - 1 - idx}){extra}")
    a("s_cmp_ge_u32 s2, 256")
    a("s_cbranch_scc1 K2_END")
    stamp(a, 0)
    a("s_load_dwordx2 s[4:5], s[0:1], 72")
    a("s_load_dwordx4 s[40:43], s[0:1], 32")
    a("s_load_dwordx2 s[44:45], s[0:1], 16")
    a("s_load_dwordx2 s[46:47], s[0:1], 0")
    a("s_load_dwordx2 s[48:49], s[0:1], 48")
    a("v_lshrrev_b32 v1, 6, v0")
    a("v_and_b32 v0, 63, v0")
    a("v_readfirstlane_b32 s22, v1")
    a("s_and_b32 s23, s2, 7")
    a("s_lshl_b32 s23, s23, 2")
    a("s_bfe_u32 s29, s2, 0x20003")
    a("s_add_u32 s23, s23, s29")
    a("s_lshr_b32 s24, s2, 5")
    a("s_lshl_b32 s25, s23, 16")
    a("v_lshlrev_b32 v2, 4, v0")
    a("s_lshl_b32 s26, s22, 10")
    a("s_add_u32 s27, s25, s26")
    a("s_lshl_b32 s28, s24, 13")
    a("s_add_u32 s28, s28, s27")
    a(f"s_add_u32 s27, s27, {KF}")
    a("s_mov_b32 m0, s26")
    a(f"s_add_u32 s30, s27, {VF - KF}")
    a("s_waitcnt lgkmcnt(0)")
    srd(a, 8, 4, WS_SIZE)
    V("buffer_load_dwordx4 v2, s[8:11], s27 offen lds", "c0")
    V(f"buffer_load_dwordx4 {vr(Q, 4)}, v2, s[8:11], s28 offen", "c0")
    a("s_add_u32 m0, s26, 65536")
    a("s_nop 0")
    V("buffer_load_dwordx4 v2, s[8:11], s30 offen lds", "c0")
    def kvdma(c, isv):
        a(f"s_add_u32 m0, s26, {c * 8192 + isv * 65536}")
        a(f"s_add_u32 s29, s27, {c * 8192 + isv * (VF - KF)}")
        V("buffer_load_dwordx4 v2, s[8:11], s29 offen lds", f"c{c}")
    kvdma(1, 0); kvdma(1, 1)
    a("s_and_b32 s36, s2, 3")
    a("s_lshl_b32 s36, s36, 2")
    a("s_bfe_u32 s29, s2, 0x20003")
    a("s_add_u32 s36, s36, s29")
    a("s_bfe_u32 s37, s2, 0x10002")
    a("s_lshl_b32 s37, s37, 3")
    a("s_add_u32 s37, s37, s24")
    a("s_min_u32 s38, s22, 6")
    a("s_mul_i32 s39, s37, 7")
    a("s_add_u32 s39, s39, s38")
    a("s_lshl_b32 s54, s39, 5")
    srd(a, 12, 40, 512 * 1792 * 2)
    srd(a, 16, 42, 512 * 1792 * 2)
    a("s_lshl_b32 s55, s22, 12")
    a(f"s_add_u32 s55, s55, {SCR}")
    a("v_lshrrev_b32 v8, 1, v0")
    a("v_mul_u32_u24 v8, 3584, v8")
    a("v_and_b32 v1, 1, v0")
    a("v_lshl_add_u32 v8, v1, 4, v8")
    a("v_lshrrev_b32 v11, 5, v0")
    a("v_bfe_u32 v1, v0, 2, 2")
    a("v_lshl_add_u32 v10, v11, 2, v1")
    a("v_lshlrev_b32 v9, 5, v10")
    a("v_and_b32 v1, 3, v0")
    a("v_lshl_add_u32 v9, v1, 3, v9")
    a("v_bfe_u32 v1, v0, 4, 1")
    a("v_lshl_add_u32 v9, v1, 10, v9")
    a("v_add_u32 v9, s55, v9")
    a("v_and_b32 v12, 15, v0")
    a("v_lshl_add_u32 v12, v11, 4, v12")
    a("v_lshlrev_b32 v12, 4, v12")
    a("v_add_u32 v3, 65536, v12")
    a("s_mov_b32 s34, 0x0000ffff")
    a("s_mov_b32 s35, 0x0000ffff")
    a(f"s_mov_b32 s50, {f32(2.0**60)}")
    for i in range(24):
        a(f"v_mov_b32 v{VR + i}, 0x3f803f80")
    for i in range(16):
        a(f"v_mov_b32 v{O + i}, 0")
    for i in range(4, 8):
        a(f"v_mov_b32 v{P + i}, 0")
    def kread(t): return f"ds_read_b128 {vr(KR + 4 * (t % 3), 4)}, v2 offset:{t * 1024}"
    def vread(t):
        return ["s_mov_b64 exec, s[34:35]"] + \
               [f"ds_read_b128 {vr(VR + 8 * (t % 3) + 4 * j, 4)}, v3 offset:{t * 1024 + j * 512}" for j in range(2)] + \
               ["s_mov_b64 exec, -1"]
    vmwait("c0")
    a("s_barrier")
    a(kread(0)); a(kread(1))
    for x in vread(0): a(x)
    a(kread(2))
    for x in vread(1): a(x)
    a("s_waitcnt lgkmcnt(6)")
    s0 = S[0]
    a(MF32(vr(s0, 16), vr(KR, 4), vr(Q, 4), "0"))
    a("s_nop 11")
    for i in range(5):
        a(f"v_max3_f32 v{NEGM + i}, v{s0+3*i}, v{s0+3*i+1}, v{s0+3*i+2}")
    a(f"v_max3_f32 v14, v{NEGM}, v{NEGM+1}, v{s0+15}")
    a(f"v_max3_f32 v15, v{NEGM+2}, v{NEGM+3}, v{NEGM+4}")
    a("v_max_f32 v14, v14, v15")
    def set_negm():
        a("v_mov_b32 v15, v14")
        a("s_nop 1")
        a("v_permlane32_swap_b32 v14, v15")
        a("v_max_f32 v14, v14, v15")
        for i in range(16):
            a(f"v_sub_f32 v{NEGM + i}, 0, v14")
        a("s_nop 1")
    set_negm()
    a(MF32(vr(S[0], 16), vr(KR, 4), vr(Q, 4), vr(NEGM, 16)))
    a("s_nop 8")
    T0 = 12
    cnt = [0]
    def b(ins):
        if K2_Y:
            if cnt[0] == 0: a("s_setprio 0")
            if cnt[0] == K2_Y: a("s_setprio 1")
        cnt[0] += 1
        a(ins)
    for t in range(64):
        if t % 4 == 0: cnt[0] = 0
        Sc = S[t % 2]; Sn = S[(t + 1) % 2]
        E = lambda i: b(f"v_exp_f32 v{Sc+i}, v{Sc+i}")
        C = lambda i: b(f"v_cvt_pk_bf16_f32 v{P+i}, v{Sc+2*i}, v{Sc+2*i+1}")
        if t == 5: vmwait("c1"); a("s_barrier")
        if t == 13: vmwait("c5"); a("s_barrier")
        if t == 24: vmwait("c7"); a("s_barrier")
        nrd = lambda u: (1 if u + 3 < 64 else 0) + (2 if u + 2 < 64 else 0)
        b(f"s_waitcnt lgkmcnt({nrd(t - 1) if t > 0 else 3})")
        if t < 63:
            b(MF32(vr(Sn, 16), vr(KR + 4 * ((t + 1) % 3), 4), vr(Q, 4), vr(NEGM, 16)))
        for i in range(5): E(i)
        b(MF32(vr(O, 16), vr(VR + 8 * ((t - 1) % 3) + 4, 4), vr(P + 4, 4)))
        u, ph = divmod(t - T0 - 5, 3)
        if t >= T0 + 5 and ph == 0 and u < 16:
            vmwait(f"w{u}")
            for s in range(2):
                for e in range(2):
                    a(f"ds_read_b64_tr_b16 {vr(W + 8 * u + 4 * s + 2 * e, 2)}, v9 offset:{(u % 2) * 2048 + s * 512 + e * 256}")
        if t + 3 < 64: b(kread(t + 3))
        if t + 2 < 64:
            for x in vread(t + 2): b(x)
        for i in range(5, 8): E(i)
        for i in range(4): C(i)
        E(8); E(9)
        b(MF32(vr(O, 16), vr(VR + 8 * (t % 3), 4), vr(P, 4)))
        if t < 12: kvdma(2 + t // 2, t % 2)
        u, ph = divmod(t - T0, 3)
        if t >= T0 and ph == 0 and u < 16:
            a(f"s_add_u32 m0, s55, {(u % 2) * 2048}")
            a(f"s_add_u32 s29, s54, {u * 32 * 3584}")
            V("buffer_load_dwordx4 v8, s[12:15], s29 offen lds", f"w{u}")
            a(f"s_add_u32 m0, s55, {(u % 2) * 2048 + 1024}")
            a("s_nop 0")
            V("buffer_load_dwordx4 v8, s[16:19], s29 offen lds", f"w{u}")
        if t == 59 and K2_TCH:
            a("s_lshr_b32 s29, s2, 3")
            a("s_lshl_b32 s29, s29, 14")
            a("s_lshl_b32 s31, s22, 11")
            a("s_add_u32 s29, s29, s31")
            srd(a, 56, 44, 512 * 512 * 2)
            a("v_and_b32 v12, 15, v0")
            a("v_lshlrev_b32 v12, 7, v12")
            V("buffer_load_dword v124, v12, s[56:59], s29 offen", "tch")
        for i in range(10, 16): E(i)
        for i in range(4, 8): C(i)
    a("s_setprio 0")
    a("s_lshl_b32 s29, s24, 3")
    a("s_add_u32 s29, s29, s22")
    a(MF32(vr(O, 16), vr(VR + 8 * (63 % 3) + 4, 4), vr(P + 4, 4)))
    a("s_lshl_b32 s31, s29, 7")
    a("s_lshl_b32 s30, s23, 2")
    a("s_add_u32 s31, s31, s30")
    a(f"s_add_u32 s31, s31, {FL2}")
    a("s_lshl_b32 s29, s29, 15")
    a("s_lshl_b32 s30, s23, 10")
    a("s_add_u32 s29, s29, s30")
    a(f"s_add_u32 s29, s29, {OF}")
    a("v_mov_b32 v12, 0")
    a("v_mov_b32 v13, 1")
    a("s_waitcnt lgkmcnt(0)")
    a("s_nop 0")
    a(f"v_cmp_gt_f32 vcc, s50, v{O + 8}")
    a("s_nop 1")
    a("s_cmp_eq_u64 vcc, -1")
    a("s_cbranch_scc0 K2_FALLBACK")
    a.label("K2_FIN")
    a(f"v_rcp_f32 v14, v{O + 8}")
    a("s_nop 0")
    for i in range(8):
        a(f"v_mul_f32 v{O+i}, v14, v{O+i}")
    for i in range(4):
        a(f"v_cvt_pk_bf16_f32 v{P+i}, v{O+2*i}, v{O+2*i+1}")
    a(f"buffer_store_dwordx4 {vr(P, 4)}, v2, s[8:11], s29 offen sc1")
    stamp(a, 1)
    srd(a, 12, 44, 512 * 512 * 2)
    srd(a, 16, 46, 2048 * 512 * 2)
    a("s_and_b32 s25, s22, 1")
    a("s_bfe_u32 s26, s22, 0x10001")
    a("s_lshr_b32 s27, s22, 2")
    a("s_lshl_b32 s28, s24, 1")
    a("s_add_u32 s28, s28, s25")
    a("s_lshl_b32 s30, s23, 1")
    a("s_add_u32 s30, s30, s26")
    a("v_lshrrev_b32 v8, 2, v0")
    a("v_lshlrev_b32 v8, 10, v8")
    a("v_and_b32 v1, 3, v0")
    a("v_lshl_add_u32 v8, v1, 4, v8")
    a("v_lshlrev_b32 v9, 6, v10")
    a("v_lshl_add_u32 v9, v1, 3, v9")
    a("v_bfe_u32 v1, v0, 4, 1")
    a("v_lshl_add_u32 v9, v1, 5, v9")
    a("s_lshl_b32 s32, s25, 15")
    a("s_lshl_b32 s33, s27, 14")
    a("s_add_u32 s32, s32, s33")
    a("v_add_u32 v9, s32, v9")
    a("v_and_b32 v3, 31, v0")
    a("v_lshlrev_b32 v3, 10, v3")
    a("v_lshl_add_u32 v3, v11, 4, v3")
    a("s_lshl_b32 s51, s30, 15")
    a("s_lshl_b32 s33, s28, 6")
    a("s_add_u32 s51, s51, s33")
    RES = 112
    a("s_waitcnt vmcnt(0)")
    a("s_mov_b64 exec, 1")
    a("buffer_store_dword v13, v12, s[8:11], s31 offen sc1")
    a("s_mov_b64 exec, -1")
    for j in range(2):
        a(f"buffer_load_dwordx4 {vr(RES + 4 * j, 4)}, v3, s[16:19], s51 offen offset:{j * 32}")
    a("s_barrier")
    a("s_lshl_b32 s33, s26, 13")
    a("s_add_u32 s52, s32, s33")
    a("s_lshl_b32 s53, s27, 1")
    a("s_add_u32 s53, s53, s26")
    a("s_lshl_b32 s53, s53, 17")
    a("s_lshl_b32 s33, s28, 6")
    a("s_add_u32 s53, s53, s33")
    for i in range(8):
        a(f"s_add_u32 m0, s52, {i * 1024}")
        a(f"s_add_u32 s29, s53, {i * 16384}")
        a("buffer_load_dwordx4 v8, s[12:15], s29 offen lds")
    def poll(lbl, sreg):
        a("v_lshlrev_b32 v14, 2, v0")
        a("s_mov_b32 s33, 0")
        a.label(lbl)
        if POLL_SLEEP: a(f"s_sleep {POLL_SLEEP}")
        a(f"buffer_load_dword v15, v14, s[8:11], s{sreg} offen sc1")
        a("s_add_u32 s33, s33, 1")
        a("s_waitcnt vmcnt(0)")
        a("v_cmp_eq_u32 vcc, 1, v15")
        a("s_cmp_gt_u32 s33, 0x40000")
        a(f"s_cbranch_scc1 {lbl}_X")
        a("s_cmp_eq_u64 vcc, -1")
        a(f"s_cbranch_scc0 {lbl}")
        a.label(f"{lbl}_X")
    a("s_cmp_eq_u32 s22, 7")
    a("s_cbranch_scc1 K2_POLL2")
    a("s_mov_b32 s29, 0x3f803f80")
    for i in range(4): a(f"v_mov_b32 v{124 + i}, 0")
    for i in range(128):
        a(f"v_dot2c_f32_bf16 v{124 + i % 4}, s29, v{W + i}")
    a("s_nop 2")
    a("v_add_f32 v124, v124, v125")
    a("v_add_f32 v126, v126, v127")
    a("v_add_f32 v126, v124, v126")
    a("v_cvt_pk_bf16_f32 v124, v126, v126")
    a("v_lshlrev_b32 v125, 16, v124")
    a("v_sub_f32 v125, v126, v125")
    a("v_cvt_pk_bf16_f32 v125, v125, v125")
    a("v_mov_b32 v126, 0")
    a("v_mov_b32 v127, 0")
    a("s_branch K2_B2")
    a.label("K2_POLL2")
    a("s_lshl_b32 s29, s23, 8")
    a(f"s_add_u32 s29, s29, {FL2}")
    poll("K2_P2", 29)
    a.label("K2_B2")
    a("s_waitcnt vmcnt(0)")
    a("s_barrier")
    stamp(a, 2)
    a("s_lshl_b32 s29, s25, 15")
    a("s_lshl_b32 s33, s26, 14")
    a("s_add_u32 s29, s29, s33")
    a("s_lshl_b32 s33, s27, 12")
    a("s_add_u32 s29, s29, s33")
    a("s_lshl_b32 s33, s23, 16")
    a("s_add_u32 s33, s33, s29")
    a(f"s_add_u32 s33, s33, {OF}")
    for stg in range(2):
        a(f"s_add_u32 m0, s29, {65536 + stg * 8192}")
        if stg: a("s_add_u32 s33, s33, 8192")
        else: a("s_nop 0")
        for i in range(4):
            a(f"buffer_load_dwordx4 v2, s[8:11], s33 offen offset:{i * 1024} {LD_SC} lds")
    A3 = 16; WO = 32; OB = 96
    for s in range(16):
        for e in range(2):
            a(f"ds_read_b64_tr_b16 {vr(WO + 4 * s + 2 * e, 2)}, v9 offset:{s * 1024 + e * 512}")
    a("s_lshl_b32 s29, s26, 15")
    a("s_lshl_b32 s33, s27, 14")
    a("s_add_u32 s29, s29, s33")
    a("s_add_u32 s29, s29, 65536")
    a("v_add_u32 v8, s29, v2")
    a("s_and_b32 s29, s22, 3")
    a("s_lshl_b32 s29, s29, 12")
    a(f"s_add_u32 s29, s29, {SCR}")
    a("v_add_u32 v9, s29, v2")
    for j in range(2):
        a(f"v_permlane32_swap_b32 v{RES + 4 * j}, v{RES + 4 * j + 2}")
        a(f"v_permlane32_swap_b32 v{RES + 4 * j + 1}, v{RES + 4 * j + 3}")
    for stg in range(2):
        a(f"s_waitcnt vmcnt({4 - 4 * stg}) lgkmcnt(0)")
        a("s_barrier")
        rd = lambda s: f"ds_read_b128 {vr(OB + 4 * (s % 4), 4)}, v8 offset:{s * 1024}"
        for s in range(8 * stg, 8 * stg + 3): a(rd(s))
        for s in range(8 * stg, 8 * stg + 8):
            left = 8 * stg + 7 - s
            if left >= 3: a(rd(s + 3))
            a(f"s_waitcnt lgkmcnt({min(left, 3)})")
            a(MF32(vr(A3, 16), vr(WO + 4 * s, 4), vr(OB + 4 * (s % 4), 4), "0" if s == 0 else None))
    stamp(a, 3)
    a("s_cmp_lt_u32 s22, 4")
    a("s_cbranch_scc1 K2_O_LO")
    a("s_nop 9")
    for q in range(4):
        a(f"ds_write_b128 v9, {vr(A3 + 4 * q, 4)} offset:{q * 1024}")
    a("s_waitcnt lgkmcnt(0)")
    a("s_barrier")
    a("s_cmp_eq_u32 s22, 7")
    a("s_cbranch_scc0 K2_B3")
    a("s_lshl_b32 s29, s36, 8")
    a(f"s_add_u32 s29, s29, {FL3}")
    poll("K2_P3", 29)
    a("s_branch K2_B3")
    a.label("K2_O_LO")
    a("s_mov_b32 s29, 0xffff0000")
    for i in range(8):
        a(f"v_lshlrev_b32 v{48 + 2 * i}, 16, v{RES + i}")
        a(f"v_and_b32 v{49 + 2 * i}, s29, v{RES + i}")
    for i in range(16):
        a(f"v_add_f32 v{A3 + i}, v{A3 + i}, v{48 + i}")
    a("s_lshl_b32 s52, s30, 15")
    a("s_lshl_b32 s33, s28, 11")
    a("s_add_u32 s52, s52, s33")
    a(f"s_add_u32 s52, s52, {HF}")
    a("s_lshl_b32 s53, s30, 12")
    a("s_lshl_b32 s33, s28, 8")
    a("s_add_u32 s53, s53, s33")
    a(f"s_add_u32 s53, s53, {ST}")
    a("s_lshl_b32 s31, s30, 6")
    a("s_lshl_b32 s33, s28, 2")
    a("s_add_u32 s31, s31, s33")
    a(f"s_add_u32 s31, s31, {FL3}")
    a("v_lshlrev_b32 v3, 3, v0")
    a("s_mov_b32 s29, 0x3f803f80")
    a("v_mov_b32 v14, 0")
    a("v_mov_b32 v15, 0")
    a("s_barrier")
    for q in range(4):
        a(f"ds_read_b128 {vr(32 + 4 * q, 4)}, v9 offset:{q * 1024}")
    o = 64
    for q in range(4):
        a(f"s_waitcnt lgkmcnt({3 - q})")
        for i in range(4 * q, 4 * q + 4):
            a(f"v_add_f32 v{A3 + i}, v{A3 + i}, v{32 + i}")
        for i in range(2 * q, 2 * q + 2):
            a(f"v_cvt_pk_bf16_f32 v{o + i}, v{A3 + 2 * i}, v{A3 + 2 * i + 1}")
        if q % 2:
            j = q // 2
            a(f"buffer_store_dwordx4 {vr(o + 4 * j, 4)}, v2, s[8:11], s52 offen offset:{j * 1024} sc1")
    for i in range(8):
        a(f"v_dot2c_f32_bf16 v14, s29, v{o + i}")
        a(f"v_dot2c_f32_bf16 v15, v{o + i}, v{o + i}")
    a("s_nop 2")
    a("v_mov_b32 v16, v14")
    a("v_mov_b32 v17, v15")
    a("s_nop 0")
    a("v_permlane32_swap_b32 v14, v16")
    a("v_permlane32_swap_b32 v15, v17")
    a("v_add_f32 v14, v14, v16")
    a("v_add_f32 v15, v15, v17")
    a("s_mov_b64 exec, 0xffffffff")
    a("buffer_store_dwordx2 v[14:15], v3, s[8:11], s53 offen sc1")
    a("s_waitcnt vmcnt(0)")
    a("s_mov_b64 exec, 1")
    a("buffer_store_dword v13, v12, s[8:11], s31 offen sc1")
    a("s_mov_b64 exec, -1")
    a.label("K2_B3")
    stamp(a, 4)
    a("v_add_u32 v3, 65536, v2")
    a("v_and_b32 v8, 31, v0")
    a("v_lshlrev_b32 v8, 4, v8")
    a(f"v_add_u32 v8, {SCR}, v8")
    a(f"s_mul_i32 s32, s36, {4 * 112 * 1024}")
    a("s_lshl_b32 s33, s39, 10")
    a("s_add_u32 s32, s32, s33")
    a(f"s_add_u32 s32, s32, {GF}")
    a("s_and_b32 s25, s22, 3")
    a("s_lshl_b32 s30, s36, 2")
    a("s_add_u32 s30, s30, s25")
    def hread(dst, tt, s):
        return f"ds_read_b128 {vr(dst, 4)}, v{2 + tt // 2} offset:{(tt % 2) * 32768 + s * 1024}"
    def epi(g, z, st, tt):
        u = g + 8; o = []
        ve, a0, a1 = f"v{st+1}", f"v{st+2}", f"v{st+3}"
        o += [f"v_mul_f32 v{z+i}, v{g+i}, v{g+i}" for i in range(8)]
        o += [f"v_fma_f32 v{z+i}, v{z+i}, {a1}, {a0}" for i in range(8)]
        o += [f"v_mul_f32 v{z+i}, v{z+i}, v{g+i}" for i in range(8)]
        for i in range(8):
            o += [f"v_exp_f32 v{z+i}, v{z+i}", f"v_mul_f32 v{g+i}, v{g+i}, v{u+i}"]
        o += [f"v_fma_f32 v{z+i}, v{z+i}, {ve}, {ve}" for i in range(8)]
        o += [f"v_rcp_f32 v{z+i}, v{z+i}" for i in range(8)]
        o += [f"s_add_u32 s29, s32, {tt * 112 * 1024}"]
        o += [f"v_mul_f32 v{g+i}, v{g+i}, v{z+i}" for i in range(8)]
        o += [f"v_cvt_pk_bf16_f32 v{u+i}, v{g+2*i}, v{g+2*i+1}" for i in range(4)]
        o += [f"buffer_store_dwordx4 {vr(u, 4)}, v2, s[8:11], s29 offen {G_SC}"]
        return o
    ACC = 16; HB = 32; ZB = 80; SB = 88; TB = 92; NR = 12; STR = [96, 100, 104, 108]
    a(f"v_mov_b32 v{TB + 2}, 0")
    a(f"v_mov_b32 v{TB + 3}, 0")
    def tile(tt, hooks, pre=None, last=False, late=False):
        a("s_setprio 1")
        rd = lambda ks: hread(HB + 4 * (ks % NR), tt, ks)
        if pre is None:
            for ks in range(NR - 1): a(rd(ks))
        for ks in range(32):
            if ks + NR - 1 < 32: a(rd(ks + NR - 1))
            if ks % 4 == 0:
                a(f"s_waitcnt lgkmcnt({min(ks + NR - 1, 31) - (ks + 3)})")
            a(MF32(vr(ACC, 16), vr(W + 4 * ks, 4), vr(HB + 4 * (ks % NR), 4), "0" if ks == 0 else None))
            if ks == G_P2: a("s_setprio 2")
            if not late:
                if ks == 22: a(f"ds_read_b128 {vr(SB, 4)}, v8 offset:{tt * 512}")
                if ks == 29:
                    a(f"v_mov_b32 v{TB}, v{SB}")
                    a(f"v_mov_b32 v{TB + 1}, v{SB}")
            for x in hooks.get(ks, []): a(x)
        if late:
            a(f"ds_read_b128 {vr(SB, 4)}, v8 offset:{tt * 512}")
            a("s_waitcnt lgkmcnt(0)")
            a(f"v_mov_b32 v{TB}, v{SB}")
            a(f"v_mov_b32 v{TB + 1}, v{SB}")
            a("s_nop 1")
        a(MF32(vr(ACC, 16), vr(124, 4), vr(TB, 4)))
        a("s_setprio 0")
        for x in hooks.get("post", []): a(x)
        if not last:
            for ks in range(NR - 1): a(hread(HB + 4 * ks, tt + 1, ks))
        else:
            a("s_nop 10")
        for x in epi(ACC, ZB, SB, tt): a(x)
    a("s_cmp_lt_u32 s22, 4")
    a("s_cbranch_scc1 K2_GA")
    a("s_lshl_b32 s28, s25, 13")
    a("s_lshl_b32 s26, s36, 17")
    a("s_add_u32 s26, s26, s28")
    a(f"s_add_u32 s26, s26, {HF}")
    a("s_barrier")
    stamp(a, 5)
    def hdma(tt):
        for g in range(2):
            a(f"s_add_u32 m0, s28, {tt * 32768 + g * 4096}")
            a(f"s_add_u32 s29, s26, {tt * 32768 + g * 4096}")
            for i in range(4):
                a(f"buffer_load_dwordx4 v2, s[8:11], s29 offen offset:{i * 1024} {LD_SC} lds")
    hdma(0); hdma(1)
    a("s_waitcnt vmcnt(8)")
    a("s_barrier")
    if GSTAMP: stamp(a, 3)
    hdma(2); hdma(3)
    a("s_waitcnt vmcnt(16)")
    a("s_barrier")
    if GSTAMP: stamp(a, 4)
    a("s_cmp_eq_u32 s22, 7")
    a("s_cbranch_scc1 K2_W7")
    tile(0, {GB3: ["s_waitcnt vmcnt(0)", "s_barrier"]})
    tile(1, {}, pre=1); tile(2, {}, pre=1)
    stamp(a, 6)
    tile(3, {}, pre=1, last=True)
    stamp_end(a, 1, 7, 8)
    a("s_endpgm")
    a.label("K2_W7")
    a("s_waitcnt vmcnt(0)")
    a("s_barrier")
    if K4_TOUCH:
        srd(a, 12, 48, 1792 * 512 * 2)
        a("s_lshr_b32 s29, s2, 3")
        a("s_mul_i32 s29, s29, 57344")
        a("v_lshlrev_b32 v13, 7, v0")
        for i in range(7):
            a("buffer_load_dword v14, v13, s[12:15], s29 offen")
            a("s_add_u32 s29, s29, 8192")
    a("s_endpgm")
    a.label("K2_GA")
    a("s_lshl_b32 s26, s30, 12")
    a(f"s_add_u32 s26, s26, {ST}")
    a("s_lshl_b32 s28, s25, 9")
    a("v_add_u32 v9, s28, v8")
    a("v_and_b32 v1, 31, v0")
    a("v_lshlrev_b32 v1, 3, v1")
    a("v_lshl_add_u32 v1, v11, 11, v1")
    a("s_barrier")
    stamp(a, 5)
    for q in range(8):
        a(f"buffer_load_dwordx2 {vr(STR[q // 2] + 2 * (q % 2), 2)}, v1, s[8:11], s26 offen offset:{q * 256} sc1")
    r0 = STR[0]
    SQ = ["s_waitcnt vmcnt(0)"]
    for q in range(1, 4):
        SQ += [f"v_add_f32 v{r0 + i}, v{r0 + i}, v{STR[q] + i}" for i in range(4)]
    SQ += [f"v_add_f32 v12, v{r0}, v{r0 + 2}", f"v_add_f32 v13, v{r0 + 1}, v{r0 + 3}",
           "v_mov_b32 v14, v12", "v_mov_b32 v15, v13", "s_nop 0",
           "v_permlane32_swap_b32 v12, v14", "v_permlane32_swap_b32 v13, v15",
           "v_add_f32 v12, v12, v14", "v_add_f32 v13, v13, v15",
           f"v_mul_f32 v12, {f32(-1/512)}, v12", f"v_mul_f32 v13, {f32(1/512)}, v13",
           "v_fma_f32 v13, -v12, v12, v13", "v_max_f32 v13, 0, v13", f"v_add_f32 v{r0 + 1}, {f32(EPS)}, v13",
           f"v_rsq_f32 v14, v{r0 + 1}", "v_cvt_pk_bf16_f32 v15, v12, v12", "v_lshlrev_b32 v15, 16, v15",
           "v_sub_f32 v12, v12, v15", f"v_cvt_pk_bf16_f32 v{r0}, v15, v12",
           f"v_mul_f32 v{r0 + 2}, {f32(-K1C)}, v14", "v_mul_f32 v14, v14, v14", f"v_mul_f32 v14, v14, v{r0 + 2}",
           f"v_mul_f32 v{r0 + 3}, {f32(0.044715)}, v14"]
    hooks = {}
    for k_ in range(10):
        hooks[8 + k_] = SQ[4 * k_: 4 * k_ + 4]
    hooks[29] = [f"ds_write_b128 v9, {vr(r0, 4)}"]
    hooks[31] = ["s_waitcnt lgkmcnt(0)", "s_barrier"]
    a("s_barrier")
    if GSTAMP: stamp(a, 3)
    tile(0, hooks, late=True)
    if GSTAMP: stamp(a, 4)
    tile(1, {GA3: ["s_barrier"]}, pre=1); tile(2, {}, pre=1)
    stamp(a, 6)
    tile(3, {}, pre=1, last=True)
    stamp_end(a, 1, 7, 8)
    a("s_endpgm")
    a.label("K2_FALLBACK")
    a("v_mov_b32 v1, v2")
    a("v_mov_b32 v14, 0xff800000")
    a("s_mov_b32 s33, 0")
    a.label("K2_FB1")
    a(f"ds_read_b128 {vr(KR, 4)}, v1")
    a("v_add_u32 v1, 1024, v1")
    a("s_waitcnt lgkmcnt(0)")
    a(MF32(vr(s0, 16), vr(KR, 4), vr(Q, 4), "0"))
    a("s_nop 11")
    for i in range(0, 16, 2):
        a(f"v_max3_f32 v14, v14, v{s0+i}, v{s0+i+1}")
    a("s_add_u32 s33, s33, 1")
    a("s_cmp_lt_u32 s33, 64")
    a("s_cbranch_scc1 K2_FB1")
    set_negm()
    for i in range(16):
        a(f"v_mov_b32 v{O + i}, 0")
    a("v_mov_b32 v1, v2")
    a("s_mov_b32 s33, 0")
    a.label("K2_FB2")
    a(f"ds_read_b128 {vr(KR, 4)}, v1")
    a("s_mov_b64 exec, s[34:35]")
    a(f"ds_read_b128 {vr(VR, 4)}, v3")
    a(f"ds_read_b128 {vr(VR + 4, 4)}, v3 offset:512")
    a("s_mov_b64 exec, -1")
    a("v_add_u32 v1, 1024, v1")
    a("v_add_u32 v3, 1024, v3")
    a("s_waitcnt lgkmcnt(0)")
    a(MF32(vr(s0, 16), vr(KR, 4), vr(Q, 4), vr(NEGM, 16)))
    a("s_nop 11")
    for i in range(16): a(f"v_exp_f32 v{s0+i}, v{s0+i}")
    a("s_nop 0")
    for i in range(8): a(f"v_cvt_pk_bf16_f32 v{P+i}, v{s0+2*i}, v{s0+2*i+1}")
    a("s_nop 1")
    a(MF32(vr(O, 16), vr(VR, 4), vr(P, 4)))
    a(MF32(vr(O, 16), vr(VR + 4, 4), vr(P + 4, 4)))
    a("s_add_u32 s33, s33, 1")
    a("s_cmp_lt_u32 s33, 64")
    a("s_cbranch_scc1 K2_FB2")
    a("s_nop 11")
    a("s_branch K2_FIN")
    a.label("K2_END")
    a("s_endpgm")
    return n, a, kd(n, 256, 256), (256, 512, 163840)

def k5():
    a = Asm(); n = "k3_down_kernel"
    NS = 112; KS = 28; DEPTH = 8
    kernel_head(a, n)
    ACC = 16; GB = 80; WB = 144; RES = 160
    RED = 65536
    a("s_cmp_ge_u32 s2, 256")
    a("s_cbranch_scc1 K5_END")
    stamp(a, 0)
    a("s_load_dwordx2 s[4:5], s[0:1], 72")
    a("s_load_dwordx4 s[40:43], s[0:1], 48")
    a("v_lshrrev_b32 v1, 6, v0")
    a("v_and_b32 v0, 63, v0")
    a("v_readfirstlane_b32 s22, v1")
    a("v_lshlrev_b32 v2, 4, v0")
    a("s_and_b32 s23, s2, 7")
    a("s_lshl_b32 s23, s23, 2")
    a("s_bfe_u32 s29, s2, 0x20003")
    a("s_add_u32 s23, s23, s29")
    a("s_lshr_b32 s24, s2, 5")
    a("s_and_b32 s25, s22, 1")
    a("s_lshr_b32 s26, s22, 1")
    a("s_lshl_b32 s27, s24, 1")
    a("s_add_u32 s27, s27, s25")
    a("s_lshl_b32 s28, s23, 1")
    a("s_add_u32 s28, s28, s26")
    a(f"s_mul_i32 s29, s22, {KS * 1024}")
    a(f"s_mul_i32 s32, s28, {NS * 1024}")
    a("s_add_u32 s32, s32, s29")
    a(f"s_add_u32 s32, s32, {GF}")
    a("s_xor_b32 s33, s28, 1")
    a(f"s_mul_i32 s33, s33, {NS * 1024}")
    a("s_add_u32 s33, s33, s29")
    a(f"s_add_u32 s33, s33, {GF}")
    a(f"s_mul_i32 s29, s22, {KS * 16384}")
    a("s_lshl_b32 s30, s27, 6")
    a("s_xor_b32 s31, s30, 64")
    a("s_add_u32 s30, s30, s29")
    a("s_add_u32 s31, s31, s29")
    a("s_lshl_b32 s36, s22, 14")
    a("v_lshrrev_b32 v8, 2, v0")
    a("v_lshlrev_b32 v8, 10, v8")
    a("v_and_b32 v1, 3, v0")
    a("v_lshl_add_u32 v8, v1, 4, v8")
    a("s_waitcnt lgkmcnt(0)")
    srd(a, 8, 4, WS_SIZE)
    srd(a, 16, 40, 1792 * 512 * 2)
    srd(a, 12, 42, 2048 * 512 * 2)
    def loads(s):
        b = GB + 8 * (s % DEPTH)
        if s % 4 == 0 and s > 0:
            a("s_add_u32 s32, s32, 4096")
            a("s_add_u32 s33, s33, 4096")
        for i in range(2):
            a(f"s_add_u32 m0, s36, {(s % DEPTH) * 2048 + i * 1024}")
            a(f"s_add_u32 s29, s{30 + i}, {s * 16384}")
            a("buffer_load_dwordx4 v8, s[16:19], s29 offen lds")
        for i in range(2):
            a(f"buffer_load_dwordx4 {vr(b + 4 * i, 4)}, v2, s[8:11], s{32 + i} offen offset:{(s % 4) * 1024}")
    for s in range(DEPTH - 1):
        loads(s)
    a("v_lshrrev_b32 v4, 5, v0")
    a("v_bfe_u32 v1, v0, 2, 2")
    a("v_lshl_add_u32 v9, v4, 2, v1")
    a("v_lshlrev_b32 v9, 6, v9")
    a("v_and_b32 v1, 3, v0")
    a("v_lshl_add_u32 v9, v1, 3, v9")
    a("v_bfe_u32 v1, v0, 4, 1")
    a("v_lshl_add_u32 v9, v1, 5, v9")
    a("v_add_u32 v9, s36, v9")
    a("v_and_b32 v3, 31, v0")
    a("v_lshlrev_b32 v3, 10, v3")
    a("v_lshl_add_u32 v3, v4, 4, v3")
    a("s_lshl_b32 s34, s28, 15")
    a("s_lshl_b32 s35, s27, 6")
    a("s_add_u32 s34, s34, s35")
    a("s_lshl_b32 s35, s28, 15")
    a("s_lshl_b32 s37, s27, 11")
    a("s_add_u32 s35, s35, s37")
    a(f"s_add_u32 s35, s35, {HF}")
    for t in range(1, 4):
        a(f"s_xor_b32 s29, s22, {t}")
        a("s_mul_i32 s29, s29, 12288")
        a(f"s_add_u32 s29, s29, {RED}")
        a(f"v_add_u32 v{4 + t}, s29, v2")
    a("s_mul_i32 s29, s22, 12288")
    a(f"s_add_u32 s29, s29, {RED}")
    a("v_add_u32 v4, s29, v2")
    def trreads(s):
        for i in range(2):
            for e in range(2):
                a(f"ds_read_b64_tr_b16 {vr(WB + 8 * (s % 2) + 4 * i + 2 * e, 2)}, v9 offset:{(s % DEPTH) * 2048 + i * 1024 + e * 512}")
    def mfmas(s):
        g = GB + 8 * (s % DEPTH); w = WB + 8 * (s % 2)
        B0, B1, A0, A1 = vr(g, 4), vr(g + 4, 4), vr(w, 4), vr(w + 4, 4)
        C = "0" if s == 0 else None
        a(MF32(vr(ACC, 16), A0, B0, C))
        a(MF32(vr(ACC + 32, 16), A0, B1, C))
        a(MF32(vr(ACC + 16, 16), A1, B0, C))
        a(MF32(vr(ACC + 48, 16), A1, B1, C))
    issued = DEPTH - 1; res = 0
    a(f"s_waitcnt vmcnt({(issued - 1) * 4})")
    stamp(a, 1)
    trreads(0)
    for s in range(KS):
        if issued < KS:
            loads(issued); issued += 1
            if issued == KS:
                for j in range(2):
                    a(f"buffer_load_dwordx4 {vr(RES + 4 * j, 4)}, v2, s[8:11], s35 offen offset:{j * 1024}")
                res = 2
        if s + 1 < KS:
            a(f"s_waitcnt vmcnt({(issued - s - 2) * 4 + res})")
            trreads(s + 1)
            a("s_waitcnt lgkmcnt(4)")
        else:
            a("s_waitcnt lgkmcnt(0)")
        mfmas(s)
    stamp(a, 2)
    a("s_waitcnt vmcnt(0)")
    a("s_mov_b32 s29, 0xffff0000")
    for i in range(8):
        a(f"v_lshlrev_b32 v{RES + 8 + 2 * i}, 16, v{RES + i}")
        a(f"v_and_b32 v{RES + 9 + 2 * i}, s29, v{RES + i}")
    for t in (2, 1, 3):
        for q in range(4):
            a(f"ds_write_b128 v{4 + t}, {vr(ACC + 16 * t + 4 * q, 4)} offset:{(t - 1) * 4096 + q * 1024}")
    for i in range(16):
        a(f"v_add_f32 v{ACC + i}, v{ACC + i}, v{RES + 8 + i}")
    a("s_waitcnt lgkmcnt(0)")
    a("s_barrier")
    for t in range(3):
        for q in range(4):
            a(f"ds_read_b128 {vr(GB + 16 * t + 4 * q, 4)}, v4 offset:{t * 4096 + q * 1024}")
    for t in range(3):
        a(f"s_waitcnt lgkmcnt({8 - 4 * t})")
        for i in range(0, 16, 2):
            a(f"v_pk_add_f32 {vr(ACC + i, 2)}, {vr(ACC + i, 2)}, {vr(GB + 16 * t + i, 2)}")
    o = ACC + 16
    for i in range(8):
        a(f"v_cvt_pk_bf16_f32 v{o + i}, v{ACC + 2 * i}, v{ACC + 2 * i + 1}")
    a("s_nop 0")
    for j in range(2):
        a(f"v_permlane32_swap_b32 v{o + 4 * j}, v{o + 4 * j + 2}")
        a(f"v_permlane32_swap_b32 v{o + 4 * j + 1}, v{o + 4 * j + 3}")
    for j in range(2):
        a(f"buffer_store_dwordx4 {vr(o + 4 * j, 4)}, v3, s[12:15], s34 offen offset:{j * 32}")
    stamp_end(a, 2, 3, 8)
    a.label("K5_END")
    a("s_endpgm")
    return n, a, kd(n, 192, 192), (256, 256, RED + 49152)

def main(out):
    ks = [k1(), k234(), k5()]
    hdr = open("cdna_kernels/" + NAME + ".s.ref").read().split("\n")
    hdr = [l for l in hdr if l.startswith(";") and "@launch" not in l and "Override" not in l and "grid=ceil" not in l]
    txt = "\n".join(hdr) + "\n"
    for n, a, d, (g, b, lds) in ks:
        txt += f"; @launch kernel={n} grid=({g},1,1) block=({b},1,1) lds={lds}\n"
    txt += '.amdgcn_target "amdgcn-amd-amdhsa--gfx950"\n.text\n'
    bad = 0
    for ki, (n, a, d, _) in enumerate(ks):
        fl = ST_FLAGS[ki]
        if fl:
            a.lines = [l + " " + fl if ("buffer_store_dwordx" in l and "sc1" not in l) else l for l in a.lines]
        bad += check_hazards(a.lines, n)
        txt += a.text()
    txt += "CODE_END:\n"
    txt += '.section .rodata,"a"\n'
    for n, a, d, _ in ks:
        txt += ".p2align 6\n" + d
    open(out, "w").write(txt)
    print("hazards:", bad)

if __name__ == "__main__":
    if "stamp" in sys.argv: STAMP = True
    for arg in sys.argv[2:]:
        if "=" in arg:
            k_, v_ = arg.split("=", 1)
            globals()[k_] = eval(v_)
    main(sys.argv[1] if len(sys.argv) > 1 else "cdna_kernels/" + NAME + ".s")
```

```python
import sys, math, struct
from asmlib import *

NAME = "sequential_preLN__mha_block__geglu_ffn__prompt"

QF, KF, VF, OF, HF = 0x000000, 0x200000, 0x400000, 0x600000, 0x800000
ST  = 0xA00000
CSF = 0xA80000
WOF = 0xB00000
WGF = 0xC00000
WDF = 0x1000000
GF  = 0x1200000
WS_SIZE = 0x10000000
FL2 = 0xB00000
FL3 = 0xB02000

def f32(x):
    return "0x%08x" % struct.unpack("<I", struct.pack("<f", x))[0]

LOG2E = 1.4426950408889634
EPS = 1e-5

def srd(a, s, base, size):
    a(f"s_mov_b32 s{s}, s{base}")
    a(f"s_mov_b32 s{s+1}, s{base+1}")
    a(f"s_mov_b32 s{s+2}, {hex(size)}")
    a(f"s_mov_b32 s{s+3}, 0x00020000")

def kernel_head(a, name):
    a.raw(f".globl {name}")
    a.raw(".p2align 8")
    a.raw(f".type {name},@function")
    a.raw(f"{name}:")

def kd(name, nvgpr, accum, nsgpr=100):
    return f""".amdhsa_kernel {name}
  .amdhsa_next_free_vgpr {nvgpr}
  .amdhsa_next_free_sgpr {nsgpr}
  .amdhsa_accum_offset {accum}
  .amdhsa_group_segment_fixed_size 0
  .amdhsa_kernarg_size 80
  .amdhsa_user_sgpr_count 2
  .amdhsa_user_sgpr_kernarg_segment_ptr 1
  .amdhsa_system_sgpr_workgroup_id_x 1
.end_amdhsa_kernel
"""

STAMP = False
DBGK1 = 0
LD_SC = ''
GSTAMP = 0
G_P2 = 8
GB3 = 12
GA3 = 0
POLL_SLEEP = 6
B_FILL = 4
K2_TCH = 1
G_SC = 'sc1'
CODE_TOUCH = 0
K1_ROT = 1
K1_TW = [-1, 0, 1]
K4_SL = 26
K2_S3 = 11
K2_WD = 0
K1_D = 1
K4_D = 2
K4_XB = 12
K4_TOUCH = 1
K2_S2 = 4
K1_TOUCH = 1
ST_FLAGS = ['', '', '', '', '']
K2_Y = 28
SIDE_SC = 'sc1'
K1_UP = 14
K4_UP = 22
DBGOFF = 0x2000000
def stamp(a, i):
    if not STAMP: return
    a(f"s_memrealtime s[{64 + 4 * i}:{65 + 4 * i}]")
    a(f"s_memtime s[{66 + 4 * i}:{67 + 4 * i}]")
    if i != 0:
        a("s_waitcnt lgkmcnt(0)")
def stamp_end(a, kidx, n, srdreg, wavereg=22):
    if not STAMP: return
    a("s_waitcnt vmcnt(0)")
    stamp(a, n)
    a("s_lshl_b32 s60, s2, 3")
    a(f"s_add_u32 s60, s60, s{wavereg}")
    a("s_lshl_b32 s60, s60, 6")
    a(f"s_add_u32 s60, s60, {DBGOFF + kidx * 0x40000}")
    a("v_mov_b32 v0, 0")
    for j in range(2 * n + 2):
        a(f"v_mov_b32 v1, s{64 + 2 * j}")
        a(f"buffer_store_dword v1, v0, s[{srdreg}:{srdreg+3}], s60 offen offset:{4 * j}")

def MF32(d, A, B, C=None):
    C = d if C is None else C
    return f"v_mfma_f32_32x32x16_bf16 {d}, {A}, {B}, {C}"

def halfsum(a, v, t):
    a(f"v_mov_b32 v{t}, v{v}")
    a("s_nop 1")
    a(f"v_permlane32_swap_b32 v{v}, v{t}")
    a(f"v_add_f32 v{v}, v{v}, v{t}")


def k1():
    a = Asm(); n = "k1_qkv_kernel"
    kernel_head(a, n)
    SLOT = 28672; SCR = 5 * SLOT; SCR2 = SCR + 1536; SCR3 = SCR2 + 512
    D = K1_D
    a("s_cmp_ge_u32 s2, 256")
    a("s_cbranch_scc1 K1_END")
    stamp(a, 0)
    if DBGK1:
        a("s_memrealtime s[64:65]")
        a("s_memtime s[66:67]")
    a("s_load_dwordx4 s[4:7], s[0:1], 0")
    a("s_load_dwordx2 s[20:21], s[0:1], 72")
    a("v_lshrrev_b32 v1, 6, v0")
    a("v_and_b32 v0, 63, v0")
    a("v_readfirstlane_b32 s35, v1")
    a("s_and_b32 s23, s2, 3")
    a("s_lshl_b32 s23, s23, 2")
    a("s_bfe_u32 s29, s2, 0x20003")
    a("s_add_u32 s23, s23, s29")
    a("s_bfe_u32 s24, s2, 0x10002")
    a("s_lshl_b32 s24, s24, 3")
    a("s_lshr_b32 s29, s2, 5")
    a("s_add_u32 s24, s24, s29")
    a("s_and_b32 s22, s35, 3")
    a("s_lshl_b32 s27, s22, 12")
    a("s_lshl_b32 s40, s2, 1")
    a("s_and_b32 s29, s2, 4")
    a("s_add_u32 s40, s40, s29")
    if not K1_ROT: a("s_mov_b32 s40, 0")
    a("s_cmp_lt_u32 s35, 4")
    a("s_cbranch_scc1 K1_RDADDR")
    a("s_lshl_b32 s25, s23, 17")
    a("s_lshl_b32 s29, s22, 15")
    a("s_add_u32 s25, s25, s29")
    a("s_mul_i32 s26, s22, 49152")
    a("s_lshl_b32 s29, s24, 6")
    a("s_add_u32 s26, s26, s29")
    a("s_lshl_b32 s28, s22, 10")
    a("s_add_u32 s28, s28, 16384")
    a("s_mov_b32 s30, 0x3f803f80")
    a("v_lshrrev_b32 v5, 3, v0")
    a("v_lshlrev_b32 v2, 10, v5")
    a("v_and_b32 v6, 7, v0")
    a("v_lshrrev_b32 v7, 4, v0")
    a("v_xor_b32 v6, v6, v7")
    a("v_lshl_add_u32 v2, v6, 4, v2")
    a("v_xor_b32 v3, 64, v2")
    a("v_add_u32 v3, 8192, v3")
    a("v_lshrrev_b32 v5, 2, v0")
    a("v_mul_u32_u24 v4, 3072, v5")
    a("v_and_b32 v6, 3, v0")
    a("v_lshl_add_u32 v4, v6, 4, v4")
    a("s_waitcnt lgkmcnt(0)")
    srd(a, 8, 4, 2048 * 512 * 2)
    srd(a, 12, 6, 512 * 1536 * 2)
    def dma(c):
        slot = (c % 5) * SLOT
        a(f"s_add_u32 s41, s40, {c}")
        a("s_and_b32 s41, s41, 7")
        a("s_lshl_b32 s42, s41, 7")
        a("s_add_u32 s42, s42, s25")
        a(f"s_mul_i32 s41, s41, {64 * 3072}")
        a("s_add_u32 s41, s41, s26")
        for p in range(3):
            a(f"s_add_u32 m0, s28, {slot + p * 4096}")
            a(f"s_add_u32 s29, s41, {p * 1024}")
            a(f"buffer_load_dwordx4 v4, s[12:15], s29 offen lds")
        for i in range(4):
            a(f"s_add_u32 m0, s27, {slot + i * 1024}")
            a(f"s_add_u32 s29, s42, {(i // 2) * 16384}")
            a(f"buffer_load_dwordx4 v{2 + (i % 2)}, s[8:11], s29 offen lds")
    for c in range(D + 1):
        dma(c)
    a.label("K1_RDADDR")
    a("v_and_b32 v5, 31, v0")
    a("v_lshrrev_b32 v6, 5, v0")
    a("v_bfe_u32 v7, v0, 1, 3")
    a("v_xor_b32 v7, v7, v6")
    a("v_lshlrev_b32 v5, 7, v5")
    a("v_add_u32 v5, s27, v5")
    for s in range(4):
        a(f"v_xor_b32 v1, {2 * s}, v7")
        a(f"v_lshl_add_u32 v{8 + s}, v1, 4, v5")
        a(f"v_add_u32 v{12 + s}, {2 * SLOT}, v{8 + s}")
        a(f"v_add_u32 v{16 + s}, {4 * SLOT}, v{8 + s}")
    a("v_bfe_u32 v1, v0, 2, 2")
    a("v_lshl_add_u32 v1, v6, 3, v1")
    a("v_lshlrev_b32 v20, 6, v1")
    a("v_bfe_u32 v1, v0, 4, 1")
    a("v_lshl_add_u32 v20, v1, 5, v20")
    a("v_and_b32 v1, 3, v0")
    a("v_lshl_add_u32 v20, v1, 3, v20")
    a("s_cmp_lt_u32 s35, 4")
    a("s_cbranch_scc1 K1_MM")
    a("s_lshl_b32 s29, s22, 10")
    a("v_add_u32 v20, s29, v20")
    a(f"v_add_u32 v21, {2 * SLOT}, v20")
    a(f"v_add_u32 v22, {4 * SLOT}, v20")
    for i in range(28, 31):
        a(f"v_mov_b32 v{i}, 0")
    WB = 48
    for c in range(8):
        slot = c % 5; st = slot // 2; off = (slot % 2) * SLOT
        a(f"s_waitcnt vmcnt({7 * (min(c + D, 7) - c)})")
        a("s_barrier")
        for p in range(3):
            for u in range(2):
                a(f"ds_read_b64_tr_b16 {vr(WB + 4 * p + 2 * u, 2)}, v{20 + st} offset:{off + 16384 + p * 4096 + u * 256}")
        if c + D + 1 < 8:
            dma(c + D + 1)
        a("s_waitcnt lgkmcnt(0)")
        for i in range(4):
            for p in range(3):
                a(f"v_dot2c_f32_bf16 v{28 + p}, s30, v{WB + 4 * p + i}")
    a("v_and_b32 v5, 31, v0")
    a("v_lshlrev_b32 v6, 4, v5")
    a("s_lshl_b32 s29, s22, 2")
    a(f"s_add_u32 s29, s29, {SCR}")
    a("v_add_u32 v7, s29, v6")
    for p in range(3):
        halfsum(a, 28 + p, 1)
        a(f"ds_write_b32 v7, v{28 + p} offset:{p * 512}")
    a("s_waitcnt lgkmcnt(0)")
    a("s_barrier")
    a("s_endpgm")
    a.label("K1_MM")
    if CODE_TOUCH:
        a("s_getpc_b64 s[44:45]")
        a.label("K1_PC")
        a("s_sub_u32 s44, s44, K1_PC-k1_qkv_kernel")
        a("s_subb_u32 s45, s45, 0")
        a("s_lshl_b32 s46, s22, 13")
        a("v_lshlrev_b32 v23, 7, v0")
        a("v_add_u32 v23, s46, v23")
        for i in range(CODE_TOUCH):
            a("v_min_u32 v24, CODE_END-k1_qkv_kernel-4, v23")
            a("global_load_dword v31, v24, s[44:45]")
            a("v_add_u32 v23, 32768, v23")
    a(f"v_add_u32 v21, {2 * SLOT}, v20")
    a(f"v_add_u32 v22, {4 * SLOT}, v20")
    a("s_mov_b32 s30, 0x3f803f80")
    for i in range(24, 28):
        a(f"v_mov_b32 v{i}, 0")
    a("v_and_b32 v5, 31, v0")
    a("v_lshlrev_b32 v6, 4, v5")
    a(f"v_add_u32 v6, {SCR}, v6")
    a("s_lshl_b32 s29, s22, 7")
    a(f"s_add_u32 s29, s29, {SCR2}")
    a("v_lshlrev_b32 v7, 2, v5")
    a("v_add_u32 v7, s29, v7")
    a("v_lshrrev_b32 v1, 5, v0")
    a("v_lshlrev_b32 v1, 4, v1")
    a("v_add_u32 v1, s29, v1")
    a("s_lshl_b32 s29, s23, 2")
    a("s_add_u32 s29, s29, s22")
    a("s_lshl_b32 s29, s29, 10")
    a("s_lshl_b32 s31, s24, 17")
    a("s_add_u32 s29, s29, s31")
    a("s_add_u32 s31, s29, 65536")
    a(f"s_add_u32 s32, s29, {KF}")
    a(f"s_add_u32 s33, s29, {KF + 65536}")
    a(f"s_add_u32 s34, s29, {VF}")
    a("v_lshlrev_b32 v2, 4, v0")
    a("v_bfe_u32 v3, v0, 4, 1")
    a("v_lshlrev_b32 v3, 16, v3")
    a("v_lshrrev_b32 v4, 5, v0")
    a("v_lshl_add_u32 v3, v4, 8, v3")
    a("v_and_b32 v4, 15, v0")
    a("v_lshl_add_u32 v3, v4, 4, v3")
    a("s_waitcnt lgkmcnt(0)")
    srd(a, 16, 20, WS_SIZE)
    a("s_cmp_ge_u32 s2, 3")
    a("s_cbranch_scc1 K1_NZ")
    a("s_lshl_b32 s36, s2, 2")
    a("s_add_u32 s36, s36, s22")
    a("s_lshl_b32 s36, s36, 10")
    a(f"s_add_u32 s36, s36, {FL2}")
    a("buffer_store_dwordx4 v[24:27], v2, s[16:19], s36 offen")
    a.label("K1_NZ")
    TQ = {}
    if K1_TOUCH:
        srd(a, 8, 4, 2048 * 512 * 2)
        a("s_lshr_b32 s37, s2, 3")
        a("v_and_b32 v28, 3, v0")
        a("s_mov_b32 s39, 256")
        a("s_and_b32 s36, s2, 3")
        a("s_lshl_b32 s36, s36, 19")
        a("s_lshl_b32 s38, s37, 14")
        a("s_add_u32 s36, s36, s38")
        a("v_bfe_u32 v23, v0, 1, 4")
        a("v_lshlrev_b32 v23, 10, v23")
        a("v_and_b32 v29, 1, v0")
        a("v_lshl_add_u32 v23, v29, 7, v23")
        a("s_cmp_lg_u32 s22, 0")
        a("s_cbranch_scc1 K1_TD")
        srd(a, 8, 6, 512 * 1536 * 2)
        a(f"s_mov_b32 s39, {128 * 3072}")
        a("s_mul_i32 s36, s37, 12288")
        a("s_bfe_u32 s38, s2, 0x10002")
        a("s_lshl_b32 s38, s38, 9")
        a("s_add_u32 s36, s36, s38")
        a("v_lshrrev_b32 v23, 4, v0")
        a("v_mul_u32_u24 v23, 3072, v23")
        a("v_bfe_u32 v30, v0, 2, 2")
        a("v_min_u32 v30, 2, v30")
        a("v_lshl_add_u32 v23, v30, 10, v23")
        a("v_lshl_add_u32 v23, v28, 7, v23")
        a.label("K1_TD")
        def touch(n_):
            return ["s_cmp_ge_u32 s22, 2", f"s_cbranch_scc1 K1_TS{n_}",
                    "s_lshr_b32 s38, s40, 1", f"s_add_u32 s38, s38, {n_ + 1}", "s_and_b32 s38, s38, 3",
                    "s_mul_i32 s38, s38, s39", "s_add_u32 s38, s38, s36",
                    "buffer_load_dword v31, v23, s[8:11], s38 offen", f"K1_TS{n_}:"]
        for n_, when in enumerate(K1_TW):
            if when < 0:
                for x in touch(n_): a(x)
            else:
                TQ.setdefault(when, []).extend(touch(n_))
    ACC = 32
    def xf(ks): return 80 + (ks % 8) * 4
    def wf(ks, p): return 112 + (ks % 3) * 12 + p * 4
    def reads(ks):
        c, s = ks // 4, ks % 4
        slot = c % 5; st = slot // 2; off = (slot % 2) * SLOT
        out = [f"ds_read_b128 {vr(xf(ks), 4)}, v{8 + 4 * st + s} offset:{off}"]
        for p in range(3):
            for u in range(2):
                out.append(f"ds_read_b64_tr_b16 {vr(wf(ks, p) + 2 * u, 2)}, v{20 + st} offset:{off + 16384 + p * 4096 + s * 1024 + u * 256}")
        return out
    def mfmas(ks):
        X = vr(xf(ks), 4); out = []
        for p in range(3):
            D_ = vr(ACC + 16 * p, 16); W = vr(wf(ks, p), 4)
            A, B = (W, X) if p < 2 else (X, W)
            out.append(MF32(D_, A, B, "0" if ks == 0 else None))
        return out
    def dots(k0, k1_):
        for ks in range(k0, k1_):
            for i in range(4):
                a(f"v_dot2c_f32_bf16 v{24 + i % 2}, s30, v{xf(ks) + i}")
                a(f"v_dot2c_f32_bf16 v{26 + i % 2}, v{xf(ks) + i}, v{xf(ks) + i}")
    a("s_barrier")
    stamp(a, 1)
    for r in reads(0) + reads(1): a(r)
    for x in TQ.get(0, []): a(x)
    for ks in range(32):
        c, s = ks // 4, ks % 4
        M = mfmas(ks); R = reads(ks + 2) if ks + 2 < 32 else []
        if s == 2:
            dots(max(ks - 3, 0), ks)
            a("s_waitcnt lgkmcnt(0)")
            dots(ks, ks + 1)
            if c == 7: dots(ks + 1, ks + 2)
            a(M[0])
            if c < 7:
                a("s_barrier")
                if c < 5: stamp(a, 2 + c)
                for x in TQ.get(c + 1, []): a(x)
        else:
            a(f"s_waitcnt lgkmcnt({7 if ks < 31 else 0})")
            a(M[0])
        E = []
        if ks >= 30:
            if ks == 30:
                E = ["v_add_f32 v24, v24, v25", "v_add_f32 v26, v26, v27", "v_mov_b32 v25, v24", "v_mov_b32 v27, v26", "s_nop 0",
                     "v_permlane32_swap_b32 v24, v25", "v_permlane32_swap_b32 v26, v27", "v_add_f32 v24, v24, v25", "v_add_f32 v26, v26, v27",
                     f"v_mul_f32 v24, {f32(1/512)}, v24", f"v_mul_f32 v26, {f32(1/512)}, v26", "v_fma_f32 v26, -v24, v24, v26",
                     "v_max_f32 v26, 0, v26", f"v_add_f32 v26, {f32(EPS)}, v26", "v_rsq_f32 v26, v26"]
                E = ["s_nop 1"] + E
            else:
                E = ["ds_write_b32 v7, v26", "v_mul_f32 v24, -0.5, v24", "v_cvt_pk_bf16_f32 v25, v24, v24", "v_lshlrev_b32 v25, 16, v25",
                     "v_sub_f32 v27, v24, v25", "v_cvt_pk_bf16_f32 v148, v25, v27", "v_mov_b32 v150, 0", "v_mov_b32 v151, 0",
                     "v_mov_b32 v149, v148", f"v_mul_f32 v28, {f32(0.25 * LOG2E)}, v26", "v_mov_b32 v27, v26", "v_mov_b32 v29, v28"]
            R = E
            n3 = (len(R) + 2) // 3
        else:
            n3 = 3
        for r in R[:n3]: a(r)
        a(M[1])
        for r in R[n3:2 * n3]: a(r)
        a(M[2])
        for r in R[2 * n3:]: a(r)
    a("s_waitcnt lgkmcnt(0)")
    a("s_barrier")
    for p in range(3):
        a(f"ds_read_b128 {vr(80 + 4 * p, 4)}, v6 offset:{p * 512}")
    for g in range(4):
        a(f"ds_read_b128 {vr(96 + 4 * g, 4)}, v1 offset:{g * 32}")
    CF = 152
    for p in range(3):
        a(f"v_mov_b32 v{CF + 4 * p + 2}, 0")
        a(f"v_mov_b32 v{CF + 4 * p + 3}, 0")
    for p in range(3):
        b = 80 + 4 * p; f = CF + 4 * p
        a(f"s_waitcnt lgkmcnt({6 - p})")
        a(f"v_add_f32 v{b}, v{b}, v{b+1}")
        a(f"v_add_f32 v{b+2}, v{b+2}, v{b+3}")
        a(f"v_add_f32 v{b}, v{b}, v{b+2}")
        a(f"v_cvt_pk_bf16_f32 v{f}, v{b}, v{b}")
        a(f"v_lshlrev_b32 v{b+1}, 16, v{f}")
        a(f"v_sub_f32 v{b+1}, v{b}, v{b+1}")
        a(f"v_cvt_pk_bf16_f32 v{f+1}, v{b+1}, v{b+1}")
        if p >= 1:
            q = p - 1
            a(MF32(vr(ACC + 16 * q, 16), vr(CF + 4 * q, 4), vr(148, 4)))
    a("s_waitcnt lgkmcnt(0)")
    a("s_nop 0")
    a(MF32(vr(ACC + 32, 16), vr(148, 4), vr(CF + 8, 4)))
    a("s_nop 1")
    for p in range(3):
        b = ACC + 16 * p; o = 112 + 8 * p
        for i in range(0, 16, 2):
            sc = "v[28:29]" if p == 0 else "v[26:27]" if p == 1 else vr(96 + i, 2)
            a(f"v_pk_mul_f32 {vr(b + i, 2)}, {sc}, {vr(b + i, 2)}")
        for i in range(8):
            a(f"v_cvt_pk_bf16_f32 v{o+i}, v{b+2*i}, v{b+2*i+1}")
        if p < 2:
            a(f"buffer_store_dwordx4 {vr(o, 4)}, v2, s[16:19], s{29 if p == 0 else 32} offen")
            a(f"buffer_store_dwordx4 {vr(o + 4, 4)}, v2, s[16:19], s{31 if p == 0 else 33} offen")
        else:
            a(f"buffer_store_dwordx4 {vr(o, 4)}, v3, s[16:19], s34 offen")
            a(f"buffer_store_dwordx4 {vr(o + 4, 4)}, v3, s[16:19], s34 offen offset:512")
    stamp_end(a, 0, 7, 16)
    if DBGK1:
        a("s_waitcnt vmcnt(0)")
        a("s_memrealtime s[68:69]")
        a("s_memtime s[70:71]")
        a("s_waitcnt lgkmcnt(0)")
        a("s_sub_u32 s70, s70, s66")
        a("s_cmp_lg_u32 s2, 0")
        a("s_cbranch_scc1 K1_END")
        a(f"s_mov_b32 s74, {DBGOFF}")
        a("v_mov_b32 v0, 0")
        a("v_mov_b32 v2, s64")
        a("v_mov_b32 v3, s68")
        a("v_mov_b32 v4, s70")
        a("buffer_store_dwordx3 v[2:4], v0, s[16:19], s74 offen")
    a.label("K1_END")
    a("s_endpgm")
    return n, a, kd(n, 168, 168), (256, 512, SCR3 + 512)


def k234():
    a = Asm(); n = "k2_mid_kernel"
    kernel_head(a, n)
    Q = 4; NEGM = 16; S = [32, 48]; O = 64; P = 80; KR = 88; VR = 100; W = 128
    SCR = 131072
    K1C = 2 * math.sqrt(2 / math.pi) * LOG2E
    vm = []
    def V(ins, tag=None):
        a(ins); vm.append(tag)
    def vmwait(tag, extra=""):
        idx = max(i for i, t in enumerate(vm) if t == tag)
        a(f"s_waitcnt vmcnt({len(vm) - 1 - idx}){extra}")
    a("s_cmp_ge_u32 s2, 256")
    a("s_cbranch_scc1 K2_END")
    stamp(a, 0)
    if DBGK1:
        a("s_memrealtime s[64:65]")
        a("s_memtime s[66:67]")
    a("s_load_dwordx2 s[4:5], s[0:1], 72")
    a("s_load_dwordx4 s[40:43], s[0:1], 32")
    a("s_load_dwordx2 s[44:45], s[0:1], 16")
    a("s_load_dwordx2 s[46:47], s[0:1], 0")
    a("s_load_dwordx2 s[48:49], s[0:1], 48")
    a("v_lshrrev_b32 v1, 6, v0")
    a("v_and_b32 v0, 63, v0")
    a("v_readfirstlane_b32 s22, v1")
    a("s_and_b32 s23, s2, 7")
    a("s_lshl_b32 s23, s23, 2")
    a("s_bfe_u32 s29, s2, 0x20003")
    a("s_add_u32 s23, s23, s29")
    a("s_lshr_b32 s24, s2, 5")
    a("s_lshl_b32 s25, s23, 16")
    a("v_lshlrev_b32 v2, 4, v0")
    a("s_lshl_b32 s26, s22, 10")
    a("s_add_u32 s27, s25, s26")
    a("s_lshl_b32 s28, s24, 13")
    a("s_add_u32 s28, s28, s27")
    a(f"s_add_u32 s27, s27, {KF}")
    a("s_mov_b32 m0, s26")
    a(f"s_add_u32 s30, s27, {VF - KF}")
    a("s_waitcnt lgkmcnt(0)")
    srd(a, 8, 4, WS_SIZE)
    V("buffer_load_dwordx4 v2, s[8:11], s27 offen lds", "c0")
    V(f"buffer_load_dwordx4 {vr(Q, 4)}, v2, s[8:11], s28 offen", "c0")
    a("s_add_u32 m0, s26, 65536")
    a("s_nop 0")
    V("buffer_load_dwordx4 v2, s[8:11], s30 offen lds", "c0")
    def kvdma(c, isv):
        a(f"s_add_u32 m0, s26, {c * 8192 + isv * 65536}")
        a(f"s_add_u32 s29, s27, {c * 8192 + isv * (VF - KF)}")
        V("buffer_load_dwordx4 v2, s[8:11], s29 offen lds", f"c{c}")
    kvdma(1, 0); kvdma(1, 1)
    a("s_and_b32 s36, s2, 3")
    a("s_lshl_b32 s36, s36, 2")
    a("s_bfe_u32 s29, s2, 0x20003")
    a("s_add_u32 s36, s36, s29")
    a("s_bfe_u32 s37, s2, 0x10002")
    a("s_lshl_b32 s37, s37, 3")
    a("s_add_u32 s37, s37, s24")
    a("s_min_u32 s38, s22, 6")
    a("s_mul_i32 s39, s37, 7")
    a("s_add_u32 s39, s39, s38")
    a("s_lshl_b32 s54, s39, 5")
    srd(a, 12, 40, 512 * 1792 * 2)
    srd(a, 16, 42, 512 * 1792 * 2)
    a("s_lshl_b32 s55, s22, 12")
    a(f"s_add_u32 s55, s55, {SCR}")
    a("v_lshrrev_b32 v8, 1, v0")
    a("v_mul_u32_u24 v8, 3584, v8")
    a("v_and_b32 v1, 1, v0")
    a("v_lshl_add_u32 v8, v1, 4, v8")
    a("v_lshrrev_b32 v11, 5, v0")
    a("v_bfe_u32 v1, v0, 2, 2")
    a("v_lshl_add_u32 v10, v11, 2, v1")
    a("v_lshlrev_b32 v9, 5, v10")
    a("v_and_b32 v1, 3, v0")
    a("v_lshl_add_u32 v9, v1, 3, v9")
    a("v_bfe_u32 v1, v0, 4, 1")
    a("v_lshl_add_u32 v9, v1, 10, v9")
    a("v_add_u32 v9, s55, v9")
    a("v_and_b32 v12, 15, v0")
    a("v_lshl_add_u32 v12, v11, 4, v12")
    a("v_lshlrev_b32 v12, 4, v12")
    a("v_add_u32 v3, 65536, v12")
    a("s_mov_b32 s34, 0x0000ffff")
    a("s_mov_b32 s35, 0x0000ffff")
    a(f"s_mov_b32 s50, {f32(2.0**60)}")
    for i in range(24):
        a(f"v_mov_b32 v{VR + i}, 0x3f803f80")
    for i in range(16):
        a(f"v_mov_b32 v{O + i}, 0")
    for i in range(4, 8):
        a(f"v_mov_b32 v{P + i}, 0")
    def kread(t): return f"ds_read_b128 {vr(KR + 4 * (t % 3), 4)}, v2 offset:{t * 1024}"
    def vread(t):
        return ["s_mov_b64 exec, s[34:35]"] + \
               [f"ds_read_b128 {vr(VR + 8 * (t % 3) + 4 * j, 4)}, v3 offset:{t * 1024 + j * 512}" for j in range(2)] + \
               ["s_mov_b64 exec, -1"]
    vmwait("c0")
    a("s_barrier")
    a(kread(0)); a(kread(1))
    for x in vread(0): a(x)
    a(kread(2))
    for x in vread(1): a(x)
    a("s_waitcnt lgkmcnt(6)")
    s0 = S[0]
    a(MF32(vr(s0, 16), vr(KR, 4), vr(Q, 4), "0"))
    a("s_nop 11")
    for i in range(5):
        a(f"v_max3_f32 v{NEGM + i}, v{s0+3*i}, v{s0+3*i+1}, v{s0+3*i+2}")
    a(f"v_max3_f32 v14, v{NEGM}, v{NEGM+1}, v{s0+15}")
    a(f"v_max3_f32 v15, v{NEGM+2}, v{NEGM+3}, v{NEGM+4}")
    a("v_max_f32 v14, v14, v15")
    def set_negm():
        a("v_mov_b32 v15, v14")
        a("s_nop 1")
        a("v_permlane32_swap_b32 v14, v15")
        a("v_max_f32 v14, v14, v15")
        for i in range(16):
            a(f"v_sub_f32 v{NEGM + i}, 0, v14")
        a("s_nop 1")
    set_negm()
    a(MF32(vr(S[0], 16), vr(KR, 4), vr(Q, 4), vr(NEGM, 16)))
    a("s_nop 8")
    T0 = 12
    cnt = [0]
    def b(ins):
        if K2_Y:
            if cnt[0] == 0: a("s_setprio 0")
            if cnt[0] == K2_Y: a("s_setprio 1")
        cnt[0] += 1
        a(ins)
    for t in range(64):
        if t % 4 == 0: cnt[0] = 0
        Sc = S[t % 2]; Sn = S[(t + 1) % 2]
        E = lambda i: b(f"v_exp_f32 v{Sc+i}, v{Sc+i}")
        C = lambda i: b(f"v_cvt_pk_bf16_f32 v{P+i}, v{Sc+2*i}, v{Sc+2*i+1}")
        if t == 5: vmwait("c1"); a("s_barrier")
        if t == 13: vmwait("c5"); a("s_barrier")
        if t == 24: vmwait("c7"); a("s_barrier")
        nrd = lambda u: (1 if u + 3 < 64 else 0) + (2 if u + 2 < 64 else 0)
        b(f"s_waitcnt lgkmcnt({nrd(t - 1) if t > 0 else 3})")
        if t < 63:
            b(MF32(vr(Sn, 16), vr(KR + 4 * ((t + 1) % 3), 4), vr(Q, 4), vr(NEGM, 16)))
        for i in range(5): E(i)
        b(MF32(vr(O, 16), vr(VR + 8 * ((t - 1) % 3) + 4, 4), vr(P + 4, 4)))
        u, ph = divmod(t - T0 - 5, 3)
        if t >= T0 + 5 and ph == 0 and u < 16:
            vmwait(f"w{u}")
            for s in range(2):
                for e in range(2):
                    a(f"ds_read_b64_tr_b16 {vr(W + 8 * u + 4 * s + 2 * e, 2)}, v9 offset:{(u % 2) * 2048 + s * 512 + e * 256}")
        if t + 3 < 64: b(kread(t + 3))
        if t + 2 < 64:
            for x in vread(t + 2): b(x)
        for i in range(5, 8): E(i)
        for i in range(4): C(i)
        E(8); E(9)
        b(MF32(vr(O, 16), vr(VR + 8 * (t % 3), 4), vr(P, 4)))
        if t < 12: kvdma(2 + t // 2, t % 2)
        u, ph = divmod(t - T0, 3)
        if t >= T0 and ph == 0 and u < 16:
            a(f"s_add_u32 m0, s55, {(u % 2) * 2048}")
            a(f"s_add_u32 s29, s54, {u * 32 * 3584}")
            V("buffer_load_dwordx4 v8, s[12:15], s29 offen lds", f"w{u}")
            a(f"s_add_u32 m0, s55, {(u % 2) * 2048 + 1024}")
            a("s_nop 0")
            V("buffer_load_dwordx4 v8, s[16:19], s29 offen lds", f"w{u}")
        if t == 59 and K2_TCH:
            a("s_lshr_b32 s29, s2, 3")
            a("s_lshl_b32 s29, s29, 14")
            a("s_lshl_b32 s31, s22, 11")
            a("s_add_u32 s29, s29, s31")
            srd(a, 56, 44, 512 * 512 * 2)
            a("v_and_b32 v12, 15, v0")
            a("v_lshlrev_b32 v12, 7, v12")
            V("buffer_load_dword v124, v12, s[56:59], s29 offen", "tch")
        for i in range(10, 16): E(i)
        for i in range(4, 8): C(i)
    a("s_setprio 0")
    a("s_lshl_b32 s29, s24, 3")
    a("s_add_u32 s29, s29, s22")
    a(MF32(vr(O, 16), vr(VR + 8 * (63 % 3) + 4, 4), vr(P + 4, 4)))
    a("s_lshl_b32 s31, s29, 7")
    a("s_lshl_b32 s30, s23, 2")
    a("s_add_u32 s31, s31, s30")
    a(f"s_add_u32 s31, s31, {FL2}")
    a("s_lshl_b32 s29, s29, 15")
    a("s_lshl_b32 s30, s23, 10")
    a("s_add_u32 s29, s29, s30")
    a(f"s_add_u32 s29, s29, {OF}")
    a("v_mov_b32 v12, 0")
    a("v_mov_b32 v13, 1")
    a("s_waitcnt lgkmcnt(0)")
    a("s_nop 0")
    a(f"v_cmp_gt_f32 vcc, s50, v{O + 8}")
    a("s_nop 1")
    a("s_cmp_eq_u64 vcc, -1")
    a("s_cbranch_scc0 K2_FALLBACK")
    a.label("K2_FIN")
    a(f"v_rcp_f32 v14, v{O + 8}")
    a("s_nop 0")
    for i in range(8):
        a(f"v_mul_f32 v{O+i}, v14, v{O+i}")
    for i in range(4):
        a(f"v_cvt_pk_bf16_f32 v{P+i}, v{O+2*i}, v{O+2*i+1}")
    a(f"buffer_store_dwordx4 {vr(P, 4)}, v2, s[8:11], s29 offen sc1")
    stamp(a, 1)
    srd(a, 12, 44, 512 * 512 * 2)
    srd(a, 16, 46, 2048 * 512 * 2)
    a("s_and_b32 s25, s22, 1")
    a("s_bfe_u32 s26, s22, 0x10001")
    a("s_lshr_b32 s27, s22, 2")
    a("s_lshl_b32 s28, s24, 1")
    a("s_add_u32 s28, s28, s25")
    a("s_lshl_b32 s30, s23, 1")
    a("s_add_u32 s30, s30, s26")
    a("v_lshrrev_b32 v8, 2, v0")
    a("v_lshlrev_b32 v8, 10, v8")
    a("v_and_b32 v1, 3, v0")
    a("v_lshl_add_u32 v8, v1, 4, v8")
    a("v_lshlrev_b32 v9, 6, v10")
    a("v_lshl_add_u32 v9, v1, 3, v9")
    a("v_bfe_u32 v1, v0, 4, 1")
    a("v_lshl_add_u32 v9, v1, 5, v9")
    a("s_lshl_b32 s32, s25, 15")
    a("s_lshl_b32 s33, s27, 14")
    a("s_add_u32 s32, s32, s33")
    a("v_add_u32 v9, s32, v9")
    a("v_and_b32 v3, 31, v0")
    a("v_lshlrev_b32 v3, 10, v3")
    a("v_lshl_add_u32 v3, v11, 4, v3")
    a("s_lshl_b32 s51, s30, 15")
    a("s_lshl_b32 s33, s28, 6")
    a("s_add_u32 s51, s51, s33")
    RES = 112
    a("s_waitcnt vmcnt(0)")
    a("s_mov_b64 exec, 1")
    a("buffer_store_dword v13, v12, s[8:11], s31 offen sc1")
    a("s_mov_b64 exec, -1")
    for j in range(2):
        a(f"buffer_load_dwordx4 {vr(RES + 4 * j, 4)}, v3, s[16:19], s51 offen offset:{j * 32}")
    a("s_barrier")
    a("s_lshl_b32 s33, s26, 13")
    a("s_add_u32 s52, s32, s33")
    a("s_lshl_b32 s53, s27, 1")
    a("s_add_u32 s53, s53, s26")
    a("s_lshl_b32 s53, s53, 17")
    a("s_lshl_b32 s33, s28, 6")
    a("s_add_u32 s53, s53, s33")
    for i in range(8):
        a(f"s_add_u32 m0, s52, {i * 1024}")
        a(f"s_add_u32 s29, s53, {i * 16384}")
        a("buffer_load_dwordx4 v8, s[12:15], s29 offen lds")
    def poll(lbl, sreg):
        a("v_lshlrev_b32 v14, 2, v0")
        a("s_mov_b32 s33, 0")
        a.label(lbl)
        if POLL_SLEEP: a(f"s_sleep {POLL_SLEEP}")
        a(f"buffer_load_dword v15, v14, s[8:11], s{sreg} offen sc1")
        a("s_add_u32 s33, s33, 1")
        a("s_waitcnt vmcnt(0)")
        a("v_cmp_eq_u32 vcc, 1, v15")
        a("s_cmp_gt_u32 s33, 0x40000")
        a(f"s_cbranch_scc1 {lbl}_X")
        a("s_cmp_eq_u64 vcc, -1")
        a(f"s_cbranch_scc0 {lbl}")
        a.label(f"{lbl}_X")
    a("s_cmp_eq_u32 s22, 7")
    a("s_cbranch_scc1 K2_POLL2")
    a("s_mov_b32 s29, 0x3f803f80")
    for i in range(4): a(f"v_mov_b32 v{124 + i}, 0")
    for i in range(128):
        a(f"v_dot2c_f32_bf16 v{124 + i % 4}, s29, v{W + i}")
    a("s_nop 2")
    a("v_add_f32 v124, v124, v125")
    a("v_add_f32 v126, v126, v127")
    a("v_add_f32 v126, v124, v126")
    a("v_cvt_pk_bf16_f32 v124, v126, v126")
    a("v_lshlrev_b32 v125, 16, v124")
    a("v_sub_f32 v125, v126, v125")
    a("v_cvt_pk_bf16_f32 v125, v125, v125")
    a("v_mov_b32 v126, 0")
    a("v_mov_b32 v127, 0")
    a("s_branch K2_B2")
    a.label("K2_POLL2")
    a("s_lshl_b32 s29, s23, 8")
    a(f"s_add_u32 s29, s29, {FL2}")
    poll("K2_P2", 29)
    a.label("K2_B2")
    a("s_waitcnt vmcnt(0)")
    a("s_barrier")
    stamp(a, 2)
    a("s_lshl_b32 s29, s25, 15")
    a("s_lshl_b32 s33, s26, 14")
    a("s_add_u32 s29, s29, s33")
    a("s_lshl_b32 s33, s27, 12")
    a("s_add_u32 s29, s29, s33")
    a("s_lshl_b32 s33, s23, 16")
    a("s_add_u32 s33, s33, s29")
    a(f"s_add_u32 s33, s33, {OF}")
    for stg in range(2):
        a(f"s_add_u32 m0, s29, {65536 + stg * 8192}")
        if stg: a("s_add_u32 s33, s33, 8192")
        else: a("s_nop 0")
        for i in range(4):
            a(f"buffer_load_dwordx4 v2, s[8:11], s33 offen offset:{i * 1024} {LD_SC} lds")
    A3 = 16; WO = 32; OB = 96
    for s in range(16):
        for e in range(2):
            a(f"ds_read_b64_tr_b16 {vr(WO + 4 * s + 2 * e, 2)}, v9 offset:{s * 1024 + e * 512}")
    a("s_lshl_b32 s29, s26, 15")
    a("s_lshl_b32 s33, s27, 14")
    a("s_add_u32 s29, s29, s33")
    a("s_add_u32 s29, s29, 65536")
    a("v_add_u32 v8, s29, v2")
    a("s_and_b32 s29, s22, 3")
    a("s_lshl_b32 s29, s29, 12")
    a(f"s_add_u32 s29, s29, {SCR}")
    a("v_add_u32 v9, s29, v2")
    for j in range(2):
        a(f"v_permlane32_swap_b32 v{RES + 4 * j}, v{RES + 4 * j + 2}")
        a(f"v_permlane32_swap_b32 v{RES + 4 * j + 1}, v{RES + 4 * j + 3}")
    for stg in range(2):
        a(f"s_waitcnt vmcnt({4 - 4 * stg}) lgkmcnt(0)")
        a("s_barrier")
        rd = lambda s: f"ds_read_b128 {vr(OB + 4 * (s % 4), 4)}, v8 offset:{s * 1024}"
        for s in range(8 * stg, 8 * stg + 3): a(rd(s))
        for s in range(8 * stg, 8 * stg + 8):
            left = 8 * stg + 7 - s
            if left >= 3: a(rd(s + 3))
            a(f"s_waitcnt lgkmcnt({min(left, 3)})")
            a(MF32(vr(A3, 16), vr(WO + 4 * s, 4), vr(OB + 4 * (s % 4), 4), "0" if s == 0 else None))
    stamp(a, 3)
    a("s_cmp_lt_u32 s22, 4")
    a("s_cbranch_scc1 K2_O_LO")
    a("s_nop 9")
    for q in range(4):
        a(f"ds_write_b128 v9, {vr(A3 + 4 * q, 4)} offset:{q * 1024}")
    a("s_waitcnt lgkmcnt(0)")
    a("s_barrier")
    a("s_cmp_eq_u32 s22, 7")
    a("s_cbranch_scc0 K2_B3")
    a("s_lshl_b32 s29, s36, 8")
    a(f"s_add_u32 s29, s29, {FL3}")
    poll("K2_P3", 29)
    a("s_branch K2_B3")
    a.label("K2_O_LO")
    a("s_mov_b32 s29, 0xffff0000")
    for i in range(8):
        a(f"v_lshlrev_b32 v{48 + 2 * i}, 16, v{RES + i}")
        a(f"v_and_b32 v{49 + 2 * i}, s29, v{RES + i}")
    for i in range(16):
        a(f"v_add_f32 v{A3 + i}, v{A3 + i}, v{48 + i}")
    a("s_lshl_b32 s52, s30, 15")
    a("s_lshl_b32 s33, s28, 11")
    a("s_add_u32 s52, s52, s33")
    a(f"s_add_u32 s52, s52, {HF}")
    a("s_lshl_b32 s53, s30, 12")
    a("s_lshl_b32 s33, s28, 8")
    a("s_add_u32 s53, s53, s33")
    a(f"s_add_u32 s53, s53, {ST}")
    a("s_lshl_b32 s31, s30, 6")
    a("s_lshl_b32 s33, s28, 2")
    a("s_add_u32 s31, s31, s33")
    a(f"s_add_u32 s31, s31, {FL3}")
    a("v_lshlrev_b32 v3, 3, v0")
    a("s_mov_b32 s29, 0x3f803f80")
    a("v_mov_b32 v14, 0")
    a("v_mov_b32 v15, 0")
    a("s_barrier")
    for q in range(4):
        a(f"ds_read_b128 {vr(32 + 4 * q, 4)}, v9 offset:{q * 1024}")
    o = 64
    for q in range(4):
        a(f"s_waitcnt lgkmcnt({3 - q})")
        for i in range(4 * q, 4 * q + 4):
            a(f"v_add_f32 v{A3 + i}, v{A3 + i}, v{32 + i}")
        for i in range(2 * q, 2 * q + 2):
            a(f"v_cvt_pk_bf16_f32 v{o + i}, v{A3 + 2 * i}, v{A3 + 2 * i + 1}")
        if q % 2:
            j = q // 2
            a(f"buffer_store_dwordx4 {vr(o + 4 * j, 4)}, v2, s[8:11], s52 offen offset:{j * 1024} sc1")
    for i in range(8):
        a(f"v_dot2c_f32_bf16 v14, s29, v{o + i}")
        a(f"v_dot2c_f32_bf16 v15, v{o + i}, v{o + i}")
    a("s_nop 2")
    a("v_mov_b32 v16, v14")
    a("v_mov_b32 v17, v15")
    a("s_nop 0")
    a("v_permlane32_swap_b32 v14, v16")
    a("v_permlane32_swap_b32 v15, v17")
    a("v_add_f32 v14, v14, v16")
    a("v_add_f32 v15, v15, v17")
    a("s_mov_b64 exec, 0xffffffff")
    a("buffer_store_dwordx2 v[14:15], v3, s[8:11], s53 offen sc1")
    a("s_waitcnt vmcnt(0)")
    a("s_mov_b64 exec, 1")
    a("buffer_store_dword v13, v12, s[8:11], s31 offen sc1")
    a("s_mov_b64 exec, -1")
    a.label("K2_B3")
    stamp(a, 4)
    a("v_add_u32 v3, 65536, v2")
    a("v_and_b32 v8, 31, v0")
    a("v_lshlrev_b32 v8, 4, v8")
    a(f"v_add_u32 v8, {SCR}, v8")
    a(f"s_mul_i32 s32, s36, {4 * 112 * 1024}")
    a("s_lshl_b32 s33, s39, 10")
    a("s_add_u32 s32, s32, s33")
    a(f"s_add_u32 s32, s32, {GF}")
    a("s_and_b32 s25, s22, 3")
    a("s_lshl_b32 s30, s36, 2")
    a("s_add_u32 s30, s30, s25")
    def hread(dst, tt, s):
        return f"ds_read_b128 {vr(dst, 4)}, v{2 + tt // 2} offset:{(tt % 2) * 32768 + s * 1024}"
    def epi(g, z, st, tt):
        u = g + 8; o = []
        ve, a0, a1 = f"v{st+1}", f"v{st+2}", f"v{st+3}"
        o += [f"v_mul_f32 v{z+i}, v{g+i}, v{g+i}" for i in range(8)]
        o += [f"v_fma_f32 v{z+i}, v{z+i}, {a1}, {a0}" for i in range(8)]
        o += [f"v_mul_f32 v{z+i}, v{z+i}, v{g+i}" for i in range(8)]
        for i in range(8):
            o += [f"v_exp_f32 v{z+i}, v{z+i}", f"v_mul_f32 v{g+i}, v{g+i}, v{u+i}"]
        o += [f"v_fma_f32 v{z+i}, v{z+i}, {ve}, {ve}" for i in range(8)]
        o += [f"v_rcp_f32 v{z+i}, v{z+i}" for i in range(8)]
        o += [f"s_add_u32 s29, s32, {tt * 112 * 1024}"]
        o += [f"v_mul_f32 v{g+i}, v{g+i}, v{z+i}" for i in range(8)]
        o += [f"v_cvt_pk_bf16_f32 v{u+i}, v{g+2*i}, v{g+2*i+1}" for i in range(4)]
        o += [f"buffer_store_dwordx4 {vr(u, 4)}, v2, s[8:11], s29 offen {G_SC}"]
        return o
    ACC = 16; HB = 32; ZB = 80; SB = 88; TB = 92; NR = 12; STR = [96, 100, 104, 108]
    a(f"v_mov_b32 v{TB + 2}, 0")
    a(f"v_mov_b32 v{TB + 3}, 0")
    def tile(tt, hooks, pre=None, last=False, late=False):
        a("s_setprio 1")
        rd = lambda ks: hread(HB + 4 * (ks % NR), tt, ks)
        if pre is None:
            for ks in range(NR - 1): a(rd(ks))
        for ks in range(32):
            if ks + NR - 1 < 32: a(rd(ks + NR - 1))
            if ks % 4 == 0:
                a(f"s_waitcnt lgkmcnt({min(ks + NR - 1, 31) - (ks + 3)})")
            a(MF32(vr(ACC, 16), vr(W + 4 * ks, 4), vr(HB + 4 * (ks % NR), 4), "0" if ks == 0 else None))
            if ks == G_P2: a("s_setprio 2")
            if not late:
                if ks == 22: a(f"ds_read_b128 {vr(SB, 4)}, v8 offset:{tt * 512}")
                if ks == 29:
                    a(f"v_mov_b32 v{TB}, v{SB}")
                    a(f"v_mov_b32 v{TB + 1}, v{SB}")
            for x in hooks.get(ks, []): a(x)
        if late:
            a(f"ds_read_b128 {vr(SB, 4)}, v8 offset:{tt * 512}")
            a("s_waitcnt lgkmcnt(0)")
            a(f"v_mov_b32 v{TB}, v{SB}")
            a(f"v_mov_b32 v{TB + 1}, v{SB}")
            a("s_nop 1")
        a(MF32(vr(ACC, 16), vr(124, 4), vr(TB, 4)))
        a("s_setprio 0")
        for x in hooks.get("post", []): a(x)
        if not last:
            for ks in range(NR - 1): a(hread(HB + 4 * ks, tt + 1, ks))
        else:
            a("s_nop 10")
        for x in epi(ACC, ZB, SB, tt): a(x)
    a("s_cmp_lt_u32 s22, 4")
    a("s_cbranch_scc1 K2_GA")
    a("s_lshl_b32 s28, s25, 13")
    a("s_lshl_b32 s26, s36, 17")
    a("s_add_u32 s26, s26, s28")
    a(f"s_add_u32 s26, s26, {HF}")
    a("s_barrier")
    stamp(a, 5)
    def hdma(tt):
        for g in range(2):
            a(f"s_add_u32 m0, s28, {tt * 32768 + g * 4096}")
            a(f"s_add_u32 s29, s26, {tt * 32768 + g * 4096}")
            for i in range(4):
                a(f"buffer_load_dwordx4 v2, s[8:11], s29 offen offset:{i * 1024} {LD_SC} lds")
    hdma(0); hdma(1)
    a("s_waitcnt vmcnt(8)")
    a("s_barrier")
    if GSTAMP: stamp(a, 3)
    hdma(2); hdma(3)
    a("s_waitcnt vmcnt(16)")
    a("s_barrier")
    if GSTAMP: stamp(a, 4)
    a("s_cmp_eq_u32 s22, 7")
    a("s_cbranch_scc1 K2_W7")
    tile(0, {GB3: ["s_waitcnt vmcnt(0)", "s_barrier"]})
    tile(1, {}, pre=1); tile(2, {}, pre=1)
    stamp(a, 6)
    tile(3, {}, pre=1, last=True)
    stamp_end(a, 1, 7, 8)
    if DBGK1:
        a("s_waitcnt vmcnt(0)")
        a("s_memrealtime s[68:69]")
        a("s_memtime s[70:71]")
        a("s_waitcnt lgkmcnt(0)")
        a("s_sub_u32 s70, s70, s66")
        a("s_cmp_lg_u32 s2, 0")
        a("s_cbranch_scc1 K2_END")
        a(f"s_mov_b32 s74, {DBGOFF + 16}")
        a("v_mov_b32 v0, 0")
        a("v_mov_b32 v2, s64")
        a("v_mov_b32 v3, s68")
        a("v_mov_b32 v4, s70")
        a("buffer_store_dwordx3 v[2:4], v0, s[8:11], s74 offen")
    a("s_endpgm")
    a.label("K2_W7")
    a("s_waitcnt vmcnt(0)")
    a("s_barrier")
    if K4_TOUCH:
        srd(a, 12, 48, 1792 * 512 * 2)
        a("s_lshr_b32 s29, s2, 3")
        a("s_mul_i32 s29, s29, 57344")
        a("v_lshlrev_b32 v13, 7, v0")
        for i in range(7):
            a("buffer_load_dword v14, v13, s[12:15], s29 offen")
            a("s_add_u32 s29, s29, 8192")
    a("s_endpgm")
    a.label("K2_GA")
    a("s_lshl_b32 s26, s30, 12")
    a(f"s_add_u32 s26, s26, {ST}")
    a("s_lshl_b32 s28, s25, 9")
    a("v_add_u32 v9, s28, v8")
    a("v_and_b32 v1, 31, v0")
    a("v_lshlrev_b32 v1, 3, v1")
    a("v_lshl_add_u32 v1, v11, 11, v1")
    a("s_barrier")
    stamp(a, 5)
    for q in range(8):
        a(f"buffer_load_dwordx2 {vr(STR[q // 2] + 2 * (q % 2), 2)}, v1, s[8:11], s26 offen offset:{q * 256} sc1")
    r0 = STR[0]
    SQ = ["s_waitcnt vmcnt(0)"]
    for q in range(1, 4):
        SQ += [f"v_add_f32 v{r0 + i}, v{r0 + i}, v{STR[q] + i}" for i in range(4)]
    SQ += [f"v_add_f32 v12, v{r0}, v{r0 + 2}", f"v_add_f32 v13, v{r0 + 1}, v{r0 + 3}",
           "v_mov_b32 v14, v12", "v_mov_b32 v15, v13", "s_nop 0",
           "v_permlane32_swap_b32 v12, v14", "v_permlane32_swap_b32 v13, v15",
           "v_add_f32 v12, v12, v14", "v_add_f32 v13, v13, v15",
           f"v_mul_f32 v12, {f32(-1/512)}, v12", f"v_mul_f32 v13, {f32(1/512)}, v13",
           "v_fma_f32 v13, -v12, v12, v13", "v_max_f32 v13, 0, v13", f"v_add_f32 v{r0 + 1}, {f32(EPS)}, v13",
           f"v_rsq_f32 v14, v{r0 + 1}", "v_cvt_pk_bf16_f32 v15, v12, v12", "v_lshlrev_b32 v15, 16, v15",
           "v_sub_f32 v12, v12, v15", f"v_cvt_pk_bf16_f32 v{r0}, v15, v12",
           f"v_mul_f32 v{r0 + 2}, {f32(-K1C)}, v14", "v_mul_f32 v14, v14, v14", f"v_mul_f32 v14, v14, v{r0 + 2}",
           f"v_mul_f32 v{r0 + 3}, {f32(0.044715)}, v14"]
    hooks = {}
    for k_ in range(10):
        hooks[8 + k_] = SQ[4 * k_: 4 * k_ + 4]
    hooks[29] = [f"ds_write_b128 v9, {vr(r0, 4)}"]
    hooks[31] = ["s_waitcnt lgkmcnt(0)", "s_barrier"]
    a("s_barrier")
    if GSTAMP: stamp(a, 3)
    tile(0, hooks, late=True)
    if GSTAMP: stamp(a, 4)
    tile(1, {GA3: ["s_barrier"]}, pre=1); tile(2, {}, pre=1)
    stamp(a, 6)
    tile(3, {}, pre=1, last=True)
    stamp_end(a, 1, 7, 8)
    a("s_endpgm")
    a.label("K2_FALLBACK")
    a("v_mov_b32 v1, v2")
    a("v_mov_b32 v14, 0xff800000")
    a("s_mov_b32 s33, 0")
    a.label("K2_FB1")
    a(f"ds_read_b128 {vr(KR, 4)}, v1")
    a("v_add_u32 v1, 1024, v1")
    a("s_waitcnt lgkmcnt(0)")
    a(MF32(vr(s0, 16), vr(KR, 4), vr(Q, 4), "0"))
    a("s_nop 11")
    for i in range(0, 16, 2):
        a(f"v_max3_f32 v14, v14, v{s0+i}, v{s0+i+1}")
    a("s_add_u32 s33, s33, 1")
    a("s_cmp_lt_u32 s33, 64")
    a("s_cbranch_scc1 K2_FB1")
    set_negm()
    for i in range(16):
        a(f"v_mov_b32 v{O + i}, 0")
    a("v_mov_b32 v1, v2")
    a("s_mov_b32 s33, 0")
    a.label("K2_FB2")
    a(f"ds_read_b128 {vr(KR, 4)}, v1")
    a("s_mov_b64 exec, s[34:35]")
    a(f"ds_read_b128 {vr(VR, 4)}, v3")
    a(f"ds_read_b128 {vr(VR + 4, 4)}, v3 offset:512")
    a("s_mov_b64 exec, -1")
    a("v_add_u32 v1, 1024, v1")
    a("v_add_u32 v3, 1024, v3")
    a("s_waitcnt lgkmcnt(0)")
    a(MF32(vr(s0, 16), vr(KR, 4), vr(Q, 4), vr(NEGM, 16)))
    a("s_nop 11")
    for i in range(16): a(f"v_exp_f32 v{s0+i}, v{s0+i}")
    a("s_nop 0")
    for i in range(8): a(f"v_cvt_pk_bf16_f32 v{P+i}, v{s0+2*i}, v{s0+2*i+1}")
    a("s_nop 1")
    a(MF32(vr(O, 16), vr(VR, 4), vr(P, 4)))
    a(MF32(vr(O, 16), vr(VR + 4, 4), vr(P + 4, 4)))
    a("s_add_u32 s33, s33, 1")
    a("s_cmp_lt_u32 s33, 64")
    a("s_cbranch_scc1 K2_FB2")
    a("s_nop 11")
    a("s_branch K2_FIN")
    a.label("K2_END")
    a("s_endpgm")
    return n, a, kd(n, 256, 256), (256, 512, 163840)

def k5():
    a = Asm(); n = "k3_down_kernel"
    NS = 112; KS = 28; DEPTH = 8
    kernel_head(a, n)
    ACC = 16; GB = 80; WB = 144; RES = 160
    RED = 65536
    a("s_cmp_ge_u32 s2, 256")
    a("s_cbranch_scc1 K5_END")
    stamp(a, 0)
    if DBGK1:
        a("s_memrealtime s[64:65]")
        a("s_memtime s[66:67]")
    a("s_load_dwordx2 s[4:5], s[0:1], 72")
    a("s_load_dwordx4 s[40:43], s[0:1], 48")
    a("v_lshrrev_b32 v1, 6, v0")
    a("v_and_b32 v0, 63, v0")
    a("v_readfirstlane_b32 s22, v1")
    a("v_lshlrev_b32 v2, 4, v0")
    a("s_and_b32 s23, s2, 7")
    a("s_lshl_b32 s23, s23, 2")
    a("s_bfe_u32 s29, s2, 0x20003")
    a("s_add_u32 s23, s23, s29")
    a("s_lshr_b32 s24, s2, 5")
    a("s_and_b32 s25, s22, 1")
    a("s_lshr_b32 s26, s22, 1")
    a("s_lshl_b32 s27, s24, 1")
    a("s_add_u32 s27, s27, s25")
    a("s_lshl_b32 s28, s23, 1")
    a("s_add_u32 s28, s28, s26")
    a(f"s_mul_i32 s29, s22, {KS * 1024}")
    a(f"s_mul_i32 s32, s28, {NS * 1024}")
    a("s_add_u32 s32, s32, s29")
    a(f"s_add_u32 s32, s32, {GF}")
    a("s_xor_b32 s33, s28, 1")
    a(f"s_mul_i32 s33, s33, {NS * 1024}")
    a("s_add_u32 s33, s33, s29")
    a(f"s_add_u32 s33, s33, {GF}")
    a(f"s_mul_i32 s29, s22, {KS * 16384}")
    a("s_lshl_b32 s30, s27, 6")
    a("s_xor_b32 s31, s30, 64")
    a("s_add_u32 s30, s30, s29")
    a("s_add_u32 s31, s31, s29")
    a("s_lshl_b32 s36, s22, 14")
    a("v_lshrrev_b32 v8, 2, v0")
    a("v_lshlrev_b32 v8, 10, v8")
    a("v_and_b32 v1, 3, v0")
    a("v_lshl_add_u32 v8, v1, 4, v8")
    a("s_waitcnt lgkmcnt(0)")
    srd(a, 8, 4, WS_SIZE)
    srd(a, 16, 40, 1792 * 512 * 2)
    srd(a, 12, 42, 2048 * 512 * 2)
    def loads(s):
        b = GB + 8 * (s % DEPTH)
        if s % 4 == 0 and s > 0:
            a("s_add_u32 s32, s32, 4096")
            a("s_add_u32 s33, s33, 4096")
        for i in range(2):
            a(f"s_add_u32 m0, s36, {(s % DEPTH) * 2048 + i * 1024}")
            a(f"s_add_u32 s29, s{30 + i}, {s * 16384}")
            a("buffer_load_dwordx4 v8, s[16:19], s29 offen lds")
        for i in range(2):
            a(f"buffer_load_dwordx4 {vr(b + 4 * i, 4)}, v2, s[8:11], s{32 + i} offen offset:{(s % 4) * 1024}")
    for s in range(DEPTH - 1):
        loads(s)
    a("v_lshrrev_b32 v4, 5, v0")
    a("v_bfe_u32 v1, v0, 2, 2")
    a("v_lshl_add_u32 v9, v4, 2, v1")
    a("v_lshlrev_b32 v9, 6, v9")
    a("v_and_b32 v1, 3, v0")
    a("v_lshl_add_u32 v9, v1, 3, v9")
    a("v_bfe_u32 v1, v0, 4, 1")
    a("v_lshl_add_u32 v9, v1, 5, v9")
    a("v_add_u32 v9, s36, v9")
    a("v_and_b32 v3, 31, v0")
    a("v_lshlrev_b32 v3, 10, v3")
    a("v_lshl_add_u32 v3, v4, 4, v3")
    a("s_lshl_b32 s34, s28, 15")
    a("s_lshl_b32 s35, s27, 6")
    a("s_add_u32 s34, s34, s35")
    a("s_lshl_b32 s35, s28, 15")
    a("s_lshl_b32 s37, s27, 11")
    a("s_add_u32 s35, s35, s37")
    a(f"s_add_u32 s35, s35, {HF}")
    for t in range(1, 4):
        a(f"s_xor_b32 s29, s22, {t}")
        a("s_mul_i32 s29, s29, 12288")
        a(f"s_add_u32 s29, s29, {RED}")
        a(f"v_add_u32 v{4 + t}, s29, v2")
    a("s_mul_i32 s29, s22, 12288")
    a(f"s_add_u32 s29, s29, {RED}")
    a("v_add_u32 v4, s29, v2")
    def trreads(s):
        for i in range(2):
            for e in range(2):
                a(f"ds_read_b64_tr_b16 {vr(WB + 8 * (s % 2) + 4 * i + 2 * e, 2)}, v9 offset:{(s % DEPTH) * 2048 + i * 1024 + e * 512}")
    def mfmas(s):
        g = GB + 8 * (s % DEPTH); w = WB + 8 * (s % 2)
        B0, B1, A0, A1 = vr(g, 4), vr(g + 4, 4), vr(w, 4), vr(w + 4, 4)
        C = "0" if s == 0 else None
        a(MF32(vr(ACC, 16), A0, B0, C))
        a(MF32(vr(ACC + 32, 16), A0, B1, C))
        a(MF32(vr(ACC + 16, 16), A1, B0, C))
        a(MF32(vr(ACC + 48, 16), A1, B1, C))
    issued = DEPTH - 1; res = 0
    a(f"s_waitcnt vmcnt({(issued - 1) * 4})")
    stamp(a, 1)
    trreads(0)
    for s in range(KS):
        if issued < KS:
            loads(issued); issued += 1
            if issued == KS:
                for j in range(2):
                    a(f"buffer_load_dwordx4 {vr(RES + 4 * j, 4)}, v2, s[8:11], s35 offen offset:{j * 1024}")
                res = 2
        if s + 1 < KS:
            a(f"s_waitcnt vmcnt({(issued - s - 2) * 4 + res})")
            trreads(s + 1)
            a("s_waitcnt lgkmcnt(4)")
        else:
            a("s_waitcnt lgkmcnt(0)")
        mfmas(s)
    stamp(a, 2)
    a("s_waitcnt vmcnt(0)")
    a("s_mov_b32 s29, 0xffff0000")
    for i in range(8):
        a(f"v_lshlrev_b32 v{RES + 8 + 2 * i}, 16, v{RES + i}")
        a(f"v_and_b32 v{RES + 9 + 2 * i}, s29, v{RES + i}")
    for t in (2, 1, 3):
        for q in range(4):
            a(f"ds_write_b128 v{4 + t}, {vr(ACC + 16 * t + 4 * q, 4)} offset:{(t - 1) * 4096 + q * 1024}")
    for i in range(16):
        a(f"v_add_f32 v{ACC + i}, v{ACC + i}, v{RES + 8 + i}")
    a("s_waitcnt lgkmcnt(0)")
    a("s_barrier")
    for t in range(3):
        for q in range(4):
            a(f"ds_read_b128 {vr(GB + 16 * t + 4 * q, 4)}, v4 offset:{t * 4096 + q * 1024}")
    for t in range(3):
        a(f"s_waitcnt lgkmcnt({8 - 4 * t})")
        for i in range(0, 16, 2):
            a(f"v_pk_add_f32 {vr(ACC + i, 2)}, {vr(ACC + i, 2)}, {vr(GB + 16 * t + i, 2)}")
    o = ACC + 16
    for i in range(8):
        a(f"v_cvt_pk_bf16_f32 v{o + i}, v{ACC + 2 * i}, v{ACC + 2 * i + 1}")
    a("s_nop 0")
    for j in range(2):
        a(f"v_permlane32_swap_b32 v{o + 4 * j}, v{o + 4 * j + 2}")
        a(f"v_permlane32_swap_b32 v{o + 4 * j + 1}, v{o + 4 * j + 3}")
    for j in range(2):
        a(f"buffer_store_dwordx4 {vr(o + 4 * j, 4)}, v3, s[12:15], s34 offen offset:{j * 32}")
    stamp_end(a, 2, 3, 8)
    if DBGK1:
        a("s_waitcnt vmcnt(0)")
        a("s_memrealtime s[68:69]")
        a("s_memtime s[70:71]")
        a("s_load_dwordx2 s[72:73], s[0:1], 64")
        a("s_waitcnt lgkmcnt(0)")
        srd(a, 76, 72, 256)
        a("s_sub_u32 s70, s70, s66")
        a("s_cmp_lg_u32 s2, 0")
        a("s_cbranch_scc1 K5_END")
        a(f"s_mov_b32 s74, {DBGOFF}")
        a("v_mov_b32 v0, 0")
        a("buffer_load_dwordx4 v[4:7], v0, s[8:11], s74 offen")
        a("buffer_load_dwordx4 v[8:11], v0, s[8:11], s74 offen offset:16")
        a("s_waitcnt vmcnt(0)")
        a("v_sub_u32 v5, v5, v4")
        a("v_sub_u32 v8, v8, v4")
        a("v_sub_u32 v9, v9, v4")
        a("v_sub_u32 v12, s64, v4")
        a("v_sub_u32 v13, s68, v4")
        a("v_mov_b32 v14, s70")
        a("v_mov_b32 v15, 0")
        a("buffer_store_dwordx4 v[4:7], v0, s[76:79], 0 offen")
        a("buffer_store_dwordx4 v[8:11], v0, s[76:79], 0 offen offset:16")
        a("buffer_store_dwordx4 v[12:15], v0, s[76:79], 0 offen offset:32")
    a.label("K5_END")
    a("s_endpgm")
    return n, a, kd(n, 192, 192), (256, 256, RED + 49152)

def main(out):
    ks = [k1(), k234(), k5()]
    hdr = open("cdna_kernels/" + NAME + ".s.ref").read().split("\n")
    hdr = [l for l in hdr if l.startswith(";") and "@launch" not in l and "Override" not in l and "grid=ceil" not in l]
    txt = "\n".join(hdr) + "\n"
    for n, a, d, (g, b, lds) in ks:
        txt += f"; @launch kernel={n} grid=({g},1,1) block=({b},1,1) lds={lds}\n"
    txt += '.amdgcn_target "amdgcn-amd-amdhsa--gfx950"\n.text\n'
    bad = 0
    for ki, (n, a, d, _) in enumerate(ks):
        fl = ST_FLAGS[ki]
        if fl:
            a.lines = [l + " " + fl if ("buffer_store_dwordx" in l and "sc1" not in l) else l for l in a.lines]
        bad += check_hazards(a.lines, n)
        txt += a.text()
    txt += "CODE_END:\n"
    txt += '.section .rodata,"a"\n'
    for n, a, d, _ in ks:
        txt += ".p2align 6\n" + d
    open(out, "w").write(txt)
    print("hazards:", bad)

if __name__ == "__main__":
    if "stamp" in sys.argv: STAMP = True
    for arg in sys.argv[2:]:
        if "=" in arg:
            k_, v_ = arg.split("=", 1)
            globals()[k_] = eval(v_)
    main(sys.argv[1] if len(sys.argv) > 1 else "cdna_kernels/" + NAME + ".s")
```

```python
import sys, math, struct
from asmlib import *

NAME = "sequential_preLN__mha_block__geglu_ffn__prompt"

QF, KF, VF, OF, HF = 0x000000, 0x200000, 0x400000, 0x600000, 0x800000
ST  = 0xA00000
CSF = 0xA80000
WOF = 0xB00000
WGF = 0xC00000
WDF = 0x1000000
GF  = 0x1200000
WS_SIZE = 0x10000000
FL2 = 0xB00000
FL3 = 0xB00800
FL4 = 0xB01800

def f32(x):
    return "0x%08x" % struct.unpack("<I", struct.pack("<f", x))[0]

LOG2E = 1.4426950408889634
EPS = 1e-5

def srd(a, s, base, size):
    a(f"s_mov_b32 s{s}, s{base}")
    a(f"s_mov_b32 s{s+1}, s{base+1}")
    a(f"s_mov_b32 s{s+2}, {hex(size)}")
    a(f"s_mov_b32 s{s+3}, 0x00020000")

def kernel_head(a, name):
    a.raw(f".globl {name}")
    a.raw(".p2align 8")
    a.raw(f".type {name},@function")
    a.raw(f"{name}:")

def kd(name, nvgpr, accum, nsgpr=100):
    return f""".amdhsa_kernel {name}
  .amdhsa_next_free_vgpr {nvgpr}
  .amdhsa_next_free_sgpr {nsgpr}
  .amdhsa_accum_offset {accum}
  .amdhsa_group_segment_fixed_size 0
  .amdhsa_kernarg_size 80
  .amdhsa_user_sgpr_count 2
  .amdhsa_user_sgpr_kernarg_segment_ptr 1
  .amdhsa_system_sgpr_workgroup_id_x 1
.end_amdhsa_kernel
"""

STAMP = False
FASTL2 = 1
D_Y = 6
DBGK1 = 0
LD_SC = ''
GSTAMP = 0
G_P2 = 8
GB3 = 12
GA3 = 0
POLL_SLEEP = 6
B_FILL = 4
K2_TCH = 1
G_SC = 'sc1'
CODE_TOUCH = 0
K1_ROT = 1
K1_TW = [-1, 0, 1]
K4_SL = 26
K2_S3 = 11
K2_WD = 0
K1_D = 1
K4_D = 2
K4_XB = 12
K4_TOUCH = 1
K2_S2 = 4
K1_TOUCH = 1
ST_FLAGS = ['', '', '', '', '']
K2_Y = 28
SIDE_SC = 'sc1'
K1_UP = 14
K4_UP = 22
DBGOFF = 0x2000000
def stamp(a, i):
    if not STAMP: return
    a(f"s_memrealtime s[{64 + 4 * i}:{65 + 4 * i}]")
    a(f"s_memtime s[{66 + 4 * i}:{67 + 4 * i}]")
    if i != 0:
        a("s_waitcnt lgkmcnt(0)")
def stamp_end(a, kidx, n, srdreg, wavereg=22):
    if not STAMP: return
    a("s_waitcnt vmcnt(0)")
    stamp(a, n)
    a("s_lshl_b32 s60, s2, 3")
    a(f"s_add_u32 s60, s60, s{wavereg}")
    a("s_lshl_b32 s60, s60, 6")
    a(f"s_add_u32 s60, s60, {DBGOFF + kidx * 0x40000}")
    a("v_mov_b32 v0, 0")
    for j in range(2 * n + 2):
        a(f"v_mov_b32 v1, s{64 + 2 * j}")
        a(f"buffer_store_dword v1, v0, s[{srdreg}:{srdreg+3}], s60 offen offset:{4 * j}")

def MF32(d, A, B, C=None):
    C = d if C is None else C
    return f"v_mfma_f32_32x32x16_bf16 {d}, {A}, {B}, {C}"

def halfsum(a, v, t):
    a(f"v_mov_b32 v{t}, v{v}")
    a("s_nop 1")
    a(f"v_permlane32_swap_b32 v{v}, v{t}")
    a(f"v_add_f32 v{v}, v{v}, v{t}")


def k1():
    a = Asm(); n = "k1_qkv_kernel"
    kernel_head(a, n)
    SLOT = 28672; SCR = 5 * SLOT; SCR2 = SCR + 1536; SCR3 = SCR2 + 512
    D = K1_D
    a("s_cmp_ge_u32 s2, 256")
    a("s_cbranch_scc1 K1_END")
    stamp(a, 0)
    if DBGK1:
        a("s_memrealtime s[64:65]")
        a("s_memtime s[66:67]")
    a("s_load_dwordx4 s[4:7], s[0:1], 0")
    a("s_load_dwordx2 s[20:21], s[0:1], 72")
    a("v_lshrrev_b32 v1, 6, v0")
    a("v_and_b32 v0, 63, v0")
    a("v_readfirstlane_b32 s35, v1")
    a("s_and_b32 s23, s2, 3")
    a("s_lshl_b32 s23, s23, 2")
    a("s_bfe_u32 s29, s2, 0x20003")
    a("s_add_u32 s23, s23, s29")
    a("s_bfe_u32 s24, s2, 0x10002")
    a("s_lshl_b32 s24, s24, 3")
    a("s_lshr_b32 s29, s2, 5")
    a("s_add_u32 s24, s24, s29")
    a("s_and_b32 s22, s35, 3")
    a("s_lshl_b32 s27, s22, 12")
    a("s_lshl_b32 s40, s2, 1")
    a("s_and_b32 s29, s2, 4")
    a("s_add_u32 s40, s40, s29")
    if not K1_ROT: a("s_mov_b32 s40, 0")
    a("s_cmp_lt_u32 s35, 4")
    a("s_cbranch_scc1 K1_RDADDR")
    a("s_lshl_b32 s25, s23, 17")
    a("s_lshl_b32 s29, s22, 15")
    a("s_add_u32 s25, s25, s29")
    a("s_mul_i32 s26, s22, 49152")
    a("s_lshl_b32 s29, s24, 6")
    a("s_add_u32 s26, s26, s29")
    a("s_lshl_b32 s28, s22, 10")
    a("s_add_u32 s28, s28, 16384")
    a("s_mov_b32 s30, 0x3f803f80")
    a("v_lshrrev_b32 v5, 3, v0")
    a("v_lshlrev_b32 v2, 10, v5")
    a("v_and_b32 v6, 7, v0")
    a("v_lshrrev_b32 v7, 4, v0")
    a("v_xor_b32 v6, v6, v7")
    a("v_lshl_add_u32 v2, v6, 4, v2")
    a("v_xor_b32 v3, 64, v2")
    a("v_add_u32 v3, 8192, v3")
    a("v_lshrrev_b32 v5, 2, v0")
    a("v_mul_u32_u24 v4, 3072, v5")
    a("v_and_b32 v6, 3, v0")
    a("v_lshl_add_u32 v4, v6, 4, v4")
    a("s_waitcnt lgkmcnt(0)")
    srd(a, 8, 4, 2048 * 512 * 2)
    srd(a, 12, 6, 512 * 1536 * 2)
    def dma(c):
        slot = (c % 5) * SLOT
        a(f"s_add_u32 s41, s40, {c}")
        a("s_and_b32 s41, s41, 7")
        a("s_lshl_b32 s42, s41, 7")
        a("s_add_u32 s42, s42, s25")
        a(f"s_mul_i32 s41, s41, {64 * 3072}")
        a("s_add_u32 s41, s41, s26")
        for p in range(3):
            a(f"s_add_u32 m0, s28, {slot + p * 4096}")
            a(f"s_add_u32 s29, s41, {p * 1024}")
            a(f"buffer_load_dwordx4 v4, s[12:15], s29 offen lds")
        for i in range(4):
            a(f"s_add_u32 m0, s27, {slot + i * 1024}")
            a(f"s_add_u32 s29, s42, {(i // 2) * 16384}")
            a(f"buffer_load_dwordx4 v{2 + (i % 2)}, s[8:11], s29 offen lds")
    for c in range(D + 1):
        dma(c)
    a.label("K1_RDADDR")
    a("v_and_b32 v5, 31, v0")
    a("v_lshrrev_b32 v6, 5, v0")
    a("v_bfe_u32 v7, v0, 1, 3")
    a("v_xor_b32 v7, v7, v6")
    a("v_lshlrev_b32 v5, 7, v5")
    a("v_add_u32 v5, s27, v5")
    for s in range(4):
        a(f"v_xor_b32 v1, {2 * s}, v7")
        a(f"v_lshl_add_u32 v{8 + s}, v1, 4, v5")
        a(f"v_add_u32 v{12 + s}, {2 * SLOT}, v{8 + s}")
        a(f"v_add_u32 v{16 + s}, {4 * SLOT}, v{8 + s}")
    a("v_bfe_u32 v1, v0, 2, 2")
    a("v_lshl_add_u32 v1, v6, 3, v1")
    a("v_lshlrev_b32 v20, 6, v1")
    a("v_bfe_u32 v1, v0, 4, 1")
    a("v_lshl_add_u32 v20, v1, 5, v20")
    a("v_and_b32 v1, 3, v0")
    a("v_lshl_add_u32 v20, v1, 3, v20")
    a("s_cmp_lt_u32 s35, 4")
    a("s_cbranch_scc1 K1_MM")
    a("s_lshl_b32 s29, s22, 10")
    a("v_add_u32 v20, s29, v20")
    a(f"v_add_u32 v21, {2 * SLOT}, v20")
    a(f"v_add_u32 v22, {4 * SLOT}, v20")
    for i in range(28, 31):
        a(f"v_mov_b32 v{i}, 0")
    WB = 48
    for c in range(8):
        slot = c % 5; st = slot // 2; off = (slot % 2) * SLOT
        a(f"s_waitcnt vmcnt({7 * (min(c + D, 7) - c)})")
        a("s_barrier")
        for p in range(3):
            for u in range(2):
                a(f"ds_read_b64_tr_b16 {vr(WB + 4 * p + 2 * u, 2)}, v{20 + st} offset:{off + 16384 + p * 4096 + u * 256}")
        if c + D + 1 < 8:
            dma(c + D + 1)
        a("s_waitcnt lgkmcnt(0)")
        for i in range(4):
            for p in range(3):
                a(f"v_dot2c_f32_bf16 v{28 + p}, s30, v{WB + 4 * p + i}")
    a("v_and_b32 v5, 31, v0")
    a("v_lshlrev_b32 v6, 4, v5")
    a("s_lshl_b32 s29, s22, 2")
    a(f"s_add_u32 s29, s29, {SCR}")
    a("v_add_u32 v7, s29, v6")
    for p in range(3):
        halfsum(a, 28 + p, 1)
        a(f"ds_write_b32 v7, v{28 + p} offset:{p * 512}")
    a("s_waitcnt lgkmcnt(0)")
    a("s_barrier")
    a("s_endpgm")
    a.label("K1_MM")
    if CODE_TOUCH:
        a("s_getpc_b64 s[44:45]")
        a.label("K1_PC")
        a("s_sub_u32 s44, s44, K1_PC-k1_qkv_kernel")
        a("s_subb_u32 s45, s45, 0")
        a("s_lshl_b32 s46, s22, 13")
        a("v_lshlrev_b32 v23, 7, v0")
        a("v_add_u32 v23, s46, v23")
        for i in range(CODE_TOUCH):
            a("v_min_u32 v24, CODE_END-k1_qkv_kernel-4, v23")
            a("global_load_dword v31, v24, s[44:45]")
            a("v_add_u32 v23, 32768, v23")
    a(f"v_add_u32 v21, {2 * SLOT}, v20")
    a(f"v_add_u32 v22, {4 * SLOT}, v20")
    a("s_mov_b32 s30, 0x3f803f80")
    for i in range(24, 28):
        a(f"v_mov_b32 v{i}, 0")
    a("v_and_b32 v5, 31, v0")
    a("v_lshlrev_b32 v6, 4, v5")
    a(f"v_add_u32 v6, {SCR}, v6")
    a("s_lshl_b32 s29, s22, 7")
    a(f"s_add_u32 s29, s29, {SCR2}")
    a("v_lshlrev_b32 v7, 2, v5")
    a("v_add_u32 v7, s29, v7")
    a("v_lshrrev_b32 v1, 5, v0")
    a("v_lshlrev_b32 v1, 4, v1")
    a("v_add_u32 v1, s29, v1")
    a("s_lshl_b32 s29, s23, 2")
    a("s_add_u32 s29, s29, s22")
    a("s_lshl_b32 s29, s29, 10")
    a("s_lshl_b32 s31, s24, 17")
    a("s_add_u32 s29, s29, s31")
    a("s_add_u32 s31, s29, 65536")
    a(f"s_add_u32 s32, s29, {KF}")
    a(f"s_add_u32 s33, s29, {KF + 65536}")
    a(f"s_add_u32 s34, s29, {VF}")
    a("v_lshlrev_b32 v2, 4, v0")
    a("v_bfe_u32 v3, v0, 4, 1")
    a("v_lshlrev_b32 v3, 16, v3")
    a("v_lshrrev_b32 v4, 5, v0")
    a("v_lshl_add_u32 v3, v4, 8, v3")
    a("v_and_b32 v4, 15, v0")
    a("v_lshl_add_u32 v3, v4, 4, v3")
    a("s_waitcnt lgkmcnt(0)")
    srd(a, 16, 20, WS_SIZE)
    a("s_cmp_ge_u32 s2, 3")
    a("s_cbranch_scc1 K1_NZ")
    a("s_lshl_b32 s36, s2, 2")
    a("s_add_u32 s36, s36, s22")
    a("s_lshl_b32 s36, s36, 10")
    a(f"s_add_u32 s36, s36, {FL2}")
    a("buffer_store_dwordx4 v[24:27], v2, s[16:19], s36 offen")
    a.label("K1_NZ")
    TQ = {}
    if K1_TOUCH:
        srd(a, 8, 4, 2048 * 512 * 2)
        a("s_lshr_b32 s37, s2, 3")
        a("v_and_b32 v28, 3, v0")
        a("s_mov_b32 s39, 256")
        a("s_and_b32 s36, s2, 3")
        a("s_lshl_b32 s36, s36, 19")
        a("s_lshl_b32 s38, s37, 14")
        a("s_add_u32 s36, s36, s38")
        a("v_bfe_u32 v23, v0, 1, 4")
        a("v_lshlrev_b32 v23, 10, v23")
        a("v_and_b32 v29, 1, v0")
        a("v_lshl_add_u32 v23, v29, 7, v23")
        a("s_cmp_lg_u32 s22, 0")
        a("s_cbranch_scc1 K1_TD")
        srd(a, 8, 6, 512 * 1536 * 2)
        a(f"s_mov_b32 s39, {128 * 3072}")
        a("s_mul_i32 s36, s37, 12288")
        a("s_bfe_u32 s38, s2, 0x10002")
        a("s_lshl_b32 s38, s38, 9")
        a("s_add_u32 s36, s36, s38")
        a("v_lshrrev_b32 v23, 4, v0")
        a("v_mul_u32_u24 v23, 3072, v23")
        a("v_bfe_u32 v30, v0, 2, 2")
        a("v_min_u32 v30, 2, v30")
        a("v_lshl_add_u32 v23, v30, 10, v23")
        a("v_lshl_add_u32 v23, v28, 7, v23")
        a.label("K1_TD")
        def touch(n_):
            return ["s_cmp_ge_u32 s22, 2", f"s_cbranch_scc1 K1_TS{n_}",
                    "s_lshr_b32 s38, s40, 1", f"s_add_u32 s38, s38, {n_ + 1}", "s_and_b32 s38, s38, 3",
                    "s_mul_i32 s38, s38, s39", "s_add_u32 s38, s38, s36",
                    "buffer_load_dword v31, v23, s[8:11], s38 offen", f"K1_TS{n_}:"]
        for n_, when in enumerate(K1_TW):
            if when < 0:
                for x in touch(n_): a(x)
            else:
                TQ.setdefault(when, []).extend(touch(n_))
    ACC = 32
    def xf(ks): return 80 + (ks % 8) * 4
    def wf(ks, p): return 112 + (ks % 3) * 12 + p * 4
    def reads(ks):
        c, s = ks // 4, ks % 4
        slot = c % 5; st = slot // 2; off = (slot % 2) * SLOT
        out = [f"ds_read_b128 {vr(xf(ks), 4)}, v{8 + 4 * st + s} offset:{off}"]
        for p in range(3):
            for u in range(2):
                out.append(f"ds_read_b64_tr_b16 {vr(wf(ks, p) + 2 * u, 2)}, v{20 + st} offset:{off + 16384 + p * 4096 + s * 1024 + u * 256}")
        return out
    def mfmas(ks):
        X = vr(xf(ks), 4); out = []
        for p in range(3):
            D_ = vr(ACC + 16 * p, 16); W = vr(wf(ks, p), 4)
            A, B = (W, X) if p < 2 else (X, W)
            out.append(MF32(D_, A, B, "0" if ks == 0 else None))
        return out
    def dots(k0, k1_):
        for ks in range(k0, k1_):
            for i in range(4):
                a(f"v_dot2c_f32_bf16 v{24 + i % 2}, s30, v{xf(ks) + i}")
                a(f"v_dot2c_f32_bf16 v{26 + i % 2}, v{xf(ks) + i}, v{xf(ks) + i}")
    a("s_barrier")
    stamp(a, 1)
    for r in reads(0) + reads(1): a(r)
    for x in TQ.get(0, []): a(x)
    for ks in range(32):
        c, s = ks // 4, ks % 4
        M = mfmas(ks); R = reads(ks + 2) if ks + 2 < 32 else []
        if s == 2:
            dots(max(ks - 3, 0), ks)
            a("s_waitcnt lgkmcnt(0)")
            dots(ks, ks + 1)
            if c == 7: dots(ks + 1, ks + 2)
            a(M[0])
            if c < 7:
                a("s_barrier")
                if c < 5: stamp(a, 2 + c)
                for x in TQ.get(c + 1, []): a(x)
        else:
            a(f"s_waitcnt lgkmcnt({7 if ks < 31 else 0})")
            a(M[0])
        E = []
        if ks >= 30:
            if ks == 30:
                E = ["v_add_f32 v24, v24, v25", "v_add_f32 v26, v26, v27", "v_mov_b32 v25, v24", "v_mov_b32 v27, v26", "s_nop 0",
                     "v_permlane32_swap_b32 v24, v25", "v_permlane32_swap_b32 v26, v27", "v_add_f32 v24, v24, v25", "v_add_f32 v26, v26, v27",
                     f"v_mul_f32 v24, {f32(1/512)}, v24", f"v_mul_f32 v26, {f32(1/512)}, v26", "v_fma_f32 v26, -v24, v24, v26",
                     "v_max_f32 v26, 0, v26", f"v_add_f32 v26, {f32(EPS)}, v26", "v_rsq_f32 v26, v26"]
                E = ["s_nop 1"] + E
            else:
                E = ["ds_write_b32 v7, v26", "v_mul_f32 v24, -0.5, v24", "v_cvt_pk_bf16_f32 v25, v24, v24", "v_lshlrev_b32 v25, 16, v25",
                     "v_sub_f32 v27, v24, v25", "v_cvt_pk_bf16_f32 v148, v25, v27", "v_mov_b32 v150, 0", "v_mov_b32 v151, 0",
                     "v_mov_b32 v149, v148", f"v_mul_f32 v28, {f32(0.25 * LOG2E)}, v26", "v_mov_b32 v27, v26", "v_mov_b32 v29, v28"]
            R = E
            n3 = (len(R) + 2) // 3
        else:
            n3 = 3
        for r in R[:n3]: a(r)
        a(M[1])
        for r in R[n3:2 * n3]: a(r)
        a(M[2])
        for r in R[2 * n3:]: a(r)
    a("s_waitcnt lgkmcnt(0)")
    a("s_barrier")
    for p in range(3):
        a(f"ds_read_b128 {vr(80 + 4 * p, 4)}, v6 offset:{p * 512}")
    for g in range(4):
        a(f"ds_read_b128 {vr(96 + 4 * g, 4)}, v1 offset:{g * 32}")
    CF = 152
    for p in range(3):
        a(f"v_mov_b32 v{CF + 4 * p + 2}, 0")
        a(f"v_mov_b32 v{CF + 4 * p + 3}, 0")
    for p in range(3):
        b = 80 + 4 * p; f = CF + 4 * p
        a(f"s_waitcnt lgkmcnt({6 - p})")
        a(f"v_add_f32 v{b}, v{b}, v{b+1}")
        a(f"v_add_f32 v{b+2}, v{b+2}, v{b+3}")
        a(f"v_add_f32 v{b}, v{b}, v{b+2}")
        a(f"v_cvt_pk_bf16_f32 v{f}, v{b}, v{b}")
        a(f"v_lshlrev_b32 v{b+1}, 16, v{f}")
        a(f"v_sub_f32 v{b+1}, v{b}, v{b+1}")
        a(f"v_cvt_pk_bf16_f32 v{f+1}, v{b+1}, v{b+1}")
        if p >= 1:
            q = p - 1
            a(MF32(vr(ACC + 16 * q, 16), vr(CF + 4 * q, 4), vr(148, 4)))
    a("s_waitcnt lgkmcnt(0)")
    a("s_nop 0")
    a(MF32(vr(ACC + 32, 16), vr(148, 4), vr(CF + 8, 4)))
    a("s_nop 1")
    for p in range(3):
        b = ACC + 16 * p; o = 112 + 8 * p
        for i in range(0, 16, 2):
            sc = "v[28:29]" if p == 0 else "v[26:27]" if p == 1 else vr(96 + i, 2)
            a(f"v_pk_mul_f32 {vr(b + i, 2)}, {sc}, {vr(b + i, 2)}")
        for i in range(8):
            a(f"v_cvt_pk_bf16_f32 v{o+i}, v{b+2*i}, v{b+2*i+1}")
        if p < 2:
            a(f"buffer_store_dwordx4 {vr(o, 4)}, v2, s[16:19], s{29 if p == 0 else 32} offen")
            a(f"buffer_store_dwordx4 {vr(o + 4, 4)}, v2, s[16:19], s{31 if p == 0 else 33} offen")
        else:
            a(f"buffer_store_dwordx4 {vr(o, 4)}, v3, s[16:19], s34 offen")
            a(f"buffer_store_dwordx4 {vr(o + 4, 4)}, v3, s[16:19], s34 offen offset:512")
    stamp_end(a, 0, 7, 16)
    if DBGK1:
        a("s_waitcnt vmcnt(0)")
        a("s_memrealtime s[68:69]")
        a("s_memtime s[70:71]")
        a("s_waitcnt lgkmcnt(0)")
        a("s_sub_u32 s70, s70, s66")
        a("s_cmp_lg_u32 s2, 0")
        a("s_cbranch_scc1 K1_END")
        a(f"s_mov_b32 s74, {DBGOFF}")
        a("v_mov_b32 v0, 0")
        a("v_mov_b32 v2, s64")
        a("v_mov_b32 v3, s68")
        a("v_mov_b32 v4, s70")
        a("buffer_store_dwordx3 v[2:4], v0, s[16:19], s74 offen")
    a.label("K1_END")
    a("s_endpgm")
    return n, a, kd(n, 168, 168), (256, 512, SCR3 + 512)


def k234():
    a = Asm(); n = "k2_mid_kernel"
    kernel_head(a, n)
    Q = 4; NEGM = 16; S = [32, 48]; O = 64; P = 80; KR = 88; VR = 100; W = 128
    SCR = 131072
    K1C = 2 * math.sqrt(2 / math.pi) * LOG2E
    vm = []
    def V(ins, tag=None):
        a(ins); vm.append(tag)
    def vmwait(tag, extra=""):
        idx = max(i for i, t in enumerate(vm) if t == tag)
        a(f"s_waitcnt vmcnt({len(vm) - 1 - idx}){extra}")
    a("s_cmp_ge_u32 s2, 256")
    a("s_cbranch_scc1 K2_END")
    stamp(a, 0)
    if DBGK1:
        a("s_memrealtime s[64:65]")
        a("s_memtime s[66:67]")
    a("s_load_dwordx2 s[4:5], s[0:1], 72")
    a("s_load_dwordx4 s[40:43], s[0:1], 32")
    a("s_load_dwordx2 s[44:45], s[0:1], 16")
    a("s_load_dwordx2 s[46:47], s[0:1], 0")
    a("s_load_dwordx2 s[48:49], s[0:1], 48")
    a("s_load_dwordx2 s[62:63], s[0:1], 56")
    a("v_lshrrev_b32 v1, 6, v0")
    a("v_and_b32 v0, 63, v0")
    a("v_readfirstlane_b32 s22, v1")
    a("s_and_b32 s23, s2, 7")
    a("s_lshl_b32 s23, s23, 2")
    a("s_bfe_u32 s29, s2, 0x20003")
    a("s_add_u32 s23, s23, s29")
    a("s_lshr_b32 s24, s2, 5")
    a("s_lshl_b32 s25, s23, 16")
    a("v_lshlrev_b32 v2, 4, v0")
    a("s_lshl_b32 s26, s22, 10")
    a("s_add_u32 s27, s25, s26")
    a("s_lshl_b32 s28, s24, 13")
    a("s_add_u32 s28, s28, s27")
    a(f"s_add_u32 s27, s27, {KF}")
    a("s_mov_b32 m0, s26")
    a(f"s_add_u32 s30, s27, {VF - KF}")
    a("s_waitcnt lgkmcnt(0)")
    srd(a, 8, 4, WS_SIZE)
    V("buffer_load_dwordx4 v2, s[8:11], s27 offen lds", "c0")
    V(f"buffer_load_dwordx4 {vr(Q, 4)}, v2, s[8:11], s28 offen", "c0")
    a("s_add_u32 m0, s26, 65536")
    a("s_nop 0")
    V("buffer_load_dwordx4 v2, s[8:11], s30 offen lds", "c0")
    def kvdma(c, isv):
        a(f"s_add_u32 m0, s26, {c * 8192 + isv * 65536}")
        a(f"s_add_u32 s29, s27, {c * 8192 + isv * (VF - KF)}")
        V("buffer_load_dwordx4 v2, s[8:11], s29 offen lds", f"c{c}")
    kvdma(1, 0); kvdma(1, 1)
    a("s_and_b32 s36, s2, 3")
    a("s_lshl_b32 s36, s36, 2")
    a("s_bfe_u32 s29, s2, 0x20003")
    a("s_add_u32 s36, s36, s29")
    a("s_bfe_u32 s37, s2, 0x10002")
    a("s_lshl_b32 s37, s37, 3")
    a("s_add_u32 s37, s37, s24")
    a("s_min_u32 s38, s22, 6")
    a("s_mul_i32 s39, s37, 7")
    a("s_add_u32 s39, s39, s38")
    a("s_lshl_b32 s54, s39, 5")
    srd(a, 12, 40, 512 * 1792 * 2)
    srd(a, 16, 42, 512 * 1792 * 2)
    a("s_lshl_b32 s55, s22, 12")
    a(f"s_add_u32 s55, s55, {SCR}")
    a("v_lshrrev_b32 v8, 1, v0")
    a("v_mul_u32_u24 v8, 3584, v8")
    a("v_and_b32 v1, 1, v0")
    a("v_lshl_add_u32 v8, v1, 4, v8")
    a("v_lshrrev_b32 v11, 5, v0")
    a("v_bfe_u32 v1, v0, 2, 2")
    a("v_lshl_add_u32 v10, v11, 2, v1")
    a("v_lshlrev_b32 v9, 5, v10")
    a("v_and_b32 v1, 3, v0")
    a("v_lshl_add_u32 v9, v1, 3, v9")
    a("v_bfe_u32 v1, v0, 4, 1")
    a("v_lshl_add_u32 v9, v1, 10, v9")
    a("v_add_u32 v9, s55, v9")
    a("v_and_b32 v12, 15, v0")
    a("v_lshl_add_u32 v12, v11, 4, v12")
    a("v_lshlrev_b32 v12, 4, v12")
    a("v_add_u32 v3, 65536, v12")
    a("s_mov_b32 s34, 0x0000ffff")
    a("s_mov_b32 s35, 0x0000ffff")
    a(f"s_mov_b32 s50, {f32(2.0**60)}")
    for i in range(24):
        a(f"v_mov_b32 v{VR + i}, 0x3f803f80")
    for i in range(16):
        a(f"v_mov_b32 v{O + i}, 0")
    for i in range(4, 8):
        a(f"v_mov_b32 v{P + i}, 0")
    def kread(t): return f"ds_read_b128 {vr(KR + 4 * (t % 3), 4)}, v2 offset:{t * 1024}"
    def vread(t):
        return ["s_mov_b64 exec, s[34:35]"] + \
               [f"ds_read_b128 {vr(VR + 8 * (t % 3) + 4 * j, 4)}, v3 offset:{t * 1024 + j * 512}" for j in range(2)] + \
               ["s_mov_b64 exec, -1"]
    vmwait("c0")
    a("s_barrier")
    a(kread(0)); a(kread(1))
    for x in vread(0): a(x)
    a(kread(2))
    for x in vread(1): a(x)
    a("s_waitcnt lgkmcnt(6)")
    s0 = S[0]
    a(MF32(vr(s0, 16), vr(KR, 4), vr(Q, 4), "0"))
    a("s_nop 11")
    for i in range(5):
        a(f"v_max3_f32 v{NEGM + i}, v{s0+3*i}, v{s0+3*i+1}, v{s0+3*i+2}")
    a(f"v_max3_f32 v14, v{NEGM}, v{NEGM+1}, v{s0+15}")
    a(f"v_max3_f32 v15, v{NEGM+2}, v{NEGM+3}, v{NEGM+4}")
    a("v_max_f32 v14, v14, v15")
    def set_negm():
        a("v_mov_b32 v15, v14")
        a("s_nop 1")
        a("v_permlane32_swap_b32 v14, v15")
        a("v_max_f32 v14, v14, v15")
        for i in range(16):
            a(f"v_sub_f32 v{NEGM + i}, 0, v14")
        a("s_nop 1")
    set_negm()
    a(MF32(vr(S[0], 16), vr(KR, 4), vr(Q, 4), vr(NEGM, 16)))
    a("s_nop 8")
    T0 = 12
    cnt = [0]
    def b(ins):
        if K2_Y:
            if cnt[0] == 0: a("s_setprio 0")
            if cnt[0] == K2_Y: a("s_setprio 1")
        cnt[0] += 1
        a(ins)
    for t in range(64):
        if t % 4 == 0: cnt[0] = 0
        Sc = S[t % 2]; Sn = S[(t + 1) % 2]
        E = lambda i: b(f"v_exp_f32 v{Sc+i}, v{Sc+i}")
        C = lambda i: b(f"v_cvt_pk_bf16_f32 v{P+i}, v{Sc+2*i}, v{Sc+2*i+1}")
        if t == 5: vmwait("c1"); a("s_barrier")
        if t == 13: vmwait("c5"); a("s_barrier")
        if t == 24: vmwait("c7"); a("s_barrier")
        nrd = lambda u: (1 if u + 3 < 64 else 0) + (2 if u + 2 < 64 else 0)
        b(f"s_waitcnt lgkmcnt({nrd(t - 1) if t > 0 else 3})")
        if t < 63:
            b(MF32(vr(Sn, 16), vr(KR + 4 * ((t + 1) % 3), 4), vr(Q, 4), vr(NEGM, 16)))
        for i in range(5): E(i)
        b(MF32(vr(O, 16), vr(VR + 8 * ((t - 1) % 3) + 4, 4), vr(P + 4, 4)))
        u, ph = divmod(t - T0 - 5, 3)
        if t >= T0 + 5 and ph == 0 and u < 16:
            vmwait(f"w{u}")
            for s in range(2):
                for e in range(2):
                    a(f"ds_read_b64_tr_b16 {vr(W + 8 * u + 4 * s + 2 * e, 2)}, v9 offset:{(u % 2) * 2048 + s * 512 + e * 256}")
        if t + 3 < 64: b(kread(t + 3))
        if t + 2 < 64:
            for x in vread(t + 2): b(x)
        for i in range(5, 8): E(i)
        for i in range(4): C(i)
        E(8); E(9)
        b(MF32(vr(O, 16), vr(VR + 8 * (t % 3), 4), vr(P, 4)))
        if t < 12: kvdma(2 + t // 2, t % 2)
        u, ph = divmod(t - T0, 3)
        if t >= T0 and ph == 0 and u < 16:
            a(f"s_add_u32 m0, s55, {(u % 2) * 2048}")
            a(f"s_add_u32 s29, s54, {u * 32 * 3584}")
            V("buffer_load_dwordx4 v8, s[12:15], s29 offen lds", f"w{u}")
            a(f"s_add_u32 m0, s55, {(u % 2) * 2048 + 1024}")
            a("s_nop 0")
            V("buffer_load_dwordx4 v8, s[16:19], s29 offen lds", f"w{u}")
        if t == 59 and K2_TCH:
            a("s_lshr_b32 s29, s2, 3")
            a("s_lshl_b32 s29, s29, 14")
            a("s_lshl_b32 s31, s22, 11")
            a("s_add_u32 s29, s29, s31")
            srd(a, 96, 44, 512 * 512 * 2)
            a("v_and_b32 v12, 15, v0")
            a("v_lshlrev_b32 v12, 7, v12")
            V("buffer_load_dword v124, v12, s[96:99], s29 offen", "tch")

        for i in range(10, 16): E(i)
        for i in range(4, 8): C(i)
    a("s_setprio 0")
    a("s_lshl_b32 s29, s24, 3")
    a("s_add_u32 s29, s29, s22")
    a(MF32(vr(O, 16), vr(VR + 8 * (63 % 3) + 4, 4), vr(P + 4, 4)))
    a("s_lshl_b32 s31, s24, 8")
    a("s_lshl_b32 s30, s23, 2")
    a("s_add_u32 s31, s31, s30")
    a(f"s_add_u32 s31, s31, {FL2}")
    a("s_lshl_b32 s29, s29, 15")
    a("s_lshl_b32 s30, s23, 10")
    a("s_add_u32 s29, s29, s30")
    a(f"s_add_u32 s29, s29, {OF}")
    a("v_mov_b32 v12, 0")
    a("v_mov_b32 v13, 1")
    a("s_waitcnt lgkmcnt(0)")
    a("s_nop 0")
    a(f"v_cmp_gt_f32 vcc, s50, v{O + 8}")
    a("s_nop 1")
    a("s_cmp_eq_u64 vcc, -1")
    a("s_cbranch_scc0 K2_FALLBACK")
    a.label("K2_FIN")
    a(f"v_rcp_f32 v14, v{O + 8}")
    a("s_nop 0")
    for i in range(8):
        a(f"v_mul_f32 v{O+i}, v14, v{O+i}")
    for i in range(4):
        a(f"v_cvt_pk_bf16_f32 v{P+i}, v{O+2*i}, v{O+2*i+1}")
    a(f"buffer_store_dwordx4 {vr(P, 4)}, v2, s[8:11], s29 offen sc1")
    stamp(a, 1)
    srd(a, 12, 44, 512 * 512 * 2)
    srd(a, 16, 46, 2048 * 512 * 2)
    a("s_and_b32 s25, s22, 1")
    a("s_bfe_u32 s26, s22, 0x10001")
    a("s_lshr_b32 s27, s22, 2")
    a("s_lshl_b32 s28, s24, 1")
    a("s_add_u32 s28, s28, s25")
    a("s_lshl_b32 s30, s23, 1")
    a("s_add_u32 s30, s30, s26")
    a("v_lshrrev_b32 v8, 2, v0")
    a("v_lshlrev_b32 v8, 10, v8")
    a("v_and_b32 v1, 3, v0")
    a("v_lshl_add_u32 v8, v1, 4, v8")
    a("v_lshlrev_b32 v9, 6, v10")
    a("v_lshl_add_u32 v9, v1, 3, v9")
    a("v_bfe_u32 v1, v0, 4, 1")
    a("v_lshl_add_u32 v9, v1, 5, v9")
    a("s_lshl_b32 s32, s25, 15")
    a("s_lshl_b32 s33, s27, 14")
    a("s_add_u32 s32, s32, s33")
    a("v_add_u32 v9, s32, v9")
    a("v_and_b32 v3, 31, v0")
    a("v_lshlrev_b32 v3, 10, v3")
    a("v_lshl_add_u32 v3, v11, 4, v3")
    a("s_lshl_b32 s51, s30, 15")
    a("s_lshl_b32 s33, s28, 6")
    a("s_add_u32 s51, s51, s33")
    RES = 112
    for j in range(2):
        a(f"buffer_load_dwordx4 {vr(RES + 4 * j, 4)}, v3, s[16:19], s51 offen offset:{j * 32}")
    a("s_waitcnt vmcnt(0)")
    a("s_barrier")
    def dstore(ins):
        return [ins + " sc1"]
    def signal(lbl, local=False):
        a("s_cmp_eq_u32 s22, 7")
        a(f"s_cbranch_scc0 {lbl}")
        a("s_mov_b64 exec, 1")
        ins = "buffer_store_dword v13, v12, s[8:11], s31 offen"
        for x in (dstore(ins) if local else [ins + " sc1"]): a(x)
        a("s_mov_b64 exec, -1")
        a.label(lbl)
    signal("K2_S2")
    a("s_lshl_b32 s33, s26, 13")
    a("s_add_u32 s52, s32, s33")
    a("s_lshl_b32 s53, s27, 1")
    a("s_add_u32 s53, s53, s26")
    a("s_lshl_b32 s53, s53, 17")
    a("s_lshl_b32 s33, s28, 6")
    a("s_add_u32 s53, s53, s33")
    for i in range(8):
        a(f"s_add_u32 m0, s52, {i * 1024}")
        a(f"s_add_u32 s29, s53, {i * 16384}")
        a("buffer_load_dwordx4 v8, s[12:15], s29 offen lds")
    def poll(lbl, sreg, nfl):
        a(f"v_and_b32 v1, {nfl - 1}, v0")
        a("v_lshlrev_b32 v1, 2, v1")
        a("s_mov_b32 s33, 0")
        a.label(lbl)
        if POLL_SLEEP: a(f"s_sleep {POLL_SLEEP}")
        a(f"buffer_load_dword v15, v1, s[8:11], s{sreg} offen sc1")
        a("s_add_u32 s33, s33, 1")
        a("s_waitcnt vmcnt(0)")
        a("v_cmp_eq_u32 vcc, 1, v15")
        a("s_cmp_gt_u32 s33, 0x40000")
        a(f"s_cbranch_scc1 {lbl}_X")
        a("s_cmp_eq_u64 vcc, -1")
        a(f"s_cbranch_scc0 {lbl}")
        a.label(f"{lbl}_X")
    a("s_cmp_eq_u32 s22, 7")
    a("s_cbranch_scc1 K2_POLL2")
    a("s_mov_b32 s29, 0x3f803f80")
    for i in range(4): a(f"v_mov_b32 v{124 + i}, 0")
    for i in range(128):
        a(f"v_dot2c_f32_bf16 v{124 + i % 4}, s29, v{W + i}")
    a("s_nop 2")
    a("v_add_f32 v124, v124, v125")
    a("v_add_f32 v126, v126, v127")
    a("v_add_f32 v126, v124, v126")
    a("v_cvt_pk_bf16_f32 v124, v126, v126")
    a("v_lshlrev_b32 v125, 16, v124")
    a("v_sub_f32 v125, v126, v125")
    a("v_cvt_pk_bf16_f32 v125, v125, v125")
    a("v_mov_b32 v126, 0")
    a("v_mov_b32 v127, 0")
    a("s_branch K2_B2")
    a.label("K2_POLL2")
    a("s_lshr_b32 s29, s23, 2")
    a("s_lshl_b32 s29, s29, 8")
    a(f"s_add_u32 s29, s29, {FL2}")
    poll("K2_P2", 29, 32)
    a.label("K2_B2")
    a("s_waitcnt vmcnt(0)")
    a("s_barrier")
    stamp(a, 2)
    a("s_lshl_b32 s29, s25, 15")
    a("s_lshl_b32 s33, s26, 14")
    a("s_add_u32 s29, s29, s33")
    a("s_lshl_b32 s33, s27, 12")
    a("s_add_u32 s29, s29, s33")
    a("s_lshl_b32 s33, s23, 16")
    a("s_add_u32 s33, s33, s29")
    a(f"s_add_u32 s33, s33, {OF}")
    for stg in range(2):
        a(f"s_add_u32 m0, s29, {65536 + stg * 8192}")
        if stg: a("s_add_u32 s33, s33, 8192")
        else: a("s_nop 0")
        for i in range(4):
            a(f"buffer_load_dwordx4 v2, s[8:11], s33 offen offset:{i * 1024} {LD_SC} lds")
    A3 = 16; WO = 32; OB = 96
    for s in range(16):
        for e in range(2):
            a(f"ds_read_b64_tr_b16 {vr(WO + 4 * s + 2 * e, 2)}, v9 offset:{s * 1024 + e * 512}")
    a("s_lshl_b32 s29, s26, 15")
    a("s_lshl_b32 s33, s27, 14")
    a("s_add_u32 s29, s29, s33")
    a("s_add_u32 s29, s29, 65536")
    a("v_add_u32 v8, s29, v2")
    a("s_and_b32 s29, s22, 3")
    a("s_lshl_b32 s29, s29, 12")
    a(f"s_add_u32 s29, s29, {SCR}")
    a("v_add_u32 v9, s29, v2")
    for j in range(2):
        a(f"v_permlane32_swap_b32 v{RES + 4 * j}, v{RES + 4 * j + 2}")
        a(f"v_permlane32_swap_b32 v{RES + 4 * j + 1}, v{RES + 4 * j + 3}")
    for stg in range(2):
        a(f"s_waitcnt vmcnt({4 - 4 * stg}) lgkmcnt(0)")
        a("s_barrier")
        rd = lambda s: f"ds_read_b128 {vr(OB + 4 * (s % 4), 4)}, v8 offset:{s * 1024}"
        for s in range(8 * stg, 8 * stg + 3): a(rd(s))
        for s in range(8 * stg, 8 * stg + 8):
            left = 8 * stg + 7 - s
            if left >= 3: a(rd(s + 3))
            a(f"s_waitcnt lgkmcnt({min(left, 3)})")
            a(MF32(vr(A3, 16), vr(WO + 4 * s, 4), vr(OB + 4 * (s % 4), 4), "0" if s == 0 else None))
    stamp(a, 3)
    a("s_cmp_lt_u32 s22, 4")
    a("s_cbranch_scc1 K2_O_LO")
    a("s_nop 9")
    for q in range(4):
        a(f"ds_write_b128 v9, {vr(A3 + 4 * q, 4)} offset:{q * 1024}")
    a("s_waitcnt lgkmcnt(0)")
    a("s_barrier")
    a("s_lshr_b32 s31, s23, 1")
    a("s_lshl_b32 s31, s31, 8")
    a("s_and_b32 s33, s23, 1")
    a("s_lshl_b32 s33, s33, 3")
    a("s_add_u32 s33, s33, s24")
    a("s_lshl_b32 s33, s33, 2")
    a("s_add_u32 s31, s31, s33")
    a(f"s_add_u32 s31, s31, {FL3}")
    a("s_lshl_b32 s29, s36, 8")
    a(f"s_add_u32 s29, s29, {FL3}")
    a("s_barrier")
    signal("K2_S3", True)
    a("s_cmp_eq_u32 s22, 7")
    a("s_cbranch_scc0 K2_B3")
    poll("K2_P3", 29, 16)
    a("s_branch K2_B3")
    a.label("K2_O_LO")
    a("s_mov_b32 s29, 0xffff0000")
    for i in range(8):
        a(f"v_lshlrev_b32 v{48 + 2 * i}, 16, v{RES + i}")
        a(f"v_and_b32 v{49 + 2 * i}, s29, v{RES + i}")
    for i in range(16):
        a(f"v_add_f32 v{A3 + i}, v{A3 + i}, v{48 + i}")
    a("s_lshl_b32 s52, s30, 15")
    a("s_lshl_b32 s33, s28, 11")
    a("s_add_u32 s52, s52, s33")
    a(f"s_add_u32 s52, s52, {HF}")
    a("s_lshl_b32 s53, s30, 12")
    a("s_lshl_b32 s33, s28, 8")
    a("s_add_u32 s53, s53, s33")
    a(f"s_add_u32 s53, s53, {ST}")
    a("v_lshlrev_b32 v3, 3, v0")
    a("s_mov_b32 s29, 0x3f803f80")
    a("v_mov_b32 v14, 0")
    a("v_mov_b32 v15, 0")
    a("s_barrier")
    for q in range(4):
        a(f"ds_read_b128 {vr(32 + 4 * q, 4)}, v9 offset:{q * 1024}")
    o = 112
    for q in range(4):
        a(f"s_waitcnt lgkmcnt({3 - q})")
        for i in range(4 * q, 4 * q + 4):
            a(f"v_add_f32 v{A3 + i}, v{A3 + i}, v{32 + i}")
        for i in range(2 * q, 2 * q + 2):
            a(f"v_cvt_pk_bf16_f32 v{o + i}, v{A3 + 2 * i}, v{A3 + 2 * i + 1}")
        if q % 2:
            j = q // 2
            for x in dstore(f"buffer_store_dwordx4 {vr(o + 4 * j, 4)}, v2, s[8:11], s52 offen offset:{j * 1024}"): a(x)
    for i in range(8):
        a(f"v_dot2c_f32_bf16 v14, s29, v{o + i}")
        a(f"v_dot2c_f32_bf16 v15, v{o + i}, v{o + i}")
    a("s_nop 2")
    a("v_mov_b32 v16, v14")
    a("v_mov_b32 v17, v15")
    a("s_nop 0")
    a("v_permlane32_swap_b32 v14, v16")
    a("v_permlane32_swap_b32 v15, v17")
    a("v_add_f32 v14, v14, v16")
    a("v_add_f32 v15, v15, v17")
    a("s_mov_b64 exec, 0xffffffff")
    for x in dstore("buffer_store_dwordx2 v[14:15], v3, s[8:11], s53 offen"): a(x)
    a("s_mov_b64 exec, -1")
    a("s_waitcnt vmcnt(0)")
    a("s_barrier")
    a.label("K2_B3")
    a("v_add_u32 v3, 65536, v2")
    a("v_and_b32 v8, 31, v0")
    a("v_lshlrev_b32 v8, 4, v8")
    a(f"v_add_u32 v8, {SCR}, v8")
    a(f"s_mul_i32 s32, s36, {4 * 112 * 1024}")
    a("s_lshl_b32 s33, s39, 10")
    a("s_add_u32 s32, s32, s33")
    a(f"s_add_u32 s32, s32, {GF}")
    a("s_and_b32 s25, s22, 3")
    a("s_lshl_b32 s30, s36, 2")
    a("s_add_u32 s30, s30, s25")
    def hread(dst, tt, s):
        return f"ds_read_b128 {vr(dst, 4)}, v{2 + tt // 2} offset:{(tt % 2) * 32768 + s * 1024}"
    def epi(g, z, st, tt):
        u = g + 8; o = []
        ve, a0, a1 = f"v{st+1}", f"v{st+2}", f"v{st+3}"
        o += [f"v_mul_f32 v{z+i}, v{g+i}, v{g+i}" for i in range(8)]
        o += [f"v_fma_f32 v{z+i}, v{z+i}, {a1}, {a0}" for i in range(8)]
        o += [f"v_mul_f32 v{z+i}, v{z+i}, v{g+i}" for i in range(8)]
        for i in range(8):
            o += [f"v_exp_f32 v{z+i}, v{z+i}", f"v_mul_f32 v{g+i}, v{g+i}, v{u+i}"]
        o += [f"v_fma_f32 v{z+i}, v{z+i}, {ve}, {ve}" for i in range(8)]
        o += [f"v_rcp_f32 v{z+i}, v{z+i}" for i in range(8)]
        o += [f"s_add_u32 s29, s32, {tt * 112 * 1024}"]
        o += [f"v_mul_f32 v{g+i}, v{g+i}, v{z+i}" for i in range(8)]
        o += [f"v_cvt_pk_bf16_f32 v{u+i}, v{g+2*i}, v{g+2*i+1}" for i in range(4)]
        o += dstore(f"buffer_store_dwordx4 {vr(u, 4)}, v2, s[8:11], s29 offen")
        return o
    ACC = 16; HB = 32; ZB = 80; SB = 88; TB = 92; NR = 12; STR = [96, 100, 104, 108]
    a(f"v_mov_b32 v{TB + 2}, 0")
    a(f"v_mov_b32 v{TB + 3}, 0")
    def tile(tt, hooks, pre=None, last=False, late=False):
        a("s_setprio 1")
        rd = lambda ks: hread(HB + 4 * (ks % NR), tt, ks)
        if pre is None:
            for ks in range(NR - 1): a(rd(ks))
        for ks in range(32):
            if ks + NR - 1 < 32: a(rd(ks + NR - 1))
            if ks % 4 == 0:
                a(f"s_waitcnt lgkmcnt({min(ks + NR - 1, 31) - (ks + 3)})")
            a(MF32(vr(ACC, 16), vr(W + 4 * ks, 4), vr(HB + 4 * (ks % NR), 4), "0" if ks == 0 else None))
            if ks == G_P2: a("s_setprio 2")
            if not late:
                if ks == 22: a(f"ds_read_b128 {vr(SB, 4)}, v8 offset:{tt * 512}")
                if ks == 29:
                    a(f"v_mov_b32 v{TB}, v{SB}")
                    a(f"v_mov_b32 v{TB + 1}, v{SB}")
            for x in hooks.get(ks, []): a(x)
        if late:
            a(f"ds_read_b128 {vr(SB, 4)}, v8 offset:{tt * 512}")
            a("s_waitcnt lgkmcnt(0)")
            a(f"v_mov_b32 v{TB}, v{SB}")
            a(f"v_mov_b32 v{TB + 1}, v{SB}")
            a("s_nop 1")
        a(MF32(vr(ACC, 16), vr(124, 4), vr(TB, 4)))
        a("s_setprio 0")
        for x in hooks.get("post", []): a(x)
        if not last:
            for ks in range(NR - 1): a(hread(HB + 4 * ks, tt + 1, ks))
        else:
            a("s_nop 10")
        for x in epi(ACC, ZB, SB, tt): a(x)
    a("s_cmp_lt_u32 s22, 4")
    a("s_cbranch_scc1 K2_GA")
    a("s_lshl_b32 s28, s25, 13")
    a("s_lshl_b32 s26, s36, 17")
    a("s_add_u32 s26, s26, s28")
    a(f"s_add_u32 s26, s26, {HF}")
    a("s_barrier")
    stamp(a, 4)
    def hdma(tt):
        for g in range(2):
            a(f"s_add_u32 m0, s28, {tt * 32768 + g * 4096}")
            a(f"s_add_u32 s29, s26, {tt * 32768 + g * 4096}")
            for i in range(4):
                a(f"buffer_load_dwordx4 v2, s[8:11], s29 offen offset:{i * 1024} {LD_SC} lds")
    hdma(0); hdma(1)
    a("s_waitcnt vmcnt(8)")
    a("s_barrier")
    if GSTAMP: stamp(a, 3)
    hdma(2); hdma(3)
    a("s_waitcnt vmcnt(16)")
    a("s_barrier")
    if GSTAMP: stamp(a, 4)
    a("s_cmp_eq_u32 s22, 7")
    a("s_cbranch_scc1 K2_W7")
    tile(0, {GB3: ["s_waitcnt vmcnt(0)", "s_barrier"]})
    tile(1, {}, pre=1); tile(2, {}, pre=1)
    tile(3, {}, pre=1, last=True)
    a("s_branch K2_DOWN")
    a.label("K2_W7")
    a("s_waitcnt vmcnt(0)")
    a("s_barrier")
    if K4_TOUCH:
        srd(a, 12, 48, 1792 * 512 * 2)
        a("s_lshr_b32 s29, s2, 3")
        a("s_mul_i32 s29, s29, 57344")
        a("v_lshlrev_b32 v13, 7, v0")
        for i in range(7):
            a("buffer_load_dword v14, v13, s[12:15], s29 offen")
            a("s_add_u32 s29, s29, 8192")
    a("s_branch K2_DOWN")
    a.label("K2_GA")
    a("s_lshl_b32 s26, s30, 12")
    a(f"s_add_u32 s26, s26, {ST}")
    a("s_lshl_b32 s28, s25, 9")
    a("v_add_u32 v9, s28, v8")
    a("v_and_b32 v1, 31, v0")
    a("v_lshlrev_b32 v1, 3, v1")
    a("v_lshl_add_u32 v1, v11, 11, v1")
    a("s_barrier")
    stamp(a, 4)
    for q in range(8):
        a(f"buffer_load_dwordx2 {vr(STR[q // 2] + 2 * (q % 2), 2)}, v1, s[8:11], s26 offen offset:{q * 256} sc1")
    r0 = STR[0]
    SQ = ["s_waitcnt vmcnt(0)"]
    for q in range(1, 4):
        SQ += [f"v_add_f32 v{r0 + i}, v{r0 + i}, v{STR[q] + i}" for i in range(4)]
    SQ += [f"v_add_f32 v12, v{r0}, v{r0 + 2}", f"v_add_f32 v13, v{r0 + 1}, v{r0 + 3}",
           "v_mov_b32 v14, v12", "v_mov_b32 v15, v13", "s_nop 0",
           "v_permlane32_swap_b32 v12, v14", "v_permlane32_swap_b32 v13, v15",
           "v_add_f32 v12, v12, v14", "v_add_f32 v13, v13, v15",
           f"v_mul_f32 v12, {f32(-1/512)}, v12", f"v_mul_f32 v13, {f32(1/512)}, v13",
           "v_fma_f32 v13, -v12, v12, v13", "v_max_f32 v13, 0, v13", f"v_add_f32 v{r0 + 1}, {f32(EPS)}, v13",
           f"v_rsq_f32 v14, v{r0 + 1}", "v_cvt_pk_bf16_f32 v15, v12, v12", "v_lshlrev_b32 v15, 16, v15",
           "v_sub_f32 v12, v12, v15", f"v_cvt_pk_bf16_f32 v{r0}, v15, v12",
           f"v_mul_f32 v{r0 + 2}, {f32(-K1C)}, v14", "v_mul_f32 v14, v14, v14", f"v_mul_f32 v14, v14, v{r0 + 2}",
           f"v_mul_f32 v{r0 + 3}, {f32(0.044715)}, v14"]
    hooks = {}
    for k_ in range(10):
        hooks[8 + k_] = SQ[4 * k_: 4 * k_ + 4]
    hooks[29] = [f"ds_write_b128 v9, {vr(r0, 4)}"]
    hooks[31] = ["s_waitcnt lgkmcnt(0)", "s_barrier"]
    a("s_barrier")
    if GSTAMP: stamp(a, 3)
    tile(0, hooks, late=True)
    if GSTAMP: stamp(a, 4)
    tile(1, {GA3: ["s_barrier"]}, pre=1); tile(2, {}, pre=1)
    tile(3, {}, pre=1, last=True)
    a.label("K2_DOWN")
    stamp(a, 5)
    AC5 = 16; WD = 128; GS = [80, 88, 96, 104, 240, 248, 120]; KS = 14; NG = len(GS)
    srd(a, 12, 48, 1792 * 512 * 2)
    srd(a, 16, 62, 2048 * 512 * 2)
    a("s_lshl_b32 s31, s36, 8")
    a("s_lshl_b32 s33, s37, 2")
    a("s_add_u32 s31, s31, s33")
    a(f"s_add_u32 s31, s31, {FL4}")
    a("s_and_b32 s26, s22, 1")
    a("s_bfe_u32 s27, s22, 0x10001")
    a("s_lshl_b32 s28, s24, 1")
    a("s_add_u32 s28, s28, s26")
    a("s_lshl_b32 s30, s23, 1")
    a("s_add_u32 s30, s30, s27")
    a(f"s_mul_i32 s29, s22, {KS * 1024}")
    a(f"s_mul_i32 s52, s30, {112 * 1024}")
    a("s_add_u32 s52, s52, s29")
    a(f"s_add_u32 s52, s52, {GF}")
    a("s_xor_b32 s53, s30, 1")
    a(f"s_mul_i32 s53, s53, {112 * 1024}")
    a("s_add_u32 s53, s53, s29")
    a(f"s_add_u32 s53, s53, {GF}")
    a(f"s_mul_i32 s29, s22, {KS * 16384}")
    a("s_lshl_b32 s54, s28, 6")
    a("s_xor_b32 s55, s54, 64")
    a("s_add_u32 s54, s54, s29")
    a("s_add_u32 s55, s55, s29")
    a("s_lshl_b32 s32, s22, 14")
    a("v_lshrrev_b32 v8, 2, v0")
    a("v_lshlrev_b32 v8, 10, v8")
    a("v_and_b32 v1, 3, v0")
    a("v_lshl_add_u32 v8, v1, 4, v8")
    a("v_lshlrev_b32 v9, 6, v10")
    a("v_lshl_add_u32 v9, v1, 3, v9")
    a("v_bfe_u32 v1, v0, 4, 1")
    a("v_lshl_add_u32 v9, v1, 5, v9")
    a("v_add_u32 v9, s32, v9")
    a("v_mov_b32 v12, 0")
    a("v_mov_b32 v13, 1")
    a("v_and_b32 v3, 31, v0")
    a("v_lshlrev_b32 v3, 10, v3")
    a("v_lshl_add_u32 v3, v11, 4, v3")
    for t in range(4):
        a(f"s_xor_b32 s29, s25, {t}")
        a("s_lshl_b32 s29, s29, 14")
        a("s_lshl_b32 s33, s25, 12")
        a("s_add_u32 s29, s29, s33")
        a(f"v_add_u32 v{4 + t}, s29, v2")
    a("s_waitcnt vmcnt(0)")
    a("s_barrier")
    signal("K2_S4", True)
    def wdma(s0_, s1_):
        for s in range(s0_, s1_):
            for i in range(2):
                a(f"s_add_u32 m0, s32, {(s % 8) * 2048 + i * 1024}")
                a(f"s_add_u32 s29, s{54 + i}, {s * 16384}")
                a("buffer_load_dwordx4 v8, s[12:15], s29 offen lds")
    def wtr(s0_, s1_):
        for s in range(s0_, s1_):
            for i in range(2):
                for e in range(2):
                    a(f"ds_read_b64_tr_b16 {vr(WD + 8 * s + 4 * i + 2 * e, 2)}, v9 offset:{(s % 8) * 2048 + i * 1024 + e * 512}")
    def gload(s):
        if s % 4 == 0 and s > 0:
            a("s_add_u32 s52, s52, 4096")
            a("s_add_u32 s53, s53, 4096")
        for i in range(2):
            a(f"buffer_load_dwordx4 {vr(GS[s % NG] + 4 * i, 4)}, v2, s[8:11], s{52 + i} offen offset:{(s % 4) * 1024} {LD_SC}")
    def kloop(hooks):
        for s in range(NG): gload(s)
        issued = NG
        for s in range(KS):
            a(f"s_waitcnt vmcnt({(issued - s - 1) * 2})")
            g = GS[s % NG]; w = WD + 8 * s
            B0, B1, A0, A1 = vr(g, 4), vr(g + 4, 4), vr(w, 4), vr(w + 4, 4)
            C = "0" if s == 0 else None
            a(MF32(vr(AC5, 16), A0, B0, C))
            a(MF32(vr(AC5 + 32, 16), A0, B1, C))
            a(MF32(vr(AC5 + 16, 16), A1, B0, C))
            a(MF32(vr(AC5 + 48, 16), A1, B1, C))
            if issued < KS:
                gload(issued); issued += 1
            for x in hooks.get(s, []): a(x)
    wdma(0, 8)
    a("s_waitcnt vmcnt(0)")
    wtr(0, 8)
    a("s_waitcnt lgkmcnt(0)")
    a("s_cmp_lt_u32 s22, 4")
    a("s_cbranch_scc1 K2_DLO")
    wdma(8, KS)
    a("s_cmp_eq_u32 s22, 7")
    a("s_cbranch_scc0 K2_NP4")
    a("s_lshr_b32 s29, s23, 1")
    a("s_lshl_b32 s29, s29, 8")
    a(f"s_add_u32 s29, s29, {FL4}")
    poll("K2_P4", 29, 16)
    a.label("K2_NP4")
    a("s_waitcnt vmcnt(0)")
    wtr(8, KS)
    a("s_barrier")
    stamp(a, 6)
    a("s_waitcnt lgkmcnt(0)")
    kloop({D_Y: ["s_barrier"]})
    a("s_nop 9")
    for t in (0, 2, 1, 3):
        for q in range(4):
            a(f"ds_write_b128 v{4 + t}, {vr(AC5 + 16 * t + 4 * q, 4)} offset:{q * 1024}")
    a("s_waitcnt lgkmcnt(0)")
    a("s_barrier")
    stamp_end(a, 1, 7, 8)
    a("s_endpgm")
    a.label("K2_DLO")
    wdma(8, KS)
    for t in range(1, 4):
        a(f"s_xor_b32 s29, s25, {t}")
        a("s_mul_i32 s29, s29, 12288")
        a(f"s_add_u32 s29, s29, {65536 + (t - 1) * 4096}")
        a(f"v_add_u32 v{4 + t}, s29, v2")
    a("s_mul_i32 s29, s25, 12288")
    a("s_add_u32 s29, s29, 65536")
    a("v_add_u32 v4, s29, v2")
    a("s_lshl_b32 s29, s25, 14")
    a("v_add_u32 v8, s29, v2")
    a("s_barrier")
    stamp(a, 6)
    a("s_waitcnt vmcnt(0)")
    wtr(8, KS)
    a("s_waitcnt lgkmcnt(0)")
    a("s_barrier")
    SA_ = WD; TM = WD + 16
    H1 = ["s_barrier"] + [f"ds_read_b128 {vr(WD + 16 * p_ + 4 * q, 4)}, v8 offset:{p_ * 4096 + q * 1024}" for p_ in range(4) for q in range(4)]
    H2 = ["s_waitcnt lgkmcnt(0)", "s_mov_b32 s29, 0xffff0000"]
    H2 += [f"v_add_f32 v{WD + i}, v{WD + i}, v{WD + 16 + i}" for i in range(16)]
    H2 += [f"v_add_f32 v{WD + 32 + i}, v{WD + 32 + i}, v{WD + 48 + i}" for i in range(16)]
    H3 = [f"v_add_f32 v{WD + i}, v{WD + i}, v{WD + 32 + i}" for i in range(16)]
    for i in range(8):
        H3 += [f"v_lshlrev_b32 v{WD + 16 + 2 * i}, 16, v{112 + i}", f"v_and_b32 v{WD + 17 + 2 * i}, s29, v{112 + i}"]
    H4 = [f"v_add_f32 v{WD + i}, v{WD + i}, v{WD + 16 + i}" for i in range(16)]
    kloop({9: H1, 10: H2, 11: H3, 12: H4})
    a("s_nop 9")
    for t in (2, 1, 3):
        for q in range(4):
            a(f"ds_write_b128 v{4 + t}, {vr(AC5 + 16 * t + 4 * q, 4)} offset:{q * 1024}")
    for i in range(16):
        a(f"v_add_f32 v{AC5 + i}, v{AC5 + i}, v{WD + i}")
    a("s_waitcnt lgkmcnt(0)")
    a("s_barrier")
    for t in range(3):
        for q in range(4):
            a(f"ds_read_b128 {vr(WD + 16 * t + 4 * q, 4)}, v4 offset:{t * 4096 + q * 1024}")
    for t in range(3):
        a(f"s_waitcnt lgkmcnt({8 - 4 * t})")
        for i in range(0, 16, 2):
            a(f"v_pk_add_f32 {vr(AC5 + i, 2)}, {vr(AC5 + i, 2)}, {vr(WD + 16 * t + i, 2)}")
    o = AC5 + 16
    for i in range(8):
        a(f"v_cvt_pk_bf16_f32 v{o + i}, v{AC5 + 2 * i}, v{AC5 + 2 * i + 1}")
    a("s_nop 0")
    for j in range(2):
        a(f"v_permlane32_swap_b32 v{o + 4 * j}, v{o + 4 * j + 2}")
        a(f"v_permlane32_swap_b32 v{o + 4 * j + 1}, v{o + 4 * j + 3}")
    for j in range(2):
        a(f"buffer_store_dwordx4 {vr(o + 4 * j, 4)}, v3, s[16:19], s51 offen offset:{j * 32}")
    stamp_end(a, 1, 7, 8)
    a("s_endpgm")
    a.label("K2_FALLBACK")
    a("v_mov_b32 v1, v2")
    a("v_mov_b32 v14, 0xff800000")
    a("s_mov_b32 s33, 0")
    a.label("K2_FB1")
    a(f"ds_read_b128 {vr(KR, 4)}, v1")
    a("v_add_u32 v1, 1024, v1")
    a("s_waitcnt lgkmcnt(0)")
    a(MF32(vr(s0, 16), vr(KR, 4), vr(Q, 4), "0"))
    a("s_nop 11")
    for i in range(0, 16, 2):
        a(f"v_max3_f32 v14, v14, v{s0+i}, v{s0+i+1}")
    a("s_add_u32 s33, s33, 1")
    a("s_cmp_lt_u32 s33, 64")
    a("s_cbranch_scc1 K2_FB1")
    set_negm()
    for i in range(16):
        a(f"v_mov_b32 v{O + i}, 0")
    a("v_mov_b32 v1, v2")
    a("s_mov_b32 s33, 0")
    a.label("K2_FB2")
    a(f"ds_read_b128 {vr(KR, 4)}, v1")
    a("s_mov_b64 exec, s[34:35]")
    a(f"ds_read_b128 {vr(VR, 4)}, v3")
    a(f"ds_read_b128 {vr(VR + 4, 4)}, v3 offset:512")
    a("s_mov_b64 exec, -1")
    a("v_add_u32 v1, 1024, v1")
    a("v_add_u32 v3, 1024, v3")
    a("s_waitcnt lgkmcnt(0)")
    a(MF32(vr(s0, 16), vr(KR, 4), vr(Q, 4), vr(NEGM, 16)))
    a("s_nop 11")
    for i in range(16): a(f"v_exp_f32 v{s0+i}, v{s0+i}")
    a("s_nop 0")
    for i in range(8): a(f"v_cvt_pk_bf16_f32 v{P+i}, v{s0+2*i}, v{s0+2*i+1}")
    a("s_nop 1")
    a(MF32(vr(O, 16), vr(VR, 4), vr(P, 4)))
    a(MF32(vr(O, 16), vr(VR + 4, 4), vr(P + 4, 4)))
    a("s_add_u32 s33, s33, 1")
    a("s_cmp_lt_u32 s33, 64")
    a("s_cbranch_scc1 K2_FB2")
    a("s_nop 11")
    a("s_branch K2_FIN")
    a.label("K2_END")
    a("s_endpgm")
    return n, a, kd(n, 256, 256), (256, 512, 163840)

def k5():
    a = Asm(); n = "k3_down_kernel"
    NS = 112; KS = 28; DEPTH = 8
    kernel_head(a, n)
    ACC = 16; GB = 80; WB = 144; RES = 160
    RED = 65536
    a("s_cmp_ge_u32 s2, 256")
    a("s_cbranch_scc1 K5_END")
    stamp(a, 0)
    if DBGK1:
        a("s_memrealtime s[64:65]")
        a("s_memtime s[66:67]")
    a("s_load_dwordx2 s[4:5], s[0:1], 72")
    a("s_load_dwordx4 s[40:43], s[0:1], 48")
    a("v_lshrrev_b32 v1, 6, v0")
    a("v_and_b32 v0, 63, v0")
    a("v_readfirstlane_b32 s22, v1")
    a("v_lshlrev_b32 v2, 4, v0")
    a("s_and_b32 s23, s2, 7")
    a("s_lshl_b32 s23, s23, 2")
    a("s_bfe_u32 s29, s2, 0x20003")
    a("s_add_u32 s23, s23, s29")
    a("s_lshr_b32 s24, s2, 5")
    a("s_and_b32 s25, s22, 1")
    a("s_lshr_b32 s26, s22, 1")
    a("s_lshl_b32 s27, s24, 1")
    a("s_add_u32 s27, s27, s25")
    a("s_lshl_b32 s28, s23, 1")
    a("s_add_u32 s28, s28, s26")
    a(f"s_mul_i32 s29, s22, {KS * 1024}")
    a(f"s_mul_i32 s32, s28, {NS * 1024}")
    a("s_add_u32 s32, s32, s29")
    a(f"s_add_u32 s32, s32, {GF}")
    a("s_xor_b32 s33, s28, 1")
    a(f"s_mul_i32 s33, s33, {NS * 1024}")
    a("s_add_u32 s33, s33, s29")
    a(f"s_add_u32 s33, s33, {GF}")
    a(f"s_mul_i32 s29, s22, {KS * 16384}")
    a("s_lshl_b32 s30, s27, 6")
    a("s_xor_b32 s31, s30, 64")
    a("s_add_u32 s30, s30, s29")
    a("s_add_u32 s31, s31, s29")
    a("s_lshl_b32 s36, s22, 14")
    a("v_lshrrev_b32 v8, 2, v0")
    a("v_lshlrev_b32 v8, 10, v8")
    a("v_and_b32 v1, 3, v0")
    a("v_lshl_add_u32 v8, v1, 4, v8")
    a("s_waitcnt lgkmcnt(0)")
    srd(a, 8, 4, WS_SIZE)
    srd(a, 16, 40, 1792 * 512 * 2)
    srd(a, 12, 42, 2048 * 512 * 2)
    def loads(s):
        b = GB + 8 * (s % DEPTH)
        if s % 4 == 0 and s > 0:
            a("s_add_u32 s32, s32, 4096")
            a("s_add_u32 s33, s33, 4096")
        for i in range(2):
            a(f"s_add_u32 m0, s36, {(s % DEPTH) * 2048 + i * 1024}")
            a(f"s_add_u32 s29, s{30 + i}, {s * 16384}")
            a("buffer_load_dwordx4 v8, s[16:19], s29 offen lds")
        for i in range(2):
            a(f"buffer_load_dwordx4 {vr(b + 4 * i, 4)}, v2, s[8:11], s{32 + i} offen offset:{(s % 4) * 1024}")
    for s in range(DEPTH - 1):
        loads(s)
    a("v_lshrrev_b32 v4, 5, v0")
    a("v_bfe_u32 v1, v0, 2, 2")
    a("v_lshl_add_u32 v9, v4, 2, v1")
    a("v_lshlrev_b32 v9, 6, v9")
    a("v_and_b32 v1, 3, v0")
    a("v_lshl_add_u32 v9, v1, 3, v9")
    a("v_bfe_u32 v1, v0, 4, 1")
    a("v_lshl_add_u32 v9, v1, 5, v9")
    a("v_add_u32 v9, s36, v9")
    a("v_and_b32 v3, 31, v0")
    a("v_lshlrev_b32 v3, 10, v3")
    a("v_lshl_add_u32 v3, v4, 4, v3")
    a("s_lshl_b32 s34, s28, 15")
    a("s_lshl_b32 s35, s27, 6")
    a("s_add_u32 s34, s34, s35")
    a("s_lshl_b32 s35, s28, 15")
    a("s_lshl_b32 s37, s27, 11")
    a("s_add_u32 s35, s35, s37")
    a(f"s_add_u32 s35, s35, {HF}")
    for t in range(1, 4):
        a(f"s_xor_b32 s29, s22, {t}")
        a("s_mul_i32 s29, s29, 12288")
        a(f"s_add_u32 s29, s29, {RED}")
        a(f"v_add_u32 v{4 + t}, s29, v2")
    a("s_mul_i32 s29, s22, 12288")
    a(f"s_add_u32 s29, s29, {RED}")
    a("v_add_u32 v4, s29, v2")
    def trreads(s):
        for i in range(2):
            for e in range(2):
                a(f"ds_read_b64_tr_b16 {vr(WB + 8 * (s % 2) + 4 * i + 2 * e, 2)}, v9 offset:{(s % DEPTH) * 2048 + i * 1024 + e * 512}")
    def mfmas(s):
        g = GB + 8 * (s % DEPTH); w = WB + 8 * (s % 2)
        B0, B1, A0, A1 = vr(g, 4), vr(g + 4, 4), vr(w, 4), vr(w + 4, 4)
        C = "0" if s == 0 else None
        a(MF32(vr(ACC, 16), A0, B0, C))
        a(MF32(vr(ACC + 32, 16), A0, B1, C))
        a(MF32(vr(ACC + 16, 16), A1, B0, C))
        a(MF32(vr(ACC + 48, 16), A1, B1, C))
    issued = DEPTH - 1; res = 0
    a(f"s_waitcnt vmcnt({(issued - 1) * 4})")
    stamp(a, 1)
    trreads(0)
    for s in range(KS):
        if issued < KS:
            loads(issued); issued += 1
            if issued == KS:
                for j in range(2):
                    a(f"buffer_load_dwordx4 {vr(RES + 4 * j, 4)}, v2, s[8:11], s35 offen offset:{j * 1024}")
                res = 2
        if s + 1 < KS:
            a(f"s_waitcnt vmcnt({(issued - s - 2) * 4 + res})")
            trreads(s + 1)
            a("s_waitcnt lgkmcnt(4)")
        else:
            a("s_waitcnt lgkmcnt(0)")
        mfmas(s)
    stamp(a, 2)
    a("s_waitcnt vmcnt(0)")
    a("s_mov_b32 s29, 0xffff0000")
    for i in range(8):
        a(f"v_lshlrev_b32 v{RES + 8 + 2 * i}, 16, v{RES + i}")
        a(f"v_and_b32 v{RES + 9 + 2 * i}, s29, v{RES + i}")
    for t in (2, 1, 3):
        for q in range(4):
            a(f"ds_write_b128 v{4 + t}, {vr(ACC + 16 * t + 4 * q, 4)} offset:{(t - 1) * 4096 + q * 1024}")
    for i in range(16):
        a(f"v_add_f32 v{ACC + i}, v{ACC + i}, v{RES + 8 + i}")
    a("s_waitcnt lgkmcnt(0)")
    a("s_barrier")
    for t in range(3):
        for q in range(4):
            a(f"ds_read_b128 {vr(GB + 16 * t + 4 * q, 4)}, v4 offset:{t * 4096 + q * 1024}")
    for t in range(3):
        a(f"s_waitcnt lgkmcnt({8 - 4 * t})")
        for i in range(0, 16, 2):
            a(f"v_pk_add_f32 {vr(ACC + i, 2)}, {vr(ACC + i, 2)}, {vr(GB + 16 * t + i, 2)}")
    o = ACC + 16
    for i in range(8):
        a(f"v_cvt_pk_bf16_f32 v{o + i}, v{ACC + 2 * i}, v{ACC + 2 * i + 1}")
    a("s_nop 0")
    for j in range(2):
        a(f"v_permlane32_swap_b32 v{o + 4 * j}, v{o + 4 * j + 2}")
        a(f"v_permlane32_swap_b32 v{o + 4 * j + 1}, v{o + 4 * j + 3}")
    for j in range(2):
        a(f"buffer_store_dwordx4 {vr(o + 4 * j, 4)}, v3, s[12:15], s34 offen offset:{j * 32}")
    stamp_end(a, 2, 3, 8)
    if DBGK1:
        a("s_waitcnt vmcnt(0)")
        a("s_memrealtime s[68:69]")
        a("s_memtime s[70:71]")
        a("s_load_dwordx2 s[72:73], s[0:1], 64")
        a("s_waitcnt lgkmcnt(0)")
        srd(a, 76, 72, 256)
        a("s_sub_u32 s70, s70, s66")
        a("s_cmp_lg_u32 s2, 0")
        a("s_cbranch_scc1 K5_END")
        a(f"s_mov_b32 s74, {DBGOFF}")
        a("v_mov_b32 v0, 0")
        a("buffer_load_dwordx4 v[4:7], v0, s[8:11], s74 offen")
        a("buffer_load_dwordx4 v[8:11], v0, s[8:11], s74 offen offset:16")
        a("s_waitcnt vmcnt(0)")
        a("v_sub_u32 v5, v5, v4")
        a("v_sub_u32 v8, v8, v4")
        a("v_sub_u32 v9, v9, v4")
        a("v_sub_u32 v12, s64, v4")
        a("v_sub_u32 v13, s68, v4")
        a("v_mov_b32 v14, s70")
        a("v_mov_b32 v15, 0")
        a("buffer_store_dwordx4 v[4:7], v0, s[76:79], 0 offen")
        a("buffer_store_dwordx4 v[8:11], v0, s[76:79], 0 offen offset:16")
        a("buffer_store_dwordx4 v[12:15], v0, s[76:79], 0 offen offset:32")
    a.label("K5_END")
    a("s_endpgm")
    return n, a, kd(n, 192, 192), (256, 256, RED + 49152)

def main(out):
    ks = [k1(), k234()]
    hdr = open("cdna_kernels/" + NAME + ".s.ref").read().split("\n")
    hdr = [l for l in hdr if l.startswith(";") and "@launch" not in l and "Override" not in l and "grid=ceil" not in l]
    txt = "\n".join(hdr) + "\n"
    for n, a, d, (g, b, lds) in ks:
        txt += f"; @launch kernel={n} grid=({g},1,1) block=({b},1,1) lds={lds}\n"
    txt += '.amdgcn_target "amdgcn-amd-amdhsa--gfx950"\n.text\n'
    bad = 0
    for ki, (n, a, d, _) in enumerate(ks):
        fl = ST_FLAGS[ki]
        if fl:
            a.lines = [l + " " + fl if ("buffer_store_dwordx" in l and "sc1" not in l) else l for l in a.lines]
        bad += check_hazards(a.lines, n)
        txt += a.text()
    txt += "CODE_END:\n"
    txt += '.section .rodata,"a"\n'
    for n, a, d, _ in ks:
        txt += ".p2align 6\n" + d
    open(out, "w").write(txt)
    print("hazards:", bad)

if __name__ == "__main__":
    if "stamp" in sys.argv: STAMP = True
    for arg in sys.argv[2:]:
        if "=" in arg:
            k_, v_ = arg.split("=", 1)
            globals()[k_] = eval(v_)
    main(sys.argv[1] if len(sys.argv) > 1 else "cdna_kernels/" + NAME + ".s")
```

```python
import sys, math, struct
from asmlib import *

NAME = "sequential_preLN__mha_block__geglu_ffn__prompt"

QF, KF, VF, OF, HF = 0x000000, 0x200000, 0x400000, 0x600000, 0x800000
ST  = 0xA00000
CSF = 0xA80000
WOF = 0xB00000
WGF = 0xC00000
WDF = 0x1000000
GF  = 0x1200000
WS_SIZE = 0x10000000
FL1 = 0xB02800
FL2 = 0xB00000
FL3 = 0xB00800
FL4 = 0xB01800

def f32(x):
    return "0x%08x" % struct.unpack("<I", struct.pack("<f", x))[0]

LOG2E = 1.4426950408889634
EPS = 1e-5

def srd(a, s, base, size):
    a(f"s_mov_b32 s{s}, s{base}")
    a(f"s_mov_b32 s{s+1}, s{base+1}")
    a(f"s_mov_b32 s{s+2}, {hex(size)}")
    a(f"s_mov_b32 s{s+3}, 0x00020000")

def kernel_head(a, name):
    a.raw(f".globl {name}")
    a.raw(".p2align 8")
    a.raw(f".type {name},@function")
    a.raw(f"{name}:")

def kd(name, nvgpr, accum, nsgpr=100):
    return f""".amdhsa_kernel {name}
  .amdhsa_next_free_vgpr {nvgpr}
  .amdhsa_next_free_sgpr {nsgpr}
  .amdhsa_accum_offset {accum}
  .amdhsa_group_segment_fixed_size 0
  .amdhsa_kernarg_size 80
  .amdhsa_user_sgpr_count 2
  .amdhsa_user_sgpr_kernarg_segment_ptr 1
  .amdhsa_system_sgpr_workgroup_id_x 1
.end_amdhsa_kernel
"""

STAMP = False
LIST = 0
FASTL2 = 1
D_Y = 6
DBGK1 = 0
LD_SC = ''
GSTAMP = 0
G_P2 = 8
GB3 = 12
GA3 = 0
POLL_SLEEP = 6
B_FILL = 4
K2_TCH = 1
G_SC = 'sc1'
CODE_TOUCH = 0
K1_ROT = 1
K1_TW = [-1, 0, 1]
K4_SL = 26
K2_S3 = 11
K2_WD = 0
K1_D = 1
K4_D = 2
K4_XB = 12
K4_TOUCH = 1
K2_S2 = 4
K1_TOUCH = 1
ST_FLAGS = ['', '', '', '', '']
K2_Y = 28
SIDE_SC = 'sc1'
K1_UP = 14
K4_UP = 22
DBGOFF = 0x2000000
def stamp(a, i):
    if not STAMP: return
    a(f"s_memrealtime s[{64 + 4 * i}:{65 + 4 * i}]")
    a(f"s_memtime s[{66 + 4 * i}:{67 + 4 * i}]")
    if i != 0:
        a("s_waitcnt lgkmcnt(0)")
def stamp_end(a, kidx, n, srdreg, wavereg=22):
    if not STAMP: return
    a("s_waitcnt vmcnt(0)")
    stamp(a, n)
    a("s_lshl_b32 s60, s2, 3")
    a(f"s_add_u32 s60, s60, s{wavereg}")
    a("s_lshl_b32 s60, s60, 6")
    a(f"s_add_u32 s60, s60, {DBGOFF + kidx * 0x40000}")
    a("v_mov_b32 v0, 0")
    for j in range(2 * n + 2):
        a(f"v_mov_b32 v1, s{64 + 2 * j}")
        a(f"buffer_store_dword v1, v0, s[{srdreg}:{srdreg+3}], s60 offen offset:{4 * j}")

def MF32(d, A, B, C=None):
    C = d if C is None else C
    return f"v_mfma_f32_32x32x16_bf16 {d}, {A}, {B}, {C}"

def halfsum(a, v, t):
    a(f"v_mov_b32 v{t}, v{v}")
    a("s_nop 1")
    a(f"v_permlane32_swap_b32 v{v}, v{t}")
    a(f"v_add_f32 v{v}, v{v}, v{t}")


def k1():
    a = Asm(); n = NAME + "_kernel"
    kernel_head(a, n)
    SLOT = 28672; SCR = 5 * SLOT; SCR2 = SCR + 1536; SCR3 = SCR2 + 512
    D = K1_D
    a("s_cmp_ge_u32 s2, 256")
    a("s_cbranch_scc1 K2_END")
    stamp(a, 0)
    if DBGK1:
        a("s_memrealtime s[64:65]")
        a("s_memtime s[66:67]")
    a("s_load_dwordx4 s[4:7], s[0:1], 0")
    a("s_load_dwordx4 s[56:59], s[0:1], 64")
    a("v_lshrrev_b32 v1, 6, v0")
    a("v_and_b32 v0, 63, v0")
    a("v_readfirstlane_b32 s35, v1")
    a("s_and_b32 s23, s2, 3")
    a("s_lshl_b32 s23, s23, 2")
    a("s_bfe_u32 s29, s2, 0x20003")
    a("s_add_u32 s23, s23, s29")
    a("s_bfe_u32 s24, s2, 0x10002")
    a("s_lshl_b32 s24, s24, 3")
    a("s_lshr_b32 s29, s2, 5")
    a("s_add_u32 s24, s24, s29")
    a("s_and_b32 s22, s35, 3")
    a("s_lshl_b32 s27, s22, 12")
    a("s_lshl_b32 s40, s2, 1")
    a("s_and_b32 s29, s2, 4")
    a("s_add_u32 s40, s40, s29")
    if not K1_ROT: a("s_mov_b32 s40, 0")
    a("s_cmp_lt_u32 s35, 4")
    a("s_cbranch_scc1 K1_RDADDR")
    a("s_lshl_b32 s25, s23, 17")
    a("s_lshl_b32 s29, s22, 15")
    a("s_add_u32 s25, s25, s29")
    a("s_mul_i32 s26, s22, 49152")
    a("s_lshl_b32 s29, s24, 6")
    a("s_add_u32 s26, s26, s29")
    a("s_lshl_b32 s28, s22, 10")
    a("s_add_u32 s28, s28, 16384")
    a("s_mov_b32 s30, 0x3f803f80")
    a("v_lshrrev_b32 v5, 3, v0")
    a("v_lshlrev_b32 v2, 10, v5")
    a("v_and_b32 v6, 7, v0")
    a("v_lshrrev_b32 v7, 4, v0")
    a("v_xor_b32 v6, v6, v7")
    a("v_lshl_add_u32 v2, v6, 4, v2")
    a("v_xor_b32 v3, 64, v2")
    a("v_add_u32 v3, 8192, v3")
    a("v_lshrrev_b32 v5, 2, v0")
    a("v_mul_u32_u24 v4, 3072, v5")
    a("v_and_b32 v6, 3, v0")
    a("v_lshl_add_u32 v4, v6, 4, v4")
    a("s_waitcnt lgkmcnt(0)")
    srd(a, 8, 4, 2048 * 512 * 2)
    srd(a, 12, 6, 512 * 1536 * 2)
    def dma(c):
        slot = (c % 5) * SLOT
        a(f"s_add_u32 s41, s40, {c}")
        a("s_and_b32 s41, s41, 7")
        a("s_lshl_b32 s42, s41, 7")
        a("s_add_u32 s42, s42, s25")
        a(f"s_mul_i32 s41, s41, {64 * 3072}")
        a("s_add_u32 s41, s41, s26")
        for p in range(3):
            a(f"s_add_u32 m0, s28, {slot + p * 4096}")
            a(f"s_add_u32 s29, s41, {p * 1024}")
            a(f"buffer_load_dwordx4 v4, s[12:15], s29 offen lds")
        for i in range(4):
            a(f"s_add_u32 m0, s27, {slot + i * 1024}")
            a(f"s_add_u32 s29, s42, {(i // 2) * 16384}")
            a(f"buffer_load_dwordx4 v{2 + (i % 2)}, s[8:11], s29 offen lds")
    for c in range(D + 1):
        dma(c)
    a.label("K1_RDADDR")
    a("v_and_b32 v5, 31, v0")
    a("v_lshrrev_b32 v6, 5, v0")
    a("v_bfe_u32 v7, v0, 1, 3")
    a("v_xor_b32 v7, v7, v6")
    a("v_lshlrev_b32 v5, 7, v5")
    a("v_add_u32 v5, s27, v5")
    for s in range(4):
        a(f"v_xor_b32 v1, {2 * s}, v7")
        a(f"v_lshl_add_u32 v{8 + s}, v1, 4, v5")
        a(f"v_add_u32 v{12 + s}, {2 * SLOT}, v{8 + s}")
        a(f"v_add_u32 v{16 + s}, {4 * SLOT}, v{8 + s}")
    a("v_bfe_u32 v1, v0, 2, 2")
    a("v_lshl_add_u32 v1, v6, 3, v1")
    a("v_lshlrev_b32 v20, 6, v1")
    a("v_bfe_u32 v1, v0, 4, 1")
    a("v_lshl_add_u32 v20, v1, 5, v20")
    a("v_and_b32 v1, 3, v0")
    a("v_lshl_add_u32 v20, v1, 3, v20")
    a("s_cmp_lt_u32 s35, 4")
    a("s_cbranch_scc1 K1_MM")
    a("s_lshl_b32 s29, s22, 10")
    a("v_add_u32 v20, s29, v20")
    a(f"v_add_u32 v21, {2 * SLOT}, v20")
    a(f"v_add_u32 v22, {4 * SLOT}, v20")
    for i in range(28, 31):
        a(f"v_mov_b32 v{i}, 0")
    WB = 48
    for c in range(8):
        slot = c % 5; st = slot // 2; off = (slot % 2) * SLOT
        a(f"s_waitcnt vmcnt({7 * (min(c + D, 7) - c)})")
        a("s_barrier")
        for p in range(3):
            for u in range(2):
                a(f"ds_read_b64_tr_b16 {vr(WB + 4 * p + 2 * u, 2)}, v{20 + st} offset:{off + 16384 + p * 4096 + u * 256}")
        if c + D + 1 < 8:
            dma(c + D + 1)
        a("s_waitcnt lgkmcnt(0)")
        for i in range(4):
            for p in range(3):
                a(f"v_dot2c_f32_bf16 v{28 + p}, s30, v{WB + 4 * p + i}")
    a("v_and_b32 v5, 31, v0")
    a("v_lshlrev_b32 v6, 4, v5")
    a("s_lshl_b32 s29, s22, 2")
    a(f"s_add_u32 s29, s29, {SCR}")
    a("v_add_u32 v7, s29, v6")
    for p in range(3):
        halfsum(a, 28 + p, 1)
        a(f"ds_write_b32 v7, v{28 + p} offset:{p * 512}")
    a("s_waitcnt lgkmcnt(0)")
    a("s_barrier")
    a("s_cmp_eq_u32 s35, 7")
    a("s_cbranch_scc0 K1_JOIN")
    srd(a, 16, 56, 256)
    a("v_mov_b32 v12, 0")
    a("s_mov_b32 s33, 0")
    a.label("K1_PZ")
    a("buffer_load_dword v15, v12, s[16:19], 0 offen sc1")
    a("s_add_u32 s33, s33, 1")
    a("s_waitcnt vmcnt(0)")
    a("v_cmp_eq_u32 vcc, 1, v15")
    a("s_cmp_gt_u32 s33, 0x40000")
    a("s_cbranch_scc1 K1_JOIN")
    a("s_cbranch_vccz K1_PZ")
    a("s_branch K1_JOIN")
    a.label("K1_MM")
    if CODE_TOUCH:
        a("s_getpc_b64 s[44:45]")
        a.label("K1_PC")
        a("s_sub_u32 s44, s44, K1_PC-k1_qkv_kernel")
        a("s_subb_u32 s45, s45, 0")
        a("s_lshl_b32 s46, s22, 13")
        a("v_lshlrev_b32 v23, 7, v0")
        a("v_add_u32 v23, s46, v23")
        for i in range(CODE_TOUCH):
            a("v_min_u32 v24, CODE_END-k1_qkv_kernel-4, v23")
            a("global_load_dword v31, v24, s[44:45]")
            a("v_add_u32 v23, 32768, v23")
    a(f"v_add_u32 v21, {2 * SLOT}, v20")
    a(f"v_add_u32 v22, {4 * SLOT}, v20")
    a("s_mov_b32 s30, 0x3f803f80")
    for i in range(24, 28):
        a(f"v_mov_b32 v{i}, 0")
    a("v_and_b32 v5, 31, v0")
    a("v_lshlrev_b32 v6, 4, v5")
    a(f"v_add_u32 v6, {SCR}, v6")
    a("s_lshl_b32 s29, s22, 7")
    a(f"s_add_u32 s29, s29, {SCR2}")
    a("v_lshlrev_b32 v7, 2, v5")
    a("v_add_u32 v7, s29, v7")
    a("v_lshrrev_b32 v1, 5, v0")
    a("v_lshlrev_b32 v1, 4, v1")
    a("v_add_u32 v1, s29, v1")
    a("s_lshl_b32 s29, s23, 2")
    a("s_add_u32 s29, s29, s22")
    a("s_lshl_b32 s29, s29, 10")
    a("s_lshl_b32 s31, s24, 17")
    a("s_add_u32 s29, s29, s31")
    a("s_add_u32 s31, s29, 65536")
    a(f"s_add_u32 s32, s29, {KF}")
    a(f"s_add_u32 s33, s29, {KF + 65536}")
    a(f"s_add_u32 s34, s29, {VF}")
    a("v_lshlrev_b32 v2, 4, v0")
    a("v_bfe_u32 v3, v0, 4, 1")
    a("v_lshlrev_b32 v3, 16, v3")
    a("v_lshrrev_b32 v4, 5, v0")
    a("v_lshl_add_u32 v3, v4, 8, v3")
    a("v_and_b32 v4, 15, v0")
    a("v_lshl_add_u32 v3, v4, 4, v3")
    a("s_waitcnt lgkmcnt(0)")
    srd(a, 16, 58, WS_SIZE)
    a("s_lshl_b32 s36, s2, 2")
    a("s_add_u32 s36, s36, s22")
    a("s_cmp_lg_u32 s36, 3")
    a("s_cbranch_scc1 K1_NZ")
    a(f"s_mov_b32 s36, {FL2}")
    for i_ in range(14):
        a(f"buffer_store_dwordx4 v[24:27], v2, s[16:19], s36 offen offset:{(i_ % 4) * 1024} sc1")
        if i_ % 4 == 3: a("s_add_u32 s36, s36, 4096")
    srd(a, 8, 56, 256)
    a("v_mov_b32 v28, 1")
    a("s_waitcnt vmcnt(0)")
    a("buffer_store_dword v28, v24, s[8:11], 0 offen sc1")
    a.label("K1_NZ")
    TQ = {}
    if K1_TOUCH:
        srd(a, 8, 4, 2048 * 512 * 2)
        a("s_lshr_b32 s37, s2, 3")
        a("v_and_b32 v28, 3, v0")
        a("s_mov_b32 s39, 256")
        a("s_and_b32 s36, s2, 3")
        a("s_lshl_b32 s36, s36, 19")
        a("s_lshl_b32 s38, s37, 14")
        a("s_add_u32 s36, s36, s38")
        a("v_bfe_u32 v23, v0, 1, 4")
        a("v_lshlrev_b32 v23, 10, v23")
        a("v_and_b32 v29, 1, v0")
        a("v_lshl_add_u32 v23, v29, 7, v23")
        a("s_cmp_lg_u32 s22, 0")
        a("s_cbranch_scc1 K1_TD")
        srd(a, 8, 6, 512 * 1536 * 2)
        a(f"s_mov_b32 s39, {128 * 3072}")
        a("s_mul_i32 s36, s37, 12288")
        a("s_bfe_u32 s38, s2, 0x10002")
        a("s_lshl_b32 s38, s38, 9")
        a("s_add_u32 s36, s36, s38")
        a("v_lshrrev_b32 v23, 4, v0")
        a("v_mul_u32_u24 v23, 3072, v23")
        a("v_bfe_u32 v30, v0, 2, 2")
        a("v_min_u32 v30, 2, v30")
        a("v_lshl_add_u32 v23, v30, 10, v23")
        a("v_lshl_add_u32 v23, v28, 7, v23")
        a.label("K1_TD")
        def touch(n_):
            return ["s_cmp_ge_u32 s22, 2", f"s_cbranch_scc1 K1_TS{n_}",
                    "s_lshr_b32 s38, s40, 1", f"s_add_u32 s38, s38, {n_ + 1}", "s_and_b32 s38, s38, 3",
                    "s_mul_i32 s38, s38, s39", "s_add_u32 s38, s38, s36",
                    "buffer_load_dword v31, v23, s[8:11], s38 offen", f"K1_TS{n_}:"]
        for n_, when in enumerate(K1_TW):
            if when < 0:
                for x in touch(n_): a(x)
            else:
                TQ.setdefault(when, []).extend(touch(n_))
    ACC = 32
    def xf(ks): return 80 + (ks % 8) * 4
    def wf(ks, p): return 112 + (ks % 3) * 12 + p * 4
    def reads(ks):
        c, s = ks // 4, ks % 4
        slot = c % 5; st = slot // 2; off = (slot % 2) * SLOT
        out = [f"ds_read_b128 {vr(xf(ks), 4)}, v{8 + 4 * st + s} offset:{off}"]
        for p in range(3):
            for u in range(2):
                out.append(f"ds_read_b64_tr_b16 {vr(wf(ks, p) + 2 * u, 2)}, v{20 + st} offset:{off + 16384 + p * 4096 + s * 1024 + u * 256}")
        return out
    def mfmas(ks):
        X = vr(xf(ks), 4); out = []
        for p in range(3):
            D_ = vr(ACC + 16 * p, 16); W = vr(wf(ks, p), 4)
            A, B = (W, X) if p < 2 else (X, W)
            out.append(MF32(D_, A, B, "0" if ks == 0 else None))
        return out
    def dots(k0, k1_):
        for ks in range(k0, k1_):
            for i in range(4):
                a(f"v_dot2c_f32_bf16 v{24 + i % 2}, s30, v{xf(ks) + i}")
                a(f"v_dot2c_f32_bf16 v{26 + i % 2}, v{xf(ks) + i}, v{xf(ks) + i}")
    a("s_barrier")
    for r in reads(0) + reads(1): a(r)
    for x in TQ.get(0, []): a(x)
    for ks in range(32):
        c, s = ks // 4, ks % 4
        M = mfmas(ks); R = reads(ks + 2) if ks + 2 < 32 else []
        if s == 2:
            dots(max(ks - 3, 0), ks)
            a("s_waitcnt lgkmcnt(0)")
            dots(ks, ks + 1)
            if c == 7: dots(ks + 1, ks + 2)
            a(M[0])
            if c < 7:
                a("s_barrier")
                for x in TQ.get(c + 1, []): a(x)
        else:
            a(f"s_waitcnt lgkmcnt({7 if ks < 31 else 0})")
            a(M[0])
        E = []
        if ks >= 30:
            if ks == 30:
                E = ["v_add_f32 v24, v24, v25", "v_add_f32 v26, v26, v27", "v_mov_b32 v25, v24", "v_mov_b32 v27, v26", "s_nop 0",
                     "v_permlane32_swap_b32 v24, v25", "v_permlane32_swap_b32 v26, v27", "v_add_f32 v24, v24, v25", "v_add_f32 v26, v26, v27",
                     f"v_mul_f32 v24, {f32(1/512)}, v24", f"v_mul_f32 v26, {f32(1/512)}, v26", "v_fma_f32 v26, -v24, v24, v26",
                     "v_max_f32 v26, 0, v26", f"v_add_f32 v26, {f32(EPS)}, v26", "v_rsq_f32 v26, v26"]
                E = ["s_nop 1"] + E
            else:
                E = ["ds_write_b32 v7, v26", "v_mul_f32 v24, -0.5, v24", "v_cvt_pk_bf16_f32 v25, v24, v24", "v_lshlrev_b32 v25, 16, v25",
                     "v_sub_f32 v27, v24, v25", "v_cvt_pk_bf16_f32 v148, v25, v27", "v_mov_b32 v150, 0", "v_mov_b32 v151, 0",
                     "v_mov_b32 v149, v148", f"v_mul_f32 v28, {f32(0.25 * LOG2E)}, v26", "v_mov_b32 v27, v26", "v_mov_b32 v29, v28"]
            R = E
            n3 = (len(R) + 2) // 3
        else:
            n3 = 3
        for r in R[:n3]: a(r)
        a(M[1])
        for r in R[n3:2 * n3]: a(r)
        a(M[2])
        for r in R[2 * n3:]: a(r)
    a("s_waitcnt lgkmcnt(0)")
    a("s_barrier")
    for p in range(3):
        a(f"ds_read_b128 {vr(80 + 4 * p, 4)}, v6 offset:{p * 512}")
    for g in range(4):
        a(f"ds_read_b128 {vr(96 + 4 * g, 4)}, v1 offset:{g * 32}")
    CF = 152
    for p in range(3):
        a(f"v_mov_b32 v{CF + 4 * p + 2}, 0")
        a(f"v_mov_b32 v{CF + 4 * p + 3}, 0")
    for p in range(3):
        b = 80 + 4 * p; f = CF + 4 * p
        a(f"s_waitcnt lgkmcnt({6 - p})")
        a(f"v_add_f32 v{b}, v{b}, v{b+1}")
        a(f"v_add_f32 v{b+2}, v{b+2}, v{b+3}")
        a(f"v_add_f32 v{b}, v{b}, v{b+2}")
        a(f"v_cvt_pk_bf16_f32 v{f}, v{b}, v{b}")
        a(f"v_lshlrev_b32 v{b+1}, 16, v{f}")
        a(f"v_sub_f32 v{b+1}, v{b}, v{b+1}")
        a(f"v_cvt_pk_bf16_f32 v{f+1}, v{b+1}, v{b+1}")
        if p >= 1:
            q = p - 1
            a(MF32(vr(ACC + 16 * q, 16), vr(CF + 4 * q, 4), vr(148, 4)))
    a("s_waitcnt lgkmcnt(0)")
    a("s_nop 0")
    a(MF32(vr(ACC + 32, 16), vr(148, 4), vr(CF + 8, 4)))
    a("s_nop 1")
    for p in range(3):
        b = ACC + 16 * p; o = 112 + 8 * p
        for i in range(0, 16, 2):
            sc = "v[28:29]" if p == 0 else "v[26:27]" if p == 1 else vr(96 + i, 2)
            a(f"v_pk_mul_f32 {vr(b + i, 2)}, {sc}, {vr(b + i, 2)}")
        for i in range(8):
            a(f"v_cvt_pk_bf16_f32 v{o+i}, v{b+2*i}, v{b+2*i+1}")
        if p < 2:
            a(f"buffer_store_dwordx4 {vr(o, 4)}, v2, s[16:19], s{29 if p == 0 else 32} offen sc1")
            a(f"buffer_store_dwordx4 {vr(o + 4, 4)}, v2, s[16:19], s{31 if p == 0 else 33} offen sc1")
        else:
            a(f"buffer_store_dwordx4 {vr(o, 4)}, v3, s[16:19], s34 offen sc1")
            a(f"buffer_store_dwordx4 {vr(o + 4, 4)}, v3, s[16:19], s34 offen offset:512 sc1")
    a.label("K1_JOIN")
    return a

def k234():
    a = k1(); n = NAME + "_kernel"
    Q = 4; NEGM = 16; S = [32, 48]; O = 64; P = 80; KR = 88; VR = 100; W = 128
    SCR = 131072
    K1C = 2 * math.sqrt(2 / math.pi) * LOG2E
    vm = []
    def V(ins, tag=None):
        a(ins); vm.append(tag)
    def vmwait(tag, extra=""):
        idx = max(i for i, t in enumerate(vm) if t == tag)
        a(f"s_waitcnt vmcnt({len(vm) - 1 - idx}){extra}")
    a("s_load_dwordx4 s[40:43], s[0:1], 32")
    a("s_load_dwordx2 s[44:45], s[0:1], 16")
    a("s_load_dwordx2 s[46:47], s[0:1], 0")
    a("s_load_dwordx2 s[48:49], s[0:1], 48")
    a("s_load_dwordx2 s[62:63], s[0:1], 56")
    a("s_lshl_b32 s31, s24, 8")
    a("s_lshl_b32 s30, s23, 2")
    a("s_add_u32 s31, s31, s30")
    a(f"s_add_u32 s31, s31, {FL1}")
    a("s_mov_b32 s22, s35")
    a("s_and_b32 s23, s2, 7")
    a("s_lshl_b32 s23, s23, 2")
    a("s_bfe_u32 s29, s2, 0x20003")
    a("s_add_u32 s23, s23, s29")
    a("s_lshr_b32 s24, s2, 5")
    a("s_lshl_b32 s25, s23, 16")
    a("v_lshlrev_b32 v2, 4, v0")
    a("s_lshl_b32 s26, s22, 10")
    a("s_add_u32 s27, s25, s26")
    a("s_lshl_b32 s28, s24, 13")
    a("s_add_u32 s28, s28, s27")
    a(f"s_add_u32 s27, s27, {KF}")
    a(f"s_add_u32 s30, s27, {VF - KF}")
    srd(a, 8, 58, WS_SIZE)
    a("v_mov_b32 v12, 0")
    a("v_mov_b32 v13, 1")
    def signal(lbl, local=False):
        a("s_cmp_eq_u32 s22, 7")
        a(f"s_cbranch_scc0 {lbl}")
        a("s_mov_b64 exec, 1")
        a("buffer_store_dword v13, v12, s[8:11], s31 offen sc1")
        a("s_mov_b64 exec, -1")
        a.label(lbl)
    def poll(lbl, sreg, nfl):
        a(f"v_and_b32 v1, {nfl - 1}, v0")
        a("v_lshlrev_b32 v1, 2, v1")
        a("s_mov_b32 s33, 0")
        a.label(lbl)
        if POLL_SLEEP: a(f"s_sleep {POLL_SLEEP}")
        a(f"buffer_load_dword v15, v1, s[8:11], s{sreg} offen sc1")
        a("s_add_u32 s33, s33, 1")
        a("s_waitcnt vmcnt(0)")
        a("v_cmp_eq_u32 vcc, 1, v15")
        a("s_cmp_gt_u32 s33, 0x40000")
        a(f"s_cbranch_scc1 {lbl}_X")
        a("s_cmp_eq_u64 vcc, -1")
        a(f"s_cbranch_scc0 {lbl}")
        a.label(f"{lbl}_X")
    a("s_waitcnt vmcnt(0) lgkmcnt(0)")
    a("s_barrier")
    signal("K2_S1")
    def kvdma(c, isv):
        a(f"s_add_u32 m0, s26, {c * 8192 + isv * 65536}")
        a(f"s_add_u32 s29, s27, {c * 8192 + isv * (VF - KF)}")
        V("buffer_load_dwordx4 v2, s[8:11], s29 offen lds", f"c{c}")
    a("s_and_b32 s36, s2, 3")
    a("s_lshl_b32 s36, s36, 2")
    a("s_bfe_u32 s29, s2, 0x20003")
    a("s_add_u32 s36, s36, s29")
    a("s_bfe_u32 s37, s2, 0x10002")
    a("s_lshl_b32 s37, s37, 3")
    a("s_add_u32 s37, s37, s24")
    a("s_min_u32 s38, s22, 6")
    a("s_mul_i32 s39, s37, 7")
    a("s_add_u32 s39, s39, s38")
    a("s_lshl_b32 s54, s39, 5")
    srd(a, 12, 40, 512 * 1792 * 2)
    srd(a, 16, 42, 512 * 1792 * 2)
    a("s_lshl_b32 s55, s22, 12")
    a(f"s_add_u32 s55, s55, {SCR}")
    a("v_lshrrev_b32 v8, 1, v0")
    a("v_mul_u32_u24 v8, 3584, v8")
    a("v_and_b32 v1, 1, v0")
    a("v_lshl_add_u32 v8, v1, 4, v8")
    a("v_lshrrev_b32 v11, 5, v0")
    a("v_bfe_u32 v1, v0, 2, 2")
    a("v_lshl_add_u32 v10, v11, 2, v1")
    a("v_lshlrev_b32 v9, 5, v10")
    a("v_and_b32 v1, 3, v0")
    a("v_lshl_add_u32 v9, v1, 3, v9")
    a("v_bfe_u32 v1, v0, 4, 1")
    a("v_lshl_add_u32 v9, v1, 10, v9")
    a("v_add_u32 v9, s55, v9")
    a("v_and_b32 v12, 15, v0")
    a("v_lshl_add_u32 v12, v11, 4, v12")
    a("v_lshlrev_b32 v12, 4, v12")
    a("v_add_u32 v3, 65536, v12")
    a("s_mov_b32 s34, 0x0000ffff")
    a("s_mov_b32 s35, 0x0000ffff")
    a(f"s_mov_b32 s50, {f32(2.0**60)}")
    for i in range(24):
        a(f"v_mov_b32 v{VR + i}, 0x3f803f80")
    for i in range(16):
        a(f"v_mov_b32 v{O + i}, 0")
    for i in range(4, 8):
        a(f"v_mov_b32 v{P + i}, 0")
    def kread(t): return f"ds_read_b128 {vr(KR + 4 * (t % 3), 4)}, v2 offset:{t * 1024}"
    def vread(t):
        return ["s_mov_b64 exec, s[34:35]"] + \
               [f"ds_read_b128 {vr(VR + 8 * (t % 3) + 4 * j, 4)}, v3 offset:{t * 1024 + j * 512}" for j in range(2)] + \
               ["s_mov_b64 exec, -1"]
    a("s_cmp_eq_u32 s22, 7")
    a("s_cbranch_scc0 K2_B1")
    a("s_lshr_b32 s29, s23, 1")
    a("s_lshl_b32 s29, s29, 8")
    a(f"s_add_u32 s29, s29, {FL1}")
    poll("K2_P1", 29, 16)
    a.label("K2_B1")
    a("s_mov_b32 m0, s26")
    a("s_barrier")
    stamp(a, 1)
    V("buffer_load_dwordx4 v2, s[8:11], s27 offen lds", "c0")
    V(f"buffer_load_dwordx4 {vr(Q, 4)}, v2, s[8:11], s28 offen", "c0")
    a("s_add_u32 m0, s26, 65536")
    a("s_nop 0")
    V("buffer_load_dwordx4 v2, s[8:11], s30 offen lds", "c0")
    kvdma(1, 0); kvdma(1, 1)
    vmwait("c0")
    a("s_barrier")
    a(kread(0)); a(kread(1))
    for x in vread(0): a(x)
    a(kread(2))
    for x in vread(1): a(x)
    a("s_waitcnt lgkmcnt(6)")
    s0 = S[0]
    a(MF32(vr(s0, 16), vr(KR, 4), vr(Q, 4), "0"))
    a("s_nop 11")
    for i in range(5):
        a(f"v_max3_f32 v{NEGM + i}, v{s0+3*i}, v{s0+3*i+1}, v{s0+3*i+2}")
    a(f"v_max3_f32 v14, v{NEGM}, v{NEGM+1}, v{s0+15}")
    a(f"v_max3_f32 v15, v{NEGM+2}, v{NEGM+3}, v{NEGM+4}")
    a("v_max_f32 v14, v14, v15")
    def set_negm():
        a("v_mov_b32 v15, v14")
        a("s_nop 1")
        a("v_permlane32_swap_b32 v14, v15")
        a("v_max_f32 v14, v14, v15")
        for i in range(16):
            a(f"v_sub_f32 v{NEGM + i}, 0, v14")
        a("s_nop 1")
    set_negm()
    a(MF32(vr(S[0], 16), vr(KR, 4), vr(Q, 4), vr(NEGM, 16)))
    a("s_nop 8")
    T0 = 12
    cnt = [0]
    def b(ins):
        if K2_Y:
            if cnt[0] == 0: a("s_setprio 0")
            if cnt[0] == K2_Y: a("s_setprio 1")
        cnt[0] += 1
        a(ins)
    for t in range(64):
        if t % 4 == 0: cnt[0] = 0
        Sc = S[t % 2]; Sn = S[(t + 1) % 2]
        E = lambda i: b(f"v_exp_f32 v{Sc+i}, v{Sc+i}")
        C = lambda i: b(f"v_cvt_pk_bf16_f32 v{P+i}, v{Sc+2*i}, v{Sc+2*i+1}")
        if t == 5: vmwait("c1"); a("s_barrier")
        if t == 13: vmwait("c5"); a("s_barrier")
        if t == 24: vmwait("c7"); a("s_barrier")
        nrd = lambda u: (1 if u + 3 < 64 else 0) + (2 if u + 2 < 64 else 0)
        b(f"s_waitcnt lgkmcnt({nrd(t - 1) if t > 0 else 3})")
        if t < 63:
            b(MF32(vr(Sn, 16), vr(KR + 4 * ((t + 1) % 3), 4), vr(Q, 4), vr(NEGM, 16)))
        for i in range(5): E(i)
        b(MF32(vr(O, 16), vr(VR + 8 * ((t - 1) % 3) + 4, 4), vr(P + 4, 4)))
        u, ph = divmod(t - T0 - 5, 3)
        if t >= T0 + 5 and ph == 0 and u < 16:
            vmwait(f"w{u}")
            for s in range(2):
                for e in range(2):
                    a(f"ds_read_b64_tr_b16 {vr(W + 8 * u + 4 * s + 2 * e, 2)}, v9 offset:{(u % 2) * 2048 + s * 512 + e * 256}")
        if t + 3 < 64: b(kread(t + 3))
        if t + 2 < 64:
            for x in vread(t + 2): b(x)
        for i in range(5, 8): E(i)
        for i in range(4): C(i)
        E(8); E(9)
        b(MF32(vr(O, 16), vr(VR + 8 * (t % 3), 4), vr(P, 4)))
        if t < 12: kvdma(2 + t // 2, t % 2)
        u, ph = divmod(t - T0, 3)
        if t >= T0 and ph == 0 and u < 16:
            a(f"s_add_u32 m0, s55, {(u % 2) * 2048}")
            a(f"s_add_u32 s29, s54, {u * 32 * 3584}")
            V("buffer_load_dwordx4 v8, s[12:15], s29 offen lds", f"w{u}")
            a(f"s_add_u32 m0, s55, {(u % 2) * 2048 + 1024}")
            a("s_nop 0")
            V("buffer_load_dwordx4 v8, s[16:19], s29 offen lds", f"w{u}")
        if t == 59 and K2_TCH:
            a("s_lshr_b32 s29, s2, 3")
            a("s_lshl_b32 s29, s29, 14")
            a("s_lshl_b32 s31, s22, 11")
            a("s_add_u32 s29, s29, s31")
            srd(a, 96, 44, 512 * 512 * 2)
            a("v_and_b32 v12, 15, v0")
            a("v_lshlrev_b32 v12, 7, v12")
            V("buffer_load_dword v124, v12, s[96:99], s29 offen", "tch")

        for i in range(10, 16): E(i)
        for i in range(4, 8): C(i)
    a("s_setprio 0")
    a("s_lshl_b32 s29, s24, 3")
    a("s_add_u32 s29, s29, s22")
    a(MF32(vr(O, 16), vr(VR + 8 * (63 % 3) + 4, 4), vr(P + 4, 4)))
    a("s_lshl_b32 s31, s24, 8")
    a("s_lshl_b32 s30, s23, 2")
    a("s_add_u32 s31, s31, s30")
    a(f"s_add_u32 s31, s31, {FL2}")
    a("s_lshl_b32 s29, s29, 15")
    a("s_lshl_b32 s30, s23, 10")
    a("s_add_u32 s29, s29, s30")
    a(f"s_add_u32 s29, s29, {OF}")
    a("v_mov_b32 v12, 0")
    a("v_mov_b32 v13, 1")
    a("s_waitcnt lgkmcnt(0)")
    a("s_nop 0")
    a(f"v_cmp_gt_f32 vcc, s50, v{O + 8}")
    a("s_nop 1")
    a("s_cmp_eq_u64 vcc, -1")
    a("s_cbranch_scc0 K2_FALLBACK")
    a.label("K2_FIN")
    a(f"v_rcp_f32 v14, v{O + 8}")
    a("s_nop 0")
    for i in range(8):
        a(f"v_mul_f32 v{O+i}, v14, v{O+i}")
    for i in range(4):
        a(f"v_cvt_pk_bf16_f32 v{P+i}, v{O+2*i}, v{O+2*i+1}")
    a(f"buffer_store_dwordx4 {vr(P, 4)}, v2, s[8:11], s29 offen sc1")
    stamp(a, 2)
    srd(a, 12, 44, 512 * 512 * 2)
    srd(a, 16, 46, 2048 * 512 * 2)
    a("s_and_b32 s25, s22, 1")
    a("s_bfe_u32 s26, s22, 0x10001")
    a("s_lshr_b32 s27, s22, 2")
    a("s_lshl_b32 s28, s24, 1")
    a("s_add_u32 s28, s28, s25")
    a("s_lshl_b32 s30, s23, 1")
    a("s_add_u32 s30, s30, s26")
    a("v_lshrrev_b32 v8, 2, v0")
    a("v_lshlrev_b32 v8, 10, v8")
    a("v_and_b32 v1, 3, v0")
    a("v_lshl_add_u32 v8, v1, 4, v8")
    a("v_lshlrev_b32 v9, 6, v10")
    a("v_lshl_add_u32 v9, v1, 3, v9")
    a("v_bfe_u32 v1, v0, 4, 1")
    a("v_lshl_add_u32 v9, v1, 5, v9")
    a("s_lshl_b32 s32, s25, 15")
    a("s_lshl_b32 s33, s27, 14")
    a("s_add_u32 s32, s32, s33")
    a("v_add_u32 v9, s32, v9")
    a("v_and_b32 v3, 31, v0")
    a("v_lshlrev_b32 v3, 10, v3")
    a("v_lshl_add_u32 v3, v11, 4, v3")
    a("s_lshl_b32 s51, s30, 15")
    a("s_lshl_b32 s33, s28, 6")
    a("s_add_u32 s51, s51, s33")
    RES = 112
    for j in range(2):
        a(f"buffer_load_dwordx4 {vr(RES + 4 * j, 4)}, v3, s[16:19], s51 offen offset:{j * 32}")
    a("s_waitcnt vmcnt(0)")
    a("s_barrier")
    def dstore(ins):
        return [ins + " sc1"]
    signal("K2_S2")
    a("s_lshl_b32 s33, s26, 13")
    a("s_add_u32 s52, s32, s33")
    a("s_lshl_b32 s53, s27, 1")
    a("s_add_u32 s53, s53, s26")
    a("s_lshl_b32 s53, s53, 17")
    a("s_lshl_b32 s33, s28, 6")
    a("s_add_u32 s53, s53, s33")
    for i in range(8):
        a(f"s_add_u32 m0, s52, {i * 1024}")
        a(f"s_add_u32 s29, s53, {i * 16384}")
        a("buffer_load_dwordx4 v8, s[12:15], s29 offen lds")
    a("s_cmp_eq_u32 s22, 7")
    a("s_cbranch_scc1 K2_POLL2")
    a("s_mov_b32 s29, 0x3f803f80")
    for i in range(4): a(f"v_mov_b32 v{124 + i}, 0")
    for i in range(128):
        a(f"v_dot2c_f32_bf16 v{124 + i % 4}, s29, v{W + i}")
    a("s_nop 2")
    a("v_add_f32 v124, v124, v125")
    a("v_add_f32 v126, v126, v127")
    a("v_add_f32 v126, v124, v126")
    a("v_cvt_pk_bf16_f32 v124, v126, v126")
    a("v_lshlrev_b32 v125, 16, v124")
    a("v_sub_f32 v125, v126, v125")
    a("v_cvt_pk_bf16_f32 v125, v125, v125")
    a("v_mov_b32 v126, 0")
    a("v_mov_b32 v127, 0")
    a("s_branch K2_B2")
    a.label("K2_POLL2")
    a("s_lshr_b32 s29, s23, 2")
    a("s_lshl_b32 s29, s29, 8")
    a(f"s_add_u32 s29, s29, {FL2}")
    poll("K2_P2", 29, 32)
    a.label("K2_B2")
    a("s_waitcnt vmcnt(0)")
    a("s_barrier")
    stamp(a, 3)
    a("s_lshl_b32 s29, s25, 15")
    a("s_lshl_b32 s33, s26, 14")
    a("s_add_u32 s29, s29, s33")
    a("s_lshl_b32 s33, s27, 12")
    a("s_add_u32 s29, s29, s33")
    a("s_lshl_b32 s33, s23, 16")
    a("s_add_u32 s33, s33, s29")
    a(f"s_add_u32 s33, s33, {OF}")
    for stg in range(2):
        a(f"s_add_u32 m0, s29, {65536 + stg * 8192}")
        if stg: a("s_add_u32 s33, s33, 8192")
        else: a("s_nop 0")
        for i in range(4):
            a(f"buffer_load_dwordx4 v2, s[8:11], s33 offen offset:{i * 1024} {LD_SC} lds")
    A3 = 16; WO = 32; OB = 96
    for s in range(16):
        for e in range(2):
            a(f"ds_read_b64_tr_b16 {vr(WO + 4 * s + 2 * e, 2)}, v9 offset:{s * 1024 + e * 512}")
    a("s_lshl_b32 s29, s26, 15")
    a("s_lshl_b32 s33, s27, 14")
    a("s_add_u32 s29, s29, s33")
    a("s_add_u32 s29, s29, 65536")
    a("v_add_u32 v8, s29, v2")
    a("s_and_b32 s29, s22, 3")
    a("s_lshl_b32 s29, s29, 12")
    a(f"s_add_u32 s29, s29, {SCR}")
    a("v_add_u32 v9, s29, v2")
    for j in range(2):
        a(f"v_permlane32_swap_b32 v{RES + 4 * j}, v{RES + 4 * j + 2}")
        a(f"v_permlane32_swap_b32 v{RES + 4 * j + 1}, v{RES + 4 * j + 3}")
    for stg in range(2):
        a(f"s_waitcnt vmcnt({4 - 4 * stg}) lgkmcnt(0)")
        a("s_barrier")
        rd = lambda s: f"ds_read_b128 {vr(OB + 4 * (s % 4), 4)}, v8 offset:{s * 1024}"
        for s in range(8 * stg, 8 * stg + 3): a(rd(s))
        for s in range(8 * stg, 8 * stg + 8):
            left = 8 * stg + 7 - s
            if left >= 3: a(rd(s + 3))
            a(f"s_waitcnt lgkmcnt({min(left, 3)})")
            a(MF32(vr(A3, 16), vr(WO + 4 * s, 4), vr(OB + 4 * (s % 4), 4), "0" if s == 0 else None))
    a("s_cmp_lt_u32 s22, 4")
    a("s_cbranch_scc1 K2_O_LO")
    a("s_nop 9")
    for q in range(4):
        a(f"ds_write_b128 v9, {vr(A3 + 4 * q, 4)} offset:{q * 1024}")
    a("s_waitcnt lgkmcnt(0)")
    a("s_barrier")
    a("s_lshr_b32 s31, s23, 1")
    a("s_lshl_b32 s31, s31, 8")
    a("s_and_b32 s33, s23, 1")
    a("s_lshl_b32 s33, s33, 3")
    a("s_add_u32 s33, s33, s24")
    a("s_lshl_b32 s33, s33, 2")
    a("s_add_u32 s31, s31, s33")
    a(f"s_add_u32 s31, s31, {FL3}")
    a("s_lshl_b32 s29, s36, 8")
    a(f"s_add_u32 s29, s29, {FL3}")
    a("s_barrier")
    signal("K2_S3", True)
    a("s_cmp_eq_u32 s22, 7")
    a("s_cbranch_scc0 K2_B3")
    poll("K2_P3", 29, 16)
    a("s_branch K2_B3")
    a.label("K2_O_LO")
    a("s_mov_b32 s29, 0xffff0000")
    for i in range(8):
        a(f"v_lshlrev_b32 v{48 + 2 * i}, 16, v{RES + i}")
        a(f"v_and_b32 v{49 + 2 * i}, s29, v{RES + i}")
    for i in range(16):
        a(f"v_add_f32 v{A3 + i}, v{A3 + i}, v{48 + i}")
    a("s_lshl_b32 s52, s30, 15")
    a("s_lshl_b32 s33, s28, 11")
    a("s_add_u32 s52, s52, s33")
    a(f"s_add_u32 s52, s52, {HF}")
    a("s_lshl_b32 s53, s30, 12")
    a("s_lshl_b32 s33, s28, 8")
    a("s_add_u32 s53, s53, s33")
    a(f"s_add_u32 s53, s53, {ST}")
    a("v_lshlrev_b32 v3, 3, v0")
    a("s_mov_b32 s29, 0x3f803f80")
    a("v_mov_b32 v14, 0")
    a("v_mov_b32 v15, 0")
    a("s_barrier")
    for q in range(4):
        a(f"ds_read_b128 {vr(32 + 4 * q, 4)}, v9 offset:{q * 1024}")
    o = 112
    for q in range(4):
        a(f"s_waitcnt lgkmcnt({3 - q})")
        for i in range(4 * q, 4 * q + 4):
            a(f"v_add_f32 v{A3 + i}, v{A3 + i}, v{32 + i}")
        for i in range(2 * q, 2 * q + 2):
            a(f"v_cvt_pk_bf16_f32 v{o + i}, v{A3 + 2 * i}, v{A3 + 2 * i + 1}")
        if q % 2:
            j = q // 2
            for x in dstore(f"buffer_store_dwordx4 {vr(o + 4 * j, 4)}, v2, s[8:11], s52 offen offset:{j * 1024}"): a(x)
    for i in range(8):
        a(f"v_dot2c_f32_bf16 v14, s29, v{o + i}")
        a(f"v_dot2c_f32_bf16 v15, v{o + i}, v{o + i}")
    a("s_nop 2")
    a("v_mov_b32 v16, v14")
    a("v_mov_b32 v17, v15")
    a("s_nop 0")
    a("v_permlane32_swap_b32 v14, v16")
    a("v_permlane32_swap_b32 v15, v17")
    a("v_add_f32 v14, v14, v16")
    a("v_add_f32 v15, v15, v17")
    a("s_mov_b64 exec, 0xffffffff")
    for x in dstore("buffer_store_dwordx2 v[14:15], v3, s[8:11], s53 offen"): a(x)
    a("s_mov_b64 exec, -1")
    a("s_waitcnt vmcnt(0)")
    a("s_barrier")
    a.label("K2_B3")
    a("v_add_u32 v3, 65536, v2")
    a("v_and_b32 v8, 31, v0")
    a("v_lshlrev_b32 v8, 4, v8")
    a(f"v_add_u32 v8, {SCR}, v8")
    a(f"s_mul_i32 s32, s36, {4 * 112 * 1024}")
    a("s_lshl_b32 s33, s39, 10")
    a("s_add_u32 s32, s32, s33")
    a(f"s_add_u32 s32, s32, {GF}")
    a("s_and_b32 s25, s22, 3")
    a("s_lshl_b32 s30, s36, 2")
    a("s_add_u32 s30, s30, s25")
    def hread(dst, tt, s):
        return f"ds_read_b128 {vr(dst, 4)}, v{2 + tt // 2} offset:{(tt % 2) * 32768 + s * 1024}"
    def epi(g, z, st, tt):
        u = g + 8; o = []
        ve, a0, a1 = f"v{st+1}", f"v{st+2}", f"v{st+3}"
        o += [f"v_mul_f32 v{z+i}, v{g+i}, v{g+i}" for i in range(8)]
        o += [f"v_fma_f32 v{z+i}, v{z+i}, {a1}, {a0}" for i in range(8)]
        o += [f"v_mul_f32 v{z+i}, v{z+i}, v{g+i}" for i in range(8)]
        for i in range(8):
            o += [f"v_exp_f32 v{z+i}, v{z+i}", f"v_mul_f32 v{g+i}, v{g+i}, v{u+i}"]
        o += [f"v_fma_f32 v{z+i}, v{z+i}, {ve}, {ve}" for i in range(8)]
        o += [f"v_rcp_f32 v{z+i}, v{z+i}" for i in range(8)]
        o += [f"s_add_u32 s29, s32, {tt * 112 * 1024}"]
        o += [f"v_mul_f32 v{g+i}, v{g+i}, v{z+i}" for i in range(8)]
        o += [f"v_cvt_pk_bf16_f32 v{u+i}, v{g+2*i}, v{g+2*i+1}" for i in range(4)]
        o += dstore(f"buffer_store_dwordx4 {vr(u, 4)}, v2, s[8:11], s29 offen")
        return o
    ACC = 16; HB = 32; ZB = 80; SB = 88; TB = 92; NR = 12; STR = [96, 100, 104, 108]
    a(f"v_mov_b32 v{TB + 2}, 0")
    a(f"v_mov_b32 v{TB + 3}, 0")
    def tile(tt, hooks, pre=None, last=False, late=False):
        a("s_setprio 1")
        rd = lambda ks: hread(HB + 4 * (ks % NR), tt, ks)
        if pre is None:
            for ks in range(NR - 1): a(rd(ks))
        for ks in range(32):
            if ks + NR - 1 < 32: a(rd(ks + NR - 1))
            if ks % 4 == 0:
                a(f"s_waitcnt lgkmcnt({min(ks + NR - 1, 31) - (ks + 3)})")
            a(MF32(vr(ACC, 16), vr(W + 4 * ks, 4), vr(HB + 4 * (ks % NR), 4), "0" if ks == 0 else None))
            if ks == G_P2: a("s_setprio 2")
            if not late:
                if ks == 22: a(f"ds_read_b128 {vr(SB, 4)}, v8 offset:{tt * 512}")
                if ks == 29:
                    a(f"v_mov_b32 v{TB}, v{SB}")
                    a(f"v_mov_b32 v{TB + 1}, v{SB}")
            for x in hooks.get(ks, []): a(x)
        if late:
            a(f"ds_read_b128 {vr(SB, 4)}, v8 offset:{tt * 512}")
            a("s_waitcnt lgkmcnt(0)")
            a(f"v_mov_b32 v{TB}, v{SB}")
            a(f"v_mov_b32 v{TB + 1}, v{SB}")
            a("s_nop 1")
        a(MF32(vr(ACC, 16), vr(124, 4), vr(TB, 4)))
        a("s_setprio 0")
        for x in hooks.get("post", []): a(x)
        if not last:
            for ks in range(NR - 1): a(hread(HB + 4 * ks, tt + 1, ks))
        else:
            a("s_nop 10")
        for x in epi(ACC, ZB, SB, tt): a(x)
    a("s_cmp_lt_u32 s22, 4")
    a("s_cbranch_scc1 K2_GA")
    a("s_lshl_b32 s28, s25, 13")
    a("s_lshl_b32 s26, s36, 17")
    a("s_add_u32 s26, s26, s28")
    a(f"s_add_u32 s26, s26, {HF}")
    a("s_barrier")
    stamp(a, 4)
    def hdma(tt):
        for g in range(2):
            a(f"s_add_u32 m0, s28, {tt * 32768 + g * 4096}")
            a(f"s_add_u32 s29, s26, {tt * 32768 + g * 4096}")
            for i in range(4):
                a(f"buffer_load_dwordx4 v2, s[8:11], s29 offen offset:{i * 1024} {LD_SC} lds")
    hdma(0); hdma(1)
    a("s_waitcnt vmcnt(8)")
    a("s_barrier")
    if GSTAMP: stamp(a, 3)
    hdma(2); hdma(3)
    a("s_waitcnt vmcnt(16)")
    a("s_barrier")
    if GSTAMP: stamp(a, 4)
    a("s_cmp_eq_u32 s22, 7")
    a("s_cbranch_scc1 K2_W7")
    tile(0, {GB3: ["s_waitcnt vmcnt(0)", "s_barrier"]})
    tile(1, {}, pre=1); tile(2, {}, pre=1)
    tile(3, {}, pre=1, last=True)
    a("s_branch K2_DOWN")
    a.label("K2_W7")
    a("s_waitcnt vmcnt(0)")
    a("s_barrier")
    if K4_TOUCH:
        srd(a, 12, 48, 1792 * 512 * 2)
        a("s_lshr_b32 s29, s2, 3")
        a("s_mul_i32 s29, s29, 57344")
        a("v_lshlrev_b32 v13, 7, v0")
        for i in range(7):
            a("buffer_load_dword v14, v13, s[12:15], s29 offen")
            a("s_add_u32 s29, s29, 8192")
    a("s_branch K2_DOWN")
    a.label("K2_GA")
    a("s_lshl_b32 s26, s30, 12")
    a(f"s_add_u32 s26, s26, {ST}")
    a("s_lshl_b32 s28, s25, 9")
    a("v_add_u32 v9, s28, v8")
    a("v_and_b32 v1, 31, v0")
    a("v_lshlrev_b32 v1, 3, v1")
    a("v_lshl_add_u32 v1, v11, 11, v1")
    a("s_barrier")
    stamp(a, 4)
    for q in range(8):
        a(f"buffer_load_dwordx2 {vr(STR[q // 2] + 2 * (q % 2), 2)}, v1, s[8:11], s26 offen offset:{q * 256} sc1")
    r0 = STR[0]
    SQ = ["s_waitcnt vmcnt(0)"]
    for q in range(1, 4):
        SQ += [f"v_add_f32 v{r0 + i}, v{r0 + i}, v{STR[q] + i}" for i in range(4)]
    SQ += [f"v_add_f32 v12, v{r0}, v{r0 + 2}", f"v_add_f32 v13, v{r0 + 1}, v{r0 + 3}",
           "v_mov_b32 v14, v12", "v_mov_b32 v15, v13", "s_nop 0",
           "v_permlane32_swap_b32 v12, v14", "v_permlane32_swap_b32 v13, v15",
           "v_add_f32 v12, v12, v14", "v_add_f32 v13, v13, v15",
           f"v_mul_f32 v12, {f32(-1/512)}, v12", f"v_mul_f32 v13, {f32(1/512)}, v13",
           "v_fma_f32 v13, -v12, v12, v13", "v_max_f32 v13, 0, v13", f"v_add_f32 v{r0 + 1}, {f32(EPS)}, v13",
           f"v_rsq_f32 v14, v{r0 + 1}", "v_cvt_pk_bf16_f32 v15, v12, v12", "v_lshlrev_b32 v15, 16, v15",
           "v_sub_f32 v12, v12, v15", f"v_cvt_pk_bf16_f32 v{r0}, v15, v12",
           f"v_mul_f32 v{r0 + 2}, {f32(-K1C)}, v14", "v_mul_f32 v14, v14, v14", f"v_mul_f32 v14, v14, v{r0 + 2}",
           f"v_mul_f32 v{r0 + 3}, {f32(0.044715)}, v14"]
    hooks = {}
    for k_ in range(10):
        hooks[8 + k_] = SQ[4 * k_: 4 * k_ + 4]
    hooks[29] = [f"ds_write_b128 v9, {vr(r0, 4)}"]
    hooks[31] = ["s_waitcnt lgkmcnt(0)", "s_barrier"]
    a("s_barrier")
    if GSTAMP: stamp(a, 3)
    tile(0, hooks, late=True)
    if GSTAMP: stamp(a, 4)
    tile(1, {GA3: ["s_barrier"]}, pre=1); tile(2, {}, pre=1)
    tile(3, {}, pre=1, last=True)
    a.label("K2_DOWN")
    stamp(a, 5)
    AC5 = 16; WD = 128; GS = [80, 88, 96, 104, 240, 248, 120]; KS = 14; NG = len(GS)
    srd(a, 12, 48, 1792 * 512 * 2)
    srd(a, 16, 62, 2048 * 512 * 2)
    a("s_lshl_b32 s31, s36, 8")
    a("s_lshl_b32 s33, s37, 2")
    a("s_add_u32 s31, s31, s33")
    a(f"s_add_u32 s31, s31, {FL4}")
    a("s_and_b32 s26, s22, 1")
    a("s_bfe_u32 s27, s22, 0x10001")
    a("s_lshl_b32 s28, s24, 1")
    a("s_add_u32 s28, s28, s26")
    a("s_lshl_b32 s30, s23, 1")
    a("s_add_u32 s30, s30, s27")
    a(f"s_mul_i32 s29, s22, {KS * 1024}")
    a(f"s_mul_i32 s52, s30, {112 * 1024}")
    a("s_add_u32 s52, s52, s29")
    a(f"s_add_u32 s52, s52, {GF}")
    a("s_xor_b32 s53, s30, 1")
    a(f"s_mul_i32 s53, s53, {112 * 1024}")
    a("s_add_u32 s53, s53, s29")
    a(f"s_add_u32 s53, s53, {GF}")
    a(f"s_mul_i32 s29, s22, {KS * 16384}")
    a("s_lshl_b32 s54, s28, 6")
    a("s_xor_b32 s55, s54, 64")
    a("s_add_u32 s54, s54, s29")
    a("s_add_u32 s55, s55, s29")
    a("s_lshl_b32 s32, s22, 14")
    a("v_lshrrev_b32 v8, 2, v0")
    a("v_lshlrev_b32 v8, 10, v8")
    a("v_and_b32 v1, 3, v0")
    a("v_lshl_add_u32 v8, v1, 4, v8")
    a("v_lshlrev_b32 v9, 6, v10")
    a("v_lshl_add_u32 v9, v1, 3, v9")
    a("v_bfe_u32 v1, v0, 4, 1")
    a("v_lshl_add_u32 v9, v1, 5, v9")
    a("v_add_u32 v9, s32, v9")
    a("v_mov_b32 v12, 0")
    a("v_mov_b32 v13, 1")
    a("v_and_b32 v3, 31, v0")
    a("v_lshlrev_b32 v3, 10, v3")
    a("v_lshl_add_u32 v3, v11, 4, v3")
    for t in range(4):
        a(f"s_xor_b32 s29, s25, {t}")
        a("s_lshl_b32 s29, s29, 14")
        a("s_lshl_b32 s33, s25, 12")
        a("s_add_u32 s29, s29, s33")
        a(f"v_add_u32 v{4 + t}, s29, v2")
    a("s_waitcnt vmcnt(0)")
    a("s_barrier")
    signal("K2_S4", True)
    def wdma(s0_, s1_):
        for s in range(s0_, s1_):
            for i in range(2):
                a(f"s_add_u32 m0, s32, {(s % 8) * 2048 + i * 1024}")
                a(f"s_add_u32 s29, s{54 + i}, {s * 16384}")
                a("buffer_load_dwordx4 v8, s[12:15], s29 offen lds")
    def wtr(s0_, s1_):
        for s in range(s0_, s1_):
            for i in range(2):
                for e in range(2):
                    a(f"ds_read_b64_tr_b16 {vr(WD + 8 * s + 4 * i + 2 * e, 2)}, v9 offset:{(s % 8) * 2048 + i * 1024 + e * 512}")
    def gload(s):
        if s % 4 == 0 and s > 0:
            a("s_add_u32 s52, s52, 4096")
            a("s_add_u32 s53, s53, 4096")
        for i in range(2):
            a(f"buffer_load_dwordx4 {vr(GS[s % NG] + 4 * i, 4)}, v2, s[8:11], s{52 + i} offen offset:{(s % 4) * 1024} {LD_SC}")
    def kloop(hooks):
        for s in range(NG): gload(s)
        issued = NG
        for s in range(KS):
            a(f"s_waitcnt vmcnt({(issued - s - 1) * 2})")
            g = GS[s % NG]; w = WD + 8 * s
            B0, B1, A0, A1 = vr(g, 4), vr(g + 4, 4), vr(w, 4), vr(w + 4, 4)
            C = "0" if s == 0 else None
            a(MF32(vr(AC5, 16), A0, B0, C))
            a(MF32(vr(AC5 + 32, 16), A0, B1, C))
            a(MF32(vr(AC5 + 16, 16), A1, B0, C))
            a(MF32(vr(AC5 + 48, 16), A1, B1, C))
            if issued < KS:
                gload(issued); issued += 1
            for x in hooks.get(s, []): a(x)
    wdma(0, 8)
    a("s_waitcnt vmcnt(0)")
    wtr(0, 8)
    a("s_waitcnt lgkmcnt(0)")
    a("s_cmp_lt_u32 s22, 4")
    a("s_cbranch_scc1 K2_DLO")
    wdma(8, KS)
    a("s_cmp_eq_u32 s22, 7")
    a("s_cbranch_scc0 K2_NP4")
    a("s_lshr_b32 s29, s23, 1")
    a("s_lshl_b32 s29, s29, 8")
    a(f"s_add_u32 s29, s29, {FL4}")
    poll("K2_P4", 29, 16)
    a.label("K2_NP4")
    a("s_waitcnt vmcnt(0)")
    wtr(8, KS)
    a("s_barrier")
    stamp(a, 6)
    a("s_waitcnt lgkmcnt(0)")
    kloop({D_Y: ["s_barrier"]})
    a("s_nop 9")
    for t in (0, 2, 1, 3):
        for q in range(4):
            a(f"ds_write_b128 v{4 + t}, {vr(AC5 + 16 * t + 4 * q, 4)} offset:{q * 1024}")
    a("s_waitcnt lgkmcnt(0)")
    a("s_barrier")
    stamp_end(a, 0, 7, 8)
    a("s_endpgm")
    a.label("K2_DLO")
    wdma(8, KS)
    for t in range(1, 4):
        a(f"s_xor_b32 s29, s25, {t}")
        a("s_mul_i32 s29, s29, 12288")
        a(f"s_add_u32 s29, s29, {65536 + (t - 1) * 4096}")
        a(f"v_add_u32 v{4 + t}, s29, v2")
    a("s_mul_i32 s29, s25, 12288")
    a("s_add_u32 s29, s29, 65536")
    a("v_add_u32 v4, s29, v2")
    a("s_lshl_b32 s29, s25, 14")
    a("v_add_u32 v8, s29, v2")
    a("s_barrier")
    stamp(a, 6)
    a("s_waitcnt vmcnt(0)")
    wtr(8, KS)
    a("s_waitcnt lgkmcnt(0)")
    a("s_barrier")
    SA_ = WD; TM = WD + 16
    H1 = ["s_barrier"] + [f"ds_read_b128 {vr(WD + 16 * p_ + 4 * q, 4)}, v8 offset:{p_ * 4096 + q * 1024}" for p_ in range(4) for q in range(4)]
    H2 = ["s_waitcnt lgkmcnt(0)", "s_mov_b32 s29, 0xffff0000"]
    H2 += [f"v_add_f32 v{WD + i}, v{WD + i}, v{WD + 16 + i}" for i in range(16)]
    H2 += [f"v_add_f32 v{WD + 32 + i}, v{WD + 32 + i}, v{WD + 48 + i}" for i in range(16)]
    H3 = [f"v_add_f32 v{WD + i}, v{WD + i}, v{WD + 32 + i}" for i in range(16)]
    for i in range(8):
        H3 += [f"v_lshlrev_b32 v{WD + 16 + 2 * i}, 16, v{112 + i}", f"v_and_b32 v{WD + 17 + 2 * i}, s29, v{112 + i}"]
    H4 = [f"v_add_f32 v{WD + i}, v{WD + i}, v{WD + 16 + i}" for i in range(16)]
    kloop({9: H1, 10: H2, 11: H3, 12: H4})
    a("s_nop 9")
    for t in (2, 1, 3):
        for q in range(4):
            a(f"ds_write_b128 v{4 + t}, {vr(AC5 + 16 * t + 4 * q, 4)} offset:{q * 1024}")
    for i in range(16):
        a(f"v_add_f32 v{AC5 + i}, v{AC5 + i}, v{WD + i}")
    a("s_waitcnt lgkmcnt(0)")
    a("s_barrier")
    for t in range(3):
        for q in range(4):
            a(f"ds_read_b128 {vr(WD + 16 * t + 4 * q, 4)}, v4 offset:{t * 4096 + q * 1024}")
    for t in range(3):
        a(f"s_waitcnt lgkmcnt({8 - 4 * t})")
        for i in range(0, 16, 2):
            a(f"v_pk_add_f32 {vr(AC5 + i, 2)}, {vr(AC5 + i, 2)}, {vr(WD + 16 * t + i, 2)}")
    o = AC5 + 16
    for i in range(8):
        a(f"v_cvt_pk_bf16_f32 v{o + i}, v{AC5 + 2 * i}, v{AC5 + 2 * i + 1}")
    a("s_nop 0")
    for j in range(2):
        a(f"v_permlane32_swap_b32 v{o + 4 * j}, v{o + 4 * j + 2}")
        a(f"v_permlane32_swap_b32 v{o + 4 * j + 1}, v{o + 4 * j + 3}")
    for j in range(2):
        a(f"buffer_store_dwordx4 {vr(o + 4 * j, 4)}, v3, s[16:19], s51 offen offset:{j * 32}")
    stamp_end(a, 0, 7, 8)
    a("s_endpgm")
    a.label("K2_FALLBACK")
    a("v_mov_b32 v1, v2")
    a("v_mov_b32 v14, 0xff800000")
    a("s_mov_b32 s33, 0")
    a.label("K2_FB1")
    a(f"ds_read_b128 {vr(KR, 4)}, v1")
    a("v_add_u32 v1, 1024, v1")
    a("s_waitcnt lgkmcnt(0)")
    a(MF32(vr(s0, 16), vr(KR, 4), vr(Q, 4), "0"))
    a("s_nop 11")
    for i in range(0, 16, 2):
        a(f"v_max3_f32 v14, v14, v{s0+i}, v{s0+i+1}")
    a("s_add_u32 s33, s33, 1")
    a("s_cmp_lt_u32 s33, 64")
    a("s_cbranch_scc1 K2_FB1")
    set_negm()
    for i in range(16):
        a(f"v_mov_b32 v{O + i}, 0")
    a("v_mov_b32 v1, v2")
    a("s_mov_b32 s33, 0")
    a.label("K2_FB2")
    a(f"ds_read_b128 {vr(KR, 4)}, v1")
    a("s_mov_b64 exec, s[34:35]")
    a(f"ds_read_b128 {vr(VR, 4)}, v3")
    a(f"ds_read_b128 {vr(VR + 4, 4)}, v3 offset:512")
    a("s_mov_b64 exec, -1")
    a("v_add_u32 v1, 1024, v1")
    a("v_add_u32 v3, 1024, v3")
    a("s_waitcnt lgkmcnt(0)")
    a(MF32(vr(s0, 16), vr(KR, 4), vr(Q, 4), vr(NEGM, 16)))
    a("s_nop 11")
    for i in range(16): a(f"v_exp_f32 v{s0+i}, v{s0+i}")
    a("s_nop 0")
    for i in range(8): a(f"v_cvt_pk_bf16_f32 v{P+i}, v{s0+2*i}, v{s0+2*i+1}")
    a("s_nop 1")
    a(MF32(vr(O, 16), vr(VR, 4), vr(P, 4)))
    a(MF32(vr(O, 16), vr(VR + 4, 4), vr(P + 4, 4)))
    a("s_add_u32 s33, s33, 1")
    a("s_cmp_lt_u32 s33, 64")
    a("s_cbranch_scc1 K2_FB2")
    a("s_nop 11")
    a("s_branch K2_FIN")
    a.label("K2_END")
    a("s_endpgm")
    return n, a, kd(n, 256, 256), (256, 512, 163840)

def k5():
    a = Asm(); n = "k3_down_kernel"
    NS = 112; KS = 28; DEPTH = 8
    kernel_head(a, n)
    ACC = 16; GB = 80; WB = 144; RES = 160
    RED = 65536
    a("s_cmp_ge_u32 s2, 256")
    a("s_cbranch_scc1 K5_END")
    stamp(a, 0)
    if DBGK1:
        a("s_memrealtime s[64:65]")
        a("s_memtime s[66:67]")
    a("s_load_dwordx2 s[4:5], s[0:1], 72")
    a("s_load_dwordx4 s[40:43], s[0:1], 48")
    a("v_lshrrev_b32 v1, 6, v0")
    a("v_and_b32 v0, 63, v0")
    a("v_readfirstlane_b32 s22, v1")
    a("v_lshlrev_b32 v2, 4, v0")
    a("s_and_b32 s23, s2, 7")
    a("s_lshl_b32 s23, s23, 2")
    a("s_bfe_u32 s29, s2, 0x20003")
    a("s_add_u32 s23, s23, s29")
    a("s_lshr_b32 s24, s2, 5")
    a("s_and_b32 s25, s22, 1")
    a("s_lshr_b32 s26, s22, 1")
    a("s_lshl_b32 s27, s24, 1")
    a("s_add_u32 s27, s27, s25")
    a("s_lshl_b32 s28, s23, 1")
    a("s_add_u32 s28, s28, s26")
    a(f"s_mul_i32 s29, s22, {KS * 1024}")
    a(f"s_mul_i32 s32, s28, {NS * 1024}")
    a("s_add_u32 s32, s32, s29")
    a(f"s_add_u32 s32, s32, {GF}")
    a("s_xor_b32 s33, s28, 1")
    a(f"s_mul_i32 s33, s33, {NS * 1024}")
    a("s_add_u32 s33, s33, s29")
    a(f"s_add_u32 s33, s33, {GF}")
    a(f"s_mul_i32 s29, s22, {KS * 16384}")
    a("s_lshl_b32 s30, s27, 6")
    a("s_xor_b32 s31, s30, 64")
    a("s_add_u32 s30, s30, s29")
    a("s_add_u32 s31, s31, s29")
    a("s_lshl_b32 s36, s22, 14")
    a("v_lshrrev_b32 v8, 2, v0")
    a("v_lshlrev_b32 v8, 10, v8")
    a("v_and_b32 v1, 3, v0")
    a("v_lshl_add_u32 v8, v1, 4, v8")
    a("s_waitcnt lgkmcnt(0)")
    srd(a, 8, 4, WS_SIZE)
    srd(a, 16, 40, 1792 * 512 * 2)
    srd(a, 12, 42, 2048 * 512 * 2)
    def loads(s):
        b = GB + 8 * (s % DEPTH)
        if s % 4 == 0 and s > 0:
            a("s_add_u32 s32, s32, 4096")
            a("s_add_u32 s33, s33, 4096")
        for i in range(2):
            a(f"s_add_u32 m0, s36, {(s % DEPTH) * 2048 + i * 1024}")
            a(f"s_add_u32 s29, s{30 + i}, {s * 16384}")
            a("buffer_load_dwordx4 v8, s[16:19], s29 offen lds")
        for i in range(2):
            a(f"buffer_load_dwordx4 {vr(b + 4 * i, 4)}, v2, s[8:11], s{32 + i} offen offset:{(s % 4) * 1024}")
    for s in range(DEPTH - 1):
        loads(s)
    a("v_lshrrev_b32 v4, 5, v0")
    a("v_bfe_u32 v1, v0, 2, 2")
    a("v_lshl_add_u32 v9, v4, 2, v1")
    a("v_lshlrev_b32 v9, 6, v9")
    a("v_and_b32 v1, 3, v0")
    a("v_lshl_add_u32 v9, v1, 3, v9")
    a("v_bfe_u32 v1, v0, 4, 1")
    a("v_lshl_add_u32 v9, v1, 5, v9")
    a("v_add_u32 v9, s36, v9")
    a("v_and_b32 v3, 31, v0")
    a("v_lshlrev_b32 v3, 10, v3")
    a("v_lshl_add_u32 v3, v4, 4, v3")
    a("s_lshl_b32 s34, s28, 15")
    a("s_lshl_b32 s35, s27, 6")
    a("s_add_u32 s34, s34, s35")
    a("s_lshl_b32 s35, s28, 15")
    a("s_lshl_b32 s37, s27, 11")
    a("s_add_u32 s35, s35, s37")
    a(f"s_add_u32 s35, s35, {HF}")
    for t in range(1, 4):
        a(f"s_xor_b32 s29, s22, {t}")
        a("s_mul_i32 s29, s29, 12288")
        a(f"s_add_u32 s29, s29, {RED}")
        a(f"v_add_u32 v{4 + t}, s29, v2")
    a("s_mul_i32 s29, s22, 12288")
    a(f"s_add_u32 s29, s29, {RED}")
    a("v_add_u32 v4, s29, v2")
    def trreads(s):
        for i in range(2):
            for e in range(2):
                a(f"ds_read_b64_tr_b16 {vr(WB + 8 * (s % 2) + 4 * i + 2 * e, 2)}, v9 offset:{(s % DEPTH) * 2048 + i * 1024 + e * 512}")
    def mfmas(s):
        g = GB + 8 * (s % DEPTH); w = WB + 8 * (s % 2)
        B0, B1, A0, A1 = vr(g, 4), vr(g + 4, 4), vr(w, 4), vr(w + 4, 4)
        C = "0" if s == 0 else None
        a(MF32(vr(ACC, 16), A0, B0, C))
        a(MF32(vr(ACC + 32, 16), A0, B1, C))
        a(MF32(vr(ACC + 16, 16), A1, B0, C))
        a(MF32(vr(ACC + 48, 16), A1, B1, C))
    issued = DEPTH - 1; res = 0
    a(f"s_waitcnt vmcnt({(issued - 1) * 4})")
    stamp(a, 1)
    trreads(0)
    for s in range(KS):
        if issued < KS:
            loads(issued); issued += 1
            if issued == KS:
                for j in range(2):
                    a(f"buffer_load_dwordx4 {vr(RES + 4 * j, 4)}, v2, s[8:11], s35 offen offset:{j * 1024}")
                res = 2
        if s + 1 < KS:
            a(f"s_waitcnt vmcnt({(issued - s - 2) * 4 + res})")
            trreads(s + 1)
            a("s_waitcnt lgkmcnt(4)")
        else:
            a("s_waitcnt lgkmcnt(0)")
        mfmas(s)
    stamp(a, 2)
    a("s_waitcnt vmcnt(0)")
    a("s_mov_b32 s29, 0xffff0000")
    for i in range(8):
        a(f"v_lshlrev_b32 v{RES + 8 + 2 * i}, 16, v{RES + i}")
        a(f"v_and_b32 v{RES + 9 + 2 * i}, s29, v{RES + i}")
    for t in (2, 1, 3):
        for q in range(4):
            a(f"ds_write_b128 v{4 + t}, {vr(ACC + 16 * t + 4 * q, 4)} offset:{(t - 1) * 4096 + q * 1024}")
    for i in range(16):
        a(f"v_add_f32 v{ACC + i}, v{ACC + i}, v{RES + 8 + i}")
    a("s_waitcnt lgkmcnt(0)")
    a("s_barrier")
    for t in range(3):
        for q in range(4):
            a(f"ds_read_b128 {vr(GB + 16 * t + 4 * q, 4)}, v4 offset:{t * 4096 + q * 1024}")
    for t in range(3):
        a(f"s_waitcnt lgkmcnt({8 - 4 * t})")
        for i in range(0, 16, 2):
            a(f"v_pk_add_f32 {vr(ACC + i, 2)}, {vr(ACC + i, 2)}, {vr(GB + 16 * t + i, 2)}")
    o = ACC + 16
    for i in range(8):
        a(f"v_cvt_pk_bf16_f32 v{o + i}, v{ACC + 2 * i}, v{ACC + 2 * i + 1}")
    a("s_nop 0")
    for j in range(2):
        a(f"v_permlane32_swap_b32 v{o + 4 * j}, v{o + 4 * j + 2}")
        a(f"v_permlane32_swap_b32 v{o + 4 * j + 1}, v{o + 4 * j + 3}")
    for j in range(2):
        a(f"buffer_store_dwordx4 {vr(o + 4 * j, 4)}, v3, s[12:15], s34 offen offset:{j * 32}")
    stamp_end(a, 2, 3, 8)
    if DBGK1:
        a("s_waitcnt vmcnt(0)")
        a("s_memrealtime s[68:69]")
        a("s_memtime s[70:71]")
        a("s_load_dwordx2 s[72:73], s[0:1], 64")
        a("s_waitcnt lgkmcnt(0)")
        srd(a, 76, 72, 256)
        a("s_sub_u32 s70, s70, s66")
        a("s_cmp_lg_u32 s2, 0")
        a("s_cbranch_scc1 K5_END")
        a(f"s_mov_b32 s74, {DBGOFF}")
        a("v_mov_b32 v0, 0")
        a("buffer_load_dwordx4 v[4:7], v0, s[8:11], s74 offen")
        a("buffer_load_dwordx4 v[8:11], v0, s[8:11], s74 offen offset:16")
        a("s_waitcnt vmcnt(0)")
        a("v_sub_u32 v5, v5, v4")
        a("v_sub_u32 v8, v8, v4")
        a("v_sub_u32 v9, v9, v4")
        a("v_sub_u32 v12, s64, v4")
        a("v_sub_u32 v13, s68, v4")
        a("v_mov_b32 v14, s70")
        a("v_mov_b32 v15, 0")
        a("buffer_store_dwordx4 v[4:7], v0, s[76:79], 0 offen")
        a("buffer_store_dwordx4 v[8:11], v0, s[76:79], 0 offen offset:16")
        a("buffer_store_dwordx4 v[12:15], v0, s[76:79], 0 offen offset:32")
    a.label("K5_END")
    a("s_endpgm")
    return n, a, kd(n, 192, 192), (256, 256, RED + 49152)

def main(out):
    ks = [k234()]
    hdr = open("cdna_kernels/" + NAME + ".s.ref").read().split("\n")
    hdr = [l for l in hdr if l.startswith(";") and "@launch" not in l and "Override" not in l and "grid=ceil" not in l]
    txt = "\n".join(hdr) + "\n"
    for n, a, d, (g, b, lds) in ks:
        txt += f"; @launch {'kernel=' + n + ' ' if LIST else ''}grid=({g},1,1) block=({b},1,1) lds={lds}\n"
    txt += '.amdgcn_target "amdgcn-amd-amdhsa--gfx950"\n.text\n'
    bad = 0
    for ki, (n, a, d, _) in enumerate(ks):
        fl = ST_FLAGS[ki]
        if fl:
            a.lines = [l + " " + fl if ("buffer_store_dwordx" in l and "sc1" not in l) else l for l in a.lines]
        bad += check_hazards(a.lines, n)
        txt += a.text()
    txt += "CODE_END:\n"
    txt += '.section .rodata,"a"\n'
    for n, a, d, _ in ks:
        txt += ".p2align 6\n" + d
    open(out, "w").write(txt)
    print("hazards:", bad)

if __name__ == "__main__":
    if "stamp" in sys.argv: STAMP = True
    for arg in sys.argv[2:]:
        if "=" in arg:
            k_, v_ = arg.split("=", 1)
            globals()[k_] = eval(v_)
    main(sys.argv[1] if len(sys.argv) > 1 else "cdna_kernels/" + NAME + ".s")
```

```python
import sys, math, struct
from asmlib import *

NAME = "sequential_preLN__mha_block__geglu_ffn__prompt"

QF, KF, VF, OF, HF = 0x000000, 0x200000, 0x400000, 0x600000, 0x800000
ST  = 0xA00000
CSF = 0xA80000
WOF = 0xB00000
WGF = 0xC00000
WDF = 0x1000000
GF  = 0x1200000
WS_SIZE = 0x10000000
FL1 = 0xB02800
FL2 = 0xB00000
FL3 = 0xB00800
FL4 = 0xB01800

def f32(x):
    return "0x%08x" % struct.unpack("<I", struct.pack("<f", x))[0]

LOG2E = 1.4426950408889634
EPS = 1e-5

def srd(a, s, base, size):
    a(f"s_mov_b32 s{s}, s{base}")
    a(f"s_mov_b32 s{s+1}, s{base+1}")
    a(f"s_mov_b32 s{s+2}, {hex(size)}")
    a(f"s_mov_b32 s{s+3}, 0x00020000")

def kernel_head(a, name):
    a.raw(f".globl {name}")
    a.raw(".p2align 8")
    a.raw(f".type {name},@function")
    a.raw(f"{name}:")

def kd(name, nvgpr, accum, nsgpr=100):
    return f""".amdhsa_kernel {name}
  .amdhsa_next_free_vgpr {nvgpr}
  .amdhsa_next_free_sgpr {nsgpr}
  .amdhsa_accum_offset {accum}
  .amdhsa_group_segment_fixed_size 0
  .amdhsa_kernarg_size 80
  .amdhsa_user_sgpr_count 2
  .amdhsa_user_sgpr_kernarg_segment_ptr 1
  .amdhsa_system_sgpr_workgroup_id_x 1
.end_amdhsa_kernel
"""

STAMP = False
D_ZS = 4
W3_TOUCH = 0
G_EA = 12
G_PERM = 1
G_ET = 1
D_ROT = 1
G_TOUCH = 0
SMAP = ['t1', 'att', 't2', 't3', 'gu', 't4']
K2_Y2 = 40
K2_PER = 4
PIN = None
PINN = []
LIST = 1
FASTL2 = 1
D_Y = 6
DBGK1 = 0
LD_SC = ''
GSTAMP = 0
G_P2 = 8
GB3 = 12
GA3 = 0
POLL_SLEEP = 3
B_FILL = 4
K2_TCH = 1
G_SC = 'sc1'
CODE_TOUCH = 0
K1_ROT = 1
K1_TW = [-1, 0, 1]
K4_SL = 26
K2_S3 = 11
K2_WD = 0
K1_D = 1
K4_D = 2
K4_XB = 12
K4_TOUCH = 0
K2_S2 = 4
K1_TOUCH = 1
ST_FLAGS = ['', '', '', '', '']
K2_Y = 8
SIDE_SC = 'sc1'
K1_UP = 14
K4_UP = 22
DBGOFF = 0x2000000
def st(a, name):
    if name in SMAP: stamp(a, SMAP.index(name) + 1)
def stamp(a, i):
    if PIN:
        if i == 0: a("s_memrealtime s[64:65]")
        if i == PIN[0]:
            PINN.append(0); L = f"PIN{len(PINN)}"
            a.label(L)
            a("s_memrealtime s[66:67]")
            a("s_waitcnt lgkmcnt(0)")
            a("s_sub_u32 s66, s66, s64")
            a(f"s_cmp_lt_u32 s66, {PIN[1]}")
            a(f"s_cbranch_scc1 {L}")
    if not STAMP: return
    a(f"s_memrealtime s[{64 + 4 * i}:{65 + 4 * i}]")
    a(f"s_memtime s[{66 + 4 * i}:{67 + 4 * i}]")
    if i != 0:
        a("s_waitcnt lgkmcnt(0)")
def stamp_end(a, kidx, n, srdreg, wavereg=22):
    if PIN: stamp(a, n)
    if not STAMP: return
    a("s_waitcnt vmcnt(0)")
    stamp(a, n)
    a("s_lshl_b32 s60, s2, 3")
    a(f"s_add_u32 s60, s60, s{wavereg}")
    a("s_lshl_b32 s60, s60, 6")
    a(f"s_add_u32 s60, s60, {DBGOFF + kidx * 0x40000}")
    a("v_mov_b32 v0, 0")
    for j in range(2 * n + 2):
        a(f"v_mov_b32 v1, s{64 + 2 * j}")
        a(f"buffer_store_dword v1, v0, s[{srdreg}:{srdreg+3}], s60 offen offset:{4 * j}")

def MF32(d, A, B, C=None):
    C = d if C is None else C
    return f"v_mfma_f32_32x32x16_bf16 {d}, {A}, {B}, {C}"

def halfsum(a, v, t):
    a(f"v_mov_b32 v{t}, v{v}")
    a("s_nop 1")
    a(f"v_permlane32_swap_b32 v{v}, v{t}")
    a(f"v_add_f32 v{v}, v{v}, v{t}")


def k1():
    a = Asm(); n = NAME + "_kernel"
    kernel_head(a, n)
    SLOT = 28672; SCR = 5 * SLOT; SCR2 = SCR + 1536; SCR3 = SCR2 + 512
    D = K1_D
    a("s_cmp_ge_u32 s2, 256")
    a("s_cbranch_scc1 K2_END")
    stamp(a, 0)
    if DBGK1:
        a("s_memrealtime s[64:65]")
        a("s_memtime s[66:67]")
    a("s_load_dwordx4 s[4:7], s[0:1], 0")
    a("s_load_dwordx4 s[56:59], s[0:1], 64")
    a("v_lshrrev_b32 v1, 6, v0")
    a("v_and_b32 v0, 63, v0")
    a("v_readfirstlane_b32 s35, v1")
    a("s_and_b32 s23, s2, 3")
    a("s_lshl_b32 s23, s23, 2")
    a("s_bfe_u32 s29, s2, 0x20003")
    a("s_add_u32 s23, s23, s29")
    a("s_bfe_u32 s24, s2, 0x10002")
    a("s_lshl_b32 s24, s24, 3")
    a("s_lshr_b32 s29, s2, 5")
    a("s_add_u32 s24, s24, s29")
    a("s_and_b32 s22, s35, 3")
    a("s_lshl_b32 s27, s22, 12")
    a("s_lshl_b32 s40, s2, 1")
    a("s_and_b32 s29, s2, 4")
    a("s_add_u32 s40, s40, s29")
    if not K1_ROT: a("s_mov_b32 s40, 0")
    a("s_cmp_lt_u32 s35, 4")
    a("s_cbranch_scc1 K1_RDADDR")
    a("s_lshl_b32 s25, s23, 17")
    a("s_lshl_b32 s29, s22, 15")
    a("s_add_u32 s25, s25, s29")
    a("s_mul_i32 s26, s22, 49152")
    a("s_lshl_b32 s29, s24, 6")
    a("s_add_u32 s26, s26, s29")
    a("s_lshl_b32 s28, s22, 10")
    a("s_add_u32 s28, s28, 16384")
    a("s_mov_b32 s30, 0x3f803f80")
    a("v_lshrrev_b32 v5, 3, v0")
    a("v_lshlrev_b32 v2, 10, v5")
    a("v_and_b32 v6, 7, v0")
    a("v_lshrrev_b32 v7, 4, v0")
    a("v_xor_b32 v6, v6, v7")
    a("v_lshl_add_u32 v2, v6, 4, v2")
    a("v_xor_b32 v3, 64, v2")
    a("v_add_u32 v3, 8192, v3")
    a("v_lshrrev_b32 v5, 2, v0")
    a("v_mul_u32_u24 v4, 3072, v5")
    a("v_and_b32 v6, 3, v0")
    a("v_lshl_add_u32 v4, v6, 4, v4")
    a("s_waitcnt lgkmcnt(0)")
    srd(a, 8, 4, 2048 * 512 * 2)
    srd(a, 12, 6, 512 * 1536 * 2)
    def dma(c):
        slot = (c % 5) * SLOT
        a(f"s_add_u32 s41, s40, {c}")
        a("s_and_b32 s41, s41, 7")
        a("s_lshl_b32 s42, s41, 7")
        a("s_add_u32 s42, s42, s25")
        a(f"s_mul_i32 s41, s41, {64 * 3072}")
        a("s_add_u32 s41, s41, s26")
        for p in range(3):
            a(f"s_add_u32 m0, s28, {slot + p * 4096}")
            a(f"s_add_u32 s29, s41, {p * 1024}")
            a(f"buffer_load_dwordx4 v4, s[12:15], s29 offen lds")
        for i in range(4):
            a(f"s_add_u32 m0, s27, {slot + i * 1024}")
            a(f"s_add_u32 s29, s42, {(i // 2) * 16384}")
            a(f"buffer_load_dwordx4 v{2 + (i % 2)}, s[8:11], s29 offen lds")
    for c in range(D + 1):
        dma(c)
    a.label("K1_RDADDR")
    a("v_and_b32 v5, 31, v0")
    a("v_lshrrev_b32 v6, 5, v0")
    a("v_bfe_u32 v7, v0, 1, 3")
    a("v_xor_b32 v7, v7, v6")
    a("v_lshlrev_b32 v5, 7, v5")
    a("v_add_u32 v5, s27, v5")
    for s in range(4):
        a(f"v_xor_b32 v1, {2 * s}, v7")
        a(f"v_lshl_add_u32 v{8 + s}, v1, 4, v5")
        a(f"v_add_u32 v{12 + s}, {2 * SLOT}, v{8 + s}")
        a(f"v_add_u32 v{16 + s}, {4 * SLOT}, v{8 + s}")
    a("v_bfe_u32 v1, v0, 2, 2")
    a("v_lshl_add_u32 v1, v6, 3, v1")
    a("v_lshlrev_b32 v20, 6, v1")
    a("v_bfe_u32 v1, v0, 4, 1")
    a("v_lshl_add_u32 v20, v1, 5, v20")
    a("v_and_b32 v1, 3, v0")
    a("v_lshl_add_u32 v20, v1, 3, v20")
    a("s_cmp_lt_u32 s35, 4")
    a("s_cbranch_scc1 K1_MM")
    a("s_lshl_b32 s29, s22, 10")
    a("v_add_u32 v20, s29, v20")
    a(f"v_add_u32 v21, {2 * SLOT}, v20")
    a(f"v_add_u32 v22, {4 * SLOT}, v20")
    for i in range(28, 31):
        a(f"v_mov_b32 v{i}, 0")
    WB = 48
    for c in range(8):
        slot = c % 5; st = slot // 2; off = (slot % 2) * SLOT
        a(f"s_waitcnt vmcnt({7 * (min(c + D, 7) - c)})")
        a("s_barrier")
        for p in range(3):
            for u in range(2):
                a(f"ds_read_b64_tr_b16 {vr(WB + 4 * p + 2 * u, 2)}, v{20 + st} offset:{off + 16384 + p * 4096 + u * 256}")
        if c + D + 1 < 8:
            dma(c + D + 1)
        a("s_waitcnt lgkmcnt(0)")
        for i in range(4):
            for p in range(3):
                a(f"v_dot2c_f32_bf16 v{28 + p}, s30, v{WB + 4 * p + i}")
    a("v_and_b32 v5, 31, v0")
    a("v_lshlrev_b32 v6, 4, v5")
    a("s_lshl_b32 s29, s22, 2")
    a(f"s_add_u32 s29, s29, {SCR}")
    a("v_add_u32 v7, s29, v6")
    for p in range(3):
        halfsum(a, 28 + p, 1)
        a(f"ds_write_b32 v7, v{28 + p} offset:{p * 512}")
    a("s_waitcnt lgkmcnt(0)")
    a("s_barrier")
    a("s_cmp_eq_u32 s35, 7")
    a("s_cbranch_scc0 K1_JOIN")
    srd(a, 16, 56, 256)
    a("v_mov_b32 v12, 0")
    a("s_mov_b32 s33, 0")
    a.label("K1_PZ")
    a("buffer_load_dword v15, v12, s[16:19], 0 offen sc1")
    a("s_add_u32 s33, s33, 1")
    a("s_waitcnt vmcnt(0)")
    a("v_cmp_eq_u32 vcc, 1, v15")
    a("s_cmp_gt_u32 s33, 0x40000")
    a("s_cbranch_scc1 K1_JOIN")
    a("s_cbranch_vccz K1_PZ")
    a("s_branch K1_JOIN")
    a.label("K1_MM")
    if CODE_TOUCH:
        a("s_getpc_b64 s[44:45]")
        a.label("K1_PC")
        a("s_sub_u32 s44, s44, K1_PC-k1_qkv_kernel")
        a("s_subb_u32 s45, s45, 0")
        a("s_lshl_b32 s46, s22, 13")
        a("v_lshlrev_b32 v23, 7, v0")
        a("v_add_u32 v23, s46, v23")
        for i in range(CODE_TOUCH):
            a("v_min_u32 v24, CODE_END-k1_qkv_kernel-4, v23")
            a("global_load_dword v31, v24, s[44:45]")
            a("v_add_u32 v23, 32768, v23")
    a(f"v_add_u32 v21, {2 * SLOT}, v20")
    a(f"v_add_u32 v22, {4 * SLOT}, v20")
    a("s_mov_b32 s30, 0x3f803f80")
    for i in range(24, 28):
        a(f"v_mov_b32 v{i}, 0")
    a("v_and_b32 v5, 31, v0")
    a("v_lshlrev_b32 v6, 4, v5")
    a(f"v_add_u32 v6, {SCR}, v6")
    a("s_lshl_b32 s29, s22, 7")
    a(f"s_add_u32 s29, s29, {SCR2}")
    a("v_lshlrev_b32 v7, 2, v5")
    a("v_add_u32 v7, s29, v7")
    a("v_lshrrev_b32 v1, 5, v0")
    a("v_lshlrev_b32 v1, 4, v1")
    a("v_add_u32 v1, s29, v1")
    a("s_lshl_b32 s29, s23, 2")
    a("s_add_u32 s29, s29, s22")
    a("s_lshl_b32 s29, s29, 10")
    a("s_lshl_b32 s31, s24, 17")
    a("s_add_u32 s29, s29, s31")
    a("s_add_u32 s31, s29, 65536")
    a(f"s_add_u32 s32, s29, {KF}")
    a(f"s_add_u32 s33, s29, {KF + 65536}")
    a(f"s_add_u32 s34, s29, {VF}")
    a("v_lshlrev_b32 v2, 4, v0")
    a("v_bfe_u32 v3, v0, 4, 1")
    a("v_lshlrev_b32 v3, 16, v3")
    a("v_lshrrev_b32 v4, 5, v0")
    a("v_lshl_add_u32 v3, v4, 8, v3")
    a("v_and_b32 v4, 15, v0")
    a("v_lshl_add_u32 v3, v4, 4, v3")
    a("s_waitcnt lgkmcnt(0)")
    srd(a, 16, 58, WS_SIZE)
    a("s_lshl_b32 s36, s2, 2")
    a("s_add_u32 s36, s36, s22")
    a("s_cmp_lg_u32 s36, 3")
    a("s_cbranch_scc1 K1_NZ")
    a(f"s_mov_b32 s36, {FL2}")
    for i_ in range(14):
        a(f"buffer_store_dwordx4 v[24:27], v2, s[16:19], s36 offen offset:{(i_ % 4) * 1024} sc1")
        if i_ % 4 == 3: a("s_add_u32 s36, s36, 4096")
    srd(a, 8, 56, 256)
    a("v_mov_b32 v28, 1")
    a("s_waitcnt vmcnt(0)")
    a("buffer_store_dword v28, v24, s[8:11], 0 offen sc1")
    a.label("K1_NZ")
    TQ = {}
    if K1_TOUCH:
        srd(a, 8, 4, 2048 * 512 * 2)
        a("s_lshr_b32 s37, s2, 3")
        a("v_and_b32 v28, 3, v0")
        a("s_mov_b32 s39, 256")
        a("s_and_b32 s36, s2, 3")
        a("s_lshl_b32 s36, s36, 19")
        a("s_lshl_b32 s38, s37, 14")
        a("s_add_u32 s36, s36, s38")
        a("v_bfe_u32 v23, v0, 1, 4")
        a("v_lshlrev_b32 v23, 10, v23")
        a("v_and_b32 v29, 1, v0")
        a("v_lshl_add_u32 v23, v29, 7, v23")
        a("s_cmp_lg_u32 s22, 0")
        a("s_cbranch_scc1 K1_TD")
        srd(a, 8, 6, 512 * 1536 * 2)
        a(f"s_mov_b32 s39, {128 * 3072}")
        a("s_mul_i32 s36, s37, 12288")
        a("s_bfe_u32 s38, s2, 0x10002")
        a("s_lshl_b32 s38, s38, 9")
        a("s_add_u32 s36, s36, s38")
        a("v_lshrrev_b32 v23, 4, v0")
        a("v_mul_u32_u24 v23, 3072, v23")
        a("v_bfe_u32 v30, v0, 2, 2")
        a("v_min_u32 v30, 2, v30")
        a("v_lshl_add_u32 v23, v30, 10, v23")
        a("v_lshl_add_u32 v23, v28, 7, v23")
        a.label("K1_TD")
        def touch(n_):
            return ["s_cmp_ge_u32 s22, 2", f"s_cbranch_scc1 K1_TS{n_}",
                    "s_lshr_b32 s38, s40, 1", f"s_add_u32 s38, s38, {n_ + 1}", "s_and_b32 s38, s38, 3",
                    "s_mul_i32 s38, s38, s39", "s_add_u32 s38, s38, s36",
                    "buffer_load_dword v31, v23, s[8:11], s38 offen", f"K1_TS{n_}:"]
        for n_, when in enumerate(K1_TW):
            if when < 0:
                for x in touch(n_): a(x)
            else:
                TQ.setdefault(when, []).extend(touch(n_))
    ACC = 32
    def xf(ks): return 80 + (ks % 8) * 4
    def wf(ks, p): return 112 + (ks % 3) * 12 + p * 4
    def reads(ks):
        c, s = ks // 4, ks % 4
        slot = c % 5; st = slot // 2; off = (slot % 2) * SLOT
        out = [f"ds_read_b128 {vr(xf(ks), 4)}, v{8 + 4 * st + s} offset:{off}"]
        for p in range(3):
            for u in range(2):
                out.append(f"ds_read_b64_tr_b16 {vr(wf(ks, p) + 2 * u, 2)}, v{20 + st} offset:{off + 16384 + p * 4096 + s * 1024 + u * 256}")
        return out
    def mfmas(ks):
        X = vr(xf(ks), 4); out = []
        for p in range(3):
            D_ = vr(ACC + 16 * p, 16); W = vr(wf(ks, p), 4)
            A, B = (W, X) if p < 2 else (X, W)
            out.append(MF32(D_, A, B, "0" if ks == 0 else None))
        return out
    def dots(k0, k1_):
        for ks in range(k0, k1_):
            for i in range(4):
                a(f"v_dot2c_f32_bf16 v{24 + i % 2}, s30, v{xf(ks) + i}")
                a(f"v_dot2c_f32_bf16 v{26 + i % 2}, v{xf(ks) + i}, v{xf(ks) + i}")
    a("s_barrier")
    for r in reads(0) + reads(1): a(r)
    for x in TQ.get(0, []): a(x)
    for ks in range(32):
        c, s = ks // 4, ks % 4
        M = mfmas(ks); R = reads(ks + 2) if ks + 2 < 32 else []
        if s == 2:
            dots(max(ks - 3, 0), ks)
            a("s_waitcnt lgkmcnt(0)")
            dots(ks, ks + 1)
            if c == 7: dots(ks + 1, ks + 2)
            a(M[0])
            if c < 7:
                a("s_barrier")
                for x in TQ.get(c + 1, []): a(x)
        else:
            a(f"s_waitcnt lgkmcnt({7 if ks < 31 else 0})")
            a(M[0])
        E = []
        if ks >= 30:
            if ks == 30:
                E = ["v_add_f32 v24, v24, v25", "v_add_f32 v26, v26, v27", "v_mov_b32 v25, v24", "v_mov_b32 v27, v26", "s_nop 0",
                     "v_permlane32_swap_b32 v24, v25", "v_permlane32_swap_b32 v26, v27", "v_add_f32 v24, v24, v25", "v_add_f32 v26, v26, v27",
                     f"v_mul_f32 v24, {f32(1/512)}, v24", f"v_mul_f32 v26, {f32(1/512)}, v26", "v_fma_f32 v26, -v24, v24, v26",
                     "v_max_f32 v26, 0, v26", f"v_add_f32 v26, {f32(EPS)}, v26", "v_rsq_f32 v26, v26"]
                E = ["s_nop 1"] + E
            else:
                E = ["ds_write_b32 v7, v26", "v_mul_f32 v24, -0.5, v24", "v_cvt_pk_bf16_f32 v25, v24, v24", "v_lshlrev_b32 v25, 16, v25",
                     "v_sub_f32 v27, v24, v25", "v_cvt_pk_bf16_f32 v148, v25, v27", "v_mov_b32 v150, 0", "v_mov_b32 v151, 0",
                     "v_mov_b32 v149, v148", f"v_mul_f32 v28, {f32(0.25 * LOG2E)}, v26", "v_mov_b32 v27, v26", "v_mov_b32 v29, v28"]
            R = E
            n3 = (len(R) + 2) // 3
        else:
            n3 = 3
        for r in R[:n3]: a(r)
        a(M[1])
        for r in R[n3:2 * n3]: a(r)
        a(M[2])
        for r in R[2 * n3:]: a(r)
    a("s_waitcnt lgkmcnt(0)")
    a("s_barrier")
    for p in range(3):
        a(f"ds_read_b128 {vr(80 + 4 * p, 4)}, v6 offset:{p * 512}")
    for g in range(4):
        a(f"ds_read_b128 {vr(96 + 4 * g, 4)}, v1 offset:{g * 32}")
    CF = 152
    for p in range(3):
        a(f"v_mov_b32 v{CF + 4 * p + 2}, 0")
        a(f"v_mov_b32 v{CF + 4 * p + 3}, 0")
    for p in range(3):
        b = 80 + 4 * p; f = CF + 4 * p
        a(f"s_waitcnt lgkmcnt({6 - p})")
        a(f"v_add_f32 v{b}, v{b}, v{b+1}")
        a(f"v_add_f32 v{b+2}, v{b+2}, v{b+3}")
        a(f"v_add_f32 v{b}, v{b}, v{b+2}")
        a(f"v_cvt_pk_bf16_f32 v{f}, v{b}, v{b}")
        a(f"v_lshlrev_b32 v{b+1}, 16, v{f}")
        a(f"v_sub_f32 v{b+1}, v{b}, v{b+1}")
        a(f"v_cvt_pk_bf16_f32 v{f+1}, v{b+1}, v{b+1}")
        if p >= 1:
            q = p - 1
            a(MF32(vr(ACC + 16 * q, 16), vr(CF + 4 * q, 4), vr(148, 4)))
    a("s_waitcnt lgkmcnt(0)")
    a("s_nop 0")
    a(MF32(vr(ACC + 32, 16), vr(148, 4), vr(CF + 8, 4)))
    a("s_nop 1")
    for p in range(3):
        b = ACC + 16 * p; o = 112 + 8 * p
        for i in range(0, 16, 2):
            sc = "v[28:29]" if p == 0 else "v[26:27]" if p == 1 else vr(96 + i, 2)
            a(f"v_pk_mul_f32 {vr(b + i, 2)}, {sc}, {vr(b + i, 2)}")
        for i in range(8):
            a(f"v_cvt_pk_bf16_f32 v{o+i}, v{b+2*i}, v{b+2*i+1}")
        if p < 2:
            a(f"buffer_store_dwordx4 {vr(o, 4)}, v2, s[16:19], s{29 if p == 0 else 32} offen sc1")
            a(f"buffer_store_dwordx4 {vr(o + 4, 4)}, v2, s[16:19], s{31 if p == 0 else 33} offen sc1")
        else:
            a(f"buffer_store_dwordx4 {vr(o, 4)}, v3, s[16:19], s34 offen sc1")
            a(f"buffer_store_dwordx4 {vr(o + 4, 4)}, v3, s[16:19], s34 offen offset:512 sc1")
    a.label("K1_JOIN")
    return a

def k234():
    a = k1(); n = NAME + "_kernel"
    Q = 4; NEGM = 16; S = [32, 48]; O = 64; P = 80; KR = 88; VR = 100; W = 128
    SCR = 131072
    K1C = 2 * math.sqrt(2 / math.pi) * LOG2E
    vm = []
    def V(ins, tag=None):
        a(ins); vm.append(tag)
    def vmwait(tag, extra=""):
        idx = max(i for i, t in enumerate(vm) if t == tag)
        a(f"s_waitcnt vmcnt({len(vm) - 1 - idx}){extra}")
    a("s_load_dwordx4 s[40:43], s[0:1], 32")
    a("s_load_dwordx2 s[44:45], s[0:1], 16")
    a("s_load_dwordx2 s[46:47], s[0:1], 0")
    a("s_load_dwordx2 s[48:49], s[0:1], 48")
    a("s_load_dwordx2 s[62:63], s[0:1], 56")
    a("s_lshl_b32 s31, s24, 8")
    a("s_lshl_b32 s30, s23, 2")
    a("s_add_u32 s31, s31, s30")
    a(f"s_add_u32 s31, s31, {FL1}")
    a("s_mov_b32 s22, s35")
    a("s_and_b32 s23, s2, 7")
    a("s_lshl_b32 s23, s23, 2")
    a("s_bfe_u32 s29, s2, 0x20003")
    a("s_add_u32 s23, s23, s29")
    a("s_lshr_b32 s24, s2, 5")
    a("s_lshl_b32 s25, s23, 16")
    a("v_lshlrev_b32 v2, 4, v0")
    a("s_lshl_b32 s26, s22, 10")
    a("s_add_u32 s27, s25, s26")
    a("s_lshl_b32 s28, s24, 13")
    a("s_add_u32 s28, s28, s27")
    a(f"s_add_u32 s27, s27, {KF}")
    a(f"s_add_u32 s30, s27, {VF - KF}")
    srd(a, 8, 58, WS_SIZE)
    a("v_mov_b32 v12, 0")
    a("v_mov_b32 v13, 1")
    def signal(lbl, local=False):
        a("s_cmp_eq_u32 s22, 7")
        a(f"s_cbranch_scc0 {lbl}")
        a("s_mov_b64 exec, 1")
        a("buffer_store_dword v13, v12, s[8:11], s31 offen sc1")
        a("s_mov_b64 exec, -1")
        a.label(lbl)
    def poll(lbl, sreg, nfl, sh=2):
        a(f"v_and_b32 v1, {nfl - 1}, v0")
        a(f"v_lshlrev_b32 v1, {sh}, v1")
        a("s_mov_b32 s33, 0")
        a.label(lbl)
        if POLL_SLEEP: a(f"s_sleep {POLL_SLEEP}")
        a(f"buffer_load_dword v15, v1, s[8:11], s{sreg} offen sc1")
        a("s_add_u32 s33, s33, 1")
        a("s_waitcnt vmcnt(0)")
        a("v_cmp_eq_u32 vcc, 1, v15")
        a("s_cmp_gt_u32 s33, 0x40000")
        a(f"s_cbranch_scc1 {lbl}_X")
        a("s_cmp_eq_u64 vcc, -1")
        a(f"s_cbranch_scc0 {lbl}")
        a.label(f"{lbl}_X")
    st(a, 'k1')
    a("s_waitcnt vmcnt(0) lgkmcnt(0)")
    a("s_barrier")
    st(a, 'k1b')
    signal("K2_S1")
    def kvdma(c, isv):
        a(f"s_add_u32 m0, s26, {c * 8192 + isv * 65536}")
        a(f"s_add_u32 s29, s27, {c * 8192 + isv * (VF - KF)}")
        V("buffer_load_dwordx4 v2, s[8:11], s29 offen lds", f"c{c}")
    a("s_and_b32 s36, s2, 3")
    a("s_lshl_b32 s36, s36, 2")
    a("s_bfe_u32 s29, s2, 0x20003")
    a("s_add_u32 s36, s36, s29")
    a("s_bfe_u32 s37, s2, 0x10002")
    a("s_lshl_b32 s37, s37, 3")
    a("s_add_u32 s37, s37, s24")
    a("s_min_u32 s38, s22, 6")
    a("s_mul_i32 s39, s37, 7")
    a("s_add_u32 s39, s39, s38")
    a("s_lshl_b32 s54, s39, 5")
    srd(a, 12, 40, 512 * 1792 * 2)
    srd(a, 16, 42, 512 * 1792 * 2)
    a("s_lshl_b32 s55, s22, 12")
    a(f"s_add_u32 s55, s55, {SCR}")
    a("v_lshrrev_b32 v8, 1, v0")
    a("v_mul_u32_u24 v8, 3584, v8")
    a("v_and_b32 v1, 1, v0")
    a("v_lshl_add_u32 v8, v1, 4, v8")
    a("v_lshrrev_b32 v11, 5, v0")
    a("v_bfe_u32 v1, v0, 2, 2")
    a("v_lshl_add_u32 v10, v11, 2, v1")
    a("v_lshlrev_b32 v9, 5, v10")
    a("v_and_b32 v1, 3, v0")
    a("v_lshl_add_u32 v9, v1, 3, v9")
    a("v_bfe_u32 v1, v0, 4, 1")
    a("v_lshl_add_u32 v9, v1, 10, v9")
    a("v_add_u32 v9, s55, v9")
    a("v_and_b32 v12, 15, v0")
    a("v_lshl_add_u32 v12, v11, 4, v12")
    a("v_lshlrev_b32 v12, 4, v12")
    a("v_add_u32 v3, 65536, v12")
    a("s_mov_b32 s34, 0x0000ffff")
    a("s_mov_b32 s35, 0x0000ffff")
    a(f"s_mov_b32 s50, {f32(2.0**60)}")
    for i in range(24):
        a(f"v_mov_b32 v{VR + i}, 0x3f803f80")
    for i in range(16):
        a(f"v_mov_b32 v{O + i}, 0")
    for i in range(4, 8):
        a(f"v_mov_b32 v{P + i}, 0")
    def kread(t): return f"ds_read_b128 {vr(KR + 4 * (t % 3), 4)}, v2 offset:{t * 1024}"
    def vread(t):
        return ["s_mov_b64 exec, s[34:35]"] + \
               [f"ds_read_b128 {vr(VR + 8 * (t % 3) + 4 * j, 4)}, v3 offset:{t * 1024 + j * 512}" for j in range(2)] + \
               ["s_mov_b64 exec, -1"]
    a("s_cmp_eq_u32 s22, 7")
    a("s_cbranch_scc0 K2_B1")
    a("s_lshr_b32 s29, s23, 1")
    a("s_lshl_b32 s29, s29, 8")
    a(f"s_add_u32 s29, s29, {FL1}")
    poll("K2_P1", 29, 16)
    a.label("K2_B1")
    a("s_mov_b32 m0, s26")
    a("s_barrier")
    st(a, 't1')
    V("buffer_load_dwordx4 v2, s[8:11], s27 offen lds", "c0")
    V(f"buffer_load_dwordx4 {vr(Q, 4)}, v2, s[8:11], s28 offen", "c0")
    a("s_add_u32 m0, s26, 65536")
    a("s_nop 0")
    V("buffer_load_dwordx4 v2, s[8:11], s30 offen lds", "c0")
    kvdma(1, 0); kvdma(1, 1)
    vmwait("c0")
    a("s_barrier")
    st(a, 'a0')
    a(kread(0)); a(kread(1))
    for x in vread(0): a(x)
    a(kread(2))
    for x in vread(1): a(x)
    a("s_waitcnt lgkmcnt(6)")
    s0 = S[0]
    a(MF32(vr(s0, 16), vr(KR, 4), vr(Q, 4), "0"))
    a("s_nop 11")
    for i in range(5):
        a(f"v_max3_f32 v{NEGM + i}, v{s0+3*i}, v{s0+3*i+1}, v{s0+3*i+2}")
    a(f"v_max3_f32 v14, v{NEGM}, v{NEGM+1}, v{s0+15}")
    a(f"v_max3_f32 v15, v{NEGM+2}, v{NEGM+3}, v{NEGM+4}")
    a("v_max_f32 v14, v14, v15")
    def set_negm():
        a("v_mov_b32 v15, v14")
        a("s_nop 1")
        a("v_permlane32_swap_b32 v14, v15")
        a("v_max_f32 v14, v14, v15")
        for i in range(16):
            a(f"v_sub_f32 v{NEGM + i}, 0, v14")
        a("s_nop 1")
    set_negm()
    a(MF32(vr(S[0], 16), vr(KR, 4), vr(Q, 4), vr(NEGM, 16)))
    a("s_nop 8")
    T0 = 12
    cnt = [0]
    def b(ins):
        if K2_Y:
            if cnt[0] == 0: a("s_setprio 0")
            if cnt[0] == K2_Y: a("s_setprio 1")
            if cnt[0] == K2_Y2: a("s_setprio 2")
        cnt[0] += 1
        a(ins)
    for t in range(64):
        if t % K2_PER == 0: cnt[0] = 0
        Sc = S[t % 2]; Sn = S[(t + 1) % 2]
        E = lambda i: b(f"v_exp_f32 v{Sc+i}, v{Sc+i}")
        C = lambda i: b(f"v_cvt_pk_bf16_f32 v{P+i}, v{Sc+2*i}, v{Sc+2*i+1}")
        if t == 0: st(a, 'a1')
        if t == 16: st(a, 'a16')
        if t == 5: vmwait("c1"); a("s_barrier")
        if t == 13: vmwait("c5"); a("s_barrier")
        if t == 24: vmwait("c7"); a("s_barrier")
        nrd = lambda u: (1 if u + 3 < 64 else 0) + (2 if u + 2 < 64 else 0)
        b(f"s_waitcnt lgkmcnt({nrd(t - 1) if t > 0 else 3})")
        if t < 63:
            b(MF32(vr(Sn, 16), vr(KR + 4 * ((t + 1) % 3), 4), vr(Q, 4), vr(NEGM, 16)))
        for i in range(5): E(i)
        b(MF32(vr(O, 16), vr(VR + 8 * ((t - 1) % 3) + 4, 4), vr(P + 4, 4)))
        u, ph = divmod(t - T0 - 5, 3)
        if t >= T0 + 5 and ph == 0 and u < 16:
            vmwait(f"w{u}")
            for s in range(2):
                for e in range(2):
                    a(f"ds_read_b64_tr_b16 {vr(W + 8 * u + 4 * s + 2 * e, 2)}, v9 offset:{(u % 2) * 2048 + s * 512 + e * 256}")
        if t + 3 < 64: b(kread(t + 3))
        if t + 2 < 64:
            for x in vread(t + 2): b(x)
        for i in range(5, 8): E(i)
        for i in range(4): C(i)
        E(8); E(9)
        b(MF32(vr(O, 16), vr(VR + 8 * (t % 3), 4), vr(P, 4)))
        if t < 12: kvdma(2 + t // 2, t % 2)
        u, ph = divmod(t - T0, 3)
        if t >= T0 and ph == 0 and u < 16:
            a(f"s_add_u32 m0, s55, {(u % 2) * 2048}")
            a(f"s_add_u32 s29, s54, {u * 32 * 3584}")
            V("buffer_load_dwordx4 v8, s[12:15], s29 offen lds", f"w{u}")
            a(f"s_add_u32 m0, s55, {(u % 2) * 2048 + 1024}")
            a("s_nop 0")
            V("buffer_load_dwordx4 v8, s[16:19], s29 offen lds", f"w{u}")
        if t == 40 and K2_TCH:
            srd(a, 96, 48, 1792 * 512 * 2)
            a("s_lshl_b32 s29, s2, 3")
            a("s_add_u32 s29, s29, s22")
            a("s_mul_i32 s29, s29, 896")
            a("v_min_u32 v12, 6, v0")
            a("v_lshlrev_b32 v12, 7, v12")
            V("buffer_load_dword v124, v12, s[96:99], s29 offen", "tch")
        if t == 59 and K2_TCH:
            a("s_lshr_b32 s29, s2, 3")
            a("s_lshl_b32 s29, s29, 14")
            a("s_lshl_b32 s31, s22, 11")
            a("s_add_u32 s29, s29, s31")
            srd(a, 96, 44, 512 * 512 * 2)
            a("v_and_b32 v12, 15, v0")
            a("v_lshlrev_b32 v12, 7, v12")
            V("buffer_load_dword v124, v12, s[96:99], s29 offen", "tch")

        for i in range(10, 16): E(i)
        for i in range(4, 8): C(i)
    a("s_setprio 0")
    a("s_lshl_b32 s29, s24, 3")
    a("s_add_u32 s29, s29, s22")
    a(MF32(vr(O, 16), vr(VR + 8 * (63 % 3) + 4, 4), vr(P + 4, 4)))
    a("s_lshl_b32 s31, s24, 8")
    a("s_lshl_b32 s30, s23, 2")
    a("s_add_u32 s31, s31, s30")
    a(f"s_add_u32 s31, s31, {FL2}")
    a("s_lshl_b32 s29, s29, 15")
    a("s_lshl_b32 s30, s23, 10")
    a("s_add_u32 s29, s29, s30")
    a(f"s_add_u32 s29, s29, {OF}")
    a("v_mov_b32 v12, 0")
    a("v_mov_b32 v13, 1")
    a("s_waitcnt lgkmcnt(0)")
    a("s_nop 0")
    a(f"v_cmp_gt_f32 vcc, s50, v{O + 8}")
    a("s_nop 1")
    a("s_cmp_eq_u64 vcc, -1")
    a("s_cbranch_scc0 K2_FALLBACK")
    a.label("K2_FIN")
    a(f"v_rcp_f32 v14, v{O + 8}")
    a("s_nop 0")
    for i in range(8):
        a(f"v_mul_f32 v{O+i}, v14, v{O+i}")
    for i in range(4):
        a(f"v_cvt_pk_bf16_f32 v{P+i}, v{O+2*i}, v{O+2*i+1}")
    a(f"buffer_store_dwordx4 {vr(P, 4)}, v2, s[8:11], s29 offen sc1")
    st(a, 'att')
    srd(a, 12, 44, 512 * 512 * 2)
    srd(a, 16, 46, 2048 * 512 * 2)
    a("s_and_b32 s25, s22, 1")
    a("s_bfe_u32 s26, s22, 0x10001")
    a("s_lshr_b32 s27, s22, 2")
    a("s_lshl_b32 s28, s24, 1")
    a("s_add_u32 s28, s28, s25")
    a("s_lshl_b32 s30, s23, 1")
    a("s_add_u32 s30, s30, s26")
    a("v_lshrrev_b32 v8, 2, v0")
    a("v_lshlrev_b32 v8, 10, v8")
    a("v_and_b32 v1, 3, v0")
    a("v_lshl_add_u32 v8, v1, 4, v8")
    a("v_lshlrev_b32 v9, 6, v10")
    a("v_lshl_add_u32 v9, v1, 3, v9")
    a("v_bfe_u32 v1, v0, 4, 1")
    a("v_lshl_add_u32 v9, v1, 5, v9")
    a("s_lshl_b32 s32, s25, 15")
    a("s_lshl_b32 s33, s27, 14")
    a("s_add_u32 s32, s32, s33")
    a("v_add_u32 v9, s32, v9")
    a("v_and_b32 v3, 31, v0")
    a("v_lshlrev_b32 v3, 10, v3")
    a("v_lshl_add_u32 v3, v11, 4, v3")
    a("s_lshl_b32 s51, s30, 15")
    a("s_lshl_b32 s33, s28, 6")
    a("s_add_u32 s51, s51, s33")
    RES = 112
    a("s_waitcnt vmcnt(0)")
    a("s_barrier")
    def dstore(ins):
        return [ins + " sc1"]
    signal("K2_S2")
    st(a, 'bA')
    a("s_lshl_b32 s33, s26, 13")
    a("s_add_u32 s52, s32, s33")
    a("s_lshl_b32 s53, s27, 1")
    a("s_add_u32 s53, s53, s26")
    a("s_lshl_b32 s53, s53, 17")
    a("s_lshl_b32 s33, s28, 6")
    a("s_add_u32 s53, s53, s33")
    for i in range(8):
        a(f"s_add_u32 m0, s52, {i * 1024}")
        a(f"s_add_u32 s29, s53, {i * 16384}")
        a("buffer_load_dwordx4 v8, s[12:15], s29 offen lds")
    for j in range(2):
        a(f"buffer_load_dwordx4 {vr(RES + 4 * j, 4)}, v3, s[16:19], s51 offen offset:{j * 32}")
    a("s_cmp_eq_u32 s22, 7")
    a("s_cbranch_scc1 K2_POLL2")
    a("s_mov_b32 s29, 0x3f803f80")
    for i in range(4): a(f"v_mov_b32 v{124 + i}, 0")
    for i in range(128):
        a(f"v_dot2c_f32_bf16 v{124 + i % 4}, s29, v{W + i}")
    a("s_nop 2")
    a("v_add_f32 v124, v124, v125")
    a("v_add_f32 v126, v126, v127")
    a("v_add_f32 v126, v124, v126")
    a("v_cvt_pk_bf16_f32 v124, v126, v126")
    a("v_lshlrev_b32 v125, 16, v124")
    a("v_sub_f32 v125, v126, v125")
    a("v_cvt_pk_bf16_f32 v125, v125, v125")
    a("v_mov_b32 v126, 0")
    a("v_mov_b32 v127, 0")
    a("s_branch K2_B2")
    a.label("K2_POLL2")
    a("s_lshr_b32 s29, s23, 2")
    a("s_lshl_b32 s29, s29, 8")
    a(f"s_add_u32 s29, s29, {FL2}")
    poll("K2_P2", 29, 32)
    a.label("K2_B2")
    a("s_waitcnt vmcnt(0)")
    a("s_barrier")
    st(a, 't2')
    a("s_lshl_b32 s29, s25, 15")
    a("s_lshl_b32 s33, s26, 14")
    a("s_add_u32 s29, s29, s33")
    a("s_lshl_b32 s33, s27, 12")
    a("s_add_u32 s29, s29, s33")
    a("s_lshl_b32 s33, s23, 16")
    a("s_add_u32 s33, s33, s29")
    a(f"s_add_u32 s33, s33, {OF}")
    for stg in range(2):
        a(f"s_add_u32 m0, s29, {65536 + stg * 8192}")
        if stg: a("s_add_u32 s33, s33, 8192")
        else: a("s_nop 0")
        for i in range(4):
            a(f"buffer_load_dwordx4 v2, s[8:11], s33 offen offset:{i * 1024} {LD_SC} lds")
    A3 = 16; WO = 32; OB = 96
    for s in range(16):
        for e in range(2):
            a(f"ds_read_b64_tr_b16 {vr(WO + 4 * s + 2 * e, 2)}, v9 offset:{s * 1024 + e * 512}")
    a("s_lshl_b32 s29, s26, 15")
    a("s_lshl_b32 s33, s27, 14")
    a("s_add_u32 s29, s29, s33")
    a("s_add_u32 s29, s29, 65536")
    a("v_add_u32 v8, s29, v2")
    a("s_and_b32 s29, s22, 3")
    a("s_lshl_b32 s29, s29, 12")
    a(f"s_add_u32 s29, s29, {SCR}")
    a("v_add_u32 v9, s29, v2")
    for j in range(2):
        a(f"v_permlane32_swap_b32 v{RES + 4 * j}, v{RES + 4 * j + 2}")
        a(f"v_permlane32_swap_b32 v{RES + 4 * j + 1}, v{RES + 4 * j + 3}")
    for stg in range(2):
        a(f"s_waitcnt vmcnt({4 - 4 * stg}) lgkmcnt(0)")
        a("s_barrier")
        rd = lambda s: f"ds_read_b128 {vr(OB + 4 * (s % 4), 4)}, v8 offset:{s * 1024}"
        for s in range(8 * stg, 8 * stg + 3): a(rd(s))
        for s in range(8 * stg, 8 * stg + 8):
            left = 8 * stg + 7 - s
            if left >= 3: a(rd(s + 3))
            a(f"s_waitcnt lgkmcnt({min(left, 3)})")
            a(MF32(vr(A3, 16), vr(WO + 4 * s, 4), vr(OB + 4 * (s % 4), 4), "0" if s == 0 else None))
    st(a, 'om')
    a("s_cmp_lt_u32 s22, 4")
    a("s_cbranch_scc1 K2_O_LO")
    a("s_nop 9")
    for q in range(4):
        a(f"ds_write_b128 v9, {vr(A3 + 4 * q, 4)} offset:{q * 1024}")
    a("s_waitcnt lgkmcnt(0)")
    a("s_barrier")
    a("s_lshr_b32 s31, s23, 1")
    a("s_lshl_b32 s31, s31, 8")
    a("s_and_b32 s33, s23, 1")
    a("s_lshl_b32 s33, s33, 3")
    a("s_add_u32 s33, s33, s24")
    a("s_lshl_b32 s33, s33, 2")
    a("s_add_u32 s31, s31, s33")
    a(f"s_add_u32 s31, s31, {FL3}")
    a("s_lshl_b32 s29, s36, 8")
    a(f"s_add_u32 s29, s29, {FL3}")
    a("s_barrier")
    signal("K2_S3", True)
    a("s_cmp_eq_u32 s22, 7")
    a("s_cbranch_scc0 K2_B3")
    poll("K2_P3", 29, 16)
    a("s_branch K2_B3")
    a.label("K2_O_LO")
    a("s_mov_b32 s29, 0xffff0000")
    for i in range(8):
        a(f"v_lshlrev_b32 v{48 + 2 * i}, 16, v{RES + i}")
        a(f"v_and_b32 v{49 + 2 * i}, s29, v{RES + i}")
    for i in range(16):
        a(f"v_add_f32 v{A3 + i}, v{A3 + i}, v{48 + i}")
    a("s_lshl_b32 s52, s30, 15")
    a("s_lshl_b32 s33, s28, 11")
    a("s_add_u32 s52, s52, s33")
    a(f"s_add_u32 s52, s52, {HF}")
    a("s_lshl_b32 s53, s30, 12")
    a("s_lshl_b32 s33, s28, 8")
    a("s_add_u32 s53, s53, s33")
    a(f"s_add_u32 s53, s53, {ST}")
    a("v_lshlrev_b32 v3, 3, v0")
    a("s_mov_b32 s29, 0x3f803f80")
    a("v_mov_b32 v14, 0")
    a("v_mov_b32 v15, 0")
    a("s_barrier")
    for q in range(4):
        a(f"ds_read_b128 {vr(32 + 4 * q, 4)}, v9 offset:{q * 1024}")
    o = 112
    for q in range(4):
        a(f"s_waitcnt lgkmcnt({3 - q})")
        for i in range(4 * q, 4 * q + 4):
            a(f"v_add_f32 v{A3 + i}, v{A3 + i}, v{32 + i}")
        for i in range(2 * q, 2 * q + 2):
            a(f"v_cvt_pk_bf16_f32 v{o + i}, v{A3 + 2 * i}, v{A3 + 2 * i + 1}")
        if q % 2:
            j = q // 2
            for x in dstore(f"buffer_store_dwordx4 {vr(o + 4 * j, 4)}, v2, s[8:11], s52 offen offset:{j * 1024}"): a(x)
    for i in range(8):
        a(f"v_dot2c_f32_bf16 v14, s29, v{o + i}")
        a(f"v_dot2c_f32_bf16 v15, v{o + i}, v{o + i}")
    a("s_nop 2")
    a("v_mov_b32 v16, v14")
    a("v_mov_b32 v17, v15")
    a("s_nop 0")
    a("v_permlane32_swap_b32 v14, v16")
    a("v_permlane32_swap_b32 v15, v17")
    a("v_add_f32 v14, v14, v16")
    a("v_add_f32 v15, v15, v17")
    a("s_mov_b64 exec, 0xffffffff")
    for x in dstore("buffer_store_dwordx2 v[14:15], v3, s[8:11], s53 offen"): a(x)
    a("s_mov_b64 exec, -1")
    a("s_waitcnt vmcnt(0)")
    a("s_barrier")
    a.label("K2_B3")
    st(a, 'hw')
    a("v_add_u32 v3, 65536, v2")
    a("v_and_b32 v8, 31, v0")
    a("v_lshlrev_b32 v8, 4, v8")
    a(f"v_add_u32 v8, {SCR}, v8")
    a(f"s_mul_i32 s32, s36, {4 * 112 * 1024}")
    a("s_lshl_b32 s33, s39, 10")
    a("s_add_u32 s32, s32, s33")
    a(f"s_add_u32 s32, s32, {GF}")
    a("s_and_b32 s25, s22, 3")
    a(f"s_and_b32 s57, s37, {G_PERM}")
    a("s_lshl_b32 s57, s57, 1")
    a("s_xor_b32 s33, s25, s57")
    a("s_lshl_b32 s30, s36, 2")
    a("s_add_u32 s30, s30, s33")
    a(f"s_mul_i32 s33, s57, {112 * 1024}")
    a(f"s_sub_u32 s56, {2 * 112 * 1024}, s33")
    a("s_add_u32 s56, s56, s32")
    a("s_add_u32 s32, s32, s33")
    CNT = SCR + 2048; SPARE = SCR + 4096; WD = 128; KS = 14
    a(f"v_mov_b32 v4, {CNT}")
    a("v_mov_b32 v5, 1")
    def hread(dst, tt, s):
        return f"ds_read_b128 {vr(dst, 4)}, v{2 + tt // 2} offset:{(tt % 2) * 32768 + s * 1024}"
    def epi(g, z, st, tt):
        u = g + 8; o = []
        ve, a0, a1 = f"v{st+1}", f"v{st+2}", f"v{st+3}"
        o += [f"v_mul_f32 v{z+i}, v{g+i}, v{g+i}" for i in range(8)]
        o += [f"v_fma_f32 v{z+i}, v{z+i}, {a1}, {a0}" for i in range(8)]
        o += [f"v_mul_f32 v{z+i}, v{z+i}, v{g+i}" for i in range(8)]
        for i in range(8):
            o += [f"v_exp_f32 v{z+i}, v{z+i}", f"v_mul_f32 v{g+i}, v{g+i}, v{u+i}"]
        o += [f"v_fma_f32 v{z+i}, v{z+i}, {ve}, {ve}" for i in range(8)]
        o += [f"v_rcp_f32 v{z+i}, v{z+i}" for i in range(8)]
        o += [f"s_add_u32 s29, s{32 if tt < 2 else 56}, {(tt % 2) * 112 * 1024}"]
        o += [f"v_mul_f32 v{g+i}, v{g+i}, v{z+i}" for i in range(8)]
        o += [f"v_cvt_pk_bf16_f32 v{u+i}, v{g+2*i}, v{g+2*i+1}" for i in range(4)]
        o += dstore(f"buffer_store_dwordx4 {vr(u, 4)}, v2, s[8:11], s29 offen")
        return o
    ACC = 16; HB = 32; ZB = 80; SB = 88; TB = 92; NR = 12; STR = [96, 100, 104, 108]
    a(f"v_mov_b32 v{TB + 2}, 0")
    a(f"v_mov_b32 v{TB + 3}, 0")
    def tile(tt, hooks, pre=None, last=False, late=False):
        a("s_setprio 1")
        rd = lambda ks: hread(HB + 4 * (ks % NR), tt, ks)
        if pre is None:
            for ks in range(NR - 1): a(rd(ks))
        for ks in range(32):
            if ks + NR - 1 < 32: a(rd(ks + NR - 1))
            if ks % 4 == 0:
                a(f"s_waitcnt lgkmcnt({min(ks + NR - 1, 31) - (ks + 3)})")
            a(MF32(vr(ACC, 16), vr(W + 4 * ks, 4), vr(HB + 4 * (ks % NR), 4), "0" if ks == 0 else None))
            if ks == G_P2: a("s_setprio 2")
            if ks == G_EA and tt == 2:
                a("s_waitcnt vmcnt(0)")
                a("s_mov_b64 exec, 1")
                a("ds_add_u32 v4, v5 offset:16")
                a("s_mov_b64 exec, -1")
            if ks == 28 and tt < 3:
                a("s_mov_b64 exec, 1")
                a(f"ds_add_u32 v4, v5 offset:{tt * 4}")
                a("s_mov_b64 exec, -1")
            if not late:
                if ks == 22: a(f"ds_read_b128 {vr(SB, 4)}, v8 offset:{tt * 512}")
                if ks == 29:
                    a(f"v_mov_b32 v{TB}, v{SB}")
                    a(f"v_mov_b32 v{TB + 1}, v{SB}")
            for x in hooks.get(ks, []): a(x)
        if late:
            a(f"ds_read_b128 {vr(SB, 4)}, v8 offset:{tt * 512}")
            a("s_waitcnt lgkmcnt(0)")
            a(f"v_mov_b32 v{TB}, v{SB}")
            a(f"v_mov_b32 v{TB + 1}, v{SB}")
            a("s_nop 1")
        a(MF32(vr(ACC, 16), vr(124, 4), vr(TB, 4)))
        a("s_setprio 0")
        for x in hooks.get("post", []): a(x)
        if not last:
            for ks in range(NR - 1): a(hread(HB + 4 * ks, tt + 1, ks))
        else:
            a("s_nop 10")
        for x in epi(ACC, ZB, SB, tt): a(x)
    a("s_cmp_lt_u32 s22, 4")
    a("s_cbranch_scc1 K2_GA")
    a("s_lshl_b32 s28, s25, 13")
    a("s_lshl_b32 s26, s36, 17")
    a("s_add_u32 s26, s26, s28")
    a(f"s_add_u32 s26, s26, {HF}")
    a("s_lshl_b32 s33, s57, 15")
    a("s_sub_u32 s27, 65536, s33")
    a("s_add_u32 s27, s27, s26")
    a("s_add_u32 s26, s26, s33")
    a("s_barrier")
    st(a, 't3')
    def hdma(tt):
        for g in range(2):
            a(f"s_add_u32 m0, s28, {tt * 32768 + g * 4096}")
            a(f"s_add_u32 s29, s{26 if tt < 2 else 27}, {(tt % 2) * 32768 + g * 4096}")
            for i in range(4):
                a(f"buffer_load_dwordx4 v2, s[8:11], s29 offen offset:{i * 1024} {LD_SC} lds")
    hdma(0); hdma(1)
    a("v_mov_b32 v6, 0")
    a("v_mov_b32 v7, 0")
    a("ds_write_b64 v4, v[6:7]")
    a("ds_write_b64 v4, v[6:7] offset:8")
    a("ds_write_b64 v4, v[6:7] offset:16")
    a("s_waitcnt vmcnt(8) lgkmcnt(0)")
    a("s_barrier")
    st(a, 'g1')
    hdma(2); hdma(3)
    a("s_waitcnt vmcnt(16)")
    a("s_barrier")
    st(a, 'g2')
    a("s_cmp_eq_u32 s22, 7")
    a("s_cbranch_scc1 K2_W7")
    tile(0, {GB3: ["s_waitcnt vmcnt(0)", "s_barrier"]})
    tile(1, {}, pre=1); tile(2, {}, pre=1)
    tile(3, {}, pre=1, last=True)
    a("s_branch K2_DOWN")
    a.label("K2_W7")
    a("s_waitcnt vmcnt(0)")
    a("s_barrier")
    if K4_TOUCH:
        srd(a, 12, 48, 1792 * 512 * 2)
        a("s_lshr_b32 s29, s2, 3")
        a("s_mul_i32 s29, s29, 57344")
        a("v_lshlrev_b32 v13, 7, v0")
        for i in range(7):
            a("buffer_load_dword v14, v13, s[12:15], s29 offen")
            a("s_add_u32 s29, s29, 8192")
    srd(a, 12, 48, 1792 * 512 * 2)
    a("v_lshrrev_b32 v8, 2, v0")
    a("v_lshlrev_b32 v8, 10, v8")
    a("v_and_b32 v1, 3, v0")
    a("v_lshl_add_u32 v8, v1, 4, v8")
    a("v_lshlrev_b32 v9, 6, v10")
    a("v_lshl_add_u32 v9, v1, 3, v9")
    a("v_bfe_u32 v1, v0, 4, 1")
    a("v_lshl_add_u32 v9, v1, 5, v9")
    a(f"v_add_u32 v9, {SPARE}, v9")
    a("s_lshl_b32 s26, s24, 7")
    ko = lambda s_: s_ + (7 if s_ >= 7 else 0)
    a("s_and_b32 s52, s23, 1")
    a(f"s_mul_i32 s27, s52, {7 * 16384}")
    a("s_add_u32 s27, s27, s26")
    for j in range(28):
        a(f"s_mov_b32 m0, {SPARE + j * 1024}")
        a(f"s_add_u32 s29, s27, {(84 + ko(j // 2)) * 16384 + (1 ^ (j % 2)) * 64}")
        a("buffer_load_dwordx4 v8, s[12:15], s29 offen lds")
    a("s_waitcnt vmcnt(0)")
    for j in range(28):
        for e in range(2):
            a(f"ds_read_b64_tr_b16 {vr(WD + 4 * j + 2 * e, 2)}, v9 offset:{j * 1024 + e * 512}")
    a("s_waitcnt lgkmcnt(0)")
    def cwait(tag, off, val=7, reg=4):
        a("s_mov_b32 s33, 0")
        a.label(f"K2_WC{tag}")
        a("s_sleep 2")
        a(f"ds_read_b32 v6, v{reg} offset:{off}")
        a("s_add_u32 s33, s33, 1")
        a("s_waitcnt lgkmcnt(0)")
        a(f"v_cmp_eq_u32 vcc, {val}, v6")
        a("s_cmp_gt_u32 s33, 0x100000")
        a(f"s_cbranch_scc1 K2_WX{tag}")
        a(f"s_cbranch_vccz K2_WC{tag}")
        a.label(f"K2_WX{tag}")
    a("s_xor_b32 s53, s52, 1")
    a(f"s_mul_i32 s53, s53, {7 * 16384}")
    a("s_add_u32 s53, s53, s26")
    def sdma(w, j, lds):
        a(f"s_mov_b32 m0, {lds}")
        a(f"s_add_u32 s29, s{53 if w < 4 else 27}, {(28 * (w % 4) + ko(j // 2)) * 16384 + ((w % 2) ^ (j % 2)) * 64}")
        a("buffer_load_dwordx4 v8, s[12:15], s29 offen lds")
    for w in range(4):
        for j in range(7): sdma(w, j, SPARE + w * 7168 + j * 1024)
    for r in range(3):
        if r == 2:
            a("s_lshl_b32 s31, s36, 8")
            a("s_lshl_b32 s33, s37, 2")
            a("s_add_u32 s31, s31, s33")
            a(f"s_add_u32 s31, s31, {FL4 + 128}")
            a("v_mov_b32 v12, 0")
            a("v_mov_b32 v13, 1")
            cwait("A", 16)
            signal("K2_S4A")
        cwait(r, r * 4)
        for w in range(4): sdma(w, 7 + r, r * 32768 + 28672 + w * 1024)
        for j in range(28): sdma(4 + r, j, r * 32768 + j * 1024)
        if r == 2:
            a("s_waitcnt vmcnt(28)")
            a("ds_write_b32 v4, v5 offset:20")
    a("s_branch K2_DOWN")
    a.label("K2_GA")
    a("s_lshl_b32 s26, s30, 12")
    a(f"s_add_u32 s26, s26, {ST}")
    a("s_lshl_b32 s28, s25, 9")
    a("v_add_u32 v9, s28, v8")
    a("v_and_b32 v1, 31, v0")
    a("v_lshlrev_b32 v1, 3, v1")
    a("v_lshl_add_u32 v1, v11, 11, v1")
    a("s_barrier")
    st(a, 't3')
    for q in range(8):
        a(f"buffer_load_dwordx2 {vr(STR[q // 2] + 2 * (q % 2), 2)}, v1, s[8:11], s26 offen offset:{q * 256} sc1")
    r0 = STR[0]
    SQ = ["s_waitcnt vmcnt(0)"]
    for q in range(1, 4):
        SQ += [f"v_add_f32 v{r0 + i}, v{r0 + i}, v{STR[q] + i}" for i in range(4)]
    SQ += [f"v_add_f32 v12, v{r0}, v{r0 + 2}", f"v_add_f32 v13, v{r0 + 1}, v{r0 + 3}",
           "v_mov_b32 v14, v12", "v_mov_b32 v15, v13", "s_nop 0",
           "v_permlane32_swap_b32 v12, v14", "v_permlane32_swap_b32 v13, v15",
           "v_add_f32 v12, v12, v14", "v_add_f32 v13, v13, v15",
           f"v_mul_f32 v12, {f32(-1/512)}, v12", f"v_mul_f32 v13, {f32(1/512)}, v13",
           "v_fma_f32 v13, -v12, v12, v13", "v_max_f32 v13, 0, v13", f"v_add_f32 v{r0 + 1}, {f32(EPS)}, v13",
           f"v_rsq_f32 v14, v{r0 + 1}", "v_cvt_pk_bf16_f32 v15, v12, v12", "v_lshlrev_b32 v15, 16, v15",
           "v_sub_f32 v12, v12, v15", f"v_cvt_pk_bf16_f32 v{r0}, v15, v12",
           f"v_mul_f32 v{r0 + 2}, {f32(-K1C)}, v14", "v_mul_f32 v14, v14, v14", f"v_mul_f32 v14, v14, v{r0 + 2}",
           f"v_mul_f32 v{r0 + 3}, {f32(0.044715)}, v14"]
    hooks = {}
    for k_ in range(10):
        hooks[8 + k_] = SQ[4 * k_: 4 * k_ + 4]
    hooks[29] = [f"ds_write_b128 v9, {vr(r0, 4)}"]
    hooks[31] = ["s_waitcnt lgkmcnt(0)", "s_barrier"]
    a("s_barrier")
    st(a, 'g1')
    tile(0, hooks, late=True)
    st(a, 'g2')
    if W3_TOUCH:
        a("s_cmp_eq_u32 s22, 3")
        a("s_cbranch_scc0 K2_NT3")
        srd(a, 12, 48, 1792 * 512 * 2)
        a("s_lshr_b32 s29, s2, 3")
        a("s_mul_i32 s29, s29, 57344")
        a("v_lshlrev_b32 v13, 7, v0")
        for i in range(7):
            a("buffer_load_dword v14, v13, s[12:15], s29 offen")
            a("s_add_u32 s29, s29, 8192")
        a.label("K2_NT3")
    tile(1, {GA3: ["s_barrier"]}, pre=1); tile(2, {}, pre=1)
    tile(3, {}, pre=1, last=True)
    a.label("K2_DOWN")
    st(a, 'gu')
    AC5 = 16; GS = [80, 88, 96, 104, 240, 248, 120]; NG = len(GS)
    srd(a, 12, 48, 1792 * 512 * 2)
    srd(a, 16, 62, 2048 * 512 * 2)
    a("s_lshl_b32 s31, s36, 8")
    a("s_lshl_b32 s33, s37, 2")
    a("s_add_u32 s31, s31, s33")
    a(f"s_add_u32 s31, s31, {FL4}")
    a("s_and_b32 s26, s22, 1")
    a("s_bfe_u32 s27, s22, 0x10001")
    a("s_lshl_b32 s28, s24, 1")
    a("s_add_u32 s28, s28, s26")
    a("s_lshl_b32 s30, s23, 1")
    a("s_add_u32 s30, s30, s27")
    a("s_lshr_b32 s33, s22, 2")
    a("s_xor_b32 s33, s33, s23")
    a("s_and_b32 s33, s33, 1")
    a("s_xor_b32 s57, s33, 1")
    a("s_lshl_b32 s33, s25, 2")
    a("s_add_u32 s33, s33, s57")
    a("s_mul_i32 s29, s33, 7168")
    a(f"s_mul_i32 s52, s30, {112 * 1024}")
    a("s_add_u32 s52, s52, s29")
    a(f"s_add_u32 s52, s52, {GF}")
    a("s_xor_b32 s53, s30, 1")
    a(f"s_mul_i32 s53, s53, {112 * 1024}")
    a("s_add_u32 s53, s53, s29")
    a(f"s_add_u32 s53, s53, {GF}")
    a(f"s_mul_i32 s29, s33, {7 * 16384}")
    a("s_lshl_b32 s54, s28, 6")
    a("s_xor_b32 s55, s54, 64")
    a("s_add_u32 s54, s54, s29")
    a("s_add_u32 s55, s55, s29")
    a("s_lshl_b32 s32, s22, 12")
    a("v_lshrrev_b32 v8, 2, v0")
    a("v_lshlrev_b32 v8, 10, v8")
    a("v_and_b32 v1, 3, v0")
    a("v_lshl_add_u32 v8, v1, 4, v8")
    a("v_lshlrev_b32 v9, 6, v10")
    a("v_lshl_add_u32 v9, v1, 3, v9")
    a("v_bfe_u32 v1, v0, 4, 1")
    a("v_lshl_add_u32 v9, v1, 5, v9")
    a("v_mov_b32 v12, 0")
    a("v_mov_b32 v13, 1")
    a("v_and_b32 v3, 31, v0")
    a("v_lshlrev_b32 v3, 10, v3")
    a("v_lshl_add_u32 v3, v11, 4, v3")
    def trd(j, reg, off):
        return [f"ds_read_b64_tr_b16 {vr(WD + 4 * j + 2 * e, 2)}, v{reg} offset:{off + e * 512}" for e in range(2)]
    def wdma(j, sreg, off):
        a(f"s_add_u32 m0, s{sreg}, {off}")
        a(f"s_add_u32 s29, s{54 + j % 2}, {ko(j // 2) * 16384}")
        V("buffer_load_dwordx4 v8, s[12:15], s29 offen lds", "wd")
    def dumpaddr():
        for t in range(4):
            a(f"s_xor_b32 s29, s25, {t}")
            a("s_lshl_b32 s29, s29, 15")
            a("s_add_u32 s29, s29, s32")
            a(f"v_add_u32 v{4 + t}, s29, v2")
    gb = [0]
    def gload(s):
        k = ko(s) * 1024
        if k - gb[0] > 3072:
            a(f"s_add_u32 s52, s52, {k - gb[0]}")
            a(f"s_add_u32 s53, s53, {k - gb[0]}")
            gb[0] = k
        for i in range(2):
            V(f"buffer_load_dwordx4 {vr(GS[s % NG] + 4 * i, 4)}, v2, s[8:11], s{52 + i} offen offset:{k - gb[0]} sc1", f"g{s}")
    def kloop(hooks, fills):
        issued = NG; fq = []
        for s in range(KS):
            for x in hooks.get(s, []):
                x() if callable(x) else a(x)
            fq += fills.get(s, [])
            vmwait(f"g{s}")
            g = GS[s % NG]; w = WD + 8 * s
            B0, B1, A0, A1 = vr(g, 4), vr(g + 4, 4), vr(w, 4), vr(w + 4, 4)
            C = "0" if s == 0 else None
            for d_, A_, B_ in ((AC5 + 32, A0, B1), (AC5 + 16, A1, B0), (AC5 + 48, A1, B1), (AC5, A0, B0)):
                a(MF32(vr(d_, 16), A_, B_, C))
                for _ in range(5):
                    if fq: a(fq.pop(0))
            if issued < KS:
                gload(issued); issued += 1
        assert not fq
    def dump(ts):
        for t in ts:
            for q in range(4):
                a(f"ds_write_b128 v{4 + t}, {vr(AC5 + 16 * t + 4 * q, 4)} offset:{q * 1024}")
    a("s_cmp_lt_u32 s22, 4")
    a("s_cbranch_scc1 K2_DLO")
    a("s_lshl_b32 s29, s25, 15")
    a("v_add_u32 v9, s29, v9")
    dumpaddr()
    a("s_waitcnt vmcnt(0)")
    a("s_barrier")
    signal("K2_S4", True)
    st(a, 'z0')
    del vm[:]; gb[0] = 0
    for s in range(NG): gload(s)
    a("s_cmp_eq_u32 s22, 7")
    a("s_cbranch_scc1 K2_D7")
    for j in range(28):
        for x in trd(j, 9, j * 1024): a(x)
    a.label("K2_D7")
    a("s_waitcnt lgkmcnt(0)")
    kloop({D_ZS: ["s_barrier"]}, {})
    st(a, 't4'); st(a, 'dk'); st(a, 'db'); st(a, 'ds')
    a("s_nop 8")
    dump((2, 1, 3, 0))
    a("s_waitcnt lgkmcnt(0)")
    a("s_barrier")
    stamp_end(a, 0, 7, 8)
    a("s_endpgm")
    a.label("K2_DLO")
    del vm[:]; gb[0] = 0
    a("s_mul_i32 s26, s25, 7168")
    a(f"s_add_u32 s26, s26, {SPARE}")
    a("s_lshl_b32 s27, s25, 10")
    a("s_add_u32 s27, s27, 28672")
    a("s_lshl_b32 s28, s25, 13")
    a("s_add_u32 s28, s28, 98304")
    a("v_add_u32 v10, s26, v9")
    a("v_add_u32 v14, s27, v9")
    a("v_add_u32 v15, 65536, v14")
    a("v_add_u32 v9, s28, v9")
    SL = [(26, k * 1024, 10, k * 1024) for k in range(7)] + [(27, 0, 14, 0), (27, 32768, 14, 32768), (27, 65536, 15, 0)]
    cwait("R", 20, 1)
    for k in range(10):
        for x in trd(k, SL[k][2], SL[k][3]): a(x)
    a("s_waitcnt vmcnt(0) lgkmcnt(0)")
    for k in range(10): wdma(10 + k, SL[k][0], SL[k][1])
    a("s_cmp_eq_u32 s22, 3")
    a("s_cbranch_scc0 K2_NPA")
    a("v_mov_b32 v16, v15")
    a("s_lshr_b32 s29, s23, 1")
    a("s_lshl_b32 s29, s29, 8")
    a("s_xor_b32 s30, s57, 1")
    a("s_lshl_b32 s33, s30, 2")
    a("s_add_u32 s29, s29, s33")
    a(f"s_add_u32 s29, s29, {FL4 + 128}")
    poll("K2_P4A", 29, 8, 3)
    a("v_mov_b32 v15, v16")
    if G_ET:
        a("s_lshl_b32 s33, s24, 1")
        a("s_add_u32 s29, s30, s33")
        a("s_mul_i32 s29, s29, 7168")
        a(f"s_mul_i32 s33, s23, {224 * 1024}")
        a("s_add_u32 s29, s29, s33")
        a(f"s_add_u32 s29, s29, {GF}")
        a("v_min_u32 v1, 55, v0")
        a("v_lshlrev_b32 v1, 7, v1")
        a("buffer_load_dword v17, v1, s[8:11], s29 offen sc1")
        a(f"s_add_u32 s29, s29, {112 * 1024}")
        a("buffer_load_dword v17, v1, s[8:11], s29 offen sc1")
    a.label("K2_NPA")
    dumpaddr()
    a("s_barrier")
    st(a, 'z0')
    for k in range(8): wdma(20 + k, 28, k * 1024)
    a("s_waitcnt vmcnt(8)")
    for k in range(10):
        for x in trd(10 + k, SL[k][2], SL[k][3]): a(x)
    a("s_lshl_b32 s29, s25, 15")
    a("v_add_u32 v8, s29, v2")
    a(f"v_mov_b32 v12, {CNT + 12}")
    a("s_waitcnt vmcnt(0)")
    for k in range(8):
        for x in trd(20 + k, 9, k * 1024): a(x)
    for t in range(1, 4):
        a(f"s_xor_b32 s33, s25, {t}")
        a("s_lshl_b32 s33, s33, 12")
        a(f"v_add_u32 v{(10, 11, 4)[t - 1]}, s33, v8")
    a("s_waitcnt lgkmcnt(0)")
    a("s_barrier")
    a("s_cmp_eq_u32 s22, 0")
    a("s_cbranch_scc0 K2_DSP")
    a("s_lshr_b32 s29, s23, 1")
    a("s_lshl_b32 s29, s29, 8")
    a("s_lshl_b32 s33, s57, 2")
    a("s_add_u32 s29, s29, s33")
    a(f"s_add_u32 s29, s29, {FL4}")
    poll("K2_P4", 29, 8, 3)
    a("ds_write_b32 v12, v13")
    a("s_branch K2_DGO")
    a.label("K2_DSP")
    a("s_mov_b32 s33, 0")
    a.label("K2_DSL")
    a("s_sleep 1")
    a("ds_read_b32 v15, v12")
    a("s_add_u32 s33, s33, 1")
    a("s_waitcnt lgkmcnt(0)")
    a("v_cmp_eq_u32 vcc, 1, v15")
    a("s_cmp_gt_u32 s33, 0x400000")
    a("s_cbranch_scc1 K2_DGO")
    a("s_cbranch_vccz K2_DSL")
    a.label("K2_DGO")
    st(a, 't4')
    del vm[:]
    for s in range(NG): gload(s)
    a("s_mov_b32 s56, 0xffff0000")
    a("s_waitcnt lgkmcnt(0)")
    F1 = [f"ds_read_b128 {vr(WD + 16 * p_ + 4 * q, 4)}, v8 offset:{16384 + p_ * 4096 + q * 1024}" for p_ in range(4) for q in range(4)]
    F2 = [f"v_add_f32 v{WD + i}, v{WD + i}, v{WD + 16 + i}" for i in range(16)]
    F2 += [f"v_add_f32 v{WD + 32 + i}, v{WD + 32 + i}, v{WD + 48 + i}" for i in range(16)]
    F2 += [f"v_add_f32 v{WD + i}, v{WD + i}, v{WD + 32 + i}" for i in range(16)]
    for i in range(8):
        F2 += [f"v_lshlrev_b32 v{WD + 16 + 2 * i}, 16, v{112 + i}", f"v_and_b32 v{WD + 17 + 2 * i}, s56, v{112 + i}"]
    F2 += [f"v_add_f32 v{WD + i}, v{WD + i}, v{WD + 16 + i}" for i in range(16)]
    kloop({8: ["s_barrier"], 10: ["s_waitcnt lgkmcnt(0)"]}, {8: F1, 10: F2})
    st(a, 'dk')
    dump((2, 1, 3))
    for i in range(16):
        a(f"v_add_f32 v{AC5 + i}, v{AC5 + i}, v{WD + i}")
    a("s_waitcnt lgkmcnt(0)")
    a("s_barrier")
    st(a, 'db')
    for t in range(3):
        for q in range(4):
            a(f"ds_read_b128 {vr(WD + 16 * t + 4 * q, 4)}, v{(10, 11, 4)[t]} offset:{q * 1024}")
    for t in range(3):
        a(f"s_waitcnt lgkmcnt({8 - 4 * t})")
        for i in range(0, 16, 2):
            a(f"v_pk_add_f32 {vr(AC5 + i, 2)}, {vr(AC5 + i, 2)}, {vr(WD + 16 * t + i, 2)}")
    o = AC5 + 16
    for i in range(8):
        a(f"v_cvt_pk_bf16_f32 v{o + i}, v{AC5 + 2 * i}, v{AC5 + 2 * i + 1}")
    a("s_nop 0")
    for j in range(2):
        a(f"v_permlane32_swap_b32 v{o + 4 * j}, v{o + 4 * j + 2}")
        a(f"v_permlane32_swap_b32 v{o + 4 * j + 1}, v{o + 4 * j + 3}")
    for j in range(2):
        a(f"buffer_store_dwordx4 {vr(o + 4 * j, 4)}, v3, s[16:19], s51 offen offset:{j * 32}")
    st(a, 'ds')
    stamp_end(a, 0, 7, 8)
    a("s_endpgm")
    a.label("K2_FALLBACK")
    a("v_mov_b32 v1, v2")
    a("v_mov_b32 v14, 0xff800000")
    a("s_mov_b32 s33, 0")
    a.label("K2_FB1")
    a(f"ds_read_b128 {vr(KR, 4)}, v1")
    a("v_add_u32 v1, 1024, v1")
    a("s_waitcnt lgkmcnt(0)")
    a(MF32(vr(s0, 16), vr(KR, 4), vr(Q, 4), "0"))
    a("s_nop 11")
    for i in range(0, 16, 2):
        a(f"v_max3_f32 v14, v14, v{s0+i}, v{s0+i+1}")
    a("s_add_u32 s33, s33, 1")
    a("s_cmp_lt_u32 s33, 64")
    a("s_cbranch_scc1 K2_FB1")
    set_negm()
    for i in range(16):
        a(f"v_mov_b32 v{O + i}, 0")
    a("v_mov_b32 v1, v2")
    a("s_mov_b32 s33, 0")
    a.label("K2_FB2")
    a(f"ds_read_b128 {vr(KR, 4)}, v1")
    a("s_mov_b64 exec, s[34:35]")
    a(f"ds_read_b128 {vr(VR, 4)}, v3")
    a(f"ds_read_b128 {vr(VR + 4, 4)}, v3 offset:512")
    a("s_mov_b64 exec, -1")
    a("v_add_u32 v1, 1024, v1")
    a("v_add_u32 v3, 1024, v3")
    a("s_waitcnt lgkmcnt(0)")
    a(MF32(vr(s0, 16), vr(KR, 4), vr(Q, 4), vr(NEGM, 16)))
    a("s_nop 11")
    for i in range(16): a(f"v_exp_f32 v{s0+i}, v{s0+i}")
    a("s_nop 0")
    for i in range(8): a(f"v_cvt_pk_bf16_f32 v{P+i}, v{s0+2*i}, v{s0+2*i+1}")
    a("s_nop 1")
    a(MF32(vr(O, 16), vr(VR, 4), vr(P, 4)))
    a(MF32(vr(O, 16), vr(VR + 4, 4), vr(P + 4, 4)))
    a("s_add_u32 s33, s33, 1")
    a("s_cmp_lt_u32 s33, 64")
    a("s_cbranch_scc1 K2_FB2")
    a("s_nop 11")
    a("s_branch K2_FIN")
    a.label("K2_END")
    a("s_endpgm")
    return n, a, kd(n, 256, 256), (256, 512, 163840)

def k5():
    a = Asm(); n = "k3_down_kernel"
    NS = 112; KS = 28; DEPTH = 8
    kernel_head(a, n)
    ACC = 16; GB = 80; WB = 144; RES = 160
    RED = 65536
    a("s_cmp_ge_u32 s2, 256")
    a("s_cbranch_scc1 K5_END")
    stamp(a, 0)
    if DBGK1:
        a("s_memrealtime s[64:65]")
        a("s_memtime s[66:67]")
    a("s_load_dwordx2 s[4:5], s[0:1], 72")
    a("s_load_dwordx4 s[40:43], s[0:1], 48")
    a("v_lshrrev_b32 v1, 6, v0")
    a("v_and_b32 v0, 63, v0")
    a("v_readfirstlane_b32 s22, v1")
    a("v_lshlrev_b32 v2, 4, v0")
    a("s_and_b32 s23, s2, 7")
    a("s_lshl_b32 s23, s23, 2")
    a("s_bfe_u32 s29, s2, 0x20003")
    a("s_add_u32 s23, s23, s29")
    a("s_lshr_b32 s24, s2, 5")
    a("s_and_b32 s25, s22, 1")
    a("s_lshr_b32 s26, s22, 1")
    a("s_lshl_b32 s27, s24, 1")
    a("s_add_u32 s27, s27, s25")
    a("s_lshl_b32 s28, s23, 1")
    a("s_add_u32 s28, s28, s26")
    a(f"s_mul_i32 s29, s22, {KS * 1024}")
    a(f"s_mul_i32 s32, s28, {NS * 1024}")
    a("s_add_u32 s32, s32, s29")
    a(f"s_add_u32 s32, s32, {GF}")
    a("s_xor_b32 s33, s28, 1")
    a(f"s_mul_i32 s33, s33, {NS * 1024}")
    a("s_add_u32 s33, s33, s29")
    a(f"s_add_u32 s33, s33, {GF}")
    a(f"s_mul_i32 s29, s22, {KS * 16384}")
    a("s_lshl_b32 s30, s27, 6")
    a("s_xor_b32 s31, s30, 64")
    a("s_add_u32 s30, s30, s29")
    a("s_add_u32 s31, s31, s29")
    a("s_lshl_b32 s36, s22, 14")
    a("v_lshrrev_b32 v8, 2, v0")
    a("v_lshlrev_b32 v8, 10, v8")
    a("v_and_b32 v1, 3, v0")
    a("v_lshl_add_u32 v8, v1, 4, v8")
    a("s_waitcnt lgkmcnt(0)")
    srd(a, 8, 4, WS_SIZE)
    srd(a, 16, 40, 1792 * 512 * 2)
    srd(a, 12, 42, 2048 * 512 * 2)
    def loads(s):
        b = GB + 8 * (s % DEPTH)
        if s % 4 == 0 and s > 0:
            a("s_add_u32 s32, s32, 4096")
            a("s_add_u32 s33, s33, 4096")
        for i in range(2):
            a(f"s_add_u32 m0, s36, {(s % DEPTH) * 2048 + i * 1024}")
            a(f"s_add_u32 s29, s{30 + i}, {s * 16384}")
            a("buffer_load_dwordx4 v8, s[16:19], s29 offen lds")
        for i in range(2):
            a(f"buffer_load_dwordx4 {vr(b + 4 * i, 4)}, v2, s[8:11], s{32 + i} offen offset:{(s % 4) * 1024}")
    for s in range(DEPTH - 1):
        loads(s)
    a("v_lshrrev_b32 v4, 5, v0")
    a("v_bfe_u32 v1, v0, 2, 2")
    a("v_lshl_add_u32 v9, v4, 2, v1")
    a("v_lshlrev_b32 v9, 6, v9")
    a("v_and_b32 v1, 3, v0")
    a("v_lshl_add_u32 v9, v1, 3, v9")
    a("v_bfe_u32 v1, v0, 4, 1")
    a("v_lshl_add_u32 v9, v1, 5, v9")
    a("v_add_u32 v9, s36, v9")
    a("v_and_b32 v3, 31, v0")
    a("v_lshlrev_b32 v3, 10, v3")
    a("v_lshl_add_u32 v3, v4, 4, v3")
    a("s_lshl_b32 s34, s28, 15")
    a("s_lshl_b32 s35, s27, 6")
    a("s_add_u32 s34, s34, s35")
    a("s_lshl_b32 s35, s28, 15")
    a("s_lshl_b32 s37, s27, 11")
    a("s_add_u32 s35, s35, s37")
    a(f"s_add_u32 s35, s35, {HF}")
    for t in range(1, 4):
        a(f"s_xor_b32 s29, s22, {t}")
        a("s_mul_i32 s29, s29, 12288")
        a(f"s_add_u32 s29, s29, {RED}")
        a(f"v_add_u32 v{4 + t}, s29, v2")
    a("s_mul_i32 s29, s22, 12288")
    a(f"s_add_u32 s29, s29, {RED}")
    a("v_add_u32 v4, s29, v2")
    def trreads(s):
        for i in range(2):
            for e in range(2):
                a(f"ds_read_b64_tr_b16 {vr(WB + 8 * (s % 2) + 4 * i + 2 * e, 2)}, v9 offset:{(s % DEPTH) * 2048 + i * 1024 + e * 512}")
    def mfmas(s):
        g = GB + 8 * (s % DEPTH); w = WB + 8 * (s % 2)
        B0, B1, A0, A1 = vr(g, 4), vr(g + 4, 4), vr(w, 4), vr(w + 4, 4)
        C = "0" if s == 0 else None
        a(MF32(vr(ACC, 16), A0, B0, C))
        a(MF32(vr(ACC + 32, 16), A0, B1, C))
        a(MF32(vr(ACC + 16, 16), A1, B0, C))
        a(MF32(vr(ACC + 48, 16), A1, B1, C))
    issued = DEPTH - 1; res = 0
    a(f"s_waitcnt vmcnt({(issued - 1) * 4})")
    st(a, 't1')
    trreads(0)
    for s in range(KS):
        if issued < KS:
            loads(issued); issued += 1
            if issued == KS:
                for j in range(2):
                    a(f"buffer_load_dwordx4 {vr(RES + 4 * j, 4)}, v2, s[8:11], s35 offen offset:{j * 1024}")
                res = 2
        if s + 1 < KS:
            a(f"s_waitcnt vmcnt({(issued - s - 2) * 4 + res})")
            trreads(s + 1)
            a("s_waitcnt lgkmcnt(4)")
        else:
            a("s_waitcnt lgkmcnt(0)")
        mfmas(s)
    st(a, 'att')
    a("s_waitcnt vmcnt(0)")
    a("s_mov_b32 s29, 0xffff0000")
    for i in range(8):
        a(f"v_lshlrev_b32 v{RES + 8 + 2 * i}, 16, v{RES + i}")
        a(f"v_and_b32 v{RES + 9 + 2 * i}, s29, v{RES + i}")
    for t in (2, 1, 3):
        for q in range(4):
            a(f"ds_write_b128 v{4 + t}, {vr(ACC + 16 * t + 4 * q, 4)} offset:{(t - 1) * 4096 + q * 1024}")
    for i in range(16):
        a(f"v_add_f32 v{ACC + i}, v{ACC + i}, v{RES + 8 + i}")
    a("s_waitcnt lgkmcnt(0)")
    a("s_barrier")
    for t in range(3):
        for q in range(4):
            a(f"ds_read_b128 {vr(GB + 16 * t + 4 * q, 4)}, v4 offset:{t * 4096 + q * 1024}")
    for t in range(3):
        a(f"s_waitcnt lgkmcnt({8 - 4 * t})")
        for i in range(0, 16, 2):
            a(f"v_pk_add_f32 {vr(ACC + i, 2)}, {vr(ACC + i, 2)}, {vr(GB + 16 * t + i, 2)}")
    o = ACC + 16
    for i in range(8):
        a(f"v_cvt_pk_bf16_f32 v{o + i}, v{ACC + 2 * i}, v{ACC + 2 * i + 1}")
    a("s_nop 0")
    for j in range(2):
        a(f"v_permlane32_swap_b32 v{o + 4 * j}, v{o + 4 * j + 2}")
        a(f"v_permlane32_swap_b32 v{o + 4 * j + 1}, v{o + 4 * j + 3}")
    for j in range(2):
        a(f"buffer_store_dwordx4 {vr(o + 4 * j, 4)}, v3, s[12:15], s34 offen offset:{j * 32}")
    stamp_end(a, 2, 3, 8)
    if DBGK1:
        a("s_waitcnt vmcnt(0)")
        a("s_memrealtime s[68:69]")
        a("s_memtime s[70:71]")
        a("s_load_dwordx2 s[72:73], s[0:1], 64")
        a("s_waitcnt lgkmcnt(0)")
        srd(a, 76, 72, 256)
        a("s_sub_u32 s70, s70, s66")
        a("s_cmp_lg_u32 s2, 0")
        a("s_cbranch_scc1 K5_END")
        a(f"s_mov_b32 s74, {DBGOFF}")
        a("v_mov_b32 v0, 0")
        a("buffer_load_dwordx4 v[4:7], v0, s[8:11], s74 offen")
        a("buffer_load_dwordx4 v[8:11], v0, s[8:11], s74 offen offset:16")
        a("s_waitcnt vmcnt(0)")
        a("v_sub_u32 v5, v5, v4")
        a("v_sub_u32 v8, v8, v4")
        a("v_sub_u32 v9, v9, v4")
        a("v_sub_u32 v12, s64, v4")
        a("v_sub_u32 v13, s68, v4")
        a("v_mov_b32 v14, s70")
        a("v_mov_b32 v15, 0")
        a("buffer_store_dwordx4 v[4:7], v0, s[76:79], 0 offen")
        a("buffer_store_dwordx4 v[8:11], v0, s[76:79], 0 offen offset:16")
        a("buffer_store_dwordx4 v[12:15], v0, s[76:79], 0 offen offset:32")
    a.label("K5_END")
    a("s_endpgm")
    return n, a, kd(n, 192, 192), (256, 256, RED + 49152)

def main(out):
    ks = [k234()]
    hdr = open("cdna_kernels/" + NAME + ".s.ref").read().split("\n")
    hdr = [l for l in hdr if l.startswith(";") and "@launch" not in l and "Override" not in l and "grid=ceil" not in l]
    txt = "\n".join(hdr) + "\n"
    for n, a, d, (g, b, lds) in ks:
        txt += f"; @launch {'kernel=' + n + ' ' if LIST else ''}grid=({g},1,1) block=({b},1,1) lds={lds}\n"
    txt += '.amdgcn_target "amdgcn-amd-amdhsa--gfx950"\n.text\n'
    bad = 0
    for ki, (n, a, d, _) in enumerate(ks):
        fl = ST_FLAGS[ki]
        if fl:
            a.lines = [l + " " + fl if ("buffer_store_dwordx" in l and "sc1" not in l) else l for l in a.lines]
        bad += check_hazards(a.lines, n)
        txt += a.text()
    txt += "CODE_END:\n"
    txt += '.section .rodata,"a"\n'
    for n, a, d, _ in ks:
        txt += ".p2align 6\n" + d
    open(out, "w").write(txt)
    print("hazards:", bad)

if __name__ == "__main__":
    if "stamp" in sys.argv: STAMP = True
    for arg in sys.argv[2:]:
        if "=" in arg:
            k_, v_ = arg.split("=", 1)
            globals()[k_] = eval(v_)
    main(sys.argv[1] if len(sys.argv) > 1 else "cdna_kernels/" + NAME + ".s")
```

```python
import sys, math, struct
from asmlib import *

NAME = "sequential_preLN__mha_block__geglu_ffn__prompt"

QF, KF, VF, OF, HF = 0x000000, 0x200000, 0x400000, 0x600000, 0x800000
ST  = 0xA00000
CSF = 0xA80000
WOF = 0xB00000
WGF = 0xC00000
WDF = 0x1000000
GF  = 0x1200000
WS_SIZE = 0x10000000
FL1 = 0xB02800
FL2 = 0xB00000
FL3 = 0xB00800
FL4 = 0xB01800

def f32(x):
    return "0x%08x" % struct.unpack("<I", struct.pack("<f", x))[0]

LOG2E = 1.4426950408889634
EPS = 1e-5

def srd(a, s, base, size):
    a(f"s_mov_b32 s{s}, s{base}")
    a(f"s_mov_b32 s{s+1}, s{base+1}")
    a(f"s_mov_b32 s{s+2}, {hex(size)}")
    a(f"s_mov_b32 s{s+3}, 0x00020000")

def kernel_head(a, name):
    a.raw(f".globl {name}")
    a.raw(".p2align 8")
    a.raw(f".type {name},@function")
    a.raw(f"{name}:")

def kd(name, nvgpr, accum, nsgpr=100):
    return f""".amdhsa_kernel {name}
  .amdhsa_next_free_vgpr {nvgpr}
  .amdhsa_next_free_sgpr {nsgpr}
  .amdhsa_accum_offset {accum}
  .amdhsa_group_segment_fixed_size 0
  .amdhsa_kernarg_size 80
  .amdhsa_user_sgpr_count 2
  .amdhsa_user_sgpr_kernarg_segment_ptr 1
  .amdhsa_system_sgpr_workgroup_id_x 1
.end_amdhsa_kernel
"""

STAMP = False
ATOM = 1
NREP = 1
PIF = 1
POLL_PRE = 0
O_B1 = 10
POLL2 = 0
D_ZS = 4
W3_TOUCH = 0
G_EA = 12
G_PERM = 1
G_ET = 1
D_ROT = 1
G_TOUCH = 0
SMAP = ['t1', 'att', 't2', 't3', 'gu', 't4']
K2_Y2 = 40
K2_PER = 4
PIN = None
PINN = []
LIST = 1
FASTL2 = 1
D_Y = 6
DBGK1 = 0
LD_SC = ''
GSTAMP = 0
G_P2 = 8
GB3 = 20
GA3 = 0
POLL_SLEEP = 0
B_FILL = 4
K2_TCH = 1
G_SC = 'sc1'
CODE_TOUCH = 0
K1_ROT = 1
K1_TW = [-1, 0, 1]
K4_SL = 26
K2_S3 = 11
K2_WD = 0
K1_D = 1
K4_D = 2
K4_XB = 12
K4_TOUCH = 0
K2_S2 = 4
K1_TOUCH = 1
ST_FLAGS = ['', '', '', '', '']
K2_Y = 8
SIDE_SC = 'sc1'
K1_UP = 14
K4_UP = 22
DBGOFF = 0x2000000
def st(a, name):
    if name in SMAP: stamp(a, SMAP.index(name) + 1)
def stamp(a, i):
    if PIN:
        if i == 0: a("s_memrealtime s[64:65]")
        if i == PIN[0]:
            PINN.append(0); L = f"PIN{len(PINN)}"
            a.label(L)
            a("s_memrealtime s[66:67]")
            a("s_waitcnt lgkmcnt(0)")
            a("s_sub_u32 s66, s66, s64")
            a(f"s_cmp_lt_u32 s66, {PIN[1]}")
            a(f"s_cbranch_scc1 {L}")
    if not STAMP: return
    a(f"s_memrealtime s[{64 + 4 * i}:{65 + 4 * i}]")
    a(f"s_memtime s[{66 + 4 * i}:{67 + 4 * i}]")
    if i != 0:
        a("s_waitcnt lgkmcnt(0)")
def stamp_end(a, kidx, n, srdreg, wavereg=22):
    if PIN: stamp(a, n)
    if not STAMP: return
    a("s_waitcnt vmcnt(0)")
    stamp(a, n)
    a("s_lshl_b32 s60, s2, 3")
    a(f"s_add_u32 s60, s60, s{wavereg}")
    a("s_lshl_b32 s60, s60, 6")
    a(f"s_add_u32 s60, s60, {DBGOFF + kidx * 0x40000}")
    a("v_mov_b32 v0, 0")
    for j in range(2 * n + 2):
        a(f"v_mov_b32 v1, s{64 + 2 * j}")
        a(f"buffer_store_dword v1, v0, s[{srdreg}:{srdreg+3}], s60 offen offset:{4 * j}")

def MF32(d, A, B, C=None):
    C = d if C is None else C
    return f"v_mfma_f32_32x32x16_bf16 {d}, {A}, {B}, {C}"

def halfsum(a, v, t):
    a(f"v_mov_b32 v{t}, v{v}")
    a("s_nop 1")
    a(f"v_permlane32_swap_b32 v{v}, v{t}")
    a(f"v_add_f32 v{v}, v{v}, v{t}")


def k1():
    a = Asm(); n = NAME + "_kernel"
    kernel_head(a, n)
    SLOT = 28672; SCR = 5 * SLOT; SCR2 = SCR + 1536; SCR3 = SCR2 + 512
    D = K1_D
    a("s_cmp_ge_u32 s2, 256")
    a("s_cbranch_scc1 K2_END")
    stamp(a, 0)
    if DBGK1:
        a("s_memrealtime s[64:65]")
        a("s_memtime s[66:67]")
    a("s_load_dwordx4 s[4:7], s[0:1], 0")
    a("s_load_dwordx4 s[56:59], s[0:1], 64")
    a("v_lshrrev_b32 v1, 6, v0")
    a("v_and_b32 v0, 63, v0")
    a("v_readfirstlane_b32 s35, v1")
    a("s_and_b32 s23, s2, 3")
    a("s_lshl_b32 s23, s23, 2")
    a("s_bfe_u32 s29, s2, 0x20003")
    a("s_add_u32 s23, s23, s29")
    a("s_bfe_u32 s24, s2, 0x10002")
    a("s_lshl_b32 s24, s24, 3")
    a("s_lshr_b32 s29, s2, 5")
    a("s_add_u32 s24, s24, s29")
    a("s_and_b32 s22, s35, 3")
    a("s_lshl_b32 s27, s22, 12")
    a("s_lshl_b32 s40, s2, 1")
    a("s_and_b32 s29, s2, 4")
    a("s_add_u32 s40, s40, s29")
    if not K1_ROT: a("s_mov_b32 s40, 0")
    a("s_cmp_lt_u32 s35, 4")
    a("s_cbranch_scc1 K1_RDADDR")
    a("s_lshl_b32 s25, s23, 17")
    a("s_lshl_b32 s29, s22, 15")
    a("s_add_u32 s25, s25, s29")
    a("s_mul_i32 s26, s22, 49152")
    a("s_lshl_b32 s29, s24, 6")
    a("s_add_u32 s26, s26, s29")
    a("s_lshl_b32 s28, s22, 10")
    a("s_add_u32 s28, s28, 16384")
    a("s_mov_b32 s30, 0x3f803f80")
    a("v_lshrrev_b32 v5, 3, v0")
    a("v_lshlrev_b32 v2, 10, v5")
    a("v_and_b32 v6, 7, v0")
    a("v_lshrrev_b32 v7, 4, v0")
    a("v_xor_b32 v6, v6, v7")
    a("v_lshl_add_u32 v2, v6, 4, v2")
    a("v_xor_b32 v3, 64, v2")
    a("v_add_u32 v3, 8192, v3")
    a("v_lshrrev_b32 v5, 2, v0")
    a("v_mul_u32_u24 v4, 3072, v5")
    a("v_and_b32 v6, 3, v0")
    a("v_lshl_add_u32 v4, v6, 4, v4")
    a("s_waitcnt lgkmcnt(0)")
    srd(a, 8, 4, 2048 * 512 * 2)
    srd(a, 12, 6, 512 * 1536 * 2)
    def dma(c):
        slot = (c % 5) * SLOT
        a(f"s_add_u32 s41, s40, {c}")
        a("s_and_b32 s41, s41, 7")
        a("s_lshl_b32 s42, s41, 7")
        a("s_add_u32 s42, s42, s25")
        a(f"s_mul_i32 s41, s41, {64 * 3072}")
        a("s_add_u32 s41, s41, s26")
        for p in range(3):
            a(f"s_add_u32 m0, s28, {slot + p * 4096}")
            a(f"s_add_u32 s29, s41, {p * 1024}")
            a(f"buffer_load_dwordx4 v4, s[12:15], s29 offen lds")
        for i in range(4):
            a(f"s_add_u32 m0, s27, {slot + i * 1024}")
            a(f"s_add_u32 s29, s42, {(i // 2) * 16384}")
            a(f"buffer_load_dwordx4 v{2 + (i % 2)}, s[8:11], s29 offen lds")
    for c in range(D + 1):
        dma(c)
    a.label("K1_RDADDR")
    a("v_and_b32 v5, 31, v0")
    a("v_lshrrev_b32 v6, 5, v0")
    a("v_bfe_u32 v7, v0, 1, 3")
    a("v_xor_b32 v7, v7, v6")
    a("v_lshlrev_b32 v5, 7, v5")
    a("v_add_u32 v5, s27, v5")
    for s in range(4):
        a(f"v_xor_b32 v1, {2 * s}, v7")
        a(f"v_lshl_add_u32 v{8 + s}, v1, 4, v5")
        a(f"v_add_u32 v{12 + s}, {2 * SLOT}, v{8 + s}")
        a(f"v_add_u32 v{16 + s}, {4 * SLOT}, v{8 + s}")
    a("v_bfe_u32 v1, v0, 2, 2")
    a("v_lshl_add_u32 v1, v6, 3, v1")
    a("v_lshlrev_b32 v20, 6, v1")
    a("v_bfe_u32 v1, v0, 4, 1")
    a("v_lshl_add_u32 v20, v1, 5, v20")
    a("v_and_b32 v1, 3, v0")
    a("v_lshl_add_u32 v20, v1, 3, v20")
    a("s_cmp_lt_u32 s35, 4")
    a("s_cbranch_scc1 K1_MM")
    a("s_lshl_b32 s29, s22, 10")
    a("v_add_u32 v20, s29, v20")
    a(f"v_add_u32 v21, {2 * SLOT}, v20")
    a(f"v_add_u32 v22, {4 * SLOT}, v20")
    for i in range(28, 31):
        a(f"v_mov_b32 v{i}, 0")
    WB = 48
    for c in range(8):
        slot = c % 5; st = slot // 2; off = (slot % 2) * SLOT
        a(f"s_waitcnt vmcnt({7 * (min(c + D, 7) - c)})")
        a("s_barrier")
        for p in range(3):
            for u in range(2):
                a(f"ds_read_b64_tr_b16 {vr(WB + 4 * p + 2 * u, 2)}, v{20 + st} offset:{off + 16384 + p * 4096 + u * 256}")
        if c + D + 1 < 8:
            dma(c + D + 1)
        a("s_waitcnt lgkmcnt(0)")
        for i in range(4):
            for p in range(3):
                a(f"v_dot2c_f32_bf16 v{28 + p}, s30, v{WB + 4 * p + i}")
    a("v_and_b32 v5, 31, v0")
    a("v_lshlrev_b32 v6, 4, v5")
    a("s_lshl_b32 s29, s22, 2")
    a(f"s_add_u32 s29, s29, {SCR}")
    a("v_add_u32 v7, s29, v6")
    for p in range(3):
        halfsum(a, 28 + p, 1)
        a(f"ds_write_b32 v7, v{28 + p} offset:{p * 512}")
    a("s_waitcnt lgkmcnt(0)")
    a("s_barrier")
    a("s_cmp_eq_u32 s35, 7")
    a("s_cbranch_scc0 K1_JOIN")
    srd(a, 16, 56, 256)
    a("v_mov_b32 v12, 0")
    a("s_mov_b32 s33, 0")
    a.label("K1_PZ")
    a("buffer_load_dword v15, v12, s[16:19], 0 offen sc1")
    a("s_add_u32 s33, s33, 1")
    a("s_waitcnt vmcnt(0)")
    a("v_cmp_eq_u32 vcc, 1, v15")
    a("s_cmp_gt_u32 s33, 0x40000")
    a("s_cbranch_scc1 K1_JOIN")
    a("s_cbranch_vccz K1_PZ")
    a("s_branch K1_JOIN")
    a.label("K1_MM")
    if CODE_TOUCH:
        a("s_getpc_b64 s[44:45]")
        a.label("K1_PC")
        a("s_sub_u32 s44, s44, K1_PC-k1_qkv_kernel")
        a("s_subb_u32 s45, s45, 0")
        a("s_lshl_b32 s46, s22, 13")
        a("v_lshlrev_b32 v23, 7, v0")
        a("v_add_u32 v23, s46, v23")
        for i in range(CODE_TOUCH):
            a("v_min_u32 v24, CODE_END-k1_qkv_kernel-4, v23")
            a("global_load_dword v31, v24, s[44:45]")
            a("v_add_u32 v23, 32768, v23")
    a(f"v_add_u32 v21, {2 * SLOT}, v20")
    a(f"v_add_u32 v22, {4 * SLOT}, v20")
    a("s_mov_b32 s30, 0x3f803f80")
    for i in range(24, 28):
        a(f"v_mov_b32 v{i}, 0")
    a("v_and_b32 v5, 31, v0")
    a("v_lshlrev_b32 v6, 4, v5")
    a(f"v_add_u32 v6, {SCR}, v6")
    a("s_lshl_b32 s29, s22, 7")
    a(f"s_add_u32 s29, s29, {SCR2}")
    a("v_lshlrev_b32 v7, 2, v5")
    a("v_add_u32 v7, s29, v7")
    a("v_lshrrev_b32 v1, 5, v0")
    a("v_lshlrev_b32 v1, 4, v1")
    a("v_add_u32 v1, s29, v1")
    a("s_lshl_b32 s29, s23, 2")
    a("s_add_u32 s29, s29, s22")
    a("s_lshl_b32 s29, s29, 10")
    a("s_lshl_b32 s31, s24, 17")
    a("s_add_u32 s29, s29, s31")
    a("s_add_u32 s31, s29, 65536")
    a(f"s_add_u32 s32, s29, {KF}")
    a(f"s_add_u32 s33, s29, {KF + 65536}")
    a(f"s_add_u32 s34, s29, {VF}")
    a("v_lshlrev_b32 v2, 4, v0")
    a("v_bfe_u32 v3, v0, 4, 1")
    a("v_lshlrev_b32 v3, 16, v3")
    a("v_lshrrev_b32 v4, 5, v0")
    a("v_lshl_add_u32 v3, v4, 8, v3")
    a("v_and_b32 v4, 15, v0")
    a("v_lshl_add_u32 v3, v4, 4, v3")
    a("s_waitcnt lgkmcnt(0)")
    srd(a, 16, 58, WS_SIZE)
    a("s_lshl_b32 s36, s2, 2")
    a("s_add_u32 s36, s36, s22")
    a("s_cmp_lg_u32 s36, 3")
    a("s_cbranch_scc1 K1_NZ")
    a(f"s_mov_b32 s36, {FL2}")
    a("v_lshlrev_b32 v28, 7, v0")
    for i_ in range(2 * NREP):
        a("buffer_store_dwordx2 v[24:25], v28, s[16:19], s36 offen sc1")
        a("s_add_u32 s36, s36, 8192")
    srd(a, 8, 56, 256)
    a("v_mov_b32 v28, 1")
    a("s_waitcnt vmcnt(0)")
    a("buffer_store_dword v28, v24, s[8:11], 0 offen sc1")
    a.label("K1_NZ")
    TQ = {}
    if K1_TOUCH:
        srd(a, 8, 4, 2048 * 512 * 2)
        a("s_lshr_b32 s37, s2, 3")
        a("v_and_b32 v28, 3, v0")
        a("s_mov_b32 s39, 256")
        a("s_and_b32 s36, s2, 3")
        a("s_lshl_b32 s36, s36, 19")
        a("s_lshl_b32 s38, s37, 14")
        a("s_add_u32 s36, s36, s38")
        a("v_bfe_u32 v23, v0, 1, 4")
        a("v_lshlrev_b32 v23, 10, v23")
        a("v_and_b32 v29, 1, v0")
        a("v_lshl_add_u32 v23, v29, 7, v23")
        a("s_cmp_lg_u32 s22, 0")
        a("s_cbranch_scc1 K1_TD")
        srd(a, 8, 6, 512 * 1536 * 2)
        a(f"s_mov_b32 s39, {128 * 3072}")
        a("s_mul_i32 s36, s37, 12288")
        a("s_bfe_u32 s38, s2, 0x10002")
        a("s_lshl_b32 s38, s38, 9")
        a("s_add_u32 s36, s36, s38")
        a("v_lshrrev_b32 v23, 4, v0")
        a("v_mul_u32_u24 v23, 3072, v23")
        a("v_bfe_u32 v30, v0, 2, 2")
        a("v_min_u32 v30, 2, v30")
        a("v_lshl_add_u32 v23, v30, 10, v23")
        a("v_lshl_add_u32 v23, v28, 7, v23")
        a.label("K1_TD")
        def touch(n_):
            return ["s_cmp_ge_u32 s22, 2", f"s_cbranch_scc1 K1_TS{n_}",
                    "s_lshr_b32 s38, s40, 1", f"s_add_u32 s38, s38, {n_ + 1}", "s_and_b32 s38, s38, 3",
                    "s_mul_i32 s38, s38, s39", "s_add_u32 s38, s38, s36",
                    "buffer_load_dword v31, v23, s[8:11], s38 offen", f"K1_TS{n_}:"]
        for n_, when in enumerate(K1_TW):
            if when < 0:
                for x in touch(n_): a(x)
            else:
                TQ.setdefault(when, []).extend(touch(n_))
    ACC = 32
    def xf(ks): return 80 + (ks % 8) * 4
    def wf(ks, p): return 112 + (ks % 3) * 12 + p * 4
    def reads(ks):
        c, s = ks // 4, ks % 4
        slot = c % 5; st = slot // 2; off = (slot % 2) * SLOT
        out = [f"ds_read_b128 {vr(xf(ks), 4)}, v{8 + 4 * st + s} offset:{off}"]
        for p in range(3):
            for u in range(2):
                out.append(f"ds_read_b64_tr_b16 {vr(wf(ks, p) + 2 * u, 2)}, v{20 + st} offset:{off + 16384 + p * 4096 + s * 1024 + u * 256}")
        return out
    def mfmas(ks):
        X = vr(xf(ks), 4); out = []
        for p in range(3):
            D_ = vr(ACC + 16 * p, 16); W = vr(wf(ks, p), 4)
            A, B = (W, X) if p < 2 else (X, W)
            out.append(MF32(D_, A, B, "0" if ks == 0 else None))
        return out
    def dots(k0, k1_):
        for ks in range(k0, k1_):
            for i in range(4):
                a(f"v_dot2c_f32_bf16 v{24 + i % 2}, s30, v{xf(ks) + i}")
                a(f"v_dot2c_f32_bf16 v{26 + i % 2}, v{xf(ks) + i}, v{xf(ks) + i}")
    a("s_barrier")
    for r in reads(0) + reads(1): a(r)
    for x in TQ.get(0, []): a(x)
    for ks in range(32):
        c, s = ks // 4, ks % 4
        M = mfmas(ks); R = reads(ks + 2) if ks + 2 < 32 else []
        if s == 2:
            dots(max(ks - 3, 0), ks)
            a("s_waitcnt lgkmcnt(0)")
            dots(ks, ks + 1)
            if c == 7: dots(ks + 1, ks + 2)
            a(M[0])
            if c < 7:
                a("s_barrier")
                for x in TQ.get(c + 1, []): a(x)
        else:
            a(f"s_waitcnt lgkmcnt({7 if ks < 31 else 0})")
            a(M[0])
        E = []
        if ks >= 30:
            if ks == 30:
                E = ["v_add_f32 v24, v24, v25", "v_add_f32 v26, v26, v27", "v_mov_b32 v25, v24", "v_mov_b32 v27, v26", "s_nop 0",
                     "v_permlane32_swap_b32 v24, v25", "v_permlane32_swap_b32 v26, v27", "v_add_f32 v24, v24, v25", "v_add_f32 v26, v26, v27",
                     f"v_mul_f32 v24, {f32(1/512)}, v24", f"v_mul_f32 v26, {f32(1/512)}, v26", "v_fma_f32 v26, -v24, v24, v26",
                     "v_max_f32 v26, 0, v26", f"v_add_f32 v26, {f32(EPS)}, v26", "v_rsq_f32 v26, v26"]
                E = ["s_nop 1"] + E
            else:
                E = ["ds_write_b32 v7, v26", "v_mul_f32 v24, -0.5, v24", "v_cvt_pk_bf16_f32 v25, v24, v24", "v_lshlrev_b32 v25, 16, v25",
                     "v_sub_f32 v27, v24, v25", "v_cvt_pk_bf16_f32 v148, v25, v27", "v_mov_b32 v150, 0", "v_mov_b32 v151, 0",
                     "v_mov_b32 v149, v148", f"v_mul_f32 v28, {f32(0.25 * LOG2E)}, v26", "v_mov_b32 v27, v26", "v_mov_b32 v29, v28"]
            R = E
            n3 = (len(R) + 2) // 3
        else:
            n3 = 3
        for r in R[:n3]: a(r)
        a(M[1])
        for r in R[n3:2 * n3]: a(r)
        a(M[2])
        for r in R[2 * n3:]: a(r)
    a("s_waitcnt lgkmcnt(0)")
    a("s_barrier")
    for p in range(3):
        a(f"ds_read_b128 {vr(80 + 4 * p, 4)}, v6 offset:{p * 512}")
    for g in range(4):
        a(f"ds_read_b128 {vr(96 + 4 * g, 4)}, v1 offset:{g * 32}")
    CF = 152
    for p in range(3):
        a(f"v_mov_b32 v{CF + 4 * p + 2}, 0")
        a(f"v_mov_b32 v{CF + 4 * p + 3}, 0")
    for p in range(3):
        b = 80 + 4 * p; f = CF + 4 * p
        a(f"s_waitcnt lgkmcnt({6 - p})")
        a(f"v_add_f32 v{b}, v{b}, v{b+1}")
        a(f"v_add_f32 v{b+2}, v{b+2}, v{b+3}")
        a(f"v_add_f32 v{b}, v{b}, v{b+2}")
        a(f"v_cvt_pk_bf16_f32 v{f}, v{b}, v{b}")
        a(f"v_lshlrev_b32 v{b+1}, 16, v{f}")
        a(f"v_sub_f32 v{b+1}, v{b}, v{b+1}")
        a(f"v_cvt_pk_bf16_f32 v{f+1}, v{b+1}, v{b+1}")
        if p >= 1:
            q = p - 1
            a(MF32(vr(ACC + 16 * q, 16), vr(CF + 4 * q, 4), vr(148, 4)))
    a("s_waitcnt lgkmcnt(0)")
    a("s_nop 0")
    a(MF32(vr(ACC + 32, 16), vr(148, 4), vr(CF + 8, 4)))
    a("s_nop 1")
    for p in range(3):
        b = ACC + 16 * p; o = 112 + 8 * p
        for i in range(0, 16, 2):
            sc = "v[28:29]" if p == 0 else "v[26:27]" if p == 1 else vr(96 + i, 2)
            a(f"v_pk_mul_f32 {vr(b + i, 2)}, {sc}, {vr(b + i, 2)}")
        for i in range(8):
            a(f"v_cvt_pk_bf16_f32 v{o+i}, v{b+2*i}, v{b+2*i+1}")
        if p < 2:
            a(f"buffer_store_dwordx4 {vr(o, 4)}, v2, s[16:19], s{29 if p == 0 else 32} offen sc1")
            a(f"buffer_store_dwordx4 {vr(o + 4, 4)}, v2, s[16:19], s{31 if p == 0 else 33} offen sc1")
        else:
            a(f"buffer_store_dwordx4 {vr(o, 4)}, v3, s[16:19], s34 offen sc1")
            a(f"buffer_store_dwordx4 {vr(o + 4, 4)}, v3, s[16:19], s34 offen offset:512 sc1")
    a.label("K1_JOIN")
    return a

def k234():
    a = k1(); n = NAME + "_kernel"
    Q = 4; NEGM = 16; S = [32, 48]; O = 64; P = 80; KR = 88; VR = 100; W = 128
    SCR = 131072
    K1C = 2 * math.sqrt(2 / math.pi) * LOG2E
    vm = []
    def V(ins, tag=None):
        a(ins); vm.append(tag)
    def vmwait(tag, extra=""):
        idx = max(i for i, t in enumerate(vm) if t == tag)
        a(f"s_waitcnt vmcnt({len(vm) - 1 - idx}){extra}")
    a("s_load_dwordx4 s[40:43], s[0:1], 32")
    a("s_load_dwordx2 s[44:45], s[0:1], 16")
    a("s_load_dwordx2 s[46:47], s[0:1], 0")
    a("s_load_dwordx2 s[48:49], s[0:1], 48")
    a("s_load_dwordx2 s[62:63], s[0:1], 56")
    a("s_lshl_b32 s31, s24, 8")
    a("s_lshl_b32 s30, s23, 2")
    a("s_add_u32 s31, s31, s30")
    a(f"s_add_u32 s31, s31, {FL1}")
    a("s_mov_b32 s22, s35")
    a("s_and_b32 s23, s2, 7")
    a("s_lshl_b32 s23, s23, 2")
    a("s_bfe_u32 s29, s2, 0x20003")
    a("s_add_u32 s23, s23, s29")
    a("s_lshr_b32 s24, s2, 5")
    a("s_lshl_b32 s25, s23, 16")
    a("v_lshlrev_b32 v2, 4, v0")
    a("s_lshl_b32 s26, s22, 10")
    a("s_add_u32 s27, s25, s26")
    a("s_lshl_b32 s28, s24, 13")
    a("s_add_u32 s28, s28, s27")
    a(f"s_add_u32 s27, s27, {KF}")
    a(f"s_add_u32 s30, s27, {VF - KF}")
    srd(a, 8, 58, WS_SIZE)
    a("v_mov_b32 v12, 0")
    a("v_mov_b32 v13, 1")
    def signal(lbl, local=False):
        a("s_cmp_eq_u32 s22, 7")
        a(f"s_cbranch_scc0 {lbl}")
        a("v_lshlrev_b32 v12, 14, v0")
        a(f"s_mov_b64 exec, {(1 << NREP) - 1}")
        if ATOM:
            a(f"s_and_b32 s31, s31, {hex(0xffffff84 if '4' in lbl[-2:] else 0xffffff80)}")
            a("buffer_atomic_add v13, v12, s[8:11], s31 offen sc1")
        else: a("buffer_store_dword v13, v12, s[8:11], s31 offen sc1")
        a("s_mov_b64 exec, -1")
        a.label(lbl)
    def poll(lbl, sreg, nfl, sh=2):
        if ATOM:
            a("s_lshr_b32 s33, s2, 5")
            a(f"s_and_b32 s33, s33, {NREP - 1}")
            a("s_lshl_b32 s33, s33, 14")
            a("v_mov_b32 v1, s33")
            a("s_mov_b32 s33, 0")
            a("s_mov_b64 exec, 1")
            two = PIF == 2 and lbl != "K2_P4A"
            if two:
                a("v_mov_b32 v14, 0")
                a(f"buffer_atomic_add v14, v1, s[8:11], s{sreg} offen sc0 sc1")
                a("s_sleep 5")
            a.label(lbl)
            for cur, nxt in (((14, 15), (15, 14)) if two else ((15, 15),)):
                if POLL_SLEEP: a(f"s_sleep {POLL_SLEEP}")
                a(f"v_mov_b32 v{nxt}, 0")
                a(f"buffer_atomic_add v{nxt}, v1, s[8:11], s{sreg} offen sc0 sc1")
                a("s_add_u32 s33, s33, 1")
                a(f"s_waitcnt vmcnt({1 if two else 0})")
                a(f"v_cmp_eq_u32 vcc, {nfl}, v{cur}")
                a("s_nop 0")
                a(f"s_cbranch_vccnz {lbl}_X")
            a("s_cmp_lt_u32 s33, 0x40000")
            a(f"s_cbranch_scc1 {lbl}")
            a.label(f"{lbl}_X")
            a("s_mov_b64 exec, -1")
            return
        a(f"v_and_b32 v1, {nfl - 1}, v0")
        a(f"v_lshlrev_b32 v1, {sh}, v1")
        a("s_mov_b32 s33, 0")
        if POLL_PRE: a(f"s_sleep {POLL_PRE}")
        a.label(lbl)
        if POLL_SLEEP: a(f"s_sleep {POLL_SLEEP}")
        a(f"buffer_load_dword v15, v1, s[8:11], s{sreg} offen sc1")
        a("s_add_u32 s33, s33, 1")
        a("s_waitcnt vmcnt(0)")
        a("v_cmp_eq_u32 vcc, 1, v15")
        a("s_cmp_gt_u32 s33, 0x40000")
        a(f"s_cbranch_scc1 {lbl}_X")
        a("s_cmp_eq_u64 vcc, -1")
        a(f"s_cbranch_scc0 {lbl}")
        a.label(f"{lbl}_X")
    st(a, 'k1')
    def poll2(lbl, sreg, nfl, sh=2):
        if not POLL2: return poll(lbl, sreg, nfl, sh)
        a(f"v_and_b32 v1, {nfl - 1}, v0")
        a(f"v_lshlrev_b32 v1, {sh}, v1")
        a("s_mov_b32 s33, 0")
        a(f"buffer_load_dword v14, v1, s[8:11], s{sreg} offen sc1")
        a(f"s_sleep {POLL2}")
        a.label(lbl)
        for cur, nxt in ((14, 15), (15, 14)):
            a(f"buffer_load_dword v{nxt}, v1, s[8:11], s{sreg} offen sc1")
            a("s_waitcnt vmcnt(1)")
            a(f"v_cmp_eq_u32 vcc, 1, v{cur}")
            a("s_add_u32 s33, s33, 1")
            a("s_nop 0")
            a("s_cmp_eq_u64 vcc, -1")
            a(f"s_cbranch_scc1 {lbl}_X")
        a("s_cmp_lt_u32 s33, 0x80000")
        a(f"s_cbranch_scc1 {lbl}")
        a.label(f"{lbl}_X")
    a("s_waitcnt vmcnt(0) lgkmcnt(0)")
    a("s_barrier")
    st(a, 'k1b')
    signal("K2_S1")
    def kvdma(c, isv):
        a(f"s_add_u32 m0, s26, {c * 8192 + isv * 65536}")
        a(f"s_add_u32 s29, s27, {c * 8192 + isv * (VF - KF)}")
        V("buffer_load_dwordx4 v2, s[8:11], s29 offen lds", f"c{c}")
    a("s_and_b32 s36, s2, 3")
    a("s_lshl_b32 s36, s36, 2")
    a("s_bfe_u32 s29, s2, 0x20003")
    a("s_add_u32 s36, s36, s29")
    a("s_bfe_u32 s37, s2, 0x10002")
    a("s_lshl_b32 s37, s37, 3")
    a("s_add_u32 s37, s37, s24")
    a("s_min_u32 s38, s22, 6")
    a("s_mul_i32 s39, s37, 7")
    a("s_add_u32 s39, s39, s38")
    a("s_lshl_b32 s54, s39, 5")
    srd(a, 12, 40, 512 * 1792 * 2)
    srd(a, 16, 42, 512 * 1792 * 2)
    a("s_lshl_b32 s55, s22, 12")
    a(f"s_add_u32 s55, s55, {SCR}")
    a("v_lshrrev_b32 v8, 1, v0")
    a("v_mul_u32_u24 v8, 3584, v8")
    a("v_and_b32 v1, 1, v0")
    a("v_lshl_add_u32 v8, v1, 4, v8")
    a("v_lshrrev_b32 v11, 5, v0")
    a("v_bfe_u32 v1, v0, 2, 2")
    a("v_lshl_add_u32 v10, v11, 2, v1")
    a("v_lshlrev_b32 v9, 5, v10")
    a("v_and_b32 v1, 3, v0")
    a("v_lshl_add_u32 v9, v1, 3, v9")
    a("v_bfe_u32 v1, v0, 4, 1")
    a("v_lshl_add_u32 v9, v1, 10, v9")
    a("v_add_u32 v9, s55, v9")
    a("v_and_b32 v12, 15, v0")
    a("v_lshl_add_u32 v12, v11, 4, v12")
    a("v_lshlrev_b32 v12, 4, v12")
    a("v_add_u32 v3, 65536, v12")
    a("s_mov_b32 s34, 0x0000ffff")
    a("s_mov_b32 s35, 0x0000ffff")
    a(f"s_mov_b32 s50, {f32(2.0**60)}")
    for i in range(24):
        a(f"v_mov_b32 v{VR + i}, 0x3f803f80")
    for i in range(16):
        a(f"v_mov_b32 v{O + i}, 0")
    for i in range(4, 8):
        a(f"v_mov_b32 v{P + i}, 0")
    def kread(t): return f"ds_read_b128 {vr(KR + 4 * (t % 3), 4)}, v2 offset:{t * 1024}"
    def vread(t):
        return ["s_mov_b64 exec, s[34:35]"] + \
               [f"ds_read_b128 {vr(VR + 8 * (t % 3) + 4 * j, 4)}, v3 offset:{t * 1024 + j * 512}" for j in range(2)] + \
               ["s_mov_b64 exec, -1"]
    a("s_cmp_eq_u32 s22, 7")
    a("s_cbranch_scc0 K2_B1")
    a("s_lshr_b32 s29, s23, 1")
    a("s_lshl_b32 s29, s29, 8")
    a(f"s_add_u32 s29, s29, {FL1}")
    poll2("K2_P1", 29, 16)
    a.label("K2_B1")
    a("s_mov_b32 m0, s26")
    a("s_barrier")
    st(a, 't1')
    V("buffer_load_dwordx4 v2, s[8:11], s27 offen lds", "c0")
    V(f"buffer_load_dwordx4 {vr(Q, 4)}, v2, s[8:11], s28 offen", "c0")
    a("s_add_u32 m0, s26, 65536")
    a("s_nop 0")
    V("buffer_load_dwordx4 v2, s[8:11], s30 offen lds", "c0")
    kvdma(1, 0); kvdma(1, 1)
    vmwait("c0")
    a("s_barrier")
    st(a, 'a0')
    a(kread(0)); a(kread(1))
    for x in vread(0): a(x)
    a(kread(2))
    for x in vread(1): a(x)
    a("s_waitcnt lgkmcnt(6)")
    s0 = S[0]
    a(MF32(vr(s0, 16), vr(KR, 4), vr(Q, 4), "0"))
    a("s_nop 11")
    for i in range(5):
        a(f"v_max3_f32 v{NEGM + i}, v{s0+3*i}, v{s0+3*i+1}, v{s0+3*i+2}")
    a(f"v_max3_f32 v14, v{NEGM}, v{NEGM+1}, v{s0+15}")
    a(f"v_max3_f32 v15, v{NEGM+2}, v{NEGM+3}, v{NEGM+4}")
    a("v_max_f32 v14, v14, v15")
    def set_negm():
        a("v_mov_b32 v15, v14")
        a("s_nop 1")
        a("v_permlane32_swap_b32 v14, v15")
        a("v_max_f32 v14, v14, v15")
        for i in range(16):
            a(f"v_sub_f32 v{NEGM + i}, 0, v14")
        a("s_nop 1")
    set_negm()
    a(MF32(vr(S[0], 16), vr(KR, 4), vr(Q, 4), vr(NEGM, 16)))
    a("s_nop 8")
    T0 = 12
    cnt = [0]
    def b(ins):
        if K2_Y:
            if cnt[0] == 0: a("s_setprio 0")
            if cnt[0] == K2_Y: a("s_setprio 1")
            if cnt[0] == K2_Y2: a("s_setprio 2")
        cnt[0] += 1
        a(ins)
    for t in range(64):
        if t % K2_PER == 0: cnt[0] = 0
        Sc = S[t % 2]; Sn = S[(t + 1) % 2]
        E = lambda i: b(f"v_exp_f32 v{Sc+i}, v{Sc+i}")
        C = lambda i: b(f"v_cvt_pk_bf16_f32 v{P+i}, v{Sc+2*i}, v{Sc+2*i+1}")
        if t == 0: st(a, 'a1')
        if t == 16: st(a, 'a16')
        if t == 5: vmwait("c1"); a("s_barrier")
        if t == 13: vmwait("c5"); a("s_barrier")
        if t == 24: vmwait("c7"); a("s_barrier")
        nrd = lambda u: (1 if u + 3 < 64 else 0) + (2 if u + 2 < 64 else 0)
        b(f"s_waitcnt lgkmcnt({nrd(t - 1) if t > 0 else 3})")
        if t < 63:
            b(MF32(vr(Sn, 16), vr(KR + 4 * ((t + 1) % 3), 4), vr(Q, 4), vr(NEGM, 16)))
        for i in range(5): E(i)
        b(MF32(vr(O, 16), vr(VR + 8 * ((t - 1) % 3) + 4, 4), vr(P + 4, 4)))
        u, ph = divmod(t - T0 - 5, 3)
        if t >= T0 + 5 and ph == 0 and u < 16:
            vmwait(f"w{u}")
            for s in range(2):
                for e in range(2):
                    a(f"ds_read_b64_tr_b16 {vr(W + 8 * u + 4 * s + 2 * e, 2)}, v9 offset:{(u % 2) * 2048 + s * 512 + e * 256}")
        if t + 3 < 64: b(kread(t + 3))
        if t + 2 < 64:
            for x in vread(t + 2): b(x)
        for i in range(5, 8): E(i)
        for i in range(4): C(i)
        E(8); E(9)
        b(MF32(vr(O, 16), vr(VR + 8 * (t % 3), 4), vr(P, 4)))
        if t < 12: kvdma(2 + t // 2, t % 2)
        u, ph = divmod(t - T0, 3)
        if t >= T0 and ph == 0 and u < 16:
            a(f"s_add_u32 m0, s55, {(u % 2) * 2048}")
            a(f"s_add_u32 s29, s54, {u * 32 * 3584}")
            V("buffer_load_dwordx4 v8, s[12:15], s29 offen lds", f"w{u}")
            a(f"s_add_u32 m0, s55, {(u % 2) * 2048 + 1024}")
            a("s_nop 0")
            V("buffer_load_dwordx4 v8, s[16:19], s29 offen lds", f"w{u}")
        if t == 40 and K2_TCH:
            srd(a, 96, 48, 1792 * 512 * 2)
            a("s_lshl_b32 s29, s2, 3")
            a("s_add_u32 s29, s29, s22")
            a("s_mul_i32 s29, s29, 896")
            a("v_min_u32 v12, 6, v0")
            a("v_lshlrev_b32 v12, 7, v12")
            V("buffer_load_dword v124, v12, s[96:99], s29 offen", "tch")
        if t == 59 and K2_TCH:
            a("s_lshr_b32 s29, s2, 3")
            a("s_lshl_b32 s29, s29, 14")
            a("s_lshl_b32 s31, s22, 11")
            a("s_add_u32 s29, s29, s31")
            srd(a, 96, 44, 512 * 512 * 2)
            a("v_and_b32 v12, 15, v0")
            a("v_lshlrev_b32 v12, 7, v12")
            V("buffer_load_dword v124, v12, s[96:99], s29 offen", "tch")

        for i in range(10, 16): E(i)
        for i in range(4, 8): C(i)
    a("s_setprio 0")
    a("s_lshl_b32 s29, s24, 3")
    a("s_add_u32 s29, s29, s22")
    a(MF32(vr(O, 16), vr(VR + 8 * (63 % 3) + 4, 4), vr(P + 4, 4)))
    a("s_lshl_b32 s31, s24, 8")
    a("s_lshl_b32 s30, s23, 2")
    a("s_add_u32 s31, s31, s30")
    a(f"s_add_u32 s31, s31, {FL2}")
    a("s_lshl_b32 s29, s29, 15")
    a("s_lshl_b32 s30, s23, 10")
    a("s_add_u32 s29, s29, s30")
    a(f"s_add_u32 s29, s29, {OF}")
    a("v_mov_b32 v12, 0")
    a("v_mov_b32 v13, 1")
    a("s_waitcnt lgkmcnt(0)")
    a("s_nop 0")
    a(f"v_cmp_gt_f32 vcc, s50, v{O + 8}")
    a("s_nop 1")
    a("s_cmp_eq_u64 vcc, -1")
    a("s_cbranch_scc0 K2_FALLBACK")
    a.label("K2_FIN")
    a(f"v_rcp_f32 v14, v{O + 8}")
    a("s_nop 0")
    for i in range(8):
        a(f"v_mul_f32 v{O+i}, v14, v{O+i}")
    for i in range(4):
        a(f"v_cvt_pk_bf16_f32 v{P+i}, v{O+2*i}, v{O+2*i+1}")
    a(f"buffer_store_dwordx4 {vr(P, 4)}, v2, s[8:11], s29 offen sc1")
    st(a, 'att')
    srd(a, 12, 44, 512 * 512 * 2)
    srd(a, 16, 46, 2048 * 512 * 2)
    a("s_and_b32 s25, s22, 1")
    a("s_bfe_u32 s26, s22, 0x10001")
    a("s_lshr_b32 s27, s22, 2")
    a("s_lshl_b32 s28, s24, 1")
    a("s_add_u32 s28, s28, s25")
    a("s_lshl_b32 s30, s23, 1")
    a("s_add_u32 s30, s30, s26")
    a("v_lshrrev_b32 v8, 2, v0")
    a("v_lshlrev_b32 v8, 10, v8")
    a("v_and_b32 v1, 3, v0")
    a("v_lshl_add_u32 v8, v1, 4, v8")
    a("v_lshlrev_b32 v9, 6, v10")
    a("v_lshl_add_u32 v9, v1, 3, v9")
    a("v_bfe_u32 v1, v0, 4, 1")
    a("v_lshl_add_u32 v9, v1, 5, v9")
    a("s_lshl_b32 s32, s25, 15")
    a("s_lshl_b32 s33, s27, 14")
    a("s_add_u32 s32, s32, s33")
    a("v_add_u32 v9, s32, v9")
    a("v_and_b32 v3, 31, v0")
    a("v_lshlrev_b32 v3, 10, v3")
    a("v_lshl_add_u32 v3, v11, 4, v3")
    a("s_lshl_b32 s51, s30, 15")
    a("s_lshl_b32 s33, s28, 6")
    a("s_add_u32 s51, s51, s33")
    RES = 112
    a("s_waitcnt vmcnt(0)")
    a("s_barrier")
    def dstore(ins):
        return [ins + " sc1"]
    signal("K2_S2")
    st(a, 'bA')
    a("s_cmp_eq_u32 s22, 7")
    a("s_cbranch_scc1 K2_POLL2")
    a("s_cmp_ge_u32 s22, 4")
    a("s_cbranch_scc1 K2_CS")
    a("s_lshl_b32 s33, s26, 14")
    a("s_add_u32 s52, s32, s33")
    a("s_lshl_b32 s53, s26, 18")
    a("s_lshl_b32 s33, s28, 6")
    a("s_add_u32 s53, s53, s33")
    for i in range(16):
        a(f"s_add_u32 m0, s52, {i * 1024}")
        a(f"s_add_u32 s29, s53, {i * 16384}")
        a("buffer_load_dwordx4 v8, s[12:15], s29 offen lds")
    for j in range(2):
        a(f"buffer_load_dwordx4 {vr(RES + 4 * j, 4)}, v3, s[16:19], s51 offen offset:{j * 32}")
    a.label("K2_CS")
    a("s_mov_b32 s29, 0x3f803f80")
    for i in range(4): a(f"v_mov_b32 v{124 + i}, 0")
    for i in range(128):
        a(f"v_dot2c_f32_bf16 v{124 + i % 4}, s29, v{W + i}")
    a("s_nop 2")
    a("v_add_f32 v124, v124, v125")
    a("v_add_f32 v126, v126, v127")
    a("v_add_f32 v126, v124, v126")
    a("v_cvt_pk_bf16_f32 v124, v126, v126")
    a("v_lshlrev_b32 v125, 16, v124")
    a("v_sub_f32 v125, v126, v125")
    a("v_cvt_pk_bf16_f32 v125, v125, v125")
    a("v_mov_b32 v126, 0")
    a("v_mov_b32 v127, 0")
    a("s_waitcnt vmcnt(0)")
    a("s_branch K2_B2")
    a.label("K2_POLL2")
    a("s_lshr_b32 s29, s23, 2")
    a("s_lshl_b32 s29, s29, 8")
    a(f"s_add_u32 s29, s29, {FL2}")
    poll2("K2_P2", 29, 32)
    a.label("K2_B2")
    a("s_lshl_b32 s29, s25, 15")
    a("s_lshr_b32 s33, s22, 1")
    a("s_lshl_b32 s33, s33, 12")
    a("s_add_u32 s29, s29, s33")
    a("s_lshl_b32 s33, s23, 16")
    a("s_add_u32 s33, s33, s29")
    a(f"s_add_u32 s33, s33, {OF}")
    a("s_add_u32 s52, s33, 16384")
    a(f"s_add_u32 m0, s29, {65536 + 16384}")
    a("s_barrier")
    st(a, 't2')
    for i in range(4):
        a(f"buffer_load_dwordx4 v2, s[8:11], s52 offen offset:{i * 1024} {LD_SC} lds")
    a("s_add_u32 m0, s29, 65536")
    a("s_nop 0")
    for i in range(4):
        a(f"buffer_load_dwordx4 v2, s[8:11], s33 offen offset:{i * 1024} {LD_SC} lds")
    A3 = 16; WO = 32; OB = 96
    for s in range(16):
        for e in range(2):
            a(f"ds_read_b64_tr_b16 {vr(WO + 4 * s + 2 * e, 2)}, v9 offset:{s * 1024 + e * 512}")
    a("s_lshl_b32 s29, s26, 15")
    a("s_lshl_b32 s33, s27, 14")
    a("s_add_u32 s29, s29, s33")
    a("s_add_u32 s29, s29, 65536")
    a("v_add_u32 v8, s29, v2")
    a("s_and_b32 s29, s22, 3")
    a("s_lshl_b32 s29, s29, 12")
    a(f"s_add_u32 s29, s29, {SCR}")
    a("v_add_u32 v9, s29, v2")
    def omm(first, hooks):
        rd = lambda s: f"ds_read_b128 {vr(OB + 4 * (s % 4), 4)}, v8 offset:{s * 1024}"
        for s in range(3): a(rd(s))
        for s in range(16):
            left = 15 - s
            if left >= 3: a(rd(s + 3))
            a(f"s_waitcnt lgkmcnt({min(left, 3) + hooks.get(('x', s), 0)})")
            a(MF32(vr(A3, 16), vr(WO + 4 * s, 4), vr(OB + 4 * (s % 4), 4), first if s == 0 else None))
            for x in hooks.get(s, []): a(x)
    a("s_cmp_lt_u32 s22, 4")
    a("s_cbranch_scc1 K2_O_LO")
    a("s_waitcnt vmcnt(4) lgkmcnt(0)")
    a("s_barrier")
    omm("0", {O_B1: ["s_waitcnt vmcnt(0)", "s_barrier"]})
    st(a, 'om')
    a("s_nop 11")
    for q in range(4):
        a(f"ds_write_b128 v9, {vr(A3 + 4 * q, 4)} offset:{q * 1024}")
    a("s_waitcnt lgkmcnt(0)")
    a("s_barrier")
    a("s_lshr_b32 s31, s23, 1")
    a("s_lshl_b32 s31, s31, 8")
    a("s_and_b32 s33, s23, 1")
    a("s_lshl_b32 s33, s33, 3")
    a("s_add_u32 s33, s33, s24")
    a("s_lshl_b32 s33, s33, 2")
    a("s_add_u32 s31, s31, s33")
    a(f"s_add_u32 s31, s31, {FL3}")
    a("s_lshl_b32 s29, s36, 8")
    a(f"s_add_u32 s29, s29, {FL3}")
    a("s_barrier")
    signal("K2_S3", True)
    a("s_cmp_eq_u32 s22, 7")
    a("s_cbranch_scc0 K2_B3")
    poll2("K2_P3", 29, 16)
    a("s_branch K2_B3")
    a.label("K2_O_LO")
    for j in range(2):
        a(f"v_permlane32_swap_b32 v{RES + 4 * j}, v{RES + 4 * j + 2}")
        a(f"v_permlane32_swap_b32 v{RES + 4 * j + 1}, v{RES + 4 * j + 3}")
    a("s_mov_b32 s29, 0xffff0000")
    for i in range(8):
        a(f"v_lshlrev_b32 v{A3 + 2 * i}, 16, v{RES + i}")
        a(f"v_and_b32 v{A3 + 1 + 2 * i}, s29, v{RES + i}")
    a("s_lshl_b32 s52, s30, 15")
    a("s_lshl_b32 s33, s28, 11")
    a("s_add_u32 s52, s52, s33")
    a(f"s_add_u32 s52, s52, {HF}")
    a("s_lshl_b32 s53, s30, 12")
    a("s_lshl_b32 s33, s28, 8")
    a("s_add_u32 s53, s53, s33")
    a(f"s_add_u32 s53, s53, {ST}")
    a("v_lshlrev_b32 v3, 3, v0")
    a("s_mov_b32 s29, 0x3f803f80")
    a("v_mov_b32 v14, 0")
    a("v_mov_b32 v15, 0")
    a("s_waitcnt vmcnt(4) lgkmcnt(0)")
    a("s_barrier")
    a("s_waitcnt vmcnt(0)")
    a("s_barrier")
    omm(None, {13: ["s_barrier"] + [f"ds_read_b128 {vr(32 + 4 * q, 4)}, v9 offset:{q * 1024}" for q in range(4)],
               ('x', 14): 4, ('x', 15): 4})
    st(a, 'om')
    a("s_nop 10")
    o = 112
    for q in range(4):
        a(f"s_waitcnt lgkmcnt({3 - q})")
        for i in range(4 * q, 4 * q + 4):
            a(f"v_add_f32 v{A3 + i}, v{A3 + i}, v{32 + i}")
        for i in range(2 * q, 2 * q + 2):
            a(f"v_cvt_pk_bf16_f32 v{o + i}, v{A3 + 2 * i}, v{A3 + 2 * i + 1}")
        if q % 2:
            j = q // 2
            for x in dstore(f"buffer_store_dwordx4 {vr(o + 4 * j, 4)}, v2, s[8:11], s52 offen offset:{j * 1024}"): a(x)
    for i in range(8):
        a(f"v_dot2c_f32_bf16 v14, s29, v{o + i}")
        a(f"v_dot2c_f32_bf16 v15, v{o + i}, v{o + i}")
    a("s_nop 2")
    a("v_mov_b32 v16, v14")
    a("v_mov_b32 v17, v15")
    a("s_nop 0")
    a("v_permlane32_swap_b32 v14, v16")
    a("v_permlane32_swap_b32 v15, v17")
    a("v_add_f32 v14, v14, v16")
    a("v_add_f32 v15, v15, v17")
    a("s_mov_b64 exec, 0xffffffff")
    for x in dstore("buffer_store_dwordx2 v[14:15], v3, s[8:11], s53 offen"): a(x)
    a("s_mov_b64 exec, -1")
    a("s_waitcnt vmcnt(0)")
    a("s_barrier")
    a.label("K2_B3")
    st(a, 'hw')
    a("v_add_u32 v3, 65536, v2")
    a("v_and_b32 v8, 31, v0")
    a("v_lshlrev_b32 v8, 4, v8")
    a(f"v_add_u32 v8, {SCR}, v8")
    a(f"s_mul_i32 s32, s36, {4 * 112 * 1024}")
    a("s_lshl_b32 s33, s39, 10")
    a("s_add_u32 s32, s32, s33")
    a(f"s_add_u32 s32, s32, {GF}")
    a("s_and_b32 s25, s22, 3")
    a(f"s_and_b32 s57, s37, {G_PERM}")
    a("s_lshl_b32 s57, s57, 1")
    a("s_xor_b32 s33, s25, s57")
    a("s_lshl_b32 s30, s36, 2")
    a("s_add_u32 s30, s30, s33")
    a(f"s_mul_i32 s33, s57, {112 * 1024}")
    a(f"s_sub_u32 s56, {2 * 112 * 1024}, s33")
    a("s_add_u32 s56, s56, s32")
    a("s_add_u32 s32, s32, s33")
    CNT = SCR + 2048; SPARE = SCR + 4096; WD = 128; KS = 14
    a(f"v_mov_b32 v4, {CNT}")
    a("v_mov_b32 v5, 1")
    def hread(dst, tt, s):
        return f"ds_read_b128 {vr(dst, 4)}, v{2 + tt // 2} offset:{(tt % 2) * 32768 + s * 1024}"
    def epi(g, z, st, tt):
        u = g + 8; o = []
        ve, a0, a1 = f"v{st+1}", f"v{st+2}", f"v{st+3}"
        o += [f"v_mul_f32 v{z+i}, v{g+i}, v{g+i}" for i in range(8)]
        o += [f"v_fma_f32 v{z+i}, v{z+i}, {a1}, {a0}" for i in range(8)]
        o += [f"v_mul_f32 v{z+i}, v{z+i}, v{g+i}" for i in range(8)]
        for i in range(8):
            o += [f"v_exp_f32 v{z+i}, v{z+i}", f"v_mul_f32 v{g+i}, v{g+i}, v{u+i}"]
        o += [f"v_fma_f32 v{z+i}, v{z+i}, {ve}, {ve}" for i in range(8)]
        o += [f"v_rcp_f32 v{z+i}, v{z+i}" for i in range(8)]
        o += [f"s_add_u32 s29, s{32 if tt < 2 else 56}, {(tt % 2) * 112 * 1024}"]
        o += [f"v_mul_f32 v{g+i}, v{g+i}, v{z+i}" for i in range(8)]
        o += [f"v_cvt_pk_bf16_f32 v{u+i}, v{g+2*i}, v{g+2*i+1}" for i in range(4)]
        o += dstore(f"buffer_store_dwordx4 {vr(u, 4)}, v2, s[8:11], s29 offen")
        return o
    ACC = 16; HB = 32; ZB = 80; SB = 88; TB = 92; NR = 12; STR = [96, 100, 104, 108]
    a(f"v_mov_b32 v{TB + 2}, 0")
    a(f"v_mov_b32 v{TB + 3}, 0")
    def cwait(tag, off, val=7, reg=4):
        a("s_mov_b32 s33, 0")
        a.label(f"K2_WC{tag}")
        a(f"ds_read_b32 v6, v{reg} offset:{off}")
        a("s_add_u32 s33, s33, 1")
        a("s_waitcnt lgkmcnt(0)")
        a(f"v_cmp_eq_u32 vcc, {val}, v6")
        a("s_cmp_gt_u32 s33, 0x100000")
        a(f"s_cbranch_scc1 K2_WX{tag}")
        a(f"s_cbranch_vccnz K2_WX{tag}")
        a("s_sleep 2")
        a(f"s_branch K2_WC{tag}")
        a.label(f"K2_WX{tag}")
    ntile = [0]
    def tile(tt, hooks, pre=None, last=False, late=False):
        a("s_setprio 1")
        rd = lambda ks: hread(HB + 4 * (ks % NR), tt, ks)
        if pre is None:
            for ks in range(NR - 1): a(rd(ks))
        for ks in range(32):
            if ks + NR - 1 < 32: a(rd(ks + NR - 1))
            if ks % 4 == 0:
                a(f"s_waitcnt lgkmcnt({min(ks + NR - 1, 31) - (ks + 3)})")
            a(MF32(vr(ACC, 16), vr(W + 4 * ks, 4), vr(HB + 4 * (ks % NR), 4), "0" if ks == 0 else None))
            if ks == G_P2: a("s_setprio 2")
            if ks == G_EA and tt == 2:
                a("s_waitcnt vmcnt(0)")
                a("s_mov_b64 exec, 1")
                a("ds_add_u32 v4, v5 offset:16")
                a("s_mov_b64 exec, -1")
            if ks == 28 and tt < 3:
                a("s_mov_b64 exec, 1")
                a(f"ds_add_u32 v4, v5 offset:{tt * 4}")
                a("s_mov_b64 exec, -1")
            if not late:
                if ks == 22: a(f"ds_read_b128 {vr(SB, 4)}, v8 offset:{tt * 512}")
                if ks == 29:
                    a(f"v_mov_b32 v{TB}, v{SB}")
                    a(f"v_mov_b32 v{TB + 1}, v{SB}")
            for x in hooks.get(ks, []): a(x)
        if late:
            a(f"ds_read_b128 {vr(SB, 4)}, v8 offset:{tt * 512}")
            a("s_waitcnt lgkmcnt(0)")
            a(f"v_mov_b32 v{TB}, v{SB}")
            a(f"v_mov_b32 v{TB + 1}, v{SB}")
            a("s_nop 1")
        a(MF32(vr(ACC, 16), vr(124, 4), vr(TB, 4)))
        a("s_setprio 0")
        for x in hooks.get("post", []): a(x)
        if tt == 2:
            ntile[0] += 1
            cwait(f"T{ntile[0]}", 24, 1)
        if not last:
            for ks in range(NR - 1): a(hread(HB + 4 * ks, tt + 1, ks))
        else:
            a("s_nop 10")
        for x in epi(ACC, ZB, SB, tt): a(x)
    a("s_lshl_b32 s26, s36, 17")
    a(f"s_add_u32 s26, s26, {HF}")
    a("s_lshl_b32 s33, s57, 15")
    a("s_sub_u32 s27, 65536, s33")
    a("s_add_u32 s27, s27, s26")
    a("s_add_u32 s26, s26, s33")
    a("s_lshl_b32 s28, s22, 12")
    a("s_add_u32 s29, s26, s28")
    a("s_mov_b32 m0, s28")
    a("s_lshl_b32 s52, s30, 12")
    a(f"s_add_u32 s52, s52, {ST}")
    a("s_lshl_b32 s53, s25, 9")
    a("v_add_u32 v9, s53, v8")
    a("v_and_b32 v1, 31, v0")
    a("v_lshlrev_b32 v1, 3, v1")
    a("v_lshl_add_u32 v1, v11, 11, v1")
    a("s_barrier")
    st(a, 't3')
    for i in range(4):
        a(f"buffer_load_dwordx4 v2, s[8:11], s29 offen offset:{i * 1024} {LD_SC} lds")
    a("s_cmp_lt_u32 s22, 4")
    a("s_cbranch_scc1 K2_GA")
    a("s_lshl_b32 s28, s25, 13")
    def hdma(tt, groups, base):
        for g in groups:
            a(f"s_add_u32 m0, {base}, {tt * 32768 + g * 4096}")
            a(f"s_add_u32 s29, s{26 if tt < 2 else 27}, {(tt % 2) * 32768 + g * 4096}")
            if base != "0": a(f"s_add_u32 s29, s29, {base}")
            for i in range(4):
                a(f"buffer_load_dwordx4 v2, s[8:11], s29 offen offset:{i * 1024} {LD_SC} lds")
    for q in range(8):
        a(f"buffer_load_dwordx2 {vr(STR[q // 2] + 2 * (q % 2), 2)}, v1, s[8:11], s52 offen offset:{q * 256} sc1")
    hdma(1, range(1), "s28")
    a("v_mov_b32 v6, 0")
    a("v_mov_b32 v7, 0")
    for q in range(4):
        a(f"ds_write_b64 v4, v[6:7] offset:{q * 8}")
    a("s_waitcnt vmcnt(12) lgkmcnt(0)")
    a("s_barrier")
    st(a, 'g1')
    hdma(1, range(1, 2), "s28")
    r0 = STR[0]
    SQ = []
    for q in range(1, 4):
        SQ += [f"v_add_f32 v{r0 + i}, v{r0 + i}, v{STR[q] + i}" for i in range(4)]
    SQ += [f"v_add_f32 v12, v{r0}, v{r0 + 2}", f"v_add_f32 v13, v{r0 + 1}, v{r0 + 3}",
           "v_mov_b32 v14, v12", "v_mov_b32 v15, v13", "s_nop 0",
           "v_permlane32_swap_b32 v12, v14", "v_permlane32_swap_b32 v13, v15",
           "v_add_f32 v12, v12, v14", "v_add_f32 v13, v13, v15",
           f"v_mul_f32 v12, {f32(-1/512)}, v12", f"v_mul_f32 v13, {f32(1/512)}, v13",
           "v_fma_f32 v13, -v12, v12, v13", "v_max_f32 v13, 0, v13", f"v_add_f32 v{r0 + 1}, {f32(EPS)}, v13",
           f"v_rsq_f32 v14, v{r0 + 1}", "v_cvt_pk_bf16_f32 v15, v12, v12", "v_lshlrev_b32 v15, 16, v15",
           "v_sub_f32 v12, v12, v15", f"v_cvt_pk_bf16_f32 v{r0}, v15, v12",
           f"v_mul_f32 v{r0 + 2}, {f32(-K1C)}, v14", "v_mul_f32 v14, v14, v14", f"v_mul_f32 v14, v14, v{r0 + 2}",
           f"v_mul_f32 v{r0 + 3}, {f32(0.044715)}, v14"]
    a("s_waitcnt vmcnt(8)")
    for x in SQ: a(x)
    a(f"ds_write_b128 v9, {vr(r0, 4)}")
    hdma(2, range(2), "s28")
    a("s_waitcnt lgkmcnt(0)")
    a("s_barrier")
    st(a, 'g2')
    a("s_cmp_eq_u32 s22, 7")
    a("s_cbranch_scc1 K2_W7")
    tile(0, {GB3: ["s_waitcnt vmcnt(0)", "s_barrier"]})
    tile(1, {}, pre=1); tile(2, {}, pre=1)
    tile(3, {}, pre=1, last=True)
    a("s_branch K2_DOWN")
    a.label("K2_W7")
    hdma(3, range(8), "0")
    a("s_waitcnt vmcnt(32)")
    a("s_barrier")
    srd(a, 12, 48, 1792 * 512 * 2)
    a("v_lshrrev_b32 v8, 2, v0")
    a("v_lshlrev_b32 v8, 10, v8")
    a("v_and_b32 v1, 3, v0")
    a("v_lshl_add_u32 v8, v1, 4, v8")
    a("v_lshlrev_b32 v9, 6, v10")
    a("v_lshl_add_u32 v9, v1, 3, v9")
    a("v_bfe_u32 v1, v0, 4, 1")
    a("v_lshl_add_u32 v9, v1, 5, v9")
    a(f"v_add_u32 v9, {SPARE}, v9")
    a("s_lshl_b32 s26, s24, 7")
    ko = lambda s_: s_ + (7 if s_ >= 7 else 0)
    a("s_and_b32 s52, s23, 1")
    a(f"s_mul_i32 s27, s52, {7 * 16384}")
    a("s_add_u32 s27, s27, s26")
    for j in range(28):
        a(f"s_mov_b32 m0, {SPARE + j * 1024}")
        a(f"s_add_u32 s29, s27, {(84 + ko(j // 2)) * 16384 + (1 ^ (j % 2)) * 64}")
        a("buffer_load_dwordx4 v8, s[12:15], s29 offen lds")
    a("s_waitcnt vmcnt(28)")
    a("ds_write_b32 v4, v5 offset:24")
    a("s_waitcnt vmcnt(0)")
    for j in range(28):
        for e in range(2):
            a(f"ds_read_b64_tr_b16 {vr(WD + 4 * j + 2 * e, 2)}, v9 offset:{j * 1024 + e * 512}")
    a("s_waitcnt lgkmcnt(0)")
    a("s_xor_b32 s53, s52, 1")
    a(f"s_mul_i32 s53, s53, {7 * 16384}")
    a("s_add_u32 s53, s53, s26")
    def sdma(w, j, lds):
        a(f"s_mov_b32 m0, {lds}")
        a(f"s_add_u32 s29, s{53 if w < 4 else 27}, {(28 * (w % 4) + ko(j // 2)) * 16384 + ((w % 2) ^ (j % 2)) * 64}")
        a("buffer_load_dwordx4 v8, s[12:15], s29 offen lds")
    for w in range(4):
        for j in range(7): sdma(w, j, SPARE + w * 7168 + j * 1024)
    for r in range(3):
        if r == 2:
            a("s_lshl_b32 s31, s36, 8")
            a("s_lshl_b32 s33, s37, 2")
            a("s_add_u32 s31, s31, s33")
            a(f"s_add_u32 s31, s31, {FL4 + 128}")
            a("v_mov_b32 v12, 0")
            a("v_mov_b32 v13, 1")
            cwait("A", 16)
            signal("K2_S4A")
        cwait(r, r * 4)
        for w in range(4): sdma(w, 7 + r, r * 32768 + 28672 + w * 1024)
        for j in range(28): sdma(4 + r, j, r * 32768 + j * 1024)
        if r == 2:
            a("s_waitcnt vmcnt(28)")
            a("ds_write_b32 v4, v5 offset:20")
    a("s_branch K2_DOWN")
    a.label("K2_GA")
    a("s_waitcnt vmcnt(0)")
    a("s_barrier")
    st(a, 'g1')
    tile(0, {31: ["s_barrier"]}, late=True, last=True)
    st(a, 'g2')
    a("s_barrier")
    tile(1, {}); tile(2, {}, pre=1)
    tile(3, {}, pre=1, last=True)
    a.label("K2_DOWN")
    st(a, 'gu')
    AC5 = 16; GS = [80, 88, 96, 104, 240, 248, 120]; NG = len(GS)
    srd(a, 12, 48, 1792 * 512 * 2)
    srd(a, 16, 62, 2048 * 512 * 2)
    a("s_lshl_b32 s31, s36, 8")
    a("s_lshl_b32 s33, s37, 2")
    a("s_add_u32 s31, s31, s33")
    a(f"s_add_u32 s31, s31, {FL4}")
    a("s_and_b32 s26, s22, 1")
    a("s_bfe_u32 s27, s22, 0x10001")
    a("s_lshl_b32 s28, s24, 1")
    a("s_add_u32 s28, s28, s26")
    a("s_lshl_b32 s30, s23, 1")
    a("s_add_u32 s30, s30, s27")
    a("s_lshr_b32 s33, s22, 2")
    a("s_xor_b32 s33, s33, s23")
    a("s_and_b32 s33, s33, 1")
    a("s_xor_b32 s57, s33, 1")
    a("s_lshl_b32 s33, s25, 2")
    a("s_add_u32 s33, s33, s57")
    a("s_mul_i32 s29, s33, 7168")
    a(f"s_mul_i32 s52, s30, {112 * 1024}")
    a("s_add_u32 s52, s52, s29")
    a(f"s_add_u32 s52, s52, {GF}")
    a("s_xor_b32 s53, s30, 1")
    a(f"s_mul_i32 s53, s53, {112 * 1024}")
    a("s_add_u32 s53, s53, s29")
    a(f"s_add_u32 s53, s53, {GF}")
    a(f"s_mul_i32 s29, s33, {7 * 16384}")
    a("s_lshl_b32 s54, s28, 6")
    a("s_xor_b32 s55, s54, 64")
    a("s_add_u32 s54, s54, s29")
    a("s_add_u32 s55, s55, s29")
    a("s_lshl_b32 s32, s22, 12")
    a("v_lshrrev_b32 v8, 2, v0")
    a("v_lshlrev_b32 v8, 10, v8")
    a("v_and_b32 v1, 3, v0")
    a("v_lshl_add_u32 v8, v1, 4, v8")
    a("v_lshlrev_b32 v9, 6, v10")
    a("v_lshl_add_u32 v9, v1, 3, v9")
    a("v_bfe_u32 v1, v0, 4, 1")
    a("v_lshl_add_u32 v9, v1, 5, v9")
    a("v_mov_b32 v12, 0")
    a("v_mov_b32 v13, 1")
    a("v_and_b32 v3, 31, v0")
    a("v_lshlrev_b32 v3, 10, v3")
    a("v_lshl_add_u32 v3, v11, 4, v3")
    def trd(j, reg, off):
        return [f"ds_read_b64_tr_b16 {vr(WD + 4 * j + 2 * e, 2)}, v{reg} offset:{off + e * 512}" for e in range(2)]
    def wdma(j, sreg, off):
        a(f"s_add_u32 m0, s{sreg}, {off}")
        a(f"s_add_u32 s29, s{54 + j % 2}, {ko(j // 2) * 16384}")
        V("buffer_load_dwordx4 v8, s[12:15], s29 offen lds", "wd")
    def dumpaddr():
        for t in range(4):
            a(f"s_xor_b32 s29, s25, {t}")
            a("s_lshl_b32 s29, s29, 15")
            a("s_add_u32 s29, s29, s32")
            a(f"v_add_u32 v{4 + t}, s29, v2")
    gb = [0]
    def gload(s):
        k = ko(s) * 1024
        if k - gb[0] > 3072:
            a(f"s_add_u32 s52, s52, {k - gb[0]}")
            a(f"s_add_u32 s53, s53, {k - gb[0]}")
            gb[0] = k
        for i in range(2):
            V(f"buffer_load_dwordx4 {vr(GS[s % NG] + 4 * i, 4)}, v2, s[8:11], s{52 + i} offen offset:{k - gb[0]} sc1", f"g{s}")
    def kloop(hooks, fills):
        issued = NG; fq = []
        for s in range(KS):
            for x in hooks.get(s, []):
                x() if callable(x) else a(x)
            fq += fills.get(s, [])
            vmwait(f"g{s}")
            g = GS[s % NG]; w = WD + 8 * s
            B0, B1, A0, A1 = vr(g, 4), vr(g + 4, 4), vr(w, 4), vr(w + 4, 4)
            C = "0" if s == 0 else None
            for d_, A_, B_ in ((AC5 + 32, A0, B1), (AC5 + 16, A1, B0), (AC5 + 48, A1, B1), (AC5, A0, B0)):
                a(MF32(vr(d_, 16), A_, B_, C))
                for _ in range(5):
                    if fq: a(fq.pop(0))
            if issued < KS:
                gload(issued); issued += 1
        assert not fq
    def dump(ts):
        for t in ts:
            for q in range(4):
                a(f"ds_write_b128 v{4 + t}, {vr(AC5 + 16 * t + 4 * q, 4)} offset:{q * 1024}")
    a("s_cmp_lt_u32 s22, 4")
    a("s_cbranch_scc1 K2_DLO")
    a("s_lshl_b32 s29, s25, 15")
    a("v_add_u32 v9, s29, v9")
    dumpaddr()
    a("s_waitcnt vmcnt(0)")
    a("s_barrier")
    signal("K2_S4", True)
    st(a, 'z0')
    del vm[:]; gb[0] = 0
    for s in range(NG): gload(s)
    a("s_cmp_eq_u32 s22, 7")
    a("s_cbranch_scc1 K2_D7")
    for j in range(28):
        for x in trd(j, 9, j * 1024): a(x)
    a.label("K2_D7")
    a("s_waitcnt lgkmcnt(0)")
    kloop({D_ZS: ["s_barrier"]}, {})
    st(a, 't4'); st(a, 'dk'); st(a, 'db'); st(a, 'ds')
    a("s_nop 8")
    dump((2, 1, 3, 0))
    a("s_waitcnt lgkmcnt(0)")
    a("s_barrier")
    stamp_end(a, 0, 7, 8)
    a("s_endpgm")
    a.label("K2_DLO")
    del vm[:]; gb[0] = 0
    a("s_mul_i32 s26, s25, 7168")
    a(f"s_add_u32 s26, s26, {SPARE}")
    a("s_lshl_b32 s27, s25, 10")
    a("s_add_u32 s27, s27, 28672")
    a("s_lshl_b32 s28, s25, 13")
    a("s_add_u32 s28, s28, 98304")
    a("v_add_u32 v10, s26, v9")
    a("v_add_u32 v14, s27, v9")
    a("v_add_u32 v15, 65536, v14")
    a("v_add_u32 v9, s28, v9")
    SL = [(26, k * 1024, 10, k * 1024) for k in range(7)] + [(27, 0, 14, 0), (27, 32768, 14, 32768), (27, 65536, 15, 0)]
    cwait("R", 20, 1)
    for k in range(10):
        for x in trd(k, SL[k][2], SL[k][3]): a(x)
    a("s_waitcnt vmcnt(0) lgkmcnt(0)")
    for k in range(10): wdma(10 + k, SL[k][0], SL[k][1])
    a("s_cmp_eq_u32 s22, 3")
    a("s_cbranch_scc0 K2_NPA")
    a("v_mov_b32 v16, v15")
    a("s_lshr_b32 s29, s23, 1")
    a("s_lshl_b32 s29, s29, 8")
    a("s_xor_b32 s30, s57, 1")
    a("s_lshl_b32 s33, s30, 2")
    a("s_add_u32 s29, s29, s33")
    a(f"s_add_u32 s29, s29, {FL4 + 128}")
    poll("K2_P4A", 29, 8, 3)
    a("v_mov_b32 v15, v16")
    if G_ET:
        a("s_lshl_b32 s33, s24, 1")
        a("s_add_u32 s29, s30, s33")
        a("s_mul_i32 s29, s29, 7168")
        a(f"s_mul_i32 s33, s23, {224 * 1024}")
        a("s_add_u32 s29, s29, s33")
        a(f"s_add_u32 s29, s29, {GF}")
        a("v_min_u32 v1, 55, v0")
        a("v_lshlrev_b32 v1, 7, v1")
        a("buffer_load_dword v17, v1, s[8:11], s29 offen sc1")
        a(f"s_add_u32 s29, s29, {112 * 1024}")
        a("buffer_load_dword v17, v1, s[8:11], s29 offen sc1")
    a.label("K2_NPA")
    dumpaddr()
    a("s_barrier")
    st(a, 'z0')
    for k in range(8): wdma(20 + k, 28, k * 1024)
    a("s_waitcnt vmcnt(8)")
    for k in range(10):
        for x in trd(10 + k, SL[k][2], SL[k][3]): a(x)
    a("s_lshl_b32 s29, s25, 15")
    a("v_add_u32 v8, s29, v2")
    a(f"v_mov_b32 v12, {CNT + 12}")
    a("s_waitcnt vmcnt(0)")
    for k in range(8):
        for x in trd(20 + k, 9, k * 1024): a(x)
    for t in range(1, 4):
        a(f"s_xor_b32 s33, s25, {t}")
        a("s_lshl_b32 s33, s33, 12")
        a(f"v_add_u32 v{(10, 11, 4)[t - 1]}, s33, v8")
    a("s_waitcnt lgkmcnt(0)")
    a("s_barrier")
    a("s_cmp_eq_u32 s22, 0")
    a("s_cbranch_scc0 K2_DSP")
    a("s_lshr_b32 s29, s23, 1")
    a("s_lshl_b32 s29, s29, 8")
    a("s_lshl_b32 s33, s57, 2")
    a("s_add_u32 s29, s29, s33")
    a(f"s_add_u32 s29, s29, {FL4}")
    poll2("K2_P4", 29, 8, 3)
    a("ds_write_b32 v12, v13")
    a("s_branch K2_DGO")
    a.label("K2_DSP")
    a("s_mov_b32 s33, 0")
    a.label("K2_DSL")
    a("s_sleep 1")
    a("ds_read_b32 v15, v12")
    a("s_add_u32 s33, s33, 1")
    a("s_waitcnt lgkmcnt(0)")
    a("v_cmp_eq_u32 vcc, 1, v15")
    a("s_cmp_gt_u32 s33, 0x400000")
    a("s_cbranch_scc1 K2_DGO")
    a("s_cbranch_vccz K2_DSL")
    a.label("K2_DGO")
    st(a, 't4')
    del vm[:]
    for s in range(NG): gload(s)
    a("s_mov_b32 s56, 0xffff0000")
    a("s_waitcnt lgkmcnt(0)")
    F1 = [f"ds_read_b128 {vr(WD + 16 * p_ + 4 * q, 4)}, v8 offset:{16384 + p_ * 4096 + q * 1024}" for p_ in range(4) for q in range(4)]
    F2 = [f"v_add_f32 v{WD + i}, v{WD + i}, v{WD + 16 + i}" for i in range(16)]
    F2 += [f"v_add_f32 v{WD + 32 + i}, v{WD + 32 + i}, v{WD + 48 + i}" for i in range(16)]
    F2 += [f"v_add_f32 v{WD + i}, v{WD + i}, v{WD + 32 + i}" for i in range(16)]
    for i in range(8):
        F2 += [f"v_lshlrev_b32 v{WD + 16 + 2 * i}, 16, v{112 + i}", f"v_and_b32 v{WD + 17 + 2 * i}, s56, v{112 + i}"]
    F2 += [f"v_add_f32 v{WD + i}, v{WD + i}, v{WD + 16 + i}" for i in range(16)]
    kloop({8: ["s_barrier"], 10: ["s_waitcnt lgkmcnt(0)"]}, {8: F1, 10: F2})
    st(a, 'dk')
    dump((2, 1, 3))
    for i in range(16):
        a(f"v_add_f32 v{AC5 + i}, v{AC5 + i}, v{WD + i}")
    a("s_waitcnt lgkmcnt(0)")
    a("s_barrier")
    st(a, 'db')
    for t in range(3):
        for q in range(4):
            a(f"ds_read_b128 {vr(WD + 16 * t + 4 * q, 4)}, v{(10, 11, 4)[t]} offset:{q * 1024}")
    for t in range(3):
        a(f"s_waitcnt lgkmcnt({8 - 4 * t})")
        for i in range(0, 16, 2):
            a(f"v_pk_add_f32 {vr(AC5 + i, 2)}, {vr(AC5 + i, 2)}, {vr(WD + 16 * t + i, 2)}")
    o = AC5 + 16
    for i in range(8):
        a(f"v_cvt_pk_bf16_f32 v{o + i}, v{AC5 + 2 * i}, v{AC5 + 2 * i + 1}")
    a("s_nop 0")
    for j in range(2):
        a(f"v_permlane32_swap_b32 v{o + 4 * j}, v{o + 4 * j + 2}")
        a(f"v_permlane32_swap_b32 v{o + 4 * j + 1}, v{o + 4 * j + 3}")
    for j in range(2):
        a(f"buffer_store_dwordx4 {vr(o + 4 * j, 4)}, v3, s[16:19], s51 offen offset:{j * 32}")
    st(a, 'ds')
    stamp_end(a, 0, 7, 8)
    a("s_endpgm")
    a.label("K2_FALLBACK")
    a("v_mov_b32 v1, v2")
    a("v_mov_b32 v14, 0xff800000")
    a("s_mov_b32 s33, 0")
    a.label("K2_FB1")
    a(f"ds_read_b128 {vr(KR, 4)}, v1")
    a("v_add_u32 v1, 1024, v1")
    a("s_waitcnt lgkmcnt(0)")
    a(MF32(vr(s0, 16), vr(KR, 4), vr(Q, 4), "0"))
    a("s_nop 11")
    for i in range(0, 16, 2):
        a(f"v_max3_f32 v14, v14, v{s0+i}, v{s0+i+1}")
    a("s_add_u32 s33, s33, 1")
    a("s_cmp_lt_u32 s33, 64")
    a("s_cbranch_scc1 K2_FB1")
    set_negm()
    for i in range(16):
        a(f"v_mov_b32 v{O + i}, 0")
    a("v_mov_b32 v1, v2")
    a("s_mov_b32 s33, 0")
    a.label("K2_FB2")
    a(f"ds_read_b128 {vr(KR, 4)}, v1")
    a("s_mov_b64 exec, s[34:35]")
    a(f"ds_read_b128 {vr(VR, 4)}, v3")
    a(f"ds_read_b128 {vr(VR + 4, 4)}, v3 offset:512")
    a("s_mov_b64 exec, -1")
    a("v_add_u32 v1, 1024, v1")
    a("v_add_u32 v3, 1024, v3")
    a("s_waitcnt lgkmcnt(0)")
    a(MF32(vr(s0, 16), vr(KR, 4), vr(Q, 4), vr(NEGM, 16)))
    a("s_nop 11")
    for i in range(16): a(f"v_exp_f32 v{s0+i}, v{s0+i}")
    a("s_nop 0")
    for i in range(8): a(f"v_cvt_pk_bf16_f32 v{P+i}, v{s0+2*i}, v{s0+2*i+1}")
    a("s_nop 1")
    a(MF32(vr(O, 16), vr(VR, 4), vr(P, 4)))
    a(MF32(vr(O, 16), vr(VR + 4, 4), vr(P + 4, 4)))
    a("s_add_u32 s33, s33, 1")
    a("s_cmp_lt_u32 s33, 64")
    a("s_cbranch_scc1 K2_FB2")
    a("s_nop 11")
    a("s_branch K2_FIN")
    a.label("K2_END")
    a("s_endpgm")
    return n, a, kd(n, 256, 256), (256, 512, 163840)

def k5():
    a = Asm(); n = "k3_down_kernel"
    NS = 112; KS = 28; DEPTH = 8
    kernel_head(a, n)
    ACC = 16; GB = 80; WB = 144; RES = 160
    RED = 65536
    a("s_cmp_ge_u32 s2, 256")
    a("s_cbranch_scc1 K5_END")
    stamp(a, 0)
    if DBGK1:
        a("s_memrealtime s[64:65]")
        a("s_memtime s[66:67]")
    a("s_load_dwordx2 s[4:5], s[0:1], 72")
    a("s_load_dwordx4 s[40:43], s[0:1], 48")
    a("v_lshrrev_b32 v1, 6, v0")
    a("v_and_b32 v0, 63, v0")
    a("v_readfirstlane_b32 s22, v1")
    a("v_lshlrev_b32 v2, 4, v0")
    a("s_and_b32 s23, s2, 7")
    a("s_lshl_b32 s23, s23, 2")
    a("s_bfe_u32 s29, s2, 0x20003")
    a("s_add_u32 s23, s23, s29")
    a("s_lshr_b32 s24, s2, 5")
    a("s_and_b32 s25, s22, 1")
    a("s_lshr_b32 s26, s22, 1")
    a("s_lshl_b32 s27, s24, 1")
    a("s_add_u32 s27, s27, s25")
    a("s_lshl_b32 s28, s23, 1")
    a("s_add_u32 s28, s28, s26")
    a(f"s_mul_i32 s29, s22, {KS * 1024}")
    a(f"s_mul_i32 s32, s28, {NS * 1024}")
    a("s_add_u32 s32, s32, s29")
    a(f"s_add_u32 s32, s32, {GF}")
    a("s_xor_b32 s33, s28, 1")
    a(f"s_mul_i32 s33, s33, {NS * 1024}")
    a("s_add_u32 s33, s33, s29")
    a(f"s_add_u32 s33, s33, {GF}")
    a(f"s_mul_i32 s29, s22, {KS * 16384}")
    a("s_lshl_b32 s30, s27, 6")
    a("s_xor_b32 s31, s30, 64")
    a("s_add_u32 s30, s30, s29")
    a("s_add_u32 s31, s31, s29")
    a("s_lshl_b32 s36, s22, 14")
    a("v_lshrrev_b32 v8, 2, v0")
    a("v_lshlrev_b32 v8, 10, v8")
    a("v_and_b32 v1, 3, v0")
    a("v_lshl_add_u32 v8, v1, 4, v8")
    a("s_waitcnt lgkmcnt(0)")
    srd(a, 8, 4, WS_SIZE)
    srd(a, 16, 40, 1792 * 512 * 2)
    srd(a, 12, 42, 2048 * 512 * 2)
    def loads(s):
        b = GB + 8 * (s % DEPTH)
        if s % 4 == 0 and s > 0:
            a("s_add_u32 s32, s32, 4096")
            a("s_add_u32 s33, s33, 4096")
        for i in range(2):
            a(f"s_add_u32 m0, s36, {(s % DEPTH) * 2048 + i * 1024}")
            a(f"s_add_u32 s29, s{30 + i}, {s * 16384}")
            a("buffer_load_dwordx4 v8, s[16:19], s29 offen lds")
        for i in range(2):
            a(f"buffer_load_dwordx4 {vr(b + 4 * i, 4)}, v2, s[8:11], s{32 + i} offen offset:{(s % 4) * 1024}")
    for s in range(DEPTH - 1):
        loads(s)
    a("v_lshrrev_b32 v4, 5, v0")
    a("v_bfe_u32 v1, v0, 2, 2")
    a("v_lshl_add_u32 v9, v4, 2, v1")
    a("v_lshlrev_b32 v9, 6, v9")
    a("v_and_b32 v1, 3, v0")
    a("v_lshl_add_u32 v9, v1, 3, v9")
    a("v_bfe_u32 v1, v0, 4, 1")
    a("v_lshl_add_u32 v9, v1, 5, v9")
    a("v_add_u32 v9, s36, v9")
    a("v_and_b32 v3, 31, v0")
    a("v_lshlrev_b32 v3, 10, v3")
    a("v_lshl_add_u32 v3, v4, 4, v3")
    a("s_lshl_b32 s34, s28, 15")
    a("s_lshl_b32 s35, s27, 6")
    a("s_add_u32 s34, s34, s35")
    a("s_lshl_b32 s35, s28, 15")
    a("s_lshl_b32 s37, s27, 11")
    a("s_add_u32 s35, s35, s37")
    a(f"s_add_u32 s35, s35, {HF}")
    for t in range(1, 4):
        a(f"s_xor_b32 s29, s22, {t}")
        a("s_mul_i32 s29, s29, 12288")
        a(f"s_add_u32 s29, s29, {RED}")
        a(f"v_add_u32 v{4 + t}, s29, v2")
    a("s_mul_i32 s29, s22, 12288")
    a(f"s_add_u32 s29, s29, {RED}")
    a("v_add_u32 v4, s29, v2")
    def trreads(s):
        for i in range(2):
            for e in range(2):
                a(f"ds_read_b64_tr_b16 {vr(WB + 8 * (s % 2) + 4 * i + 2 * e, 2)}, v9 offset:{(s % DEPTH) * 2048 + i * 1024 + e * 512}")
    def mfmas(s):
        g = GB + 8 * (s % DEPTH); w = WB + 8 * (s % 2)
        B0, B1, A0, A1 = vr(g, 4), vr(g + 4, 4), vr(w, 4), vr(w + 4, 4)
        C = "0" if s == 0 else None
        a(MF32(vr(ACC, 16), A0, B0, C))
        a(MF32(vr(ACC + 32, 16), A0, B1, C))
        a(MF32(vr(ACC + 16, 16), A1, B0, C))
        a(MF32(vr(ACC + 48, 16), A1, B1, C))
    issued = DEPTH - 1; res = 0
    a(f"s_waitcnt vmcnt({(issued - 1) * 4})")
    st(a, 't1')
    trreads(0)
    for s in range(KS):
        if issued < KS:
            loads(issued); issued += 1
            if issued == KS:
                for j in range(2):
                    a(f"buffer_load_dwordx4 {vr(RES + 4 * j, 4)}, v2, s[8:11], s35 offen offset:{j * 1024}")
                res = 2
        if s + 1 < KS:
            a(f"s_waitcnt vmcnt({(issued - s - 2) * 4 + res})")
            trreads(s + 1)
            a("s_waitcnt lgkmcnt(4)")
        else:
            a("s_waitcnt lgkmcnt(0)")
        mfmas(s)
    st(a, 'att')
    a("s_waitcnt vmcnt(0)")
    a("s_mov_b32 s29, 0xffff0000")
    for i in range(8):
        a(f"v_lshlrev_b32 v{RES + 8 + 2 * i}, 16, v{RES + i}")
        a(f"v_and_b32 v{RES + 9 + 2 * i}, s29, v{RES + i}")
    for t in (2, 1, 3):
        for q in range(4):
            a(f"ds_write_b128 v{4 + t}, {vr(ACC + 16 * t + 4 * q, 4)} offset:{(t - 1) * 4096 + q * 1024}")
    for i in range(16):
        a(f"v_add_f32 v{ACC + i}, v{ACC + i}, v{RES + 8 + i}")
    a("s_waitcnt lgkmcnt(0)")
    a("s_barrier")
    for t in range(3):
        for q in range(4):
            a(f"ds_read_b128 {vr(GB + 16 * t + 4 * q, 4)}, v4 offset:{t * 4096 + q * 1024}")
    for t in range(3):
        a(f"s_waitcnt lgkmcnt({8 - 4 * t})")
        for i in range(0, 16, 2):
            a(f"v_pk_add_f32 {vr(ACC + i, 2)}, {vr(ACC + i, 2)}, {vr(GB + 16 * t + i, 2)}")
    o = ACC + 16
    for i in range(8):
        a(f"v_cvt_pk_bf16_f32 v{o + i}, v{ACC + 2 * i}, v{ACC + 2 * i + 1}")
    a("s_nop 0")
    for j in range(2):
        a(f"v_permlane32_swap_b32 v{o + 4 * j}, v{o + 4 * j + 2}")
        a(f"v_permlane32_swap_b32 v{o + 4 * j + 1}, v{o + 4 * j + 3}")
    for j in range(2):
        a(f"buffer_store_dwordx4 {vr(o + 4 * j, 4)}, v3, s[12:15], s34 offen offset:{j * 32}")
    stamp_end(a, 2, 3, 8)
    if DBGK1:
        a("s_waitcnt vmcnt(0)")
        a("s_memrealtime s[68:69]")
        a("s_memtime s[70:71]")
        a("s_load_dwordx2 s[72:73], s[0:1], 64")
        a("s_waitcnt lgkmcnt(0)")
        srd(a, 76, 72, 256)
        a("s_sub_u32 s70, s70, s66")
        a("s_cmp_lg_u32 s2, 0")
        a("s_cbranch_scc1 K5_END")
        a(f"s_mov_b32 s74, {DBGOFF}")
        a("v_mov_b32 v0, 0")
        a("buffer_load_dwordx4 v[4:7], v0, s[8:11], s74 offen")
        a("buffer_load_dwordx4 v[8:11], v0, s[8:11], s74 offen offset:16")
        a("s_waitcnt vmcnt(0)")
        a("v_sub_u32 v5, v5, v4")
        a("v_sub_u32 v8, v8, v4")
        a("v_sub_u32 v9, v9, v4")
        a("v_sub_u32 v12, s64, v4")
        a("v_sub_u32 v13, s68, v4")
        a("v_mov_b32 v14, s70")
        a("v_mov_b32 v15, 0")
        a("buffer_store_dwordx4 v[4:7], v0, s[76:79], 0 offen")
        a("buffer_store_dwordx4 v[8:11], v0, s[76:79], 0 offen offset:16")
        a("buffer_store_dwordx4 v[12:15], v0, s[76:79], 0 offen offset:32")
    a.label("K5_END")
    a("s_endpgm")
    return n, a, kd(n, 192, 192), (256, 256, RED + 49152)

def main(out):
    ks = [k234()]
    hdr = open("cdna_kernels/" + NAME + ".s.ref").read().split("\n")
    hdr = [l for l in hdr if l.startswith(";") and "@launch" not in l and "Override" not in l and "grid=ceil" not in l]
    txt = "\n".join(hdr) + "\n"
    for n, a, d, (g, b, lds) in ks:
        txt += f"; @launch {'kernel=' + n + ' ' if LIST else ''}grid=({g},1,1) block=({b},1,1) lds={lds}\n"
    txt += '.amdgcn_target "amdgcn-amd-amdhsa--gfx950"\n.text\n'
    bad = 0
    for ki, (n, a, d, _) in enumerate(ks):
        fl = ST_FLAGS[ki]
        if fl:
            a.lines = [l + " " + fl if ("buffer_store_dwordx" in l and "sc1" not in l) else l for l in a.lines]
        bad += check_hazards(a.lines, n)
        txt += a.text()
    txt += "CODE_END:\n"
    txt += '.section .rodata,"a"\n'
    for n, a, d, _ in ks:
        txt += ".p2align 6\n" + d
    open(out, "w").write(txt)
    print("hazards:", bad)

if __name__ == "__main__":
    if "stamp" in sys.argv: STAMP = True
    for arg in sys.argv[2:]:
        if "=" in arg:
            k_, v_ = arg.split("=", 1)
            globals()[k_] = eval(v_)
    main(sys.argv[1] if len(sys.argv) > 1 else "cdna_kernels/" + NAME + ".s")
```

```python
import sys, math, struct
from asmlib import *

NAME = "sequential_preLN__mha_block__geglu_ffn__prompt"

QF, KF, VF, OF, HF = 0x000000, 0x200000, 0x400000, 0x600000, 0x800000
ST  = 0xA00000
CSF = 0xA80000
WOF = 0xB00000
WGF = 0xC00000
WDF = 0x1000000
GF  = 0x1200000
WS_SIZE = 0x10000000
FL1 = 0xB02800
FL2 = 0xB00000
FL3 = 0xB00800
FL4 = 0xB01800

def f32(x):
    return "0x%08x" % struct.unpack("<I", struct.pack("<f", x))[0]

LOG2E = 1.4426950408889634
EPS = 1e-5

def srd(a, s, base, size):
    a(f"s_mov_b32 s{s}, s{base}")
    a(f"s_mov_b32 s{s+1}, s{base+1}")
    a(f"s_mov_b32 s{s+2}, {hex(size)}")
    a(f"s_mov_b32 s{s+3}, 0x00020000")

def kernel_head(a, name):
    a.raw(f".globl {name}")
    a.raw(".p2align 8")
    a.raw(f".type {name},@function")
    a.raw(f"{name}:")

def kd(name, nvgpr, accum, nsgpr=100):
    return f""".amdhsa_kernel {name}
  .amdhsa_next_free_vgpr {nvgpr}
  .amdhsa_next_free_sgpr {nsgpr}
  .amdhsa_accum_offset {accum}
  .amdhsa_group_segment_fixed_size 0
  .amdhsa_kernarg_size 80
  .amdhsa_user_sgpr_count 2
  .amdhsa_user_sgpr_kernarg_segment_ptr 1
  .amdhsa_system_sgpr_workgroup_id_x 1
.end_amdhsa_kernel
"""

STAMP = False
K2_T0 = 12
O_TCH = -1
H_TCH = -1
OUT_SC = ''
D_PRIO = 1
D_LATE = 0
O_PRIO = 0
ATOM = 1
NREP = 1
PIF = 1
POLL_PRE = 0
O_B1 = 10
POLL2 = 0
D_ZS = 4
W3_TOUCH = 0
G_EA = 12
G_PERM = 1
G_ET = 1
D_ROT = 1
G_TOUCH = 0
SMAP = ['t1', 'att', 't2', 't3', 'gu', 't4']
K2_Y2 = 40
K2_PER = 4
PIN = None
PINN = []
LIST = 1
FASTL2 = 1
D_Y = 6
DBGK1 = 0
LD_SC = 'sc1'
GSTAMP = 0
G_P2 = 8
GB3 = 20
GA3 = 0
POLL_SLEEP = 0
B_FILL = 4
K2_TCH = 1
G_SC = 'sc1'
CODE_TOUCH = 0
K1_ROT = 1
K1_TW = [-1, 0, 1]
K4_SL = 26
K2_S3 = 11
K2_WD = 0
K1_D = 1
K4_D = 2
K4_XB = 12
K4_TOUCH = 0
K2_S2 = 4
K1_TOUCH = 1
ST_FLAGS = ['', '', '', '', '']
K2_Y = 8
SIDE_SC = 'sc1'
K1_UP = 14
K4_UP = 22
DBGOFF = 0x2000000
def st(a, name):
    if name in SMAP: stamp(a, SMAP.index(name) + 1)
def stamp(a, i):
    if PIN:
        if i == 0: a("s_memrealtime s[64:65]")
        if i == PIN[0]:
            PINN.append(0); L = f"PIN{len(PINN)}"
            a.label(L)
            a("s_memrealtime s[66:67]")
            a("s_waitcnt lgkmcnt(0)")
            a("s_sub_u32 s66, s66, s64")
            a(f"s_cmp_lt_u32 s66, {PIN[1]}")
            a(f"s_cbranch_scc1 {L}")
    if not STAMP: return
    a(f"s_memrealtime s[{64 + 4 * i}:{65 + 4 * i}]")
    a(f"s_memtime s[{66 + 4 * i}:{67 + 4 * i}]")
    if i != 0:
        a("s_waitcnt lgkmcnt(0)")
def stamp_end(a, kidx, n, srdreg, wavereg=22):
    if PIN: stamp(a, n)
    if not STAMP: return
    a("s_waitcnt vmcnt(0)")
    stamp(a, n)
    a("s_lshl_b32 s60, s2, 3")
    a(f"s_add_u32 s60, s60, s{wavereg}")
    a("s_lshl_b32 s60, s60, 6")
    a(f"s_add_u32 s60, s60, {DBGOFF + kidx * 0x40000}")
    a("v_mov_b32 v0, 0")
    for j in range(2 * n + 2):
        a(f"v_mov_b32 v1, s{64 + 2 * j}")
        a(f"buffer_store_dword v1, v0, s[{srdreg}:{srdreg+3}], s60 offen offset:{4 * j}")

def MF32(d, A, B, C=None):
    C = d if C is None else C
    return f"v_mfma_f32_32x32x16_bf16 {d}, {A}, {B}, {C}"

def halfsum(a, v, t):
    a(f"v_mov_b32 v{t}, v{v}")
    a("s_nop 1")
    a(f"v_permlane32_swap_b32 v{v}, v{t}")
    a(f"v_add_f32 v{v}, v{v}, v{t}")


def k1():
    a = Asm(); n = NAME + "_kernel"
    kernel_head(a, n)
    SLOT = 28672; SCR = 5 * SLOT; SCR2 = SCR + 1536; SCR3 = SCR2 + 512
    D = K1_D
    a("s_cmp_ge_u32 s2, 256")
    a("s_cbranch_scc1 K2_END")
    stamp(a, 0)
    if DBGK1:
        a("s_memrealtime s[64:65]")
        a("s_memtime s[66:67]")
    a("s_load_dwordx4 s[4:7], s[0:1], 0")
    a("s_load_dwordx4 s[56:59], s[0:1], 64")
    a("v_lshrrev_b32 v1, 6, v0")
    a("v_and_b32 v0, 63, v0")
    a("v_readfirstlane_b32 s35, v1")
    a("s_and_b32 s23, s2, 3")
    a("s_lshl_b32 s23, s23, 2")
    a("s_bfe_u32 s29, s2, 0x20003")
    a("s_add_u32 s23, s23, s29")
    a("s_bfe_u32 s24, s2, 0x10002")
    a("s_lshl_b32 s24, s24, 3")
    a("s_lshr_b32 s29, s2, 5")
    a("s_add_u32 s24, s24, s29")
    a("s_and_b32 s22, s35, 3")
    a("s_lshl_b32 s27, s22, 12")
    a("s_lshl_b32 s40, s2, 1")
    a("s_and_b32 s29, s2, 4")
    a("s_add_u32 s40, s40, s29")
    if not K1_ROT: a("s_mov_b32 s40, 0")
    a("s_cmp_lt_u32 s35, 4")
    a("s_cbranch_scc1 K1_RDADDR")
    a("s_lshl_b32 s25, s23, 17")
    a("s_lshl_b32 s29, s22, 15")
    a("s_add_u32 s25, s25, s29")
    a("s_mul_i32 s26, s22, 49152")
    a("s_lshl_b32 s29, s24, 6")
    a("s_add_u32 s26, s26, s29")
    a("s_lshl_b32 s28, s22, 10")
    a("s_add_u32 s28, s28, 16384")
    a("s_mov_b32 s30, 0x3f803f80")
    a("v_lshrrev_b32 v5, 3, v0")
    a("v_lshlrev_b32 v2, 10, v5")
    a("v_and_b32 v6, 7, v0")
    a("v_lshrrev_b32 v7, 4, v0")
    a("v_xor_b32 v6, v6, v7")
    a("v_lshl_add_u32 v2, v6, 4, v2")
    a("v_xor_b32 v3, 64, v2")
    a("v_add_u32 v3, 8192, v3")
    a("v_lshrrev_b32 v5, 2, v0")
    a("v_mul_u32_u24 v4, 3072, v5")
    a("v_and_b32 v6, 3, v0")
    a("v_lshl_add_u32 v4, v6, 4, v4")
    a("s_waitcnt lgkmcnt(0)")
    srd(a, 8, 4, 2048 * 512 * 2)
    srd(a, 12, 6, 512 * 1536 * 2)
    def dma(c):
        slot = (c % 5) * SLOT
        a(f"s_add_u32 s41, s40, {c}")
        a("s_and_b32 s41, s41, 7")
        a("s_lshl_b32 s42, s41, 7")
        a("s_add_u32 s42, s42, s25")
        a(f"s_mul_i32 s41, s41, {64 * 3072}")
        a("s_add_u32 s41, s41, s26")
        for p in range(3):
            a(f"s_add_u32 m0, s28, {slot + p * 4096}")
            a(f"s_add_u32 s29, s41, {p * 1024}")
            a(f"buffer_load_dwordx4 v4, s[12:15], s29 offen lds")
        for i in range(4):
            a(f"s_add_u32 m0, s27, {slot + i * 1024}")
            a(f"s_add_u32 s29, s42, {(i // 2) * 16384}")
            a(f"buffer_load_dwordx4 v{2 + (i % 2)}, s[8:11], s29 offen lds")
    for c in range(D + 1):
        dma(c)
    a.label("K1_RDADDR")
    a("v_and_b32 v5, 31, v0")
    a("v_lshrrev_b32 v6, 5, v0")
    a("v_bfe_u32 v7, v0, 1, 3")
    a("v_xor_b32 v7, v7, v6")
    a("v_lshlrev_b32 v5, 7, v5")
    a("v_add_u32 v5, s27, v5")
    for s in range(4):
        a(f"v_xor_b32 v1, {2 * s}, v7")
        a(f"v_lshl_add_u32 v{8 + s}, v1, 4, v5")
        a(f"v_add_u32 v{12 + s}, {2 * SLOT}, v{8 + s}")
        a(f"v_add_u32 v{16 + s}, {4 * SLOT}, v{8 + s}")
    a("v_bfe_u32 v1, v0, 2, 2")
    a("v_lshl_add_u32 v1, v6, 3, v1")
    a("v_lshlrev_b32 v20, 6, v1")
    a("v_bfe_u32 v1, v0, 4, 1")
    a("v_lshl_add_u32 v20, v1, 5, v20")
    a("v_and_b32 v1, 3, v0")
    a("v_lshl_add_u32 v20, v1, 3, v20")
    a("s_cmp_lt_u32 s35, 4")
    a("s_cbranch_scc1 K1_MM")
    a("s_lshl_b32 s29, s22, 10")
    a("v_add_u32 v20, s29, v20")
    a(f"v_add_u32 v21, {2 * SLOT}, v20")
    a(f"v_add_u32 v22, {4 * SLOT}, v20")
    for i in range(28, 31):
        a(f"v_mov_b32 v{i}, 0")
    WB = 48
    for c in range(8):
        slot = c % 5; st = slot // 2; off = (slot % 2) * SLOT
        a(f"s_waitcnt vmcnt({7 * (min(c + D, 7) - c)})")
        a("s_barrier")
        for p in range(3):
            for u in range(2):
                a(f"ds_read_b64_tr_b16 {vr(WB + 4 * p + 2 * u, 2)}, v{20 + st} offset:{off + 16384 + p * 4096 + u * 256}")
        if c + D + 1 < 8:
            dma(c + D + 1)
        a("s_waitcnt lgkmcnt(0)")
        for i in range(4):
            for p in range(3):
                a(f"v_dot2c_f32_bf16 v{28 + p}, s30, v{WB + 4 * p + i}")
    a("v_and_b32 v5, 31, v0")
    a("v_lshlrev_b32 v6, 4, v5")
    a("s_lshl_b32 s29, s22, 2")
    a(f"s_add_u32 s29, s29, {SCR}")
    a("v_add_u32 v7, s29, v6")
    for p in range(3):
        halfsum(a, 28 + p, 1)
        a(f"ds_write_b32 v7, v{28 + p} offset:{p * 512}")
    a("s_waitcnt lgkmcnt(0)")
    a("s_barrier")
    a("s_cmp_eq_u32 s35, 7")
    a("s_cbranch_scc0 K1_JOIN")
    srd(a, 16, 56, 256)
    a("v_mov_b32 v12, 0")
    a("s_mov_b32 s33, 0")
    a.label("K1_PZ")
    a("buffer_load_dword v15, v12, s[16:19], 0 offen sc1")
    a("s_add_u32 s33, s33, 1")
    a("s_waitcnt vmcnt(0)")
    a("v_cmp_eq_u32 vcc, 1, v15")
    a("s_cmp_gt_u32 s33, 0x40000")
    a("s_cbranch_scc1 K1_JOIN")
    a("s_cbranch_vccz K1_PZ")
    a("s_branch K1_JOIN")
    a.label("K1_MM")
    if CODE_TOUCH:
        a("s_getpc_b64 s[44:45]")
        a.label("K1_PC")
        a("s_sub_u32 s44, s44, K1_PC-k1_qkv_kernel")
        a("s_subb_u32 s45, s45, 0")
        a("s_lshl_b32 s46, s22, 13")
        a("v_lshlrev_b32 v23, 7, v0")
        a("v_add_u32 v23, s46, v23")
        for i in range(CODE_TOUCH):
            a("v_min_u32 v24, CODE_END-k1_qkv_kernel-4, v23")
            a("global_load_dword v31, v24, s[44:45]")
            a("v_add_u32 v23, 32768, v23")
    a(f"v_add_u32 v21, {2 * SLOT}, v20")
    a(f"v_add_u32 v22, {4 * SLOT}, v20")
    a("s_mov_b32 s30, 0x3f803f80")
    for i in range(24, 28):
        a(f"v_mov_b32 v{i}, 0")
    a("v_and_b32 v5, 31, v0")
    a("v_lshlrev_b32 v6, 4, v5")
    a(f"v_add_u32 v6, {SCR}, v6")
    a("s_lshl_b32 s29, s22, 7")
    a(f"s_add_u32 s29, s29, {SCR2}")
    a("v_lshlrev_b32 v7, 2, v5")
    a("v_add_u32 v7, s29, v7")
    a("v_lshrrev_b32 v1, 5, v0")
    a("v_lshlrev_b32 v1, 4, v1")
    a("v_add_u32 v1, s29, v1")
    a("s_lshl_b32 s29, s23, 2")
    a("s_add_u32 s29, s29, s22")
    a("s_lshl_b32 s29, s29, 10")
    a("s_lshl_b32 s31, s24, 17")
    a("s_add_u32 s29, s29, s31")
    a("s_add_u32 s31, s29, 65536")
    a(f"s_add_u32 s32, s29, {KF}")
    a(f"s_add_u32 s33, s29, {KF + 65536}")
    a(f"s_add_u32 s34, s29, {VF}")
    a("v_lshlrev_b32 v2, 4, v0")
    a("v_bfe_u32 v3, v0, 4, 1")
    a("v_lshlrev_b32 v3, 16, v3")
    a("v_lshrrev_b32 v4, 5, v0")
    a("v_lshl_add_u32 v3, v4, 8, v3")
    a("v_and_b32 v4, 15, v0")
    a("v_lshl_add_u32 v3, v4, 4, v3")
    a("s_waitcnt lgkmcnt(0)")
    srd(a, 16, 58, WS_SIZE)
    a("s_lshl_b32 s36, s2, 2")
    a("s_add_u32 s36, s36, s22")
    a("s_cmp_lg_u32 s36, 3")
    a("s_cbranch_scc1 K1_NZ")
    a(f"s_mov_b32 s36, {FL2}")
    a("v_lshlrev_b32 v28, 7, v0")
    for i_ in range(2 * NREP):
        a("buffer_store_dwordx2 v[24:25], v28, s[16:19], s36 offen sc1")
        a("s_add_u32 s36, s36, 8192")
    srd(a, 8, 56, 256)
    a("v_mov_b32 v28, 1")
    a("s_waitcnt vmcnt(0)")
    a("buffer_store_dword v28, v24, s[8:11], 0 offen sc1")
    a.label("K1_NZ")
    TQ = {}
    if K1_TOUCH:
        srd(a, 8, 4, 2048 * 512 * 2)
        a("s_lshr_b32 s37, s2, 3")
        a("v_and_b32 v28, 3, v0")
        a("s_mov_b32 s39, 256")
        a("s_and_b32 s36, s2, 3")
        a("s_lshl_b32 s36, s36, 19")
        a("s_lshl_b32 s38, s37, 14")
        a("s_add_u32 s36, s36, s38")
        a("v_bfe_u32 v23, v0, 1, 4")
        a("v_lshlrev_b32 v23, 10, v23")
        a("v_and_b32 v29, 1, v0")
        a("v_lshl_add_u32 v23, v29, 7, v23")
        a("s_cmp_lg_u32 s22, 0")
        a("s_cbranch_scc1 K1_TD")
        srd(a, 8, 6, 512 * 1536 * 2)
        a(f"s_mov_b32 s39, {128 * 3072}")
        a("s_mul_i32 s36, s37, 12288")
        a("s_bfe_u32 s38, s2, 0x10002")
        a("s_lshl_b32 s38, s38, 9")
        a("s_add_u32 s36, s36, s38")
        a("v_lshrrev_b32 v23, 4, v0")
        a("v_mul_u32_u24 v23, 3072, v23")
        a("v_bfe_u32 v30, v0, 2, 2")
        a("v_min_u32 v30, 2, v30")
        a("v_lshl_add_u32 v23, v30, 10, v23")
        a("v_lshl_add_u32 v23, v28, 7, v23")
        a.label("K1_TD")
        def touch(n_):
            return ["s_cmp_ge_u32 s22, 2", f"s_cbranch_scc1 K1_TS{n_}",
                    "s_lshr_b32 s38, s40, 1", f"s_add_u32 s38, s38, {n_ + 1}", "s_and_b32 s38, s38, 3",
                    "s_mul_i32 s38, s38, s39", "s_add_u32 s38, s38, s36",
                    "buffer_load_dword v31, v23, s[8:11], s38 offen", f"K1_TS{n_}:"]
        for n_, when in enumerate(K1_TW):
            if when < 0:
                for x in touch(n_): a(x)
            else:
                TQ.setdefault(when, []).extend(touch(n_))
    ACC = 32
    def xf(ks): return 80 + (ks % 8) * 4
    def wf(ks, p): return 112 + (ks % 3) * 12 + p * 4
    def reads(ks):
        c, s = ks // 4, ks % 4
        slot = c % 5; st = slot // 2; off = (slot % 2) * SLOT
        out = [f"ds_read_b128 {vr(xf(ks), 4)}, v{8 + 4 * st + s} offset:{off}"]
        for p in range(3):
            for u in range(2):
                out.append(f"ds_read_b64_tr_b16 {vr(wf(ks, p) + 2 * u, 2)}, v{20 + st} offset:{off + 16384 + p * 4096 + s * 1024 + u * 256}")
        return out
    def mfmas(ks):
        X = vr(xf(ks), 4); out = []
        for p in range(3):
            D_ = vr(ACC + 16 * p, 16); W = vr(wf(ks, p), 4)
            A, B = (W, X) if p < 2 else (X, W)
            out.append(MF32(D_, A, B, "0" if ks == 0 else None))
        return out
    def dots(k0, k1_):
        for ks in range(k0, k1_):
            for i in range(4):
                a(f"v_dot2c_f32_bf16 v{24 + i % 2}, s30, v{xf(ks) + i}")
                a(f"v_dot2c_f32_bf16 v{26 + i % 2}, v{xf(ks) + i}, v{xf(ks) + i}")
    a("s_barrier")
    for r in reads(0) + reads(1): a(r)
    for x in TQ.get(0, []): a(x)
    for ks in range(32):
        c, s = ks // 4, ks % 4
        M = mfmas(ks); R = reads(ks + 2) if ks + 2 < 32 else []
        if s == 2:
            dots(max(ks - 3, 0), ks)
            a("s_waitcnt lgkmcnt(0)")
            dots(ks, ks + 1)
            if c == 7: dots(ks + 1, ks + 2)
            a(M[0])
            if c < 7:
                a("s_barrier")
                for x in TQ.get(c + 1, []): a(x)
        else:
            a(f"s_waitcnt lgkmcnt({7 if ks < 31 else 0})")
            a(M[0])
        E = []
        if ks >= 30:
            if ks == 30:
                E = ["v_add_f32 v24, v24, v25", "v_add_f32 v26, v26, v27", "v_mov_b32 v25, v24", "v_mov_b32 v27, v26", "s_nop 0",
                     "v_permlane32_swap_b32 v24, v25", "v_permlane32_swap_b32 v26, v27", "v_add_f32 v24, v24, v25", "v_add_f32 v26, v26, v27",
                     f"v_mul_f32 v24, {f32(1/512)}, v24", f"v_mul_f32 v26, {f32(1/512)}, v26", "v_fma_f32 v26, -v24, v24, v26",
                     "v_max_f32 v26, 0, v26", f"v_add_f32 v26, {f32(EPS)}, v26", "v_rsq_f32 v26, v26"]
                E = ["s_nop 1"] + E
            else:
                E = ["ds_write_b32 v7, v26", "v_mul_f32 v24, -0.5, v24", "v_cvt_pk_bf16_f32 v25, v24, v24", "v_lshlrev_b32 v25, 16, v25",
                     "v_sub_f32 v27, v24, v25", "v_cvt_pk_bf16_f32 v148, v25, v27", "v_mov_b32 v150, 0", "v_mov_b32 v151, 0",
                     "v_mov_b32 v149, v148", f"v_mul_f32 v28, {f32(0.25 * LOG2E)}, v26", "v_mov_b32 v27, v26", "v_mov_b32 v29, v28"]
            R = E
            n3 = (len(R) + 2) // 3
        else:
            n3 = 3
        for r in R[:n3]: a(r)
        a(M[1])
        for r in R[n3:2 * n3]: a(r)
        a(M[2])
        for r in R[2 * n3:]: a(r)
    a("s_waitcnt lgkmcnt(0)")
    a("s_barrier")
    for p in range(3):
        a(f"ds_read_b128 {vr(80 + 4 * p, 4)}, v6 offset:{p * 512}")
    for g in range(4):
        a(f"ds_read_b128 {vr(96 + 4 * g, 4)}, v1 offset:{g * 32}")
    CF = 152
    for p in range(3):
        a(f"v_mov_b32 v{CF + 4 * p + 2}, 0")
        a(f"v_mov_b32 v{CF + 4 * p + 3}, 0")
    for p in range(3):
        b = 80 + 4 * p; f = CF + 4 * p
        a(f"s_waitcnt lgkmcnt({6 - p})")
        a(f"v_add_f32 v{b}, v{b}, v{b+1}")
        a(f"v_add_f32 v{b+2}, v{b+2}, v{b+3}")
        a(f"v_add_f32 v{b}, v{b}, v{b+2}")
        a(f"v_cvt_pk_bf16_f32 v{f}, v{b}, v{b}")
        a(f"v_lshlrev_b32 v{b+1}, 16, v{f}")
        a(f"v_sub_f32 v{b+1}, v{b}, v{b+1}")
        a(f"v_cvt_pk_bf16_f32 v{f+1}, v{b+1}, v{b+1}")
        if p >= 1:
            q = p - 1
            a(MF32(vr(ACC + 16 * q, 16), vr(CF + 4 * q, 4), vr(148, 4)))
    a("s_waitcnt lgkmcnt(0)")
    a("s_nop 0")
    a(MF32(vr(ACC + 32, 16), vr(148, 4), vr(CF + 8, 4)))
    a("s_nop 1")
    for p in range(3):
        b = ACC + 16 * p; o = 112 + 8 * p
        for i in range(0, 16, 2):
            sc = "v[28:29]" if p == 0 else "v[26:27]" if p == 1 else vr(96 + i, 2)
            a(f"v_pk_mul_f32 {vr(b + i, 2)}, {sc}, {vr(b + i, 2)}")
        for i in range(8):
            a(f"v_cvt_pk_bf16_f32 v{o+i}, v{b+2*i}, v{b+2*i+1}")
        if p < 2:
            a(f"buffer_store_dwordx4 {vr(o, 4)}, v2, s[16:19], s{29 if p == 0 else 32} offen sc1")
            a(f"buffer_store_dwordx4 {vr(o + 4, 4)}, v2, s[16:19], s{31 if p == 0 else 33} offen sc1")
        else:
            a(f"buffer_store_dwordx4 {vr(o, 4)}, v3, s[16:19], s34 offen sc1")
            a(f"buffer_store_dwordx4 {vr(o + 4, 4)}, v3, s[16:19], s34 offen offset:512 sc1")
    a.label("K1_JOIN")
    return a

def k234():
    a = k1(); n = NAME + "_kernel"
    Q = 4; NEGM = 16; S = [32, 48]; O = 64; P = 80; KR = 88; VR = 100; W = 128
    SCR = 131072
    K1C = 2 * math.sqrt(2 / math.pi) * LOG2E
    vm = []
    def V(ins, tag=None):
        a(ins); vm.append(tag)
    def vmwait(tag, extra=""):
        idx = max(i for i, t in enumerate(vm) if t == tag)
        a(f"s_waitcnt vmcnt({len(vm) - 1 - idx}){extra}")
    a("s_load_dwordx4 s[40:43], s[0:1], 32")
    a("s_load_dwordx2 s[44:45], s[0:1], 16")
    a("s_load_dwordx2 s[46:47], s[0:1], 0")
    a("s_load_dwordx2 s[48:49], s[0:1], 48")
    a("s_load_dwordx2 s[62:63], s[0:1], 56")
    a("s_lshl_b32 s31, s24, 8")
    a("s_lshl_b32 s30, s23, 2")
    a("s_add_u32 s31, s31, s30")
    a(f"s_add_u32 s31, s31, {FL1}")
    a("s_mov_b32 s22, s35")
    a("s_and_b32 s23, s2, 7")
    a("s_lshl_b32 s23, s23, 2")
    a("s_bfe_u32 s29, s2, 0x20003")
    a("s_add_u32 s23, s23, s29")
    a("s_lshr_b32 s24, s2, 5")
    a("s_lshl_b32 s25, s23, 16")
    a("v_lshlrev_b32 v2, 4, v0")
    a("s_lshl_b32 s26, s22, 10")
    a("s_add_u32 s27, s25, s26")
    a("s_lshl_b32 s28, s24, 13")
    a("s_add_u32 s28, s28, s27")
    a(f"s_add_u32 s27, s27, {KF}")
    a(f"s_add_u32 s30, s27, {VF - KF}")
    srd(a, 8, 58, WS_SIZE)
    a("v_mov_b32 v12, 0")
    a("v_mov_b32 v13, 1")
    def signal(lbl, local=False):
        a("s_cmp_eq_u32 s22, 7")
        a(f"s_cbranch_scc0 {lbl}")
        a("v_lshlrev_b32 v12, 14, v0")
        a(f"s_mov_b64 exec, {(1 << NREP) - 1}")
        if ATOM:
            a(f"s_and_b32 s31, s31, {hex(0xffffff84 if '4' in lbl[-2:] else 0xffffff80)}")
            a("buffer_atomic_add v13, v12, s[8:11], s31 offen sc1")
        else: a("buffer_store_dword v13, v12, s[8:11], s31 offen sc1")
        a("s_mov_b64 exec, -1")
        a.label(lbl)
    def poll(lbl, sreg, nfl, sh=2):
        if ATOM:
            a("s_lshr_b32 s33, s2, 5")
            a(f"s_and_b32 s33, s33, {NREP - 1}")
            a("s_lshl_b32 s33, s33, 14")
            a("v_mov_b32 v1, s33")
            a("s_mov_b32 s33, 0")
            a("s_mov_b64 exec, 1")
            two = PIF == 2 and lbl != "K2_P4A"
            if two:
                a("v_mov_b32 v14, 0")
                a(f"buffer_atomic_add v14, v1, s[8:11], s{sreg} offen sc0 sc1")
                a("s_sleep 5")
            a.label(lbl)
            for cur, nxt in (((14, 15), (15, 14)) if two else ((15, 15),)):
                if POLL_SLEEP: a(f"s_sleep {POLL_SLEEP}")
                a(f"v_mov_b32 v{nxt}, 0")
                a(f"buffer_atomic_add v{nxt}, v1, s[8:11], s{sreg} offen sc0 sc1")
                a("s_add_u32 s33, s33, 1")
                a(f"s_waitcnt vmcnt({1 if two else 0})")
                a(f"v_cmp_eq_u32 vcc, {nfl}, v{cur}")
                a("s_nop 0")
                a(f"s_cbranch_vccnz {lbl}_X")
            a("s_cmp_lt_u32 s33, 0x40000")
            a(f"s_cbranch_scc1 {lbl}")
            a.label(f"{lbl}_X")
            a("s_mov_b64 exec, -1")
            return
        a(f"v_and_b32 v1, {nfl - 1}, v0")
        a(f"v_lshlrev_b32 v1, {sh}, v1")
        a("s_mov_b32 s33, 0")
        if POLL_PRE: a(f"s_sleep {POLL_PRE}")
        a.label(lbl)
        if POLL_SLEEP: a(f"s_sleep {POLL_SLEEP}")
        a(f"buffer_load_dword v15, v1, s[8:11], s{sreg} offen sc1")
        a("s_add_u32 s33, s33, 1")
        a("s_waitcnt vmcnt(0)")
        a("v_cmp_eq_u32 vcc, 1, v15")
        a("s_cmp_gt_u32 s33, 0x40000")
        a(f"s_cbranch_scc1 {lbl}_X")
        a("s_cmp_eq_u64 vcc, -1")
        a(f"s_cbranch_scc0 {lbl}")
        a.label(f"{lbl}_X")
    st(a, 'k1')
    def poll2(lbl, sreg, nfl, sh=2):
        if not POLL2: return poll(lbl, sreg, nfl, sh)
        a(f"v_and_b32 v1, {nfl - 1}, v0")
        a(f"v_lshlrev_b32 v1, {sh}, v1")
        a("s_mov_b32 s33, 0")
        a(f"buffer_load_dword v14, v1, s[8:11], s{sreg} offen sc1")
        a(f"s_sleep {POLL2}")
        a.label(lbl)
        for cur, nxt in ((14, 15), (15, 14)):
            a(f"buffer_load_dword v{nxt}, v1, s[8:11], s{sreg} offen sc1")
            a("s_waitcnt vmcnt(1)")
            a(f"v_cmp_eq_u32 vcc, 1, v{cur}")
            a("s_add_u32 s33, s33, 1")
            a("s_nop 0")
            a("s_cmp_eq_u64 vcc, -1")
            a(f"s_cbranch_scc1 {lbl}_X")
        a("s_cmp_lt_u32 s33, 0x80000")
        a(f"s_cbranch_scc1 {lbl}")
        a.label(f"{lbl}_X")
    a("s_waitcnt vmcnt(0) lgkmcnt(0)")
    a("s_barrier")
    st(a, 'k1b')
    signal("K2_S1")
    def kvdma(c, isv):
        a(f"s_add_u32 m0, s26, {c * 8192 + isv * 65536}")
        a(f"s_add_u32 s29, s27, {c * 8192 + isv * (VF - KF)}")
        V("buffer_load_dwordx4 v2, s[8:11], s29 offen lds", f"c{c}")
    a("s_and_b32 s36, s2, 3")
    a("s_lshl_b32 s36, s36, 2")
    a("s_bfe_u32 s29, s2, 0x20003")
    a("s_add_u32 s36, s36, s29")
    a("s_bfe_u32 s37, s2, 0x10002")
    a("s_lshl_b32 s37, s37, 3")
    a("s_add_u32 s37, s37, s24")
    a("s_min_u32 s38, s22, 6")
    a("s_mul_i32 s39, s37, 7")
    a("s_add_u32 s39, s39, s38")
    a("s_lshl_b32 s54, s39, 5")
    srd(a, 12, 40, 512 * 1792 * 2)
    srd(a, 16, 42, 512 * 1792 * 2)
    a("s_lshl_b32 s55, s22, 12")
    a(f"s_add_u32 s55, s55, {SCR}")
    a("v_lshrrev_b32 v8, 1, v0")
    a("v_mul_u32_u24 v8, 3584, v8")
    a("v_and_b32 v1, 1, v0")
    a("v_lshl_add_u32 v8, v1, 4, v8")
    a("v_lshrrev_b32 v11, 5, v0")
    a("v_bfe_u32 v1, v0, 2, 2")
    a("v_lshl_add_u32 v10, v11, 2, v1")
    a("v_lshlrev_b32 v9, 5, v10")
    a("v_and_b32 v1, 3, v0")
    a("v_lshl_add_u32 v9, v1, 3, v9")
    a("v_bfe_u32 v1, v0, 4, 1")
    a("v_lshl_add_u32 v9, v1, 10, v9")
    a("v_add_u32 v9, s55, v9")
    a("v_and_b32 v12, 15, v0")
    a("v_lshl_add_u32 v12, v11, 4, v12")
    a("v_lshlrev_b32 v12, 4, v12")
    a("v_add_u32 v3, 65536, v12")
    a("s_mov_b32 s34, 0x0000ffff")
    a("s_mov_b32 s35, 0x0000ffff")
    a(f"s_mov_b32 s50, {f32(2.0**60)}")
    for i in range(24):
        a(f"v_mov_b32 v{VR + i}, 0x3f803f80")
    for i in range(16):
        a(f"v_mov_b32 v{O + i}, 0")
    for i in range(4, 8):
        a(f"v_mov_b32 v{P + i}, 0")
    def kread(t): return f"ds_read_b128 {vr(KR + 4 * (t % 3), 4)}, v2 offset:{t * 1024}"
    def vread(t):
        return ["s_mov_b64 exec, s[34:35]"] + \
               [f"ds_read_b128 {vr(VR + 8 * (t % 3) + 4 * j, 4)}, v3 offset:{t * 1024 + j * 512}" for j in range(2)] + \
               ["s_mov_b64 exec, -1"]
    a("s_cmp_eq_u32 s22, 7")
    a("s_cbranch_scc0 K2_B1")
    a("s_lshr_b32 s29, s23, 1")
    a("s_lshl_b32 s29, s29, 8")
    a(f"s_add_u32 s29, s29, {FL1}")
    poll2("K2_P1", 29, 16)
    a.label("K2_B1")
    a("s_mov_b32 m0, s26")
    a("s_barrier")
    st(a, 't1')
    V("buffer_load_dwordx4 v2, s[8:11], s27 offen lds", "c0")
    V(f"buffer_load_dwordx4 {vr(Q, 4)}, v2, s[8:11], s28 offen", "c0")
    a("s_add_u32 m0, s26, 65536")
    a("s_nop 0")
    V("buffer_load_dwordx4 v2, s[8:11], s30 offen lds", "c0")
    kvdma(1, 0); kvdma(1, 1)
    vmwait("c0")
    a("s_barrier")
    st(a, 'a0')
    a(kread(0)); a(kread(1))
    for x in vread(0): a(x)
    a(kread(2))
    for x in vread(1): a(x)
    a("s_waitcnt lgkmcnt(6)")
    s0 = S[0]
    a(MF32(vr(s0, 16), vr(KR, 4), vr(Q, 4), "0"))
    a("s_nop 11")
    for i in range(5):
        a(f"v_max3_f32 v{NEGM + i}, v{s0+3*i}, v{s0+3*i+1}, v{s0+3*i+2}")
    a(f"v_max3_f32 v14, v{NEGM}, v{NEGM+1}, v{s0+15}")
    a(f"v_max3_f32 v15, v{NEGM+2}, v{NEGM+3}, v{NEGM+4}")
    a("v_max_f32 v14, v14, v15")
    def set_negm():
        a("v_mov_b32 v15, v14")
        a("s_nop 1")
        a("v_permlane32_swap_b32 v14, v15")
        a("v_max_f32 v14, v14, v15")
        for i in range(16):
            a(f"v_sub_f32 v{NEGM + i}, 0, v14")
        a("s_nop 1")
    set_negm()
    a(MF32(vr(S[0], 16), vr(KR, 4), vr(Q, 4), vr(NEGM, 16)))
    a("s_nop 8")
    T0 = K2_T0
    cnt = [0]
    def b(ins):
        if K2_Y:
            if cnt[0] == 0: a("s_setprio 0")
            if cnt[0] == K2_Y: a("s_setprio 1")
            if cnt[0] == K2_Y2: a("s_setprio 2")
        cnt[0] += 1
        a(ins)
    for t in range(64):
        if t % K2_PER == 0: cnt[0] = 0
        Sc = S[t % 2]; Sn = S[(t + 1) % 2]
        E = lambda i: b(f"v_exp_f32 v{Sc+i}, v{Sc+i}")
        C = lambda i: b(f"v_cvt_pk_bf16_f32 v{P+i}, v{Sc+2*i}, v{Sc+2*i+1}")
        if t == 0: st(a, 'a1')
        if t == 16: st(a, 'a16')
        if t == 5: vmwait("c1"); a("s_barrier")
        if t == 13: vmwait("c5"); a("s_barrier")
        if t == 24: vmwait("c7"); a("s_barrier")
        nrd = lambda u: (1 if u + 3 < 64 else 0) + (2 if u + 2 < 64 else 0)
        b(f"s_waitcnt lgkmcnt({nrd(t - 1) if t > 0 else 3})")
        if t < 63:
            b(MF32(vr(Sn, 16), vr(KR + 4 * ((t + 1) % 3), 4), vr(Q, 4), vr(NEGM, 16)))
        for i in range(5): E(i)
        b(MF32(vr(O, 16), vr(VR + 8 * ((t - 1) % 3) + 4, 4), vr(P + 4, 4)))
        u, ph = divmod(t - T0 - 5, 3)
        if t >= T0 + 5 and ph == 0 and u < 16:
            vmwait(f"w{u}")
            for s in range(2):
                for e in range(2):
                    a(f"ds_read_b64_tr_b16 {vr(W + 8 * u + 4 * s + 2 * e, 2)}, v9 offset:{(u % 2) * 2048 + s * 512 + e * 256}")
        if t + 3 < 64: b(kread(t + 3))
        if t + 2 < 64:
            for x in vread(t + 2): b(x)
        for i in range(5, 8): E(i)
        for i in range(4): C(i)
        E(8); E(9)
        b(MF32(vr(O, 16), vr(VR + 8 * (t % 3), 4), vr(P, 4)))
        if t < 12: kvdma(2 + t // 2, t % 2)
        u, ph = divmod(t - T0, 3)
        if t >= T0 and ph == 0 and u < 16:
            a(f"s_add_u32 m0, s55, {(u % 2) * 2048}")
            a(f"s_add_u32 s29, s54, {u * 32 * 3584}")
            V("buffer_load_dwordx4 v8, s[12:15], s29 offen lds", f"w{u}")
            a(f"s_add_u32 m0, s55, {(u % 2) * 2048 + 1024}")
            a("s_nop 0")
            V("buffer_load_dwordx4 v8, s[16:19], s29 offen lds", f"w{u}")
        if t == 40 and K2_TCH:
            srd(a, 96, 48, 1792 * 512 * 2)
            a("s_lshl_b32 s29, s2, 3")
            a("s_add_u32 s29, s29, s22")
            a("s_mul_i32 s29, s29, 896")
            a("v_min_u32 v12, 6, v0")
            a("v_lshlrev_b32 v12, 7, v12")
            V("buffer_load_dword v124, v12, s[96:99], s29 offen", "tch")
        if t == 59 and K2_TCH:
            a("s_lshr_b32 s29, s2, 3")
            a("s_lshl_b32 s29, s29, 14")
            a("s_lshl_b32 s31, s22, 11")
            a("s_add_u32 s29, s29, s31")
            srd(a, 96, 44, 512 * 512 * 2)
            a("v_and_b32 v12, 15, v0")
            a("v_lshlrev_b32 v12, 7, v12")
            V("buffer_load_dword v124, v12, s[96:99], s29 offen", "tch")

        for i in range(10, 16): E(i)
        for i in range(4, 8): C(i)
    a("s_setprio 0")
    a("s_lshl_b32 s29, s24, 3")
    a("s_add_u32 s29, s29, s22")
    a(MF32(vr(O, 16), vr(VR + 8 * (63 % 3) + 4, 4), vr(P + 4, 4)))
    a("s_lshl_b32 s31, s24, 8")
    a("s_lshl_b32 s30, s23, 2")
    a("s_add_u32 s31, s31, s30")
    a(f"s_add_u32 s31, s31, {FL2}")
    a("s_lshl_b32 s29, s29, 15")
    a("s_lshl_b32 s30, s23, 10")
    a("s_add_u32 s29, s29, s30")
    a(f"s_add_u32 s29, s29, {OF}")
    a("v_mov_b32 v12, 0")
    a("v_mov_b32 v13, 1")
    a("s_waitcnt lgkmcnt(0)")
    a("s_nop 0")
    a(f"v_cmp_gt_f32 vcc, s50, v{O + 8}")
    a("s_nop 1")
    a("s_cmp_eq_u64 vcc, -1")
    a("s_cbranch_scc0 K2_FALLBACK")
    a.label("K2_FIN")
    a(f"v_rcp_f32 v14, v{O + 8}")
    a("s_nop 0")
    for i in range(8):
        a(f"v_mul_f32 v{O+i}, v14, v{O+i}")
    for i in range(4):
        a(f"v_cvt_pk_bf16_f32 v{P+i}, v{O+2*i}, v{O+2*i+1}")
    a(f"buffer_store_dwordx4 {vr(P, 4)}, v2, s[8:11], s29 offen sc1")
    st(a, 'att')
    srd(a, 12, 44, 512 * 512 * 2)
    srd(a, 16, 46, 2048 * 512 * 2)
    a("s_and_b32 s25, s22, 1")
    a("s_bfe_u32 s26, s22, 0x10001")
    a("s_lshr_b32 s27, s22, 2")
    a("s_lshl_b32 s28, s24, 1")
    a("s_add_u32 s28, s28, s25")
    a("s_lshl_b32 s30, s23, 1")
    a("s_add_u32 s30, s30, s26")
    a("v_lshrrev_b32 v8, 2, v0")
    a("v_lshlrev_b32 v8, 10, v8")
    a("v_and_b32 v1, 3, v0")
    a("v_lshl_add_u32 v8, v1, 4, v8")
    a("v_lshlrev_b32 v9, 6, v10")
    a("v_lshl_add_u32 v9, v1, 3, v9")
    a("v_bfe_u32 v1, v0, 4, 1")
    a("v_lshl_add_u32 v9, v1, 5, v9")
    a("s_lshl_b32 s32, s25, 15")
    a("s_lshl_b32 s33, s27, 14")
    a("s_add_u32 s32, s32, s33")
    a("v_add_u32 v9, s32, v9")
    a("v_and_b32 v3, 31, v0")
    a("v_lshlrev_b32 v3, 10, v3")
    a("v_lshl_add_u32 v3, v11, 4, v3")
    a("s_lshl_b32 s51, s30, 15")
    a("s_lshl_b32 s33, s28, 6")
    a("s_add_u32 s51, s51, s33")
    RES = 112
    a("s_waitcnt vmcnt(0)")
    a("s_barrier")
    def dstore(ins):
        return [ins + " sc1"]
    signal("K2_S2")
    st(a, 'bA')
    A3 = 16; WO = 32; OB = 96
    def colsum():
        a("s_mov_b32 s56, 0x3f803f80")
        for i in range(4): a(f"v_mov_b32 v{124 + i}, 0")
        for i in range(128):
            a(f"v_dot2c_f32_bf16 v{124 + i % 4}, s56, v{W + i}")
        a("s_nop 2")
        a("v_add_f32 v124, v124, v125")
        a("v_add_f32 v126, v126, v127")
        a("v_add_f32 v126, v124, v126")
        a("v_cvt_pk_bf16_f32 v124, v126, v126")
        a("v_lshlrev_b32 v125, 16, v124")
        a("v_sub_f32 v125, v126, v125")
        a("v_cvt_pk_bf16_f32 v125, v125, v125")
        a("v_mov_b32 v126, 0")
        a("v_mov_b32 v127, 0")
    a("s_cmp_eq_u32 s22, 7")
    a("s_cbranch_scc1 K2_POLL2")
    a("s_cmp_ge_u32 s22, 4")
    a("s_cbranch_scc1 K2_CS")
    a("s_lshl_b32 s33, s26, 14")
    a("s_add_u32 s52, s32, s33")
    a("s_lshl_b32 s53, s26, 18")
    a("s_lshl_b32 s33, s28, 6")
    a("s_add_u32 s53, s53, s33")
    for i in range(16):
        a(f"s_add_u32 m0, s52, {i * 1024}")
        a(f"s_add_u32 s29, s53, {i * 16384}")
        a("buffer_load_dwordx4 v8, s[12:15], s29 offen lds")
    for j in range(2):
        a(f"buffer_load_dwordx4 {vr(RES + 4 * j, 4)}, v3, s[16:19], s51 offen offset:{j * 32}")
    a("s_waitcnt vmcnt(2)")
    a("s_branch K2_B2")
    a.label("K2_CS")
    colsum()
    if O_TCH >= 0:
        a("s_cmp_eq_u32 s22, 6")
        a("s_cbranch_scc0 K2_B2")
        if O_TCH: a(f"s_sleep {O_TCH}")
        a("s_lshl_b32 s29, s23, 16")
        a("s_lshl_b32 s33, s24, 13")
        a("s_add_u32 s29, s29, s33")
        a(f"s_add_u32 s29, s29, {OF}")
        a("v_lshlrev_b32 v1, 7, v0")
        a("buffer_load_dword v14, v1, s[8:11], s29 offen sc1")
    a("s_branch K2_B2")
    a.label("K2_POLL2")
    a("s_lshr_b32 s29, s23, 2")
    a("s_lshl_b32 s29, s29, 8")
    a(f"s_add_u32 s29, s29, {FL2}")
    poll2("K2_P2", 29, 32)
    a.label("K2_B2")
    a("s_lshl_b32 s29, s25, 15")
    a("s_lshr_b32 s33, s22, 1")
    a("s_lshl_b32 s33, s33, 12")
    a("s_add_u32 s29, s29, s33")
    a("s_lshl_b32 s33, s23, 16")
    a("s_add_u32 s33, s33, s29")
    a(f"s_add_u32 s33, s33, {OF}")
    a("s_add_u32 s52, s33, 16384")
    a(f"s_add_u32 m0, s29, {65536 + 16384}")
    a("s_barrier")
    st(a, 't2')
    for i in range(4):
        a(f"buffer_load_dwordx4 v2, s[8:11], s52 offen offset:{i * 1024} {LD_SC} lds")
    a("s_add_u32 m0, s29, 65536")
    a("s_nop 0")
    for i in range(4):
        a(f"buffer_load_dwordx4 v2, s[8:11], s33 offen offset:{i * 1024} {LD_SC} lds")
    for s in range(16):
        for e in range(2):
            a(f"ds_read_b64_tr_b16 {vr(WO + 4 * s + 2 * e, 2)}, v9 offset:{s * 1024 + e * 512}")
    a("s_lshl_b32 s29, s26, 15")
    a("s_lshl_b32 s33, s27, 14")
    a("s_add_u32 s29, s29, s33")
    a("s_add_u32 s29, s29, 65536")
    a("v_add_u32 v8, s29, v2")
    a("s_and_b32 s29, s22, 3")
    a("s_lshl_b32 s29, s29, 12")
    a(f"s_add_u32 s29, s29, {SCR}")
    a("v_add_u32 v9, s29, v2")
    def omm(first, hooks):
        rd = lambda s: f"ds_read_b128 {vr(OB + 4 * (s % 4), 4)}, v8 offset:{s * 1024}"
        for s in range(3): a(rd(s))
        for s in range(16):
            left = 15 - s
            if left >= 3: a(rd(s + 3))
            a(f"s_waitcnt lgkmcnt({min(left, 3) + hooks.get(('x', s), 0)})")
            a(MF32(vr(A3, 16), vr(WO + 4 * s, 4), vr(OB + 4 * (s % 4), 4), first if s == 0 else None))
            for x in hooks.get(s, []): a(x)
    a("s_cmp_lt_u32 s22, 4")
    a("s_cbranch_scc1 K2_O_LO")
    a("s_waitcnt vmcnt(4) lgkmcnt(0)")
    a("s_barrier")
    omm("0", {O_B1: ["s_waitcnt vmcnt(0)", "s_barrier"]})
    st(a, 'om')
    a("s_nop 11")
    for q in range(4):
        a(f"ds_write_b128 v9, {vr(A3 + 4 * q, 4)} offset:{q * 1024}")
    a("s_waitcnt lgkmcnt(0)")
    a("s_barrier")
    a("s_lshr_b32 s31, s23, 1")
    a("s_lshl_b32 s31, s31, 8")
    a("s_and_b32 s33, s23, 1")
    a("s_lshl_b32 s33, s33, 3")
    a("s_add_u32 s33, s33, s24")
    a("s_lshl_b32 s33, s33, 2")
    a("s_add_u32 s31, s31, s33")
    a(f"s_add_u32 s31, s31, {FL3}")
    a("s_lshl_b32 s29, s36, 8")
    a(f"s_add_u32 s29, s29, {FL3}")
    a("s_barrier")
    signal("K2_S3", True)
    if H_TCH >= 0:
        a("s_cmp_lt_u32 s22, 6")
        a("s_cbranch_scc0 K2_NHT")
        if H_TCH: a(f"s_sleep {H_TCH}")
        a("s_lshl_b32 s52, s36, 17")
        a("s_lshl_b32 s33, s24, 14")
        a("s_add_u32 s52, s52, s33")
        a("s_and_b32 s33, s22, 1")
        a("s_lshl_b32 s33, s33, 13")
        a("s_add_u32 s52, s52, s33")
        a(f"s_add_u32 s52, s52, {HF}")
        a("v_lshlrev_b32 v1, 7, v0")
        a("buffer_load_dword v14, v1, s[8:11], s52 offen sc1")
        a.label("K2_NHT")
    a("s_cmp_eq_u32 s22, 7")
    a("s_cbranch_scc0 K2_B3")
    poll2("K2_P3", 29, 16)
    a("s_branch K2_B3")
    a.label("K2_O_LO")
    a("s_waitcnt vmcnt(8)")
    for j in range(2):
        a(f"v_permlane32_swap_b32 v{RES + 4 * j}, v{RES + 4 * j + 2}")
        a(f"v_permlane32_swap_b32 v{RES + 4 * j + 1}, v{RES + 4 * j + 3}")
    a("s_mov_b32 s29, 0xffff0000")
    for i in range(8):
        a(f"v_lshlrev_b32 v{A3 + 2 * i}, 16, v{RES + i}")
        a(f"v_and_b32 v{A3 + 1 + 2 * i}, s29, v{RES + i}")
    a("s_lshl_b32 s52, s30, 15")
    a("s_lshl_b32 s33, s28, 11")
    a("s_add_u32 s52, s52, s33")
    a(f"s_add_u32 s52, s52, {HF}")
    a("s_lshl_b32 s53, s30, 12")
    a("s_lshl_b32 s33, s28, 8")
    a("s_add_u32 s53, s53, s33")
    a(f"s_add_u32 s53, s53, {ST}")
    a("v_lshlrev_b32 v3, 3, v0")
    a("s_mov_b32 s29, 0x3f803f80")
    a("v_mov_b32 v14, 0")
    a("v_mov_b32 v15, 0")
    a("s_waitcnt vmcnt(4) lgkmcnt(0)")
    a("s_barrier")
    a("s_waitcnt vmcnt(0)")
    a("s_barrier")
    if O_PRIO: a("s_setprio 2")
    omm(None, {13: ["s_barrier"] + [f"ds_read_b128 {vr(32 + 4 * q, 4)}, v9 offset:{q * 1024}" for q in range(4)],
               ('x', 14): 4, ('x', 15): 4})
    st(a, 'om')
    a("s_nop 10")
    o = 112
    for q in range(4):
        a(f"s_waitcnt lgkmcnt({3 - q})")
        for i in range(4 * q, 4 * q + 4):
            a(f"v_add_f32 v{A3 + i}, v{A3 + i}, v{32 + i}")
        for i in range(2 * q, 2 * q + 2):
            a(f"v_cvt_pk_bf16_f32 v{o + i}, v{A3 + 2 * i}, v{A3 + 2 * i + 1}")
        if q % 2:
            j = q // 2
            for x in dstore(f"buffer_store_dwordx4 {vr(o + 4 * j, 4)}, v2, s[8:11], s52 offen offset:{j * 1024}"): a(x)
    for i in range(8):
        a(f"v_dot2c_f32_bf16 v14, s29, v{o + i}")
        a(f"v_dot2c_f32_bf16 v15, v{o + i}, v{o + i}")
    a("s_nop 2")
    a("v_mov_b32 v16, v14")
    a("v_mov_b32 v17, v15")
    a("s_nop 0")
    a("v_permlane32_swap_b32 v14, v16")
    a("v_permlane32_swap_b32 v15, v17")
    a("v_add_f32 v14, v14, v16")
    a("v_add_f32 v15, v15, v17")
    a("s_mov_b64 exec, 0xffffffff")
    for x in dstore("buffer_store_dwordx2 v[14:15], v3, s[8:11], s53 offen"): a(x)
    a("s_mov_b64 exec, -1")
    a("s_setprio 0")
    a("s_waitcnt vmcnt(0)")
    a("s_barrier")
    colsum()
    a.label("K2_B3")
    st(a, 'hw')
    a("v_add_u32 v3, 65536, v2")
    a("v_and_b32 v8, 31, v0")
    a("v_lshlrev_b32 v8, 4, v8")
    a(f"v_add_u32 v8, {SCR}, v8")
    a(f"s_mul_i32 s32, s36, {4 * 112 * 1024}")
    a("s_lshl_b32 s33, s39, 10")
    a("s_add_u32 s32, s32, s33")
    a(f"s_add_u32 s32, s32, {GF}")
    a("s_and_b32 s25, s22, 3")
    a(f"s_and_b32 s57, s37, {G_PERM}")
    a("s_lshl_b32 s57, s57, 1")
    a("s_xor_b32 s33, s25, s57")
    a("s_lshl_b32 s30, s36, 2")
    a("s_add_u32 s30, s30, s33")
    a(f"s_mul_i32 s33, s57, {112 * 1024}")
    a(f"s_sub_u32 s56, {2 * 112 * 1024}, s33")
    a("s_add_u32 s56, s56, s32")
    a("s_add_u32 s32, s32, s33")
    CNT = SCR + 2048; SPARE = SCR + 4096; WD = 128; KS = 14
    a(f"v_mov_b32 v4, {CNT}")
    a("v_mov_b32 v5, 1")
    def hread(dst, tt, s):
        return f"ds_read_b128 {vr(dst, 4)}, v{2 + tt // 2} offset:{(tt % 2) * 32768 + s * 1024}"
    def epi(g, z, st, tt):
        u = g + 8; o = []
        ve, a0, a1 = f"v{st+1}", f"v{st+2}", f"v{st+3}"
        o += [f"v_mul_f32 v{z+i}, v{g+i}, v{g+i}" for i in range(8)]
        o += [f"v_fma_f32 v{z+i}, v{z+i}, {a1}, {a0}" for i in range(8)]
        o += [f"v_mul_f32 v{z+i}, v{z+i}, v{g+i}" for i in range(8)]
        for i in range(8):
            o += [f"v_exp_f32 v{z+i}, v{z+i}", f"v_mul_f32 v{g+i}, v{g+i}, v{u+i}"]
        o += [f"v_fma_f32 v{z+i}, v{z+i}, {ve}, {ve}" for i in range(8)]
        o += [f"v_rcp_f32 v{z+i}, v{z+i}" for i in range(8)]
        o += [f"s_add_u32 s29, s{32 if tt < 2 else 56}, {(tt % 2) * 112 * 1024}"]
        o += [f"v_mul_f32 v{g+i}, v{g+i}, v{z+i}" for i in range(8)]
        o += [f"v_cvt_pk_bf16_f32 v{u+i}, v{g+2*i}, v{g+2*i+1}" for i in range(4)]
        o += dstore(f"buffer_store_dwordx4 {vr(u, 4)}, v2, s[8:11], s29 offen")
        return o
    ACC = 16; HB = 32; ZB = 80; SB = 88; TB = 92; NR = 12; STR = [96, 100, 104, 108]
    a(f"v_mov_b32 v{TB + 2}, 0")
    a(f"v_mov_b32 v{TB + 3}, 0")
    def cwait(tag, off, val=7, reg=4):
        a("s_mov_b32 s33, 0")
        a.label(f"K2_WC{tag}")
        a(f"ds_read_b32 v6, v{reg} offset:{off}")
        a("s_add_u32 s33, s33, 1")
        a("s_waitcnt lgkmcnt(0)")
        a(f"v_cmp_eq_u32 vcc, {val}, v6")
        a("s_cmp_gt_u32 s33, 0x100000")
        a(f"s_cbranch_scc1 K2_WX{tag}")
        a(f"s_cbranch_vccnz K2_WX{tag}")
        a("s_sleep 2")
        a(f"s_branch K2_WC{tag}")
        a.label(f"K2_WX{tag}")
    ntile = [0]
    def tile(tt, hooks, pre=None, last=False, late=False):
        a("s_setprio 1")
        rd = lambda ks: hread(HB + 4 * (ks % NR), tt, ks)
        if pre is None:
            for ks in range(NR - 1): a(rd(ks))
        for ks in range(32):
            if ks + NR - 1 < 32: a(rd(ks + NR - 1))
            if ks % 4 == 0:
                a(f"s_waitcnt lgkmcnt({min(ks + NR - 1, 31) - (ks + 3)})")
            a(MF32(vr(ACC, 16), vr(W + 4 * ks, 4), vr(HB + 4 * (ks % NR), 4), "0" if ks == 0 else None))
            if ks == G_P2: a("s_setprio 2")
            if ks == G_EA and tt == 2:
                a("s_waitcnt vmcnt(0)")
                a("s_mov_b64 exec, 1")
                a("ds_add_u32 v4, v5 offset:16")
                a("s_mov_b64 exec, -1")
            if ks == 28 and tt < 3:
                a("s_mov_b64 exec, 1")
                a(f"ds_add_u32 v4, v5 offset:{tt * 4}")
                a("s_mov_b64 exec, -1")
            if not late:
                if ks == 22: a(f"ds_read_b128 {vr(SB, 4)}, v8 offset:{tt * 512}")
                if ks == 29:
                    a(f"v_mov_b32 v{TB}, v{SB}")
                    a(f"v_mov_b32 v{TB + 1}, v{SB}")
            for x in hooks.get(ks, []): a(x)
        if late:
            a(f"ds_read_b128 {vr(SB, 4)}, v8 offset:{tt * 512}")
            a("s_waitcnt lgkmcnt(0)")
            a(f"v_mov_b32 v{TB}, v{SB}")
            a(f"v_mov_b32 v{TB + 1}, v{SB}")
            a("s_nop 1")
        a(MF32(vr(ACC, 16), vr(124, 4), vr(TB, 4)))
        a("s_setprio 0")
        for x in hooks.get("post", []): a(x)
        if tt == 2:
            ntile[0] += 1
            cwait(f"T{ntile[0]}", 24, 1)
        if not last:
            for ks in range(NR - 1): a(hread(HB + 4 * ks, tt + 1, ks))
        else:
            a("s_nop 10")
        for x in epi(ACC, ZB, SB, tt): a(x)
    a("s_lshl_b32 s26, s36, 17")
    a(f"s_add_u32 s26, s26, {HF}")
    a("s_lshl_b32 s33, s57, 15")
    a("s_sub_u32 s27, 65536, s33")
    a("s_add_u32 s27, s27, s26")
    a("s_add_u32 s26, s26, s33")
    a("s_lshl_b32 s28, s22, 12")
    a("s_add_u32 s29, s26, s28")
    a("s_mov_b32 m0, s28")
    a("s_lshl_b32 s52, s30, 12")
    a(f"s_add_u32 s52, s52, {ST}")
    a("s_lshl_b32 s53, s25, 9")
    a("v_add_u32 v9, s53, v8")
    a("v_and_b32 v1, 31, v0")
    a("v_lshlrev_b32 v1, 3, v1")
    a("v_lshl_add_u32 v1, v11, 11, v1")
    a("s_barrier")
    st(a, 't3')
    for i in range(4):
        a(f"buffer_load_dwordx4 v2, s[8:11], s29 offen offset:{i * 1024} {LD_SC} lds")
    a("s_cmp_lt_u32 s22, 4")
    a("s_cbranch_scc1 K2_GA")
    a("s_lshl_b32 s28, s25, 13")
    def hdma(tt, groups, base):
        for g in groups:
            a(f"s_add_u32 m0, {base}, {tt * 32768 + g * 4096}")
            a(f"s_add_u32 s29, s{26 if tt < 2 else 27}, {(tt % 2) * 32768 + g * 4096}")
            if base != "0": a(f"s_add_u32 s29, s29, {base}")
            for i in range(4):
                a(f"buffer_load_dwordx4 v2, s[8:11], s29 offen offset:{i * 1024} {LD_SC} lds")
    for q in range(8):
        a(f"buffer_load_dwordx2 {vr(STR[q // 2] + 2 * (q % 2), 2)}, v1, s[8:11], s52 offen offset:{q * 256} sc1")
    hdma(1, range(1), "s28")
    a("v_mov_b32 v6, 0")
    a("v_mov_b32 v7, 0")
    for q in range(4):
        a(f"ds_write_b64 v4, v[6:7] offset:{q * 8}")
    a("s_waitcnt vmcnt(12) lgkmcnt(0)")
    a("s_barrier")
    st(a, 'g1')
    hdma(1, range(1, 2), "s28")
    r0 = STR[0]
    SQ = []
    for q in range(1, 4):
        SQ += [f"v_add_f32 v{r0 + i}, v{r0 + i}, v{STR[q] + i}" for i in range(4)]
    SQ += [f"v_add_f32 v12, v{r0}, v{r0 + 2}", f"v_add_f32 v13, v{r0 + 1}, v{r0 + 3}",
           "v_mov_b32 v14, v12", "v_mov_b32 v15, v13", "s_nop 0",
           "v_permlane32_swap_b32 v12, v14", "v_permlane32_swap_b32 v13, v15",
           "v_add_f32 v12, v12, v14", "v_add_f32 v13, v13, v15",
           f"v_mul_f32 v12, {f32(-1/512)}, v12", f"v_mul_f32 v13, {f32(1/512)}, v13",
           "v_fma_f32 v13, -v12, v12, v13", "v_max_f32 v13, 0, v13", f"v_add_f32 v{r0 + 1}, {f32(EPS)}, v13",
           f"v_rsq_f32 v14, v{r0 + 1}", "v_cvt_pk_bf16_f32 v15, v12, v12", "v_lshlrev_b32 v15, 16, v15",
           "v_sub_f32 v12, v12, v15", f"v_cvt_pk_bf16_f32 v{r0}, v15, v12",
           f"v_mul_f32 v{r0 + 2}, {f32(-K1C)}, v14", "v_mul_f32 v14, v14, v14", f"v_mul_f32 v14, v14, v{r0 + 2}",
           f"v_mul_f32 v{r0 + 3}, {f32(0.044715)}, v14"]
    a("s_waitcnt vmcnt(8)")
    for x in SQ: a(x)
    a(f"ds_write_b128 v9, {vr(r0, 4)}")
    hdma(2, range(2), "s28")
    a("s_waitcnt lgkmcnt(0)")
    a("s_barrier")
    st(a, 'g2')
    a("s_cmp_eq_u32 s22, 7")
    a("s_cbranch_scc1 K2_W7")
    tile(0, {GB3: ["s_waitcnt vmcnt(0)", "s_barrier"]})
    tile(1, {}, pre=1); tile(2, {}, pre=1)
    tile(3, {}, pre=1, last=True)
    a("s_branch K2_DOWN")
    a.label("K2_W7")
    hdma(3, range(8), "0")
    a("s_waitcnt vmcnt(32)")
    a("s_barrier")
    srd(a, 12, 48, 1792 * 512 * 2)
    a("v_lshrrev_b32 v8, 2, v0")
    a("v_lshlrev_b32 v8, 10, v8")
    a("v_and_b32 v1, 3, v0")
    a("v_lshl_add_u32 v8, v1, 4, v8")
    a("v_lshlrev_b32 v9, 6, v10")
    a("v_lshl_add_u32 v9, v1, 3, v9")
    a("v_bfe_u32 v1, v0, 4, 1")
    a("v_lshl_add_u32 v9, v1, 5, v9")
    a(f"v_add_u32 v9, {SPARE}, v9")
    a("s_lshl_b32 s26, s24, 7")
    ko = lambda s_: s_ + (7 if s_ >= 7 else 0)
    a("s_and_b32 s52, s23, 1")
    a(f"s_mul_i32 s27, s52, {7 * 16384}")
    a("s_add_u32 s27, s27, s26")
    for j in range(28):
        a(f"s_mov_b32 m0, {SPARE + j * 1024}")
        a(f"s_add_u32 s29, s27, {(84 + ko(j // 2)) * 16384 + (1 ^ (j % 2)) * 64}")
        a("buffer_load_dwordx4 v8, s[12:15], s29 offen lds")
    a("s_waitcnt vmcnt(28)")
    a("ds_write_b32 v4, v5 offset:24")
    a("s_waitcnt vmcnt(0)")
    for j in range(28):
        for e in range(2):
            a(f"ds_read_b64_tr_b16 {vr(WD + 4 * j + 2 * e, 2)}, v9 offset:{j * 1024 + e * 512}")
    a("s_waitcnt lgkmcnt(0)")
    a("s_xor_b32 s53, s52, 1")
    a(f"s_mul_i32 s53, s53, {7 * 16384}")
    a("s_add_u32 s53, s53, s26")
    def sdma(w, j, lds):
        a(f"s_mov_b32 m0, {lds}")
        a(f"s_add_u32 s29, s{53 if w < 4 else 27}, {(28 * (w % 4) + ko(j // 2)) * 16384 + ((w % 2) ^ (j % 2)) * 64}")
        a("buffer_load_dwordx4 v8, s[12:15], s29 offen lds")
    for w in range(4):
        for j in range(7): sdma(w, j, SPARE + w * 7168 + j * 1024)
    for r in range(3):
        if r == 2:
            a("s_lshl_b32 s31, s36, 8")
            a("s_lshl_b32 s33, s37, 2")
            a("s_add_u32 s31, s31, s33")
            a(f"s_add_u32 s31, s31, {FL4 + 128}")
            a("v_mov_b32 v12, 0")
            a("v_mov_b32 v13, 1")
            cwait("A", 16)
            signal("K2_S4A")
        cwait(r, r * 4)
        for w in range(4): sdma(w, 7 + r, r * 32768 + 28672 + w * 1024)
        for j in range(28): sdma(4 + r, j, r * 32768 + j * 1024)
        if r == 2:
            a("s_waitcnt vmcnt(28)")
            a("ds_write_b32 v4, v5 offset:20")
    a("s_branch K2_DOWN")
    a.label("K2_GA")
    a("s_waitcnt vmcnt(0)")
    a("s_barrier")
    st(a, 'g1')
    tile(0, {31: ["s_barrier"]}, late=True, last=True)
    st(a, 'g2')
    a("s_barrier")
    tile(1, {}); tile(2, {}, pre=1)
    tile(3, {}, pre=1, last=True)
    a.label("K2_DOWN")
    st(a, 'gu')
    AC5 = 16; GS = [80, 88, 96, 104, 240, 248, 120]; NG = len(GS)
    srd(a, 12, 48, 1792 * 512 * 2)
    srd(a, 16, 62, 2048 * 512 * 2)
    a("s_lshl_b32 s31, s36, 8")
    a("s_lshl_b32 s33, s37, 2")
    a("s_add_u32 s31, s31, s33")
    a(f"s_add_u32 s31, s31, {FL4}")
    a("s_and_b32 s26, s22, 1")
    a("s_bfe_u32 s27, s22, 0x10001")
    a("s_lshl_b32 s28, s24, 1")
    a("s_add_u32 s28, s28, s26")
    a("s_lshl_b32 s30, s23, 1")
    a("s_add_u32 s30, s30, s27")
    a("s_lshr_b32 s33, s22, 2")
    a("s_xor_b32 s33, s33, s23")
    a("s_and_b32 s33, s33, 1")
    a("s_xor_b32 s57, s33, 1")
    a("s_lshl_b32 s33, s25, 2")
    a("s_add_u32 s33, s33, s57")
    a("s_mul_i32 s29, s33, 7168")
    a(f"s_mul_i32 s52, s30, {112 * 1024}")
    a("s_add_u32 s52, s52, s29")
    a(f"s_add_u32 s52, s52, {GF}")
    a("s_xor_b32 s53, s30, 1")
    a(f"s_mul_i32 s53, s53, {112 * 1024}")
    a("s_add_u32 s53, s53, s29")
    a(f"s_add_u32 s53, s53, {GF}")
    a(f"s_mul_i32 s29, s33, {7 * 16384}")
    a("s_lshl_b32 s54, s28, 6")
    a("s_xor_b32 s55, s54, 64")
    a("s_add_u32 s54, s54, s29")
    a("s_add_u32 s55, s55, s29")
    a("s_lshl_b32 s32, s22, 12")
    a("v_lshrrev_b32 v8, 2, v0")
    a("v_lshlrev_b32 v8, 10, v8")
    a("v_and_b32 v1, 3, v0")
    a("v_lshl_add_u32 v8, v1, 4, v8")
    a("v_lshlrev_b32 v9, 6, v10")
    a("v_lshl_add_u32 v9, v1, 3, v9")
    a("v_bfe_u32 v1, v0, 4, 1")
    a("v_lshl_add_u32 v9, v1, 5, v9")
    a("v_mov_b32 v12, 0")
    a("v_mov_b32 v13, 1")
    a("v_and_b32 v3, 31, v0")
    a("v_lshlrev_b32 v3, 10, v3")
    a("v_lshl_add_u32 v3, v11, 4, v3")
    def trd(j, reg, off):
        return [f"ds_read_b64_tr_b16 {vr(WD + 4 * j + 2 * e, 2)}, v{reg} offset:{off + e * 512}" for e in range(2)]
    def wdma(j, sreg, off):
        a(f"s_add_u32 m0, s{sreg}, {off}")
        a(f"s_add_u32 s29, s{54 + j % 2}, {ko(j // 2) * 16384}")
        V("buffer_load_dwordx4 v8, s[12:15], s29 offen lds", "wd")
    def dumpaddr():
        for t in range(4):
            a(f"s_xor_b32 s29, s25, {t}")
            a("s_lshl_b32 s29, s29, 15")
            a("s_add_u32 s29, s29, s32")
            a(f"v_add_u32 v{4 + t}, s29, v2")
    gb = [0]
    def gload(s):
        k = ko(s) * 1024
        if k - gb[0] > 3072:
            a(f"s_add_u32 s52, s52, {k - gb[0]}")
            a(f"s_add_u32 s53, s53, {k - gb[0]}")
            gb[0] = k
        for i in range(2):
            V(f"buffer_load_dwordx4 {vr(GS[s % NG] + 4 * i, 4)}, v2, s[8:11], s{52 + i} offen offset:{k - gb[0]} sc1", f"g{s}")
    def kloop(hooks, fills):
        issued = NG; fq = []
        for s in range(KS):
            for x in hooks.get(s, []):
                x() if callable(x) else a(x)
            fq += fills.get(s, [])
            vmwait(f"g{s}")
            g = GS[s % NG]; w = WD + 8 * s
            B0, B1, A0, A1 = vr(g, 4), vr(g + 4, 4), vr(w, 4), vr(w + 4, 4)
            C = "0" if s == 0 else None
            for d_, A_, B_ in ((AC5 + 32, A0, B1), (AC5 + 16, A1, B0), (AC5 + 48, A1, B1), (AC5, A0, B0)):
                a(MF32(vr(d_, 16), A_, B_, C))
                for _ in range(5):
                    if fq: a(fq.pop(0))
            if issued < KS:
                gload(issued); issued += 1
        assert not fq
    def dump(ts):
        for t in ts:
            for q in range(4):
                a(f"ds_write_b128 v{4 + t}, {vr(AC5 + 16 * t + 4 * q, 4)} offset:{q * 1024}")
    a("s_cmp_lt_u32 s22, 4")
    a("s_cbranch_scc1 K2_DLO")
    a("s_lshl_b32 s29, s25, 15")
    a("v_add_u32 v9, s29, v9")
    a(f"v_mov_b32 v14, {CNT}")
    dumpaddr()
    a("s_waitcnt vmcnt(0)")
    a("s_barrier")
    signal("K2_S4", True)
    st(a, 'z0')
    del vm[:]; gb[0] = 0
    for s in range(NG): gload(s)
    a("s_cmp_eq_u32 s22, 7")
    a("s_cbranch_scc1 K2_D7")
    for j in range(28):
        for x in trd(j, 9, j * 1024): a(x)
    a.label("K2_D7")
    a("s_waitcnt lgkmcnt(0)")
    a("s_mov_b64 exec, 1")
    a("ds_add_u32 v14, v13 offset:28")
    a("s_mov_b64 exec, -1")
    if D_PRIO: a("s_setprio 2")
    kloop({D_ZS: ["s_barrier"]} if D_ZS >= 0 else {}, {})
    a("v_mov_b32 v15, v6")
    cwait("Z", 28, 8, 14)
    a("v_mov_b32 v6, v15")
    st(a, 't4'); st(a, 'dk'); st(a, 'db'); st(a, 'ds')
    a("s_nop 8")
    dump((2, 1, 3, 0))
    a("s_waitcnt lgkmcnt(0)")
    a("s_barrier")
    stamp_end(a, 0, 7, 8)
    a("s_endpgm")
    a.label("K2_DLO")
    del vm[:]; gb[0] = 0
    a("s_mul_i32 s26, s25, 7168")
    a(f"s_add_u32 s26, s26, {SPARE}")
    a("s_lshl_b32 s27, s25, 10")
    a("s_add_u32 s27, s27, 28672")
    a("s_lshl_b32 s28, s25, 13")
    a("s_add_u32 s28, s28, 98304")
    a("v_add_u32 v10, s26, v9")
    a("v_add_u32 v14, s27, v9")
    a("v_add_u32 v15, 65536, v14")
    a("v_add_u32 v9, s28, v9")
    SL = [(26, k * 1024, 10, k * 1024) for k in range(7)] + [(27, 0, 14, 0), (27, 32768, 14, 32768), (27, 65536, 15, 0)]
    cwait("R", 20, 1)
    for k in range(10):
        for x in trd(k, SL[k][2], SL[k][3]): a(x)
    a("s_waitcnt vmcnt(0) lgkmcnt(0)")
    for k in range(10): wdma(10 + k, SL[k][0], SL[k][1])
    a("s_cmp_eq_u32 s22, 3")
    a("s_cbranch_scc0 K2_NPA")
    a("v_mov_b32 v16, v15")
    a("s_lshr_b32 s29, s23, 1")
    a("s_lshl_b32 s29, s29, 8")
    a("s_xor_b32 s30, s57, 1")
    a("s_lshl_b32 s33, s30, 2")
    a("s_add_u32 s29, s29, s33")
    a(f"s_add_u32 s29, s29, {FL4 + 128}")
    poll("K2_P4A", 29, 8, 3)
    a("v_mov_b32 v15, v16")
    if G_ET:
        a("s_lshl_b32 s33, s24, 1")
        a("s_add_u32 s29, s30, s33")
        a("s_mul_i32 s29, s29, 7168")
        a(f"s_mul_i32 s33, s23, {224 * 1024}")
        a("s_add_u32 s29, s29, s33")
        a(f"s_add_u32 s29, s29, {GF}")
        a("v_min_u32 v1, 55, v0")
        a("v_lshlrev_b32 v1, 7, v1")
        a("buffer_load_dword v17, v1, s[8:11], s29 offen sc1")
        a(f"s_add_u32 s29, s29, {112 * 1024}")
        a("buffer_load_dword v17, v1, s[8:11], s29 offen sc1")
    a.label("K2_NPA")
    dumpaddr()
    a("s_barrier")
    st(a, 'z0')
    for k in range(8): wdma(20 + k, 28, k * 1024)
    a("s_waitcnt vmcnt(8)")
    for k in range(10):
        for x in trd(10 + k, SL[k][2], SL[k][3]): a(x)
    a("s_lshl_b32 s29, s25, 15")
    a("v_add_u32 v8, s29, v2")
    a(f"v_mov_b32 v12, {CNT + 12}")
    a("s_waitcnt vmcnt(0)")
    for k in range(8):
        for x in trd(20 + k, 9, k * 1024): a(x)
    for t in range(1, 4):
        a(f"s_xor_b32 s33, s25, {t}")
        a("s_lshl_b32 s33, s33, 12")
        a(f"v_add_u32 v{(10, 11, 4)[t - 1]}, s33, v8")
    a("s_waitcnt lgkmcnt(0)")
    a("s_mov_b64 exec, 1")
    a("ds_add_u32 v12, v13 offset:16")
    a("s_mov_b64 exec, -1")
    if D_ZS >= 0: a("s_barrier")
    a("s_cmp_eq_u32 s22, 0")
    a("s_cbranch_scc0 K2_DSP")
    a("s_lshr_b32 s29, s23, 1")
    a("s_lshl_b32 s29, s29, 8")
    a("s_lshl_b32 s33, s57, 2")
    a("s_add_u32 s29, s29, s33")
    a(f"s_add_u32 s29, s29, {FL4}")
    poll2("K2_P4", 29, 8, 3)
    a("ds_write_b32 v12, v13")
    a("s_branch K2_DGO")
    a.label("K2_DSP")
    a("s_mov_b32 s33, 0")
    a.label("K2_DSL")
    a("s_sleep 1")
    a("ds_read_b32 v15, v12")
    a("s_add_u32 s33, s33, 1")
    a("s_waitcnt lgkmcnt(0)")
    a("v_cmp_eq_u32 vcc, 1, v15")
    a("s_cmp_gt_u32 s33, 0x400000")
    a("s_cbranch_scc1 K2_DGO")
    a("s_cbranch_vccz K2_DSL")
    a.label("K2_DGO")
    st(a, 't4')
    del vm[:]
    for s in range(NG): gload(s)
    a("s_mov_b32 s56, 0xffff0000")
    a("s_waitcnt lgkmcnt(0)")
    F1 = [f"ds_read_b128 {vr(WD + 16 * p_ + 4 * q, 4)}, v8 offset:{16384 + p_ * 4096 + q * 1024}" for p_ in range(4) for q in range(4)]
    F2 = [f"v_add_f32 v{WD + i}, v{WD + i}, v{WD + 16 + i}" for i in range(16)]
    F2 += [f"v_add_f32 v{WD + 32 + i}, v{WD + 32 + i}, v{WD + 48 + i}" for i in range(16)]
    F2 += [f"v_add_f32 v{WD + i}, v{WD + i}, v{WD + 32 + i}" for i in range(16)]
    for i in range(8):
        F2 += [f"v_lshlrev_b32 v{WD + 16 + 2 * i}, 16, v{112 + i}", f"v_and_b32 v{WD + 17 + 2 * i}, s56, v{112 + i}"]
    F2 += [f"v_add_f32 v{WD + i}, v{WD + i}, v{WD + 16 + i}" for i in range(16)]
    kloop({8: ["s_barrier"], 10: ["s_waitcnt lgkmcnt(0)"]}, {8: F1, 10: F2}) if not D_LATE else kloop({9: ["s_barrier"], 10: ["s_waitcnt lgkmcnt(0)"]}, {9: F1, 10: F2})
    st(a, 'dk')
    dump((2, 1, 3))
    for i in range(16):
        a(f"v_add_f32 v{AC5 + i}, v{AC5 + i}, v{WD + i}")
    a("s_waitcnt lgkmcnt(0)")
    a("s_barrier")
    st(a, 'db')
    for t in range(3):
        for q in range(4):
            a(f"ds_read_b128 {vr(WD + 16 * t + 4 * q, 4)}, v{(10, 11, 4)[t]} offset:{q * 1024}")
    for t in range(3):
        a(f"s_waitcnt lgkmcnt({8 - 4 * t})")
        for i in range(0, 16, 2):
            a(f"v_pk_add_f32 {vr(AC5 + i, 2)}, {vr(AC5 + i, 2)}, {vr(WD + 16 * t + i, 2)}")
    o = AC5 + 16
    for i in range(8):
        a(f"v_cvt_pk_bf16_f32 v{o + i}, v{AC5 + 2 * i}, v{AC5 + 2 * i + 1}")
    a("s_nop 0")
    for j in range(2):
        a(f"v_permlane32_swap_b32 v{o + 4 * j}, v{o + 4 * j + 2}")
        a(f"v_permlane32_swap_b32 v{o + 4 * j + 1}, v{o + 4 * j + 3}")
    for j in range(2):
        a(f"buffer_store_dwordx4 {vr(o + 4 * j, 4)}, v3, s[16:19], s51 offen offset:{j * 32} {OUT_SC}")
    st(a, 'ds')
    stamp_end(a, 0, 7, 8)
    a("s_endpgm")
    a.label("K2_FALLBACK")
    a("v_mov_b32 v1, v2")
    a("v_mov_b32 v14, 0xff800000")
    a("s_mov_b32 s33, 0")
    a.label("K2_FB1")
    a(f"ds_read_b128 {vr(KR, 4)}, v1")
    a("v_add_u32 v1, 1024, v1")
    a("s_waitcnt lgkmcnt(0)")
    a(MF32(vr(s0, 16), vr(KR, 4), vr(Q, 4), "0"))
    a("s_nop 11")
    for i in range(0, 16, 2):
        a(f"v_max3_f32 v14, v14, v{s0+i}, v{s0+i+1}")
    a("s_add_u32 s33, s33, 1")
    a("s_cmp_lt_u32 s33, 64")
    a("s_cbranch_scc1 K2_FB1")
    set_negm()
    for i in range(16):
        a(f"v_mov_b32 v{O + i}, 0")
    a("v_mov_b32 v1, v2")
    a("s_mov_b32 s33, 0")
    a.label("K2_FB2")
    a(f"ds_read_b128 {vr(KR, 4)}, v1")
    a("s_mov_b64 exec, s[34:35]")
    a(f"ds_read_b128 {vr(VR, 4)}, v3")
    a(f"ds_read_b128 {vr(VR + 4, 4)}, v3 offset:512")
    a("s_mov_b64 exec, -1")
    a("v_add_u32 v1, 1024, v1")
    a("v_add_u32 v3, 1024, v3")
    a("s_waitcnt lgkmcnt(0)")
    a(MF32(vr(s0, 16), vr(KR, 4), vr(Q, 4), vr(NEGM, 16)))
    a("s_nop 11")
    for i in range(16): a(f"v_exp_f32 v{s0+i}, v{s0+i}")
    a("s_nop 0")
    for i in range(8): a(f"v_cvt_pk_bf16_f32 v{P+i}, v{s0+2*i}, v{s0+2*i+1}")
    a("s_nop 1")
    a(MF32(vr(O, 16), vr(VR, 4), vr(P, 4)))
    a(MF32(vr(O, 16), vr(VR + 4, 4), vr(P + 4, 4)))
    a("s_add_u32 s33, s33, 1")
    a("s_cmp_lt_u32 s33, 64")
    a("s_cbranch_scc1 K2_FB2")
    a("s_nop 11")
    a("s_branch K2_FIN")
    a.label("K2_END")
    a("s_endpgm")
    return n, a, kd(n, 256, 256), (256, 512, 163840)

def k5():
    a = Asm(); n = "k3_down_kernel"
    NS = 112; KS = 28; DEPTH = 8
    kernel_head(a, n)
    ACC = 16; GB = 80; WB = 144; RES = 160
    RED = 65536
    a("s_cmp_ge_u32 s2, 256")
    a("s_cbranch_scc1 K5_END")
    stamp(a, 0)
    if DBGK1:
        a("s_memrealtime s[64:65]")
        a("s_memtime s[66:67]")
    a("s_load_dwordx2 s[4:5], s[0:1], 72")
    a("s_load_dwordx4 s[40:43], s[0:1], 48")
    a("v_lshrrev_b32 v1, 6, v0")
    a("v_and_b32 v0, 63, v0")
    a("v_readfirstlane_b32 s22, v1")
    a("v_lshlrev_b32 v2, 4, v0")
    a("s_and_b32 s23, s2, 7")
    a("s_lshl_b32 s23, s23, 2")
    a("s_bfe_u32 s29, s2, 0x20003")
    a("s_add_u32 s23, s23, s29")
    a("s_lshr_b32 s24, s2, 5")
    a("s_and_b32 s25, s22, 1")
    a("s_lshr_b32 s26, s22, 1")
    a("s_lshl_b32 s27, s24, 1")
    a("s_add_u32 s27, s27, s25")
    a("s_lshl_b32 s28, s23, 1")
    a("s_add_u32 s28, s28, s26")
    a(f"s_mul_i32 s29, s22, {KS * 1024}")
    a(f"s_mul_i32 s32, s28, {NS * 1024}")
    a("s_add_u32 s32, s32, s29")
    a(f"s_add_u32 s32, s32, {GF}")
    a("s_xor_b32 s33, s28, 1")
    a(f"s_mul_i32 s33, s33, {NS * 1024}")
    a("s_add_u32 s33, s33, s29")
    a(f"s_add_u32 s33, s33, {GF}")
    a(f"s_mul_i32 s29, s22, {KS * 16384}")
    a("s_lshl_b32 s30, s27, 6")
    a("s_xor_b32 s31, s30, 64")
    a("s_add_u32 s30, s30, s29")
    a("s_add_u32 s31, s31, s29")
    a("s_lshl_b32 s36, s22, 14")
    a("v_lshrrev_b32 v8, 2, v0")
    a("v_lshlrev_b32 v8, 10, v8")
    a("v_and_b32 v1, 3, v0")
    a("v_lshl_add_u32 v8, v1, 4, v8")
    a("s_waitcnt lgkmcnt(0)")
    srd(a, 8, 4, WS_SIZE)
    srd(a, 16, 40, 1792 * 512 * 2)
    srd(a, 12, 42, 2048 * 512 * 2)
    def loads(s):
        b = GB + 8 * (s % DEPTH)
        if s % 4 == 0 and s > 0:
            a("s_add_u32 s32, s32, 4096")
            a("s_add_u32 s33, s33, 4096")
        for i in range(2):
            a(f"s_add_u32 m0, s36, {(s % DEPTH) * 2048 + i * 1024}")
            a(f"s_add_u32 s29, s{30 + i}, {s * 16384}")
            a("buffer_load_dwordx4 v8, s[16:19], s29 offen lds")
        for i in range(2):
            a(f"buffer_load_dwordx4 {vr(b + 4 * i, 4)}, v2, s[8:11], s{32 + i} offen offset:{(s % 4) * 1024}")
    for s in range(DEPTH - 1):
        loads(s)
    a("v_lshrrev_b32 v4, 5, v0")
    a("v_bfe_u32 v1, v0, 2, 2")
    a("v_lshl_add_u32 v9, v4, 2, v1")
    a("v_lshlrev_b32 v9, 6, v9")
    a("v_and_b32 v1, 3, v0")
    a("v_lshl_add_u32 v9, v1, 3, v9")
    a("v_bfe_u32 v1, v0, 4, 1")
    a("v_lshl_add_u32 v9, v1, 5, v9")
    a("v_add_u32 v9, s36, v9")
    a("v_and_b32 v3, 31, v0")
    a("v_lshlrev_b32 v3, 10, v3")
    a("v_lshl_add_u32 v3, v4, 4, v3")
    a("s_lshl_b32 s34, s28, 15")
    a("s_lshl_b32 s35, s27, 6")
    a("s_add_u32 s34, s34, s35")
    a("s_lshl_b32 s35, s28, 15")
    a("s_lshl_b32 s37, s27, 11")
    a("s_add_u32 s35, s35, s37")
    a(f"s_add_u32 s35, s35, {HF}")
    for t in range(1, 4):
        a(f"s_xor_b32 s29, s22, {t}")
        a("s_mul_i32 s29, s29, 12288")
        a(f"s_add_u32 s29, s29, {RED}")
        a(f"v_add_u32 v{4 + t}, s29, v2")
    a("s_mul_i32 s29, s22, 12288")
    a(f"s_add_u32 s29, s29, {RED}")
    a("v_add_u32 v4, s29, v2")
    def trreads(s):
        for i in range(2):
            for e in range(2):
                a(f"ds_read_b64_tr_b16 {vr(WB + 8 * (s % 2) + 4 * i + 2 * e, 2)}, v9 offset:{(s % DEPTH) * 2048 + i * 1024 + e * 512}")
    def mfmas(s):
        g = GB + 8 * (s % DEPTH); w = WB + 8 * (s % 2)
        B0, B1, A0, A1 = vr(g, 4), vr(g + 4, 4), vr(w, 4), vr(w + 4, 4)
        C = "0" if s == 0 else None
        a(MF32(vr(ACC, 16), A0, B0, C))
        a(MF32(vr(ACC + 32, 16), A0, B1, C))
        a(MF32(vr(ACC + 16, 16), A1, B0, C))
        a(MF32(vr(ACC + 48, 16), A1, B1, C))
    issued = DEPTH - 1; res = 0
    a(f"s_waitcnt vmcnt({(issued - 1) * 4})")
    st(a, 't1')
    trreads(0)
    for s in range(KS):
        if issued < KS:
            loads(issued); issued += 1
            if issued == KS:
                for j in range(2):
                    a(f"buffer_load_dwordx4 {vr(RES + 4 * j, 4)}, v2, s[8:11], s35 offen offset:{j * 1024}")
                res = 2
        if s + 1 < KS:
            a(f"s_waitcnt vmcnt({(issued - s - 2) * 4 + res})")
            trreads(s + 1)
            a("s_waitcnt lgkmcnt(4)")
        else:
            a("s_waitcnt lgkmcnt(0)")
        mfmas(s)
    st(a, 'att')
    a("s_waitcnt vmcnt(0)")
    a("s_mov_b32 s29, 0xffff0000")
    for i in range(8):
        a(f"v_lshlrev_b32 v{RES + 8 + 2 * i}, 16, v{RES + i}")
        a(f"v_and_b32 v{RES + 9 + 2 * i}, s29, v{RES + i}")
    for t in (2, 1, 3):
        for q in range(4):
            a(f"ds_write_b128 v{4 + t}, {vr(ACC + 16 * t + 4 * q, 4)} offset:{(t - 1) * 4096 + q * 1024}")
    for i in range(16):
        a(f"v_add_f32 v{ACC + i}, v{ACC + i}, v{RES + 8 + i}")
    a("s_waitcnt lgkmcnt(0)")
    a("s_barrier")
    for t in range(3):
        for q in range(4):
            a(f"ds_read_b128 {vr(GB + 16 * t + 4 * q, 4)}, v4 offset:{t * 4096 + q * 1024}")
    for t in range(3):
        a(f"s_waitcnt lgkmcnt({8 - 4 * t})")
        for i in range(0, 16, 2):
            a(f"v_pk_add_f32 {vr(ACC + i, 2)}, {vr(ACC + i, 2)}, {vr(GB + 16 * t + i, 2)}")
    o = ACC + 16
    for i in range(8):
        a(f"v_cvt_pk_bf16_f32 v{o + i}, v{ACC + 2 * i}, v{ACC + 2 * i + 1}")
    a("s_nop 0")
    for j in range(2):
        a(f"v_permlane32_swap_b32 v{o + 4 * j}, v{o + 4 * j + 2}")
        a(f"v_permlane32_swap_b32 v{o + 4 * j + 1}, v{o + 4 * j + 3}")
    for j in range(2):
        a(f"buffer_store_dwordx4 {vr(o + 4 * j, 4)}, v3, s[12:15], s34 offen offset:{j * 32}")
    stamp_end(a, 2, 3, 8)
    if DBGK1:
        a("s_waitcnt vmcnt(0)")
        a("s_memrealtime s[68:69]")
        a("s_memtime s[70:71]")
        a("s_load_dwordx2 s[72:73], s[0:1], 64")
        a("s_waitcnt lgkmcnt(0)")
        srd(a, 76, 72, 256)
        a("s_sub_u32 s70, s70, s66")
        a("s_cmp_lg_u32 s2, 0")
        a("s_cbranch_scc1 K5_END")
        a(f"s_mov_b32 s74, {DBGOFF}")
        a("v_mov_b32 v0, 0")
        a("buffer_load_dwordx4 v[4:7], v0, s[8:11], s74 offen")
        a("buffer_load_dwordx4 v[8:11], v0, s[8:11], s74 offen offset:16")
        a("s_waitcnt vmcnt(0)")
        a("v_sub_u32 v5, v5, v4")
        a("v_sub_u32 v8, v8, v4")
        a("v_sub_u32 v9, v9, v4")
        a("v_sub_u32 v12, s64, v4")
        a("v_sub_u32 v13, s68, v4")
        a("v_mov_b32 v14, s70")
        a("v_mov_b32 v15, 0")
        a("buffer_store_dwordx4 v[4:7], v0, s[76:79], 0 offen")
        a("buffer_store_dwordx4 v[8:11], v0, s[76:79], 0 offen offset:16")
        a("buffer_store_dwordx4 v[12:15], v0, s[76:79], 0 offen offset:32")
    a.label("K5_END")
    a("s_endpgm")
    return n, a, kd(n, 192, 192), (256, 256, RED + 49152)

def main(out):
    ks = [k234()]
    hdr = open("cdna_kernels/" + NAME + ".s.ref").read().split("\n")
    hdr = [l for l in hdr if l.startswith(";") and "@launch" not in l and "Override" not in l and "grid=ceil" not in l]
    txt = "\n".join(hdr) + "\n"
    for n, a, d, (g, b, lds) in ks:
        txt += f"; @launch {'kernel=' + n + ' ' if LIST else ''}grid=({g},1,1) block=({b},1,1) lds={lds}\n"
    txt += '.amdgcn_target "amdgcn-amd-amdhsa--gfx950"\n.text\n'
    bad = 0
    for ki, (n, a, d, _) in enumerate(ks):
        fl = ST_FLAGS[ki]
        if fl:
            a.lines = [l + " " + fl if ("buffer_store_dwordx" in l and "sc1" not in l) else l for l in a.lines]
        bad += check_hazards(a.lines, n)
        txt += a.text()
    txt += "CODE_END:\n"
    txt += '.section .rodata,"a"\n'
    for n, a, d, _ in ks:
        txt += ".p2align 6\n" + d
    open(out, "w").write(txt)
    print("hazards:", bad)

if __name__ == "__main__":
    if "stamp" in sys.argv: STAMP = True
    for arg in sys.argv[2:]:
        if "=" in arg:
            k_, v_ = arg.split("=", 1)
            globals()[k_] = eval(v_)
    main(sys.argv[1] if len(sys.argv) > 1 else "cdna_kernels/" + NAME + ".s")
```

```python
import sys, math, struct
from asmlib import *

NAME = "sequential_preLN__mha_block__geglu_ffn__prompt"

QF, KF, VF, OF, HF = 0x000000, 0x200000, 0x400000, 0x600000, 0x800000
ST  = 0xA00000
CSF = 0xA80000
WOF = 0xB00000
WGF = 0xC00000
WDF = 0x1000000
GF  = 0x1200000
WS_SIZE = 0x10000000
FL1 = 0xB02800
FL2 = 0xB00000
FL3 = 0xB00800
FL4 = 0xB01800

def f32(x):
    return "0x%08x" % struct.unpack("<I", struct.pack("<f", x))[0]

LOG2E = 1.4426950408889634
EPS = 1e-5

def srd(a, s, base, size):
    a(f"s_mov_b32 s{s}, s{base}")
    a(f"s_mov_b32 s{s+1}, s{base+1}")
    a(f"s_mov_b32 s{s+2}, {hex(size)}")
    a(f"s_mov_b32 s{s+3}, 0x00020000")

def kernel_head(a, name):
    a.raw(f".globl {name}")
    a.raw(".p2align 8")
    a.raw(f".type {name},@function")
    a.raw(f"{name}:")

def kd(name, nvgpr, accum, nsgpr=100):
    return f""".amdhsa_kernel {name}
  .amdhsa_next_free_vgpr {nvgpr}
  .amdhsa_next_free_sgpr {nsgpr}
  .amdhsa_accum_offset {accum}
  .amdhsa_group_segment_fixed_size 0
  .amdhsa_kernarg_size 80
  .amdhsa_user_sgpr_count 2
  .amdhsa_user_sgpr_kernarg_segment_ptr 1
  .amdhsa_system_sgpr_workgroup_id_x 1
.end_amdhsa_kernel
"""

STAMP = False
K1_CHIP = 0
K1_CF = ''
K2_T0 = 12
O_TCH = -1
H_TCH = -1
OUT_SC = ''
D_PRIO = 1
D_LATE = 0
O_PRIO = 0
ATOM = 1
NREP = 1
PIF = 1
POLL_PRE = 0
O_B1 = 10
POLL2 = 0
D_ZS = 4
W3_TOUCH = 0
G_EA = 12
G_PERM = 1
G_ET = 1
D_ROT = 1
G_TOUCH = 0
SMAP = ['t1', 'att', 't2', 't3', 'gu', 't4']
K2_Y2 = 40
K2_PER = 4
PIN = None
PINN = []
LIST = 1
FASTL2 = 1
D_Y = 6
DBGK1 = 0
LD_SC = 'sc1'
GSTAMP = 0
G_P2 = 8
GB3 = 20
GA3 = 0
POLL_SLEEP = 0
B_FILL = 4
K2_TCH = 1
G_SC = 'sc1'
CODE_TOUCH = 0
K1_ROT = 1
K1_TW = [-1, 0, 1]
K4_SL = 26
K2_S3 = 11
K2_WD = 0
K1_D = 1
K4_D = 2
K4_XB = 12
K4_TOUCH = 0
K2_S2 = 4
K1_TOUCH = 1
ST_FLAGS = ['', '', '', '', '']
K2_Y = 8
SIDE_SC = 'sc1'
K1_UP = 14
K4_UP = 22
DBGOFF = 0x2000000
def st(a, name):
    if name in SMAP: stamp(a, SMAP.index(name) + 1)
def stamp(a, i):
    if PIN:
        if i == 0: a("s_memrealtime s[64:65]")
        if i == PIN[0]:
            PINN.append(0); L = f"PIN{len(PINN)}"
            if len(PIN) > 2:
                a(f"s_cmp_lg_u32 s2, {PIN[2]}")
                a(f"s_cbranch_scc1 {L}X")
            a.label(L)
            a("s_memrealtime s[66:67]")
            a("s_waitcnt lgkmcnt(0)")
            a("s_sub_u32 s66, s66, s64")
            a(f"s_cmp_lt_u32 s66, {PIN[1]}")
            a(f"s_cbranch_scc1 {L}")
            a.label(L + "X")
    if not STAMP: return
    a(f"s_memrealtime s[{64 + 4 * i}:{65 + 4 * i}]")
    a(f"s_memtime s[{66 + 4 * i}:{67 + 4 * i}]")
    if i != 0:
        a("s_waitcnt lgkmcnt(0)")
def stamp_end(a, kidx, n, srdreg, wavereg=22):
    if PIN: stamp(a, n)
    if not STAMP: return
    a("s_waitcnt vmcnt(0)")
    stamp(a, n)
    a("s_lshl_b32 s60, s2, 3")
    a(f"s_add_u32 s60, s60, s{wavereg}")
    a("s_lshl_b32 s60, s60, 6")
    a(f"s_add_u32 s60, s60, {DBGOFF + kidx * 0x40000}")
    a("v_mov_b32 v0, 0")
    for j in range(2 * n + 2):
        a(f"v_mov_b32 v1, s{64 + 2 * j}")
        a(f"buffer_store_dword v1, v0, s[{srdreg}:{srdreg+3}], s60 offen offset:{4 * j}")

def MF32(d, A, B, C=None):
    C = d if C is None else C
    return f"v_mfma_f32_32x32x16_bf16 {d}, {A}, {B}, {C}"

def halfsum(a, v, t):
    a(f"v_mov_b32 v{t}, v{v}")
    a("s_nop 1")
    a(f"v_permlane32_swap_b32 v{v}, v{t}")
    a(f"v_add_f32 v{v}, v{v}, v{t}")


def k1():
    a = Asm(); n = NAME + "_kernel"
    kernel_head(a, n)
    SLOT = 28672; SCR = 5 * SLOT; SCR2 = SCR + 1536; SCR3 = SCR2 + 512
    D = K1_D
    a("s_cmp_ge_u32 s2, 256")
    a("s_cbranch_scc1 K2_END")
    stamp(a, 0)
    if DBGK1:
        a("s_memrealtime s[64:65]")
        a("s_memtime s[66:67]")
    a("s_load_dwordx4 s[4:7], s[0:1], 0")
    a("s_load_dwordx4 s[56:59], s[0:1], 64")
    a("v_lshrrev_b32 v1, 6, v0")
    a("v_and_b32 v0, 63, v0")
    a("v_readfirstlane_b32 s35, v1")
    a("s_and_b32 s23, s2, 3")
    a("s_lshl_b32 s23, s23, 2")
    a("s_bfe_u32 s29, s2, 0x20003")
    a("s_add_u32 s23, s23, s29")
    a("s_bfe_u32 s24, s2, 0x10002")
    a("s_lshl_b32 s24, s24, 3")
    a("s_lshr_b32 s29, s2, 5")
    a("s_add_u32 s24, s24, s29")
    a("s_and_b32 s22, s35, 3")
    a("s_lshl_b32 s27, s22, 12")
    a("s_lshl_b32 s40, s2, 1")
    a("s_and_b32 s29, s2, 4")
    a("s_add_u32 s40, s40, s29")
    if not K1_ROT: a("s_mov_b32 s40, 0")
    a("s_cmp_lt_u32 s35, 4")
    a("s_cbranch_scc1 K1_RDADDR")
    a("s_lshl_b32 s25, s23, 17")
    a("s_lshl_b32 s29, s22, 15")
    a("s_add_u32 s25, s25, s29")
    a("s_mul_i32 s26, s22, 49152")
    a("s_lshl_b32 s29, s24, 6")
    a("s_add_u32 s26, s26, s29")
    a("s_lshl_b32 s28, s22, 10")
    a("s_add_u32 s28, s28, 16384")
    a("s_mov_b32 s30, 0x3f803f80")
    a("v_lshrrev_b32 v5, 3, v0")
    a("v_lshlrev_b32 v2, 10, v5")
    a("v_and_b32 v6, 7, v0")
    a("v_lshrrev_b32 v7, 4, v0")
    a("v_xor_b32 v6, v6, v7")
    a("v_lshl_add_u32 v2, v6, 4, v2")
    a("v_xor_b32 v3, 64, v2")
    a("v_add_u32 v3, 8192, v3")
    a("v_lshrrev_b32 v5, 2, v0")
    a("v_mul_u32_u24 v4, 3072, v5")
    a("v_and_b32 v6, 3, v0")
    a("v_lshl_add_u32 v4, v6, 4, v4")
    a("s_waitcnt lgkmcnt(0)")
    srd(a, 8, 4, 2048 * 512 * 2)
    srd(a, 12, 6, 512 * 1536 * 2)
    def dma(c):
        slot = (c % 5) * SLOT
        a(f"s_add_u32 s41, s40, {c}")
        a("s_and_b32 s41, s41, 7")
        a("s_lshl_b32 s42, s41, 7")
        a("s_add_u32 s42, s42, s25")
        a(f"s_mul_i32 s41, s41, {64 * 3072}")
        a("s_add_u32 s41, s41, s26")
        for p in range(3):
            a(f"s_add_u32 m0, s28, {slot + p * 4096}")
            a(f"s_add_u32 s29, s41, {p * 1024}")
            a(f"buffer_load_dwordx4 v4, s[12:15], s29 offen lds")
        for i in range(4):
            a(f"s_add_u32 m0, s27, {slot + i * 1024}")
            a(f"s_add_u32 s29, s42, {(i // 2) * 16384}")
            a(f"buffer_load_dwordx4 v{2 + (i % 2)}, s[8:11], s29 offen lds")
    for c in range(D + 1):
        dma(c)
    a.label("K1_RDADDR")
    a("v_and_b32 v5, 31, v0")
    a("v_lshrrev_b32 v6, 5, v0")
    a("v_bfe_u32 v7, v0, 1, 3")
    a("v_xor_b32 v7, v7, v6")
    a("v_lshlrev_b32 v5, 7, v5")
    a("v_add_u32 v5, s27, v5")
    for s in range(4):
        a(f"v_xor_b32 v1, {2 * s}, v7")
        a(f"v_lshl_add_u32 v{8 + s}, v1, 4, v5")
        a(f"v_add_u32 v{12 + s}, {2 * SLOT}, v{8 + s}")
        a(f"v_add_u32 v{16 + s}, {4 * SLOT}, v{8 + s}")
    a("v_bfe_u32 v1, v0, 2, 2")
    a("v_lshl_add_u32 v1, v6, 3, v1")
    a("v_lshlrev_b32 v20, 6, v1")
    a("v_bfe_u32 v1, v0, 4, 1")
    a("v_lshl_add_u32 v20, v1, 5, v20")
    a("v_and_b32 v1, 3, v0")
    a("v_lshl_add_u32 v20, v1, 3, v20")
    a("s_cmp_lt_u32 s35, 4")
    a("s_cbranch_scc1 K1_MM")
    a("s_lshl_b32 s29, s22, 10")
    a("v_add_u32 v20, s29, v20")
    a(f"v_add_u32 v21, {2 * SLOT}, v20")
    a(f"v_add_u32 v22, {4 * SLOT}, v20")
    for i in range(28, 31):
        a(f"v_mov_b32 v{i}, 0")
    WB = 48
    for c in range(8):
        slot = c % 5; st = slot // 2; off = (slot % 2) * SLOT
        a(f"s_waitcnt vmcnt({7 * (min(c + D, 7) - c)})")
        a("s_barrier")
        for p in range(3):
            for u in range(2):
                a(f"ds_read_b64_tr_b16 {vr(WB + 4 * p + 2 * u, 2)}, v{20 + st} offset:{off + 16384 + p * 4096 + u * 256}")
        if c + D + 1 < 8:
            dma(c + D + 1)
        a("s_waitcnt lgkmcnt(0)")
        for i in range(4):
            for p in range(3):
                a(f"v_dot2c_f32_bf16 v{28 + p}, s30, v{WB + 4 * p + i}")
    a("v_and_b32 v5, 31, v0")
    a("v_lshlrev_b32 v6, 4, v5")
    a("s_lshl_b32 s29, s22, 2")
    a(f"s_add_u32 s29, s29, {SCR}")
    a("v_add_u32 v7, s29, v6")
    for p in range(3):
        halfsum(a, 28 + p, 1)
        a(f"ds_write_b32 v7, v{28 + p} offset:{p * 512}")
    a("s_waitcnt lgkmcnt(0)")
    a("s_barrier")
    a("s_cmp_eq_u32 s35, 7")
    a("s_cbranch_scc0 K1_JOIN")
    srd(a, 16, 56, 256)
    a("v_mov_b32 v12, 0")
    a("s_mov_b32 s33, 0")
    a.label("K1_PZ")
    a("buffer_load_dword v15, v12, s[16:19], 0 offen sc1")
    a("s_add_u32 s33, s33, 1")
    a("s_waitcnt vmcnt(0)")
    a("v_cmp_eq_u32 vcc, 1, v15")
    a("s_cmp_gt_u32 s33, 0x40000")
    a("s_cbranch_scc1 K1_JOIN")
    a("s_cbranch_vccz K1_PZ")
    a("s_branch K1_JOIN")
    a.label("K1_MM")
    if CODE_TOUCH:
        a("s_getpc_b64 s[44:45]")
        a.label("K1_PC")
        a("s_sub_u32 s44, s44, K1_PC-k1_qkv_kernel")
        a("s_subb_u32 s45, s45, 0")
        a("s_lshl_b32 s46, s22, 13")
        a("v_lshlrev_b32 v23, 7, v0")
        a("v_add_u32 v23, s46, v23")
        for i in range(CODE_TOUCH):
            a("v_min_u32 v24, CODE_END-k1_qkv_kernel-4, v23")
            a("global_load_dword v31, v24, s[44:45]")
            a("v_add_u32 v23, 32768, v23")
    a(f"v_add_u32 v21, {2 * SLOT}, v20")
    a(f"v_add_u32 v22, {4 * SLOT}, v20")
    a("s_mov_b32 s30, 0x3f803f80")
    for i in range(24, 28):
        a(f"v_mov_b32 v{i}, 0")
    a("v_and_b32 v5, 31, v0")
    a("v_lshlrev_b32 v6, 4, v5")
    a(f"v_add_u32 v6, {SCR}, v6")
    a("s_lshl_b32 s29, s22, 7")
    a(f"s_add_u32 s29, s29, {SCR2}")
    a("v_lshlrev_b32 v7, 2, v5")
    a("v_add_u32 v7, s29, v7")
    a("v_lshrrev_b32 v1, 5, v0")
    a("v_lshlrev_b32 v1, 4, v1")
    a("v_add_u32 v1, s29, v1")
    a("s_lshl_b32 s29, s23, 2")
    a("s_add_u32 s29, s29, s22")
    a("s_lshl_b32 s29, s29, 10")
    a("s_lshl_b32 s31, s24, 17")
    a("s_add_u32 s29, s29, s31")
    a("s_add_u32 s31, s29, 65536")
    a(f"s_add_u32 s32, s29, {KF}")
    a(f"s_add_u32 s33, s29, {KF + 65536}")
    a(f"s_add_u32 s34, s29, {VF}")
    a("v_lshlrev_b32 v2, 4, v0")
    a("v_bfe_u32 v3, v0, 4, 1")
    a("v_lshlrev_b32 v3, 16, v3")
    a("v_lshrrev_b32 v4, 5, v0")
    a("v_lshl_add_u32 v3, v4, 8, v3")
    a("v_and_b32 v4, 15, v0")
    a("v_lshl_add_u32 v3, v4, 4, v3")
    a("s_waitcnt lgkmcnt(0)")
    srd(a, 16, 58, WS_SIZE)
    a("s_lshl_b32 s36, s2, 2")
    a("s_add_u32 s36, s36, s22")
    a("s_cmp_lg_u32 s36, 3")
    a("s_cbranch_scc1 K1_NZ")
    a(f"s_mov_b32 s36, {FL2}")
    a("v_lshlrev_b32 v28, 7, v0")
    for i_ in range(2 * NREP):
        a("buffer_store_dwordx2 v[24:25], v28, s[16:19], s36 offen sc1")
        a("s_add_u32 s36, s36, 8192")
    srd(a, 8, 56, 256)
    a("v_mov_b32 v28, 1")
    a("s_waitcnt vmcnt(0)")
    a("buffer_store_dword v28, v24, s[8:11], 0 offen sc1")
    a.label("K1_NZ")
    TQ = {}
    if K1_CHIP:
        a("s_cmp_lt_u32 s22, 2")
        a("s_cbranch_scc1 K1_NC")
        srd(a, 8, 4, 2048 * 512 * 2)
        a("s_lshl_b32 s36, s2, 13")
        a("v_lshlrev_b32 v23, 7, v0")
        a("s_cmp_eq_u32 s22, 2")
        a("s_cbranch_scc1 K1_C2")
        srd(a, 8, 6, 512 * 1536 * 2)
        a("s_mul_i32 s36, s2, 6144")
        a("v_min_u32 v23, 47, v0")
        a("v_lshlrev_b32 v23, 7, v23")
        a.label("K1_C2")
        a(f"buffer_load_dword v30, v23, s[8:11], s36 offen {K1_CF}")
        a.label("K1_NC")
    if K1_TOUCH:
        srd(a, 8, 4, 2048 * 512 * 2)
        a("s_lshr_b32 s37, s2, 3")
        a("v_and_b32 v28, 3, v0")
        a("s_mov_b32 s39, 256")
        a("s_and_b32 s36, s2, 3")
        a("s_lshl_b32 s36, s36, 19")
        a("s_lshl_b32 s38, s37, 14")
        a("s_add_u32 s36, s36, s38")
        a("v_bfe_u32 v23, v0, 1, 4")
        a("v_lshlrev_b32 v23, 10, v23")
        a("v_and_b32 v29, 1, v0")
        a("v_lshl_add_u32 v23, v29, 7, v23")
        a("s_cmp_lg_u32 s22, 0")
        a("s_cbranch_scc1 K1_TD")
        srd(a, 8, 6, 512 * 1536 * 2)
        a(f"s_mov_b32 s39, {128 * 3072}")
        a("s_mul_i32 s36, s37, 12288")
        a("s_bfe_u32 s38, s2, 0x10002")
        a("s_lshl_b32 s38, s38, 9")
        a("s_add_u32 s36, s36, s38")
        a("v_lshrrev_b32 v23, 4, v0")
        a("v_mul_u32_u24 v23, 3072, v23")
        a("v_bfe_u32 v30, v0, 2, 2")
        a("v_min_u32 v30, 2, v30")
        a("v_lshl_add_u32 v23, v30, 10, v23")
        a("v_lshl_add_u32 v23, v28, 7, v23")
        a.label("K1_TD")
        def touch(n_):
            return ["s_cmp_ge_u32 s22, 2", f"s_cbranch_scc1 K1_TS{n_}",
                    "s_lshr_b32 s38, s40, 1", f"s_add_u32 s38, s38, {n_ + 1}", "s_and_b32 s38, s38, 3",
                    "s_mul_i32 s38, s38, s39", "s_add_u32 s38, s38, s36",
                    "buffer_load_dword v31, v23, s[8:11], s38 offen", f"K1_TS{n_}:"]
        for n_, when in enumerate(K1_TW):
            if when < 0:
                for x in touch(n_): a(x)
            else:
                TQ.setdefault(when, []).extend(touch(n_))
    ACC = 32
    def xf(ks): return 80 + (ks % 8) * 4
    def wf(ks, p): return 112 + (ks % 3) * 12 + p * 4
    def reads(ks):
        c, s = ks // 4, ks % 4
        slot = c % 5; st = slot // 2; off = (slot % 2) * SLOT
        out = [f"ds_read_b128 {vr(xf(ks), 4)}, v{8 + 4 * st + s} offset:{off}"]
        for p in range(3):
            for u in range(2):
                out.append(f"ds_read_b64_tr_b16 {vr(wf(ks, p) + 2 * u, 2)}, v{20 + st} offset:{off + 16384 + p * 4096 + s * 1024 + u * 256}")
        return out
    def mfmas(ks):
        X = vr(xf(ks), 4); out = []
        for p in range(3):
            D_ = vr(ACC + 16 * p, 16); W = vr(wf(ks, p), 4)
            A, B = (W, X) if p < 2 else (X, W)
            out.append(MF32(D_, A, B, "0" if ks == 0 else None))
        return out
    def dots(k0, k1_):
        for ks in range(k0, k1_):
            for i in range(4):
                a(f"v_dot2c_f32_bf16 v{24 + i % 2}, s30, v{xf(ks) + i}")
                a(f"v_dot2c_f32_bf16 v{26 + i % 2}, v{xf(ks) + i}, v{xf(ks) + i}")
    a("s_barrier")
    for r in reads(0) + reads(1): a(r)
    for x in TQ.get(0, []): a(x)
    for ks in range(32):
        c, s = ks // 4, ks % 4
        M = mfmas(ks); R = reads(ks + 2) if ks + 2 < 32 else []
        if s == 2:
            dots(max(ks - 3, 0), ks)
            a("s_waitcnt lgkmcnt(0)")
            dots(ks, ks + 1)
            if c == 7: dots(ks + 1, ks + 2)
            a(M[0])
            if c < 7:
                a("s_barrier")
                for x in TQ.get(c + 1, []): a(x)
        else:
            a(f"s_waitcnt lgkmcnt({7 if ks < 31 else 0})")
            a(M[0])
        E = []
        if ks >= 30:
            if ks == 30:
                E = ["v_add_f32 v24, v24, v25", "v_add_f32 v26, v26, v27", "v_mov_b32 v25, v24", "v_mov_b32 v27, v26", "s_nop 0",
                     "v_permlane32_swap_b32 v24, v25", "v_permlane32_swap_b32 v26, v27", "v_add_f32 v24, v24, v25", "v_add_f32 v26, v26, v27",
                     f"v_mul_f32 v24, {f32(1/512)}, v24", f"v_mul_f32 v26, {f32(1/512)}, v26", "v_fma_f32 v26, -v24, v24, v26",
                     "v_max_f32 v26, 0, v26", f"v_add_f32 v26, {f32(EPS)}, v26", "v_rsq_f32 v26, v26"]
                E = ["s_nop 1"] + E
            else:
                E = ["ds_write_b32 v7, v26", "v_mul_f32 v24, -0.5, v24", "v_cvt_pk_bf16_f32 v25, v24, v24", "v_lshlrev_b32 v25, 16, v25",
                     "v_sub_f32 v27, v24, v25", "v_cvt_pk_bf16_f32 v148, v25, v27", "v_mov_b32 v150, 0", "v_mov_b32 v151, 0",
                     "v_mov_b32 v149, v148", f"v_mul_f32 v28, {f32(0.25 * LOG2E)}, v26", "v_mov_b32 v27, v26", "v_mov_b32 v29, v28"]
            R = E
            n3 = (len(R) + 2) // 3
        else:
            n3 = 3
        for r in R[:n3]: a(r)
        a(M[1])
        for r in R[n3:2 * n3]: a(r)
        a(M[2])
        for r in R[2 * n3:]: a(r)
    a("s_waitcnt lgkmcnt(0)")
    a("s_barrier")
    for p in range(3):
        a(f"ds_read_b128 {vr(80 + 4 * p, 4)}, v6 offset:{p * 512}")
    for g in range(4):
        a(f"ds_read_b128 {vr(96 + 4 * g, 4)}, v1 offset:{g * 32}")
    CF = 152
    for p in range(3):
        a(f"v_mov_b32 v{CF + 4 * p + 2}, 0")
        a(f"v_mov_b32 v{CF + 4 * p + 3}, 0")
    for p in range(3):
        b = 80 + 4 * p; f = CF + 4 * p
        a(f"s_waitcnt lgkmcnt({6 - p})")
        a(f"v_add_f32 v{b}, v{b}, v{b+1}")
        a(f"v_add_f32 v{b+2}, v{b+2}, v{b+3}")
        a(f"v_add_f32 v{b}, v{b}, v{b+2}")
        a(f"v_cvt_pk_bf16_f32 v{f}, v{b}, v{b}")
        a(f"v_lshlrev_b32 v{b+1}, 16, v{f}")
        a(f"v_sub_f32 v{b+1}, v{b}, v{b+1}")
        a(f"v_cvt_pk_bf16_f32 v{f+1}, v{b+1}, v{b+1}")
        if p >= 1:
            q = p - 1
            a(MF32(vr(ACC + 16 * q, 16), vr(CF + 4 * q, 4), vr(148, 4)))
    a("s_waitcnt lgkmcnt(0)")
    a("s_nop 0")
    a(MF32(vr(ACC + 32, 16), vr(148, 4), vr(CF + 8, 4)))
    a("s_nop 1")
    for p in range(3):
        b = ACC + 16 * p; o = 112 + 8 * p
        for i in range(0, 16, 2):
            sc = "v[28:29]" if p == 0 else "v[26:27]" if p == 1 else vr(96 + i, 2)
            a(f"v_pk_mul_f32 {vr(b + i, 2)}, {sc}, {vr(b + i, 2)}")
        for i in range(8):
            a(f"v_cvt_pk_bf16_f32 v{o+i}, v{b+2*i}, v{b+2*i+1}")
        if p < 2:
            a(f"buffer_store_dwordx4 {vr(o, 4)}, v2, s[16:19], s{29 if p == 0 else 32} offen sc1")
            a(f"buffer_store_dwordx4 {vr(o + 4, 4)}, v2, s[16:19], s{31 if p == 0 else 33} offen sc1")
        else:
            a(f"buffer_store_dwordx4 {vr(o, 4)}, v3, s[16:19], s34 offen sc1")
            a(f"buffer_store_dwordx4 {vr(o + 4, 4)}, v3, s[16:19], s34 offen offset:512 sc1")
    a.label("K1_JOIN")
    return a

def k234():
    a = k1(); n = NAME + "_kernel"
    Q = 4; NEGM = 16; S = [32, 48]; O = 64; P = 80; KR = 88; VR = 100; W = 128
    SCR = 131072
    K1C = 2 * math.sqrt(2 / math.pi) * LOG2E
    vm = []
    def V(ins, tag=None):
        a(ins); vm.append(tag)
    def vmwait(tag, extra=""):
        idx = max(i for i, t in enumerate(vm) if t == tag)
        a(f"s_waitcnt vmcnt({len(vm) - 1 - idx}){extra}")
    a("s_load_dwordx4 s[40:43], s[0:1], 32")
    a("s_load_dwordx2 s[44:45], s[0:1], 16")
    a("s_load_dwordx2 s[46:47], s[0:1], 0")
    a("s_load_dwordx2 s[48:49], s[0:1], 48")
    a("s_load_dwordx2 s[62:63], s[0:1], 56")
    a("s_lshl_b32 s31, s24, 8")
    a("s_lshl_b32 s30, s23, 2")
    a("s_add_u32 s31, s31, s30")
    a(f"s_add_u32 s31, s31, {FL1}")
    a("s_mov_b32 s22, s35")
    a("s_and_b32 s23, s2, 7")
    a("s_lshl_b32 s23, s23, 2")
    a("s_bfe_u32 s29, s2, 0x20003")
    a("s_add_u32 s23, s23, s29")
    a("s_lshr_b32 s24, s2, 5")
    a("s_lshl_b32 s25, s23, 16")
    a("v_lshlrev_b32 v2, 4, v0")
    a("s_lshl_b32 s26, s22, 10")
    a("s_add_u32 s27, s25, s26")
    a("s_lshl_b32 s28, s24, 13")
    a("s_add_u32 s28, s28, s27")
    a(f"s_add_u32 s27, s27, {KF}")
    a(f"s_add_u32 s30, s27, {VF - KF}")
    srd(a, 8, 58, WS_SIZE)
    a("v_mov_b32 v12, 0")
    a("v_mov_b32 v13, 1")
    def signal(lbl, local=False):
        a("s_cmp_eq_u32 s22, 7")
        a(f"s_cbranch_scc0 {lbl}")
        a("v_lshlrev_b32 v12, 14, v0")
        a(f"s_mov_b64 exec, {(1 << NREP) - 1}")
        if ATOM:
            a(f"s_and_b32 s31, s31, {hex(0xffffff84 if '4' in lbl[-2:] else 0xffffff80)}")
            a("buffer_atomic_add v13, v12, s[8:11], s31 offen sc1")
        else: a("buffer_store_dword v13, v12, s[8:11], s31 offen sc1")
        a("s_mov_b64 exec, -1")
        a.label(lbl)
    def poll(lbl, sreg, nfl, sh=2):
        if ATOM:
            a("s_lshr_b32 s33, s2, 5")
            a(f"s_and_b32 s33, s33, {NREP - 1}")
            a("s_lshl_b32 s33, s33, 14")
            a("v_mov_b32 v1, s33")
            a("s_mov_b32 s33, 0")
            a("s_mov_b64 exec, 1")
            two = PIF == 2 and lbl != "K2_P4A"
            if two:
                a("v_mov_b32 v14, 0")
                a(f"buffer_atomic_add v14, v1, s[8:11], s{sreg} offen sc0 sc1")
                a("s_sleep 5")
            a.label(lbl)
            for cur, nxt in (((14, 15), (15, 14)) if two else ((15, 15),)):
                if POLL_SLEEP: a(f"s_sleep {POLL_SLEEP}")
                a(f"v_mov_b32 v{nxt}, 0")
                a(f"buffer_atomic_add v{nxt}, v1, s[8:11], s{sreg} offen sc0 sc1")
                a("s_add_u32 s33, s33, 1")
                a(f"s_waitcnt vmcnt({1 if two else 0})")
                a(f"v_cmp_eq_u32 vcc, {nfl}, v{cur}")
                a("s_nop 0")
                a(f"s_cbranch_vccnz {lbl}_X")
            a("s_cmp_lt_u32 s33, 0x40000")
            a(f"s_cbranch_scc1 {lbl}")
            a.label(f"{lbl}_X")
            a("s_mov_b64 exec, -1")
            return
        a(f"v_and_b32 v1, {nfl - 1}, v0")
        a(f"v_lshlrev_b32 v1, {sh}, v1")
        a("s_mov_b32 s33, 0")
        if POLL_PRE: a(f"s_sleep {POLL_PRE}")
        a.label(lbl)
        if POLL_SLEEP: a(f"s_sleep {POLL_SLEEP}")
        a(f"buffer_load_dword v15, v1, s[8:11], s{sreg} offen sc1")
        a("s_add_u32 s33, s33, 1")
        a("s_waitcnt vmcnt(0)")
        a("v_cmp_eq_u32 vcc, 1, v15")
        a("s_cmp_gt_u32 s33, 0x40000")
        a(f"s_cbranch_scc1 {lbl}_X")
        a("s_cmp_eq_u64 vcc, -1")
        a(f"s_cbranch_scc0 {lbl}")
        a.label(f"{lbl}_X")
    st(a, 'k1')
    def poll2(lbl, sreg, nfl, sh=2):
        if not POLL2: return poll(lbl, sreg, nfl, sh)
        a(f"v_and_b32 v1, {nfl - 1}, v0")
        a(f"v_lshlrev_b32 v1, {sh}, v1")
        a("s_mov_b32 s33, 0")
        a(f"buffer_load_dword v14, v1, s[8:11], s{sreg} offen sc1")
        a(f"s_sleep {POLL2}")
        a.label(lbl)
        for cur, nxt in ((14, 15), (15, 14)):
            a(f"buffer_load_dword v{nxt}, v1, s[8:11], s{sreg} offen sc1")
            a("s_waitcnt vmcnt(1)")
            a(f"v_cmp_eq_u32 vcc, 1, v{cur}")
            a("s_add_u32 s33, s33, 1")
            a("s_nop 0")
            a("s_cmp_eq_u64 vcc, -1")
            a(f"s_cbranch_scc1 {lbl}_X")
        a("s_cmp_lt_u32 s33, 0x80000")
        a(f"s_cbranch_scc1 {lbl}")
        a.label(f"{lbl}_X")
    a("s_waitcnt vmcnt(0) lgkmcnt(0)")
    a("s_barrier")
    st(a, 'k1b')
    signal("K2_S1")
    def kvdma(c, isv):
        a(f"s_add_u32 m0, s26, {c * 8192 + isv * 65536}")
        a(f"s_add_u32 s29, s27, {c * 8192 + isv * (VF - KF)}")
        V("buffer_load_dwordx4 v2, s[8:11], s29 offen lds", f"c{c}")
    a("s_and_b32 s36, s2, 3")
    a("s_lshl_b32 s36, s36, 2")
    a("s_bfe_u32 s29, s2, 0x20003")
    a("s_add_u32 s36, s36, s29")
    a("s_bfe_u32 s37, s2, 0x10002")
    a("s_lshl_b32 s37, s37, 3")
    a("s_add_u32 s37, s37, s24")
    a("s_min_u32 s38, s22, 6")
    a("s_mul_i32 s39, s37, 7")
    a("s_add_u32 s39, s39, s38")
    a("s_lshl_b32 s54, s39, 5")
    srd(a, 12, 40, 512 * 1792 * 2)
    srd(a, 16, 42, 512 * 1792 * 2)
    a("s_lshl_b32 s55, s22, 12")
    a(f"s_add_u32 s55, s55, {SCR}")
    a("v_lshrrev_b32 v8, 1, v0")
    a("v_mul_u32_u24 v8, 3584, v8")
    a("v_and_b32 v1, 1, v0")
    a("v_lshl_add_u32 v8, v1, 4, v8")
    a("v_lshrrev_b32 v11, 5, v0")
    a("v_bfe_u32 v1, v0, 2, 2")
    a("v_lshl_add_u32 v10, v11, 2, v1")
    a("v_lshlrev_b32 v9, 5, v10")
    a("v_and_b32 v1, 3, v0")
    a("v_lshl_add_u32 v9, v1, 3, v9")
    a("v_bfe_u32 v1, v0, 4, 1")
    a("v_lshl_add_u32 v9, v1, 10, v9")
    a("v_add_u32 v9, s55, v9")
    a("v_and_b32 v12, 15, v0")
    a("v_lshl_add_u32 v12, v11, 4, v12")
    a("v_lshlrev_b32 v12, 4, v12")
    a("v_add_u32 v3, 65536, v12")
    a("s_mov_b32 s34, 0x0000ffff")
    a("s_mov_b32 s35, 0x0000ffff")
    a(f"s_mov_b32 s50, {f32(2.0**60)}")
    for i in range(24):
        a(f"v_mov_b32 v{VR + i}, 0x3f803f80")
    for i in range(16):
        a(f"v_mov_b32 v{O + i}, 0")
    for i in range(4, 8):
        a(f"v_mov_b32 v{P + i}, 0")
    def kread(t): return f"ds_read_b128 {vr(KR + 4 * (t % 3), 4)}, v2 offset:{t * 1024}"
    def vread(t):
        return ["s_mov_b64 exec, s[34:35]"] + \
               [f"ds_read_b128 {vr(VR + 8 * (t % 3) + 4 * j, 4)}, v3 offset:{t * 1024 + j * 512}" for j in range(2)] + \
               ["s_mov_b64 exec, -1"]
    a("s_cmp_eq_u32 s22, 7")
    a("s_cbranch_scc0 K2_B1")
    a("s_lshr_b32 s29, s23, 1")
    a("s_lshl_b32 s29, s29, 8")
    a(f"s_add_u32 s29, s29, {FL1}")
    poll2("K2_P1", 29, 16)
    a.label("K2_B1")
    a("s_mov_b32 m0, s26")
    a("s_barrier")
    st(a, 't1')
    V("buffer_load_dwordx4 v2, s[8:11], s27 offen lds", "c0")
    V(f"buffer_load_dwordx4 {vr(Q, 4)}, v2, s[8:11], s28 offen", "c0")
    a("s_add_u32 m0, s26, 65536")
    a("s_nop 0")
    V("buffer_load_dwordx4 v2, s[8:11], s30 offen lds", "c0")
    kvdma(1, 0); kvdma(1, 1)
    vmwait("c0")
    a("s_barrier")
    st(a, 'a0')
    a(kread(0)); a(kread(1))
    for x in vread(0): a(x)
    a(kread(2))
    for x in vread(1): a(x)
    a("s_waitcnt lgkmcnt(6)")
    s0 = S[0]
    a(MF32(vr(s0, 16), vr(KR, 4), vr(Q, 4), "0"))
    a("s_nop 11")
    for i in range(5):
        a(f"v_max3_f32 v{NEGM + i}, v{s0+3*i}, v{s0+3*i+1}, v{s0+3*i+2}")
    a(f"v_max3_f32 v14, v{NEGM}, v{NEGM+1}, v{s0+15}")
    a(f"v_max3_f32 v15, v{NEGM+2}, v{NEGM+3}, v{NEGM+4}")
    a("v_max_f32 v14, v14, v15")
    def set_negm():
        a("v_mov_b32 v15, v14")
        a("s_nop 1")
        a("v_permlane32_swap_b32 v14, v15")
        a("v_max_f32 v14, v14, v15")
        for i in range(16):
            a(f"v_sub_f32 v{NEGM + i}, 0, v14")
        a("s_nop 1")
    set_negm()
    a(MF32(vr(S[0], 16), vr(KR, 4), vr(Q, 4), vr(NEGM, 16)))
    a("s_nop 8")
    T0 = K2_T0
    cnt = [0]
    def b(ins):
        if K2_Y:
            if cnt[0] == 0: a("s_setprio 0")
            if cnt[0] == K2_Y: a("s_setprio 1")
            if cnt[0] == K2_Y2: a("s_setprio 2")
        cnt[0] += 1
        a(ins)
    for t in range(64):
        if t % K2_PER == 0: cnt[0] = 0
        Sc = S[t % 2]; Sn = S[(t + 1) % 2]
        E = lambda i: b(f"v_exp_f32 v{Sc+i}, v{Sc+i}")
        C = lambda i: b(f"v_cvt_pk_bf16_f32 v{P+i}, v{Sc+2*i}, v{Sc+2*i+1}")
        if t == 0: st(a, 'a1')
        if t == 16: st(a, 'a16')
        if t == 5: vmwait("c1"); a("s_barrier")
        if t == 13: vmwait("c5"); a("s_barrier")
        if t == 24: vmwait("c7"); a("s_barrier")
        nrd = lambda u: (1 if u + 3 < 64 else 0) + (2 if u + 2 < 64 else 0)
        b(f"s_waitcnt lgkmcnt({nrd(t - 1) if t > 0 else 3})")
        if t < 63:
            b(MF32(vr(Sn, 16), vr(KR + 4 * ((t + 1) % 3), 4), vr(Q, 4), vr(NEGM, 16)))
        for i in range(5): E(i)
        b(MF32(vr(O, 16), vr(VR + 8 * ((t - 1) % 3) + 4, 4), vr(P + 4, 4)))
        u, ph = divmod(t - T0 - 5, 3)
        if t >= T0 + 5 and ph == 0 and u < 16:
            vmwait(f"w{u}")
            for s in range(2):
                for e in range(2):
                    a(f"ds_read_b64_tr_b16 {vr(W + 8 * u + 4 * s + 2 * e, 2)}, v9 offset:{(u % 2) * 2048 + s * 512 + e * 256}")
        if t + 3 < 64: b(kread(t + 3))
        if t + 2 < 64:
            for x in vread(t + 2): b(x)
        for i in range(5, 8): E(i)
        for i in range(4): C(i)
        E(8); E(9)
        b(MF32(vr(O, 16), vr(VR + 8 * (t % 3), 4), vr(P, 4)))
        if t < 12: kvdma(2 + t // 2, t % 2)
        u, ph = divmod(t - T0, 3)
        if t >= T0 and ph == 0 and u < 16:
            a(f"s_add_u32 m0, s55, {(u % 2) * 2048}")
            a(f"s_add_u32 s29, s54, {u * 32 * 3584}")
            V("buffer_load_dwordx4 v8, s[12:15], s29 offen lds", f"w{u}")
            a(f"s_add_u32 m0, s55, {(u % 2) * 2048 + 1024}")
            a("s_nop 0")
            V("buffer_load_dwordx4 v8, s[16:19], s29 offen lds", f"w{u}")
        if t == 40 and K2_TCH:
            srd(a, 96, 48, 1792 * 512 * 2)
            a("s_lshl_b32 s29, s2, 3")
            a("s_add_u32 s29, s29, s22")
            a("s_mul_i32 s29, s29, 896")
            a("v_min_u32 v12, 6, v0")
            a("v_lshlrev_b32 v12, 7, v12")
            V("buffer_load_dword v124, v12, s[96:99], s29 offen", "tch")
        if t == 59 and K2_TCH:
            a("s_lshr_b32 s29, s2, 3")
            a("s_lshl_b32 s29, s29, 14")
            a("s_lshl_b32 s31, s22, 11")
            a("s_add_u32 s29, s29, s31")
            srd(a, 96, 44, 512 * 512 * 2)
            a("v_and_b32 v12, 15, v0")
            a("v_lshlrev_b32 v12, 7, v12")
            V("buffer_load_dword v124, v12, s[96:99], s29 offen", "tch")

        for i in range(10, 16): E(i)
        for i in range(4, 8): C(i)
    a("s_setprio 0")
    a("s_lshl_b32 s29, s24, 3")
    a("s_add_u32 s29, s29, s22")
    a(MF32(vr(O, 16), vr(VR + 8 * (63 % 3) + 4, 4), vr(P + 4, 4)))
    a("s_lshl_b32 s31, s24, 8")
    a("s_lshl_b32 s30, s23, 2")
    a("s_add_u32 s31, s31, s30")
    a(f"s_add_u32 s31, s31, {FL2}")
    a("s_lshl_b32 s29, s29, 15")
    a("s_lshl_b32 s30, s23, 10")
    a("s_add_u32 s29, s29, s30")
    a(f"s_add_u32 s29, s29, {OF}")
    a("v_mov_b32 v12, 0")
    a("v_mov_b32 v13, 1")
    a("s_waitcnt lgkmcnt(0)")
    a("s_nop 0")
    a(f"v_cmp_gt_f32 vcc, s50, v{O + 8}")
    a("s_nop 1")
    a("s_cmp_eq_u64 vcc, -1")
    a("s_cbranch_scc0 K2_FALLBACK")
    a.label("K2_FIN")
    a(f"v_rcp_f32 v14, v{O + 8}")
    a("s_nop 0")
    for i in range(8):
        a(f"v_mul_f32 v{O+i}, v14, v{O+i}")
    for i in range(4):
        a(f"v_cvt_pk_bf16_f32 v{P+i}, v{O+2*i}, v{O+2*i+1}")
    a(f"buffer_store_dwordx4 {vr(P, 4)}, v2, s[8:11], s29 offen sc1")
    st(a, 'att')
    srd(a, 12, 44, 512 * 512 * 2)
    srd(a, 16, 46, 2048 * 512 * 2)
    a("s_and_b32 s25, s22, 1")
    a("s_bfe_u32 s26, s22, 0x10001")
    a("s_lshr_b32 s27, s22, 2")
    a("s_lshl_b32 s28, s24, 1")
    a("s_add_u32 s28, s28, s25")
    a("s_lshl_b32 s30, s23, 1")
    a("s_add_u32 s30, s30, s26")
    a("v_lshrrev_b32 v8, 2, v0")
    a("v_lshlrev_b32 v8, 10, v8")
    a("v_and_b32 v1, 3, v0")
    a("v_lshl_add_u32 v8, v1, 4, v8")
    a("v_lshlrev_b32 v9, 6, v10")
    a("v_lshl_add_u32 v9, v1, 3, v9")
    a("v_bfe_u32 v1, v0, 4, 1")
    a("v_lshl_add_u32 v9, v1, 5, v9")
    a("s_lshl_b32 s32, s25, 15")
    a("s_lshl_b32 s33, s27, 14")
    a("s_add_u32 s32, s32, s33")
    a("v_add_u32 v9, s32, v9")
    a("v_and_b32 v3, 31, v0")
    a("v_lshlrev_b32 v3, 10, v3")
    a("v_lshl_add_u32 v3, v11, 4, v3")
    a("s_lshl_b32 s51, s30, 15")
    a("s_lshl_b32 s33, s28, 6")
    a("s_add_u32 s51, s51, s33")
    RES = 112
    a("s_waitcnt vmcnt(0)")
    a("s_barrier")
    def dstore(ins):
        return [ins + " sc1"]
    signal("K2_S2")
    st(a, 'bA')
    A3 = 16; WO = 32; OB = 96
    def colsum():
        a("s_mov_b32 s56, 0x3f803f80")
        for i in range(4): a(f"v_mov_b32 v{124 + i}, 0")
        for i in range(128):
            a(f"v_dot2c_f32_bf16 v{124 + i % 4}, s56, v{W + i}")
        a("s_nop 2")
        a("v_add_f32 v124, v124, v125")
        a("v_add_f32 v126, v126, v127")
        a("v_add_f32 v126, v124, v126")
        a("v_cvt_pk_bf16_f32 v124, v126, v126")
        a("v_lshlrev_b32 v125, 16, v124")
        a("v_sub_f32 v125, v126, v125")
        a("v_cvt_pk_bf16_f32 v125, v125, v125")
        a("v_mov_b32 v126, 0")
        a("v_mov_b32 v127, 0")
    a("s_cmp_eq_u32 s22, 7")
    a("s_cbranch_scc1 K2_POLL2")
    a("s_cmp_ge_u32 s22, 4")
    a("s_cbranch_scc1 K2_CS")
    a("s_lshl_b32 s33, s26, 14")
    a("s_add_u32 s52, s32, s33")
    a("s_lshl_b32 s53, s26, 18")
    a("s_lshl_b32 s33, s28, 6")
    a("s_add_u32 s53, s53, s33")
    for i in range(16):
        a(f"s_add_u32 m0, s52, {i * 1024}")
        a(f"s_add_u32 s29, s53, {i * 16384}")
        a("buffer_load_dwordx4 v8, s[12:15], s29 offen lds")
    for j in range(2):
        a(f"buffer_load_dwordx4 {vr(RES + 4 * j, 4)}, v3, s[16:19], s51 offen offset:{j * 32}")
    a("s_waitcnt vmcnt(2)")
    a("s_branch K2_B2")
    a.label("K2_CS")
    colsum()
    if O_TCH >= 0:
        a("s_cmp_eq_u32 s22, 6")
        a("s_cbranch_scc0 K2_B2")
        if O_TCH: a(f"s_sleep {O_TCH}")
        a("s_lshl_b32 s29, s23, 16")
        a("s_lshl_b32 s33, s24, 13")
        a("s_add_u32 s29, s29, s33")
        a(f"s_add_u32 s29, s29, {OF}")
        a("v_lshlrev_b32 v1, 7, v0")
        a("buffer_load_dword v14, v1, s[8:11], s29 offen sc1")
    a("s_branch K2_B2")
    a.label("K2_POLL2")
    a("s_lshr_b32 s29, s23, 2")
    a("s_lshl_b32 s29, s29, 8")
    a(f"s_add_u32 s29, s29, {FL2}")
    poll2("K2_P2", 29, 32)
    a.label("K2_B2")
    a("s_lshl_b32 s29, s25, 15")
    a("s_lshr_b32 s33, s22, 1")
    a("s_lshl_b32 s33, s33, 12")
    a("s_add_u32 s29, s29, s33")
    a("s_lshl_b32 s33, s23, 16")
    a("s_add_u32 s33, s33, s29")
    a(f"s_add_u32 s33, s33, {OF}")
    a("s_add_u32 s52, s33, 16384")
    a(f"s_add_u32 m0, s29, {65536 + 16384}")
    a("s_barrier")
    st(a, 't2')
    for i in range(4):
        a(f"buffer_load_dwordx4 v2, s[8:11], s52 offen offset:{i * 1024} {LD_SC} lds")
    a("s_add_u32 m0, s29, 65536")
    a("s_nop 0")
    for i in range(4):
        a(f"buffer_load_dwordx4 v2, s[8:11], s33 offen offset:{i * 1024} {LD_SC} lds")
    for s in range(16):
        for e in range(2):
            a(f"ds_read_b64_tr_b16 {vr(WO + 4 * s + 2 * e, 2)}, v9 offset:{s * 1024 + e * 512}")
    a("s_lshl_b32 s29, s26, 15")
    a("s_lshl_b32 s33, s27, 14")
    a("s_add_u32 s29, s29, s33")
    a("s_add_u32 s29, s29, 65536")
    a("v_add_u32 v8, s29, v2")
    a("s_and_b32 s29, s22, 3")
    a("s_lshl_b32 s29, s29, 12")
    a(f"s_add_u32 s29, s29, {SCR}")
    a("v_add_u32 v9, s29, v2")
    def omm(first, hooks):
        rd = lambda s: f"ds_read_b128 {vr(OB + 4 * (s % 4), 4)}, v8 offset:{s * 1024}"
        for s in range(3): a(rd(s))
        for s in range(16):
            left = 15 - s
            if left >= 3: a(rd(s + 3))
            a(f"s_waitcnt lgkmcnt({min(left, 3) + hooks.get(('x', s), 0)})")
            a(MF32(vr(A3, 16), vr(WO + 4 * s, 4), vr(OB + 4 * (s % 4), 4), first if s == 0 else None))
            for x in hooks.get(s, []): a(x)
    a("s_cmp_lt_u32 s22, 4")
    a("s_cbranch_scc1 K2_O_LO")
    a("s_waitcnt vmcnt(4) lgkmcnt(0)")
    a("s_barrier")
    omm("0", {O_B1: ["s_waitcnt vmcnt(0)", "s_barrier"]})
    st(a, 'om')
    a("s_nop 11")
    for q in range(4):
        a(f"ds_write_b128 v9, {vr(A3 + 4 * q, 4)} offset:{q * 1024}")
    a("s_waitcnt lgkmcnt(0)")
    a("s_barrier")
    a("s_lshr_b32 s31, s23, 1")
    a("s_lshl_b32 s31, s31, 8")
    a("s_and_b32 s33, s23, 1")
    a("s_lshl_b32 s33, s33, 3")
    a("s_add_u32 s33, s33, s24")
    a("s_lshl_b32 s33, s33, 2")
    a("s_add_u32 s31, s31, s33")
    a(f"s_add_u32 s31, s31, {FL3}")
    a("s_lshl_b32 s29, s36, 8")
    a(f"s_add_u32 s29, s29, {FL3}")
    a("s_barrier")
    signal("K2_S3", True)
    if H_TCH >= 0:
        a("s_cmp_lt_u32 s22, 6")
        a("s_cbranch_scc0 K2_NHT")
        if H_TCH: a(f"s_sleep {H_TCH}")
        a("s_lshl_b32 s52, s36, 17")
        a("s_lshl_b32 s33, s24, 14")
        a("s_add_u32 s52, s52, s33")
        a("s_and_b32 s33, s22, 1")
        a("s_lshl_b32 s33, s33, 13")
        a("s_add_u32 s52, s52, s33")
        a(f"s_add_u32 s52, s52, {HF}")
        a("v_lshlrev_b32 v1, 7, v0")
        a("buffer_load_dword v14, v1, s[8:11], s52 offen sc1")
        a.label("K2_NHT")
    a("s_cmp_eq_u32 s22, 7")
    a("s_cbranch_scc0 K2_B3")
    poll2("K2_P3", 29, 16)
    a("s_branch K2_B3")
    a.label("K2_O_LO")
    a("s_waitcnt vmcnt(8)")
    for j in range(2):
        a(f"v_permlane32_swap_b32 v{RES + 4 * j}, v{RES + 4 * j + 2}")
        a(f"v_permlane32_swap_b32 v{RES + 4 * j + 1}, v{RES + 4 * j + 3}")
    a("s_mov_b32 s29, 0xffff0000")
    for i in range(8):
        a(f"v_lshlrev_b32 v{A3 + 2 * i}, 16, v{RES + i}")
        a(f"v_and_b32 v{A3 + 1 + 2 * i}, s29, v{RES + i}")
    a("s_lshl_b32 s52, s30, 15")
    a("s_lshl_b32 s33, s28, 11")
    a("s_add_u32 s52, s52, s33")
    a(f"s_add_u32 s52, s52, {HF}")
    a("s_lshl_b32 s53, s30, 12")
    a("s_lshl_b32 s33, s28, 8")
    a("s_add_u32 s53, s53, s33")
    a(f"s_add_u32 s53, s53, {ST}")
    a("v_lshlrev_b32 v3, 3, v0")
    a("s_mov_b32 s29, 0x3f803f80")
    a("v_mov_b32 v14, 0")
    a("v_mov_b32 v15, 0")
    a("s_waitcnt vmcnt(4) lgkmcnt(0)")
    a("s_barrier")
    a("s_waitcnt vmcnt(0)")
    a("s_barrier")
    if O_PRIO: a("s_setprio 2")
    omm(None, {13: ["s_barrier"] + [f"ds_read_b128 {vr(32 + 4 * q, 4)}, v9 offset:{q * 1024}" for q in range(4)],
               ('x', 14): 4, ('x', 15): 4})
    st(a, 'om')
    a("s_nop 10")
    o = 112
    for q in range(4):
        a(f"s_waitcnt lgkmcnt({3 - q})")
        for i in range(4 * q, 4 * q + 4):
            a(f"v_add_f32 v{A3 + i}, v{A3 + i}, v{32 + i}")
        for i in range(2 * q, 2 * q + 2):
            a(f"v_cvt_pk_bf16_f32 v{o + i}, v{A3 + 2 * i}, v{A3 + 2 * i + 1}")
        if q % 2:
            j = q // 2
            for x in dstore(f"buffer_store_dwordx4 {vr(o + 4 * j, 4)}, v2, s[8:11], s52 offen offset:{j * 1024}"): a(x)
    for i in range(8):
        a(f"v_dot2c_f32_bf16 v14, s29, v{o + i}")
        a(f"v_dot2c_f32_bf16 v15, v{o + i}, v{o + i}")
    a("s_nop 2")
    a("v_mov_b32 v16, v14")
    a("v_mov_b32 v17, v15")
    a("s_nop 0")
    a("v_permlane32_swap_b32 v14, v16")
    a("v_permlane32_swap_b32 v15, v17")
    a("v_add_f32 v14, v14, v16")
    a("v_add_f32 v15, v15, v17")
    a("s_mov_b64 exec, 0xffffffff")
    for x in dstore("buffer_store_dwordx2 v[14:15], v3, s[8:11], s53 offen"): a(x)
    a("s_mov_b64 exec, -1")
    a("s_setprio 0")
    a("s_waitcnt vmcnt(0)")
    a("s_barrier")
    colsum()
    a.label("K2_B3")
    st(a, 'hw')
    a("v_add_u32 v3, 65536, v2")
    a("v_and_b32 v8, 31, v0")
    a("v_lshlrev_b32 v8, 4, v8")
    a(f"v_add_u32 v8, {SCR}, v8")
    a(f"s_mul_i32 s32, s36, {4 * 112 * 1024}")
    a("s_lshl_b32 s33, s39, 10")
    a("s_add_u32 s32, s32, s33")
    a(f"s_add_u32 s32, s32, {GF}")
    a("s_and_b32 s25, s22, 3")
    a(f"s_and_b32 s57, s37, {G_PERM}")
    a("s_lshl_b32 s57, s57, 1")
    a("s_xor_b32 s33, s25, s57")
    a("s_lshl_b32 s30, s36, 2")
    a("s_add_u32 s30, s30, s33")
    a(f"s_mul_i32 s33, s57, {112 * 1024}")
    a(f"s_sub_u32 s56, {2 * 112 * 1024}, s33")
    a("s_add_u32 s56, s56, s32")
    a("s_add_u32 s32, s32, s33")
    CNT = SCR + 2048; SPARE = SCR + 4096; WD = 128; KS = 14
    a(f"v_mov_b32 v4, {CNT}")
    a("v_mov_b32 v5, 1")
    def hread(dst, tt, s):
        return f"ds_read_b128 {vr(dst, 4)}, v{2 + tt // 2} offset:{(tt % 2) * 32768 + s * 1024}"
    def epi(g, z, st, tt):
        u = g + 8; o = []
        ve, a0, a1 = f"v{st+1}", f"v{st+2}", f"v{st+3}"
        o += [f"v_mul_f32 v{z+i}, v{g+i}, v{g+i}" for i in range(8)]
        o += [f"v_fma_f32 v{z+i}, v{z+i}, {a1}, {a0}" for i in range(8)]
        o += [f"v_mul_f32 v{z+i}, v{z+i}, v{g+i}" for i in range(8)]
        for i in range(8):
            o += [f"v_exp_f32 v{z+i}, v{z+i}", f"v_mul_f32 v{g+i}, v{g+i}, v{u+i}"]
        o += [f"v_fma_f32 v{z+i}, v{z+i}, {ve}, {ve}" for i in range(8)]
        o += [f"v_rcp_f32 v{z+i}, v{z+i}" for i in range(8)]
        o += [f"s_add_u32 s29, s{32 if tt < 2 else 56}, {(tt % 2) * 112 * 1024}"]
        o += [f"v_mul_f32 v{g+i}, v{g+i}, v{z+i}" for i in range(8)]
        o += [f"v_cvt_pk_bf16_f32 v{u+i}, v{g+2*i}, v{g+2*i+1}" for i in range(4)]
        o += dstore(f"buffer_store_dwordx4 {vr(u, 4)}, v2, s[8:11], s29 offen")
        return o
    ACC = 16; HB = 32; ZB = 80; SB = 88; TB = 92; NR = 12; STR = [96, 100, 104, 108]
    a(f"v_mov_b32 v{TB + 2}, 0")
    a(f"v_mov_b32 v{TB + 3}, 0")
    def cwait(tag, off, val=7, reg=4):
        a("s_mov_b32 s33, 0")
        a.label(f"K2_WC{tag}")
        a(f"ds_read_b32 v6, v{reg} offset:{off}")
        a("s_add_u32 s33, s33, 1")
        a("s_waitcnt lgkmcnt(0)")
        a(f"v_cmp_eq_u32 vcc, {val}, v6")
        a("s_cmp_gt_u32 s33, 0x100000")
        a(f"s_cbranch_scc1 K2_WX{tag}")
        a(f"s_cbranch_vccnz K2_WX{tag}")
        a("s_sleep 2")
        a(f"s_branch K2_WC{tag}")
        a.label(f"K2_WX{tag}")
    ntile = [0]
    def tile(tt, hooks, pre=None, last=False, late=False):
        a("s_setprio 1")
        rd = lambda ks: hread(HB + 4 * (ks % NR), tt, ks)
        if pre is None:
            for ks in range(NR - 1): a(rd(ks))
        for ks in range(32):
            if ks + NR - 1 < 32: a(rd(ks + NR - 1))
            if ks % 4 == 0:
                a(f"s_waitcnt lgkmcnt({min(ks + NR - 1, 31) - (ks + 3)})")
            a(MF32(vr(ACC, 16), vr(W + 4 * ks, 4), vr(HB + 4 * (ks % NR), 4), "0" if ks == 0 else None))
            if ks == G_P2: a("s_setprio 2")
            if ks == G_EA and tt == 2:
                a("s_waitcnt vmcnt(0)")
                a("s_mov_b64 exec, 1")
                a("ds_add_u32 v4, v5 offset:16")
                a("s_mov_b64 exec, -1")
            if ks == 28 and tt < 3:
                a("s_mov_b64 exec, 1")
                a(f"ds_add_u32 v4, v5 offset:{tt * 4}")
                a("s_mov_b64 exec, -1")
            if not late:
                if ks == 22: a(f"ds_read_b128 {vr(SB, 4)}, v8 offset:{tt * 512}")
                if ks == 29:
                    a(f"v_mov_b32 v{TB}, v{SB}")
                    a(f"v_mov_b32 v{TB + 1}, v{SB}")
            for x in hooks.get(ks, []): a(x)
        if late:
            a(f"ds_read_b128 {vr(SB, 4)}, v8 offset:{tt * 512}")
            a("s_waitcnt lgkmcnt(0)")
            a(f"v_mov_b32 v{TB}, v{SB}")
            a(f"v_mov_b32 v{TB + 1}, v{SB}")
            a("s_nop 1")
        a(MF32(vr(ACC, 16), vr(124, 4), vr(TB, 4)))
        a("s_setprio 0")
        for x in hooks.get("post", []): a(x)
        if tt == 2:
            ntile[0] += 1
            cwait(f"T{ntile[0]}", 24, 1)
        if not last:
            for ks in range(NR - 1): a(hread(HB + 4 * ks, tt + 1, ks))
        else:
            a("s_nop 10")
        for x in epi(ACC, ZB, SB, tt): a(x)
    a("s_lshl_b32 s26, s36, 17")
    a(f"s_add_u32 s26, s26, {HF}")
    a("s_lshl_b32 s33, s57, 15")
    a("s_sub_u32 s27, 65536, s33")
    a("s_add_u32 s27, s27, s26")
    a("s_add_u32 s26, s26, s33")
    a("s_lshl_b32 s28, s22, 12")
    a("s_add_u32 s29, s26, s28")
    a("s_mov_b32 m0, s28")
    a("s_lshl_b32 s52, s30, 12")
    a(f"s_add_u32 s52, s52, {ST}")
    a("s_lshl_b32 s53, s25, 9")
    a("v_add_u32 v9, s53, v8")
    a("v_and_b32 v1, 31, v0")
    a("v_lshlrev_b32 v1, 3, v1")
    a("v_lshl_add_u32 v1, v11, 11, v1")
    a("s_barrier")
    st(a, 't3')
    for i in range(4):
        a(f"buffer_load_dwordx4 v2, s[8:11], s29 offen offset:{i * 1024} {LD_SC} lds")
    a("s_cmp_lt_u32 s22, 4")
    a("s_cbranch_scc1 K2_GA")
    a("s_lshl_b32 s28, s25, 13")
    def hdma(tt, groups, base):
        for g in groups:
            a(f"s_add_u32 m0, {base}, {tt * 32768 + g * 4096}")
            a(f"s_add_u32 s29, s{26 if tt < 2 else 27}, {(tt % 2) * 32768 + g * 4096}")
            if base != "0": a(f"s_add_u32 s29, s29, {base}")
            for i in range(4):
                a(f"buffer_load_dwordx4 v2, s[8:11], s29 offen offset:{i * 1024} {LD_SC} lds")
    for q in range(8):
        a(f"buffer_load_dwordx2 {vr(STR[q // 2] + 2 * (q % 2), 2)}, v1, s[8:11], s52 offen offset:{q * 256} sc1")
    hdma(1, range(1), "s28")
    a("v_mov_b32 v6, 0")
    a("v_mov_b32 v7, 0")
    for q in range(4):
        a(f"ds_write_b64 v4, v[6:7] offset:{q * 8}")
    a("s_waitcnt vmcnt(12) lgkmcnt(0)")
    a("s_barrier")
    st(a, 'g1')
    hdma(1, range(1, 2), "s28")
    r0 = STR[0]
    SQ = []
    for q in range(1, 4):
        SQ += [f"v_add_f32 v{r0 + i}, v{r0 + i}, v{STR[q] + i}" for i in range(4)]
    SQ += [f"v_add_f32 v12, v{r0}, v{r0 + 2}", f"v_add_f32 v13, v{r0 + 1}, v{r0 + 3}",
           "v_mov_b32 v14, v12", "v_mov_b32 v15, v13", "s_nop 0",
           "v_permlane32_swap_b32 v12, v14", "v_permlane32_swap_b32 v13, v15",
           "v_add_f32 v12, v12, v14", "v_add_f32 v13, v13, v15",
           f"v_mul_f32 v12, {f32(-1/512)}, v12", f"v_mul_f32 v13, {f32(1/512)}, v13",
           "v_fma_f32 v13, -v12, v12, v13", "v_max_f32 v13, 0, v13", f"v_add_f32 v{r0 + 1}, {f32(EPS)}, v13",
           f"v_rsq_f32 v14, v{r0 + 1}", "v_cvt_pk_bf16_f32 v15, v12, v12", "v_lshlrev_b32 v15, 16, v15",
           "v_sub_f32 v12, v12, v15", f"v_cvt_pk_bf16_f32 v{r0}, v15, v12",
           f"v_mul_f32 v{r0 + 2}, {f32(-K1C)}, v14", "v_mul_f32 v14, v14, v14", f"v_mul_f32 v14, v14, v{r0 + 2}",
           f"v_mul_f32 v{r0 + 3}, {f32(0.044715)}, v14"]
    a("s_waitcnt vmcnt(8)")
    for x in SQ: a(x)
    a(f"ds_write_b128 v9, {vr(r0, 4)}")
    hdma(2, range(2), "s28")
    a("s_waitcnt lgkmcnt(0)")
    a("s_barrier")
    st(a, 'g2')
    a("s_cmp_eq_u32 s22, 7")
    a("s_cbranch_scc1 K2_W7")
    tile(0, {GB3: ["s_waitcnt vmcnt(0)", "s_barrier"]})
    tile(1, {}, pre=1); tile(2, {}, pre=1)
    tile(3, {}, pre=1, last=True)
    a("s_branch K2_DOWN")
    a.label("K2_W7")
    hdma(3, range(8), "0")
    a("s_waitcnt vmcnt(32)")
    a("s_barrier")
    srd(a, 12, 48, 1792 * 512 * 2)
    a("v_lshrrev_b32 v8, 2, v0")
    a("v_lshlrev_b32 v8, 10, v8")
    a("v_and_b32 v1, 3, v0")
    a("v_lshl_add_u32 v8, v1, 4, v8")
    a("v_lshlrev_b32 v9, 6, v10")
    a("v_lshl_add_u32 v9, v1, 3, v9")
    a("v_bfe_u32 v1, v0, 4, 1")
    a("v_lshl_add_u32 v9, v1, 5, v9")
    a(f"v_add_u32 v9, {SPARE}, v9")
    a("s_lshl_b32 s26, s24, 7")
    ko = lambda s_: s_ + (7 if s_ >= 7 else 0)
    a("s_and_b32 s52, s23, 1")
    a(f"s_mul_i32 s27, s52, {7 * 16384}")
    a("s_add_u32 s27, s27, s26")
    for j in range(28):
        a(f"s_mov_b32 m0, {SPARE + j * 1024}")
        a(f"s_add_u32 s29, s27, {(84 + ko(j // 2)) * 16384 + (1 ^ (j % 2)) * 64}")
        a("buffer_load_dwordx4 v8, s[12:15], s29 offen lds")
    a("s_waitcnt vmcnt(28)")
    a("ds_write_b32 v4, v5 offset:24")
    a("s_waitcnt vmcnt(0)")
    for j in range(28):
        for e in range(2):
            a(f"ds_read_b64_tr_b16 {vr(WD + 4 * j + 2 * e, 2)}, v9 offset:{j * 1024 + e * 512}")
    a("s_waitcnt lgkmcnt(0)")
    a("s_xor_b32 s53, s52, 1")
    a(f"s_mul_i32 s53, s53, {7 * 16384}")
    a("s_add_u32 s53, s53, s26")
    def sdma(w, j, lds):
        a(f"s_mov_b32 m0, {lds}")
        a(f"s_add_u32 s29, s{53 if w < 4 else 27}, {(28 * (w % 4) + ko(j // 2)) * 16384 + ((w % 2) ^ (j % 2)) * 64}")
        a("buffer_load_dwordx4 v8, s[12:15], s29 offen lds")
    for w in range(4):
        for j in range(7): sdma(w, j, SPARE + w * 7168 + j * 1024)
    for r in range(3):
        if r == 2:
            a("s_lshl_b32 s31, s36, 8")
            a("s_lshl_b32 s33, s37, 2")
            a("s_add_u32 s31, s31, s33")
            a(f"s_add_u32 s31, s31, {FL4 + 128}")
            a("v_mov_b32 v12, 0")
            a("v_mov_b32 v13, 1")
            cwait("A", 16)
            signal("K2_S4A")
        cwait(r, r * 4)
        for w in range(4): sdma(w, 7 + r, r * 32768 + 28672 + w * 1024)
        for j in range(28): sdma(4 + r, j, r * 32768 + j * 1024)
        if r == 2:
            a("s_waitcnt vmcnt(28)")
            a("ds_write_b32 v4, v5 offset:20")
    a("s_branch K2_DOWN")
    a.label("K2_GA")
    a("s_waitcnt vmcnt(0)")
    a("s_barrier")
    st(a, 'g1')
    tile(0, {31: ["s_barrier"]}, late=True, last=True)
    st(a, 'g2')
    a("s_barrier")
    tile(1, {}); tile(2, {}, pre=1)
    tile(3, {}, pre=1, last=True)
    a.label("K2_DOWN")
    st(a, 'gu')
    AC5 = 16; GS = [80, 88, 96, 104, 240, 248, 120]; NG = len(GS)
    srd(a, 12, 48, 1792 * 512 * 2)
    srd(a, 16, 62, 2048 * 512 * 2)
    a("s_lshl_b32 s31, s36, 8")
    a("s_lshl_b32 s33, s37, 2")
    a("s_add_u32 s31, s31, s33")
    a(f"s_add_u32 s31, s31, {FL4}")
    a("s_and_b32 s26, s22, 1")
    a("s_bfe_u32 s27, s22, 0x10001")
    a("s_lshl_b32 s28, s24, 1")
    a("s_add_u32 s28, s28, s26")
    a("s_lshl_b32 s30, s23, 1")
    a("s_add_u32 s30, s30, s27")
    a("s_lshr_b32 s33, s22, 2")
    a("s_xor_b32 s33, s33, s23")
    a("s_and_b32 s33, s33, 1")
    a("s_xor_b32 s57, s33, 1")
    a("s_lshl_b32 s33, s25, 2")
    a("s_add_u32 s33, s33, s57")
    a("s_mul_i32 s29, s33, 7168")
    a(f"s_mul_i32 s52, s30, {112 * 1024}")
    a("s_add_u32 s52, s52, s29")
    a(f"s_add_u32 s52, s52, {GF}")
    a("s_xor_b32 s53, s30, 1")
    a(f"s_mul_i32 s53, s53, {112 * 1024}")
    a("s_add_u32 s53, s53, s29")
    a(f"s_add_u32 s53, s53, {GF}")
    a(f"s_mul_i32 s29, s33, {7 * 16384}")
    a("s_lshl_b32 s54, s28, 6")
    a("s_xor_b32 s55, s54, 64")
    a("s_add_u32 s54, s54, s29")
    a("s_add_u32 s55, s55, s29")
    a("s_lshl_b32 s32, s22, 12")
    a("v_lshrrev_b32 v8, 2, v0")
    a("v_lshlrev_b32 v8, 10, v8")
    a("v_and_b32 v1, 3, v0")
    a("v_lshl_add_u32 v8, v1, 4, v8")
    a("v_lshlrev_b32 v9, 6, v10")
    a("v_lshl_add_u32 v9, v1, 3, v9")
    a("v_bfe_u32 v1, v0, 4, 1")
    a("v_lshl_add_u32 v9, v1, 5, v9")
    a("v_mov_b32 v12, 0")
    a("v_mov_b32 v13, 1")
    a("v_and_b32 v3, 31, v0")
    a("v_lshlrev_b32 v3, 10, v3")
    a("v_lshl_add_u32 v3, v11, 4, v3")
    def trd(j, reg, off):
        return [f"ds_read_b64_tr_b16 {vr(WD + 4 * j + 2 * e, 2)}, v{reg} offset:{off + e * 512}" for e in range(2)]
    def wdma(j, sreg, off):
        a(f"s_add_u32 m0, s{sreg}, {off}")
        a(f"s_add_u32 s29, s{54 + j % 2}, {ko(j // 2) * 16384}")
        V("buffer_load_dwordx4 v8, s[12:15], s29 offen lds", "wd")
    def dumpaddr():
        for t in range(4):
            a(f"s_xor_b32 s29, s25, {t}")
            a("s_lshl_b32 s29, s29, 15")
            a("s_add_u32 s29, s29, s32")
            a(f"v_add_u32 v{4 + t}, s29, v2")
    gb = [0]
    def gload(s):
        k = ko(s) * 1024
        if k - gb[0] > 3072:
            a(f"s_add_u32 s52, s52, {k - gb[0]}")
            a(f"s_add_u32 s53, s53, {k - gb[0]}")
            gb[0] = k
        for i in range(2):
            V(f"buffer_load_dwordx4 {vr(GS[s % NG] + 4 * i, 4)}, v2, s[8:11], s{52 + i} offen offset:{k - gb[0]} sc1", f"g{s}")
    def kloop(hooks, fills):
        issued = NG; fq = []
        for s in range(KS):
            for x in hooks.get(s, []):
                x() if callable(x) else a(x)
            fq += fills.get(s, [])
            vmwait(f"g{s}")
            g = GS[s % NG]; w = WD + 8 * s
            B0, B1, A0, A1 = vr(g, 4), vr(g + 4, 4), vr(w, 4), vr(w + 4, 4)
            C = "0" if s == 0 else None
            for d_, A_, B_ in ((AC5 + 32, A0, B1), (AC5 + 16, A1, B0), (AC5 + 48, A1, B1), (AC5, A0, B0)):
                a(MF32(vr(d_, 16), A_, B_, C))
                for _ in range(5):
                    if fq: a(fq.pop(0))
            if issued < KS:
                gload(issued); issued += 1
        assert not fq
    def dump(ts):
        for t in ts:
            for q in range(4):
                a(f"ds_write_b128 v{4 + t}, {vr(AC5 + 16 * t + 4 * q, 4)} offset:{q * 1024}")
    a("s_cmp_lt_u32 s22, 4")
    a("s_cbranch_scc1 K2_DLO")
    a("s_lshl_b32 s29, s25, 15")
    a("v_add_u32 v9, s29, v9")
    a(f"v_mov_b32 v14, {CNT}")
    dumpaddr()
    a("s_waitcnt vmcnt(0)")
    a("s_barrier")
    signal("K2_S4", True)
    st(a, 'z0')
    del vm[:]; gb[0] = 0
    for s in range(NG): gload(s)
    a("s_cmp_eq_u32 s22, 7")
    a("s_cbranch_scc1 K2_D7")
    for j in range(28):
        for x in trd(j, 9, j * 1024): a(x)
    a.label("K2_D7")
    a("s_waitcnt lgkmcnt(0)")
    a("s_mov_b64 exec, 1")
    a("ds_add_u32 v14, v13 offset:28")
    a("s_mov_b64 exec, -1")
    if D_PRIO: a("s_setprio 2")
    kloop({D_ZS: ["s_barrier"]} if D_ZS >= 0 else {}, {})
    a("v_mov_b32 v15, v6")
    cwait("Z", 28, 8, 14)
    a("v_mov_b32 v6, v15")
    st(a, 't4'); st(a, 'dk'); st(a, 'db'); st(a, 'ds')
    a("s_nop 8")
    dump((2, 1, 3, 0))
    a("s_waitcnt lgkmcnt(0)")
    a("s_barrier")
    stamp_end(a, 0, 7, 8)
    a("s_endpgm")
    a.label("K2_DLO")
    del vm[:]; gb[0] = 0
    a("s_mul_i32 s26, s25, 7168")
    a(f"s_add_u32 s26, s26, {SPARE}")
    a("s_lshl_b32 s27, s25, 10")
    a("s_add_u32 s27, s27, 28672")
    a("s_lshl_b32 s28, s25, 13")
    a("s_add_u32 s28, s28, 98304")
    a("v_add_u32 v10, s26, v9")
    a("v_add_u32 v14, s27, v9")
    a("v_add_u32 v15, 65536, v14")
    a("v_add_u32 v9, s28, v9")
    SL = [(26, k * 1024, 10, k * 1024) for k in range(7)] + [(27, 0, 14, 0), (27, 32768, 14, 32768), (27, 65536, 15, 0)]
    cwait("R", 20, 1)
    for k in range(10):
        for x in trd(k, SL[k][2], SL[k][3]): a(x)
    a("s_waitcnt vmcnt(0) lgkmcnt(0)")
    for k in range(10): wdma(10 + k, SL[k][0], SL[k][1])
    a("s_cmp_eq_u32 s22, 3")
    a("s_cbranch_scc0 K2_NPA")
    a("v_mov_b32 v16, v15")
    a("s_lshr_b32 s29, s23, 1")
    a("s_lshl_b32 s29, s29, 8")
    a("s_xor_b32 s30, s57, 1")
    a("s_lshl_b32 s33, s30, 2")
    a("s_add_u32 s29, s29, s33")
    a(f"s_add_u32 s29, s29, {FL4 + 128}")
    poll("K2_P4A", 29, 8, 3)
    a("v_mov_b32 v15, v16")
    if G_ET:
        a("s_lshl_b32 s33, s24, 1")
        a("s_add_u32 s29, s30, s33")
        a("s_mul_i32 s29, s29, 7168")
        a(f"s_mul_i32 s33, s23, {224 * 1024}")
        a("s_add_u32 s29, s29, s33")
        a(f"s_add_u32 s29, s29, {GF}")
        a("v_min_u32 v1, 55, v0")
        a("v_lshlrev_b32 v1, 7, v1")
        a("buffer_load_dword v17, v1, s[8:11], s29 offen sc1")
        a(f"s_add_u32 s29, s29, {112 * 1024}")
        a("buffer_load_dword v17, v1, s[8:11], s29 offen sc1")
    a.label("K2_NPA")
    dumpaddr()
    a("s_barrier")
    st(a, 'z0')
    for k in range(8): wdma(20 + k, 28, k * 1024)
    a("s_waitcnt vmcnt(8)")
    for k in range(10):
        for x in trd(10 + k, SL[k][2], SL[k][3]): a(x)
    a("s_lshl_b32 s29, s25, 15")
    a("v_add_u32 v8, s29, v2")
    a(f"v_mov_b32 v12, {CNT + 12}")
    a("s_waitcnt vmcnt(0)")
    for k in range(8):
        for x in trd(20 + k, 9, k * 1024): a(x)
    for t in range(1, 4):
        a(f"s_xor_b32 s33, s25, {t}")
        a("s_lshl_b32 s33, s33, 12")
        a(f"v_add_u32 v{(10, 11, 4)[t - 1]}, s33, v8")
    a("s_waitcnt lgkmcnt(0)")
    a("s_mov_b64 exec, 1")
    a("ds_add_u32 v12, v13 offset:16")
    a("s_mov_b64 exec, -1")
    if D_ZS >= 0: a("s_barrier")
    a("s_cmp_eq_u32 s22, 0")
    a("s_cbranch_scc0 K2_DSP")
    a("s_lshr_b32 s29, s23, 1")
    a("s_lshl_b32 s29, s29, 8")
    a("s_lshl_b32 s33, s57, 2")
    a("s_add_u32 s29, s29, s33")
    a(f"s_add_u32 s29, s29, {FL4}")
    poll2("K2_P4", 29, 8, 3)
    a("ds_write_b32 v12, v13")
    a("s_branch K2_DGO")
    a.label("K2_DSP")
    a("s_mov_b32 s33, 0")
    a.label("K2_DSL")
    a("s_sleep 1")
    a("ds_read_b32 v15, v12")
    a("s_add_u32 s33, s33, 1")
    a("s_waitcnt lgkmcnt(0)")
    a("v_cmp_eq_u32 vcc, 1, v15")
    a("s_cmp_gt_u32 s33, 0x400000")
    a("s_cbranch_scc1 K2_DGO")
    a("s_cbranch_vccz K2_DSL")
    a.label("K2_DGO")
    st(a, 't4')
    del vm[:]
    for s in range(NG): gload(s)
    a("s_mov_b32 s56, 0xffff0000")
    a("s_waitcnt lgkmcnt(0)")
    F1 = [f"ds_read_b128 {vr(WD + 16 * p_ + 4 * q, 4)}, v8 offset:{16384 + p_ * 4096 + q * 1024}" for p_ in range(4) for q in range(4)]
    F2 = [f"v_add_f32 v{WD + i}, v{WD + i}, v{WD + 16 + i}" for i in range(16)]
    F2 += [f"v_add_f32 v{WD + 32 + i}, v{WD + 32 + i}, v{WD + 48 + i}" for i in range(16)]
    F2 += [f"v_add_f32 v{WD + i}, v{WD + i}, v{WD + 32 + i}" for i in range(16)]
    for i in range(8):
        F2 += [f"v_lshlrev_b32 v{WD + 16 + 2 * i}, 16, v{112 + i}", f"v_and_b32 v{WD + 17 + 2 * i}, s56, v{112 + i}"]
    F2 += [f"v_add_f32 v{WD + i}, v{WD + i}, v{WD + 16 + i}" for i in range(16)]
    kloop({8: ["s_barrier"], 10: ["s_waitcnt lgkmcnt(0)"]}, {8: F1, 10: F2}) if not D_LATE else kloop({9: ["s_barrier"], 10: ["s_waitcnt lgkmcnt(0)"]}, {9: F1, 10: F2})
    st(a, 'dk')
    dump((2, 1, 3))
    for i in range(16):
        a(f"v_add_f32 v{AC5 + i}, v{AC5 + i}, v{WD + i}")
    a("s_waitcnt lgkmcnt(0)")
    a("s_barrier")
    st(a, 'db')
    for t in range(3):
        for q in range(4):
            a(f"ds_read_b128 {vr(WD + 16 * t + 4 * q, 4)}, v{(10, 11, 4)[t]} offset:{q * 1024}")
    for t in range(3):
        a(f"s_waitcnt lgkmcnt({8 - 4 * t})")
        for i in range(0, 16, 2):
            a(f"v_pk_add_f32 {vr(AC5 + i, 2)}, {vr(AC5 + i, 2)}, {vr(WD + 16 * t + i, 2)}")
    o = AC5 + 16
    for i in range(8):
        a(f"v_cvt_pk_bf16_f32 v{o + i}, v{AC5 + 2 * i}, v{AC5 + 2 * i + 1}")
    a("s_nop 0")
    for j in range(2):
        a(f"v_permlane32_swap_b32 v{o + 4 * j}, v{o + 4 * j + 2}")
        a(f"v_permlane32_swap_b32 v{o + 4 * j + 1}, v{o + 4 * j + 3}")
    for j in range(2):
        a(f"buffer_store_dwordx4 {vr(o + 4 * j, 4)}, v3, s[16:19], s51 offen offset:{j * 32} {OUT_SC}")
    st(a, 'ds')
    stamp_end(a, 0, 7, 8)
    a("s_endpgm")
    a.label("K2_FALLBACK")
    a("v_mov_b32 v1, v2")
    a("v_mov_b32 v14, 0xff800000")
    a("s_mov_b32 s33, 0")
    a.label("K2_FB1")
    a(f"ds_read_b128 {vr(KR, 4)}, v1")
    a("v_add_u32 v1, 1024, v1")
    a("s_waitcnt lgkmcnt(0)")
    a(MF32(vr(s0, 16), vr(KR, 4), vr(Q, 4), "0"))
    a("s_nop 11")
    for i in range(0, 16, 2):
        a(f"v_max3_f32 v14, v14, v{s0+i}, v{s0+i+1}")
    a("s_add_u32 s33, s33, 1")
    a("s_cmp_lt_u32 s33, 64")
    a("s_cbranch_scc1 K2_FB1")
    set_negm()
    for i in range(16):
        a(f"v_mov_b32 v{O + i}, 0")
    a("v_mov_b32 v1, v2")
    a("s_mov_b32 s33, 0")
    a.label("K2_FB2")
    a(f"ds_read_b128 {vr(KR, 4)}, v1")
    a("s_mov_b64 exec, s[34:35]")
    a(f"ds_read_b128 {vr(VR, 4)}, v3")
    a(f"ds_read_b128 {vr(VR + 4, 4)}, v3 offset:512")
    a("s_mov_b64 exec, -1")
    a("v_add_u32 v1, 1024, v1")
    a("v_add_u32 v3, 1024, v3")
    a("s_waitcnt lgkmcnt(0)")
    a(MF32(vr(s0, 16), vr(KR, 4), vr(Q, 4), vr(NEGM, 16)))
    a("s_nop 11")
    for i in range(16): a(f"v_exp_f32 v{s0+i}, v{s0+i}")
    a("s_nop 0")
    for i in range(8): a(f"v_cvt_pk_bf16_f32 v{P+i}, v{s0+2*i}, v{s0+2*i+1}")
    a("s_nop 1")
    a(MF32(vr(O, 16), vr(VR, 4), vr(P, 4)))
    a(MF32(vr(O, 16), vr(VR + 4, 4), vr(P + 4, 4)))
    a("s_add_u32 s33, s33, 1")
    a("s_cmp_lt_u32 s33, 64")
    a("s_cbranch_scc1 K2_FB2")
    a("s_nop 11")
    a("s_branch K2_FIN")
    a.label("K2_END")
    a("s_endpgm")
    return n, a, kd(n, 256, 256), (256, 512, 163840)

def k5():
    a = Asm(); n = "k3_down_kernel"
    NS = 112; KS = 28; DEPTH = 8
    kernel_head(a, n)
    ACC = 16; GB = 80; WB = 144; RES = 160
    RED = 65536
    a("s_cmp_ge_u32 s2, 256")
    a("s_cbranch_scc1 K5_END")
    stamp(a, 0)
    if DBGK1:
        a("s_memrealtime s[64:65]")
        a("s_memtime s[66:67]")
    a("s_load_dwordx2 s[4:5], s[0:1], 72")
    a("s_load_dwordx4 s[40:43], s[0:1], 48")
    a("v_lshrrev_b32 v1, 6, v0")
    a("v_and_b32 v0, 63, v0")
    a("v_readfirstlane_b32 s22, v1")
    a("v_lshlrev_b32 v2, 4, v0")
    a("s_and_b32 s23, s2, 7")
    a("s_lshl_b32 s23, s23, 2")
    a("s_bfe_u32 s29, s2, 0x20003")
    a("s_add_u32 s23, s23, s29")
    a("s_lshr_b32 s24, s2, 5")
    a("s_and_b32 s25, s22, 1")
    a("s_lshr_b32 s26, s22, 1")
    a("s_lshl_b32 s27, s24, 1")
    a("s_add_u32 s27, s27, s25")
    a("s_lshl_b32 s28, s23, 1")
    a("s_add_u32 s28, s28, s26")
    a(f"s_mul_i32 s29, s22, {KS * 1024}")
    a(f"s_mul_i32 s32, s28, {NS * 1024}")
    a("s_add_u32 s32, s32, s29")
    a(f"s_add_u32 s32, s32, {GF}")
    a("s_xor_b32 s33, s28, 1")
    a(f"s_mul_i32 s33, s33, {NS * 1024}")
    a("s_add_u32 s33, s33, s29")
    a(f"s_add_u32 s33, s33, {GF}")
    a(f"s_mul_i32 s29, s22, {KS * 16384}")
    a("s_lshl_b32 s30, s27, 6")
    a("s_xor_b32 s31, s30, 64")
    a("s_add_u32 s30, s30, s29")
    a("s_add_u32 s31, s31, s29")
    a("s_lshl_b32 s36, s22, 14")
    a("v_lshrrev_b32 v8, 2, v0")
    a("v_lshlrev_b32 v8, 10, v8")
    a("v_and_b32 v1, 3, v0")
    a("v_lshl_add_u32 v8, v1, 4, v8")
    a("s_waitcnt lgkmcnt(0)")
    srd(a, 8, 4, WS_SIZE)
    srd(a, 16, 40, 1792 * 512 * 2)
    srd(a, 12, 42, 2048 * 512 * 2)
    def loads(s):
        b = GB + 8 * (s % DEPTH)
        if s % 4 == 0 and s > 0:
            a("s_add_u32 s32, s32, 4096")
            a("s_add_u32 s33, s33, 4096")
        for i in range(2):
            a(f"s_add_u32 m0, s36, {(s % DEPTH) * 2048 + i * 1024}")
            a(f"s_add_u32 s29, s{30 + i}, {s * 16384}")
            a("buffer_load_dwordx4 v8, s[16:19], s29 offen lds")
        for i in range(2):
            a(f"buffer_load_dwordx4 {vr(b + 4 * i, 4)}, v2, s[8:11], s{32 + i} offen offset:{(s % 4) * 1024}")
    for s in range(DEPTH - 1):
        loads(s)
    a("v_lshrrev_b32 v4, 5, v0")
    a("v_bfe_u32 v1, v0, 2, 2")
    a("v_lshl_add_u32 v9, v4, 2, v1")
    a("v_lshlrev_b32 v9, 6, v9")
    a("v_and_b32 v1, 3, v0")
    a("v_lshl_add_u32 v9, v1, 3, v9")
    a("v_bfe_u32 v1, v0, 4, 1")
    a("v_lshl_add_u32 v9, v1, 5, v9")
    a("v_add_u32 v9, s36, v9")
    a("v_and_b32 v3, 31, v0")
    a("v_lshlrev_b32 v3, 10, v3")
    a("v_lshl_add_u32 v3, v4, 4, v3")
    a("s_lshl_b32 s34, s28, 15")
    a("s_lshl_b32 s35, s27, 6")
    a("s_add_u32 s34, s34, s35")
    a("s_lshl_b32 s35, s28, 15")
    a("s_lshl_b32 s37, s27, 11")
    a("s_add_u32 s35, s35, s37")
    a(f"s_add_u32 s35, s35, {HF}")
    for t in range(1, 4):
        a(f"s_xor_b32 s29, s22, {t}")
        a("s_mul_i32 s29, s29, 12288")
        a(f"s_add_u32 s29, s29, {RED}")
        a(f"v_add_u32 v{4 + t}, s29, v2")
    a("s_mul_i32 s29, s22, 12288")
    a(f"s_add_u32 s29, s29, {RED}")
    a("v_add_u32 v4, s29, v2")
    def trreads(s):
        for i in range(2):
            for e in range(2):
                a(f"ds_read_b64_tr_b16 {vr(WB + 8 * (s % 2) + 4 * i + 2 * e, 2)}, v9 offset:{(s % DEPTH) * 2048 + i * 1024 + e * 512}")
    def mfmas(s):
        g = GB + 8 * (s % DEPTH); w = WB + 8 * (s % 2)
        B0, B1, A0, A1 = vr(g, 4), vr(g + 4, 4), vr(w, 4), vr(w + 4, 4)
        C = "0" if s == 0 else None
        a(MF32(vr(ACC, 16), A0, B0, C))
        a(MF32(vr(ACC + 32, 16), A0, B1, C))
        a(MF32(vr(ACC + 16, 16), A1, B0, C))
        a(MF32(vr(ACC + 48, 16), A1, B1, C))
    issued = DEPTH - 1; res = 0
    a(f"s_waitcnt vmcnt({(issued - 1) * 4})")
    st(a, 't1')
    trreads(0)
    for s in range(KS):
        if issued < KS:
            loads(issued); issued += 1
            if issued == KS:
                for j in range(2):
                    a(f"buffer_load_dwordx4 {vr(RES + 4 * j, 4)}, v2, s[8:11], s35 offen offset:{j * 1024}")
                res = 2
        if s + 1 < KS:
            a(f"s_waitcnt vmcnt({(issued - s - 2) * 4 + res})")
            trreads(s + 1)
            a("s_waitcnt lgkmcnt(4)")
        else:
            a("s_waitcnt lgkmcnt(0)")
        mfmas(s)
    st(a, 'att')
    a("s_waitcnt vmcnt(0)")
    a("s_mov_b32 s29, 0xffff0000")
    for i in range(8):
        a(f"v_lshlrev_b32 v{RES + 8 + 2 * i}, 16, v{RES + i}")
        a(f"v_and_b32 v{RES + 9 + 2 * i}, s29, v{RES + i}")
    for t in (2, 1, 3):
        for q in range(4):
            a(f"ds_write_b128 v{4 + t}, {vr(ACC + 16 * t + 4 * q, 4)} offset:{(t - 1) * 4096 + q * 1024}")
    for i in range(16):
        a(f"v_add_f32 v{ACC + i}, v{ACC + i}, v{RES + 8 + i}")
    a("s_waitcnt lgkmcnt(0)")
    a("s_barrier")
    for t in range(3):
        for q in range(4):
            a(f"ds_read_b128 {vr(GB + 16 * t + 4 * q, 4)}, v4 offset:{t * 4096 + q * 1024}")
    for t in range(3):
        a(f"s_waitcnt lgkmcnt({8 - 4 * t})")
        for i in range(0, 16, 2):
            a(f"v_pk_add_f32 {vr(ACC + i, 2)}, {vr(ACC + i, 2)}, {vr(GB + 16 * t + i, 2)}")
    o = ACC + 16
    for i in range(8):
        a(f"v_cvt_pk_bf16_f32 v{o + i}, v{ACC + 2 * i}, v{ACC + 2 * i + 1}")
    a("s_nop 0")
    for j in range(2):
        a(f"v_permlane32_swap_b32 v{o + 4 * j}, v{o + 4 * j + 2}")
        a(f"v_permlane32_swap_b32 v{o + 4 * j + 1}, v{o + 4 * j + 3}")
    for j in range(2):
        a(f"buffer_store_dwordx4 {vr(o + 4 * j, 4)}, v3, s[12:15], s34 offen offset:{j * 32}")
    stamp_end(a, 2, 3, 8)
    if DBGK1:
        a("s_waitcnt vmcnt(0)")
        a("s_memrealtime s[68:69]")
        a("s_memtime s[70:71]")
        a("s_load_dwordx2 s[72:73], s[0:1], 64")
        a("s_waitcnt lgkmcnt(0)")
        srd(a, 76, 72, 256)
        a("s_sub_u32 s70, s70, s66")
        a("s_cmp_lg_u32 s2, 0")
        a("s_cbranch_scc1 K5_END")
        a(f"s_mov_b32 s74, {DBGOFF}")
        a("v_mov_b32 v0, 0")
        a("buffer_load_dwordx4 v[4:7], v0, s[8:11], s74 offen")
        a("buffer_load_dwordx4 v[8:11], v0, s[8:11], s74 offen offset:16")
        a("s_waitcnt vmcnt(0)")
        a("v_sub_u32 v5, v5, v4")
        a("v_sub_u32 v8, v8, v4")
        a("v_sub_u32 v9, v9, v4")
        a("v_sub_u32 v12, s64, v4")
        a("v_sub_u32 v13, s68, v4")
        a("v_mov_b32 v14, s70")
        a("v_mov_b32 v15, 0")
        a("buffer_store_dwordx4 v[4:7], v0, s[76:79], 0 offen")
        a("buffer_store_dwordx4 v[8:11], v0, s[76:79], 0 offen offset:16")
        a("buffer_store_dwordx4 v[12:15], v0, s[76:79], 0 offen offset:32")
    a.label("K5_END")
    a("s_endpgm")
    return n, a, kd(n, 192, 192), (256, 256, RED + 49152)

def main(out):
    ks = [k234()]
    hdr = open("cdna_kernels/" + NAME + ".s.ref").read().split("\n")
    hdr = [l for l in hdr if l.startswith(";") and "@launch" not in l and "Override" not in l and "grid=ceil" not in l]
    txt = "\n".join(hdr) + "\n"
    for n, a, d, (g, b, lds) in ks:
        txt += f"; @launch {'kernel=' + n + ' ' if LIST else ''}grid=({g},1,1) block=({b},1,1) lds={lds}\n"
    txt += '.amdgcn_target "amdgcn-amd-amdhsa--gfx950"\n.text\n'
    bad = 0
    for ki, (n, a, d, _) in enumerate(ks):
        fl = ST_FLAGS[ki]
        if fl:
            a.lines = [l + " " + fl if ("buffer_store_dwordx" in l and "sc1" not in l) else l for l in a.lines]
        bad += check_hazards(a.lines, n)
        txt += a.text()
    txt += "CODE_END:\n"
    txt += '.section .rodata,"a"\n'
    for n, a, d, _ in ks:
        txt += ".p2align 6\n" + d
    open(out, "w").write(txt)
    print("hazards:", bad)

if __name__ == "__main__":
    if "stamp" in sys.argv: STAMP = True
    for arg in sys.argv[2:]:
        if "=" in arg:
            k_, v_ = arg.split("=", 1)
            globals()[k_] = eval(v_)
    main(sys.argv[1] if len(sys.argv) > 1 else "cdna_kernels/" + NAME + ".s")
```

```python
import sys, math, struct
from asmlib import *

NAME = "sequential_preLN__mha_block__geglu_ffn__prompt"

QF, KF, VF, OF, HF = 0x000000, 0x200000, 0x400000, 0x600000, 0x800000
ST  = 0xA00000
CSF = 0xA80000
WOF = 0xB00000
WGF = 0xC00000
WDF = 0x1000000
GF  = 0x1200000
WS_SIZE = 0x10000000
FL1 = 0xB02800
FL2 = 0xB00000
FL3 = 0xB00800
FL4 = 0xB01800

def f32(x):
    return "0x%08x" % struct.unpack("<I", struct.pack("<f", x))[0]

LOG2E = 1.4426950408889634
EPS = 1e-5

def srd(a, s, base, size):
    a(f"s_mov_b32 s{s}, s{base}")
    a(f"s_mov_b32 s{s+1}, s{base+1}")
    a(f"s_mov_b32 s{s+2}, {hex(size)}")
    a(f"s_mov_b32 s{s+3}, 0x00020000")

def kernel_head(a, name):
    a.raw(f".globl {name}")
    a.raw(".p2align 8")
    a.raw(f".type {name},@function")
    a.raw(f"{name}:")

def kd(name, nvgpr, accum, nsgpr=100):
    return f""".amdhsa_kernel {name}
  .amdhsa_next_free_vgpr {nvgpr}
  .amdhsa_next_free_sgpr {nsgpr}
  .amdhsa_accum_offset {accum}
  .amdhsa_group_segment_fixed_size 0
  .amdhsa_kernarg_size 80
  .amdhsa_user_sgpr_count 2
  .amdhsa_user_sgpr_kernarg_segment_ptr 1
  .amdhsa_system_sgpr_workgroup_id_x 1
.end_amdhsa_kernel
"""

STAMP = False
NT_W = ''
NT_X = ''
NT_G = ''
K2_CAD = 3
K2_W7S = 1
K1_CHIP = 0
K1_CF = ''
K2_T0 = 12
O_TCH = -1
H_TCH = -1
OUT_SC = ''
D_PRIO = 1
D_LATE = 0
O_PRIO = 0
ATOM = 1
NREP = 1
PIF = 1
POLL_PRE = 0
O_B1 = 10
POLL2 = 0
D_ZS = 4
W3_TOUCH = 0
G_EA = 12
G_PERM = 1
G_ET = 1
D_ROT = 1
G_TOUCH = 0
SMAP = ['t1', 'att', 't2', 't3', 'gu', 't4']
K2_Y2 = 40
K2_PER = 4
PIN = None
PINN = []
LIST = 1
FASTL2 = 1
D_Y = 6
DBGK1 = 0
LD_SC = 'sc1'
GSTAMP = 0
G_P2 = 8
GB3 = 20
GA3 = 0
POLL_SLEEP = 0
B_FILL = 4
K2_TCH = 1
G_SC = 'sc1'
CODE_TOUCH = 0
K1_ROT = 1
K1_TW = [-1, 0, 1]
K4_SL = 26
K2_S3 = 11
K2_WD = 0
K1_D = 1
K4_D = 2
K4_XB = 12
K4_TOUCH = 0
K2_S2 = 4
K1_TOUCH = 1
ST_FLAGS = ['', '', '', '', '']
K2_Y = 8
SIDE_SC = 'sc1'
K1_UP = 14
K4_UP = 22
DBGOFF = 0x2000000
def st(a, name):
    if name in SMAP: stamp(a, SMAP.index(name) + 1)
def stamp(a, i):
    if PIN:
        if i == 0: a("s_memrealtime s[64:65]")
        if i == PIN[0]:
            PINN.append(0); L = f"PIN{len(PINN)}"
            if len(PIN) > 2:
                a(f"s_cmp_lg_u32 s2, {PIN[2]}")
                a(f"s_cbranch_scc1 {L}X")
            a.label(L)
            a("s_memrealtime s[66:67]")
            a("s_waitcnt lgkmcnt(0)")
            a("s_sub_u32 s66, s66, s64")
            a(f"s_cmp_lt_u32 s66, {PIN[1]}")
            a(f"s_cbranch_scc1 {L}")
            a.label(L + "X")
    if not STAMP: return
    a(f"s_memrealtime s[{64 + 4 * i}:{65 + 4 * i}]")
    a(f"s_memtime s[{66 + 4 * i}:{67 + 4 * i}]")
    if i != 0:
        a("s_waitcnt lgkmcnt(0)")
def stamp_end(a, kidx, n, srdreg, wavereg=22):
    if PIN: stamp(a, n)
    if not STAMP: return
    a("s_waitcnt vmcnt(0)")
    stamp(a, n)
    a("s_lshl_b32 s60, s2, 3")
    a(f"s_add_u32 s60, s60, s{wavereg}")
    a("s_lshl_b32 s60, s60, 6")
    a(f"s_add_u32 s60, s60, {DBGOFF + kidx * 0x40000}")
    a("v_mov_b32 v0, 0")
    for j in range(2 * n + 2):
        a(f"v_mov_b32 v1, s{64 + 2 * j}")
        a(f"buffer_store_dword v1, v0, s[{srdreg}:{srdreg+3}], s60 offen offset:{4 * j}")

def MF32(d, A, B, C=None):
    C = d if C is None else C
    return f"v_mfma_f32_32x32x16_bf16 {d}, {A}, {B}, {C}"

def halfsum(a, v, t):
    a(f"v_mov_b32 v{t}, v{v}")
    a("s_nop 1")
    a(f"v_permlane32_swap_b32 v{v}, v{t}")
    a(f"v_add_f32 v{v}, v{v}, v{t}")


def k1():
    a = Asm(); n = NAME + "_kernel"
    kernel_head(a, n)
    SLOT = 28672; SCR = 5 * SLOT; SCR2 = SCR + 1536; SCR3 = SCR2 + 512
    D = K1_D
    a("s_cmp_ge_u32 s2, 256")
    a("s_cbranch_scc1 K2_END")
    stamp(a, 0)
    if DBGK1:
        a("s_memrealtime s[64:65]")
        a("s_memtime s[66:67]")
    a("s_load_dwordx4 s[4:7], s[0:1], 0")
    a("s_load_dwordx4 s[56:59], s[0:1], 64")
    a("v_lshrrev_b32 v1, 6, v0")
    a("v_and_b32 v0, 63, v0")
    a("v_readfirstlane_b32 s35, v1")
    a("s_and_b32 s23, s2, 3")
    a("s_lshl_b32 s23, s23, 2")
    a("s_bfe_u32 s29, s2, 0x20003")
    a("s_add_u32 s23, s23, s29")
    a("s_bfe_u32 s24, s2, 0x10002")
    a("s_lshl_b32 s24, s24, 3")
    a("s_lshr_b32 s29, s2, 5")
    a("s_add_u32 s24, s24, s29")
    a("s_and_b32 s22, s35, 3")
    a("s_lshl_b32 s27, s22, 12")
    a("s_lshl_b32 s40, s2, 1")
    a("s_and_b32 s29, s2, 4")
    a("s_add_u32 s40, s40, s29")
    if not K1_ROT: a("s_mov_b32 s40, 0")
    a("s_cmp_lt_u32 s35, 4")
    a("s_cbranch_scc1 K1_MM")
    a("s_lshl_b32 s25, s23, 17")
    a("s_lshl_b32 s29, s22, 15")
    a("s_add_u32 s25, s25, s29")
    a("s_mul_i32 s26, s22, 49152")
    a("s_lshl_b32 s29, s24, 6")
    a("s_add_u32 s26, s26, s29")
    a("s_lshl_b32 s28, s22, 10")
    a("s_add_u32 s28, s28, 16384")
    a("s_mov_b32 s30, 0x3f803f80")
    a("v_lshrrev_b32 v5, 3, v0")
    a("v_lshlrev_b32 v2, 10, v5")
    a("v_and_b32 v6, 7, v0")
    a("v_lshrrev_b32 v7, 4, v0")
    a("v_xor_b32 v6, v6, v7")
    a("v_lshl_add_u32 v2, v6, 4, v2")
    a("v_xor_b32 v3, 64, v2")
    a("v_add_u32 v3, 8192, v3")
    a("v_lshrrev_b32 v5, 2, v0")
    a("v_mul_u32_u24 v4, 3072, v5")
    a("v_and_b32 v6, 3, v0")
    a("v_lshl_add_u32 v4, v6, 4, v4")
    a("s_waitcnt lgkmcnt(0)")
    srd(a, 8, 4, 2048 * 512 * 2)
    srd(a, 12, 6, 512 * 1536 * 2)
    def dma(c):
        slot = (c % 5) * SLOT
        a(f"s_add_u32 s41, s40, {c}")
        a("s_and_b32 s41, s41, 7")
        a("s_lshl_b32 s42, s41, 7")
        a("s_add_u32 s42, s42, s25")
        a(f"s_mul_i32 s41, s41, {64 * 3072}")
        a("s_add_u32 s41, s41, s26")
        for p in range(3):
            a(f"s_add_u32 m0, s28, {slot + p * 4096}")
            a(f"s_add_u32 s29, s41, {p * 1024}")
            a(f"buffer_load_dwordx4 v4, s[12:15], s29 offen {NT_W} lds")
        for i in range(4):
            a(f"s_add_u32 m0, s27, {slot + i * 1024}")
            a(f"s_add_u32 s29, s42, {(i // 2) * 16384}")
            a(f"buffer_load_dwordx4 v{2 + (i % 2)}, s[8:11], s29 offen {NT_X} lds")
    for c in range(D + 1):
        dma(c)
    def rdaddr():
        a("v_and_b32 v5, 31, v0")
        a("v_lshrrev_b32 v6, 5, v0")
        a("v_bfe_u32 v7, v0, 1, 3")
        a("v_xor_b32 v7, v7, v6")
        a("v_lshlrev_b32 v5, 7, v5")
        a("v_add_u32 v5, s27, v5")
        for s in range(4):
            a(f"v_xor_b32 v1, {2 * s}, v7")
            a(f"v_lshl_add_u32 v{8 + s}, v1, 4, v5")
            a(f"v_add_u32 v{12 + s}, {2 * SLOT}, v{8 + s}")
            a(f"v_add_u32 v{16 + s}, {4 * SLOT}, v{8 + s}")
        a("v_bfe_u32 v1, v0, 2, 2")
        a("v_lshl_add_u32 v1, v6, 3, v1")
        a("v_lshlrev_b32 v20, 6, v1")
        a("v_bfe_u32 v1, v0, 4, 1")
        a("v_lshl_add_u32 v20, v1, 5, v20")
        a("v_and_b32 v1, 3, v0")
        a("v_lshl_add_u32 v20, v1, 3, v20")
    rdaddr()
    a("s_lshl_b32 s29, s22, 10")
    a("v_add_u32 v20, s29, v20")
    a(f"v_add_u32 v21, {2 * SLOT}, v20")
    a(f"v_add_u32 v22, {4 * SLOT}, v20")
    for i in range(28, 31):
        a(f"v_mov_b32 v{i}, 0")
    WB = 48
    for c in range(8):
        slot = c % 5; st = slot // 2; off = (slot % 2) * SLOT
        a(f"s_waitcnt vmcnt({7 * (min(c + D, 7) - c)})")
        a("s_barrier")
        for p in range(3):
            for u in range(2):
                a(f"ds_read_b64_tr_b16 {vr(WB + 4 * p + 2 * u, 2)}, v{20 + st} offset:{off + 16384 + p * 4096 + u * 256}")
        if c + D + 1 < 8:
            dma(c + D + 1)
        a("s_waitcnt lgkmcnt(0)")
        for i in range(4):
            for p in range(3):
                a(f"v_dot2c_f32_bf16 v{28 + p}, s30, v{WB + 4 * p + i}")
    a("v_and_b32 v5, 31, v0")
    a("v_lshlrev_b32 v6, 4, v5")
    a("s_lshl_b32 s29, s22, 2")
    a(f"s_add_u32 s29, s29, {SCR}")
    a("v_add_u32 v7, s29, v6")
    for p in range(3):
        halfsum(a, 28 + p, 1)
        a(f"ds_write_b32 v7, v{28 + p} offset:{p * 512}")
    a("s_min_u32 s29, s22, 2")
    a("s_lshl_b32 s31, s29, 9")
    a(f"s_add_u32 s31, s31, {SCR}")
    a("v_add_u32 v6, s31, v6")
    a("s_lshl_b32 s31, s29, 8")
    a(f"s_add_u32 s31, s31, {SCR3}")
    a("v_lshlrev_b32 v7, 3, v5")
    a("v_add_u32 v7, s31, v7")
    a("s_waitcnt lgkmcnt(0)")
    a("s_barrier")
    a("ds_read_b128 v[32:35], v6")
    a("s_waitcnt lgkmcnt(0)")
    a("v_add_f32 v32, v32, v33")
    a("v_add_f32 v34, v34, v35")
    a("v_add_f32 v34, v32, v34")
    a("v_cvt_pk_bf16_f32 v32, v34, v34")
    a("v_lshlrev_b32 v33, 16, v32")
    a("v_sub_f32 v33, v34, v33")
    a("v_cvt_pk_bf16_f32 v33, v33, v33")
    a("ds_write_b64 v7, v[32:33]")
    a("s_waitcnt lgkmcnt(0)")
    a("s_barrier")
    a("s_cmp_eq_u32 s35, 7")
    a("s_cbranch_scc0 K1_JOIN")
    srd(a, 16, 56, 256)
    a("v_mov_b32 v12, 0")
    a("s_mov_b32 s33, 0")
    a.label("K1_PZ")
    a("buffer_load_dword v15, v12, s[16:19], 0 offen sc1")
    a("s_add_u32 s33, s33, 1")
    a("s_waitcnt vmcnt(0)")
    a("v_cmp_eq_u32 vcc, 1, v15")
    a("s_cmp_gt_u32 s33, 0x40000")
    a("s_cbranch_scc1 K1_JOIN")
    a("s_cbranch_vccz K1_PZ")
    a("s_branch K1_JOIN")
    a.label("K1_MM")
    rdaddr()
    if CODE_TOUCH:
        a("s_getpc_b64 s[44:45]")
        a.label("K1_PC")
        a("s_sub_u32 s44, s44, K1_PC-k1_qkv_kernel")
        a("s_subb_u32 s45, s45, 0")
        a("s_lshl_b32 s46, s22, 13")
        a("v_lshlrev_b32 v23, 7, v0")
        a("v_add_u32 v23, s46, v23")
        for i in range(CODE_TOUCH):
            a("v_min_u32 v24, CODE_END-k1_qkv_kernel-4, v23")
            a("global_load_dword v31, v24, s[44:45]")
            a("v_add_u32 v23, 32768, v23")
    a(f"v_add_u32 v21, {2 * SLOT}, v20")
    a(f"v_add_u32 v22, {4 * SLOT}, v20")
    a("s_mov_b32 s30, 0x3f803f80")
    for i in range(24, 28):
        a(f"v_mov_b32 v{i}, 0")
    a("v_and_b32 v5, 31, v0")
    a("v_lshlrev_b32 v6, 3, v5")
    a(f"v_add_u32 v6, {SCR3}, v6")
    CF = 152
    for p in range(3):
        a(f"v_mov_b32 v{CF + 4 * p + 2}, 0")
        a(f"v_mov_b32 v{CF + 4 * p + 3}, 0")
    a("v_mov_b32 v150, 0")
    a("v_mov_b32 v151, 0")
    a("s_lshl_b32 s29, s22, 7")
    a(f"s_add_u32 s29, s29, {SCR2}")
    a("v_lshlrev_b32 v7, 2, v5")
    a("v_add_u32 v7, s29, v7")
    a("v_lshrrev_b32 v1, 5, v0")
    a("v_lshlrev_b32 v1, 4, v1")
    a("v_add_u32 v1, s29, v1")
    a("s_lshl_b32 s29, s23, 2")
    a("s_add_u32 s29, s29, s22")
    a("s_lshl_b32 s29, s29, 10")
    a("s_lshl_b32 s31, s24, 17")
    a("s_add_u32 s29, s29, s31")
    a("s_add_u32 s31, s29, 65536")
    a(f"s_add_u32 s32, s29, {KF}")
    a(f"s_add_u32 s33, s29, {KF + 65536}")
    a(f"s_add_u32 s34, s29, {VF}")
    a("v_lshlrev_b32 v2, 4, v0")
    a("v_bfe_u32 v3, v0, 4, 1")
    a("v_lshlrev_b32 v3, 16, v3")
    a("v_lshrrev_b32 v4, 5, v0")
    a("v_lshl_add_u32 v3, v4, 8, v3")
    a("v_and_b32 v4, 15, v0")
    a("v_lshl_add_u32 v3, v4, 4, v3")
    a("s_waitcnt lgkmcnt(0)")
    srd(a, 16, 58, WS_SIZE)
    a("s_lshl_b32 s36, s2, 2")
    a("s_add_u32 s36, s36, s22")
    a("s_cmp_lg_u32 s36, 3")
    a("s_cbranch_scc1 K1_NZ")
    a(f"s_mov_b32 s36, {FL2}")
    a("v_lshlrev_b32 v28, 7, v0")
    for i_ in range(2 * NREP):
        a("buffer_store_dwordx2 v[24:25], v28, s[16:19], s36 offen sc1")
        a("s_add_u32 s36, s36, 8192")
    srd(a, 8, 56, 256)
    a("v_mov_b32 v28, 1")
    a("s_waitcnt vmcnt(0)")
    a("buffer_store_dword v28, v24, s[8:11], 0 offen sc1")
    a.label("K1_NZ")
    TQ = {}
    if K1_CHIP:
        a("s_cmp_lt_u32 s22, 2")
        a("s_cbranch_scc1 K1_NC")
        srd(a, 8, 4, 2048 * 512 * 2)
        a("s_lshl_b32 s36, s2, 13")
        a("v_lshlrev_b32 v23, 7, v0")
        a("s_cmp_eq_u32 s22, 2")
        a("s_cbranch_scc1 K1_C2")
        srd(a, 8, 6, 512 * 1536 * 2)
        a("s_mul_i32 s36, s2, 6144")
        a("v_min_u32 v23, 47, v0")
        a("v_lshlrev_b32 v23, 7, v23")
        a.label("K1_C2")
        a(f"buffer_load_dword v30, v23, s[8:11], s36 offen {K1_CF}")
        a.label("K1_NC")
    if K1_TOUCH:
        srd(a, 8, 4, 2048 * 512 * 2)
        a("s_lshr_b32 s37, s2, 3")
        a("v_and_b32 v28, 3, v0")
        a("s_mov_b32 s39, 256")
        a("s_and_b32 s36, s2, 3")
        a("s_lshl_b32 s36, s36, 19")
        a("s_lshl_b32 s38, s37, 14")
        a("s_add_u32 s36, s36, s38")
        a("v_bfe_u32 v23, v0, 1, 4")
        a("v_lshlrev_b32 v23, 10, v23")
        a("v_and_b32 v29, 1, v0")
        a("v_lshl_add_u32 v23, v29, 7, v23")
        a("s_cmp_lg_u32 s22, 0")
        a("s_cbranch_scc1 K1_TD")
        srd(a, 8, 6, 512 * 1536 * 2)
        a(f"s_mov_b32 s39, {128 * 3072}")
        a("s_mul_i32 s36, s37, 12288")
        a("s_bfe_u32 s38, s2, 0x10002")
        a("s_lshl_b32 s38, s38, 9")
        a("s_add_u32 s36, s36, s38")
        a("v_lshrrev_b32 v23, 4, v0")
        a("v_mul_u32_u24 v23, 3072, v23")
        a("v_bfe_u32 v30, v0, 2, 2")
        a("v_min_u32 v30, 2, v30")
        a("v_lshl_add_u32 v23, v30, 10, v23")
        a("v_lshl_add_u32 v23, v28, 7, v23")
        a.label("K1_TD")
        def touch(n_):
            return ["s_cmp_ge_u32 s22, 2", f"s_cbranch_scc1 K1_TS{n_}",
                    "s_lshr_b32 s38, s40, 1", f"s_add_u32 s38, s38, {n_ + 1}", "s_and_b32 s38, s38, 3",
                    "s_mul_i32 s38, s38, s39", "s_add_u32 s38, s38, s36",
                    "buffer_load_dword v31, v23, s[8:11], s38 offen", f"K1_TS{n_}:"]
        for n_, when in enumerate(K1_TW):
            if when < 0:
                for x in touch(n_): a(x)
            else:
                TQ.setdefault(when, []).extend(touch(n_))
    ACC = 32
    def xf(ks): return 80 + (ks % 8) * 4
    def wf(ks, p): return 112 + (ks % 3) * 12 + p * 4
    def reads(ks):
        c, s = ks // 4, ks % 4
        slot = c % 5; st = slot // 2; off = (slot % 2) * SLOT
        out = [f"ds_read_b128 {vr(xf(ks), 4)}, v{8 + 4 * st + s} offset:{off}"]
        for p in range(3):
            for u in range(2):
                out.append(f"ds_read_b64_tr_b16 {vr(wf(ks, p) + 2 * u, 2)}, v{20 + st} offset:{off + 16384 + p * 4096 + s * 1024 + u * 256}")
        return out
    def mfmas(ks):
        X = vr(xf(ks), 4); out = []
        for p in range(3):
            D_ = vr(ACC + 16 * p, 16); W = vr(wf(ks, p), 4)
            A, B = (W, X) if p < 2 else (X, W)
            out.append(MF32(D_, A, B, "0" if ks == 0 else None))
        return out
    def dots(k0, k1_):
        for ks in range(k0, k1_):
            for i in range(4):
                a(f"v_dot2c_f32_bf16 v{24 + i % 2}, s30, v{xf(ks) + i}")
                a(f"v_dot2c_f32_bf16 v{26 + i % 2}, v{xf(ks) + i}, v{xf(ks) + i}")
    a("s_barrier")
    for r in reads(0) + reads(1): a(r)
    for x in TQ.get(0, []): a(x)
    for ks in range(32):
        c, s = ks // 4, ks % 4
        M = mfmas(ks); R = reads(ks + 2) if ks + 2 < 32 else []
        if s == 2:
            dots(max(ks - 3, 0), ks)
            a("s_waitcnt lgkmcnt(0)")
            dots(ks, ks + 1)
            if c == 7: dots(ks + 1, ks + 2)
            a(M[0])
            if c < 7:
                a("s_barrier")
                for x in TQ.get(c + 1, []): a(x)
        else:
            a(f"s_waitcnt lgkmcnt({7 if ks < 31 else 0})")
            a(M[0])
            if ks in (29, 31): a("s_barrier")
        E = []
        if ks >= 30:
            if ks == 30:
                E = ["v_add_f32 v24, v24, v25", "v_add_f32 v26, v26, v27", "v_mov_b32 v25, v24", "v_mov_b32 v27, v26", "s_nop 0",
                     "v_permlane32_swap_b32 v24, v25", "v_permlane32_swap_b32 v26, v27", "v_add_f32 v24, v24, v25", "v_add_f32 v26, v26, v27",
                     f"v_mul_f32 v24, {f32(1/512)}, v24", f"v_mul_f32 v26, {f32(1/512)}, v26", "v_fma_f32 v26, -v24, v24, v26",
                     "v_max_f32 v26, 0, v26", f"v_add_f32 v26, {f32(EPS)}, v26", "v_rsq_f32 v26, v26",
                     "v_mul_f32 v24, -0.5, v24", "ds_write_b32 v7, v26"]
                E = ["s_nop 1"] + E
            else:
                E = [f"ds_read_b64 {vr(CF + 4 * p, 2)}, v6 offset:{p * 256}" for p in range(3)]
                E += [f"ds_read_b128 {vr(164 + 4 * g, 4)}, v1 offset:{g * 32}" for g in range(4)]
                E += ["v_cvt_pk_bf16_f32 v25, v24, v24", "v_lshlrev_b32 v25, 16, v25",
                     "v_sub_f32 v27, v24, v25", "v_cvt_pk_bf16_f32 v148, v25, v27",
                     "v_mov_b32 v149, v148", f"v_mul_f32 v28, {f32(0.25 * LOG2E)}, v26", "v_mov_b32 v27, v26", "v_mov_b32 v29, v28"]
            R = E
            n3 = (len(R) + 2) // 3
        else:
            n3 = 3
        for r in R[:n3]: a(r)
        a(M[1])
        for r in R[n3:2 * n3]: a(r)
        a(M[2])
        for r in R[2 * n3:]: a(r)
    a("s_waitcnt lgkmcnt(4)")
    a(MF32(vr(ACC + 16, 16), vr(CF + 4, 4), vr(148, 4)))
    a(MF32(vr(ACC + 32, 16), vr(148, 4), vr(CF + 8, 4)))
    a(MF32(vr(ACC, 16), vr(CF, 4), vr(148, 4)))
    a("s_waitcnt lgkmcnt(0)")
    a("s_nop 8")
    for p in (1, 2, 0):
        b = ACC + 16 * p; o = 112 + 8 * p
        for i in range(0, 16, 2):
            sc = "v[28:29]" if p == 0 else "v[26:27]" if p == 1 else vr(164 + i, 2)
            if p == 1:
                a(f"v_mul_f32 v{b + i}, v26, v{b + i}")
                a(f"v_mul_f32 v{b + i + 1}, v26, v{b + i + 1}")
            else:
                a(f"v_pk_mul_f32 {vr(b + i, 2)}, {sc}, {vr(b + i, 2)}")
        for i in range(8):
            a(f"v_cvt_pk_bf16_f32 v{o+i}, v{b+2*i}, v{b+2*i+1}")
        if p < 2:
            a(f"buffer_store_dwordx4 {vr(o, 4)}, v2, s[16:19], s{29 if p == 0 else 32} offen sc1")
            a(f"buffer_store_dwordx4 {vr(o + 4, 4)}, v2, s[16:19], s{31 if p == 0 else 33} offen sc1")
        else:
            a(f"buffer_store_dwordx4 {vr(o, 4)}, v3, s[16:19], s34 offen sc1")
            a(f"buffer_store_dwordx4 {vr(o + 4, 4)}, v3, s[16:19], s34 offen offset:512 sc1")
    a.label("K1_JOIN")
    return a

def k234():
    a = k1(); n = NAME + "_kernel"
    Q = 4; NEGM = 16; S = [32, 48]; O = 64; P = 80; KR = 88; VR = 100; W = 128
    SCR = 131072
    K1C = 2 * math.sqrt(2 / math.pi) * LOG2E
    vm = []
    def V(ins, tag=None):
        a(ins); vm.append(tag)
    def vmwait(tag, extra=""):
        idx = max(i for i, t in enumerate(vm) if t == tag)
        a(f"s_waitcnt vmcnt({len(vm) - 1 - idx}){extra}")
    a("s_load_dwordx4 s[40:43], s[0:1], 32")
    a("s_load_dwordx2 s[44:45], s[0:1], 16")
    a("s_load_dwordx2 s[46:47], s[0:1], 0")
    a("s_load_dwordx2 s[48:49], s[0:1], 48")
    a("s_load_dwordx2 s[62:63], s[0:1], 56")
    a("s_lshl_b32 s31, s24, 8")
    a("s_lshl_b32 s30, s23, 2")
    a("s_add_u32 s31, s31, s30")
    a(f"s_add_u32 s31, s31, {FL1}")
    a("s_mov_b32 s22, s35")
    a("s_and_b32 s23, s2, 7")
    a("s_lshl_b32 s23, s23, 2")
    a("s_bfe_u32 s29, s2, 0x20003")
    a("s_add_u32 s23, s23, s29")
    a("s_lshr_b32 s24, s2, 5")
    a("s_lshl_b32 s25, s23, 16")
    a("v_lshlrev_b32 v2, 4, v0")
    a("s_lshl_b32 s26, s22, 10")
    a("s_add_u32 s27, s25, s26")
    a("s_lshl_b32 s28, s24, 13")
    a("s_add_u32 s28, s28, s27")
    a(f"s_add_u32 s27, s27, {KF}")
    a(f"s_add_u32 s30, s27, {VF - KF}")
    srd(a, 8, 58, WS_SIZE)
    a("v_mov_b32 v12, 0")
    a("v_mov_b32 v13, 1")
    def signal(lbl, local=False):
        a("s_cmp_eq_u32 s22, 7")
        a(f"s_cbranch_scc0 {lbl}")
        a("v_lshlrev_b32 v12, 14, v0")
        a(f"s_mov_b64 exec, {(1 << NREP) - 1}")
        if ATOM:
            a(f"s_and_b32 s31, s31, {hex(0xffffff84 if '4' in lbl[-2:] else 0xffffff80)}")
            a("buffer_atomic_add v13, v12, s[8:11], s31 offen sc1")
        else: a("buffer_store_dword v13, v12, s[8:11], s31 offen sc1")
        a("s_mov_b64 exec, -1")
        a.label(lbl)
    def poll(lbl, sreg, nfl, sh=2):
        if ATOM:
            a("s_lshr_b32 s33, s2, 5")
            a(f"s_and_b32 s33, s33, {NREP - 1}")
            a("s_lshl_b32 s33, s33, 14")
            a("v_mov_b32 v1, s33")
            a("s_mov_b32 s33, 0")
            a("s_mov_b64 exec, 1")
            two = PIF == 2 and lbl != "K2_P4A"
            if two:
                a("v_mov_b32 v14, 0")
                a(f"buffer_atomic_add v14, v1, s[8:11], s{sreg} offen sc0 sc1")
                a("s_sleep 5")
            a.label(lbl)
            for cur, nxt in (((14, 15), (15, 14)) if two else ((15, 15),)):
                if POLL_SLEEP: a(f"s_sleep {POLL_SLEEP}")
                a(f"v_mov_b32 v{nxt}, 0")
                a(f"buffer_atomic_add v{nxt}, v1, s[8:11], s{sreg} offen sc0 sc1")
                a("s_add_u32 s33, s33, 1")
                a(f"s_waitcnt vmcnt({1 if two else 0})")
                a(f"v_cmp_eq_u32 vcc, {nfl}, v{cur}")
                a("s_nop 0")
                a(f"s_cbranch_vccnz {lbl}_X")
            a("s_cmp_lt_u32 s33, 0x40000")
            a(f"s_cbranch_scc1 {lbl}")
            a.label(f"{lbl}_X")
            a("s_mov_b64 exec, -1")
            return
        a(f"v_and_b32 v1, {nfl - 1}, v0")
        a(f"v_lshlrev_b32 v1, {sh}, v1")
        a("s_mov_b32 s33, 0")
        if POLL_PRE: a(f"s_sleep {POLL_PRE}")
        a.label(lbl)
        if POLL_SLEEP: a(f"s_sleep {POLL_SLEEP}")
        a(f"buffer_load_dword v15, v1, s[8:11], s{sreg} offen sc1")
        a("s_add_u32 s33, s33, 1")
        a("s_waitcnt vmcnt(0)")
        a("v_cmp_eq_u32 vcc, 1, v15")
        a("s_cmp_gt_u32 s33, 0x40000")
        a(f"s_cbranch_scc1 {lbl}_X")
        a("s_cmp_eq_u64 vcc, -1")
        a(f"s_cbranch_scc0 {lbl}")
        a.label(f"{lbl}_X")
    st(a, 'k1')
    def poll2(lbl, sreg, nfl, sh=2):
        if not POLL2: return poll(lbl, sreg, nfl, sh)
        a(f"v_and_b32 v1, {nfl - 1}, v0")
        a(f"v_lshlrev_b32 v1, {sh}, v1")
        a("s_mov_b32 s33, 0")
        a(f"buffer_load_dword v14, v1, s[8:11], s{sreg} offen sc1")
        a(f"s_sleep {POLL2}")
        a.label(lbl)
        for cur, nxt in ((14, 15), (15, 14)):
            a(f"buffer_load_dword v{nxt}, v1, s[8:11], s{sreg} offen sc1")
            a("s_waitcnt vmcnt(1)")
            a(f"v_cmp_eq_u32 vcc, 1, v{cur}")
            a("s_add_u32 s33, s33, 1")
            a("s_nop 0")
            a("s_cmp_eq_u64 vcc, -1")
            a(f"s_cbranch_scc1 {lbl}_X")
        a("s_cmp_lt_u32 s33, 0x80000")
        a(f"s_cbranch_scc1 {lbl}")
        a.label(f"{lbl}_X")
    a("s_waitcnt vmcnt(0) lgkmcnt(0)")
    a("s_barrier")
    st(a, 'k1b')
    signal("K2_S1")
    def kvdma(c, isv):
        a(f"s_add_u32 m0, s26, {c * 8192 + isv * 65536}")
        a(f"s_add_u32 s29, s27, {c * 8192 + isv * (VF - KF)}")
        V("buffer_load_dwordx4 v2, s[8:11], s29 offen lds", f"c{c}")
    a("s_and_b32 s36, s2, 3")
    a("s_lshl_b32 s36, s36, 2")
    a("s_bfe_u32 s29, s2, 0x20003")
    a("s_add_u32 s36, s36, s29")
    a("s_bfe_u32 s37, s2, 0x10002")
    a("s_lshl_b32 s37, s37, 3")
    a("s_add_u32 s37, s37, s24")
    a("s_min_u32 s38, s22, 6")
    a("s_mul_i32 s39, s37, 7")
    a("s_add_u32 s39, s39, s38")
    a("s_lshl_b32 s54, s39, 5")
    srd(a, 12, 40, 512 * 1792 * 2)
    srd(a, 16, 42, 512 * 1792 * 2)
    a("s_lshl_b32 s55, s22, 12")
    a(f"s_add_u32 s55, s55, {SCR}")
    a("v_lshrrev_b32 v8, 1, v0")
    a("v_mul_u32_u24 v8, 3584, v8")
    a("v_and_b32 v1, 1, v0")
    a("v_lshl_add_u32 v8, v1, 4, v8")
    a("v_lshrrev_b32 v11, 5, v0")
    a("v_bfe_u32 v1, v0, 2, 2")
    a("v_lshl_add_u32 v10, v11, 2, v1")
    a("v_lshlrev_b32 v9, 5, v10")
    a("v_and_b32 v1, 3, v0")
    a("v_lshl_add_u32 v9, v1, 3, v9")
    a("v_bfe_u32 v1, v0, 4, 1")
    a("v_lshl_add_u32 v9, v1, 10, v9")
    a("v_add_u32 v9, s55, v9")
    a("v_and_b32 v12, 15, v0")
    a("v_lshl_add_u32 v12, v11, 4, v12")
    a("v_lshlrev_b32 v12, 4, v12")
    a("v_add_u32 v3, 65536, v12")
    a("s_mov_b32 s34, 0x0000ffff")
    a("s_mov_b32 s35, 0x0000ffff")
    a(f"s_mov_b32 s50, {f32(2.0**60)}")
    for i in range(24):
        a(f"v_mov_b32 v{VR + i}, 0x3f803f80")
    for i in range(16):
        a(f"v_mov_b32 v{O + i}, 0")
    for i in range(4, 8):
        a(f"v_mov_b32 v{P + i}, 0")
    def kread(t): return f"ds_read_b128 {vr(KR + 4 * (t % 3), 4)}, v2 offset:{t * 1024}"
    def vread(t):
        return ["s_mov_b64 exec, s[34:35]"] + \
               [f"ds_read_b128 {vr(VR + 8 * (t % 3) + 4 * j, 4)}, v3 offset:{t * 1024 + j * 512}" for j in range(2)] + \
               ["s_mov_b64 exec, -1"]
    a("s_cmp_eq_u32 s22, 7")
    a("s_cbranch_scc0 K2_B1")
    a("s_lshr_b32 s29, s23, 1")
    a("s_lshl_b32 s29, s29, 8")
    a(f"s_add_u32 s29, s29, {FL1}")
    poll2("K2_P1", 29, 16)
    a.label("K2_B1")
    a("s_mov_b32 m0, s26")
    a("s_barrier")
    st(a, 't1')
    V("buffer_load_dwordx4 v2, s[8:11], s27 offen lds", "c0")
    V(f"buffer_load_dwordx4 {vr(Q, 4)}, v2, s[8:11], s28 offen", "c0")
    a("s_add_u32 m0, s26, 65536")
    a("s_nop 0")
    V("buffer_load_dwordx4 v2, s[8:11], s30 offen lds", "c0")
    kvdma(1, 0); kvdma(1, 1)
    a("v_add_u32 v1, s26, v2")
    a("s_waitcnt vmcnt(3)")
    a(f"ds_read_b128 {vr(KR, 4)}, v1")
    a("s_waitcnt lgkmcnt(0)")
    s0 = S[0]
    a(MF32(vr(s0, 16), vr(KR, 4), vr(Q, 4), "0"))
    vmwait("c0")
    a("s_barrier")
    st(a, 'a0')
    a(kread(0)); a(kread(1))
    for x in vread(0): a(x)
    a(kread(2))
    for x in vread(1): a(x)
    for i in range(5):
        a(f"v_max3_f32 v{NEGM + i}, v{s0+3*i}, v{s0+3*i+1}, v{s0+3*i+2}")
    a(f"v_max3_f32 v14, v{NEGM}, v{NEGM+1}, v{s0+15}")
    a(f"v_max3_f32 v15, v{NEGM+2}, v{NEGM+3}, v{NEGM+4}")
    a("v_max_f32 v14, v14, v15")
    def set_negm():
        a("v_mov_b32 v15, v14")
        a("s_nop 1")
        a("v_permlane32_swap_b32 v14, v15")
        a("v_max_f32 v14, v14, v15")
        for i in range(16):
            a(f"v_sub_f32 v{NEGM + i}, 0, v14")
        a("s_nop 1")
    set_negm()
    a("s_waitcnt lgkmcnt(6)")
    a(MF32(vr(S[0], 16), vr(KR, 4), vr(Q, 4), vr(NEGM, 16)))
    a("s_nop 8")
    T0 = K2_T0
    cnt = [0]
    DMT = [T0 + int(K2_CAD * u) for u in range(18)]
    RDT = [min(DMT[u + 2] - 1, 62 - (15 - u)) for u in range(16)]; DMT = DMT[:16]
    assert len(set(RDT)) == 16 and max(RDT) <= 62, RDT
    if K2_W7S:
        a("s_cmp_eq_u32 s22, 7")
        a("s_cselect_b32 s14, 0, s14")
        a("s_cselect_b32 s18, 0, s18")
    def b(ins):
        if K2_Y:
            if cnt[0] == 0: a("s_setprio 0")
            if cnt[0] == K2_Y: a("s_setprio 1")
            if cnt[0] == K2_Y2: a("s_setprio 2")
        cnt[0] += 1
        a(ins)
    for t in range(64):
        if t % K2_PER == 0: cnt[0] = 0
        Sc = S[t % 2]; Sn = S[(t + 1) % 2]
        E = lambda i: b(f"v_exp_f32 v{Sc+i}, v{Sc+i}")
        C = lambda i: b(f"v_cvt_pk_bf16_f32 v{P+i}, v{Sc+2*i}, v{Sc+2*i+1}")
        if t == 0: st(a, 'a1')
        if t == 16: st(a, 'a16')
        if t == 5: vmwait("c1"); a("s_barrier")
        if t == 13: vmwait("c5"); a("s_barrier")
        if t == 24: vmwait("c7"); a("s_barrier")
        nrd = lambda u: (1 if u + 3 < 64 else 0) + (2 if u + 2 < 64 else 0)
        b(f"s_waitcnt lgkmcnt({nrd(t - 1) if t > 0 else 3})")
        if t < 63:
            b(MF32(vr(Sn, 16), vr(KR + 4 * ((t + 1) % 3), 4), vr(Q, 4), vr(NEGM, 16)))
        for i in range(5): E(i)
        b(MF32(vr(O, 16), vr(VR + 8 * ((t - 1) % 3) + 4, 4), vr(P + 4, 4)))
        u = RDT.index(t) if t in RDT else -1
        if u >= 0:
            vmwait(f"w{u}")
            for s in range(2):
                for e in range(2):
                    a(f"ds_read_b64_tr_b16 {vr(W + 8 * u + 4 * s + 2 * e, 2)}, v9 offset:{(u % 2) * 2048 + s * 512 + e * 256}")
        if t + 3 < 64: b(kread(t + 3))
        if t + 2 < 64:
            for x in vread(t + 2): b(x)
        for i in range(5, 8): E(i)
        for i in range(4): C(i)
        E(8); E(9)
        b(MF32(vr(O, 16), vr(VR + 8 * (t % 3), 4), vr(P, 4)))
        if t < 12: kvdma(2 + t // 2, t % 2)
        u = DMT.index(t) if t in DMT else -1
        if u >= 0:
            a(f"s_add_u32 m0, s55, {(u % 2) * 2048}")
            a(f"s_add_u32 s29, s54, {u * 32 * 3584}")
            V(f"buffer_load_dwordx4 v8, s[12:15], s29 offen {NT_G} lds", f"w{u}")
            a(f"s_add_u32 m0, s55, {(u % 2) * 2048 + 1024}")
            a("s_nop 0")
            V(f"buffer_load_dwordx4 v8, s[16:19], s29 offen {NT_G} lds", f"w{u}")
        if t == 40 and K2_TCH:
            srd(a, 96, 48, 1792 * 512 * 2)
            a("s_lshl_b32 s29, s2, 3")
            a("s_add_u32 s29, s29, s22")
            a("s_mul_i32 s29, s29, 896")
            a("v_min_u32 v12, 6, v0")
            a("v_lshlrev_b32 v12, 7, v12")
            V("buffer_load_dword v124, v12, s[96:99], s29 offen", "tch")
        if t == 59 and K2_TCH:
            a("s_lshr_b32 s29, s2, 3")
            a("s_lshl_b32 s29, s29, 14")
            a("s_lshl_b32 s31, s22, 11")
            a("s_add_u32 s29, s29, s31")
            srd(a, 96, 44, 512 * 512 * 2)
            a("v_and_b32 v12, 15, v0")
            a("v_lshlrev_b32 v12, 7, v12")
            V("buffer_load_dword v124, v12, s[96:99], s29 offen", "tch")

        for i in range(10, 16): E(i)
        for i in range(4, 8): C(i)
    a("s_setprio 0")
    a("s_lshl_b32 s29, s24, 3")
    a("s_add_u32 s29, s29, s22")
    a(MF32(vr(O, 16), vr(VR + 8 * (63 % 3) + 4, 4), vr(P + 4, 4)))
    a("s_lshl_b32 s31, s24, 8")
    a("s_lshl_b32 s30, s23, 2")
    a("s_add_u32 s31, s31, s30")
    a(f"s_add_u32 s31, s31, {FL2}")
    a("s_lshl_b32 s29, s29, 15")
    a("s_lshl_b32 s30, s23, 10")
    a("s_add_u32 s29, s29, s30")
    a(f"s_add_u32 s29, s29, {OF}")
    a("v_mov_b32 v12, 0")
    a("v_mov_b32 v13, 1")
    a("s_waitcnt lgkmcnt(0)")
    a("s_nop 0")
    a(f"v_cmp_gt_f32 vcc, s50, v{O + 8}")
    a("s_nop 1")
    a("s_cmp_eq_u64 vcc, -1")
    a("s_cbranch_scc0 K2_FALLBACK")
    a.label("K2_FIN")
    a(f"v_rcp_f32 v14, v{O + 8}")
    a("s_nop 0")
    for i in range(8):
        a(f"v_mul_f32 v{O+i}, v14, v{O+i}")
    for i in range(4):
        a(f"v_cvt_pk_bf16_f32 v{P+i}, v{O+2*i}, v{O+2*i+1}")
    a(f"buffer_store_dwordx4 {vr(P, 4)}, v2, s[8:11], s29 offen sc1")
    st(a, 'att')
    srd(a, 12, 44, 512 * 512 * 2)
    srd(a, 16, 46, 2048 * 512 * 2)
    a("s_and_b32 s25, s22, 1")
    a("s_bfe_u32 s26, s22, 0x10001")
    a("s_lshr_b32 s27, s22, 2")
    a("s_lshl_b32 s28, s24, 1")
    a("s_add_u32 s28, s28, s25")
    a("s_lshl_b32 s30, s23, 1")
    a("s_add_u32 s30, s30, s26")
    a("v_lshrrev_b32 v8, 2, v0")
    a("v_lshlrev_b32 v8, 10, v8")
    a("v_and_b32 v1, 3, v0")
    a("v_lshl_add_u32 v8, v1, 4, v8")
    a("v_lshlrev_b32 v9, 6, v10")
    a("v_lshl_add_u32 v9, v1, 3, v9")
    a("v_bfe_u32 v1, v0, 4, 1")
    a("v_lshl_add_u32 v9, v1, 5, v9")
    a("s_lshl_b32 s32, s25, 15")
    a("s_lshl_b32 s33, s27, 14")
    a("s_add_u32 s32, s32, s33")
    a("v_add_u32 v9, s32, v9")
    a("v_and_b32 v3, 31, v0")
    a("v_lshlrev_b32 v3, 10, v3")
    a("v_lshl_add_u32 v3, v11, 4, v3")
    a("s_lshl_b32 s51, s30, 15")
    a("s_lshl_b32 s33, s28, 6")
    a("s_add_u32 s51, s51, s33")
    RES = 112
    a("s_waitcnt vmcnt(0)")
    a("s_barrier")
    def dstore(ins):
        return [ins + " sc1"]
    signal("K2_S2")
    st(a, 'bA')
    A3 = 16; WO = 32; OB = 96
    def colsum():
        a("s_mov_b32 s56, 0x3f803f80")
        for i in range(4): a(f"v_mov_b32 v{124 + i}, 0")
        for i in range(128):
            a(f"v_dot2c_f32_bf16 v{124 + i % 4}, s56, v{W + i}")
        a("s_nop 2")
        a("v_add_f32 v124, v124, v125")
        a("v_add_f32 v126, v126, v127")
        a("v_add_f32 v126, v124, v126")
        a("v_cvt_pk_bf16_f32 v124, v126, v126")
        a("v_lshlrev_b32 v125, 16, v124")
        a("v_sub_f32 v125, v126, v125")
        a("v_cvt_pk_bf16_f32 v125, v125, v125")
        a("v_mov_b32 v126, 0")
        a("v_mov_b32 v127, 0")
    a("s_cmp_eq_u32 s22, 7")
    a("s_cbranch_scc1 K2_POLL2")
    a("s_cmp_ge_u32 s22, 4")
    a("s_cbranch_scc1 K2_CS")
    a("s_lshl_b32 s33, s26, 14")
    a("s_add_u32 s52, s32, s33")
    a("s_lshl_b32 s53, s26, 18")
    a("s_lshl_b32 s33, s28, 6")
    a("s_add_u32 s53, s53, s33")
    for i in range(16):
        a(f"s_add_u32 m0, s52, {i * 1024}")
        a(f"s_add_u32 s29, s53, {i * 16384}")
        a("buffer_load_dwordx4 v8, s[12:15], s29 offen lds")
    for j in range(2):
        a(f"buffer_load_dwordx4 {vr(RES + 4 * j, 4)}, v3, s[16:19], s51 offen offset:{j * 32}")
    a("s_waitcnt vmcnt(2)")
    a("s_branch K2_B2")
    a.label("K2_CS")
    colsum()
    if O_TCH >= 0:
        a("s_cmp_eq_u32 s22, 6")
        a("s_cbranch_scc0 K2_B2")
        if O_TCH: a(f"s_sleep {O_TCH}")
        a("s_lshl_b32 s29, s23, 16")
        a("s_lshl_b32 s33, s24, 13")
        a("s_add_u32 s29, s29, s33")
        a(f"s_add_u32 s29, s29, {OF}")
        a("v_lshlrev_b32 v1, 7, v0")
        a("buffer_load_dword v14, v1, s[8:11], s29 offen sc1")
    a("s_branch K2_B2")
    a.label("K2_POLL2")
    a("s_lshr_b32 s29, s23, 2")
    a("s_lshl_b32 s29, s29, 8")
    a(f"s_add_u32 s29, s29, {FL2}")
    poll2("K2_P2", 29, 32)
    a.label("K2_B2")
    a("s_lshl_b32 s29, s25, 15")
    a("s_lshr_b32 s33, s22, 1")
    a("s_lshl_b32 s33, s33, 12")
    a("s_add_u32 s29, s29, s33")
    a("s_lshl_b32 s33, s23, 16")
    a("s_add_u32 s33, s33, s29")
    a(f"s_add_u32 s33, s33, {OF}")
    a("s_add_u32 s52, s33, 16384")
    a(f"s_add_u32 m0, s29, {65536 + 16384}")
    a("s_barrier")
    st(a, 't2')
    for i in range(4):
        a(f"buffer_load_dwordx4 v2, s[8:11], s52 offen offset:{i * 1024} {LD_SC} lds")
    a("s_add_u32 m0, s29, 65536")
    a("s_nop 0")
    for i in range(4):
        a(f"buffer_load_dwordx4 v2, s[8:11], s33 offen offset:{i * 1024} {LD_SC} lds")
    for s in range(16):
        for e in range(2):
            a(f"ds_read_b64_tr_b16 {vr(WO + 4 * s + 2 * e, 2)}, v9 offset:{s * 1024 + e * 512}")
    a("s_lshl_b32 s29, s26, 15")
    a("s_lshl_b32 s33, s27, 14")
    a("s_add_u32 s29, s29, s33")
    a("s_add_u32 s29, s29, 65536")
    a("v_add_u32 v8, s29, v2")
    a("s_and_b32 s29, s22, 3")
    a("s_lshl_b32 s29, s29, 12")
    a(f"s_add_u32 s29, s29, {SCR}")
    a("v_add_u32 v9, s29, v2")
    def omm(first, hooks):
        rd = lambda s: f"ds_read_b128 {vr(OB + 4 * (s % 4), 4)}, v8 offset:{s * 1024}"
        for s in range(3): a(rd(s))
        for s in range(16):
            left = 15 - s
            if left >= 3: a(rd(s + 3))
            a(f"s_waitcnt lgkmcnt({min(left, 3) + hooks.get(('x', s), 0)})")
            a(MF32(vr(A3, 16), vr(WO + 4 * s, 4), vr(OB + 4 * (s % 4), 4), first if s == 0 else None))
            for x in hooks.get(s, []): a(x)
    a("s_cmp_lt_u32 s22, 4")
    a("s_cbranch_scc1 K2_O_LO")
    a("s_waitcnt vmcnt(4) lgkmcnt(0)")
    a("s_barrier")
    omm("0", {O_B1: ["s_waitcnt vmcnt(0)", "s_barrier"]})
    st(a, 'om')
    a("s_nop 11")
    for q in range(4):
        a(f"ds_write_b128 v9, {vr(A3 + 4 * q, 4)} offset:{q * 1024}")
    a("s_waitcnt lgkmcnt(0)")
    a("s_barrier")
    a("s_lshr_b32 s31, s23, 1")
    a("s_lshl_b32 s31, s31, 8")
    a("s_and_b32 s33, s23, 1")
    a("s_lshl_b32 s33, s33, 3")
    a("s_add_u32 s33, s33, s24")
    a("s_lshl_b32 s33, s33, 2")
    a("s_add_u32 s31, s31, s33")
    a(f"s_add_u32 s31, s31, {FL3}")
    a("s_lshl_b32 s29, s36, 8")
    a(f"s_add_u32 s29, s29, {FL3}")
    a("s_barrier")
    signal("K2_S3", True)
    if H_TCH >= 0:
        a("s_cmp_lt_u32 s22, 6")
        a("s_cbranch_scc0 K2_NHT")
        if H_TCH: a(f"s_sleep {H_TCH}")
        a("s_lshl_b32 s52, s36, 17")
        a("s_lshl_b32 s33, s24, 14")
        a("s_add_u32 s52, s52, s33")
        a("s_and_b32 s33, s22, 1")
        a("s_lshl_b32 s33, s33, 13")
        a("s_add_u32 s52, s52, s33")
        a(f"s_add_u32 s52, s52, {HF}")
        a("v_lshlrev_b32 v1, 7, v0")
        a("buffer_load_dword v14, v1, s[8:11], s52 offen sc1")
        a.label("K2_NHT")
    a("s_cmp_eq_u32 s22, 7")
    a("s_cbranch_scc0 K2_B3")
    poll2("K2_P3", 29, 16)
    a("s_branch K2_B3")
    a.label("K2_O_LO")
    a("s_waitcnt vmcnt(8)")
    for j in range(2):
        a(f"v_permlane32_swap_b32 v{RES + 4 * j}, v{RES + 4 * j + 2}")
        a(f"v_permlane32_swap_b32 v{RES + 4 * j + 1}, v{RES + 4 * j + 3}")
    a("s_mov_b32 s29, 0xffff0000")
    for i in range(8):
        a(f"v_lshlrev_b32 v{A3 + 2 * i}, 16, v{RES + i}")
        a(f"v_and_b32 v{A3 + 1 + 2 * i}, s29, v{RES + i}")
    a("s_lshl_b32 s52, s30, 15")
    a("s_lshl_b32 s33, s28, 11")
    a("s_add_u32 s52, s52, s33")
    a(f"s_add_u32 s52, s52, {HF}")
    a("s_lshl_b32 s53, s30, 12")
    a("s_lshl_b32 s33, s28, 8")
    a("s_add_u32 s53, s53, s33")
    a(f"s_add_u32 s53, s53, {ST}")
    a("v_lshlrev_b32 v3, 3, v0")
    a("s_mov_b32 s29, 0x3f803f80")
    a("v_mov_b32 v14, 0")
    a("v_mov_b32 v15, 0")
    a("s_waitcnt vmcnt(4) lgkmcnt(0)")
    a("s_barrier")
    a("s_waitcnt vmcnt(0)")
    a("s_barrier")
    if O_PRIO: a("s_setprio 2")
    omm(None, {13: ["s_barrier"] + [f"ds_read_b128 {vr(32 + 4 * q, 4)}, v9 offset:{q * 1024}" for q in range(4)],
               ('x', 14): 4, ('x', 15): 4})
    st(a, 'om')
    a("s_nop 10")
    o = 112
    for q in range(4):
        a(f"s_waitcnt lgkmcnt({3 - q})")
        for i in range(4 * q, 4 * q + 4):
            a(f"v_add_f32 v{A3 + i}, v{A3 + i}, v{32 + i}")
        for i in range(2 * q, 2 * q + 2):
            a(f"v_cvt_pk_bf16_f32 v{o + i}, v{A3 + 2 * i}, v{A3 + 2 * i + 1}")
        if q % 2:
            j = q // 2
            for x in dstore(f"buffer_store_dwordx4 {vr(o + 4 * j, 4)}, v2, s[8:11], s52 offen offset:{j * 1024}"): a(x)
    for i in range(8):
        a(f"v_dot2c_f32_bf16 v14, s29, v{o + i}")
        a(f"v_dot2c_f32_bf16 v15, v{o + i}, v{o + i}")
    a("s_nop 2")
    a("v_mov_b32 v16, v14")
    a("v_mov_b32 v17, v15")
    a("s_nop 0")
    a("v_permlane32_swap_b32 v14, v16")
    a("v_permlane32_swap_b32 v15, v17")
    a("v_add_f32 v14, v14, v16")
    a("v_add_f32 v15, v15, v17")
    a("s_mov_b64 exec, 0xffffffff")
    for x in dstore("buffer_store_dwordx2 v[14:15], v3, s[8:11], s53 offen"): a(x)
    a("s_mov_b64 exec, -1")
    a("s_setprio 0")
    a("s_waitcnt vmcnt(0)")
    a("s_barrier")
    colsum()
    a.label("K2_B3")
    st(a, 'hw')
    a("v_add_u32 v3, 65536, v2")
    a("v_and_b32 v8, 31, v0")
    a("v_lshlrev_b32 v8, 4, v8")
    a(f"v_add_u32 v8, {SCR}, v8")
    a(f"s_mul_i32 s32, s36, {4 * 112 * 1024}")
    a("s_lshl_b32 s33, s39, 10")
    a("s_add_u32 s32, s32, s33")
    a(f"s_add_u32 s32, s32, {GF}")
    a("s_and_b32 s25, s22, 3")
    a(f"s_and_b32 s57, s37, {G_PERM}")
    a("s_lshl_b32 s57, s57, 1")
    a("s_xor_b32 s33, s25, s57")
    a("s_lshl_b32 s30, s36, 2")
    a("s_add_u32 s30, s30, s33")
    a(f"s_mul_i32 s33, s57, {112 * 1024}")
    a(f"s_sub_u32 s56, {2 * 112 * 1024}, s33")
    a("s_add_u32 s56, s56, s32")
    a("s_add_u32 s32, s32, s33")
    CNT = SCR + 2048; SPARE = SCR + 4096; WD = 128; KS = 14
    a(f"v_mov_b32 v4, {CNT}")
    a("v_mov_b32 v5, 1")
    def hread(dst, tt, s):
        return f"ds_read_b128 {vr(dst, 4)}, v{2 + tt // 2} offset:{(tt % 2) * 32768 + s * 1024}"
    def epi(g, z, st, tt):
        u = g + 8; o = []
        ve, a0, a1 = f"v{st+1}", f"v{st+2}", f"v{st+3}"
        o += [f"v_mul_f32 v{z+i}, v{g+i}, v{g+i}" for i in range(8)]
        o += [f"v_fma_f32 v{z+i}, v{z+i}, {a1}, {a0}" for i in range(8)]
        o += [f"v_mul_f32 v{z+i}, v{z+i}, v{g+i}" for i in range(8)]
        for i in range(8):
            o += [f"v_exp_f32 v{z+i}, v{z+i}", f"v_mul_f32 v{g+i}, v{g+i}, v{u+i}"]
        o += [f"v_fma_f32 v{z+i}, v{z+i}, {ve}, {ve}" for i in range(8)]
        o += [f"v_rcp_f32 v{z+i}, v{z+i}" for i in range(8)]
        o += [f"s_add_u32 s29, s{32 if tt < 2 else 56}, {(tt % 2) * 112 * 1024}"]
        o += [f"v_mul_f32 v{g+i}, v{g+i}, v{z+i}" for i in range(8)]
        o += [f"v_cvt_pk_bf16_f32 v{u+i}, v{g+2*i}, v{g+2*i+1}" for i in range(4)]
        o += dstore(f"buffer_store_dwordx4 {vr(u, 4)}, v2, s[8:11], s29 offen")
        return o
    ACC = 16; HB = 32; ZB = 80; SB = 88; TB = 92; NR = 12; STR = [96, 100, 104, 108]
    a(f"v_mov_b32 v{TB + 2}, 0")
    a(f"v_mov_b32 v{TB + 3}, 0")
    def cwait(tag, off, val=7, reg=4):
        a("s_mov_b32 s33, 0")
        a.label(f"K2_WC{tag}")
        a(f"ds_read_b32 v6, v{reg} offset:{off}")
        a("s_add_u32 s33, s33, 1")
        a("s_waitcnt lgkmcnt(0)")
        a(f"v_cmp_eq_u32 vcc, {val}, v6")
        a("s_cmp_gt_u32 s33, 0x100000")
        a(f"s_cbranch_scc1 K2_WX{tag}")
        a(f"s_cbranch_vccnz K2_WX{tag}")
        a("s_sleep 2")
        a(f"s_branch K2_WC{tag}")
        a.label(f"K2_WX{tag}")
    ntile = [0]
    def tile(tt, hooks, pre=None, last=False, late=False):
        a("s_setprio 1")
        rd = lambda ks: hread(HB + 4 * (ks % NR), tt, ks)
        if pre is None:
            for ks in range(NR - 1): a(rd(ks))
        for ks in range(32):
            if ks + NR - 1 < 32: a(rd(ks + NR - 1))
            if ks % 4 == 0:
                a(f"s_waitcnt lgkmcnt({min(ks + NR - 1, 31) - (ks + 3)})")
            a(MF32(vr(ACC, 16), vr(W + 4 * ks, 4), vr(HB + 4 * (ks % NR), 4), "0" if ks == 0 else None))
            if ks == G_P2: a("s_setprio 2")
            if ks == G_EA and tt == 2:
                a("s_waitcnt vmcnt(0)")
                a("s_mov_b64 exec, 1")
                a("ds_add_u32 v4, v5 offset:16")
                a("s_mov_b64 exec, -1")
            if ks == 28 and tt < 3:
                a("s_mov_b64 exec, 1")
                a(f"ds_add_u32 v4, v5 offset:{tt * 4}")
                a("s_mov_b64 exec, -1")
            if not late:
                if ks == 22: a(f"ds_read_b128 {vr(SB, 4)}, v8 offset:{tt * 512}")
                if ks == 29:
                    a(f"v_mov_b32 v{TB}, v{SB}")
                    a(f"v_mov_b32 v{TB + 1}, v{SB}")
            for x in hooks.get(ks, []): a(x)
        if late:
            a(f"ds_read_b128 {vr(SB, 4)}, v8 offset:{tt * 512}")
            a("s_waitcnt lgkmcnt(0)")
            a(f"v_mov_b32 v{TB}, v{SB}")
            a(f"v_mov_b32 v{TB + 1}, v{SB}")
            a("s_nop 1")
        a(MF32(vr(ACC, 16), vr(124, 4), vr(TB, 4)))
        a("s_setprio 0")
        for x in hooks.get("post", []): a(x)
        if tt == 2:
            ntile[0] += 1
            cwait(f"T{ntile[0]}", 24, 1)
        if not last:
            for ks in range(NR - 1): a(hread(HB + 4 * ks, tt + 1, ks))
        else:
            a("s_nop 10")
        for x in epi(ACC, ZB, SB, tt): a(x)
    a("s_lshl_b32 s26, s36, 17")
    a(f"s_add_u32 s26, s26, {HF}")
    a("s_lshl_b32 s33, s57, 15")
    a("s_sub_u32 s27, 65536, s33")
    a("s_add_u32 s27, s27, s26")
    a("s_add_u32 s26, s26, s33")
    a("s_lshl_b32 s28, s22, 12")
    a("s_add_u32 s29, s26, s28")
    a("s_mov_b32 m0, s28")
    a("s_lshl_b32 s52, s30, 12")
    a(f"s_add_u32 s52, s52, {ST}")
    a("s_lshl_b32 s53, s25, 9")
    a("v_add_u32 v9, s53, v8")
    a("v_and_b32 v1, 31, v0")
    a("v_lshlrev_b32 v1, 3, v1")
    a("v_lshl_add_u32 v1, v11, 11, v1")
    a("s_barrier")
    st(a, 't3')
    for i in range(4):
        a(f"buffer_load_dwordx4 v2, s[8:11], s29 offen offset:{i * 1024} {LD_SC} lds")
    a("s_cmp_lt_u32 s22, 4")
    a("s_cbranch_scc1 K2_GA")
    a("s_lshl_b32 s28, s25, 13")
    def hdma(tt, groups, base):
        for g in groups:
            a(f"s_add_u32 m0, {base}, {tt * 32768 + g * 4096}")
            a(f"s_add_u32 s29, s{26 if tt < 2 else 27}, {(tt % 2) * 32768 + g * 4096}")
            if base != "0": a(f"s_add_u32 s29, s29, {base}")
            for i in range(4):
                a(f"buffer_load_dwordx4 v2, s[8:11], s29 offen offset:{i * 1024} {LD_SC} lds")
    for q in range(8):
        a(f"buffer_load_dwordx2 {vr(STR[q // 2] + 2 * (q % 2), 2)}, v1, s[8:11], s52 offen offset:{q * 256} sc1")
    hdma(1, range(1), "s28")
    a("v_mov_b32 v6, 0")
    a("v_mov_b32 v7, 0")
    for q in range(4):
        a(f"ds_write_b64 v4, v[6:7] offset:{q * 8}")
    a("s_waitcnt vmcnt(12) lgkmcnt(0)")
    a("s_barrier")
    st(a, 'g1')
    hdma(1, range(1, 2), "s28")
    r0 = STR[0]
    SQ = []
    for q in range(1, 4):
        SQ += [f"v_add_f32 v{r0 + i}, v{r0 + i}, v{STR[q] + i}" for i in range(4)]
    SQ += [f"v_add_f32 v12, v{r0}, v{r0 + 2}", f"v_add_f32 v13, v{r0 + 1}, v{r0 + 3}",
           "v_mov_b32 v14, v12", "v_mov_b32 v15, v13", "s_nop 0",
           "v_permlane32_swap_b32 v12, v14", "v_permlane32_swap_b32 v13, v15",
           "v_add_f32 v12, v12, v14", "v_add_f32 v13, v13, v15",
           f"v_mul_f32 v12, {f32(-1/512)}, v12", f"v_mul_f32 v13, {f32(1/512)}, v13",
           "v_fma_f32 v13, -v12, v12, v13", "v_max_f32 v13, 0, v13", f"v_add_f32 v{r0 + 1}, {f32(EPS)}, v13",
           f"v_rsq_f32 v14, v{r0 + 1}", "v_cvt_pk_bf16_f32 v15, v12, v12", "v_lshlrev_b32 v15, 16, v15",
           "v_sub_f32 v12, v12, v15", f"v_cvt_pk_bf16_f32 v{r0}, v15, v12",
           f"v_mul_f32 v{r0 + 2}, {f32(-K1C)}, v14", "v_mul_f32 v14, v14, v14", f"v_mul_f32 v14, v14, v{r0 + 2}",
           f"v_mul_f32 v{r0 + 3}, {f32(0.044715)}, v14"]
    a("s_waitcnt vmcnt(8)")
    for x in SQ: a(x)
    a(f"ds_write_b128 v9, {vr(r0, 4)}")
    hdma(2, range(2), "s28")
    a("s_waitcnt lgkmcnt(0)")
    a("s_barrier")
    st(a, 'g2')
    a("s_cmp_eq_u32 s22, 7")
    a("s_cbranch_scc1 K2_W7")
    tile(0, {GB3: ["s_waitcnt vmcnt(0)", "s_barrier"]})
    tile(1, {}, pre=1); tile(2, {}, pre=1)
    tile(3, {}, pre=1, last=True)
    a("s_branch K2_DOWN")
    a.label("K2_W7")
    hdma(3, range(8), "0")
    a("s_waitcnt vmcnt(32)")
    a("s_barrier")
    srd(a, 12, 48, 1792 * 512 * 2)
    a("v_lshrrev_b32 v8, 2, v0")
    a("v_lshlrev_b32 v8, 10, v8")
    a("v_and_b32 v1, 3, v0")
    a("v_lshl_add_u32 v8, v1, 4, v8")
    a("v_lshlrev_b32 v9, 6, v10")
    a("v_lshl_add_u32 v9, v1, 3, v9")
    a("v_bfe_u32 v1, v0, 4, 1")
    a("v_lshl_add_u32 v9, v1, 5, v9")
    a(f"v_add_u32 v9, {SPARE}, v9")
    a("s_lshl_b32 s26, s24, 7")
    ko = lambda s_: s_ + (7 if s_ >= 7 else 0)
    a("s_and_b32 s52, s23, 1")
    a(f"s_mul_i32 s27, s52, {7 * 16384}")
    a("s_add_u32 s27, s27, s26")
    for j in range(28):
        a(f"s_mov_b32 m0, {SPARE + j * 1024}")
        a(f"s_add_u32 s29, s27, {(84 + ko(j // 2)) * 16384 + (1 ^ (j % 2)) * 64}")
        a("buffer_load_dwordx4 v8, s[12:15], s29 offen lds")
    a("s_waitcnt vmcnt(28)")
    a("ds_write_b32 v4, v5 offset:24")
    a("s_waitcnt vmcnt(0)")
    for j in range(28):
        for e in range(2):
            a(f"ds_read_b64_tr_b16 {vr(WD + 4 * j + 2 * e, 2)}, v9 offset:{j * 1024 + e * 512}")
    a("s_waitcnt lgkmcnt(0)")
    a("s_xor_b32 s53, s52, 1")
    a(f"s_mul_i32 s53, s53, {7 * 16384}")
    a("s_add_u32 s53, s53, s26")
    def sdma(w, j, lds):
        a(f"s_mov_b32 m0, {lds}")
        a(f"s_add_u32 s29, s{53 if w < 4 else 27}, {(28 * (w % 4) + ko(j // 2)) * 16384 + ((w % 2) ^ (j % 2)) * 64}")
        a("buffer_load_dwordx4 v8, s[12:15], s29 offen lds")
    for w in range(4):
        for j in range(7): sdma(w, j, SPARE + w * 7168 + j * 1024)
    for r in range(3):
        if r == 2:
            a("s_lshl_b32 s31, s36, 8")
            a("s_lshl_b32 s33, s37, 2")
            a("s_add_u32 s31, s31, s33")
            a(f"s_add_u32 s31, s31, {FL4 + 128}")
            a("v_mov_b32 v12, 0")
            a("v_mov_b32 v13, 1")
            cwait("A", 16)
            signal("K2_S4A")
        cwait(r, r * 4)
        for w in range(4): sdma(w, 7 + r, r * 32768 + 28672 + w * 1024)
        for j in range(28): sdma(4 + r, j, r * 32768 + j * 1024)
        if r == 2:
            a("s_waitcnt vmcnt(28)")
            a("ds_write_b32 v4, v5 offset:20")
    a("s_branch K2_DOWN")
    a.label("K2_GA")
    a("s_waitcnt vmcnt(0)")
    a("s_barrier")
    st(a, 'g1')
    tile(0, {31: ["s_barrier"]}, late=True, last=True)
    st(a, 'g2')
    a("s_barrier")
    tile(1, {}); tile(2, {}, pre=1)
    tile(3, {}, pre=1, last=True)
    a.label("K2_DOWN")
    st(a, 'gu')
    AC5 = 16; GS = [80, 88, 96, 104, 240, 248, 120]; NG = len(GS)
    srd(a, 12, 48, 1792 * 512 * 2)
    srd(a, 16, 62, 2048 * 512 * 2)
    a("s_lshl_b32 s31, s36, 8")
    a("s_lshl_b32 s33, s37, 2")
    a("s_add_u32 s31, s31, s33")
    a(f"s_add_u32 s31, s31, {FL4}")
    a("s_and_b32 s26, s22, 1")
    a("s_bfe_u32 s27, s22, 0x10001")
    a("s_lshl_b32 s28, s24, 1")
    a("s_add_u32 s28, s28, s26")
    a("s_lshl_b32 s30, s23, 1")
    a("s_add_u32 s30, s30, s27")
    a("s_lshr_b32 s33, s22, 2")
    a("s_xor_b32 s33, s33, s23")
    a("s_and_b32 s33, s33, 1")
    a("s_xor_b32 s57, s33, 1")
    a("s_lshl_b32 s33, s25, 2")
    a("s_add_u32 s33, s33, s57")
    a("s_mul_i32 s29, s33, 7168")
    a(f"s_mul_i32 s52, s30, {112 * 1024}")
    a("s_add_u32 s52, s52, s29")
    a(f"s_add_u32 s52, s52, {GF}")
    a("s_xor_b32 s53, s30, 1")
    a(f"s_mul_i32 s53, s53, {112 * 1024}")
    a("s_add_u32 s53, s53, s29")
    a(f"s_add_u32 s53, s53, {GF}")
    a(f"s_mul_i32 s29, s33, {7 * 16384}")
    a("s_lshl_b32 s54, s28, 6")
    a("s_xor_b32 s55, s54, 64")
    a("s_add_u32 s54, s54, s29")
    a("s_add_u32 s55, s55, s29")
    a("s_lshl_b32 s32, s22, 12")
    a("v_lshrrev_b32 v8, 2, v0")
    a("v_lshlrev_b32 v8, 10, v8")
    a("v_and_b32 v1, 3, v0")
    a("v_lshl_add_u32 v8, v1, 4, v8")
    a("v_lshlrev_b32 v9, 6, v10")
    a("v_lshl_add_u32 v9, v1, 3, v9")
    a("v_bfe_u32 v1, v0, 4, 1")
    a("v_lshl_add_u32 v9, v1, 5, v9")
    a("v_mov_b32 v12, 0")
    a("v_mov_b32 v13, 1")
    a("v_and_b32 v3, 31, v0")
    a("v_lshlrev_b32 v3, 10, v3")
    a("v_lshl_add_u32 v3, v11, 4, v3")
    def trd(j, reg, off):
        return [f"ds_read_b64_tr_b16 {vr(WD + 4 * j + 2 * e, 2)}, v{reg} offset:{off + e * 512}" for e in range(2)]
    def wdma(j, sreg, off):
        a(f"s_add_u32 m0, s{sreg}, {off}")
        a(f"s_add_u32 s29, s{54 + j % 2}, {ko(j // 2) * 16384}")
        V("buffer_load_dwordx4 v8, s[12:15], s29 offen lds", "wd")
    def dumpaddr():
        for t in range(4):
            a(f"s_xor_b32 s29, s25, {t}")
            a("s_lshl_b32 s29, s29, 15")
            a("s_add_u32 s29, s29, s32")
            a(f"v_add_u32 v{4 + t}, s29, v2")
    gb = [0]
    def gload(s):
        k = ko(s) * 1024
        if k - gb[0] > 3072:
            a(f"s_add_u32 s52, s52, {k - gb[0]}")
            a(f"s_add_u32 s53, s53, {k - gb[0]}")
            gb[0] = k
        for i in range(2):
            V(f"buffer_load_dwordx4 {vr(GS[s % NG] + 4 * i, 4)}, v2, s[8:11], s{52 + i} offen offset:{k - gb[0]} sc1", f"g{s}")
    def kloop(hooks, fills):
        issued = NG; fq = []
        for s in range(KS):
            for x in hooks.get(s, []):
                x() if callable(x) else a(x)
            fq += fills.get(s, [])
            vmwait(f"g{s}")
            g = GS[s % NG]; w = WD + 8 * s
            B0, B1, A0, A1 = vr(g, 4), vr(g + 4, 4), vr(w, 4), vr(w + 4, 4)
            C = "0" if s == 0 else None
            for d_, A_, B_ in ((AC5 + 32, A0, B1), (AC5 + 16, A1, B0), (AC5 + 48, A1, B1), (AC5, A0, B0)):
                a(MF32(vr(d_, 16), A_, B_, C))
                for _ in range(5):
                    if fq: a(fq.pop(0))
            if issued < KS:
                gload(issued); issued += 1
        assert not fq
    def dump(ts):
        for t in ts:
            for q in range(4):
                a(f"ds_write_b128 v{4 + t}, {vr(AC5 + 16 * t + 4 * q, 4)} offset:{q * 1024}")
    a("s_cmp_lt_u32 s22, 4")
    a("s_cbranch_scc1 K2_DLO")
    a("s_lshl_b32 s29, s25, 15")
    a("v_add_u32 v9, s29, v9")
    a(f"v_mov_b32 v14, {CNT}")
    dumpaddr()
    a("s_waitcnt vmcnt(0)")
    a("s_barrier")
    signal("K2_S4", True)
    st(a, 'z0')
    del vm[:]; gb[0] = 0
    for s in range(NG): gload(s)
    a("s_cmp_eq_u32 s22, 7")
    a("s_cbranch_scc1 K2_D7")
    for j in range(28):
        for x in trd(j, 9, j * 1024): a(x)
    a.label("K2_D7")
    a("s_waitcnt lgkmcnt(0)")
    a("s_mov_b64 exec, 1")
    a("ds_add_u32 v14, v13 offset:28")
    a("s_mov_b64 exec, -1")
    if D_PRIO: a("s_setprio 2")
    kloop({D_ZS: ["s_barrier"]} if D_ZS >= 0 else {}, {})
    a("v_mov_b32 v15, v6")
    cwait("Z", 28, 8, 14)
    a("v_mov_b32 v6, v15")
    st(a, 't4'); st(a, 'dk'); st(a, 'db'); st(a, 'ds')
    a("s_nop 8")
    dump((2, 1, 3, 0))
    a("s_waitcnt lgkmcnt(0)")
    a("s_barrier")
    stamp_end(a, 0, 7, 8)
    a("s_endpgm")
    a.label("K2_DLO")
    del vm[:]; gb[0] = 0
    a("s_mul_i32 s26, s25, 7168")
    a(f"s_add_u32 s26, s26, {SPARE}")
    a("s_lshl_b32 s27, s25, 10")
    a("s_add_u32 s27, s27, 28672")
    a("s_lshl_b32 s28, s25, 13")
    a("s_add_u32 s28, s28, 98304")
    a("v_add_u32 v10, s26, v9")
    a("v_add_u32 v14, s27, v9")
    a("v_add_u32 v15, 65536, v14")
    a("v_add_u32 v9, s28, v9")
    SL = [(26, k * 1024, 10, k * 1024) for k in range(7)] + [(27, 0, 14, 0), (27, 32768, 14, 32768), (27, 65536, 15, 0)]
    cwait("R", 20, 1)
    for k in range(10):
        for x in trd(k, SL[k][2], SL[k][3]): a(x)
    a("s_waitcnt vmcnt(0) lgkmcnt(0)")
    for k in range(10): wdma(10 + k, SL[k][0], SL[k][1])
    a("s_cmp_eq_u32 s22, 3")
    a("s_cbranch_scc0 K2_NPA")
    a("v_mov_b32 v16, v15")
    a("s_lshr_b32 s29, s23, 1")
    a("s_lshl_b32 s29, s29, 8")
    a("s_xor_b32 s30, s57, 1")
    a("s_lshl_b32 s33, s30, 2")
    a("s_add_u32 s29, s29, s33")
    a(f"s_add_u32 s29, s29, {FL4 + 128}")
    poll("K2_P4A", 29, 8, 3)
    a("v_mov_b32 v15, v16")
    if G_ET:
        a("s_lshl_b32 s33, s24, 1")
        a("s_add_u32 s29, s30, s33")
        a("s_mul_i32 s29, s29, 7168")
        a(f"s_mul_i32 s33, s23, {224 * 1024}")
        a("s_add_u32 s29, s29, s33")
        a(f"s_add_u32 s29, s29, {GF}")
        a("v_min_u32 v1, 55, v0")
        a("v_lshlrev_b32 v1, 7, v1")
        a("buffer_load_dword v17, v1, s[8:11], s29 offen sc1")
        a(f"s_add_u32 s29, s29, {112 * 1024}")
        a("buffer_load_dword v17, v1, s[8:11], s29 offen sc1")
    a.label("K2_NPA")
    dumpaddr()
    a("s_barrier")
    st(a, 'z0')
    for k in range(8): wdma(20 + k, 28, k * 1024)
    a("s_waitcnt vmcnt(8)")
    for k in range(10):
        for x in trd(10 + k, SL[k][2], SL[k][3]): a(x)
    a("s_lshl_b32 s29, s25, 15")
    a("v_add_u32 v8, s29, v2")
    a(f"v_mov_b32 v12, {CNT + 12}")
    a("s_waitcnt vmcnt(0)")
    for k in range(8):
        for x in trd(20 + k, 9, k * 1024): a(x)
    for t in range(1, 4):
        a(f"s_xor_b32 s33, s25, {t}")
        a("s_lshl_b32 s33, s33, 12")
        a(f"v_add_u32 v{(10, 11, 4)[t - 1]}, s33, v8")
    a("s_waitcnt lgkmcnt(0)")
    a("s_mov_b64 exec, 1")
    a("ds_add_u32 v12, v13 offset:16")
    a("s_mov_b64 exec, -1")
    if D_ZS >= 0: a("s_barrier")
    a("s_cmp_eq_u32 s22, 0")
    a("s_cbranch_scc0 K2_DSP")
    a("s_lshr_b32 s29, s23, 1")
    a("s_lshl_b32 s29, s29, 8")
    a("s_lshl_b32 s33, s57, 2")
    a("s_add_u32 s29, s29, s33")
    a(f"s_add_u32 s29, s29, {FL4}")
    poll2("K2_P4", 29, 8, 3)
    a("ds_write_b32 v12, v13")
    a("s_branch K2_DGO")
    a.label("K2_DSP")
    a("s_mov_b32 s33, 0")
    a.label("K2_DSL")
    a("s_sleep 1")
    a("ds_read_b32 v15, v12")
    a("s_add_u32 s33, s33, 1")
    a("s_waitcnt lgkmcnt(0)")
    a("v_cmp_eq_u32 vcc, 1, v15")
    a("s_cmp_gt_u32 s33, 0x400000")
    a("s_cbranch_scc1 K2_DGO")
    a("s_cbranch_vccz K2_DSL")
    a.label("K2_DGO")
    st(a, 't4')
    del vm[:]
    for s in range(NG): gload(s)
    a("s_mov_b32 s56, 0xffff0000")
    a("s_waitcnt lgkmcnt(0)")
    F1 = [f"ds_read_b128 {vr(WD + 16 * p_ + 4 * q, 4)}, v8 offset:{16384 + p_ * 4096 + q * 1024}" for p_ in range(4) for q in range(4)]
    F2 = [f"v_add_f32 v{WD + i}, v{WD + i}, v{WD + 16 + i}" for i in range(16)]
    F2 += [f"v_add_f32 v{WD + 32 + i}, v{WD + 32 + i}, v{WD + 48 + i}" for i in range(16)]
    F2 += [f"v_add_f32 v{WD + i}, v{WD + i}, v{WD + 32 + i}" for i in range(16)]
    for i in range(8):
        F2 += [f"v_lshlrev_b32 v{WD + 16 + 2 * i}, 16, v{112 + i}", f"v_and_b32 v{WD + 17 + 2 * i}, s56, v{112 + i}"]
    F2 += [f"v_add_f32 v{WD + i}, v{WD + i}, v{WD + 16 + i}" for i in range(16)]
    kloop({8: ["s_barrier"], 10: ["s_waitcnt lgkmcnt(0)"]}, {8: F1, 10: F2}) if not D_LATE else kloop({9: ["s_barrier"], 10: ["s_waitcnt lgkmcnt(0)"]}, {9: F1, 10: F2})
    st(a, 'dk')
    dump((2, 1, 3))
    for i in range(16):
        a(f"v_add_f32 v{AC5 + i}, v{AC5 + i}, v{WD + i}")
    a("s_waitcnt lgkmcnt(0)")
    a("s_barrier")
    st(a, 'db')
    for t in range(3):
        for q in range(4):
            a(f"ds_read_b128 {vr(WD + 16 * t + 4 * q, 4)}, v{(10, 11, 4)[t]} offset:{q * 1024}")
    for t in range(3):
        a(f"s_waitcnt lgkmcnt({8 - 4 * t})")
        for i in range(0, 16, 2):
            a(f"v_pk_add_f32 {vr(AC5 + i, 2)}, {vr(AC5 + i, 2)}, {vr(WD + 16 * t + i, 2)}")
    o = AC5 + 16
    for i in range(8):
        a(f"v_cvt_pk_bf16_f32 v{o + i}, v{AC5 + 2 * i}, v{AC5 + 2 * i + 1}")
    a("s_nop 0")
    for j in range(2):
        a(f"v_permlane32_swap_b32 v{o + 4 * j}, v{o + 4 * j + 2}")
        a(f"v_permlane32_swap_b32 v{o + 4 * j + 1}, v{o + 4 * j + 3}")
    for j in range(2):
        a(f"buffer_store_dwordx4 {vr(o + 4 * j, 4)}, v3, s[16:19], s51 offen offset:{j * 32} {OUT_SC}")
    st(a, 'ds')
    stamp_end(a, 0, 7, 8)
    a("s_endpgm")
    a.label("K2_FALLBACK")
    a("v_mov_b32 v1, v2")
    a("v_mov_b32 v14, 0xff800000")
    a("s_mov_b32 s33, 0")
    a.label("K2_FB1")
    a(f"ds_read_b128 {vr(KR, 4)}, v1")
    a("v_add_u32 v1, 1024, v1")
    a("s_waitcnt lgkmcnt(0)")
    a(MF32(vr(s0, 16), vr(KR, 4), vr(Q, 4), "0"))
    a("s_nop 11")
    for i in range(0, 16, 2):
        a(f"v_max3_f32 v14, v14, v{s0+i}, v{s0+i+1}")
    a("s_add_u32 s33, s33, 1")
    a("s_cmp_lt_u32 s33, 64")
    a("s_cbranch_scc1 K2_FB1")
    set_negm()
    for i in range(16):
        a(f"v_mov_b32 v{O + i}, 0")
    a("v_mov_b32 v1, v2")
    a("s_mov_b32 s33, 0")
    a.label("K2_FB2")
    a(f"ds_read_b128 {vr(KR, 4)}, v1")
    a("s_mov_b64 exec, s[34:35]")
    a(f"ds_read_b128 {vr(VR, 4)}, v3")
    a(f"ds_read_b128 {vr(VR + 4, 4)}, v3 offset:512")
    a("s_mov_b64 exec, -1")
    a("v_add_u32 v1, 1024, v1")
    a("v_add_u32 v3, 1024, v3")
    a("s_waitcnt lgkmcnt(0)")
    a(MF32(vr(s0, 16), vr(KR, 4), vr(Q, 4), vr(NEGM, 16)))
    a("s_nop 11")
    for i in range(16): a(f"v_exp_f32 v{s0+i}, v{s0+i}")
    a("s_nop 0")
    for i in range(8): a(f"v_cvt_pk_bf16_f32 v{P+i}, v{s0+2*i}, v{s0+2*i+1}")
    a("s_nop 1")
    a(MF32(vr(O, 16), vr(VR, 4), vr(P, 4)))
    a(MF32(vr(O, 16), vr(VR + 4, 4), vr(P + 4, 4)))
    a("s_add_u32 s33, s33, 1")
    a("s_cmp_lt_u32 s33, 64")
    a("s_cbranch_scc1 K2_FB2")
    a("s_nop 11")
    a("s_branch K2_FIN")
    a.label("K2_END")
    a("s_endpgm")
    return n, a, kd(n, 256, 256), (256, 512, 163840)

def k5():
    a = Asm(); n = "k3_down_kernel"
    NS = 112; KS = 28; DEPTH = 8
    kernel_head(a, n)
    ACC = 16; GB = 80; WB = 144; RES = 160
    RED = 65536
    a("s_cmp_ge_u32 s2, 256")
    a("s_cbranch_scc1 K5_END")
    stamp(a, 0)
    if DBGK1:
        a("s_memrealtime s[64:65]")
        a("s_memtime s[66:67]")
    a("s_load_dwordx2 s[4:5], s[0:1], 72")
    a("s_load_dwordx4 s[40:43], s[0:1], 48")
    a("v_lshrrev_b32 v1, 6, v0")
    a("v_and_b32 v0, 63, v0")
    a("v_readfirstlane_b32 s22, v1")
    a("v_lshlrev_b32 v2, 4, v0")
    a("s_and_b32 s23, s2, 7")
    a("s_lshl_b32 s23, s23, 2")
    a("s_bfe_u32 s29, s2, 0x20003")
    a("s_add_u32 s23, s23, s29")
    a("s_lshr_b32 s24, s2, 5")
    a("s_and_b32 s25, s22, 1")
    a("s_lshr_b32 s26, s22, 1")
    a("s_lshl_b32 s27, s24, 1")
    a("s_add_u32 s27, s27, s25")
    a("s_lshl_b32 s28, s23, 1")
    a("s_add_u32 s28, s28, s26")
    a(f"s_mul_i32 s29, s22, {KS * 1024}")
    a(f"s_mul_i32 s32, s28, {NS * 1024}")
    a("s_add_u32 s32, s32, s29")
    a(f"s_add_u32 s32, s32, {GF}")
    a("s_xor_b32 s33, s28, 1")
    a(f"s_mul_i32 s33, s33, {NS * 1024}")
    a("s_add_u32 s33, s33, s29")
    a(f"s_add_u32 s33, s33, {GF}")
    a(f"s_mul_i32 s29, s22, {KS * 16384}")
    a("s_lshl_b32 s30, s27, 6")
    a("s_xor_b32 s31, s30, 64")
    a("s_add_u32 s30, s30, s29")
    a("s_add_u32 s31, s31, s29")
    a("s_lshl_b32 s36, s22, 14")
    a("v_lshrrev_b32 v8, 2, v0")
    a("v_lshlrev_b32 v8, 10, v8")
    a("v_and_b32 v1, 3, v0")
    a("v_lshl_add_u32 v8, v1, 4, v8")
    a("s_waitcnt lgkmcnt(0)")
    srd(a, 8, 4, WS_SIZE)
    srd(a, 16, 40, 1792 * 512 * 2)
    srd(a, 12, 42, 2048 * 512 * 2)
    def loads(s):
        b = GB + 8 * (s % DEPTH)
        if s % 4 == 0 and s > 0:
            a("s_add_u32 s32, s32, 4096")
            a("s_add_u32 s33, s33, 4096")
        for i in range(2):
            a(f"s_add_u32 m0, s36, {(s % DEPTH) * 2048 + i * 1024}")
            a(f"s_add_u32 s29, s{30 + i}, {s * 16384}")
            a("buffer_load_dwordx4 v8, s[16:19], s29 offen lds")
        for i in range(2):
            a(f"buffer_load_dwordx4 {vr(b + 4 * i, 4)}, v2, s[8:11], s{32 + i} offen offset:{(s % 4) * 1024}")
    for s in range(DEPTH - 1):
        loads(s)
    a("v_lshrrev_b32 v4, 5, v0")
    a("v_bfe_u32 v1, v0, 2, 2")
    a("v_lshl_add_u32 v9, v4, 2, v1")
    a("v_lshlrev_b32 v9, 6, v9")
    a("v_and_b32 v1, 3, v0")
    a("v_lshl_add_u32 v9, v1, 3, v9")
    a("v_bfe_u32 v1, v0, 4, 1")
    a("v_lshl_add_u32 v9, v1, 5, v9")
    a("v_add_u32 v9, s36, v9")
    a("v_and_b32 v3, 31, v0")
    a("v_lshlrev_b32 v3, 10, v3")
    a("v_lshl_add_u32 v3, v4, 4, v3")
    a("s_lshl_b32 s34, s28, 15")
    a("s_lshl_b32 s35, s27, 6")
    a("s_add_u32 s34, s34, s35")
    a("s_lshl_b32 s35, s28, 15")
    a("s_lshl_b32 s37, s27, 11")
    a("s_add_u32 s35, s35, s37")
    a(f"s_add_u32 s35, s35, {HF}")
    for t in range(1, 4):
        a(f"s_xor_b32 s29, s22, {t}")
        a("s_mul_i32 s29, s29, 12288")
        a(f"s_add_u32 s29, s29, {RED}")
        a(f"v_add_u32 v{4 + t}, s29, v2")
    a("s_mul_i32 s29, s22, 12288")
    a(f"s_add_u32 s29, s29, {RED}")
    a("v_add_u32 v4, s29, v2")
    def trreads(s):
        for i in range(2):
            for e in range(2):
                a(f"ds_read_b64_tr_b16 {vr(WB + 8 * (s % 2) + 4 * i + 2 * e, 2)}, v9 offset:{(s % DEPTH) * 2048 + i * 1024 + e * 512}")
    def mfmas(s):
        g = GB + 8 * (s % DEPTH); w = WB + 8 * (s % 2)
        B0, B1, A0, A1 = vr(g, 4), vr(g + 4, 4), vr(w, 4), vr(w + 4, 4)
        C = "0" if s == 0 else None
        a(MF32(vr(ACC, 16), A0, B0, C))
        a(MF32(vr(ACC + 32, 16), A0, B1, C))
        a(MF32(vr(ACC + 16, 16), A1, B0, C))
        a(MF32(vr(ACC + 48, 16), A1, B1, C))
    issued = DEPTH - 1; res = 0
    a(f"s_waitcnt vmcnt({(issued - 1) * 4})")
    st(a, 't1')
    trreads(0)
    for s in range(KS):
        if issued < KS:
            loads(issued); issued += 1
            if issued == KS:
                for j in range(2):
                    a(f"buffer_load_dwordx4 {vr(RES + 4 * j, 4)}, v2, s[8:11], s35 offen offset:{j * 1024}")
                res = 2
        if s + 1 < KS:
            a(f"s_waitcnt vmcnt({(issued - s - 2) * 4 + res})")
            trreads(s + 1)
            a("s_waitcnt lgkmcnt(4)")
        else:
            a("s_waitcnt lgkmcnt(0)")
        mfmas(s)
    st(a, 'att')
    a("s_waitcnt vmcnt(0)")
    a("s_mov_b32 s29, 0xffff0000")
    for i in range(8):
        a(f"v_lshlrev_b32 v{RES + 8 + 2 * i}, 16, v{RES + i}")
        a(f"v_and_b32 v{RES + 9 + 2 * i}, s29, v{RES + i}")
    for t in (2, 1, 3):
        for q in range(4):
            a(f"ds_write_b128 v{4 + t}, {vr(ACC + 16 * t + 4 * q, 4)} offset:{(t - 1) * 4096 + q * 1024}")
    for i in range(16):
        a(f"v_add_f32 v{ACC + i}, v{ACC + i}, v{RES + 8 + i}")
    a("s_waitcnt lgkmcnt(0)")
    a("s_barrier")
    for t in range(3):
        for q in range(4):
            a(f"ds_read_b128 {vr(GB + 16 * t + 4 * q, 4)}, v4 offset:{t * 4096 + q * 1024}")
    for t in range(3):
        a(f"s_waitcnt lgkmcnt({8 - 4 * t})")
        for i in range(0, 16, 2):
            a(f"v_pk_add_f32 {vr(ACC + i, 2)}, {vr(ACC + i, 2)}, {vr(GB + 16 * t + i, 2)}")
    o = ACC + 16
    for i in range(8):
        a(f"v_cvt_pk_bf16_f32 v{o + i}, v{ACC + 2 * i}, v{ACC + 2 * i + 1}")
    a("s_nop 0")
    for j in range(2):
        a(f"v_permlane32_swap_b32 v{o + 4 * j}, v{o + 4 * j + 2}")
        a(f"v_permlane32_swap_b32 v{o + 4 * j + 1}, v{o + 4 * j + 3}")
    for j in range(2):
        a(f"buffer_store_dwordx4 {vr(o + 4 * j, 4)}, v3, s[12:15], s34 offen offset:{j * 32}")
    stamp_end(a, 2, 3, 8)
    if DBGK1:
        a("s_waitcnt vmcnt(0)")
        a("s_memrealtime s[68:69]")
        a("s_memtime s[70:71]")
        a("s_load_dwordx2 s[72:73], s[0:1], 64")
        a("s_waitcnt lgkmcnt(0)")
        srd(a, 76, 72, 256)
        a("s_sub_u32 s70, s70, s66")
        a("s_cmp_lg_u32 s2, 0")
        a("s_cbranch_scc1 K5_END")
        a(f"s_mov_b32 s74, {DBGOFF}")
        a("v_mov_b32 v0, 0")
        a("buffer_load_dwordx4 v[4:7], v0, s[8:11], s74 offen")
        a("buffer_load_dwordx4 v[8:11], v0, s[8:11], s74 offen offset:16")
        a("s_waitcnt vmcnt(0)")
        a("v_sub_u32 v5, v5, v4")
        a("v_sub_u32 v8, v8, v4")
        a("v_sub_u32 v9, v9, v4")
        a("v_sub_u32 v12, s64, v4")
        a("v_sub_u32 v13, s68, v4")
        a("v_mov_b32 v14, s70")
        a("v_mov_b32 v15, 0")
        a("buffer_store_dwordx4 v[4:7], v0, s[76:79], 0 offen")
        a("buffer_store_dwordx4 v[8:11], v0, s[76:79], 0 offen offset:16")
        a("buffer_store_dwordx4 v[12:15], v0, s[76:79], 0 offen offset:32")
    a.label("K5_END")
    a("s_endpgm")
    return n, a, kd(n, 192, 192), (256, 256, RED + 49152)

def main(out):
    ks = [k234()]
    hdr = open("cdna_kernels/" + NAME + ".s.ref").read().split("\n")
    hdr = [l for l in hdr if l.startswith(";") and "@launch" not in l and "Override" not in l and "grid=ceil" not in l]
    txt = "\n".join(hdr) + "\n"
    for n, a, d, (g, b, lds) in ks:
        txt += f"; @launch {'kernel=' + n + ' ' if LIST else ''}grid=({g},1,1) block=({b},1,1) lds={lds}\n"
    txt += '.amdgcn_target "amdgcn-amd-amdhsa--gfx950"\n.text\n'
    bad = 0
    for ki, (n, a, d, _) in enumerate(ks):
        fl = ST_FLAGS[ki]
        if fl:
            a.lines = [l + " " + fl if ("buffer_store_dwordx" in l and "sc1" not in l) else l for l in a.lines]
        bad += check_hazards(a.lines, n)
        txt += a.text()
    txt += "CODE_END:\n"
    txt += '.section .rodata,"a"\n'
    for n, a, d, _ in ks:
        txt += ".p2align 6\n" + d
    open(out, "w").write(txt)
    print("hazards:", bad)

if __name__ == "__main__":
    if "stamp" in sys.argv: STAMP = True
    for arg in sys.argv[2:]:
        if "=" in arg:
            k_, v_ = arg.split("=", 1)
            globals()[k_] = eval(v_)
    main(sys.argv[1] if len(sys.argv) > 1 else "cdna_kernels/" + NAME + ".s")
```

```python
import sys, math, struct
from asmlib import *

NAME = "sequential_preLN__mha_block__geglu_ffn__prompt"

QF, KF, VF, OF, HF = 0x000000, 0x200000, 0x400000, 0x600000, 0x800000
ST  = 0xA00000
CSF = 0xA80000
WOF = 0xB00000
WGF = 0xC00000
WDF = 0x1000000
GF  = 0x1200000
WS_SIZE = 0x10000000
FL1 = 0xB02800
FL2 = 0xB00000
FL3 = 0xB00800
FL4 = 0xB01800

def f32(x):
    return "0x%08x" % struct.unpack("<I", struct.pack("<f", x))[0]

LOG2E = 1.4426950408889634
EPS = 1e-5

def srd(a, s, base, size):
    a(f"s_mov_b32 s{s}, s{base}")
    a(f"s_mov_b32 s{s+1}, s{base+1}")
    a(f"s_mov_b32 s{s+2}, {hex(size)}")
    a(f"s_mov_b32 s{s+3}, 0x00020000")

def kernel_head(a, name):
    a.raw(f".globl {name}")
    a.raw(".p2align 8")
    a.raw(f".type {name},@function")
    a.raw(f"{name}:")

def kd(name, nvgpr, accum, nsgpr=100):
    return f""".amdhsa_kernel {name}
  .amdhsa_next_free_vgpr {nvgpr}
  .amdhsa_next_free_sgpr {nsgpr}
  .amdhsa_accum_offset {accum}
  .amdhsa_group_segment_fixed_size 0
  .amdhsa_kernarg_size 80
  .amdhsa_user_sgpr_count 2
  .amdhsa_user_sgpr_kernarg_segment_ptr 1
  .amdhsa_system_sgpr_workgroup_id_x 1
.end_amdhsa_kernel
"""

STAMP = False
K2_CAD = 3
K2_W7S = 1
K1_CHIP = 0
K1_CF = ''
K2_T0 = 12
O_TCH = -1
H_TCH = -1
OUT_SC = ''
D_PRIO = 1
D_LATE = 0
O_PRIO = 0
ATOM = 1
NREP = 1
PIF = 1
POLL_PRE = 0
O_B1 = 10
POLL2 = 0
D_ZS = 4
W3_TOUCH = 0
G_EA = 12
G_PERM = 1
G_ET = 1
D_ROT = 1
G_TOUCH = 0
SMAP = ['t1', 'att', 't2', 't3', 'gu', 't4']
K2_Y2 = 40
K2_PER = 4
PIN = None
PINN = []
LIST = 1
FASTL2 = 1
D_Y = 6
DBGK1 = 0
LD_SC = 'sc1'
GSTAMP = 0
G_P2 = 8
GB3 = 20
GA3 = 0
POLL_SLEEP = 0
B_FILL = 4
K2_TCH = 1
G_SC = 'sc1'
CODE_TOUCH = 0
K1_ROT = 1
K1_TW = [-1, 0, 1]
K4_SL = 26
K2_S3 = 11
K2_WD = 0
K1_D = 1
K4_D = 2
K4_XB = 12
K4_TOUCH = 0
K2_S2 = 4
K1_TOUCH = 1
ST_FLAGS = ['', '', '', '', '']
K2_Y = 8
SIDE_SC = 'sc1'
K1_UP = 14
K4_UP = 22
DBGOFF = 0x2000000
def st(a, name):
    if name in SMAP: stamp(a, SMAP.index(name) + 1)
def stamp(a, i):
    if PIN:
        if i == 0: a("s_memrealtime s[64:65]")
        if i == PIN[0]:
            PINN.append(0); L = f"PIN{len(PINN)}"
            if len(PIN) > 2:
                a(f"s_cmp_lg_u32 s2, {PIN[2]}")
                a(f"s_cbranch_scc1 {L}X")
            a.label(L)
            a("s_memrealtime s[66:67]")
            a("s_waitcnt lgkmcnt(0)")
            a("s_sub_u32 s66, s66, s64")
            a(f"s_cmp_lt_u32 s66, {PIN[1]}")
            a(f"s_cbranch_scc1 {L}")
            a.label(L + "X")
    if not STAMP: return
    a(f"s_memrealtime s[{64 + 4 * i}:{65 + 4 * i}]")
    a(f"s_memtime s[{66 + 4 * i}:{67 + 4 * i}]")
    if i != 0:
        a("s_waitcnt lgkmcnt(0)")
def stamp_end(a, kidx, n, srdreg, wavereg=22):
    if PIN: stamp(a, n)
    if not STAMP: return
    a("s_waitcnt vmcnt(0)")
    stamp(a, n)
    a("s_lshl_b32 s60, s2, 3")
    a(f"s_add_u32 s60, s60, s{wavereg}")
    a("s_lshl_b32 s60, s60, 6")
    a(f"s_add_u32 s60, s60, {DBGOFF + kidx * 0x40000}")
    a("v_mov_b32 v0, 0")
    for j in range(2 * n + 2):
        a(f"v_mov_b32 v1, s{64 + 2 * j}")
        a(f"buffer_store_dword v1, v0, s[{srdreg}:{srdreg+3}], s60 offen offset:{4 * j}")

def MF32(d, A, B, C=None):
    C = d if C is None else C
    return f"v_mfma_f32_32x32x16_bf16 {d}, {A}, {B}, {C}"

def halfsum(a, v, t):
    a(f"v_mov_b32 v{t}, v{v}")
    a("s_nop 1")
    a(f"v_permlane32_swap_b32 v{v}, v{t}")
    a(f"v_add_f32 v{v}, v{v}, v{t}")


def k1():
    a = Asm(); n = NAME + "_kernel"
    kernel_head(a, n)
    SLOT = 28672; SCR = 5 * SLOT; SCR2 = SCR + 1536; SCR3 = SCR2 + 512
    D = K1_D
    a("s_cmp_ge_u32 s2, 256")
    a("s_cbranch_scc1 K2_END")
    stamp(a, 0)
    if DBGK1:
        a("s_memrealtime s[64:65]")
        a("s_memtime s[66:67]")
    a("s_load_dwordx4 s[4:7], s[0:1], 0")
    a("s_load_dwordx4 s[56:59], s[0:1], 64")
    a("v_lshrrev_b32 v1, 6, v0")
    a("v_and_b32 v0, 63, v0")
    a("v_readfirstlane_b32 s35, v1")
    a("s_and_b32 s23, s2, 3")
    a("s_lshl_b32 s23, s23, 2")
    a("s_bfe_u32 s29, s2, 0x20003")
    a("s_add_u32 s23, s23, s29")
    a("s_bfe_u32 s24, s2, 0x10002")
    a("s_lshl_b32 s24, s24, 3")
    a("s_lshr_b32 s29, s2, 5")
    a("s_add_u32 s24, s24, s29")
    a("s_and_b32 s22, s35, 3")
    a("s_lshl_b32 s27, s22, 12")
    a("s_lshl_b32 s40, s2, 1")
    a("s_and_b32 s29, s2, 4")
    a("s_add_u32 s40, s40, s29")
    if not K1_ROT: a("s_mov_b32 s40, 0")
    a("s_cmp_lt_u32 s35, 4")
    a("s_cbranch_scc1 K1_MM")
    a("s_lshl_b32 s25, s23, 17")
    a("s_lshl_b32 s29, s22, 15")
    a("s_add_u32 s25, s25, s29")
    a("s_mul_i32 s26, s22, 49152")
    a("s_lshl_b32 s29, s24, 6")
    a("s_add_u32 s26, s26, s29")
    a("s_lshl_b32 s28, s22, 10")
    a("s_add_u32 s28, s28, 16384")
    a("s_mov_b32 s30, 0x3f803f80")
    a("v_lshrrev_b32 v5, 3, v0")
    a("v_lshlrev_b32 v2, 10, v5")
    a("v_and_b32 v6, 7, v0")
    a("v_lshrrev_b32 v7, 4, v0")
    a("v_xor_b32 v6, v6, v7")
    a("v_lshl_add_u32 v2, v6, 4, v2")
    a("v_xor_b32 v3, 64, v2")
    a("v_add_u32 v3, 8192, v3")
    a("v_lshrrev_b32 v5, 2, v0")
    a("v_mul_u32_u24 v4, 3072, v5")
    a("v_and_b32 v6, 3, v0")
    a("v_lshl_add_u32 v4, v6, 4, v4")
    a("s_waitcnt lgkmcnt(0)")
    srd(a, 8, 4, 2048 * 512 * 2)
    srd(a, 12, 6, 512 * 1536 * 2)
    def dma(c):
        slot = (c % 5) * SLOT
        a(f"s_add_u32 s41, s40, {c}")
        a("s_and_b32 s41, s41, 7")
        a("s_lshl_b32 s42, s41, 7")
        a("s_add_u32 s42, s42, s25")
        a(f"s_mul_i32 s41, s41, {64 * 3072}")
        a("s_add_u32 s41, s41, s26")
        for p in range(3):
            a(f"s_add_u32 m0, s28, {slot + p * 4096}")
            a(f"s_add_u32 s29, s41, {p * 1024}")
            a(f"buffer_load_dwordx4 v4, s[12:15], s29 offen lds")
        for i in range(4):
            a(f"s_add_u32 m0, s27, {slot + i * 1024}")
            a(f"s_add_u32 s29, s42, {(i // 2) * 16384}")
            a(f"buffer_load_dwordx4 v{2 + (i % 2)}, s[8:11], s29 offen lds")
    for c in range(D + 1):
        dma(c)
    def rdaddr():
        a("v_and_b32 v5, 31, v0")
        a("v_lshrrev_b32 v6, 5, v0")
        a("v_bfe_u32 v7, v0, 1, 3")
        a("v_xor_b32 v7, v7, v6")
        a("v_lshlrev_b32 v5, 7, v5")
        a("v_add_u32 v5, s27, v5")
        for s in range(4):
            a(f"v_xor_b32 v1, {2 * s}, v7")
            a(f"v_lshl_add_u32 v{8 + s}, v1, 4, v5")
            a(f"v_add_u32 v{12 + s}, {2 * SLOT}, v{8 + s}")
            a(f"v_add_u32 v{16 + s}, {4 * SLOT}, v{8 + s}")
        a("v_bfe_u32 v1, v0, 2, 2")
        a("v_lshl_add_u32 v1, v6, 3, v1")
        a("v_lshlrev_b32 v20, 6, v1")
        a("v_bfe_u32 v1, v0, 4, 1")
        a("v_lshl_add_u32 v20, v1, 5, v20")
        a("v_and_b32 v1, 3, v0")
        a("v_lshl_add_u32 v20, v1, 3, v20")
    rdaddr()
    a("s_lshl_b32 s29, s22, 10")
    a("v_add_u32 v20, s29, v20")
    a(f"v_add_u32 v21, {2 * SLOT}, v20")
    a(f"v_add_u32 v22, {4 * SLOT}, v20")
    for i in range(28, 31):
        a(f"v_mov_b32 v{i}, 0")
    WB = 48
    for c in range(8):
        slot = c % 5; st = slot // 2; off = (slot % 2) * SLOT
        a(f"s_waitcnt vmcnt({7 * (min(c + D, 7) - c)})")
        a("s_barrier")
        for p in range(3):
            for u in range(2):
                a(f"ds_read_b64_tr_b16 {vr(WB + 4 * p + 2 * u, 2)}, v{20 + st} offset:{off + 16384 + p * 4096 + u * 256}")
        if c + D + 1 < 8:
            dma(c + D + 1)
        a("s_waitcnt lgkmcnt(0)")
        for i in range(4):
            for p in range(3):
                a(f"v_dot2c_f32_bf16 v{28 + p}, s30, v{WB + 4 * p + i}")
    a("v_and_b32 v5, 31, v0")
    a("v_lshlrev_b32 v6, 4, v5")
    a("s_lshl_b32 s29, s22, 2")
    a(f"s_add_u32 s29, s29, {SCR}")
    a("v_add_u32 v7, s29, v6")
    for p in range(3):
        halfsum(a, 28 + p, 1)
        a(f"ds_write_b32 v7, v{28 + p} offset:{p * 512}")
    a("s_min_u32 s29, s22, 2")
    a("s_lshl_b32 s31, s29, 9")
    a(f"s_add_u32 s31, s31, {SCR}")
    a("v_add_u32 v6, s31, v6")
    a("s_lshl_b32 s31, s29, 8")
    a(f"s_add_u32 s31, s31, {SCR3}")
    a("v_lshlrev_b32 v7, 3, v5")
    a("v_add_u32 v7, s31, v7")
    a("s_waitcnt lgkmcnt(0)")
    a("s_barrier")
    a("ds_read_b128 v[32:35], v6")
    a("s_waitcnt lgkmcnt(0)")
    a("v_add_f32 v32, v32, v33")
    a("v_add_f32 v34, v34, v35")
    a("v_add_f32 v34, v32, v34")
    a("v_cvt_pk_bf16_f32 v32, v34, v34")
    a("v_lshlrev_b32 v33, 16, v32")
    a("v_sub_f32 v33, v34, v33")
    a("v_cvt_pk_bf16_f32 v33, v33, v33")
    a("ds_write_b64 v7, v[32:33]")
    a("s_waitcnt lgkmcnt(0)")
    a("s_barrier")
    a("s_cmp_eq_u32 s35, 7")
    a("s_cbranch_scc0 K1_JOIN")
    srd(a, 16, 56, 256)
    a("v_mov_b32 v12, 0")
    a("s_mov_b32 s33, 0")
    a.label("K1_PZ")
    a("buffer_load_dword v15, v12, s[16:19], 0 offen sc1")
    a("s_add_u32 s33, s33, 1")
    a("s_waitcnt vmcnt(0)")
    a("v_cmp_eq_u32 vcc, 1, v15")
    a("s_cmp_gt_u32 s33, 0x40000")
    a("s_cbranch_scc1 K1_JOIN")
    a("s_cbranch_vccz K1_PZ")
    a("s_branch K1_JOIN")
    a.label("K1_MM")
    rdaddr()
    if CODE_TOUCH:
        a("s_getpc_b64 s[44:45]")
        a.label("K1_PC")
        a("s_sub_u32 s44, s44, K1_PC-k1_qkv_kernel")
        a("s_subb_u32 s45, s45, 0")
        a("s_lshl_b32 s46, s22, 13")
        a("v_lshlrev_b32 v23, 7, v0")
        a("v_add_u32 v23, s46, v23")
        for i in range(CODE_TOUCH):
            a("v_min_u32 v24, CODE_END-k1_qkv_kernel-4, v23")
            a("global_load_dword v31, v24, s[44:45]")
            a("v_add_u32 v23, 32768, v23")
    a(f"v_add_u32 v21, {2 * SLOT}, v20")
    a(f"v_add_u32 v22, {4 * SLOT}, v20")
    a("s_mov_b32 s30, 0x3f803f80")
    for i in range(24, 28):
        a(f"v_mov_b32 v{i}, 0")
    a("v_and_b32 v5, 31, v0")
    a("v_lshlrev_b32 v6, 3, v5")
    a(f"v_add_u32 v6, {SCR3}, v6")
    CF = 152
    for p in range(3):
        a(f"v_mov_b32 v{CF + 4 * p + 2}, 0")
        a(f"v_mov_b32 v{CF + 4 * p + 3}, 0")
    a("v_mov_b32 v150, 0")
    a("v_mov_b32 v151, 0")
    a("s_lshl_b32 s29, s22, 7")
    a(f"s_add_u32 s29, s29, {SCR2}")
    a("v_lshlrev_b32 v7, 2, v5")
    a("v_add_u32 v7, s29, v7")
    a("v_lshrrev_b32 v1, 5, v0")
    a("v_lshlrev_b32 v1, 4, v1")
    a("v_add_u32 v1, s29, v1")
    a("s_lshl_b32 s29, s23, 2")
    a("s_add_u32 s29, s29, s22")
    a("s_lshl_b32 s29, s29, 10")
    a("s_lshl_b32 s31, s24, 17")
    a("s_add_u32 s29, s29, s31")
    a("s_add_u32 s31, s29, 65536")
    a(f"s_add_u32 s32, s29, {KF}")
    a(f"s_add_u32 s33, s29, {KF + 65536}")
    a(f"s_add_u32 s34, s29, {VF}")
    a("v_lshlrev_b32 v2, 4, v0")
    a("v_bfe_u32 v3, v0, 4, 1")
    a("v_lshlrev_b32 v3, 16, v3")
    a("v_lshrrev_b32 v4, 5, v0")
    a("v_lshl_add_u32 v3, v4, 8, v3")
    a("v_and_b32 v4, 15, v0")
    a("v_lshl_add_u32 v3, v4, 4, v3")
    a("s_waitcnt lgkmcnt(0)")
    srd(a, 16, 58, WS_SIZE)
    a("s_lshl_b32 s36, s2, 2")
    a("s_add_u32 s36, s36, s22")
    a("s_cmp_lg_u32 s36, 3")
    a("s_cbranch_scc1 K1_NZ")
    a(f"s_mov_b32 s36, {FL2}")
    a("v_lshlrev_b32 v28, 7, v0")
    for i_ in range(2 * NREP):
        a("buffer_store_dwordx2 v[24:25], v28, s[16:19], s36 offen sc1")
        a("s_add_u32 s36, s36, 8192")
    srd(a, 8, 56, 256)
    a("v_mov_b32 v28, 1")
    a("s_waitcnt vmcnt(0)")
    a("buffer_store_dword v28, v24, s[8:11], 0 offen sc1")
    a.label("K1_NZ")
    TQ = {}
    if K1_CHIP:
        a("s_cmp_lt_u32 s22, 2")
        a("s_cbranch_scc1 K1_NC")
        srd(a, 8, 4, 2048 * 512 * 2)
        a("s_lshl_b32 s36, s2, 13")
        a("v_lshlrev_b32 v23, 7, v0")
        a("s_cmp_eq_u32 s22, 2")
        a("s_cbranch_scc1 K1_C2")
        srd(a, 8, 6, 512 * 1536 * 2)
        a("s_mul_i32 s36, s2, 6144")
        a("v_min_u32 v23, 47, v0")
        a("v_lshlrev_b32 v23, 7, v23")
        a.label("K1_C2")
        a(f"buffer_load_dword v30, v23, s[8:11], s36 offen {K1_CF}")
        a.label("K1_NC")
    if K1_TOUCH:
        srd(a, 8, 4, 2048 * 512 * 2)
        a("s_lshr_b32 s37, s2, 3")
        a("v_and_b32 v28, 3, v0")
        a("s_mov_b32 s39, 256")
        a("s_and_b32 s36, s2, 3")
        a("s_lshl_b32 s36, s36, 19")
        a("s_lshl_b32 s38, s37, 14")
        a("s_add_u32 s36, s36, s38")
        a("v_bfe_u32 v23, v0, 1, 4")
        a("v_lshlrev_b32 v23, 10, v23")
        a("v_and_b32 v29, 1, v0")
        a("v_lshl_add_u32 v23, v29, 7, v23")
        a("s_cmp_lg_u32 s22, 0")
        a("s_cbranch_scc1 K1_TD")
        srd(a, 8, 6, 512 * 1536 * 2)
        a(f"s_mov_b32 s39, {128 * 3072}")
        a("s_mul_i32 s36, s37, 12288")
        a("s_bfe_u32 s38, s2, 0x10002")
        a("s_lshl_b32 s38, s38, 9")
        a("s_add_u32 s36, s36, s38")
        a("v_lshrrev_b32 v23, 4, v0")
        a("v_mul_u32_u24 v23, 3072, v23")
        a("v_bfe_u32 v30, v0, 2, 2")
        a("v_min_u32 v30, 2, v30")
        a("v_lshl_add_u32 v23, v30, 10, v23")
        a("v_lshl_add_u32 v23, v28, 7, v23")
        a.label("K1_TD")
        def touch(n_):
            return ["s_cmp_ge_u32 s22, 2", f"s_cbranch_scc1 K1_TS{n_}",
                    "s_lshr_b32 s38, s40, 1", f"s_add_u32 s38, s38, {n_ + 1}", "s_and_b32 s38, s38, 3",
                    "s_mul_i32 s38, s38, s39", "s_add_u32 s38, s38, s36",
                    "buffer_load_dword v31, v23, s[8:11], s38 offen", f"K1_TS{n_}:"]
        for n_, when in enumerate(K1_TW):
            if when < 0:
                for x in touch(n_): a(x)
            else:
                TQ.setdefault(when, []).extend(touch(n_))
    ACC = 32
    def xf(ks): return 80 + (ks % 8) * 4
    def wf(ks, p): return 112 + (ks % 3) * 12 + p * 4
    def reads(ks):
        c, s = ks // 4, ks % 4
        slot = c % 5; st = slot // 2; off = (slot % 2) * SLOT
        out = [f"ds_read_b128 {vr(xf(ks), 4)}, v{8 + 4 * st + s} offset:{off}"]
        for p in range(3):
            for u in range(2):
                out.append(f"ds_read_b64_tr_b16 {vr(wf(ks, p) + 2 * u, 2)}, v{20 + st} offset:{off + 16384 + p * 4096 + s * 1024 + u * 256}")
        return out
    def mfmas(ks):
        X = vr(xf(ks), 4); out = []
        for p in range(3):
            D_ = vr(ACC + 16 * p, 16); W = vr(wf(ks, p), 4)
            A, B = (W, X) if p < 2 else (X, W)
            out.append(MF32(D_, A, B, "0" if ks == 0 else None))
        return out
    def dots(k0, k1_):
        for ks in range(k0, k1_):
            for i in range(4):
                a(f"v_dot2c_f32_bf16 v{24 + i % 2}, s30, v{xf(ks) + i}")
                a(f"v_dot2c_f32_bf16 v{26 + i % 2}, v{xf(ks) + i}, v{xf(ks) + i}")
    a("s_barrier")
    for r in reads(0) + reads(1): a(r)
    for x in TQ.get(0, []): a(x)
    for ks in range(32):
        c, s = ks // 4, ks % 4
        M = mfmas(ks); R = reads(ks + 2) if ks + 2 < 32 else []
        if s == 2:
            dots(max(ks - 3, 0), ks)
            a("s_waitcnt lgkmcnt(0)")
            dots(ks, ks + 1)
            if c == 7: dots(ks + 1, ks + 2)
            a(M[0])
            if c < 7:
                a("s_barrier")
                for x in TQ.get(c + 1, []): a(x)
        else:
            a(f"s_waitcnt lgkmcnt({7 if ks < 31 else 0})")
            a(M[0])
            if ks in (29, 31): a("s_barrier")
        E = []
        if ks >= 30:
            if ks == 30:
                E = ["v_add_f32 v24, v24, v25", "v_add_f32 v26, v26, v27", "v_mov_b32 v25, v24", "v_mov_b32 v27, v26", "s_nop 0",
                     "v_permlane32_swap_b32 v24, v25", "v_permlane32_swap_b32 v26, v27", "v_add_f32 v24, v24, v25", "v_add_f32 v26, v26, v27",
                     f"v_mul_f32 v24, {f32(1/512)}, v24", f"v_mul_f32 v26, {f32(1/512)}, v26", "v_fma_f32 v26, -v24, v24, v26",
                     "v_max_f32 v26, 0, v26", f"v_add_f32 v26, {f32(EPS)}, v26", "v_rsq_f32 v26, v26",
                     "v_mul_f32 v24, -0.5, v24", "ds_write_b32 v7, v26"]
                E = ["s_nop 1"] + E
            else:
                E = [f"ds_read_b64 {vr(CF + 4 * p, 2)}, v6 offset:{p * 256}" for p in range(3)]
                E += [f"ds_read_b128 {vr(164 + 4 * g, 4)}, v1 offset:{g * 32}" for g in range(4)]
                E += ["v_cvt_pk_bf16_f32 v25, v24, v24", "v_lshlrev_b32 v25, 16, v25",
                     "v_sub_f32 v27, v24, v25", "v_cvt_pk_bf16_f32 v148, v25, v27",
                     "v_mov_b32 v149, v148", f"v_mul_f32 v28, {f32(0.25 * LOG2E)}, v26", "v_mov_b32 v27, v26", "v_mov_b32 v29, v28"]
            R = E
            n3 = (len(R) + 2) // 3
        else:
            n3 = 3
        for r in R[:n3]: a(r)
        a(M[1])
        for r in R[n3:2 * n3]: a(r)
        a(M[2])
        for r in R[2 * n3:]: a(r)
    a("s_waitcnt lgkmcnt(4)")
    a(MF32(vr(ACC + 16, 16), vr(CF + 4, 4), vr(148, 4)))
    a(MF32(vr(ACC + 32, 16), vr(148, 4), vr(CF + 8, 4)))
    a(MF32(vr(ACC, 16), vr(CF, 4), vr(148, 4)))
    a("s_waitcnt lgkmcnt(0)")
    a("s_nop 8")
    for p in (1, 2, 0):
        b = ACC + 16 * p; o = 112 + 8 * p
        for i in range(0, 16, 2):
            sc = "v[28:29]" if p == 0 else "v[26:27]" if p == 1 else vr(164 + i, 2)
            if p == 1:
                a(f"v_mul_f32 v{b + i}, v26, v{b + i}")
                a(f"v_mul_f32 v{b + i + 1}, v26, v{b + i + 1}")
            else:
                a(f"v_pk_mul_f32 {vr(b + i, 2)}, {sc}, {vr(b + i, 2)}")
        for i in range(8):
            a(f"v_cvt_pk_bf16_f32 v{o+i}, v{b+2*i}, v{b+2*i+1}")
        if p < 2:
            a(f"buffer_store_dwordx4 {vr(o, 4)}, v2, s[16:19], s{29 if p == 0 else 32} offen sc1")
            a(f"buffer_store_dwordx4 {vr(o + 4, 4)}, v2, s[16:19], s{31 if p == 0 else 33} offen sc1")
        else:
            a(f"buffer_store_dwordx4 {vr(o, 4)}, v3, s[16:19], s34 offen sc1")
            a(f"buffer_store_dwordx4 {vr(o + 4, 4)}, v3, s[16:19], s34 offen offset:512 sc1")
    a.label("K1_JOIN")
    return a

def k234():
    a = k1(); n = NAME + "_kernel"
    Q = 4; NEGM = 16; S = [32, 48]; O = 64; P = 80; KR = 88; VR = 100; W = 128
    SCR = 131072
    K1C = 2 * math.sqrt(2 / math.pi) * LOG2E
    vm = []
    def V(ins, tag=None):
        a(ins); vm.append(tag)
    def vmwait(tag, extra=""):
        idx = max(i for i, t in enumerate(vm) if t == tag)
        a(f"s_waitcnt vmcnt({len(vm) - 1 - idx}){extra}")
    a("s_load_dwordx4 s[40:43], s[0:1], 32")
    a("s_load_dwordx2 s[44:45], s[0:1], 16")
    a("s_load_dwordx2 s[46:47], s[0:1], 0")
    a("s_load_dwordx2 s[48:49], s[0:1], 48")
    a("s_load_dwordx2 s[62:63], s[0:1], 56")
    a("s_lshl_b32 s31, s24, 8")
    a("s_lshl_b32 s30, s23, 2")
    a("s_add_u32 s31, s31, s30")
    a(f"s_add_u32 s31, s31, {FL1}")
    a("s_mov_b32 s22, s35")
    a("s_and_b32 s23, s2, 7")
    a("s_lshl_b32 s23, s23, 2")
    a("s_bfe_u32 s29, s2, 0x20003")
    a("s_add_u32 s23, s23, s29")
    a("s_lshr_b32 s24, s2, 5")
    a("s_lshl_b32 s25, s23, 16")
    a("v_lshlrev_b32 v2, 4, v0")
    a("s_lshl_b32 s26, s22, 10")
    a("s_add_u32 s27, s25, s26")
    a("s_lshl_b32 s28, s24, 13")
    a("s_add_u32 s28, s28, s27")
    a(f"s_add_u32 s27, s27, {KF}")
    a(f"s_add_u32 s30, s27, {VF - KF}")
    srd(a, 8, 58, WS_SIZE)
    a("v_mov_b32 v12, 0")
    a("v_mov_b32 v13, 1")
    def signal(lbl, local=False):
        a("s_cmp_eq_u32 s22, 7")
        a(f"s_cbranch_scc0 {lbl}")
        a("v_lshlrev_b32 v12, 14, v0")
        a(f"s_mov_b64 exec, {(1 << NREP) - 1}")
        if ATOM:
            a(f"s_and_b32 s31, s31, {hex(0xffffff84 if '4' in lbl[-2:] else 0xffffff80)}")
            a("buffer_atomic_add v13, v12, s[8:11], s31 offen sc1")
        else: a("buffer_store_dword v13, v12, s[8:11], s31 offen sc1")
        a("s_mov_b64 exec, -1")
        a.label(lbl)
    def poll(lbl, sreg, nfl, sh=2):
        if ATOM:
            a("s_lshr_b32 s33, s2, 5")
            a(f"s_and_b32 s33, s33, {NREP - 1}")
            a("s_lshl_b32 s33, s33, 14")
            a("v_mov_b32 v1, s33")
            a("s_mov_b32 s33, 0")
            a("s_mov_b64 exec, 1")
            two = PIF == 2 and lbl != "K2_P4A"
            if two:
                a("v_mov_b32 v14, 0")
                a(f"buffer_atomic_add v14, v1, s[8:11], s{sreg} offen sc0 sc1")
                a("s_sleep 5")
            a.label(lbl)
            for cur, nxt in (((14, 15), (15, 14)) if two else ((15, 15),)):
                if POLL_SLEEP: a(f"s_sleep {POLL_SLEEP}")
                a(f"v_mov_b32 v{nxt}, 0")
                a(f"buffer_atomic_add v{nxt}, v1, s[8:11], s{sreg} offen sc0 sc1")
                a("s_add_u32 s33, s33, 1")
                a(f"s_waitcnt vmcnt({1 if two else 0})")
                a(f"v_cmp_eq_u32 vcc, {nfl}, v{cur}")
                a("s_nop 0")
                a(f"s_cbranch_vccnz {lbl}_X")
            a("s_cmp_lt_u32 s33, 0x40000")
            a(f"s_cbranch_scc1 {lbl}")
            a.label(f"{lbl}_X")
            a("s_mov_b64 exec, -1")
            return
        a(f"v_and_b32 v1, {nfl - 1}, v0")
        a(f"v_lshlrev_b32 v1, {sh}, v1")
        a("s_mov_b32 s33, 0")
        if POLL_PRE: a(f"s_sleep {POLL_PRE}")
        a.label(lbl)
        if POLL_SLEEP: a(f"s_sleep {POLL_SLEEP}")
        a(f"buffer_load_dword v15, v1, s[8:11], s{sreg} offen sc1")
        a("s_add_u32 s33, s33, 1")
        a("s_waitcnt vmcnt(0)")
        a("v_cmp_eq_u32 vcc, 1, v15")
        a("s_cmp_gt_u32 s33, 0x40000")
        a(f"s_cbranch_scc1 {lbl}_X")
        a("s_cmp_eq_u64 vcc, -1")
        a(f"s_cbranch_scc0 {lbl}")
        a.label(f"{lbl}_X")
    st(a, 'k1')
    def poll2(lbl, sreg, nfl, sh=2):
        if not POLL2: return poll(lbl, sreg, nfl, sh)
        a(f"v_and_b32 v1, {nfl - 1}, v0")
        a(f"v_lshlrev_b32 v1, {sh}, v1")
        a("s_mov_b32 s33, 0")
        a(f"buffer_load_dword v14, v1, s[8:11], s{sreg} offen sc1")
        a(f"s_sleep {POLL2}")
        a.label(lbl)
        for cur, nxt in ((14, 15), (15, 14)):
            a(f"buffer_load_dword v{nxt}, v1, s[8:11], s{sreg} offen sc1")
            a("s_waitcnt vmcnt(1)")
            a(f"v_cmp_eq_u32 vcc, 1, v{cur}")
            a("s_add_u32 s33, s33, 1")
            a("s_nop 0")
            a("s_cmp_eq_u64 vcc, -1")
            a(f"s_cbranch_scc1 {lbl}_X")
        a("s_cmp_lt_u32 s33, 0x80000")
        a(f"s_cbranch_scc1 {lbl}")
        a.label(f"{lbl}_X")
    a("s_waitcnt vmcnt(0) lgkmcnt(0)")
    a("s_barrier")
    st(a, 'k1b')
    signal("K2_S1")
    def kvdma(c, isv):
        a(f"s_add_u32 m0, s26, {c * 8192 + isv * 65536}")
        a(f"s_add_u32 s29, s27, {c * 8192 + isv * (VF - KF)}")
        V("buffer_load_dwordx4 v2, s[8:11], s29 offen lds", f"c{c}")
    a("s_and_b32 s36, s2, 3")
    a("s_lshl_b32 s36, s36, 2")
    a("s_bfe_u32 s29, s2, 0x20003")
    a("s_add_u32 s36, s36, s29")
    a("s_bfe_u32 s37, s2, 0x10002")
    a("s_lshl_b32 s37, s37, 3")
    a("s_add_u32 s37, s37, s24")
    a("s_min_u32 s38, s22, 6")
    a("s_mul_i32 s39, s37, 7")
    a("s_add_u32 s39, s39, s38")
    a("s_lshl_b32 s54, s39, 5")
    srd(a, 12, 40, 512 * 1792 * 2)
    srd(a, 16, 42, 512 * 1792 * 2)
    a("s_lshl_b32 s55, s22, 12")
    a(f"s_add_u32 s55, s55, {SCR}")
    a("v_lshrrev_b32 v8, 1, v0")
    a("v_mul_u32_u24 v8, 3584, v8")
    a("v_and_b32 v1, 1, v0")
    a("v_lshl_add_u32 v8, v1, 4, v8")
    a("v_lshrrev_b32 v11, 5, v0")
    a("v_bfe_u32 v1, v0, 2, 2")
    a("v_lshl_add_u32 v10, v11, 2, v1")
    a("v_lshlrev_b32 v9, 5, v10")
    a("v_and_b32 v1, 3, v0")
    a("v_lshl_add_u32 v9, v1, 3, v9")
    a("v_bfe_u32 v1, v0, 4, 1")
    a("v_lshl_add_u32 v9, v1, 10, v9")
    a("v_add_u32 v9, s55, v9")
    a("v_and_b32 v12, 15, v0")
    a("v_lshl_add_u32 v12, v11, 4, v12")
    a("v_lshlrev_b32 v12, 4, v12")
    a("v_add_u32 v3, 65536, v12")
    a("s_mov_b32 s34, 0x0000ffff")
    a("s_mov_b32 s35, 0x0000ffff")
    a(f"s_mov_b32 s50, {f32(2.0**60)}")
    for i in range(24):
        a(f"v_mov_b32 v{VR + i}, 0x3f803f80")
    for i in range(16):
        a(f"v_mov_b32 v{O + i}, 0")
    for i in range(4, 8):
        a(f"v_mov_b32 v{P + i}, 0")
    def kread(t): return f"ds_read_b128 {vr(KR + 4 * (t % 3), 4)}, v2 offset:{t * 1024}"
    def vread(t):
        return ["s_mov_b64 exec, s[34:35]"] + \
               [f"ds_read_b128 {vr(VR + 8 * (t % 3) + 4 * j, 4)}, v3 offset:{t * 1024 + j * 512}" for j in range(2)] + \
               ["s_mov_b64 exec, -1"]
    a("s_cmp_eq_u32 s22, 7")
    a("s_cbranch_scc0 K2_B1")
    a("s_lshr_b32 s29, s23, 1")
    a("s_lshl_b32 s29, s29, 8")
    a(f"s_add_u32 s29, s29, {FL1}")
    poll2("K2_P1", 29, 16)
    a.label("K2_B1")
    a("s_mov_b32 m0, s26")
    a("s_barrier")
    st(a, 't1')
    V("buffer_load_dwordx4 v2, s[8:11], s27 offen lds", "c0")
    V(f"buffer_load_dwordx4 {vr(Q, 4)}, v2, s[8:11], s28 offen", "c0")
    a("s_add_u32 m0, s26, 65536")
    a("s_nop 0")
    V("buffer_load_dwordx4 v2, s[8:11], s30 offen lds", "c0")
    kvdma(1, 0); kvdma(1, 1)
    a("v_add_u32 v1, s26, v2")
    a("s_waitcnt vmcnt(3)")
    a(f"ds_read_b128 {vr(KR, 4)}, v1")
    a("s_waitcnt lgkmcnt(0)")
    s0 = S[0]
    a(MF32(vr(s0, 16), vr(KR, 4), vr(Q, 4), "0"))
    vmwait("c0")
    a("s_barrier")
    st(a, 'a0')
    a(kread(0)); a(kread(1))
    for x in vread(0): a(x)
    a(kread(2))
    for x in vread(1): a(x)
    for i in range(5):
        a(f"v_max3_f32 v{NEGM + i}, v{s0+3*i}, v{s0+3*i+1}, v{s0+3*i+2}")
    a(f"v_max3_f32 v14, v{NEGM}, v{NEGM+1}, v{s0+15}")
    a(f"v_max3_f32 v15, v{NEGM+2}, v{NEGM+3}, v{NEGM+4}")
    a("v_max_f32 v14, v14, v15")
    def set_negm():
        a("v_mov_b32 v15, v14")
        a("s_nop 1")
        a("v_permlane32_swap_b32 v14, v15")
        a("v_max_f32 v14, v14, v15")
        for i in range(16):
            a(f"v_sub_f32 v{NEGM + i}, 0, v14")
        a("s_nop 1")
    set_negm()
    a("s_waitcnt lgkmcnt(6)")
    a(MF32(vr(S[0], 16), vr(KR, 4), vr(Q, 4), vr(NEGM, 16)))
    a("s_nop 8")
    T0 = K2_T0
    cnt = [0]
    DMT = [T0 + int(K2_CAD * u) for u in range(18)]
    RDT = [min(DMT[u + 2] - 1, 62 - (15 - u)) for u in range(16)]; DMT = DMT[:16]
    assert len(set(RDT)) == 16 and max(RDT) <= 62, RDT
    if K2_W7S:
        a("s_cmp_eq_u32 s22, 7")
        a("s_cselect_b32 s14, 0, s14")
        a("s_cselect_b32 s18, 0, s18")
    def b(ins):
        if K2_Y:
            if cnt[0] == 0: a("s_setprio 0")
            if cnt[0] == K2_Y: a("s_setprio 1")
            if cnt[0] == K2_Y2: a("s_setprio 2")
        cnt[0] += 1
        a(ins)
    for t in range(64):
        if t % K2_PER == 0: cnt[0] = 0
        Sc = S[t % 2]; Sn = S[(t + 1) % 2]
        E = lambda i: b(f"v_exp_f32 v{Sc+i}, v{Sc+i}")
        C = lambda i: b(f"v_cvt_pk_bf16_f32 v{P+i}, v{Sc+2*i}, v{Sc+2*i+1}")
        if t == 0: st(a, 'a1')
        if t == 16: st(a, 'a16')
        if t == 5: vmwait("c1"); a("s_barrier")
        if t == 13: vmwait("c5"); a("s_barrier")
        if t == 24: vmwait("c7"); a("s_barrier")
        nrd = lambda u: (1 if u + 3 < 64 else 0) + (2 if u + 2 < 64 else 0)
        b(f"s_waitcnt lgkmcnt({nrd(t - 1) if t > 0 else 3})")
        if t < 63:
            b(MF32(vr(Sn, 16), vr(KR + 4 * ((t + 1) % 3), 4), vr(Q, 4), vr(NEGM, 16)))
        for i in range(5): E(i)
        b(MF32(vr(O, 16), vr(VR + 8 * ((t - 1) % 3) + 4, 4), vr(P + 4, 4)))
        u = RDT.index(t) if t in RDT else -1
        if u >= 0:
            vmwait(f"w{u}")
            for s in range(2):
                for e in range(2):
                    a(f"ds_read_b64_tr_b16 {vr(W + 8 * u + 4 * s + 2 * e, 2)}, v9 offset:{(u % 2) * 2048 + s * 512 + e * 256}")
        if t + 3 < 64: b(kread(t + 3))
        if t + 2 < 64:
            for x in vread(t + 2): b(x)
        for i in range(5, 8): E(i)
        for i in range(4): C(i)
        E(8); E(9)
        b(MF32(vr(O, 16), vr(VR + 8 * (t % 3), 4), vr(P, 4)))
        if t < 12: kvdma(2 + t // 2, t % 2)
        u = DMT.index(t) if t in DMT else -1
        if u >= 0:
            a(f"s_add_u32 m0, s55, {(u % 2) * 2048}")
            a(f"s_add_u32 s29, s54, {u * 32 * 3584}")
            V("buffer_load_dwordx4 v8, s[12:15], s29 offen lds", f"w{u}")
            a(f"s_add_u32 m0, s55, {(u % 2) * 2048 + 1024}")
            a("s_nop 0")
            V("buffer_load_dwordx4 v8, s[16:19], s29 offen lds", f"w{u}")
        if t == 40 and K2_TCH:
            srd(a, 96, 48, 1792 * 512 * 2)
            a("s_lshl_b32 s29, s2, 3")
            a("s_add_u32 s29, s29, s22")
            a("s_mul_i32 s29, s29, 896")
            a("v_min_u32 v12, 6, v0")
            a("v_lshlrev_b32 v12, 7, v12")
            V("buffer_load_dword v124, v12, s[96:99], s29 offen", "tch")
        if t == 59 and K2_TCH:
            a("s_lshr_b32 s29, s2, 3")
            a("s_lshl_b32 s29, s29, 14")
            a("s_lshl_b32 s31, s22, 11")
            a("s_add_u32 s29, s29, s31")
            srd(a, 96, 44, 512 * 512 * 2)
            a("v_and_b32 v12, 15, v0")
            a("v_lshlrev_b32 v12, 7, v12")
            V("buffer_load_dword v124, v12, s[96:99], s29 offen", "tch")

        for i in range(10, 16): E(i)
        for i in range(4, 8): C(i)
    a("s_setprio 0")
    a("s_lshl_b32 s29, s24, 3")
    a("s_add_u32 s29, s29, s22")
    a(MF32(vr(O, 16), vr(VR + 8 * (63 % 3) + 4, 4), vr(P + 4, 4)))
    a("s_lshl_b32 s31, s24, 8")
    a("s_lshl_b32 s30, s23, 2")
    a("s_add_u32 s31, s31, s30")
    a(f"s_add_u32 s31, s31, {FL2}")
    a("s_lshl_b32 s29, s29, 15")
    a("s_lshl_b32 s30, s23, 10")
    a("s_add_u32 s29, s29, s30")
    a(f"s_add_u32 s29, s29, {OF}")
    a("v_mov_b32 v12, 0")
    a("v_mov_b32 v13, 1")
    a("s_waitcnt lgkmcnt(0)")
    a("s_nop 0")
    a(f"v_cmp_gt_f32 vcc, s50, v{O + 8}")
    a("s_nop 1")
    a("s_cmp_eq_u64 vcc, -1")
    a("s_cbranch_scc0 K2_FALLBACK")
    a.label("K2_FIN")
    a(f"v_rcp_f32 v14, v{O + 8}")
    a("s_nop 0")
    for i in range(8):
        a(f"v_mul_f32 v{O+i}, v14, v{O+i}")
    for i in range(4):
        a(f"v_cvt_pk_bf16_f32 v{P+i}, v{O+2*i}, v{O+2*i+1}")
    a(f"buffer_store_dwordx4 {vr(P, 4)}, v2, s[8:11], s29 offen sc1")
    st(a, 'att')
    srd(a, 12, 44, 512 * 512 * 2)
    srd(a, 16, 46, 2048 * 512 * 2)
    a("s_and_b32 s25, s22, 1")
    a("s_bfe_u32 s26, s22, 0x10001")
    a("s_lshr_b32 s27, s22, 2")
    a("s_lshl_b32 s28, s24, 1")
    a("s_add_u32 s28, s28, s25")
    a("s_lshl_b32 s30, s23, 1")
    a("s_add_u32 s30, s30, s26")
    a("v_lshrrev_b32 v8, 2, v0")
    a("v_lshlrev_b32 v8, 10, v8")
    a("v_and_b32 v1, 3, v0")
    a("v_lshl_add_u32 v8, v1, 4, v8")
    a("v_lshlrev_b32 v9, 6, v10")
    a("v_lshl_add_u32 v9, v1, 3, v9")
    a("v_bfe_u32 v1, v0, 4, 1")
    a("v_lshl_add_u32 v9, v1, 5, v9")
    a("s_lshl_b32 s32, s25, 15")
    a("s_lshl_b32 s33, s27, 14")
    a("s_add_u32 s32, s32, s33")
    a("v_add_u32 v9, s32, v9")
    a("v_and_b32 v3, 31, v0")
    a("v_lshlrev_b32 v3, 10, v3")
    a("v_lshl_add_u32 v3, v11, 4, v3")
    a("s_lshl_b32 s51, s30, 15")
    a("s_lshl_b32 s33, s28, 6")
    a("s_add_u32 s51, s51, s33")
    RES = 112
    a("s_waitcnt vmcnt(0)")
    a("s_barrier")
    def dstore(ins):
        return [ins + " sc1"]
    signal("K2_S2")
    st(a, 'bA')
    A3 = 16; WO = 32; OB = 96
    def colsum():
        a("s_mov_b32 s56, 0x3f803f80")
        for i in range(4): a(f"v_mov_b32 v{124 + i}, 0")
        for i in range(128):
            a(f"v_dot2c_f32_bf16 v{124 + i % 4}, s56, v{W + i}")
        a("s_nop 2")
        a("v_add_f32 v124, v124, v125")
        a("v_add_f32 v126, v126, v127")
        a("v_add_f32 v126, v124, v126")
        a("v_cvt_pk_bf16_f32 v124, v126, v126")
        a("v_lshlrev_b32 v125, 16, v124")
        a("v_sub_f32 v125, v126, v125")
        a("v_cvt_pk_bf16_f32 v125, v125, v125")
        a("v_mov_b32 v126, 0")
        a("v_mov_b32 v127, 0")
    a("s_cmp_eq_u32 s22, 7")
    a("s_cbranch_scc1 K2_POLL2")
    a("s_cmp_ge_u32 s22, 4")
    a("s_cbranch_scc1 K2_CS")
    a("s_lshl_b32 s33, s26, 14")
    a("s_add_u32 s52, s32, s33")
    a("s_lshl_b32 s53, s26, 18")
    a("s_lshl_b32 s33, s28, 6")
    a("s_add_u32 s53, s53, s33")
    for i in range(16):
        a(f"s_add_u32 m0, s52, {i * 1024}")
        a(f"s_add_u32 s29, s53, {i * 16384}")
        a("buffer_load_dwordx4 v8, s[12:15], s29 offen lds")
    for j in range(2):
        a(f"buffer_load_dwordx4 {vr(RES + 4 * j, 4)}, v3, s[16:19], s51 offen offset:{j * 32}")
    a("s_waitcnt vmcnt(2)")
    a("s_branch K2_B2")
    a.label("K2_CS")
    colsum()
    if O_TCH >= 0:
        a("s_cmp_eq_u32 s22, 6")
        a("s_cbranch_scc0 K2_B2")
        if O_TCH: a(f"s_sleep {O_TCH}")
        a("s_lshl_b32 s29, s23, 16")
        a("s_lshl_b32 s33, s24, 13")
        a("s_add_u32 s29, s29, s33")
        a(f"s_add_u32 s29, s29, {OF}")
        a("v_lshlrev_b32 v1, 7, v0")
        a("buffer_load_dword v14, v1, s[8:11], s29 offen sc1")
    a("s_branch K2_B2")
    a.label("K2_POLL2")
    a("s_lshr_b32 s29, s23, 2")
    a("s_lshl_b32 s29, s29, 8")
    a(f"s_add_u32 s29, s29, {FL2}")
    poll2("K2_P2", 29, 32)
    a.label("K2_B2")
    a("s_lshl_b32 s29, s25, 15")
    a("s_lshr_b32 s33, s22, 1")
    a("s_lshl_b32 s33, s33, 12")
    a("s_add_u32 s29, s29, s33")
    a("s_lshl_b32 s33, s23, 16")
    a("s_add_u32 s33, s33, s29")
    a(f"s_add_u32 s33, s33, {OF}")
    a("s_add_u32 s52, s33, 16384")
    a(f"s_add_u32 m0, s29, {65536 + 16384}")
    a("s_barrier")
    st(a, 't2')
    for i in range(4):
        a(f"buffer_load_dwordx4 v2, s[8:11], s52 offen offset:{i * 1024} {LD_SC} lds")
    a("s_add_u32 m0, s29, 65536")
    a("s_nop 0")
    for i in range(4):
        a(f"buffer_load_dwordx4 v2, s[8:11], s33 offen offset:{i * 1024} {LD_SC} lds")
    for s in range(16):
        for e in range(2):
            a(f"ds_read_b64_tr_b16 {vr(WO + 4 * s + 2 * e, 2)}, v9 offset:{s * 1024 + e * 512}")
    a("s_lshl_b32 s29, s26, 15")
    a("s_lshl_b32 s33, s27, 14")
    a("s_add_u32 s29, s29, s33")
    a("s_add_u32 s29, s29, 65536")
    a("v_add_u32 v8, s29, v2")
    a("s_and_b32 s29, s22, 3")
    a("s_lshl_b32 s29, s29, 12")
    a(f"s_add_u32 s29, s29, {SCR}")
    a("v_add_u32 v9, s29, v2")
    def omm(first, hooks):
        rd = lambda s: f"ds_read_b128 {vr(OB + 4 * (s % 4), 4)}, v8 offset:{s * 1024}"
        for s in range(3): a(rd(s))
        for s in range(16):
            left = 15 - s
            if left >= 3: a(rd(s + 3))
            a(f"s_waitcnt lgkmcnt({min(left, 3) + hooks.get(('x', s), 0)})")
            a(MF32(vr(A3, 16), vr(WO + 4 * s, 4), vr(OB + 4 * (s % 4), 4), first if s == 0 else None))
            for x in hooks.get(s, []): a(x)
    a("s_cmp_lt_u32 s22, 4")
    a("s_cbranch_scc1 K2_O_LO")
    a("s_waitcnt vmcnt(4) lgkmcnt(0)")
    a("s_barrier")
    omm("0", {O_B1: ["s_waitcnt vmcnt(0)", "s_barrier"]})
    st(a, 'om')
    a("s_nop 11")
    for q in range(4):
        a(f"ds_write_b128 v9, {vr(A3 + 4 * q, 4)} offset:{q * 1024}")
    a("s_waitcnt lgkmcnt(0)")
    a("s_barrier")
    a("s_lshr_b32 s31, s23, 1")
    a("s_lshl_b32 s31, s31, 8")
    a("s_and_b32 s33, s23, 1")
    a("s_lshl_b32 s33, s33, 3")
    a("s_add_u32 s33, s33, s24")
    a("s_lshl_b32 s33, s33, 2")
    a("s_add_u32 s31, s31, s33")
    a(f"s_add_u32 s31, s31, {FL3}")
    a("s_lshl_b32 s29, s36, 8")
    a(f"s_add_u32 s29, s29, {FL3}")
    a("s_barrier")
    signal("K2_S3", True)
    if H_TCH >= 0:
        a("s_cmp_lt_u32 s22, 6")
        a("s_cbranch_scc0 K2_NHT")
        if H_TCH: a(f"s_sleep {H_TCH}")
        a("s_lshl_b32 s52, s36, 17")
        a("s_lshl_b32 s33, s24, 14")
        a("s_add_u32 s52, s52, s33")
        a("s_and_b32 s33, s22, 1")
        a("s_lshl_b32 s33, s33, 13")
        a("s_add_u32 s52, s52, s33")
        a(f"s_add_u32 s52, s52, {HF}")
        a("v_lshlrev_b32 v1, 7, v0")
        a("buffer_load_dword v14, v1, s[8:11], s52 offen sc1")
        a.label("K2_NHT")
    a("s_cmp_eq_u32 s22, 7")
    a("s_cbranch_scc0 K2_B3")
    poll2("K2_P3", 29, 16)
    a("s_branch K2_B3")
    a.label("K2_O_LO")
    a("s_waitcnt vmcnt(8)")
    for j in range(2):
        a(f"v_permlane32_swap_b32 v{RES + 4 * j}, v{RES + 4 * j + 2}")
        a(f"v_permlane32_swap_b32 v{RES + 4 * j + 1}, v{RES + 4 * j + 3}")
    a("s_mov_b32 s29, 0xffff0000")
    for i in range(8):
        a(f"v_lshlrev_b32 v{A3 + 2 * i}, 16, v{RES + i}")
        a(f"v_and_b32 v{A3 + 1 + 2 * i}, s29, v{RES + i}")
    a("s_lshl_b32 s52, s30, 15")
    a("s_lshl_b32 s33, s28, 11")
    a("s_add_u32 s52, s52, s33")
    a(f"s_add_u32 s52, s52, {HF}")
    a("s_lshl_b32 s53, s30, 12")
    a("s_lshl_b32 s33, s28, 8")
    a("s_add_u32 s53, s53, s33")
    a(f"s_add_u32 s53, s53, {ST}")
    a("v_lshlrev_b32 v3, 3, v0")
    a("s_mov_b32 s29, 0x3f803f80")
    a("v_mov_b32 v14, 0")
    a("v_mov_b32 v15, 0")
    a("s_waitcnt vmcnt(4) lgkmcnt(0)")
    a("s_barrier")
    a("s_waitcnt vmcnt(0)")
    a("s_barrier")
    if O_PRIO: a("s_setprio 2")
    omm(None, {13: ["s_barrier"] + [f"ds_read_b128 {vr(32 + 4 * q, 4)}, v9 offset:{q * 1024}" for q in range(4)],
               ('x', 14): 4, ('x', 15): 4})
    st(a, 'om')
    a("s_nop 10")
    o = 112
    for q in range(4):
        a(f"s_waitcnt lgkmcnt({3 - q})")
        for i in range(4 * q, 4 * q + 4):
            a(f"v_add_f32 v{A3 + i}, v{A3 + i}, v{32 + i}")
        for i in range(2 * q, 2 * q + 2):
            a(f"v_cvt_pk_bf16_f32 v{o + i}, v{A3 + 2 * i}, v{A3 + 2 * i + 1}")
        if q % 2:
            j = q // 2
            for x in dstore(f"buffer_store_dwordx4 {vr(o + 4 * j, 4)}, v2, s[8:11], s52 offen offset:{j * 1024}"): a(x)
    for i in range(8):
        a(f"v_dot2c_f32_bf16 v14, s29, v{o + i}")
        a(f"v_dot2c_f32_bf16 v15, v{o + i}, v{o + i}")
    a("s_nop 2")
    a("v_mov_b32 v16, v14")
    a("v_mov_b32 v17, v15")
    a("s_nop 0")
    a("v_permlane32_swap_b32 v14, v16")
    a("v_permlane32_swap_b32 v15, v17")
    a("v_add_f32 v14, v14, v16")
    a("v_add_f32 v15, v15, v17")
    a("s_mov_b64 exec, 0xffffffff")
    for x in dstore("buffer_store_dwordx2 v[14:15], v3, s[8:11], s53 offen"): a(x)
    a("s_mov_b64 exec, -1")
    a("s_setprio 0")
    a("s_waitcnt vmcnt(0)")
    a("s_barrier")
    colsum()
    a.label("K2_B3")
    st(a, 'hw')
    a("v_add_u32 v3, 65536, v2")
    a("v_and_b32 v8, 31, v0")
    a("v_lshlrev_b32 v8, 4, v8")
    a(f"v_add_u32 v8, {SCR}, v8")
    a(f"s_mul_i32 s32, s36, {4 * 112 * 1024}")
    a("s_lshl_b32 s33, s39, 10")
    a("s_add_u32 s32, s32, s33")
    a(f"s_add_u32 s32, s32, {GF}")
    a("s_and_b32 s25, s22, 3")
    a(f"s_and_b32 s57, s37, {G_PERM}")
    a("s_lshl_b32 s57, s57, 1")
    a("s_xor_b32 s33, s25, s57")
    a("s_lshl_b32 s30, s36, 2")
    a("s_add_u32 s30, s30, s33")
    a(f"s_mul_i32 s33, s57, {112 * 1024}")
    a(f"s_sub_u32 s56, {2 * 112 * 1024}, s33")
    a("s_add_u32 s56, s56, s32")
    a("s_add_u32 s32, s32, s33")
    CNT = SCR + 2048; SPARE = SCR + 4096; WD = 128; KS = 14
    a(f"v_mov_b32 v4, {CNT}")
    a("v_mov_b32 v5, 1")
    def hread(dst, tt, s):
        return f"ds_read_b128 {vr(dst, 4)}, v{2 + tt // 2} offset:{(tt % 2) * 32768 + s * 1024}"
    def epi(g, z, st, tt):
        u = g + 8; o = []
        ve, a0, a1 = f"v{st+1}", f"v{st+2}", f"v{st+3}"
        o += [f"v_mul_f32 v{z+i}, v{g+i}, v{g+i}" for i in range(8)]
        o += [f"v_fma_f32 v{z+i}, v{z+i}, {a1}, {a0}" for i in range(8)]
        o += [f"v_mul_f32 v{z+i}, v{z+i}, v{g+i}" for i in range(8)]
        for i in range(8):
            o += [f"v_exp_f32 v{z+i}, v{z+i}", f"v_mul_f32 v{g+i}, v{g+i}, v{u+i}"]
        o += [f"v_fma_f32 v{z+i}, v{z+i}, {ve}, {ve}" for i in range(8)]
        o += [f"v_rcp_f32 v{z+i}, v{z+i}" for i in range(8)]
        o += [f"s_add_u32 s29, s{32 if tt < 2 else 56}, {(tt % 2) * 112 * 1024}"]
        o += [f"v_mul_f32 v{g+i}, v{g+i}, v{z+i}" for i in range(8)]
        o += [f"v_cvt_pk_bf16_f32 v{u+i}, v{g+2*i}, v{g+2*i+1}" for i in range(4)]
        o += dstore(f"buffer_store_dwordx4 {vr(u, 4)}, v2, s[8:11], s29 offen")
        return o
    ACC = 16; HB = 32; ZB = 80; SB = 88; TB = 92; NR = 12; STR = [96, 100, 104, 108]
    a(f"v_mov_b32 v{TB + 2}, 0")
    a(f"v_mov_b32 v{TB + 3}, 0")
    def cwait(tag, off, val=7, reg=4):
        a("s_mov_b32 s33, 0")
        a.label(f"K2_WC{tag}")
        a(f"ds_read_b32 v6, v{reg} offset:{off}")
        a("s_add_u32 s33, s33, 1")
        a("s_waitcnt lgkmcnt(0)")
        a(f"v_cmp_eq_u32 vcc, {val}, v6")
        a("s_cmp_gt_u32 s33, 0x100000")
        a(f"s_cbranch_scc1 K2_WX{tag}")
        a(f"s_cbranch_vccnz K2_WX{tag}")
        a("s_sleep 2")
        a(f"s_branch K2_WC{tag}")
        a.label(f"K2_WX{tag}")
    ntile = [0]
    def tile(tt, hooks, pre=None, last=False, late=False):
        a("s_setprio 1")
        rd = lambda ks: hread(HB + 4 * (ks % NR), tt, ks)
        if pre is None:
            for ks in range(NR - 1): a(rd(ks))
        for ks in range(32):
            if ks + NR - 1 < 32: a(rd(ks + NR - 1))
            if ks % 4 == 0:
                a(f"s_waitcnt lgkmcnt({min(ks + NR - 1, 31) - (ks + 3)})")
            a(MF32(vr(ACC, 16), vr(W + 4 * ks, 4), vr(HB + 4 * (ks % NR), 4), "0" if ks == 0 else None))
            if ks == G_P2: a("s_setprio 2")
            if ks == G_EA and tt == 2:
                a("s_waitcnt vmcnt(0)")
                a("s_mov_b64 exec, 1")
                a("ds_add_u32 v4, v5 offset:16")
                a("s_mov_b64 exec, -1")
            if ks == 28 and tt < 3:
                a("s_mov_b64 exec, 1")
                a(f"ds_add_u32 v4, v5 offset:{tt * 4}")
                a("s_mov_b64 exec, -1")
            if not late:
                if ks == 22: a(f"ds_read_b128 {vr(SB, 4)}, v8 offset:{tt * 512}")
                if ks == 29:
                    a(f"v_mov_b32 v{TB}, v{SB}")
                    a(f"v_mov_b32 v{TB + 1}, v{SB}")
            for x in hooks.get(ks, []): a(x)
        if late:
            a(f"ds_read_b128 {vr(SB, 4)}, v8 offset:{tt * 512}")
            a("s_waitcnt lgkmcnt(0)")
            a(f"v_mov_b32 v{TB}, v{SB}")
            a(f"v_mov_b32 v{TB + 1}, v{SB}")
            a("s_nop 1")
        a(MF32(vr(ACC, 16), vr(124, 4), vr(TB, 4)))
        a("s_setprio 0")
        for x in hooks.get("post", []): a(x)
        if tt == 2:
            ntile[0] += 1
            cwait(f"T{ntile[0]}", 24, 1)
        if not last:
            for ks in range(NR - 1): a(hread(HB + 4 * ks, tt + 1, ks))
        else:
            a("s_nop 10")
        for x in epi(ACC, ZB, SB, tt): a(x)
    a("s_lshl_b32 s26, s36, 17")
    a(f"s_add_u32 s26, s26, {HF}")
    a("s_lshl_b32 s33, s57, 15")
    a("s_sub_u32 s27, 65536, s33")
    a("s_add_u32 s27, s27, s26")
    a("s_add_u32 s26, s26, s33")
    a("s_lshl_b32 s28, s22, 12")
    a("s_add_u32 s29, s26, s28")
    a("s_mov_b32 m0, s28")
    a("s_lshl_b32 s52, s30, 12")
    a(f"s_add_u32 s52, s52, {ST}")
    a("s_lshl_b32 s53, s25, 9")
    a("v_add_u32 v9, s53, v8")
    a("v_and_b32 v1, 31, v0")
    a("v_lshlrev_b32 v1, 3, v1")
    a("v_lshl_add_u32 v1, v11, 11, v1")
    a("s_barrier")
    st(a, 't3')
    for i in range(4):
        a(f"buffer_load_dwordx4 v2, s[8:11], s29 offen offset:{i * 1024} {LD_SC} lds")
    a("s_cmp_lt_u32 s22, 4")
    a("s_cbranch_scc1 K2_GA")
    a("s_lshl_b32 s28, s25, 13")
    def hdma(tt, groups, base):
        for g in groups:
            a(f"s_add_u32 m0, {base}, {tt * 32768 + g * 4096}")
            a(f"s_add_u32 s29, s{26 if tt < 2 else 27}, {(tt % 2) * 32768 + g * 4096}")
            if base != "0": a(f"s_add_u32 s29, s29, {base}")
            for i in range(4):
                a(f"buffer_load_dwordx4 v2, s[8:11], s29 offen offset:{i * 1024} {LD_SC} lds")
    for q in range(8):
        a(f"buffer_load_dwordx2 {vr(STR[q // 2] + 2 * (q % 2), 2)}, v1, s[8:11], s52 offen offset:{q * 256} sc1")
    hdma(1, range(1), "s28")
    a("v_mov_b32 v6, 0")
    a("v_mov_b32 v7, 0")
    for q in range(4):
        a(f"ds_write_b64 v4, v[6:7] offset:{q * 8}")
    a("s_waitcnt vmcnt(12) lgkmcnt(0)")
    a("s_barrier")
    st(a, 'g1')
    hdma(1, range(1, 2), "s28")
    r0 = STR[0]
    SQ = []
    for q in range(1, 4):
        SQ += [f"v_add_f32 v{r0 + i}, v{r0 + i}, v{STR[q] + i}" for i in range(4)]
    SQ += [f"v_add_f32 v12, v{r0}, v{r0 + 2}", f"v_add_f32 v13, v{r0 + 1}, v{r0 + 3}",
           "v_mov_b32 v14, v12", "v_mov_b32 v15, v13", "s_nop 0",
           "v_permlane32_swap_b32 v12, v14", "v_permlane32_swap_b32 v13, v15",
           "v_add_f32 v12, v12, v14", "v_add_f32 v13, v13, v15",
           f"v_mul_f32 v12, {f32(-1/512)}, v12", f"v_mul_f32 v13, {f32(1/512)}, v13",
           "v_fma_f32 v13, -v12, v12, v13", "v_max_f32 v13, 0, v13", f"v_add_f32 v{r0 + 1}, {f32(EPS)}, v13",
           f"v_rsq_f32 v14, v{r0 + 1}", "v_cvt_pk_bf16_f32 v15, v12, v12", "v_lshlrev_b32 v15, 16, v15",
           "v_sub_f32 v12, v12, v15", f"v_cvt_pk_bf16_f32 v{r0}, v15, v12",
           f"v_mul_f32 v{r0 + 2}, {f32(-K1C)}, v14", "v_mul_f32 v14, v14, v14", f"v_mul_f32 v14, v14, v{r0 + 2}",
           f"v_mul_f32 v{r0 + 3}, {f32(0.044715)}, v14"]
    a("s_waitcnt vmcnt(8)")
    for x in SQ: a(x)
    a(f"ds_write_b128 v9, {vr(r0, 4)}")
    hdma(2, range(2), "s28")
    a("s_waitcnt lgkmcnt(0)")
    a("s_barrier")
    st(a, 'g2')
    a("s_cmp_eq_u32 s22, 7")
    a("s_cbranch_scc1 K2_W7")
    tile(0, {GB3: ["s_waitcnt vmcnt(0)", "s_barrier"]})
    tile(1, {}, pre=1); tile(2, {}, pre=1)
    tile(3, {}, pre=1, last=True)
    a("s_branch K2_DOWN")
    a.label("K2_W7")
    hdma(3, range(8), "0")
    a("s_waitcnt vmcnt(32)")
    a("s_barrier")
    srd(a, 12, 48, 1792 * 512 * 2)
    a("v_lshrrev_b32 v8, 2, v0")
    a("v_lshlrev_b32 v8, 10, v8")
    a("v_and_b32 v1, 3, v0")
    a("v_lshl_add_u32 v8, v1, 4, v8")
    a("v_lshlrev_b32 v9, 6, v10")
    a("v_lshl_add_u32 v9, v1, 3, v9")
    a("v_bfe_u32 v1, v0, 4, 1")
    a("v_lshl_add_u32 v9, v1, 5, v9")
    a(f"v_add_u32 v9, {SPARE}, v9")
    a("s_lshl_b32 s26, s24, 7")
    ko = lambda s_: s_ + (7 if s_ >= 7 else 0)
    a("s_and_b32 s52, s23, 1")
    a(f"s_mul_i32 s27, s52, {7 * 16384}")
    a("s_add_u32 s27, s27, s26")
    for j in range(28):
        a(f"s_mov_b32 m0, {SPARE + j * 1024}")
        a(f"s_add_u32 s29, s27, {(84 + ko(j // 2)) * 16384 + (1 ^ (j % 2)) * 64}")
        a("buffer_load_dwordx4 v8, s[12:15], s29 offen lds")
    a("s_waitcnt vmcnt(28)")
    a("ds_write_b32 v4, v5 offset:24")
    a("s_waitcnt vmcnt(0)")
    for j in range(28):
        for e in range(2):
            a(f"ds_read_b64_tr_b16 {vr(WD + 4 * j + 2 * e, 2)}, v9 offset:{j * 1024 + e * 512}")
    a("s_waitcnt lgkmcnt(0)")
    a("s_xor_b32 s53, s52, 1")
    a(f"s_mul_i32 s53, s53, {7 * 16384}")
    a("s_add_u32 s53, s53, s26")
    def sdma(w, j, lds):
        a(f"s_mov_b32 m0, {lds}")
        a(f"s_add_u32 s29, s{53 if w < 4 else 27}, {(28 * (w % 4) + ko(j // 2)) * 16384 + ((w % 2) ^ (j % 2)) * 64}")
        a("buffer_load_dwordx4 v8, s[12:15], s29 offen lds")
    for w in range(4):
        for j in range(7): sdma(w, j, SPARE + w * 7168 + j * 1024)
    for r in range(3):
        if r == 2:
            a("s_lshl_b32 s31, s36, 8")
            a("s_lshl_b32 s33, s37, 2")
            a("s_add_u32 s31, s31, s33")
            a(f"s_add_u32 s31, s31, {FL4 + 128}")
            a("v_mov_b32 v12, 0")
            a("v_mov_b32 v13, 1")
            cwait("A", 16)
            signal("K2_S4A")
        cwait(r, r * 4)
        for w in range(4): sdma(w, 7 + r, r * 32768 + 28672 + w * 1024)
        for j in range(28): sdma(4 + r, j, r * 32768 + j * 1024)
        if r == 2:
            a("s_waitcnt vmcnt(28)")
            a("ds_write_b32 v4, v5 offset:20")
    a("s_branch K2_DOWN")
    a.label("K2_GA")
    a("s_waitcnt vmcnt(0)")
    a("s_barrier")
    st(a, 'g1')
    tile(0, {31: ["s_barrier"]}, late=True, last=True)
    st(a, 'g2')
    a("s_barrier")
    tile(1, {}); tile(2, {}, pre=1)
    tile(3, {}, pre=1, last=True)
    a.label("K2_DOWN")
    st(a, 'gu')
    AC5 = 16; GS = [80, 88, 96, 104, 240, 248, 120]; NG = len(GS)
    srd(a, 12, 48, 1792 * 512 * 2)
    srd(a, 16, 62, 2048 * 512 * 2)
    a("s_lshl_b32 s31, s36, 8")
    a("s_lshl_b32 s33, s37, 2")
    a("s_add_u32 s31, s31, s33")
    a(f"s_add_u32 s31, s31, {FL4}")
    a("s_and_b32 s26, s22, 1")
    a("s_bfe_u32 s27, s22, 0x10001")
    a("s_lshl_b32 s28, s24, 1")
    a("s_add_u32 s28, s28, s26")
    a("s_lshl_b32 s30, s23, 1")
    a("s_add_u32 s30, s30, s27")
    a("s_lshr_b32 s33, s22, 2")
    a("s_xor_b32 s33, s33, s23")
    a("s_and_b32 s33, s33, 1")
    a("s_xor_b32 s57, s33, 1")
    a("s_lshl_b32 s33, s25, 2")
    a("s_add_u32 s33, s33, s57")
    a("s_mul_i32 s29, s33, 7168")
    a(f"s_mul_i32 s52, s30, {112 * 1024}")
    a("s_add_u32 s52, s52, s29")
    a(f"s_add_u32 s52, s52, {GF}")
    a("s_xor_b32 s53, s30, 1")
    a(f"s_mul_i32 s53, s53, {112 * 1024}")
    a("s_add_u32 s53, s53, s29")
    a(f"s_add_u32 s53, s53, {GF}")
    a(f"s_mul_i32 s29, s33, {7 * 16384}")
    a("s_lshl_b32 s54, s28, 6")
    a("s_xor_b32 s55, s54, 64")
    a("s_add_u32 s54, s54, s29")
    a("s_add_u32 s55, s55, s29")
    a("s_lshl_b32 s32, s22, 12")
    a("v_lshrrev_b32 v8, 2, v0")
    a("v_lshlrev_b32 v8, 10, v8")
    a("v_and_b32 v1, 3, v0")
    a("v_lshl_add_u32 v8, v1, 4, v8")
    a("v_lshlrev_b32 v9, 6, v10")
    a("v_lshl_add_u32 v9, v1, 3, v9")
    a("v_bfe_u32 v1, v0, 4, 1")
    a("v_lshl_add_u32 v9, v1, 5, v9")
    a("v_mov_b32 v12, 0")
    a("v_mov_b32 v13, 1")
    a("v_and_b32 v3, 31, v0")
    a("v_lshlrev_b32 v3, 10, v3")
    a("v_lshl_add_u32 v3, v11, 4, v3")
    def trd(j, reg, off):
        return [f"ds_read_b64_tr_b16 {vr(WD + 4 * j + 2 * e, 2)}, v{reg} offset:{off + e * 512}" for e in range(2)]
    def wdma(j, sreg, off):
        a(f"s_add_u32 m0, s{sreg}, {off}")
        a(f"s_add_u32 s29, s{54 + j % 2}, {ko(j // 2) * 16384}")
        V("buffer_load_dwordx4 v8, s[12:15], s29 offen lds", "wd")
    def dumpaddr():
        for t in range(4):
            a(f"s_xor_b32 s29, s25, {t}")
            a("s_lshl_b32 s29, s29, 15")
            a("s_add_u32 s29, s29, s32")
            a(f"v_add_u32 v{4 + t}, s29, v2")
    gb = [0]
    def gload(s):
        k = ko(s) * 1024
        if k - gb[0] > 3072:
            a(f"s_add_u32 s52, s52, {k - gb[0]}")
            a(f"s_add_u32 s53, s53, {k - gb[0]}")
            gb[0] = k
        for i in range(2):
            V(f"buffer_load_dwordx4 {vr(GS[s % NG] + 4 * i, 4)}, v2, s[8:11], s{52 + i} offen offset:{k - gb[0]} sc1", f"g{s}")
    def kloop(hooks, fills):
        issued = NG; fq = []
        for s in range(KS):
            for x in hooks.get(s, []):
                x() if callable(x) else a(x)
            fq += fills.get(s, [])
            vmwait(f"g{s}")
            g = GS[s % NG]; w = WD + 8 * s
            B0, B1, A0, A1 = vr(g, 4), vr(g + 4, 4), vr(w, 4), vr(w + 4, 4)
            C = "0" if s == 0 else None
            for d_, A_, B_ in ((AC5 + 32, A0, B1), (AC5 + 16, A1, B0), (AC5 + 48, A1, B1), (AC5, A0, B0)):
                a(MF32(vr(d_, 16), A_, B_, C))
                for _ in range(5):
                    if fq: a(fq.pop(0))
            if issued < KS:
                gload(issued); issued += 1
        assert not fq
    def dump(ts):
        for t in ts:
            for q in range(4):
                a(f"ds_write_b128 v{4 + t}, {vr(AC5 + 16 * t + 4 * q, 4)} offset:{q * 1024}")
    a("s_cmp_lt_u32 s22, 4")
    a("s_cbranch_scc1 K2_DLO")
    a("s_lshl_b32 s29, s25, 15")
    a("v_add_u32 v9, s29, v9")
    a(f"v_mov_b32 v14, {CNT}")
    dumpaddr()
    a("s_waitcnt vmcnt(0)")
    a("s_barrier")
    signal("K2_S4", True)
    st(a, 'z0')
    del vm[:]; gb[0] = 0
    for s in range(NG): gload(s)
    a("s_cmp_eq_u32 s22, 7")
    a("s_cbranch_scc1 K2_D7")
    for j in range(28):
        for x in trd(j, 9, j * 1024): a(x)
    a.label("K2_D7")
    a("s_waitcnt lgkmcnt(0)")
    a("s_mov_b64 exec, 1")
    a("ds_add_u32 v14, v13 offset:28")
    a("s_mov_b64 exec, -1")
    if D_PRIO: a("s_setprio 2")
    kloop({D_ZS: ["s_barrier"]} if D_ZS >= 0 else {}, {})
    a("v_mov_b32 v15, v6")
    cwait("Z", 28, 8, 14)
    a("v_mov_b32 v6, v15")
    st(a, 't4'); st(a, 'dk'); st(a, 'db'); st(a, 'ds')
    a("s_nop 8")
    dump((2, 1, 3, 0))
    a("s_waitcnt lgkmcnt(0)")
    a("s_barrier")
    stamp_end(a, 0, 7, 8)
    a("s_endpgm")
    a.label("K2_DLO")
    del vm[:]; gb[0] = 0
    a("s_mul_i32 s26, s25, 7168")
    a(f"s_add_u32 s26, s26, {SPARE}")
    a("s_lshl_b32 s27, s25, 10")
    a("s_add_u32 s27, s27, 28672")
    a("s_lshl_b32 s28, s25, 13")
    a("s_add_u32 s28, s28, 98304")
    a("v_add_u32 v10, s26, v9")
    a("v_add_u32 v14, s27, v9")
    a("v_add_u32 v15, 65536, v14")
    a("v_add_u32 v9, s28, v9")
    SL = [(26, k * 1024, 10, k * 1024) for k in range(7)] + [(27, 0, 14, 0), (27, 32768, 14, 32768), (27, 65536, 15, 0)]
    cwait("R", 20, 1)
    for k in range(10):
        for x in trd(k, SL[k][2], SL[k][3]): a(x)
    a("s_waitcnt vmcnt(0) lgkmcnt(0)")
    for k in range(10): wdma(10 + k, SL[k][0], SL[k][1])
    a("s_cmp_eq_u32 s22, 3")
    a("s_cbranch_scc0 K2_NPA")
    a("v_mov_b32 v16, v15")
    a("s_lshr_b32 s29, s23, 1")
    a("s_lshl_b32 s29, s29, 8")
    a("s_xor_b32 s30, s57, 1")
    a("s_lshl_b32 s33, s30, 2")
    a("s_add_u32 s29, s29, s33")
    a(f"s_add_u32 s29, s29, {FL4 + 128}")
    poll("K2_P4A", 29, 8, 3)
    a("v_mov_b32 v15, v16")
    if G_ET:
        a("s_lshl_b32 s33, s24, 1")
        a("s_add_u32 s29, s30, s33")
        a("s_mul_i32 s29, s29, 7168")
        a(f"s_mul_i32 s33, s23, {224 * 1024}")
        a("s_add_u32 s29, s29, s33")
        a(f"s_add_u32 s29, s29, {GF}")
        a("v_min_u32 v1, 55, v0")
        a("v_lshlrev_b32 v1, 7, v1")
        a("buffer_load_dword v17, v1, s[8:11], s29 offen sc1")
        a(f"s_add_u32 s29, s29, {112 * 1024}")
        a("buffer_load_dword v17, v1, s[8:11], s29 offen sc1")
    a.label("K2_NPA")
    dumpaddr()
    a("s_barrier")
    st(a, 'z0')
    for k in range(8): wdma(20 + k, 28, k * 1024)
    a("s_waitcnt vmcnt(8)")
    for k in range(10):
        for x in trd(10 + k, SL[k][2], SL[k][3]): a(x)
    a("s_lshl_b32 s29, s25, 15")
    a("v_add_u32 v8, s29, v2")
    a(f"v_mov_b32 v12, {CNT + 12}")
    a("s_waitcnt vmcnt(0)")
    for k in range(8):
        for x in trd(20 + k, 9, k * 1024): a(x)
    for t in range(1, 4):
        a(f"s_xor_b32 s33, s25, {t}")
        a("s_lshl_b32 s33, s33, 12")
        a(f"v_add_u32 v{(10, 11, 4)[t - 1]}, s33, v8")
    a("s_waitcnt lgkmcnt(0)")
    a("s_mov_b64 exec, 1")
    a("ds_add_u32 v12, v13 offset:16")
    a("s_mov_b64 exec, -1")
    if D_ZS >= 0: a("s_barrier")
    a("s_cmp_eq_u32 s22, 0")
    a("s_cbranch_scc0 K2_DSP")
    a("s_lshr_b32 s29, s23, 1")
    a("s_lshl_b32 s29, s29, 8")
    a("s_lshl_b32 s33, s57, 2")
    a("s_add_u32 s29, s29, s33")
    a(f"s_add_u32 s29, s29, {FL4}")
    poll2("K2_P4", 29, 8, 3)
    a("ds_write_b32 v12, v13")
    a("s_branch K2_DGO")
    a.label("K2_DSP")
    a("s_mov_b32 s33, 0")
    a.label("K2_DSL")
    a("s_sleep 1")
    a("ds_read_b32 v15, v12")
    a("s_add_u32 s33, s33, 1")
    a("s_waitcnt lgkmcnt(0)")
    a("v_cmp_eq_u32 vcc, 1, v15")
    a("s_cmp_gt_u32 s33, 0x400000")
    a("s_cbranch_scc1 K2_DGO")
    a("s_cbranch_vccz K2_DSL")
    a.label("K2_DGO")
    st(a, 't4')
    del vm[:]
    for s in range(NG): gload(s)
    a("s_mov_b32 s56, 0xffff0000")
    a("s_waitcnt lgkmcnt(0)")
    F1 = [f"ds_read_b128 {vr(WD + 16 * p_ + 4 * q, 4)}, v8 offset:{16384 + p_ * 4096 + q * 1024}" for p_ in range(4) for q in range(4)]
    F2 = [f"v_add_f32 v{WD + i}, v{WD + i}, v{WD + 16 + i}" for i in range(16)]
    F2 += [f"v_add_f32 v{WD + 32 + i}, v{WD + 32 + i}, v{WD + 48 + i}" for i in range(16)]
    F2 += [f"v_add_f32 v{WD + i}, v{WD + i}, v{WD + 32 + i}" for i in range(16)]
    for i in range(8):
        F2 += [f"v_lshlrev_b32 v{WD + 16 + 2 * i}, 16, v{112 + i}", f"v_and_b32 v{WD + 17 + 2 * i}, s56, v{112 + i}"]
    F2 += [f"v_add_f32 v{WD + i}, v{WD + i}, v{WD + 16 + i}" for i in range(16)]
    kloop({8: ["s_barrier"], 10: ["s_waitcnt lgkmcnt(0)"]}, {8: F1, 10: F2}) if not D_LATE else kloop({9: ["s_barrier"], 10: ["s_waitcnt lgkmcnt(0)"]}, {9: F1, 10: F2})
    st(a, 'dk')
    dump((2, 1, 3))
    for i in range(16):
        a(f"v_add_f32 v{AC5 + i}, v{AC5 + i}, v{WD + i}")
    a("s_waitcnt lgkmcnt(0)")
    a("s_barrier")
    st(a, 'db')
    for t in range(3):
        for q in range(4):
            a(f"ds_read_b128 {vr(WD + 16 * t + 4 * q, 4)}, v{(10, 11, 4)[t]} offset:{q * 1024}")
    for t in range(3):
        a(f"s_waitcnt lgkmcnt({8 - 4 * t})")
        for i in range(0, 16, 2):
            a(f"v_pk_add_f32 {vr(AC5 + i, 2)}, {vr(AC5 + i, 2)}, {vr(WD + 16 * t + i, 2)}")
    o = AC5 + 16
    for i in range(8):
        a(f"v_cvt_pk_bf16_f32 v{o + i}, v{AC5 + 2 * i}, v{AC5 + 2 * i + 1}")
    a("s_nop 0")
    for j in range(2):
        a(f"v_permlane32_swap_b32 v{o + 4 * j}, v{o + 4 * j + 2}")
        a(f"v_permlane32_swap_b32 v{o + 4 * j + 1}, v{o + 4 * j + 3}")
    for j in range(2):
        a(f"buffer_store_dwordx4 {vr(o + 4 * j, 4)}, v3, s[16:19], s51 offen offset:{j * 32} {OUT_SC}")
    st(a, 'ds')
    stamp_end(a, 0, 7, 8)
    a("s_endpgm")
    a.label("K2_FALLBACK")
    a("v_mov_b32 v1, v2")
    a("v_mov_b32 v14, 0xff800000")
    a("s_mov_b32 s33, 0")
    a.label("K2_FB1")
    a(f"ds_read_b128 {vr(KR, 4)}, v1")
    a("v_add_u32 v1, 1024, v1")
    a("s_waitcnt lgkmcnt(0)")
    a(MF32(vr(s0, 16), vr(KR, 4), vr(Q, 4), "0"))
    a("s_nop 11")
    for i in range(0, 16, 2):
        a(f"v_max3_f32 v14, v14, v{s0+i}, v{s0+i+1}")
    a("s_add_u32 s33, s33, 1")
    a("s_cmp_lt_u32 s33, 64")
    a("s_cbranch_scc1 K2_FB1")
    set_negm()
    for i in range(16):
        a(f"v_mov_b32 v{O + i}, 0")
    a("v_mov_b32 v1, v2")
    a("s_mov_b32 s33, 0")
    a.label("K2_FB2")
    a(f"ds_read_b128 {vr(KR, 4)}, v1")
    a("s_mov_b64 exec, s[34:35]")
    a(f"ds_read_b128 {vr(VR, 4)}, v3")
    a(f"ds_read_b128 {vr(VR + 4, 4)}, v3 offset:512")
    a("s_mov_b64 exec, -1")
    a("v_add_u32 v1, 1024, v1")
    a("v_add_u32 v3, 1024, v3")
    a("s_waitcnt lgkmcnt(0)")
    a(MF32(vr(s0, 16), vr(KR, 4), vr(Q, 4), vr(NEGM, 16)))
    a("s_nop 11")
    for i in range(16): a(f"v_exp_f32 v{s0+i}, v{s0+i}")
    a("s_nop 0")
    for i in range(8): a(f"v_cvt_pk_bf16_f32 v{P+i}, v{s0+2*i}, v{s0+2*i+1}")
    a("s_nop 1")
    a(MF32(vr(O, 16), vr(VR, 4), vr(P, 4)))
    a(MF32(vr(O, 16), vr(VR + 4, 4), vr(P + 4, 4)))
    a("s_add_u32 s33, s33, 1")
    a("s_cmp_lt_u32 s33, 64")
    a("s_cbranch_scc1 K2_FB2")
    a("s_nop 11")
    a("s_branch K2_FIN")
    a.label("K2_END")
    a("s_endpgm")
    return n, a, kd(n, 256, 256), (256, 512, 163840)

def k5():
    a = Asm(); n = "k3_down_kernel"
    NS = 112; KS = 28; DEPTH = 8
    kernel_head(a, n)
    ACC = 16; GB = 80; WB = 144; RES = 160
    RED = 65536
    a("s_cmp_ge_u32 s2, 256")
    a("s_cbranch_scc1 K5_END")
    stamp(a, 0)
    if DBGK1:
        a("s_memrealtime s[64:65]")
        a("s_memtime s[66:67]")
    a("s_load_dwordx2 s[4:5], s[0:1], 72")
    a("s_load_dwordx4 s[40:43], s[0:1], 48")
    a("v_lshrrev_b32 v1, 6, v0")
    a("v_and_b32 v0, 63, v0")
    a("v_readfirstlane_b32 s22, v1")
    a("v_lshlrev_b32 v2, 4, v0")
    a("s_and_b32 s23, s2, 7")
    a("s_lshl_b32 s23, s23, 2")
    a("s_bfe_u32 s29, s2, 0x20003")
    a("s_add_u32 s23, s23, s29")
    a("s_lshr_b32 s24, s2, 5")
    a("s_and_b32 s25, s22, 1")
    a("s_lshr_b32 s26, s22, 1")
    a("s_lshl_b32 s27, s24, 1")
    a("s_add_u32 s27, s27, s25")
    a("s_lshl_b32 s28, s23, 1")
    a("s_add_u32 s28, s28, s26")
    a(f"s_mul_i32 s29, s22, {KS * 1024}")
    a(f"s_mul_i32 s32, s28, {NS * 1024}")
    a("s_add_u32 s32, s32, s29")
    a(f"s_add_u32 s32, s32, {GF}")
    a("s_xor_b32 s33, s28, 1")
    a(f"s_mul_i32 s33, s33, {NS * 1024}")
    a("s_add_u32 s33, s33, s29")
    a(f"s_add_u32 s33, s33, {GF}")
    a(f"s_mul_i32 s29, s22, {KS * 16384}")
    a("s_lshl_b32 s30, s27, 6")
    a("s_xor_b32 s31, s30, 64")
    a("s_add_u32 s30, s30, s29")
    a("s_add_u32 s31, s31, s29")
    a("s_lshl_b32 s36, s22, 14")
    a("v_lshrrev_b32 v8, 2, v0")
    a("v_lshlrev_b32 v8, 10, v8")
    a("v_and_b32 v1, 3, v0")
    a("v_lshl_add_u32 v8, v1, 4, v8")
    a("s_waitcnt lgkmcnt(0)")
    srd(a, 8, 4, WS_SIZE)
    srd(a, 16, 40, 1792 * 512 * 2)
    srd(a, 12, 42, 2048 * 512 * 2)
    def loads(s):
        b = GB + 8 * (s % DEPTH)
        if s % 4 == 0 and s > 0:
            a("s_add_u32 s32, s32, 4096")
            a("s_add_u32 s33, s33, 4096")
        for i in range(2):
            a(f"s_add_u32 m0, s36, {(s % DEPTH) * 2048 + i * 1024}")
            a(f"s_add_u32 s29, s{30 + i}, {s * 16384}")
            a("buffer_load_dwordx4 v8, s[16:19], s29 offen lds")
        for i in range(2):
            a(f"buffer_load_dwordx4 {vr(b + 4 * i, 4)}, v2, s[8:11], s{32 + i} offen offset:{(s % 4) * 1024}")
    for s in range(DEPTH - 1):
        loads(s)
    a("v_lshrrev_b32 v4, 5, v0")
    a("v_bfe_u32 v1, v0, 2, 2")
    a("v_lshl_add_u32 v9, v4, 2, v1")
    a("v_lshlrev_b32 v9, 6, v9")
    a("v_and_b32 v1, 3, v0")
    a("v_lshl_add_u32 v9, v1, 3, v9")
    a("v_bfe_u32 v1, v0, 4, 1")
    a("v_lshl_add_u32 v9, v1, 5, v9")
    a("v_add_u32 v9, s36, v9")
    a("v_and_b32 v3, 31, v0")
    a("v_lshlrev_b32 v3, 10, v3")
    a("v_lshl_add_u32 v3, v4, 4, v3")
    a("s_lshl_b32 s34, s28, 15")
    a("s_lshl_b32 s35, s27, 6")
    a("s_add_u32 s34, s34, s35")
    a("s_lshl_b32 s35, s28, 15")
    a("s_lshl_b32 s37, s27, 11")
    a("s_add_u32 s35, s35, s37")
    a(f"s_add_u32 s35, s35, {HF}")
    for t in range(1, 4):
        a(f"s_xor_b32 s29, s22, {t}")
        a("s_mul_i32 s29, s29, 12288")
        a(f"s_add_u32 s29, s29, {RED}")
        a(f"v_add_u32 v{4 + t}, s29, v2")
    a("s_mul_i32 s29, s22, 12288")
    a(f"s_add_u32 s29, s29, {RED}")
    a("v_add_u32 v4, s29, v2")
    def trreads(s):
        for i in range(2):
            for e in range(2):
                a(f"ds_read_b64_tr_b16 {vr(WB + 8 * (s % 2) + 4 * i + 2 * e, 2)}, v9 offset:{(s % DEPTH) * 2048 + i * 1024 + e * 512}")
    def mfmas(s):
        g = GB + 8 * (s % DEPTH); w = WB + 8 * (s % 2)
        B0, B1, A0, A1 = vr(g, 4), vr(g + 4, 4), vr(w, 4), vr(w + 4, 4)
        C = "0" if s == 0 else None
        a(MF32(vr(ACC, 16), A0, B0, C))
        a(MF32(vr(ACC + 32, 16), A0, B1, C))
        a(MF32(vr(ACC + 16, 16), A1, B0, C))
        a(MF32(vr(ACC + 48, 16), A1, B1, C))
    issued = DEPTH - 1; res = 0
    a(f"s_waitcnt vmcnt({(issued - 1) * 4})")
    st(a, 't1')
    trreads(0)
    for s in range(KS):
        if issued < KS:
            loads(issued); issued += 1
            if issued == KS:
                for j in range(2):
                    a(f"buffer_load_dwordx4 {vr(RES + 4 * j, 4)}, v2, s[8:11], s35 offen offset:{j * 1024}")
                res = 2
        if s + 1 < KS:
            a(f"s_waitcnt vmcnt({(issued - s - 2) * 4 + res})")
            trreads(s + 1)
            a("s_waitcnt lgkmcnt(4)")
        else:
            a("s_waitcnt lgkmcnt(0)")
        mfmas(s)
    st(a, 'att')
    a("s_waitcnt vmcnt(0)")
    a("s_mov_b32 s29, 0xffff0000")
    for i in range(8):
        a(f"v_lshlrev_b32 v{RES + 8 + 2 * i}, 16, v{RES + i}")
        a(f"v_and_b32 v{RES + 9 + 2 * i}, s29, v{RES + i}")
    for t in (2, 1, 3):
        for q in range(4):
            a(f"ds_write_b128 v{4 + t}, {vr(ACC + 16 * t + 4 * q, 4)} offset:{(t - 1) * 4096 + q * 1024}")
    for i in range(16):
        a(f"v_add_f32 v{ACC + i}, v{ACC + i}, v{RES + 8 + i}")
    a("s_waitcnt lgkmcnt(0)")
    a("s_barrier")
    for t in range(3):
        for q in range(4):
            a(f"ds_read_b128 {vr(GB + 16 * t + 4 * q, 4)}, v4 offset:{t * 4096 + q * 1024}")
    for t in range(3):
        a(f"s_waitcnt lgkmcnt({8 - 4 * t})")
        for i in range(0, 16, 2):
            a(f"v_pk_add_f32 {vr(ACC + i, 2)}, {vr(ACC + i, 2)}, {vr(GB + 16 * t + i, 2)}")
    o = ACC + 16
    for i in range(8):
        a(f"v_cvt_pk_bf16_f32 v{o + i}, v{ACC + 2 * i}, v{ACC + 2 * i + 1}")
    a("s_nop 0")
    for j in range(2):
        a(f"v_permlane32_swap_b32 v{o + 4 * j}, v{o + 4 * j + 2}")
        a(f"v_permlane32_swap_b32 v{o + 4 * j + 1}, v{o + 4 * j + 3}")
    for j in range(2):
        a(f"buffer_store_dwordx4 {vr(o + 4 * j, 4)}, v3, s[12:15], s34 offen offset:{j * 32}")
    stamp_end(a, 2, 3, 8)
    if DBGK1:
        a("s_waitcnt vmcnt(0)")
        a("s_memrealtime s[68:69]")
        a("s_memtime s[70:71]")
        a("s_load_dwordx2 s[72:73], s[0:1], 64")
        a("s_waitcnt lgkmcnt(0)")
        srd(a, 76, 72, 256)
        a("s_sub_u32 s70, s70, s66")
        a("s_cmp_lg_u32 s2, 0")
        a("s_cbranch_scc1 K5_END")
        a(f"s_mov_b32 s74, {DBGOFF}")
        a("v_mov_b32 v0, 0")
        a("buffer_load_dwordx4 v[4:7], v0, s[8:11], s74 offen")
        a("buffer_load_dwordx4 v[8:11], v0, s[8:11], s74 offen offset:16")
        a("s_waitcnt vmcnt(0)")
        a("v_sub_u32 v5, v5, v4")
        a("v_sub_u32 v8, v8, v4")
        a("v_sub_u32 v9, v9, v4")
        a("v_sub_u32 v12, s64, v4")
        a("v_sub_u32 v13, s68, v4")
        a("v_mov_b32 v14, s70")
        a("v_mov_b32 v15, 0")
        a("buffer_store_dwordx4 v[4:7], v0, s[76:79], 0 offen")
        a("buffer_store_dwordx4 v[8:11], v0, s[76:79], 0 offen offset:16")
        a("buffer_store_dwordx4 v[12:15], v0, s[76:79], 0 offen offset:32")
    a.label("K5_END")
    a("s_endpgm")
    return n, a, kd(n, 192, 192), (256, 256, RED + 49152)

def main(out):
    ks = [k234()]
    hdr = open("cdna_kernels/" + NAME + ".s.ref").read().split("\n")
    hdr = [l for l in hdr if l.startswith(";") and "@launch" not in l and "Override" not in l and "grid=ceil" not in l]
    txt = "\n".join(hdr) + "\n"
    for n, a, d, (g, b, lds) in ks:
        txt += f"; @launch {'kernel=' + n + ' ' if LIST else ''}grid=({g},1,1) block=({b},1,1) lds={lds}\n"
    txt += '.amdgcn_target "amdgcn-amd-amdhsa--gfx950"\n.text\n'
    bad = 0
    for ki, (n, a, d, _) in enumerate(ks):
        fl = ST_FLAGS[ki]
        if fl:
            a.lines = [l + " " + fl if ("buffer_store_dwordx" in l and "sc1" not in l) else l for l in a.lines]
        bad += check_hazards(a.lines, n)
        txt += a.text()
    txt += "CODE_END:\n"
    txt += '.section .rodata,"a"\n'
    for n, a, d, _ in ks:
        txt += ".p2align 6\n" + d
    open(out, "w").write(txt)
    print("hazards:", bad)

if __name__ == "__main__":
    if "stamp" in sys.argv: STAMP = True
    for arg in sys.argv[2:]:
        if "=" in arg:
            k_, v_ = arg.split("=", 1)
            globals()[k_] = eval(v_)
    main(sys.argv[1] if len(sys.argv) > 1 else "cdna_kernels/" + NAME + ".s")
```

```python
import re

class Asm:
    def __init__(self):
        self.lines = []
    def __call__(self, s):
        for ln in s.split("\n"):
            ln = ln.strip()
            if ln:
                self.lines.append("    " + ln)
    def label(self, l):
        self.lines.append(l + ":")
    def raw(self, s):
        self.lines.append(s)
    def comment(self, s):
        self.lines.append("    ; " + s)
    def text(self):
        return "\n".join(self.lines) + "\n"

def vr(b, n=1, f="v"):
    return f"{f}{b}" if n == 1 else f"{f}[{b}:{b+n-1}]"
def ar(b, n=1):
    return vr(b, n, "a")
def sr(b, n=1):
    return vr(b, n, "s")

_REG = re.compile(r"\b([vas])(?:(\d+)|\[(\d+):(\d+)\])")
def regs_of(op):
    out = set()
    for m in _REG.finditer(op):
        f = m.group(1)
        if m.group(2) is not None:
            out.add((f, int(m.group(2))))
        else:
            for i in range(int(m.group(3)), int(m.group(4)) + 1):
                out.add((f, i))
    if re.search(r"\bvcc\b", op):
        out.add(("s", "vcc"))
    if re.search(r"\bm0\b", op):
        out.add(("s", "m0"))
    if re.search(r"\bexec\b", op):
        out.add(("s", "exec"))
    return out

TRANS = ("v_exp_f32", "v_log_f32", "v_rcp_f32", "v_rsq_f32", "v_sqrt_f32", "v_sin_f32", "v_cos_f32")

class Ins:
    def __init__(self, text, idx):
        self.text = text; self.idx = idx
        t = text.split(";")[0].strip()
        parts = t.split(None, 1)
        self.mn = parts[0]
        ops = parts[1] if len(parts) > 1 else ""
        self.ops = [o.strip() for o in re.split(r",(?![^\[]*\])", ops)] if ops else []
        mn = self.mn
        self.is_mfma = mn.startswith(("v_mfma", "v_smfmac"))
        self.is_valu = mn.startswith("v_") and not self.is_mfma
        self.is_trans = any(mn.startswith(x) for x in TRANS)
        self.is_dot = mn.startswith("v_dot")
        self.is_salu = mn.startswith("s_")
        self.is_ds = mn.startswith("ds_")
        self.is_vmem = mn.startswith(("buffer_", "global_", "flat_"))
        self.is_perm = mn.startswith("v_permlane")
        self.is_dpp = "_dpp" in mn or " row_" in t or "quad_perm" in t
        self.states = 1
        if mn == "s_nop":
            self.states = int(self.ops[0], 0) + 1
        self.w = set(); self.r = set()
        self.A = self.B = self.C = set()
        o = self.ops
        if self.is_mfma:
            self.w = regs_of(o[0]); self.A = regs_of(o[1]); self.B = regs_of(o[2]); self.C = regs_of(o[3])
            if mn.startswith("v_smfmac"):
                self.B = self.B | self.C; self.C = set(self.w)
            self.r = self.A | self.B | self.C
            self.passes = 8 if ("32x32x16" in mn or "32x32x32" in mn) else 4 if "16x16x32" in mn else None
            assert self.passes, mn
        elif self.is_valu:
            if self.is_perm:
                self.w = regs_of(o[0]) | regs_of(o[1]); self.r = set(self.w)
            elif mn.startswith("v_cmp"):
                self.w = regs_of(o[0]); self.r = set().union(*[regs_of(x) for x in o[1:]])
            elif mn.startswith(("v_add_co", "v_sub_co", "v_addc_co", "v_subb_co")):
                self.w = regs_of(o[0]) | regs_of(o[1]); self.r = set().union(*[regs_of(x) for x in o[2:]])
            else:
                self.w = regs_of(o[0]); self.r = set().union(*[regs_of(x) for x in o[1:]]) if len(o) > 1 else set()
                if mn.startswith(("v_fmac", "v_dot2c", "v_pk_fmac")) or self.is_dpp:
                    self.r |= self.w
        elif self.is_ds:
            if mn.startswith(("ds_read", "ds_bpermute", "ds_permute", "ds_swizzle")):
                self.w = regs_of(o[0]); self.r = set().union(*[regs_of(x) for x in o[1:]])
            else:
                self.r = set().union(*[regs_of(x) for x in o])
        elif self.is_vmem:
            self.lds = bool(re.search(r"\blds\b", t)) or "load_lds" in mn
            if "load" in mn and not self.lds:
                self.w = regs_of(o[0]); self.r = set().union(*[regs_of(x) for x in o[1:]])
            else:
                self.r = set().union(*[regs_of(x) for x in o]) if o else set()
                if self.lds: self.r.add(("s", "m0"))
            self.wide_store = ("store" in mn and ("x4" in mn or "x3" in mn))
            if self.wide_store:
                self.sdata = regs_of(o[0]) if mn.startswith("buffer") else regs_of(o[1])
        elif self.is_salu:
            if mn.startswith(("s_cmp", "s_cbranch", "s_branch", "s_waitcnt", "s_barrier", "s_nop", "s_endpgm", "s_setprio", "s_sleep", "s_bitcmp")):
                self.r = set().union(*[regs_of(x) for x in o]) if o else set()
            else:
                self.w = regs_of(o[0]); self.r = set().union(*[regs_of(x) for x in o[1:]]) if len(o) > 1 else set()

def need(p, c):
    n = 0
    vw = {x for x in p.w if x[0] in "va"}
    sw = {x for x in p.w if x[0] == "s"}
    if p.is_valu:
        if c.is_mfma and (vw & c.r): n = max(n, 2)
        if p.is_trans and c.is_valu and not c.is_trans and (vw & c.r): n = max(n, 1)
        if p.is_trans and (c.is_vmem or c.is_ds) and (vw & c.r): n = max(n, 1)
        if c.is_perm and (vw & c.r): n = max(n, 2)
        if c.is_dpp and (vw & c.r): n = max(n, 2)
        if c.mn.startswith(("v_readlane", "v_readfirstlane")) and (vw & c.r): n = max(n, 1)
        if sw:
            if c.is_vmem and (sw & c.r): n = max(n, 5)
            if c.is_valu and (sw & c.r): n = max(n, 2)
            if c.mn.startswith(("v_readlane", "v_writelane")) and (sw & c.r): n = max(n, 4)
            if c.is_salu and (sw & c.r): n = max(n, 1)
        if p.is_dot:
            if (c.is_valu or c.is_mfma or c.is_vmem or c.is_ds) and (vw & (c.r | c.w)):
                same = c.mn == p.mn
                if same:
                    ab = set().union(*[regs_of(x) for x in c.ops[1:3]])
                    if vw & ab: n = max(n, 3)
                else:
                    n = max(n, 3)
    if p.is_mfma:
        k = {4: 0, 8: 1}[p.passes]
        if c.is_mfma:
            if vw & (c.A | c.B): n = max(n, (8, 12)[k])
            if vw & c.C:
                if not (c.C == vw and c.passes == p.passes): n = max(n, (6, 10)[k])
            if (vw & c.w) and not (c.C == vw): n = max(n, (6, 10)[k])
        elif c.is_valu or c.is_vmem or c.is_ds:
            if vw & (c.r | c.w): n = max(n, (8, 12)[k])
            if c.is_valu and (p.C & c.w): n = max(n, (3, 7)[k])
    if p.is_salu and ("s", "m0") in p.w and c.is_vmem and getattr(c, "lds", False): n = max(n, 1)
    if p.is_vmem and getattr(p, "wide_store", False):
        if (p.sdata & c.w):
            n = max(n, 2 if c.is_valu else 1)
    return n

def check_hazards(lines, name="", window=24):
    ins = []
    for i, l in enumerate(lines):
        t = l.split(";")[0].strip()
        if not t or t.endswith(":") or t.startswith("."):
            continue
        ins.append(Ins(t, i))
    bad = 0
    for j, c in enumerate(ins):
        dist = 0
        for i in range(j - 1, max(-1, j - window - 1), -1):
            p = ins[i]
            if p.mn in ("s_branch", "s_endpgm", "s_setpc_b64"): break
            n = need(p, c)
            if n > dist:
                print(f"HAZARD[{name}] need {n} have {dist}:\n    P: {p.text}\n    C: {c.text}")
                bad += 1
            dist += p.states
            if dist >= 20: break
    return bad
```

```python
import sys, math, struct
from asmlib import *

NAME = "sequential_preLN__mha_block__geglu_ffn__prompt"

QF, KF, VF, OF, HF = 0x000000, 0x200000, 0x400000, 0x600000, 0x800000
ST  = 0xA00000
CSF = 0xA80000
WOF = 0xB00000
WGF = 0xC00000
WDF = 0x1000000
GF  = 0x1200000
WS_SIZE = 0x10000000
FL1 = 0xB02800
FL2 = 0xB00000
FL3 = 0xB00800
FL4 = 0xB01800

def f32(x):
    return "0x%08x" % struct.unpack("<I", struct.pack("<f", x))[0]

LOG2E = 1.4426950408889634
EPS = 1e-5

def srd(a, s, base, size):
    a(f"s_mov_b32 s{s}, s{base}")
    a(f"s_mov_b32 s{s+1}, s{base+1}")
    a(f"s_mov_b32 s{s+2}, {hex(size)}")
    a(f"s_mov_b32 s{s+3}, 0x00020000")

def kernel_head(a, name):
    a.raw(f".globl {name}")
    a.raw(".p2align 8")
    a.raw(f".type {name},@function")
    a.raw(f"{name}:")

def kd(name, nvgpr, accum, nsgpr=100):
    return f""".amdhsa_kernel {name}
  .amdhsa_next_free_vgpr {nvgpr}
  .amdhsa_next_free_sgpr {nsgpr}
  .amdhsa_accum_offset {accum}
  .amdhsa_group_segment_fixed_size 0
  .amdhsa_kernarg_size 80
  .amdhsa_user_sgpr_count 2
  .amdhsa_user_sgpr_kernarg_segment_ptr 1
  .amdhsa_system_sgpr_workgroup_id_x 1
.end_amdhsa_kernel
"""

STAMP = False
XSLOT = None
C1_LATE = 0
KV_SC = 'sc1'
K2_E = (2, 7, 12)
ONES2 = 1
KV_ROT = 0
G_NOP = 0
PREOWN = 0
K1_PRE = 0
K1_XS = None
UNSAFE = 0
NT_W = ''
NT_X = ''
NT_G = ''
K2_CAD = 3
K2_W7S = 1
K1_CHIP = 0
K1_CF = ''
K2_T0 = 12
O_TCH = -1
H_TCH = -1
OUT_SC = ''
D_PRIO = 1
D_LATE = 0
O_PRIO = 0
ATOM = 1
NREP = 1
PIF = 1
POLL_PRE = 0
O_B1 = 10
POLL2 = 0
D_ZS = 4
W3_TOUCH = 0
G_EA = 12
G_PERM = 1
G_ET = 1
D_ROT = 1
G_TOUCH = 0
SMAP = ['t1', 'att', 't2', 't3', 'gu', 't4']
K2_Y2 = 30
K2_PER = 4
PIN = None
PINN = []
LIST = 1
FASTL2 = 1
D_Y = 6
DBGK1 = 0
LD_SC = 'sc1'
GSTAMP = 0
G_P2 = 8
GB3 = 20
GA3 = 0
POLL_SLEEP = 0
B_FILL = 4
K2_TCH = 1
G_SC = 'sc1'
CODE_TOUCH = 0
K1_ROT = 1
K1_TW = [-1, 0, 1]
K4_SL = 26
K2_S3 = 11
K2_WD = 0
K1_D = 1
K4_D = 2
K4_XB = 12
K4_TOUCH = 0
K2_S2 = 4
K1_TOUCH = 1
ST_FLAGS = ['', '', '', '', '']
K2_Y = 6
SIDE_SC = 'sc1'
K1_UP = 14
K4_UP = 22
DBGOFF = 0x2000000
def st(a, name):
    if name in SMAP: stamp(a, SMAP.index(name) + 1)
def stamp(a, i):
    if PIN:
        if i == 0: a("s_memrealtime s[64:65]")
        if i == PIN[0]:
            PINN.append(0); L = f"PIN{len(PINN)}"
            if len(PIN) > 2:
                a(f"s_cmp_lg_u32 s2, {PIN[2]}")
                a(f"s_cbranch_scc1 {L}X")
            a.label(L)
            a("s_memrealtime s[66:67]")
            a("s_waitcnt lgkmcnt(0)")
            a("s_sub_u32 s66, s66, s64")
            a(f"s_cmp_lt_u32 s66, {PIN[1]}")
            a(f"s_cbranch_scc1 {L}")
            a.label(L + "X")
    if not STAMP: return
    a(f"s_memrealtime s[{64 + 4 * i}:{65 + 4 * i}]")
    a(f"s_memtime s[{66 + 4 * i}:{67 + 4 * i}]")
    if i != 0:
        a("s_waitcnt lgkmcnt(0)")
def stamp_end(a, kidx, n, srdreg, wavereg=22):
    if PIN: stamp(a, n)
    if not STAMP: return
    a("s_waitcnt vmcnt(0)")
    stamp(a, n)
    a("s_lshl_b32 s60, s2, 3")
    a(f"s_add_u32 s60, s60, s{wavereg}")
    a("s_lshl_b32 s60, s60, 6")
    a(f"s_add_u32 s60, s60, {DBGOFF + kidx * 0x40000}")
    a("v_mov_b32 v0, 0")
    for j in range(2 * n + 2):
        a(f"v_mov_b32 v1, s{64 + 2 * j}")
        a(f"buffer_store_dword v1, v0, s[{srdreg}:{srdreg+3}], s60 offen offset:{4 * j}")

def MF32(d, A, B, C=None):
    C = d if C is None else C
    return f"v_mfma_f32_32x32x16_bf16 {d}, {A}, {B}, {C}"

def halfsum(a, v, t):
    a(f"v_mov_b32 v{t}, v{v}")
    a("s_nop 1")
    a(f"v_permlane32_swap_b32 v{v}, v{t}")
    a(f"v_add_f32 v{v}, v{v}, v{t}")


def k1():
    a = Asm(); n = NAME + "_kernel"
    kernel_head(a, n)
    SLOT = 28672; SCR = 5 * SLOT; SCR2 = SCR + 1536; SCR3 = SCR2 + 512
    D = K1_D
    a("s_cmp_ge_u32 s2, 256")
    a("s_cbranch_scc1 K2_END")
    stamp(a, 0)
    if DBGK1:
        a("s_memrealtime s[64:65]")
        a("s_memtime s[66:67]")
    a("s_load_dwordx4 s[4:7], s[0:1], 0")
    a("s_load_dwordx4 s[56:59], s[0:1], 64")
    a("v_lshrrev_b32 v1, 6, v0")
    a("v_and_b32 v0, 63, v0")
    a("v_readfirstlane_b32 s35, v1")
    a("s_and_b32 s23, s2, 3")
    a("s_lshl_b32 s23, s23, 2")
    a("s_bfe_u32 s29, s2, 0x20003")
    a("s_add_u32 s23, s23, s29")
    a("s_bfe_u32 s24, s2, 0x10002")
    a("s_lshl_b32 s24, s24, 3")
    a("s_lshr_b32 s29, s2, 5")
    a("s_add_u32 s24, s24, s29")
    a("s_and_b32 s22, s35, 3")
    a("s_lshl_b32 s27, s22, 12")
    a("s_lshl_b32 s40, s2, 1")
    a("s_and_b32 s29, s2, 4")
    a("s_add_u32 s40, s40, s29")
    if not K1_ROT: a("s_mov_b32 s40, 0")
    a("s_cmp_lt_u32 s35, 4")
    a("s_cbranch_scc1 K1_MM")
    a("s_lshl_b32 s25, s23, 17")
    a("s_lshl_b32 s29, s22, 15")
    a("s_add_u32 s25, s25, s29")
    a("s_mul_i32 s26, s22, 49152")
    a("s_lshl_b32 s29, s24, 6")
    a("s_add_u32 s26, s26, s29")
    a("s_lshl_b32 s28, s22, 10")
    a("s_add_u32 s28, s28, 16384")
    a("s_mov_b32 s30, 0x3f803f80")
    a("v_lshrrev_b32 v5, 3, v0")
    a("v_lshlrev_b32 v2, 10, v5")
    a("v_and_b32 v6, 7, v0")
    a("v_lshrrev_b32 v7, 4, v0")
    a("v_xor_b32 v6, v6, v7")
    a("v_lshl_add_u32 v2, v6, 4, v2")
    a("v_xor_b32 v3, 64, v2")
    a("v_add_u32 v3, 8192, v3")
    a("v_lshrrev_b32 v5, 2, v0")
    a("v_mul_u32_u24 v4, 3072, v5")
    a("v_and_b32 v6, 3, v0")
    a("v_lshl_add_u32 v4, v6, 4, v4")
    a("s_waitcnt lgkmcnt(0)")
    srd(a, 8, 4, 2048 * 512 * 2)
    srd(a, 12, 6, 512 * 1536 * 2)
    def dma(c):
        slot = (c % 5) * SLOT
        a(f"s_add_u32 s41, s40, {c}")
        a("s_and_b32 s41, s41, 7")
        a("s_lshl_b32 s42, s41, 7")
        a("s_add_u32 s42, s42, s25")
        a(f"s_mul_i32 s41, s41, {64 * 3072}")
        a("s_add_u32 s41, s41, s26")
        for p in range(3):
            a(f"s_add_u32 m0, s28, {slot + p * 4096}")
            a(f"s_add_u32 s29, s41, {p * 1024}")
            a(f"buffer_load_dwordx4 v4, s[12:15], s29 offen {NT_W} lds")
        for i in range(4):
            a(f"s_add_u32 m0, s27, {slot + i * 1024}")
            a(f"s_add_u32 s29, s42, {(i // 2) * 16384}")
            a(f"buffer_load_dwordx4 v{2 + (i % 2)}, s[8:11], s29 offen {NT_X} lds")
    if K1_PRE:
        a("s_lshr_b32 s37, s2, 3")
        a("s_lshr_b32 s38, s40, 1")
        a("s_and_b32 s38, s38, 3")
        a("s_cmp_lt_u32 s22, 2")
        a("s_cbranch_scc1 K1_PW")
        a("s_and_b32 s36, s2, 3")
        a("s_lshl_b32 s36, s36, 19")
        a("s_lshl_b32 s39, s37, 14")
        a("s_add_u32 s36, s36, s39")
        a("s_and_b32 s39, s22, 1")
        a("s_lshl_b32 s39, s39, 13")
        a("s_add_u32 s36, s36, s39")
        a("s_lshl_b32 s39, s38, 8")
        a("s_add_u32 s36, s36, s39")
        a("v_bfe_u32 v23, v0, 1, 3")
        a("v_lshlrev_b32 v23, 10, v23")
        a("v_and_b32 v24, 1, v0")
        a("v_lshl_add_u32 v23, v24, 7, v23")
        a("s_mov_b64 exec, 0xffff")
        a("buffer_load_dword v31, v23, s[8:11], s36 offen")
        a("s_mov_b64 exec, -1")
        a("s_branch K1_PD")
        a.label("K1_PW")
        a("s_mul_i32 s36, s37, 12288")
        a("s_mul_i32 s39, s22, 6144")
        a("s_add_u32 s36, s36, s39")
        a("s_bfe_u32 s39, s2, 0x10002")
        a("s_lshl_b32 s39, s39, 9")
        a("s_add_u32 s36, s36, s39")
        a(f"s_mul_i32 s39, s38, {128 * 3072}")
        a("s_add_u32 s36, s36, s39")
        a("v_bfe_u32 v23, v0, 4, 1")
        a("v_mul_u32_u24 v23, 3072, v23")
        a("v_bfe_u32 v24, v0, 2, 2")
        a("v_min_u32 v24, 2, v24")
        a("v_lshl_add_u32 v23, v24, 10, v23")
        a("v_and_b32 v24, 3, v0")
        a("v_lshl_add_u32 v23, v24, 7, v23")
        a("s_mov_b64 exec, 0xffffffff")
        a("buffer_load_dword v31, v23, s[12:15], s36 offen")
        a("s_mov_b64 exec, -1")
        a.label("K1_PD")
        a("s_waitcnt vmcnt(0)")
    for c in range(D + 1):
        dma(c)
    def rdaddr():
        a("v_and_b32 v5, 31, v0")
        a("v_lshrrev_b32 v6, 5, v0")
        a("v_bfe_u32 v7, v0, 1, 3")
        a("v_xor_b32 v7, v7, v6")
        a("v_lshlrev_b32 v5, 7, v5")
        a("v_add_u32 v5, s27, v5")
        for s in range(4):
            a(f"v_xor_b32 v1, {2 * s}, v7")
            a(f"v_lshl_add_u32 v{8 + s}, v1, 4, v5")
            a(f"v_add_u32 v{12 + s}, {2 * SLOT}, v{8 + s}")
            a(f"v_add_u32 v{16 + s}, {4 * SLOT}, v{8 + s}")
        a("v_bfe_u32 v1, v0, 2, 2")
        a("v_lshl_add_u32 v1, v6, 3, v1")
        a("v_lshlrev_b32 v20, 6, v1")
        a("v_bfe_u32 v1, v0, 4, 1")
        a("v_lshl_add_u32 v20, v1, 5, v20")
        a("v_and_b32 v1, 3, v0")
        a("v_lshl_add_u32 v20, v1, 3, v20")
    rdaddr()
    a("s_lshl_b32 s29, s22, 10")
    a("v_add_u32 v20, s29, v20")
    a(f"v_add_u32 v21, {2 * SLOT}, v20")
    a(f"v_add_u32 v22, {4 * SLOT}, v20")
    for i in range(28, 31):
        a(f"v_mov_b32 v{i}, 0")
    WB = 48
    for c in range(8):
        slot = c % 5; st = slot // 2; off = (slot % 2) * SLOT
        a(f"s_waitcnt vmcnt({7 * (min(c + D, 7) - c)})")
        a("s_barrier")
        for p in range(3):
            for u in range(2):
                a(f"ds_read_b64_tr_b16 {vr(WB + 4 * p + 2 * u, 2)}, v{20 + st} offset:{off + 16384 + p * 4096 + u * 256}")
        if c + D + 1 < 8:
            dma(c + D + 1)
        a("s_waitcnt lgkmcnt(0)")
        for i in range(4):
            for p in range(3):
                a(f"v_dot2c_f32_bf16 v{28 + p}, s30, v{WB + 4 * p + i}")
    a("v_and_b32 v5, 31, v0")
    a("v_lshlrev_b32 v6, 4, v5")
    a("s_lshl_b32 s29, s22, 2")
    a(f"s_add_u32 s29, s29, {SCR}")
    a("v_add_u32 v7, s29, v6")
    for p in range(3):
        halfsum(a, 28 + p, 1)
        a(f"ds_write_b32 v7, v{28 + p} offset:{p * 512}")
    a("s_min_u32 s29, s22, 2")
    a("s_lshl_b32 s31, s29, 9")
    a(f"s_add_u32 s31, s31, {SCR}")
    a("v_add_u32 v6, s31, v6")
    a("s_lshl_b32 s31, s29, 8")
    a(f"s_add_u32 s31, s31, {SCR3}")
    a("v_lshlrev_b32 v7, 3, v5")
    a("v_add_u32 v7, s31, v7")
    a("s_waitcnt lgkmcnt(0)")
    a("s_barrier")
    a("ds_read_b128 v[32:35], v6")
    a("s_waitcnt lgkmcnt(0)")
    a("v_add_f32 v32, v32, v33")
    a("v_add_f32 v34, v34, v35")
    a("v_add_f32 v34, v32, v34")
    a("v_cvt_pk_bf16_f32 v32, v34, v34")
    a("v_lshlrev_b32 v33, 16, v32")
    a("v_sub_f32 v33, v34, v33")
    a("v_cvt_pk_bf16_f32 v33, v33, v33")
    a("ds_write_b64 v7, v[32:33]")
    a("s_waitcnt lgkmcnt(0)")
    a("s_barrier")
    a("s_cmp_eq_u32 s35, 7")
    a("s_cbranch_scc0 K1_JOIN")
    srd(a, 16, 56, 256)
    a("v_mov_b32 v12, 0")
    a("s_mov_b32 s33, 0")
    a.label("K1_PZ")
    a("buffer_load_dword v15, v12, s[16:19], 0 offen sc1")
    a("s_add_u32 s33, s33, 1")
    a("s_waitcnt vmcnt(0)")
    a("v_cmp_eq_u32 vcc, 1, v15")
    a("s_cmp_gt_u32 s33, 0x40000")
    a("s_cbranch_scc1 K1_JOIN")
    a("s_cbranch_vccz K1_PZ")
    a("s_branch K1_JOIN")
    a.label("K1_MM")
    rdaddr()
    if CODE_TOUCH:
        a("s_getpc_b64 s[44:45]")
        a.label("K1_PC")
        a(f"s_sub_u32 s44, s44, K1_PC-{n}")
        a("s_subb_u32 s45, s45, 0")
        a("s_lshl_b32 s46, s22, 13")
        a("v_lshlrev_b32 v23, 7, v0")
        a("v_add_u32 v23, s46, v23")
        for i in range(CODE_TOUCH):
            a(f"v_min_u32 v24, CODE_END-{n}-4, v23")
            a("global_load_dword v31, v24, s[44:45]")
            a("v_add_u32 v23, 32768, v23")
    a(f"v_add_u32 v21, {2 * SLOT}, v20")
    a(f"v_add_u32 v22, {4 * SLOT}, v20")
    a("s_mov_b32 s30, 0x3f803f80")
    for i in range(24, 28):
        a(f"v_mov_b32 v{i}, 0")
    a("v_and_b32 v5, 31, v0")
    a("v_lshlrev_b32 v6, 3, v5")
    a(f"v_add_u32 v6, {SCR3}, v6")
    CF = 152
    for p in range(3):
        a(f"v_mov_b32 v{CF + 4 * p + 2}, 0")
        a(f"v_mov_b32 v{CF + 4 * p + 3}, 0")
    a("v_mov_b32 v150, 0")
    a("v_mov_b32 v151, 0")
    a("s_lshl_b32 s29, s22, 7")
    a(f"s_add_u32 s29, s29, {SCR2}")
    a("v_lshlrev_b32 v7, 2, v5")
    a("v_add_u32 v7, s29, v7")
    a("v_lshrrev_b32 v1, 5, v0")
    a("v_lshlrev_b32 v1, 4, v1")
    a("v_add_u32 v1, s29, v1")
    a("s_lshl_b32 s29, s23, 2")
    a("s_add_u32 s29, s29, s22")
    a("s_lshl_b32 s29, s29, 10")
    a("s_lshl_b32 s31, s24, 17")
    a("s_add_u32 s29, s29, s31")
    a("s_add_u32 s31, s29, 65536")
    a(f"s_add_u32 s32, s29, {KF}")
    a(f"s_add_u32 s33, s29, {KF + 65536}")
    a(f"s_add_u32 s34, s29, {VF}")
    a("v_lshlrev_b32 v2, 4, v0")
    a("v_bfe_u32 v3, v0, 4, 1")
    a("v_lshlrev_b32 v3, 16, v3")
    a("v_lshrrev_b32 v4, 5, v0")
    a("v_lshl_add_u32 v3, v4, 8, v3")
    a("v_and_b32 v4, 15, v0")
    a("v_lshl_add_u32 v3, v4, 4, v3")
    a("s_waitcnt lgkmcnt(0)")
    srd(a, 16, 58, WS_SIZE)
    a("s_lshl_b32 s36, s2, 2")
    a("s_add_u32 s36, s36, s22")
    a("s_cmp_lg_u32 s36, 3")
    a("s_cbranch_scc1 K1_NZ")
    a(f"s_mov_b32 s36, {FL2}")
    a("v_lshlrev_b32 v28, 7, v0")
    for i_ in range(2 * NREP):
        a("buffer_store_dwordx2 v[24:25], v28, s[16:19], s36 offen sc1")
        a("s_add_u32 s36, s36, 8192")
    srd(a, 8, 56, 256)
    a("v_mov_b32 v28, 1")
    a("s_waitcnt vmcnt(0)")
    a("buffer_store_dword v28, v24, s[8:11], 0 offen sc1")
    a.label("K1_NZ")
    TQ = {}
    if K1_CHIP:
        a("s_cmp_lt_u32 s22, 2")
        a("s_cbranch_scc1 K1_NC")
        srd(a, 8, 4, 2048 * 512 * 2)
        a("s_lshl_b32 s36, s2, 13")
        a("v_lshlrev_b32 v23, 7, v0")
        a("s_cmp_eq_u32 s22, 2")
        a("s_cbranch_scc1 K1_C2")
        srd(a, 8, 6, 512 * 1536 * 2)
        a("s_mul_i32 s36, s2, 6144")
        a("v_min_u32 v23, 47, v0")
        a("v_lshlrev_b32 v23, 7, v23")
        a.label("K1_C2")
        a(f"buffer_load_dword v30, v23, s[8:11], s36 offen {K1_CF}")
        a.label("K1_NC")
    if K1_TOUCH:
        srd(a, 8, 4, 2048 * 512 * 2)
        a("s_lshr_b32 s37, s2, 3")
        a("v_and_b32 v28, 3, v0")
        a("s_mov_b32 s39, 256")
        a("s_and_b32 s36, s2, 3")
        a("s_lshl_b32 s36, s36, 19")
        a("s_lshl_b32 s38, s37, 14")
        a("s_add_u32 s36, s36, s38")
        a("v_bfe_u32 v23, v0, 1, 4")
        a("v_lshlrev_b32 v23, 10, v23")
        a("v_and_b32 v29, 1, v0")
        a("v_lshl_add_u32 v23, v29, 7, v23")
        a("s_cmp_lg_u32 s22, 0")
        a("s_cbranch_scc1 K1_TD")
        srd(a, 8, 6, 512 * 1536 * 2)
        a(f"s_mov_b32 s39, {128 * 3072}")
        a("s_mul_i32 s36, s37, 12288")
        a("s_bfe_u32 s38, s2, 0x10002")
        a("s_lshl_b32 s38, s38, 9")
        a("s_add_u32 s36, s36, s38")
        a("v_lshrrev_b32 v23, 4, v0")
        a("v_mul_u32_u24 v23, 3072, v23")
        a("v_bfe_u32 v30, v0, 2, 2")
        a("v_min_u32 v30, 2, v30")
        a("v_lshl_add_u32 v23, v30, 10, v23")
        a("v_lshl_add_u32 v23, v28, 7, v23")
        a.label("K1_TD")
        def touch(n_):
            return ["s_cmp_ge_u32 s22, 2", f"s_cbranch_scc1 K1_TS{n_}",
                    "s_lshr_b32 s38, s40, 1", f"s_add_u32 s38, s38, {n_ + 1}", "s_and_b32 s38, s38, 3",
                    "s_mul_i32 s38, s38, s39", "s_add_u32 s38, s38, s36",
                    "buffer_load_dword v31, v23, s[8:11], s38 offen", f"K1_TS{n_}:"]
        for n_, when in enumerate(K1_TW):
            if when < 0:
                for x in touch(n_): a(x)
            else:
                TQ.setdefault(when, []).extend(touch(n_))
    XS = 184
    def xs_loads(r):
        return [f"buffer_load_dwordx4 {vr(XS + 4 * i, 4)}, v180, s[92:95], s{90 + r} offen offset:{i * 64}" for i in range(16)]
    def xs_dots(r):
        o = ["s_waitcnt vmcnt(0)"]
        for i in range(64):
            o += [f"v_dot2c_f32_bf16 v{24 + i % 2}, s30, v{XS + i}", f"v_dot2c_f32_bf16 v{26 + i % 2}, v{XS + i}, v{XS + i}"]
        o += ["s_nop 2", "v_add_f32 v24, v24, v25", "v_add_f32 v25, v26, v27", "s_nop 1",
              "v_add_f32_dpp v24, v24, v24 quad_perm:[1,0,3,2] row_mask:0xf bank_mask:0xf",
              "v_add_f32_dpp v25, v25, v25 quad_perm:[1,0,3,2] row_mask:0xf bank_mask:0xf", "s_nop 0",
              "v_add_f32_dpp v24, v24, v24 quad_perm:[2,3,0,1] row_mask:0xf bank_mask:0xf",
              "v_add_f32_dpp v25, v25, v25 quad_perm:[2,3,0,1] row_mask:0xf bank_mask:0xf",
              f"ds_write_b64 v181, v[24:25] offset:{r * 128}", "s_nop 0"]
        o += [f"v_mov_b32 v{i}, 0" for i in range(24, 28)]
        return o
    if K1_XS:
        srd(a, 92, 4, 2048 * 512 * 2)
        a("s_lshl_b32 s90, s23, 17")
        a("s_lshl_b32 s91, s22, 15")
        a("s_add_u32 s90, s90, s91")
        a("s_add_u32 s91, s90, 16384")
        a("v_lshrrev_b32 v181, 2, v0")
        a("v_lshlrev_b32 v180, 10, v181")
        a("v_and_b32 v182, 3, v0")
        a("v_lshl_add_u32 v180, v182, 4, v180")
        a("s_lshl_b32 s89, s22, 8")
        a(f"s_add_u32 s89, s89, {SCR3 + 768}")
        a("v_lshlrev_b32 v181, 3, v181")
        a("v_add_u32 v181, s89, v181")
        a("v_and_b32 v182, 31, v0")
        a("v_lshlrev_b32 v182, 3, v182")
        a("v_add_u32 v182, s89, v182")
        for x in xs_loads(0): a(x)
    ACC = 32
    def xf(ks): return 80 + (ks % 8) * 4
    def wf(ks, p): return 112 + (ks % 3) * 12 + p * 4
    def reads(ks):
        c, s = ks // 4, ks % 4
        slot = c % 5; st = slot // 2; off = (slot % 2) * SLOT
        out = [f"ds_read_b128 {vr(xf(ks), 4)}, v{8 + 4 * st + s} offset:{off}"]
        for p in range(3):
            for u in range(2):
                out.append(f"ds_read_b64_tr_b16 {vr(wf(ks, p) + 2 * u, 2)}, v{20 + st} offset:{off + 16384 + p * 4096 + s * 1024 + u * 256}")
        return out
    def mfmas(ks):
        X = vr(xf(ks), 4); out = []
        for p in range(3):
            D_ = vr(ACC + 16 * p, 16); W = vr(wf(ks, p), 4)
            A, B = (W, X) if p < 2 else (X, W)
            out.append(MF32(D_, A, B, "0" if ks == 0 else None))
        return out
    def dots(k0, k1_):
        for ks in range(k0, k1_):
            for i in range(4):
                a(f"v_dot2c_f32_bf16 v{24 + i % 2}, s30, v{xf(ks) + i}")
                a(f"v_dot2c_f32_bf16 v{26 + i % 2}, v{xf(ks) + i}, v{xf(ks) + i}")
    a("s_barrier")
    for r in reads(0) + reads(1): a(r)
    for x in TQ.get(0, []): a(x)
    for ks in range(32):
        c, s = ks // 4, ks % 4
        M = mfmas(ks); R = reads(ks + 2) if ks + 2 < 32 else []
        if s == 2:
            if not K1_XS: dots(max(ks - 3, 0), ks)
            if K1_XS and c == K1_XS[0]:
                for x in xs_dots(0) + xs_loads(1): a(x)
            if K1_XS and c == K1_XS[1]:
                for x in xs_dots(1): a(x)
            if K1_XS and c == 7: a("ds_read_b64 v[24:25], v182")
            a("s_waitcnt lgkmcnt(0)")
            if not K1_XS:
                dots(ks, ks + 1)
                if c == 7: dots(ks + 1, ks + 2)
            a(M[0])
            if c < 7:
                a("s_barrier")
                for x in TQ.get(c + 1, []): a(x)
        else:
            a(f"s_waitcnt lgkmcnt({7 if ks < 31 else 0})")
            a(M[0])
            if ks in (29, 31): a("s_barrier")
        E = []
        if ks >= 30:
            if ks == 30:
                E = ["v_add_f32 v24, v24, v25", "v_add_f32 v26, v26, v27", "v_mov_b32 v25, v24", "v_mov_b32 v27, v26", "s_nop 0",
                     "v_permlane32_swap_b32 v24, v25", "v_permlane32_swap_b32 v26, v27", "v_add_f32 v24, v24, v25", "v_add_f32 v26, v26, v27",
                     f"v_mul_f32 v24, {f32(1/512)}, v24", f"v_mul_f32 v26, {f32(1/512)}, v26", "v_fma_f32 v26, -v24, v24, v26",
                     "v_max_f32 v26, 0, v26", f"v_add_f32 v26, {f32(EPS)}, v26", "v_rsq_f32 v26, v26",
                     "v_mul_f32 v24, -0.5, v24", "ds_write_b32 v7, v26"]
                E = ["s_nop 1"] + E
                if K1_XS: E = ["v_mov_b32 v26, v25"] + E[10:]
            else:
                E = [f"ds_read_b64 {vr(CF + 4 * p, 2)}, v6 offset:{p * 256}" for p in range(3)]
                E += [f"ds_read_b128 {vr(164 + 4 * g, 4)}, v1 offset:{g * 32}" for g in range(4)]
                E += ["v_cvt_pk_bf16_f32 v25, v24, v24", "v_lshlrev_b32 v25, 16, v25",
                     "v_sub_f32 v27, v24, v25", "v_cvt_pk_bf16_f32 v148, v25, v27",
                     "v_mov_b32 v149, v148", f"v_mul_f32 v28, {f32(0.25 * LOG2E)}, v26", "v_mov_b32 v27, v26", "v_mov_b32 v29, v28"]
            R = E
            n3 = (len(R) + 2) // 3
        else:
            n3 = 3
        for r in R[:n3]: a(r)
        a(M[1])
        for r in R[n3:2 * n3]: a(r)
        a(M[2])
        for r in R[2 * n3:]: a(r)
    a("s_waitcnt lgkmcnt(4)")
    a(MF32(vr(ACC + 16, 16), vr(CF + 4, 4), vr(148, 4)))
    a(MF32(vr(ACC + 32, 16), vr(148, 4), vr(CF + 8, 4)))
    a(MF32(vr(ACC, 16), vr(CF, 4), vr(148, 4)))
    a("s_waitcnt lgkmcnt(0)")
    a("s_nop 8")
    for p in (1, 2, 0):
        b = ACC + 16 * p; o = 112 + 8 * p
        for i in range(0, 16, 2):
            sc = "v[28:29]" if p == 0 else "v[26:27]" if p == 1 else vr(164 + i, 2)
            if p == 1:
                a(f"v_mul_f32 v{b + i}, v26, v{b + i}")
                a(f"v_mul_f32 v{b + i + 1}, v26, v{b + i + 1}")
            else:
                a(f"v_pk_mul_f32 {vr(b + i, 2)}, {sc}, {vr(b + i, 2)}")
        for i in range(8):
            a(f"v_cvt_pk_bf16_f32 v{o+i}, v{b+2*i}, v{b+2*i+1}")
        if p < 2:
            a(f"buffer_store_dwordx4 {vr(o, 4)}, v2, s[16:19], s{29 if p == 0 else 32} offen sc1")
            a(f"buffer_store_dwordx4 {vr(o + 4, 4)}, v2, s[16:19], s{31 if p == 0 else 33} offen sc1")
        else:
            a(f"buffer_store_dwordx4 {vr(o, 4)}, v3, s[16:19], s34 offen sc1")
            a(f"buffer_store_dwordx4 {vr(o + 4, 4)}, v3, s[16:19], s34 offen offset:512 sc1")
    a.label("K1_JOIN")
    return a

def k234():
    a = k1(); n = NAME + "_kernel"
    Q = 4; NEGM = 16; S = [32, 48]; O = 64; P = 80; KR = 88; VR = 100; W = 128
    SCR = 131072
    K1C = 2 * math.sqrt(2 / math.pi) * LOG2E
    vm = []
    def V(ins, tag=None):
        a(ins); vm.append(tag)
    def vmwait(tag, extra=""):
        idx = max(i for i, t in enumerate(vm) if t == tag)
        a(f"s_waitcnt vmcnt({len(vm) - 1 - idx}){extra}")
    a("s_load_dwordx4 s[40:43], s[0:1], 32")
    a("s_load_dwordx2 s[44:45], s[0:1], 16")
    a("s_load_dwordx2 s[46:47], s[0:1], 0")
    a("s_load_dwordx2 s[48:49], s[0:1], 48")
    a("s_load_dwordx2 s[62:63], s[0:1], 56")
    a("s_lshl_b32 s31, s24, 8")
    a("s_lshl_b32 s30, s23, 2")
    a("s_add_u32 s31, s31, s30")
    a(f"s_add_u32 s31, s31, {FL1}")
    a("s_mov_b32 s22, s35")
    a("s_and_b32 s23, s2, 7")
    a("s_lshl_b32 s23, s23, 2")
    a("s_bfe_u32 s29, s2, 0x20003")
    a("s_add_u32 s23, s23, s29")
    a("s_lshr_b32 s24, s2, 5")
    a("s_lshl_b32 s25, s23, 16")
    a("v_lshlrev_b32 v2, 4, v0")
    a("s_lshl_b32 s26, s22, 10")
    a("s_add_u32 s27, s25, s26")
    a("s_lshl_b32 s28, s24, 13")
    a("s_add_u32 s28, s28, s27")
    a(f"s_add_u32 s27, s27, {KF}")
    a(f"s_add_u32 s30, s27, {VF - KF}")
    if KV_ROT:
        a(f"s_mul_i32 s61, s23, {KV_ROT}")
        a("s_and_b32 s61, s61, 7")
        a("s_lshl_b32 s61, s61, 13")
        a("s_add_u32 s52, s27, s61")
        a("s_add_u32 s53, s30, s61")
    srd(a, 8, 58, WS_SIZE)
    a("v_mov_b32 v12, 0")
    a("v_mov_b32 v13, 1")
    def signal(lbl, local=False):
        a("s_cmp_eq_u32 s22, 7")
        a(f"s_cbranch_scc0 {lbl}")
        a("v_lshlrev_b32 v12, 14, v0")
        a(f"s_mov_b64 exec, {(1 << NREP) - 1}")
        if ATOM:
            a(f"s_and_b32 s31, s31, {hex(0xffffff84 if '4' in lbl[-2:] else 0xffffff80)}")
            a("buffer_atomic_add v13, v12, s[8:11], s31 offen sc1")
        else: a("buffer_store_dword v13, v12, s[8:11], s31 offen sc1")
        a("s_mov_b64 exec, -1")
        a.label(lbl)
    def poll(lbl, sreg, nfl, sh=2):
        if ATOM:
            a("s_lshr_b32 s33, s2, 5")
            a(f"s_and_b32 s33, s33, {NREP - 1}")
            a("s_lshl_b32 s33, s33, 14")
            a("v_mov_b32 v1, s33")
            a("s_mov_b32 s33, 0")
            a("s_mov_b64 exec, 1")
            two = PIF == 2 and lbl != "K2_P4A"
            if two:
                a("v_mov_b32 v14, 0")
                a(f"buffer_atomic_add v14, v1, s[8:11], s{sreg} offen sc0 sc1")
                a("s_sleep 5")
            a.label(lbl)
            for cur, nxt in (((14, 15), (15, 14)) if two else ((15, 15),)):
                if POLL_SLEEP: a(f"s_sleep {POLL_SLEEP}")
                a(f"v_mov_b32 v{nxt}, 0")
                a(f"buffer_atomic_add v{nxt}, v1, s[8:11], s{sreg} offen sc0 sc1")
                a("s_add_u32 s33, s33, 1")
                a(f"s_waitcnt vmcnt({1 if two else 0})")
                a(f"v_cmp_eq_u32 vcc, {nfl}, v{cur}")
                a("s_nop 0")
                a(f"s_cbranch_vccnz {lbl}_X")
            a("s_cmp_lt_u32 s33, 0x40000")
            a(f"s_cbranch_scc1 {lbl}")
            a.label(f"{lbl}_X")
            a("s_mov_b64 exec, -1")
            return
        a(f"v_and_b32 v1, {nfl - 1}, v0")
        a(f"v_lshlrev_b32 v1, {sh}, v1")
        a("s_mov_b32 s33, 0")
        if POLL_PRE: a(f"s_sleep {POLL_PRE}")
        a.label(lbl)
        if POLL_SLEEP: a(f"s_sleep {POLL_SLEEP}")
        a(f"buffer_load_dword v15, v1, s[8:11], s{sreg} offen sc1")
        a("s_add_u32 s33, s33, 1")
        a("s_waitcnt vmcnt(0)")
        a("v_cmp_eq_u32 vcc, 1, v15")
        a("s_cmp_gt_u32 s33, 0x40000")
        a(f"s_cbranch_scc1 {lbl}_X")
        a("s_cmp_eq_u64 vcc, -1")
        a(f"s_cbranch_scc0 {lbl}")
        a.label(f"{lbl}_X")
    st(a, 'k1')
    def poll2(lbl, sreg, nfl, sh=2):
        if UNSAFE & {"K2_P1": 64, "K2_P2": 16, "K2_P3": 32, "K2_P4": 128}[lbl]: return
        if not POLL2: return poll(lbl, sreg, nfl, sh)
        a(f"v_and_b32 v1, {nfl - 1}, v0")
        a(f"v_lshlrev_b32 v1, {sh}, v1")
        a("s_mov_b32 s33, 0")
        a(f"buffer_load_dword v14, v1, s[8:11], s{sreg} offen sc1")
        a(f"s_sleep {POLL2}")
        a.label(lbl)
        for cur, nxt in ((14, 15), (15, 14)):
            a(f"buffer_load_dword v{nxt}, v1, s[8:11], s{sreg} offen sc1")
            a("s_waitcnt vmcnt(1)")
            a(f"v_cmp_eq_u32 vcc, 1, v{cur}")
            a("s_add_u32 s33, s33, 1")
            a("s_nop 0")
            a("s_cmp_eq_u64 vcc, -1")
            a(f"s_cbranch_scc1 {lbl}_X")
        a("s_cmp_lt_u32 s33, 0x80000")
        a(f"s_cbranch_scc1 {lbl}")
        a.label(f"{lbl}_X")
    a("s_waitcnt vmcnt(0) lgkmcnt(0)" if not UNSAFE & 1 else "s_waitcnt lgkmcnt(0)")
    a("s_barrier")
    st(a, 'k1b')
    signal("K2_S1")
    def kvdma(c, isv):
        a(f"s_add_u32 m0, s26, {c * 8192 + isv * 65536}")
        if KV_ROT:
            a(f"s_add_u32 s29, s61, {c * 8192}")
            a("s_and_b32 s29, s29, 0xffff")
            a(f"s_add_u32 s29, s29, s{30 if isv else 27}")
        else:
            a(f"s_add_u32 s29, s27, {c * 8192 + isv * (VF - KF)}")
        V("buffer_load_dwordx4 v2, s[8:11], s29 offen " + KV_SC + " lds", f"c{c}")
    a("s_and_b32 s36, s2, 3")
    a("s_lshl_b32 s36, s36, 2")
    a("s_bfe_u32 s29, s2, 0x20003")
    a("s_add_u32 s36, s36, s29")
    a("s_bfe_u32 s37, s2, 0x10002")
    a("s_lshl_b32 s37, s37, 3")
    a("s_add_u32 s37, s37, s24")
    a("s_min_u32 s38, s22, 6")
    a("s_mul_i32 s39, s37, 7")
    a("s_add_u32 s39, s39, s38")
    a("s_lshl_b32 s54, s39, 5")
    srd(a, 12, 40, 512 * 1792 * 2)
    srd(a, 16, 42, 512 * 1792 * 2)
    a("s_lshl_b32 s55, s22, 12")
    a(f"s_add_u32 s55, s55, {SCR}")
    a("v_lshrrev_b32 v8, 1, v0")
    a("v_mul_u32_u24 v8, 3584, v8")
    a("v_and_b32 v1, 1, v0")
    a("v_lshl_add_u32 v8, v1, 4, v8")
    a("v_lshrrev_b32 v11, 5, v0")
    a("v_bfe_u32 v1, v0, 2, 2")
    a("v_lshl_add_u32 v10, v11, 2, v1")
    a("v_lshlrev_b32 v9, 5, v10")
    a("v_and_b32 v1, 3, v0")
    a("v_lshl_add_u32 v9, v1, 3, v9")
    a("v_bfe_u32 v1, v0, 4, 1")
    a("v_lshl_add_u32 v9, v1, 10, v9")
    a("v_add_u32 v9, s55, v9")
    a("v_and_b32 v12, 15, v0")
    a("v_lshl_add_u32 v12, v11, 4, v12")
    a("v_lshlrev_b32 v12, 4, v12")
    a("v_add_u32 v3, 65536, v12")
    a("s_mov_b32 s34, 0x0000ffff")
    a("s_mov_b32 s35, 0x0000ffff")
    a(f"s_mov_b32 s50, {f32(2.0**60)}")
    if ONES2:
        a("v_and_b32 v1, 27, v0")
        a("v_cmp_eq_u32 vcc, 16, v1")
        a("v_mov_b32 v1, 0x3f803f80")
        a("s_nop 0")
        a(f"v_cndmask_b32 v{VR}, 0, v1, vcc")
        for i in range(1, 24):
            a(f"v_mov_b32 v{VR + i}, v{VR}")
    else:
      for i in range(24):
        a(f"v_mov_b32 v{VR + i}, 0x3f803f80")
    for i in range(16):
        a(f"v_mov_b32 v{O + i}, 0")
    for i in range(8, 16):
        a(f"v_mov_b32 v{S[1] + i}, 0")
    KA = 126; IX = 127
    a("v_and_b32 v1, 0x33, v0")
    a("v_bfe_u32 v14, v0, 2, 1")
    a("v_lshl_add_u32 v1, v14, 3, v1")
    a("v_bfe_u32 v14, v0, 3, 1")
    a("v_lshl_add_u32 v1, v14, 2, v1")
    a(f"v_lshlrev_b32 v{KA}, 4, v1")
    a(f"v_mov_b32 v{IX}, 0xdddddddd")
    def SMF(vreg, preg): return f"v_smfmac_f32_32x32x32_bf16 {vr(O, 16)}, {vr(vreg, 4)}, {vr(preg, 8)}, v{IX}"
    def kread(t): return f"ds_read_b128 {vr(KR + 4 * (t % 3), 4)}, v{KA} offset:{t * 1024}"
    def vread(t):
        return ["s_mov_b64 exec, s[34:35]"] + \
               [f"ds_read_b128 {vr(VR + 8 * (t % 3) + 4 * j, 4)}, v3 offset:{t * 1024 + j * 512}" for j in range(2)] + \
               ["s_mov_b64 exec, -1"]
    a("s_cmp_eq_u32 s22, 7")
    a("s_cbranch_scc0 K2_B1")
    a("s_lshr_b32 s29, s23, 1")
    a("s_lshl_b32 s29, s29, 8")
    a(f"s_add_u32 s29, s29, {FL1}")
    poll2("K2_P1", 29, 16)
    a.label("K2_B1")
    a("s_mov_b32 m0, s26")
    a("s_barrier")
    st(a, 't1')
    V(f"buffer_load_dwordx4 v2, s[8:11], s{52 if KV_ROT else 27} offen {KV_SC} lds", "c0")
    V(f"buffer_load_dwordx4 {vr(Q, 4)}, v2, s[8:11], s28 offen {KV_SC}", "c0")
    a("s_add_u32 m0, s26, 65536")
    a("s_nop 0")
    V(f"buffer_load_dwordx4 v2, s[8:11], s{53 if KV_ROT else 30} offen {KV_SC} lds", "c0")
    if not C1_LATE: kvdma(1, 0); kvdma(1, 1)
    a("v_add_u32 v1, s26, v2")
    a(f"s_waitcnt vmcnt({1 if C1_LATE else 3})")
    if C1_LATE: kvdma(1, 0); kvdma(1, 1)
    a(f"ds_read_b128 {vr(KR, 4)}, v1")
    a("s_waitcnt lgkmcnt(0)")
    s0 = S[0]
    a(MF32(vr(s0, 16), vr(KR, 4), vr(Q, 4), "0"))
    vmwait("c0")
    a("s_barrier")
    st(a, 'a0')
    a(kread(0)); a(kread(1))
    for x in vread(0): a(x)
    a(kread(2))
    for x in vread(1): a(x)
    for i in range(5):
        a(f"v_max3_f32 v{NEGM + i}, v{s0+3*i}, v{s0+3*i+1}, v{s0+3*i+2}")
    a(f"v_max3_f32 v14, v{NEGM}, v{NEGM+1}, v{s0+15}")
    a(f"v_max3_f32 v15, v{NEGM+2}, v{NEGM+3}, v{NEGM+4}")
    a("v_max_f32 v14, v14, v15")
    def set_negm():
        a("v_mov_b32 v15, v14")
        a("s_nop 1")
        a("v_permlane32_swap_b32 v14, v15")
        a("v_max_f32 v14, v14, v15")
        for i in range(16):
            a(f"v_sub_f32 v{NEGM + i}, 0, v14")
        a("s_nop 1")
    set_negm()
    a("s_waitcnt lgkmcnt(6)")
    a(MF32(vr(S[0], 16), vr(KR, 4), vr(Q, 4), vr(NEGM, 16)))
    a("s_nop 9")
    T0 = K2_T0
    cnt = [0]
    DMT = [T0 + int(K2_CAD * u) for u in range(18)]
    RDT = [min(DMT[u + 2] - 1, 62 - (15 - u)) for u in range(16)]; DMT = DMT[:16]
    SLT = [u % 2 for u in range(16)]
    if XSLOT:
        DMT, RDT, SLT = [], [], []
        free = {0: 0, 1: 0, 2: 24, 3: 24}; tnext = T0
        for u in range(16):
            sl = min(free, key=lambda k_: (max(free[k_], tnext), k_))
            td = max(free[sl], tnext)
            lag = XSLOT[0] if td < 21 else XSLOT[1]
            tr = min(td + lag, 62 - (15 - u))
            while tr in RDT: tr += 1
            DMT.append(td); RDT.append(tr); SLT.append(sl); free[sl] = tr + 1; tnext = td + XSLOT[2]
        a("s_lshl_b32 s56, s22, 11")
        a("s_sub_u32 s29, s56, s55")
        a("v_add_u32 v80, s29, v9")
        a("v_add_u32 v81, 65536, v80")
    assert len(set(RDT)) == 16 and max(RDT) <= 62 and RDT == sorted(RDT), (DMT, RDT)
    SM0 = [("s55", 0), ("s55", 2048), ("s56", 0), ("s56", 65536)]
    SRD_ = [(9, 0), (9, 2048), (80, 0), (81, 0)]
    if K2_W7S:
        a("s_cmp_eq_u32 s22, 7")
        a("s_cselect_b32 s14, 0, s14")
        a("s_cselect_b32 s18, 0, s18")
        if UNSAFE & 256:
            a("s_mov_b32 s14, 0")
            a("s_mov_b32 s18, 0")
    def b(ins):
        if K2_Y:
            if cnt[0] == 0: a("s_setprio 0")
            if cnt[0] == K2_Y: a("s_setprio 1")
            if cnt[0] == K2_Y2: a("s_setprio 2")
        cnt[0] += 1
        a(ins)
    for t in range(64):
        if t % K2_PER == 0: cnt[0] = 0
        Sc = S[t % 2]; Sn = S[(t + 1) % 2]
        E = lambda i: b(f"v_exp_f32 v{Sc+i}, v{Sc+i}")
        C = lambda i: b(f"v_cvt_pk_bf16_f32 v{P+i}, v{Sc+2*i}, v{Sc+2*i+1}")
        if t == 0: st(a, 'a1')
        if t == 16: st(a, 'a16')
        if t == 5: vmwait("c1"); a("s_barrier")
        if t == 13: vmwait("c5"); a("s_barrier")
        if t == 24: vmwait("c7"); a("s_barrier")
        nrd = lambda u: (1 if u + 3 < 64 else 0) + (2 if u + 2 < 64 else 0)
        b(f"s_waitcnt lgkmcnt({nrd(t - 1) if t > 0 else 3})")
        for i in range(K2_E[0]): E(i)
        b(SMF(VR + 8 * ((t - 1) % 3) + 4, Sn + 8))
        for i in range(K2_E[0], K2_E[1]): E(i)
        if t < 63:
            b(MF32(vr(Sn, 16), vr(KR + 4 * ((t + 1) % 3), 4), vr(Q, 4), vr(NEGM, 16)))
            if t == 62: a("s_nop 3")
        u = RDT.index(t) if t in RDT else -1
        if u >= 0:
            vmwait(f"w{u}")
            for s in range(2):
                for e in range(2):
                    a(f"ds_read_b64_tr_b16 {vr(W + 8 * u + 4 * s + 2 * e, 2)}, v{SRD_[SLT[u]][0]} offset:{SRD_[SLT[u]][1] + s * 512 + e * 256}")
        if t + 3 < 64: b(kread(t + 3))
        if t + 2 < 64:
            for x in vread(t + 2): b(x)
        for i in range(K2_E[1], K2_E[2]): E(i)
        b(SMF(VR + 8 * (t % 3), Sc))
        if t < 12: kvdma(2 + t // 2, t % 2)
        u = DMT.index(t) if t in DMT else -1
        if u >= 0:
            a(f"s_add_u32 m0, {SM0[SLT[u]][0]}, {SM0[SLT[u]][1]}")
            a(f"s_add_u32 s29, s54, {u * 32 * 3584}")
            V(f"buffer_load_dwordx4 v8, s[12:15], s29 offen {NT_G} lds", f"w{u}")
            a(f"s_add_u32 m0, {SM0[SLT[u]][0]}, {SM0[SLT[u]][1] + 1024}")
            a("s_nop 0")
            V(f"buffer_load_dwordx4 v8, s[16:19], s29 offen {NT_G} lds", f"w{u}")
        if PREOWN and t in (26, 29, 32, 35) and PREOWN & 1:
            k_ = (t - 26) // 3
            a(f"s_mul_i32 s29, s36, {4 * 112 * 1024}")
            a("s_lshl_b32 s33, s39, 10")
            a("s_add_u32 s29, s29, s33")
            a(f"s_add_u32 s29, s29, {GF + k_ * 112 * 1024}")
            V(f"buffer_store_dwordx4 {vr(Q, 4)}, v2, s[8:11], s29 offen sc1", "pre")
        if PREOWN & 2 and t == 38:
            a("s_lshl_b32 s29, s24, 3")
            a("s_add_u32 s29, s29, s22")
            a("s_lshl_b32 s29, s29, 15")
            a("s_lshl_b32 s33, s23, 10")
            a("s_add_u32 s29, s29, s33")
            a(f"s_add_u32 s29, s29, {OF}")
            V(f"buffer_store_dwordx4 {vr(Q, 4)}, v2, s[8:11], s29 offen sc1", "pre")
        if PREOWN & 4 and t == 43:
            a("s_lshl_b32 s29, s23, 1")
            a("s_lshr_b32 s33, s22, 2")
            a("s_add_u32 s29, s29, s33")
            a("s_lshl_b32 s29, s29, 15")
            a("s_lshl_b32 s33, s24, 12")
            a("s_add_u32 s29, s29, s33")
            a("s_and_b32 s33, s22, 3")
            a("s_lshl_b32 s33, s33, 10")
            a("s_add_u32 s29, s29, s33")
            a(f"s_add_u32 s29, s29, {HF}")
            V(f"buffer_store_dwordx4 {vr(Q, 4)}, v2, s[8:11], s29 offen sc1", "pre")
        if t == 40 and K2_TCH:
            srd(a, 96, 48, 1792 * 512 * 2)
            a("s_lshl_b32 s29, s2, 3")
            a("s_add_u32 s29, s29, s22")
            a("s_mul_i32 s29, s29, 896")
            a("v_min_u32 v12, 6, v0")
            a("v_lshlrev_b32 v12, 7, v12")
            V("buffer_load_dword v124, v12, s[96:99], s29 offen", "tch")
        if t == 59 and K2_TCH:
            a("s_lshr_b32 s29, s2, 3")
            a("s_lshl_b32 s29, s29, 14")
            a("s_lshl_b32 s31, s22, 11")
            a("s_add_u32 s29, s29, s31")
            srd(a, 96, 44, 512 * 512 * 2)
            a("v_and_b32 v12, 15, v0")
            a("v_lshlrev_b32 v12, 7, v12")
            V("buffer_load_dword v124, v12, s[96:99], s29 offen", "tch")

        for i in range(K2_E[2], 16): E(i)
    a("s_setprio 0")
    a("s_lshl_b32 s29, s24, 3")
    a("s_add_u32 s29, s29, s22")
    a(SMF(VR + 8 * (63 % 3) + 4, S[1] + 8))
    a("s_nop 7")
    a("s_lshl_b32 s31, s24, 8")
    a("s_lshl_b32 s30, s23, 2")
    a("s_add_u32 s31, s31, s30")
    a(f"s_add_u32 s31, s31, {FL2}")
    a("s_lshl_b32 s29, s29, 15")
    a("s_lshl_b32 s30, s23, 10")
    a("s_add_u32 s29, s29, s30")
    a(f"s_add_u32 s29, s29, {OF}")
    a("v_mov_b32 v12, 0")
    a("v_mov_b32 v13, 1")
    a("s_waitcnt lgkmcnt(0)")
    a("s_nop 0")
    a(f"v_cmp_gt_f32 vcc, s50, v{O + 8}")
    a("s_nop 1")
    a("s_cmp_eq_u64 vcc, -1")
    a("s_cbranch_scc0 K2_FALLBACK")
    a.label("K2_FIN")
    a(f"v_rcp_f32 v14, v{O + 8}")
    a("s_nop 0")
    for i in range(8):
        a(f"v_mul_f32 v{O+i}, v14, v{O+i}")
    for i in range(4):
        a(f"v_cvt_pk_bf16_f32 v{P+i}, v{O+2*i}, v{O+2*i+1}")
    a(f"buffer_store_dwordx4 {vr(P, 4)}, v2, s[8:11], s29 offen sc1")
    st(a, 'att')
    srd(a, 12, 44, 512 * 512 * 2)
    srd(a, 16, 46, 2048 * 512 * 2)
    a("s_and_b32 s25, s22, 1")
    a("s_bfe_u32 s26, s22, 0x10001")
    a("s_lshr_b32 s27, s22, 2")
    a("s_lshl_b32 s28, s24, 1")
    a("s_add_u32 s28, s28, s25")
    a("s_lshl_b32 s30, s23, 1")
    a("s_add_u32 s30, s30, s26")
    a("v_lshrrev_b32 v8, 2, v0")
    a("v_lshlrev_b32 v8, 10, v8")
    a("v_and_b32 v1, 3, v0")
    a("v_lshl_add_u32 v8, v1, 4, v8")
    a("v_lshlrev_b32 v9, 6, v10")
    a("v_lshl_add_u32 v9, v1, 3, v9")
    a("v_bfe_u32 v1, v0, 4, 1")
    a("v_lshl_add_u32 v9, v1, 5, v9")
    a("s_lshl_b32 s32, s25, 15")
    a("s_lshl_b32 s33, s27, 14")
    a("s_add_u32 s32, s32, s33")
    a("v_add_u32 v9, s32, v9")
    a("v_and_b32 v3, 31, v0")
    a("v_lshlrev_b32 v3, 10, v3")
    a("v_lshl_add_u32 v3, v11, 4, v3")
    a("s_lshl_b32 s51, s30, 15")
    a("s_lshl_b32 s33, s28, 6")
    a("s_add_u32 s51, s51, s33")
    RES = 112
    if not UNSAFE & 2: a("s_waitcnt vmcnt(0)")
    a("s_barrier")
    def dstore(ins):
        return [ins + " sc1"]
    signal("K2_S2")
    st(a, 'bA')
    A3 = 16; WO = 32; OB = 96
    def colsum():
        a("s_mov_b32 s56, 0x3f803f80")
        for i in range(4): a(f"v_mov_b32 v{124 + i}, 0")
        for i in range(128):
            a(f"v_dot2c_f32_bf16 v{124 + i % 4}, s56, v{W + i}")
        a("s_nop 2")
        a("v_add_f32 v124, v124, v125")
        a("v_add_f32 v126, v126, v127")
        a("v_add_f32 v126, v124, v126")
        a("v_cvt_pk_bf16_f32 v124, v126, v126")
        a("v_lshlrev_b32 v125, 16, v124")
        a("v_sub_f32 v125, v126, v125")
        a("v_cvt_pk_bf16_f32 v125, v125, v125")
        a("v_mov_b32 v126, 0")
        a("v_mov_b32 v127, 0")
    a("s_cmp_eq_u32 s22, 7")
    a("s_cbranch_scc1 K2_POLL2")
    a("s_cmp_ge_u32 s22, 4")
    a("s_cbranch_scc1 K2_CS")
    a("s_lshl_b32 s33, s26, 14")
    a("s_add_u32 s52, s32, s33")
    a("s_lshl_b32 s53, s26, 18")
    a("s_lshl_b32 s33, s28, 6")
    a("s_add_u32 s53, s53, s33")
    for i in range(16):
        a(f"s_add_u32 m0, s52, {i * 1024}")
        a(f"s_add_u32 s29, s53, {i * 16384}")
        a("buffer_load_dwordx4 v8, s[12:15], s29 offen lds")
    for j in range(2):
        a(f"buffer_load_dwordx4 {vr(RES + 4 * j, 4)}, v3, s[16:19], s51 offen offset:{j * 32}")
    a("s_waitcnt vmcnt(2)")
    a("s_branch K2_B2")
    a.label("K2_CS")
    colsum()
    if O_TCH >= 0:
        a("s_cmp_eq_u32 s22, 6")
        a("s_cbranch_scc0 K2_B2")
        if O_TCH: a(f"s_sleep {O_TCH}")
        a("s_lshl_b32 s29, s23, 16")
        a("s_lshl_b32 s33, s24, 13")
        a("s_add_u32 s29, s29, s33")
        a(f"s_add_u32 s29, s29, {OF}")
        a("v_lshlrev_b32 v1, 7, v0")
        a("buffer_load_dword v14, v1, s[8:11], s29 offen sc1")
    a("s_branch K2_B2")
    a.label("K2_POLL2")
    a("s_lshr_b32 s29, s23, 2")
    a("s_lshl_b32 s29, s29, 8")
    a(f"s_add_u32 s29, s29, {FL2}")
    poll2("K2_P2", 29, 32)
    a.label("K2_B2")
    a("s_lshl_b32 s29, s25, 15")
    a("s_lshr_b32 s33, s22, 1")
    a("s_lshl_b32 s33, s33, 12")
    a("s_add_u32 s29, s29, s33")
    a("s_lshl_b32 s33, s23, 16")
    a("s_add_u32 s33, s33, s29")
    a(f"s_add_u32 s33, s33, {OF}")
    a("s_add_u32 s52, s33, 16384")
    a(f"s_add_u32 m0, s29, {65536 + 16384}")
    a("s_barrier")
    st(a, 't2')
    for i in range(4):
        a(f"buffer_load_dwordx4 v2, s[8:11], s52 offen offset:{i * 1024} {LD_SC} lds")
    a("s_add_u32 m0, s29, 65536")
    a("s_nop 0")
    for i in range(4):
        a(f"buffer_load_dwordx4 v2, s[8:11], s33 offen offset:{i * 1024} {LD_SC} lds")
    for s in range(16):
        for e in range(2):
            a(f"ds_read_b64_tr_b16 {vr(WO + 4 * s + 2 * e, 2)}, v9 offset:{s * 1024 + e * 512}")
    a("s_lshl_b32 s29, s26, 15")
    a("s_lshl_b32 s33, s27, 14")
    a("s_add_u32 s29, s29, s33")
    a("s_add_u32 s29, s29, 65536")
    a("v_add_u32 v8, s29, v2")
    a("s_and_b32 s29, s22, 3")
    a("s_lshl_b32 s29, s29, 12")
    a(f"s_add_u32 s29, s29, {SCR}")
    a("v_add_u32 v9, s29, v2")
    def omm(first, hooks):
        rd = lambda s: f"ds_read_b128 {vr(OB + 4 * (s % 4), 4)}, v8 offset:{s * 1024}"
        for s in range(3): a(rd(s))
        for s in range(16):
            left = 15 - s
            if left >= 3: a(rd(s + 3))
            a(f"s_waitcnt lgkmcnt({min(left, 3) + hooks.get(('x', s), 0)})")
            a(MF32(vr(A3, 16), vr(WO + 4 * s, 4), vr(OB + 4 * (s % 4), 4), first if s == 0 else None))
            for x in hooks.get(s, []): a(x)
    a("s_cmp_lt_u32 s22, 4")
    a("s_cbranch_scc1 K2_O_LO")
    a("s_waitcnt vmcnt(4) lgkmcnt(0)")
    a("s_barrier")
    omm("0", {O_B1: ["s_waitcnt vmcnt(0)", "s_barrier"]})
    st(a, 'om')
    a("s_nop 11")
    for q in range(4):
        a(f"ds_write_b128 v9, {vr(A3 + 4 * q, 4)} offset:{q * 1024}")
    a("s_waitcnt lgkmcnt(0)")
    a("s_barrier")
    a("s_lshr_b32 s31, s23, 1")
    a("s_lshl_b32 s31, s31, 8")
    a("s_and_b32 s33, s23, 1")
    a("s_lshl_b32 s33, s33, 3")
    a("s_add_u32 s33, s33, s24")
    a("s_lshl_b32 s33, s33, 2")
    a("s_add_u32 s31, s31, s33")
    a(f"s_add_u32 s31, s31, {FL3}")
    a("s_lshl_b32 s29, s36, 8")
    a(f"s_add_u32 s29, s29, {FL3}")
    a("s_barrier")
    signal("K2_S3", True)
    if H_TCH >= 0:
        a("s_cmp_lt_u32 s22, 6")
        a("s_cbranch_scc0 K2_NHT")
        if H_TCH: a(f"s_sleep {H_TCH}")
        a("s_lshl_b32 s52, s36, 17")
        a("s_lshl_b32 s33, s24, 14")
        a("s_add_u32 s52, s52, s33")
        a("s_and_b32 s33, s22, 1")
        a("s_lshl_b32 s33, s33, 13")
        a("s_add_u32 s52, s52, s33")
        a(f"s_add_u32 s52, s52, {HF}")
        a("v_lshlrev_b32 v1, 7, v0")
        a("buffer_load_dword v14, v1, s[8:11], s52 offen sc1")
        a.label("K2_NHT")
    a("s_cmp_eq_u32 s22, 7")
    a("s_cbranch_scc0 K2_B3")
    poll2("K2_P3", 29, 16)
    a("s_branch K2_B3")
    a.label("K2_O_LO")
    a("s_waitcnt vmcnt(8)")
    for j in range(2):
        a(f"v_permlane32_swap_b32 v{RES + 4 * j}, v{RES + 4 * j + 2}")
        a(f"v_permlane32_swap_b32 v{RES + 4 * j + 1}, v{RES + 4 * j + 3}")
    a("s_mov_b32 s29, 0xffff0000")
    for i in range(8):
        a(f"v_lshlrev_b32 v{A3 + 2 * i}, 16, v{RES + i}")
        a(f"v_and_b32 v{A3 + 1 + 2 * i}, s29, v{RES + i}")
    a("s_lshl_b32 s52, s30, 15")
    a("s_lshl_b32 s33, s28, 11")
    a("s_add_u32 s52, s52, s33")
    a(f"s_add_u32 s52, s52, {HF}")
    a("s_lshl_b32 s53, s30, 12")
    a("s_lshl_b32 s33, s28, 8")
    a("s_add_u32 s53, s53, s33")
    a(f"s_add_u32 s53, s53, {ST}")
    a("v_lshlrev_b32 v3, 3, v0")
    a("s_mov_b32 s29, 0x3f803f80")
    a("v_mov_b32 v14, 0")
    a("v_mov_b32 v15, 0")
    a("s_waitcnt vmcnt(4) lgkmcnt(0)")
    a("s_barrier")
    a("s_waitcnt vmcnt(0)")
    a("s_barrier")
    if O_PRIO: a("s_setprio 2")
    omm(None, {13: ["s_barrier"] + [f"ds_read_b128 {vr(32 + 4 * q, 4)}, v9 offset:{q * 1024}" for q in range(4)],
               ('x', 14): 4, ('x', 15): 4})
    st(a, 'om')
    a("s_nop 10")
    o = 112
    for q in range(4):
        a(f"s_waitcnt lgkmcnt({3 - q})")
        for i in range(4 * q, 4 * q + 4):
            a(f"v_add_f32 v{A3 + i}, v{A3 + i}, v{32 + i}")
        for i in range(2 * q, 2 * q + 2):
            a(f"v_cvt_pk_bf16_f32 v{o + i}, v{A3 + 2 * i}, v{A3 + 2 * i + 1}")
        if q % 2:
            j = q // 2
            for x in dstore(f"buffer_store_dwordx4 {vr(o + 4 * j, 4)}, v2, s[8:11], s52 offen offset:{j * 1024}"): a(x)
    for i in range(8):
        a(f"v_dot2c_f32_bf16 v14, s29, v{o + i}")
        a(f"v_dot2c_f32_bf16 v15, v{o + i}, v{o + i}")
    a("s_nop 2")
    a("v_mov_b32 v16, v14")
    a("v_mov_b32 v17, v15")
    a("s_nop 0")
    a("v_permlane32_swap_b32 v14, v16")
    a("v_permlane32_swap_b32 v15, v17")
    a("v_add_f32 v14, v14, v16")
    a("v_add_f32 v15, v15, v17")
    a("s_mov_b64 exec, 0xffffffff")
    for x in dstore("buffer_store_dwordx2 v[14:15], v3, s[8:11], s53 offen"): a(x)
    a("s_mov_b64 exec, -1")
    a("s_setprio 0")
    if not UNSAFE & 4: a("s_waitcnt vmcnt(0)")
    a("s_barrier")
    colsum()
    a.label("K2_B3")
    st(a, 'hw')
    a("v_add_u32 v3, 65536, v2")
    a("v_and_b32 v8, 31, v0")
    a("v_lshlrev_b32 v8, 4, v8")
    a(f"v_add_u32 v8, {SCR}, v8")
    a(f"s_mul_i32 s32, s36, {4 * 112 * 1024}")
    a("s_lshl_b32 s33, s39, 10")
    a("s_add_u32 s32, s32, s33")
    a(f"s_add_u32 s32, s32, {GF}")
    a("s_and_b32 s25, s22, 3")
    a(f"s_and_b32 s57, s37, {G_PERM}")
    a("s_lshl_b32 s57, s57, 1")
    a("s_xor_b32 s33, s25, s57")
    a("s_lshl_b32 s30, s36, 2")
    a("s_add_u32 s30, s30, s33")
    a(f"s_mul_i32 s33, s57, {112 * 1024}")
    a(f"s_sub_u32 s56, {2 * 112 * 1024}, s33")
    a("s_add_u32 s56, s56, s32")
    a("s_add_u32 s32, s32, s33")
    CNT = SCR + 2048; SPARE = SCR + 4096; WD = 128; KS = 14
    a(f"v_mov_b32 v4, {CNT}")
    a("v_mov_b32 v5, 1")
    def hread(dst, tt, s):
        return f"ds_read_b128 {vr(dst, 4)}, v{2 + tt // 2} offset:{(tt % 2) * 32768 + s * 1024}"
    def epi(g, z, st, tt):
        u = g + 8; o = []
        ve, a0, a1 = f"v{st+1}", f"v{st+2}", f"v{st+3}"
        o += [f"v_mul_f32 v{z+i}, v{g+i}, v{g+i}" for i in range(8)]
        o += [f"v_fma_f32 v{z+i}, v{z+i}, {a1}, {a0}" for i in range(8)]
        o += [f"v_mul_f32 v{z+i}, v{z+i}, v{g+i}" for i in range(8)]
        for i in range(8):
            o += [f"v_exp_f32 v{z+i}, v{z+i}", f"v_mul_f32 v{g+i}, v{g+i}, v{u+i}"]
        o += [f"v_fma_f32 v{z+i}, v{z+i}, {ve}, {ve}" for i in range(8)]
        o += [f"v_rcp_f32 v{z+i}, v{z+i}" for i in range(8)]
        o += [f"s_add_u32 s29, s{32 if tt < 2 else 56}, {(tt % 2) * 112 * 1024}"]
        o += [f"v_mul_f32 v{g+i}, v{g+i}, v{z+i}" for i in range(8)]
        o += [f"v_cvt_pk_bf16_f32 v{u+i}, v{g+2*i}, v{g+2*i+1}" for i in range(4)]
        o += dstore(f"buffer_store_dwordx4 {vr(u, 4)}, v2, s[8:11], s29 offen")
        return o
    ACC = 16; HB = 32; ZB = 80; SB = 88; TB = 92; NR = 12; STR = [96, 100, 104, 108]
    a(f"v_mov_b32 v{TB + 2}, 0")
    a(f"v_mov_b32 v{TB + 3}, 0")
    def cwait(tag, off, val=7, reg=4):
        a("s_mov_b32 s33, 0")
        a.label(f"K2_WC{tag}")
        a(f"ds_read_b32 v6, v{reg} offset:{off}")
        a("s_add_u32 s33, s33, 1")
        a("s_waitcnt lgkmcnt(0)")
        a(f"v_cmp_eq_u32 vcc, {val}, v6")
        a("s_cmp_gt_u32 s33, 0x100000")
        a(f"s_cbranch_scc1 K2_WX{tag}")
        a(f"s_cbranch_vccnz K2_WX{tag}")
        a("s_sleep 2")
        a(f"s_branch K2_WC{tag}")
        a.label(f"K2_WX{tag}")
    ntile = [0]
    def tile(tt, hooks, pre=None, last=False, late=False):
        a("s_setprio 1")
        rd = lambda ks: hread(HB + 4 * (ks % NR), tt, ks)
        if pre is None:
            for ks in range(NR - 1): a(rd(ks))
        for ks in range(32):
            if ks + NR - 1 < 32: a(rd(ks + NR - 1))
            if ks % 4 == 0:
                a(f"s_waitcnt lgkmcnt({min(ks + NR - 1, 31) - (ks + 3)})")
            a(MF32(vr(ACC, 16), vr(W + 4 * ks, 4), vr(HB + 4 * (ks % NR), 4), "0" if ks == 0 else None))
            if G_NOP: a(f"s_nop {G_NOP}")
            if ks == G_P2: a("s_setprio 2")
            if ks == G_EA and tt == 2:
                a("s_waitcnt vmcnt(0)")
                a("s_mov_b64 exec, 1")
                a("ds_add_u32 v4, v5 offset:16")
                a("s_mov_b64 exec, -1")
            if ks == 28 and tt < 3:
                a("s_mov_b64 exec, 1")
                a(f"ds_add_u32 v4, v5 offset:{tt * 4}")
                a("s_mov_b64 exec, -1")
            if not late:
                if ks == 22: a(f"ds_read_b128 {vr(SB, 4)}, v8 offset:{tt * 512}")
                if ks == 29:
                    a(f"v_mov_b32 v{TB}, v{SB}")
                    a(f"v_mov_b32 v{TB + 1}, v{SB}")
            for x in hooks.get(ks, []): a(x)
        if late:
            a(f"ds_read_b128 {vr(SB, 4)}, v8 offset:{tt * 512}")
            a("s_waitcnt lgkmcnt(0)")
            a(f"v_mov_b32 v{TB}, v{SB}")
            a(f"v_mov_b32 v{TB + 1}, v{SB}")
            a("s_nop 1")
        a(MF32(vr(ACC, 16), vr(124, 4), vr(TB, 4)))
        a("s_setprio 0")
        for x in hooks.get("post", []): a(x)
        if tt == 2:
            ntile[0] += 1
            cwait(f"T{ntile[0]}", 24, 1)
        if not last:
            for ks in range(NR - 1): a(hread(HB + 4 * ks, tt + 1, ks))
        else:
            a("s_nop 10")
        for x in epi(ACC, ZB, SB, tt): a(x)
    a("s_lshl_b32 s26, s36, 17")
    a(f"s_add_u32 s26, s26, {HF}")
    a("s_lshl_b32 s33, s57, 15")
    a("s_sub_u32 s27, 65536, s33")
    a("s_add_u32 s27, s27, s26")
    a("s_add_u32 s26, s26, s33")
    a("s_lshl_b32 s28, s22, 12")
    a("s_add_u32 s29, s26, s28")
    a("s_mov_b32 m0, s28")
    a("s_lshl_b32 s52, s30, 12")
    a(f"s_add_u32 s52, s52, {ST}")
    a("s_lshl_b32 s53, s25, 9")
    a("v_add_u32 v9, s53, v8")
    a("v_and_b32 v1, 31, v0")
    a("v_lshlrev_b32 v1, 3, v1")
    a("v_lshl_add_u32 v1, v11, 11, v1")
    a("s_barrier")
    st(a, 't3')
    for i in range(4):
        a(f"buffer_load_dwordx4 v2, s[8:11], s29 offen offset:{i * 1024} {LD_SC} lds")
    a("s_cmp_lt_u32 s22, 4")
    a("s_cbranch_scc1 K2_GA")
    a("s_lshl_b32 s28, s25, 13")
    def hdma(tt, groups, base):
        for g in groups:
            a(f"s_add_u32 m0, {base}, {tt * 32768 + g * 4096}")
            a(f"s_add_u32 s29, s{26 if tt < 2 else 27}, {(tt % 2) * 32768 + g * 4096}")
            if base != "0": a(f"s_add_u32 s29, s29, {base}")
            for i in range(4):
                a(f"buffer_load_dwordx4 v2, s[8:11], s29 offen offset:{i * 1024} {LD_SC} lds")
    for q in range(8):
        a(f"buffer_load_dwordx2 {vr(STR[q // 2] + 2 * (q % 2), 2)}, v1, s[8:11], s52 offen offset:{q * 256} sc1")
    hdma(1, range(1), "s28")
    a("v_mov_b32 v6, 0")
    a("v_mov_b32 v7, 0")
    for q in range(4):
        a(f"ds_write_b64 v4, v[6:7] offset:{q * 8}")
    a("s_waitcnt vmcnt(12) lgkmcnt(0)")
    a("s_barrier")
    st(a, 'g1')
    hdma(1, range(1, 2), "s28")
    r0 = STR[0]
    SQ = []
    for q in range(1, 4):
        SQ += [f"v_add_f32 v{r0 + i}, v{r0 + i}, v{STR[q] + i}" for i in range(4)]
    SQ += [f"v_add_f32 v12, v{r0}, v{r0 + 2}", f"v_add_f32 v13, v{r0 + 1}, v{r0 + 3}",
           "v_mov_b32 v14, v12", "v_mov_b32 v15, v13", "s_nop 0",
           "v_permlane32_swap_b32 v12, v14", "v_permlane32_swap_b32 v13, v15",
           "v_add_f32 v12, v12, v14", "v_add_f32 v13, v13, v15",
           f"v_mul_f32 v12, {f32(-1/512)}, v12", f"v_mul_f32 v13, {f32(1/512)}, v13",
           "v_fma_f32 v13, -v12, v12, v13", "v_max_f32 v13, 0, v13", f"v_add_f32 v{r0 + 1}, {f32(EPS)}, v13",
           f"v_rsq_f32 v14, v{r0 + 1}", "v_cvt_pk_bf16_f32 v15, v12, v12", "v_lshlrev_b32 v15, 16, v15",
           "v_sub_f32 v12, v12, v15", f"v_cvt_pk_bf16_f32 v{r0}, v15, v12",
           f"v_mul_f32 v{r0 + 2}, {f32(-K1C)}, v14", "v_mul_f32 v14, v14, v14", f"v_mul_f32 v14, v14, v{r0 + 2}",
           f"v_mul_f32 v{r0 + 3}, {f32(0.044715)}, v14"]
    a("s_waitcnt vmcnt(8)")
    for x in SQ: a(x)
    a(f"ds_write_b128 v9, {vr(r0, 4)}")
    hdma(2, range(2), "s28")
    a("s_waitcnt lgkmcnt(0)")
    a("s_barrier")
    st(a, 'g2')
    a("s_cmp_eq_u32 s22, 7")
    a("s_cbranch_scc1 K2_W7")
    tile(0, {GB3: ["s_waitcnt vmcnt(0)", "s_barrier"]})
    tile(1, {}, pre=1); tile(2, {}, pre=1)
    tile(3, {}, pre=1, last=True)
    a("s_branch K2_DOWN")
    a.label("K2_W7")
    hdma(3, range(8), "0")
    a("s_waitcnt vmcnt(32)")
    a("s_barrier")
    srd(a, 12, 48, 1792 * 512 * 2)
    a("v_lshrrev_b32 v8, 2, v0")
    a("v_lshlrev_b32 v8, 10, v8")
    a("v_and_b32 v1, 3, v0")
    a("v_lshl_add_u32 v8, v1, 4, v8")
    a("v_lshlrev_b32 v9, 6, v10")
    a("v_lshl_add_u32 v9, v1, 3, v9")
    a("v_bfe_u32 v1, v0, 4, 1")
    a("v_lshl_add_u32 v9, v1, 5, v9")
    a(f"v_add_u32 v9, {SPARE}, v9")
    a("s_lshl_b32 s26, s24, 7")
    ko = lambda s_: s_ + (7 if s_ >= 7 else 0)
    a("s_and_b32 s52, s23, 1")
    a(f"s_mul_i32 s27, s52, {7 * 16384}")
    a("s_add_u32 s27, s27, s26")
    for j in range(28):
        a(f"s_mov_b32 m0, {SPARE + j * 1024}")
        a(f"s_add_u32 s29, s27, {(84 + ko(j // 2)) * 16384 + (1 ^ (j % 2)) * 64}")
        a("buffer_load_dwordx4 v8, s[12:15], s29 offen lds")
    a("s_waitcnt vmcnt(28)")
    a("ds_write_b32 v4, v5 offset:24")
    a("s_waitcnt vmcnt(0)")
    for j in range(28):
        for e in range(2):
            a(f"ds_read_b64_tr_b16 {vr(WD + 4 * j + 2 * e, 2)}, v9 offset:{j * 1024 + e * 512}")
    a("s_waitcnt lgkmcnt(0)")
    a("s_xor_b32 s53, s52, 1")
    a(f"s_mul_i32 s53, s53, {7 * 16384}")
    a("s_add_u32 s53, s53, s26")
    def sdma(w, j, lds):
        a(f"s_mov_b32 m0, {lds}")
        a(f"s_add_u32 s29, s{53 if w < 4 else 27}, {(28 * (w % 4) + ko(j // 2)) * 16384 + ((w % 2) ^ (j % 2)) * 64}")
        a("buffer_load_dwordx4 v8, s[12:15], s29 offen lds")
    for w in range(4):
        for j in range(7): sdma(w, j, SPARE + w * 7168 + j * 1024)
    for r in range(3):
        if r == 2:
            a("s_lshl_b32 s31, s36, 8")
            a("s_lshl_b32 s33, s37, 2")
            a("s_add_u32 s31, s31, s33")
            a(f"s_add_u32 s31, s31, {FL4 + 128}")
            a("v_mov_b32 v12, 0")
            a("v_mov_b32 v13, 1")
            cwait("A", 16)
            signal("K2_S4A")
        cwait(r, r * 4)
        for w in range(4): sdma(w, 7 + r, r * 32768 + 28672 + w * 1024)
        for j in range(28): sdma(4 + r, j, r * 32768 + j * 1024)
        if r == 2:
            a("s_waitcnt vmcnt(28)")
            a("ds_write_b32 v4, v5 offset:20")
    a("s_branch K2_DOWN")
    a.label("K2_GA")
    a("s_waitcnt vmcnt(0)")
    a("s_barrier")
    st(a, 'g1')
    tile(0, {31: ["s_barrier"]}, late=True, last=True)
    st(a, 'g2')
    a("s_barrier")
    tile(1, {}); tile(2, {}, pre=1)
    tile(3, {}, pre=1, last=True)
    a.label("K2_DOWN")
    st(a, 'gu')
    AC5 = 16; GS = [80, 88, 96, 104, 240, 248, 120]; NG = len(GS)
    srd(a, 12, 48, 1792 * 512 * 2)
    srd(a, 16, 62, 2048 * 512 * 2)
    a("s_lshl_b32 s31, s36, 8")
    a("s_lshl_b32 s33, s37, 2")
    a("s_add_u32 s31, s31, s33")
    a(f"s_add_u32 s31, s31, {FL4}")
    a("s_and_b32 s26, s22, 1")
    a("s_bfe_u32 s27, s22, 0x10001")
    a("s_lshl_b32 s28, s24, 1")
    a("s_add_u32 s28, s28, s26")
    a("s_lshl_b32 s30, s23, 1")
    a("s_add_u32 s30, s30, s27")
    a("s_lshr_b32 s33, s22, 2")
    a("s_xor_b32 s33, s33, s23")
    a("s_and_b32 s33, s33, 1")
    a("s_xor_b32 s57, s33, 1")
    a("s_lshl_b32 s33, s25, 2")
    a("s_add_u32 s33, s33, s57")
    a("s_mul_i32 s29, s33, 7168")
    a(f"s_mul_i32 s52, s30, {112 * 1024}")
    a("s_add_u32 s52, s52, s29")
    a(f"s_add_u32 s52, s52, {GF}")
    a("s_xor_b32 s53, s30, 1")
    a(f"s_mul_i32 s53, s53, {112 * 1024}")
    a("s_add_u32 s53, s53, s29")
    a(f"s_add_u32 s53, s53, {GF}")
    a(f"s_mul_i32 s29, s33, {7 * 16384}")
    a("s_lshl_b32 s54, s28, 6")
    a("s_xor_b32 s55, s54, 64")
    a("s_add_u32 s54, s54, s29")
    a("s_add_u32 s55, s55, s29")
    a("s_lshl_b32 s32, s22, 12")
    a("v_lshrrev_b32 v8, 2, v0")
    a("v_lshlrev_b32 v8, 10, v8")
    a("v_and_b32 v1, 3, v0")
    a("v_lshl_add_u32 v8, v1, 4, v8")
    a("v_lshlrev_b32 v9, 6, v10")
    a("v_lshl_add_u32 v9, v1, 3, v9")
    a("v_bfe_u32 v1, v0, 4, 1")
    a("v_lshl_add_u32 v9, v1, 5, v9")
    a("v_mov_b32 v12, 0")
    a("v_mov_b32 v13, 1")
    a("v_and_b32 v3, 31, v0")
    a("v_lshlrev_b32 v3, 10, v3")
    a("v_lshl_add_u32 v3, v11, 4, v3")
    def trd(j, reg, off):
        return [f"ds_read_b64_tr_b16 {vr(WD + 4 * j + 2 * e, 2)}, v{reg} offset:{off + e * 512}" for e in range(2)]
    def wdma(j, sreg, off):
        a(f"s_add_u32 m0, s{sreg}, {off}")
        a(f"s_add_u32 s29, s{54 + j % 2}, {ko(j // 2) * 16384}")
        V("buffer_load_dwordx4 v8, s[12:15], s29 offen lds", "wd")
    def dumpaddr():
        for t in range(4):
            a(f"s_xor_b32 s29, s25, {t}")
            a("s_lshl_b32 s29, s29, 15")
            a("s_add_u32 s29, s29, s32")
            a(f"v_add_u32 v{4 + t}, s29, v2")
    gb = [0]
    def gload(s):
        k = ko(s) * 1024
        if k - gb[0] > 3072:
            a(f"s_add_u32 s52, s52, {k - gb[0]}")
            a(f"s_add_u32 s53, s53, {k - gb[0]}")
            gb[0] = k
        for i in range(2):
            V(f"buffer_load_dwordx4 {vr(GS[s % NG] + 4 * i, 4)}, v2, s[8:11], s{52 + i} offen offset:{k - gb[0]} sc1", f"g{s}")
    def kloop(hooks, fills):
        issued = NG; fq = []
        for s in range(KS):
            for x in hooks.get(s, []):
                x() if callable(x) else a(x)
            fq += fills.get(s, [])
            vmwait(f"g{s}")
            g = GS[s % NG]; w = WD + 8 * s
            B0, B1, A0, A1 = vr(g, 4), vr(g + 4, 4), vr(w, 4), vr(w + 4, 4)
            C = "0" if s == 0 else None
            for d_, A_, B_ in ((AC5 + 32, A0, B1), (AC5 + 16, A1, B0), (AC5 + 48, A1, B1), (AC5, A0, B0)):
                a(MF32(vr(d_, 16), A_, B_, C))
                for _ in range(5):
                    if fq: a(fq.pop(0))
            if issued < KS:
                gload(issued); issued += 1
        assert not fq
    def dump(ts):
        for t in ts:
            for q in range(4):
                a(f"ds_write_b128 v{4 + t}, {vr(AC5 + 16 * t + 4 * q, 4)} offset:{q * 1024}")
    a("s_cmp_lt_u32 s22, 4")
    a("s_cbranch_scc1 K2_DLO")
    a("s_lshl_b32 s29, s25, 15")
    a("v_add_u32 v9, s29, v9")
    a(f"v_mov_b32 v14, {CNT}")
    dumpaddr()
    if UNSAFE & 8:
        a("s_cmp_eq_u32 s22, 7")
        a("s_cbranch_scc0 K2_UZ")
    a("s_waitcnt vmcnt(0)")
    a.label("K2_UZ")
    a("s_barrier")
    signal("K2_S4", True)
    st(a, 'z0')
    del vm[:]; gb[0] = 0
    for s in range(NG): gload(s)
    a("s_cmp_eq_u32 s22, 7")
    a("s_cbranch_scc1 K2_D7")
    for j in range(28):
        for x in trd(j, 9, j * 1024): a(x)
    a.label("K2_D7")
    a("s_waitcnt lgkmcnt(0)")
    a("s_mov_b64 exec, 1")
    a("ds_add_u32 v14, v13 offset:28")
    a("s_mov_b64 exec, -1")
    if D_PRIO: a("s_setprio 2")
    kloop({D_ZS: ["s_barrier"]} if D_ZS >= 0 else {}, {})
    a("v_mov_b32 v15, v6")
    cwait("Z", 28, 8, 14)
    a("v_mov_b32 v6, v15")
    st(a, 't4'); st(a, 'dk'); st(a, 'db'); st(a, 'ds')
    a("s_nop 8")
    dump((2, 1, 3, 0))
    a("s_waitcnt lgkmcnt(0)")
    a("s_barrier")
    stamp_end(a, 0, 7, 8)
    a("s_endpgm")
    a.label("K2_DLO")
    del vm[:]; gb[0] = 0
    a("s_mul_i32 s26, s25, 7168")
    a(f"s_add_u32 s26, s26, {SPARE}")
    a("s_lshl_b32 s27, s25, 10")
    a("s_add_u32 s27, s27, 28672")
    a("s_lshl_b32 s28, s25, 13")
    a("s_add_u32 s28, s28, 98304")
    a("v_add_u32 v10, s26, v9")
    a("v_add_u32 v14, s27, v9")
    a("v_add_u32 v15, 65536, v14")
    a("v_add_u32 v9, s28, v9")
    SL = [(26, k * 1024, 10, k * 1024) for k in range(7)] + [(27, 0, 14, 0), (27, 32768, 14, 32768), (27, 65536, 15, 0)]
    cwait("R", 20, 1)
    for k in range(10):
        for x in trd(k, SL[k][2], SL[k][3]): a(x)
    a("s_waitcnt vmcnt(0) lgkmcnt(0)")
    for k in range(10): wdma(10 + k, SL[k][0], SL[k][1])
    a("s_cmp_eq_u32 s22, 3")
    a("s_cbranch_scc0 K2_NPA")
    a("v_mov_b32 v16, v15")
    a("s_lshr_b32 s29, s23, 1")
    a("s_lshl_b32 s29, s29, 8")
    a("s_xor_b32 s30, s57, 1")
    a("s_lshl_b32 s33, s30, 2")
    a("s_add_u32 s29, s29, s33")
    a(f"s_add_u32 s29, s29, {FL4 + 128}")
    poll("K2_P4A", 29, 8, 3)
    a("v_mov_b32 v15, v16")
    if G_ET:
        a("s_lshl_b32 s33, s24, 1")
        a("s_add_u32 s29, s30, s33")
        a("s_mul_i32 s29, s29, 7168")
        a(f"s_mul_i32 s33, s23, {224 * 1024}")
        a("s_add_u32 s29, s29, s33")
        a(f"s_add_u32 s29, s29, {GF}")
        a("v_min_u32 v1, 55, v0")
        a("v_lshlrev_b32 v1, 7, v1")
        a("buffer_load_dword v17, v1, s[8:11], s29 offen sc1")
        a(f"s_add_u32 s29, s29, {112 * 1024}")
        a("buffer_load_dword v17, v1, s[8:11], s29 offen sc1")
    a.label("K2_NPA")
    dumpaddr()
    a("s_barrier")
    st(a, 'z0')
    for k in range(8): wdma(20 + k, 28, k * 1024)
    a("s_waitcnt vmcnt(8)")
    for k in range(10):
        for x in trd(10 + k, SL[k][2], SL[k][3]): a(x)
    a("s_lshl_b32 s29, s25, 15")
    a("v_add_u32 v8, s29, v2")
    a(f"v_mov_b32 v12, {CNT + 12}")
    a("s_waitcnt vmcnt(0)")
    for k in range(8):
        for x in trd(20 + k, 9, k * 1024): a(x)
    for t in range(1, 4):
        a(f"s_xor_b32 s33, s25, {t}")
        a("s_lshl_b32 s33, s33, 12")
        a(f"v_add_u32 v{(10, 11, 4)[t - 1]}, s33, v8")
    a("s_waitcnt lgkmcnt(0)")
    a("s_mov_b64 exec, 1")
    a("ds_add_u32 v12, v13 offset:16")
    a("s_mov_b64 exec, -1")
    if D_ZS >= 0: a("s_barrier")
    a("s_cmp_eq_u32 s22, 0")
    a("s_cbranch_scc0 K2_DSP")
    a("s_lshr_b32 s29, s23, 1")
    a("s_lshl_b32 s29, s29, 8")
    a("s_lshl_b32 s33, s57, 2")
    a("s_add_u32 s29, s29, s33")
    a(f"s_add_u32 s29, s29, {FL4}")
    poll2("K2_P4", 29, 8, 3)
    a("ds_write_b32 v12, v13")
    a("s_branch K2_DGO")
    a.label("K2_DSP")
    a("s_mov_b32 s33, 0")
    a.label("K2_DSL")
    a("s_sleep 1")
    a("ds_read_b32 v15, v12")
    a("s_add_u32 s33, s33, 1")
    a("s_waitcnt lgkmcnt(0)")
    a("v_cmp_eq_u32 vcc, 1, v15")
    a("s_cmp_gt_u32 s33, 0x400000")
    a("s_cbranch_scc1 K2_DGO")
    a("s_cbranch_vccz K2_DSL")
    a.label("K2_DGO")
    st(a, 't4')
    del vm[:]
    for s in range(NG): gload(s)
    a("s_mov_b32 s56, 0xffff0000")
    a("s_waitcnt lgkmcnt(0)")
    F1 = [f"ds_read_b128 {vr(WD + 16 * p_ + 4 * q, 4)}, v8 offset:{16384 + p_ * 4096 + q * 1024}" for p_ in range(4) for q in range(4)]
    F2 = [f"v_add_f32 v{WD + i}, v{WD + i}, v{WD + 16 + i}" for i in range(16)]
    F2 += [f"v_add_f32 v{WD + 32 + i}, v{WD + 32 + i}, v{WD + 48 + i}" for i in range(16)]
    F2 += [f"v_add_f32 v{WD + i}, v{WD + i}, v{WD + 32 + i}" for i in range(16)]
    for i in range(8):
        F2 += [f"v_lshlrev_b32 v{WD + 16 + 2 * i}, 16, v{112 + i}", f"v_and_b32 v{WD + 17 + 2 * i}, s56, v{112 + i}"]
    F2 += [f"v_add_f32 v{WD + i}, v{WD + i}, v{WD + 16 + i}" for i in range(16)]
    kloop({8: ["s_barrier"], 10: ["s_waitcnt lgkmcnt(0)"]}, {8: F1, 10: F2}) if not D_LATE else kloop({9: ["s_barrier"], 10: ["s_waitcnt lgkmcnt(0)"]}, {9: F1, 10: F2})
    st(a, 'dk')
    dump((2, 1, 3))
    for i in range(16):
        a(f"v_add_f32 v{AC5 + i}, v{AC5 + i}, v{WD + i}")
    a("s_waitcnt lgkmcnt(0)")
    a("s_barrier")
    st(a, 'db')
    for t in range(3):
        for q in range(4):
            a(f"ds_read_b128 {vr(WD + 16 * t + 4 * q, 4)}, v{(10, 11, 4)[t]} offset:{q * 1024}")
    for t in range(3):
        a(f"s_waitcnt lgkmcnt({8 - 4 * t})")
        for i in range(0, 16, 2):
            a(f"v_pk_add_f32 {vr(AC5 + i, 2)}, {vr(AC5 + i, 2)}, {vr(WD + 16 * t + i, 2)}")
    o = AC5 + 16
    for i in range(8):
        a(f"v_cvt_pk_bf16_f32 v{o + i}, v{AC5 + 2 * i}, v{AC5 + 2 * i + 1}")
    a("s_nop 0")
    for j in range(2):
        a(f"v_permlane32_swap_b32 v{o + 4 * j}, v{o + 4 * j + 2}")
        a(f"v_permlane32_swap_b32 v{o + 4 * j + 1}, v{o + 4 * j + 3}")
    for j in range(2):
        a(f"buffer_store_dwordx4 {vr(o + 4 * j, 4)}, v3, s[16:19], s51 offen offset:{j * 32} {OUT_SC}")
    st(a, 'ds')
    stamp_end(a, 0, 7, 8)
    a("s_endpgm")
    a.label("K2_FALLBACK")
    a("v_mov_b32 v1, v2")
    a("v_mov_b32 v14, 0xff800000")
    a("s_mov_b32 s33, 0")
    a(f"s_add_u32 s52, s25, {KF}")
    a(f"s_add_u32 s53, s25, {VF - 65536}")
    a.label("K2_FB1")
    a(f"buffer_load_dwordx4 {vr(KR, 4)}, v1, s[8:11], s52 offen sc1")
    a("v_add_u32 v1, 1024, v1")
    a("s_waitcnt vmcnt(0)")
    a(MF32(vr(s0, 16), vr(KR, 4), vr(Q, 4), "0"))
    a("s_nop 11")
    for i in range(0, 16, 2):
        a(f"v_max3_f32 v14, v14, v{s0+i}, v{s0+i+1}")
    a("s_add_u32 s33, s33, 1")
    a("s_cmp_lt_u32 s33, 64")
    a("s_cbranch_scc1 K2_FB1")
    set_negm()
    for i in range(16):
        a(f"v_mov_b32 v{O + i}, 0")
    a("v_mov_b32 v1, v2")
    a("s_mov_b32 s33, 0")
    a.label("K2_FB2")
    a(f"buffer_load_dwordx4 {vr(KR, 4)}, v1, s[8:11], s52 offen sc1")
    a("s_mov_b64 exec, s[34:35]")
    a(f"buffer_load_dwordx4 {vr(VR, 4)}, v3, s[8:11], s53 offen sc1")
    a(f"buffer_load_dwordx4 {vr(VR + 4, 4)}, v3, s[8:11], s53 offen offset:512 sc1")
    a("s_mov_b64 exec, -1")
    a("v_add_u32 v1, 1024, v1")
    a("v_add_u32 v3, 1024, v3")
    a("s_waitcnt vmcnt(0)")
    a(MF32(vr(s0, 16), vr(KR, 4), vr(Q, 4), vr(NEGM, 16)))
    a("s_nop 11")
    for i in range(16): a(f"v_exp_f32 v{s0+i}, v{s0+i}")
    a("s_nop 0")
    for i in range(8): a(f"v_cvt_pk_bf16_f32 v{P+i}, v{s0+2*i}, v{s0+2*i+1}")
    a("s_nop 1")
    a(MF32(vr(O, 16), vr(VR, 4), vr(P, 4)))
    a(MF32(vr(O, 16), vr(VR + 4, 4), vr(P + 4, 4)))
    a("s_add_u32 s33, s33, 1")
    a("s_cmp_lt_u32 s33, 64")
    a("s_cbranch_scc1 K2_FB2")
    a("s_nop 11")
    a("s_branch K2_FIN")
    a.label("K2_END")
    a("s_endpgm")
    return n, a, kd(n, 256, 256), (256, 512, 163840)

def k5():
    a = Asm(); n = "k3_down_kernel"
    NS = 112; KS = 28; DEPTH = 8
    kernel_head(a, n)
    ACC = 16; GB = 80; WB = 144; RES = 160
    RED = 65536
    a("s_cmp_ge_u32 s2, 256")
    a("s_cbranch_scc1 K5_END")
    stamp(a, 0)
    if DBGK1:
        a("s_memrealtime s[64:65]")
        a("s_memtime s[66:67]")
    a("s_load_dwordx2 s[4:5], s[0:1], 72")
    a("s_load_dwordx4 s[40:43], s[0:1], 48")
    a("v_lshrrev_b32 v1, 6, v0")
    a("v_and_b32 v0, 63, v0")
    a("v_readfirstlane_b32 s22, v1")
    a("v_lshlrev_b32 v2, 4, v0")
    a("s_and_b32 s23, s2, 7")
    a("s_lshl_b32 s23, s23, 2")
    a("s_bfe_u32 s29, s2, 0x20003")
    a("s_add_u32 s23, s23, s29")
    a("s_lshr_b32 s24, s2, 5")
    a("s_and_b32 s25, s22, 1")
    a("s_lshr_b32 s26, s22, 1")
    a("s_lshl_b32 s27, s24, 1")
    a("s_add_u32 s27, s27, s25")
    a("s_lshl_b32 s28, s23, 1")
    a("s_add_u32 s28, s28, s26")
    a(f"s_mul_i32 s29, s22, {KS * 1024}")
    a(f"s_mul_i32 s32, s28, {NS * 1024}")
    a("s_add_u32 s32, s32, s29")
    a(f"s_add_u32 s32, s32, {GF}")
    a("s_xor_b32 s33, s28, 1")
    a(f"s_mul_i32 s33, s33, {NS * 1024}")
    a("s_add_u32 s33, s33, s29")
    a(f"s_add_u32 s33, s33, {GF}")
    a(f"s_mul_i32 s29, s22, {KS * 16384}")
    a("s_lshl_b32 s30, s27, 6")
    a("s_xor_b32 s31, s30, 64")
    a("s_add_u32 s30, s30, s29")
    a("s_add_u32 s31, s31, s29")
    a("s_lshl_b32 s36, s22, 14")
    a("v_lshrrev_b32 v8, 2, v0")
    a("v_lshlrev_b32 v8, 10, v8")
    a("v_and_b32 v1, 3, v0")
    a("v_lshl_add_u32 v8, v1, 4, v8")
    a("s_waitcnt lgkmcnt(0)")
    srd(a, 8, 4, WS_SIZE)
    srd(a, 16, 40, 1792 * 512 * 2)
    srd(a, 12, 42, 2048 * 512 * 2)
    def loads(s):
        b = GB + 8 * (s % DEPTH)
        if s % 4 == 0 and s > 0:
            a("s_add_u32 s32, s32, 4096")
            a("s_add_u32 s33, s33, 4096")
        for i in range(2):
            a(f"s_add_u32 m0, s36, {(s % DEPTH) * 2048 + i * 1024}")
            a(f"s_add_u32 s29, s{30 + i}, {s * 16384}")
            a("buffer_load_dwordx4 v8, s[16:19], s29 offen lds")
        for i in range(2):
            a(f"buffer_load_dwordx4 {vr(b + 4 * i, 4)}, v2, s[8:11], s{32 + i} offen offset:{(s % 4) * 1024}")
    for s in range(DEPTH - 1):
        loads(s)
    a("v_lshrrev_b32 v4, 5, v0")
    a("v_bfe_u32 v1, v0, 2, 2")
    a("v_lshl_add_u32 v9, v4, 2, v1")
    a("v_lshlrev_b32 v9, 6, v9")
    a("v_and_b32 v1, 3, v0")
    a("v_lshl_add_u32 v9, v1, 3, v9")
    a("v_bfe_u32 v1, v0, 4, 1")
    a("v_lshl_add_u32 v9, v1, 5, v9")
    a("v_add_u32 v9, s36, v9")
    a("v_and_b32 v3, 31, v0")
    a("v_lshlrev_b32 v3, 10, v3")
    a("v_lshl_add_u32 v3, v4, 4, v3")
    a("s_lshl_b32 s34, s28, 15")
    a("s_lshl_b32 s35, s27, 6")
    a("s_add_u32 s34, s34, s35")
    a("s_lshl_b32 s35, s28, 15")
    a("s_lshl_b32 s37, s27, 11")
    a("s_add_u32 s35, s35, s37")
    a(f"s_add_u32 s35, s35, {HF}")
    for t in range(1, 4):
        a(f"s_xor_b32 s29, s22, {t}")
        a("s_mul_i32 s29, s29, 12288")
        a(f"s_add_u32 s29, s29, {RED}")
        a(f"v_add_u32 v{4 + t}, s29, v2")
    a("s_mul_i32 s29, s22, 12288")
    a(f"s_add_u32 s29, s29, {RED}")
    a("v_add_u32 v4, s29, v2")
    def trreads(s):
        for i in range(2):
            for e in range(2):
                a(f"ds_read_b64_tr_b16 {vr(WB + 8 * (s % 2) + 4 * i + 2 * e, 2)}, v9 offset:{(s % DEPTH) * 2048 + i * 1024 + e * 512}")
    def mfmas(s):
        g = GB + 8 * (s % DEPTH); w = WB + 8 * (s % 2)
        B0, B1, A0, A1 = vr(g, 4), vr(g + 4, 4), vr(w, 4), vr(w + 4, 4)
        C = "0" if s == 0 else None
        a(MF32(vr(ACC, 16), A0, B0, C))
        a(MF32(vr(ACC + 32, 16), A0, B1, C))
        a(MF32(vr(ACC + 16, 16), A1, B0, C))
        a(MF32(vr(ACC + 48, 16), A1, B1, C))
    issued = DEPTH - 1; res = 0
    a(f"s_waitcnt vmcnt({(issued - 1) * 4})")
    st(a, 't1')
    trreads(0)
    for s in range(KS):
        if issued < KS:
            loads(issued); issued += 1
            if issued == KS:
                for j in range(2):
                    a(f"buffer_load_dwordx4 {vr(RES + 4 * j, 4)}, v2, s[8:11], s35 offen offset:{j * 1024}")
                res = 2
        if s + 1 < KS:
            a(f"s_waitcnt vmcnt({(issued - s - 2) * 4 + res})")
            trreads(s + 1)
            a("s_waitcnt lgkmcnt(4)")
        else:
            a("s_waitcnt lgkmcnt(0)")
        mfmas(s)
    st(a, 'att')
    a("s_waitcnt vmcnt(0)")
    a("s_mov_b32 s29, 0xffff0000")
    for i in range(8):
        a(f"v_lshlrev_b32 v{RES + 8 + 2 * i}, 16, v{RES + i}")
        a(f"v_and_b32 v{RES + 9 + 2 * i}, s29, v{RES + i}")
    for t in (2, 1, 3):
        for q in range(4):
            a(f"ds_write_b128 v{4 + t}, {vr(ACC + 16 * t + 4 * q, 4)} offset:{(t - 1) * 4096 + q * 1024}")
    for i in range(16):
        a(f"v_add_f32 v{ACC + i}, v{ACC + i}, v{RES + 8 + i}")
    a("s_waitcnt lgkmcnt(0)")
    a("s_barrier")
    for t in range(3):
        for q in range(4):
            a(f"ds_read_b128 {vr(GB + 16 * t + 4 * q, 4)}, v4 offset:{t * 4096 + q * 1024}")
    for t in range(3):
        a(f"s_waitcnt lgkmcnt({8 - 4 * t})")
        for i in range(0, 16, 2):
            a(f"v_pk_add_f32 {vr(ACC + i, 2)}, {vr(ACC + i, 2)}, {vr(GB + 16 * t + i, 2)}")
    o = ACC + 16
    for i in range(8):
        a(f"v_cvt_pk_bf16_f32 v{o + i}, v{ACC + 2 * i}, v{ACC + 2 * i + 1}")
    a("s_nop 0")
    for j in range(2):
        a(f"v_permlane32_swap_b32 v{o + 4 * j}, v{o + 4 * j + 2}")
        a(f"v_permlane32_swap_b32 v{o + 4 * j + 1}, v{o + 4 * j + 3}")
    for j in range(2):
        a(f"buffer_store_dwordx4 {vr(o + 4 * j, 4)}, v3, s[12:15], s34 offen offset:{j * 32}")
    stamp_end(a, 2, 3, 8)
    if DBGK1:
        a("s_waitcnt vmcnt(0)")
        a("s_memrealtime s[68:69]")
        a("s_memtime s[70:71]")
        a("s_load_dwordx2 s[72:73], s[0:1], 64")
        a("s_waitcnt lgkmcnt(0)")
        srd(a, 76, 72, 256)
        a("s_sub_u32 s70, s70, s66")
        a("s_cmp_lg_u32 s2, 0")
        a("s_cbranch_scc1 K5_END")
        a(f"s_mov_b32 s74, {DBGOFF}")
        a("v_mov_b32 v0, 0")
        a("buffer_load_dwordx4 v[4:7], v0, s[8:11], s74 offen")
        a("buffer_load_dwordx4 v[8:11], v0, s[8:11], s74 offen offset:16")
        a("s_waitcnt vmcnt(0)")
        a("v_sub_u32 v5, v5, v4")
        a("v_sub_u32 v8, v8, v4")
        a("v_sub_u32 v9, v9, v4")
        a("v_sub_u32 v12, s64, v4")
        a("v_sub_u32 v13, s68, v4")
        a("v_mov_b32 v14, s70")
        a("v_mov_b32 v15, 0")
        a("buffer_store_dwordx4 v[4:7], v0, s[76:79], 0 offen")
        a("buffer_store_dwordx4 v[8:11], v0, s[76:79], 0 offen offset:16")
        a("buffer_store_dwordx4 v[12:15], v0, s[76:79], 0 offen offset:32")
    a.label("K5_END")
    a("s_endpgm")
    return n, a, kd(n, 192, 192), (256, 256, RED + 49152)

DOC = """;
"""
def main(out):
    ks = [k234()]
    hdr = open("cdna_kernels/" + NAME + ".s.ref").read().split("\n")
    hdr = [l for l in hdr if l.startswith(";") and "@launch" not in l and "Override" not in l and "grid=ceil" not in l]
    txt = "\n".join(hdr) + "\n"
    for n, a, d, (g, b, lds) in ks:
        txt += f"; @launch {'kernel=' + n + ' ' if LIST else ''}grid=({g},1,1) block=({b},1,1) lds={lds}\n"
    txt += DOC
    txt += '.amdgcn_target "amdgcn-amd-amdhsa--gfx950"\n.text\n'
    bad = 0
    for ki, (n, a, d, _) in enumerate(ks):
        fl = ST_FLAGS[ki]
        if fl:
            a.lines = [l + " " + fl if ("buffer_store_dwordx" in l and "sc1" not in l) else l for l in a.lines]
        bad += check_hazards(a.lines, n)
        txt += a.text()
    txt += "CODE_END:\n"
    txt += '.section .rodata,"a"\n'
    for n, a, d, _ in ks:
        txt += ".p2align 6\n" + d
    open(out, "w").write(txt)
    print("hazards:", bad)

if __name__ == "__main__":
    if "stamp" in sys.argv: STAMP = True
    for arg in sys.argv[2:]:
        if "=" in arg:
            k_, v_ = arg.split("=", 1)
            globals()[k_] = eval(v_)
    main(sys.argv[1] if len(sys.argv) > 1 else "cdna_kernels/" + NAME + ".s")
```

```python
import sys, math, struct
from asmlib import *

NAME = "sequential_preLN__mha_block__geglu_ffn__prompt"

QF, KF, VF, OF, HF = 0x000000, 0x200000, 0x400000, 0x600000, 0x800000
ST  = 0xA00000
CSF = 0xA80000
WOF = 0xB00000
WGF = 0xC00000
WDF = 0x1000000
GF  = 0x1200000
WS_SIZE = 0x10000000
FL1 = 0xB02800
FL2 = 0xB00000
FL3 = 0xB00800
FL4 = 0xB01800

def f32(x):
    return "0x%08x" % struct.unpack("<I", struct.pack("<f", x))[0]

LOG2E = 1.4426950408889634
EPS = 1e-5

def srd(a, s, base, size):
    a(f"s_mov_b32 s{s}, s{base}")
    a(f"s_mov_b32 s{s+1}, s{base+1}")
    a(f"s_mov_b32 s{s+2}, {hex(size)}")
    a(f"s_mov_b32 s{s+3}, 0x00020000")

def kernel_head(a, name):
    a.raw(f".globl {name}")
    a.raw(".p2align 8")
    a.raw(f".type {name},@function")
    a.raw(f"{name}:")

def kd(name, nvgpr, accum, nsgpr=100):
    return f""".amdhsa_kernel {name}
  .amdhsa_next_free_vgpr {nvgpr}
  .amdhsa_next_free_sgpr {nsgpr}
  .amdhsa_accum_offset {accum}
  .amdhsa_group_segment_fixed_size 0
  .amdhsa_kernarg_size 80
  .amdhsa_user_sgpr_count 2
  .amdhsa_user_sgpr_kernarg_segment_ptr 1
  .amdhsa_system_sgpr_workgroup_id_x 1
.end_amdhsa_kernel
"""

STAMP = False
COOP = None
G_W7H = 0
W7_PF = 0
W7_MT = -1
XSLOT = None
C1_LATE = 0
KV_SC = 'sc1'
K2_E = (2, 7, 12)
ONES2 = 1
KV_ROT = 0
G_NOP = 0
PREOWN = 0
K1_PRE = 0
K1_XS = None
UNSAFE = 0
NT_W = ''
NT_X = ''
NT_G = ''
K2_CAD = 3
K2_W7S = 1
K1_CHIP = 0
K1_CF = ''
K2_T0 = 12
O_TCH = -1
H_TCH = -1
OUT_SC = ''
D_PRIO = 1
D_LATE = 0
O_PRIO = 0
ATOM = 1
NREP = 1
PIF = 1
POLL_PRE = 0
O_B1 = 10
POLL2 = 0
D_ZS = 4
W3_TOUCH = 0
G_EA = 12
G_PERM = 1
G_ET = 1
D_ROT = 1
G_TOUCH = 0
SMAP = ['t1', 'att', 't2', 't3', 'gu', 't4']
K2_Y2 = 30
K2_PER = 4
PIN = None
PINN = []
LIST = 1
FASTL2 = 1
D_Y = 6
DBGK1 = 0
LD_SC = 'sc1'
GSTAMP = 0
G_P2 = 8
GB3 = 20
GA3 = 0
POLL_SLEEP = 0
B_FILL = 4
K2_TCH = 1
G_SC = 'sc1'
CODE_TOUCH = 0
K1_ROT = 1
K1_TW = [-1, 0, 1]
K4_SL = 26
K2_S3 = 11
K2_WD = 0
K1_D = 1
K4_D = 2
K4_XB = 12
K4_TOUCH = 0
K2_S2 = 4
K1_TOUCH = 1
ST_FLAGS = ['', '', '', '', '']
K2_Y = 6
SIDE_SC = 'sc1'
K1_UP = 14
K4_UP = 22
DBGOFF = 0x2000000
def st(a, name):
    if name in SMAP: stamp(a, SMAP.index(name) + 1)
def stamp(a, i):
    if PIN:
        if i == 0: a("s_memrealtime s[64:65]")
        if i == PIN[0]:
            PINN.append(0); L = f"PIN{len(PINN)}"
            if len(PIN) > 2:
                a(f"s_cmp_lg_u32 s2, {PIN[2]}")
                a(f"s_cbranch_scc1 {L}X")
            a.label(L)
            a("s_memrealtime s[66:67]")
            a("s_waitcnt lgkmcnt(0)")
            a("s_sub_u32 s66, s66, s64")
            a(f"s_cmp_lt_u32 s66, {PIN[1]}")
            a(f"s_cbranch_scc1 {L}")
            a.label(L + "X")
    if not STAMP: return
    a(f"s_memrealtime s[{64 + 4 * i}:{65 + 4 * i}]")
    a(f"s_memtime s[{66 + 4 * i}:{67 + 4 * i}]")
    if i != 0:
        a("s_waitcnt lgkmcnt(0)")
def stamp_end(a, kidx, n, srdreg, wavereg=22):
    if PIN: stamp(a, n)
    if not STAMP: return
    a("s_waitcnt vmcnt(0)")
    stamp(a, n)
    a("s_lshl_b32 s60, s2, 3")
    a(f"s_add_u32 s60, s60, s{wavereg}")
    a("s_lshl_b32 s60, s60, 6")
    a(f"s_add_u32 s60, s60, {DBGOFF + kidx * 0x40000}")
    a("v_mov_b32 v0, 0")
    for j in range(2 * n + 2):
        a(f"v_mov_b32 v1, s{64 + 2 * j}")
        a(f"buffer_store_dword v1, v0, s[{srdreg}:{srdreg+3}], s60 offen offset:{4 * j}")

def MF32(d, A, B, C=None):
    C = d if C is None else C
    return f"v_mfma_f32_32x32x16_bf16 {d}, {A}, {B}, {C}"

def halfsum(a, v, t):
    a(f"v_mov_b32 v{t}, v{v}")
    a("s_nop 1")
    a(f"v_permlane32_swap_b32 v{v}, v{t}")
    a(f"v_add_f32 v{v}, v{v}, v{t}")


def k1():
    a = Asm(); n = NAME + "_kernel"
    kernel_head(a, n)
    SLOT = 28672; SCR = 5 * SLOT; SCR2 = SCR + 1536; SCR3 = SCR2 + 512
    D = K1_D
    a("s_cmp_ge_u32 s2, 256")
    a("s_cbranch_scc1 K2_END")
    stamp(a, 0)
    if DBGK1:
        a("s_memrealtime s[64:65]")
        a("s_memtime s[66:67]")
    a("s_load_dwordx4 s[4:7], s[0:1], 0")
    a("s_load_dwordx4 s[56:59], s[0:1], 64")
    a("v_lshrrev_b32 v1, 6, v0")
    a("v_and_b32 v0, 63, v0")
    a("v_readfirstlane_b32 s35, v1")
    a("s_and_b32 s23, s2, 3")
    a("s_lshl_b32 s23, s23, 2")
    a("s_bfe_u32 s29, s2, 0x20003")
    a("s_add_u32 s23, s23, s29")
    a("s_bfe_u32 s24, s2, 0x10002")
    a("s_lshl_b32 s24, s24, 3")
    a("s_lshr_b32 s29, s2, 5")
    a("s_add_u32 s24, s24, s29")
    a("s_and_b32 s22, s35, 3")
    a("s_lshl_b32 s27, s22, 12")
    a("s_lshl_b32 s40, s2, 1")
    a("s_and_b32 s29, s2, 4")
    a("s_add_u32 s40, s40, s29")
    if not K1_ROT: a("s_mov_b32 s40, 0")
    a("s_cmp_lt_u32 s35, 4")
    a("s_cbranch_scc1 K1_MM")
    a("s_lshl_b32 s25, s23, 17")
    a("s_lshl_b32 s29, s22, 15")
    a("s_add_u32 s25, s25, s29")
    a("s_mul_i32 s26, s22, 49152")
    a("s_lshl_b32 s29, s24, 6")
    a("s_add_u32 s26, s26, s29")
    a("s_lshl_b32 s28, s22, 10")
    a("s_add_u32 s28, s28, 16384")
    a("s_mov_b32 s30, 0x3f803f80")
    a("v_lshrrev_b32 v5, 3, v0")
    a("v_lshlrev_b32 v2, 10, v5")
    a("v_and_b32 v6, 7, v0")
    a("v_lshrrev_b32 v7, 4, v0")
    a("v_xor_b32 v6, v6, v7")
    a("v_lshl_add_u32 v2, v6, 4, v2")
    a("v_xor_b32 v3, 64, v2")
    a("v_add_u32 v3, 8192, v3")
    a("v_lshrrev_b32 v5, 2, v0")
    a("v_mul_u32_u24 v4, 3072, v5")
    a("v_and_b32 v6, 3, v0")
    a("v_lshl_add_u32 v4, v6, 4, v4")
    a("s_waitcnt lgkmcnt(0)")
    srd(a, 8, 4, 2048 * 512 * 2)
    srd(a, 12, 6, 512 * 1536 * 2)
    def dma(c):
        slot = (c % 5) * SLOT
        a(f"s_add_u32 s41, s40, {c}")
        a("s_and_b32 s41, s41, 7")
        a("s_lshl_b32 s42, s41, 7")
        a("s_add_u32 s42, s42, s25")
        a(f"s_mul_i32 s41, s41, {64 * 3072}")
        a("s_add_u32 s41, s41, s26")
        for p in range(3):
            a(f"s_add_u32 m0, s28, {slot + p * 4096}")
            a(f"s_add_u32 s29, s41, {p * 1024}")
            a(f"buffer_load_dwordx4 v4, s[12:15], s29 offen {NT_W} lds")
        for i in range(4):
            a(f"s_add_u32 m0, s27, {slot + i * 1024}")
            a(f"s_add_u32 s29, s42, {(i // 2) * 16384}")
            a(f"buffer_load_dwordx4 v{2 + (i % 2)}, s[8:11], s29 offen {NT_X} lds")
    if K1_PRE:
        a("s_lshr_b32 s37, s2, 3")
        a("s_lshr_b32 s38, s40, 1")
        a("s_and_b32 s38, s38, 3")
        a("s_cmp_lt_u32 s22, 2")
        a("s_cbranch_scc1 K1_PW")
        a("s_and_b32 s36, s2, 3")
        a("s_lshl_b32 s36, s36, 19")
        a("s_lshl_b32 s39, s37, 14")
        a("s_add_u32 s36, s36, s39")
        a("s_and_b32 s39, s22, 1")
        a("s_lshl_b32 s39, s39, 13")
        a("s_add_u32 s36, s36, s39")
        a("s_lshl_b32 s39, s38, 8")
        a("s_add_u32 s36, s36, s39")
        a("v_bfe_u32 v23, v0, 1, 3")
        a("v_lshlrev_b32 v23, 10, v23")
        a("v_and_b32 v24, 1, v0")
        a("v_lshl_add_u32 v23, v24, 7, v23")
        a("s_mov_b64 exec, 0xffff")
        a("buffer_load_dword v31, v23, s[8:11], s36 offen")
        a("s_mov_b64 exec, -1")
        a("s_branch K1_PD")
        a.label("K1_PW")
        a("s_mul_i32 s36, s37, 12288")
        a("s_mul_i32 s39, s22, 6144")
        a("s_add_u32 s36, s36, s39")
        a("s_bfe_u32 s39, s2, 0x10002")
        a("s_lshl_b32 s39, s39, 9")
        a("s_add_u32 s36, s36, s39")
        a(f"s_mul_i32 s39, s38, {128 * 3072}")
        a("s_add_u32 s36, s36, s39")
        a("v_bfe_u32 v23, v0, 4, 1")
        a("v_mul_u32_u24 v23, 3072, v23")
        a("v_bfe_u32 v24, v0, 2, 2")
        a("v_min_u32 v24, 2, v24")
        a("v_lshl_add_u32 v23, v24, 10, v23")
        a("v_and_b32 v24, 3, v0")
        a("v_lshl_add_u32 v23, v24, 7, v23")
        a("s_mov_b64 exec, 0xffffffff")
        a("buffer_load_dword v31, v23, s[12:15], s36 offen")
        a("s_mov_b64 exec, -1")
        a.label("K1_PD")
        a("s_waitcnt vmcnt(0)")
    for c in range(D + 1):
        dma(c)
    def rdaddr():
        a("v_and_b32 v5, 31, v0")
        a("v_lshrrev_b32 v6, 5, v0")
        a("v_bfe_u32 v7, v0, 1, 3")
        a("v_xor_b32 v7, v7, v6")
        a("v_lshlrev_b32 v5, 7, v5")
        a("v_add_u32 v5, s27, v5")
        for s in range(4):
            a(f"v_xor_b32 v1, {2 * s}, v7")
            a(f"v_lshl_add_u32 v{8 + s}, v1, 4, v5")
            a(f"v_add_u32 v{12 + s}, {2 * SLOT}, v{8 + s}")
            a(f"v_add_u32 v{16 + s}, {4 * SLOT}, v{8 + s}")
        a("v_bfe_u32 v1, v0, 2, 2")
        a("v_lshl_add_u32 v1, v6, 3, v1")
        a("v_lshlrev_b32 v20, 6, v1")
        a("v_bfe_u32 v1, v0, 4, 1")
        a("v_lshl_add_u32 v20, v1, 5, v20")
        a("v_and_b32 v1, 3, v0")
        a("v_lshl_add_u32 v20, v1, 3, v20")
    rdaddr()
    a("s_lshl_b32 s29, s22, 10")
    a("v_add_u32 v20, s29, v20")
    a(f"v_add_u32 v21, {2 * SLOT}, v20")
    a(f"v_add_u32 v22, {4 * SLOT}, v20")
    for i in range(28, 31):
        a(f"v_mov_b32 v{i}, 0")
    WB = 48
    for c in range(8):
        slot = c % 5; st = slot // 2; off = (slot % 2) * SLOT
        a(f"s_waitcnt vmcnt({7 * (min(c + D, 7) - c)})")
        a("s_barrier")
        for p in range(3):
            for u in range(2):
                a(f"ds_read_b64_tr_b16 {vr(WB + 4 * p + 2 * u, 2)}, v{20 + st} offset:{off + 16384 + p * 4096 + u * 256}")
        if c + D + 1 < 8:
            dma(c + D + 1)
        a("s_waitcnt lgkmcnt(0)")
        for i in range(4):
            for p in range(3):
                a(f"v_dot2c_f32_bf16 v{28 + p}, s30, v{WB + 4 * p + i}")
    a("v_and_b32 v5, 31, v0")
    a("v_lshlrev_b32 v6, 4, v5")
    a("s_lshl_b32 s29, s22, 2")
    a(f"s_add_u32 s29, s29, {SCR}")
    a("v_add_u32 v7, s29, v6")
    for p in range(3):
        halfsum(a, 28 + p, 1)
        a(f"ds_write_b32 v7, v{28 + p} offset:{p * 512}")
    a("s_min_u32 s29, s22, 2")
    a("s_lshl_b32 s31, s29, 9")
    a(f"s_add_u32 s31, s31, {SCR}")
    a("v_add_u32 v6, s31, v6")
    a("s_lshl_b32 s31, s29, 8")
    a(f"s_add_u32 s31, s31, {SCR3}")
    a("v_lshlrev_b32 v7, 3, v5")
    a("v_add_u32 v7, s31, v7")
    a("s_waitcnt lgkmcnt(0)")
    a("s_barrier")
    a("ds_read_b128 v[32:35], v6")
    a("s_waitcnt lgkmcnt(0)")
    a("v_add_f32 v32, v32, v33")
    a("v_add_f32 v34, v34, v35")
    a("v_add_f32 v34, v32, v34")
    a("v_cvt_pk_bf16_f32 v32, v34, v34")
    a("v_lshlrev_b32 v33, 16, v32")
    a("v_sub_f32 v33, v34, v33")
    a("v_cvt_pk_bf16_f32 v33, v33, v33")
    a("ds_write_b64 v7, v[32:33]")
    a("s_waitcnt lgkmcnt(0)")
    a("s_barrier")
    a("s_cmp_eq_u32 s35, 7")
    a("s_cbranch_scc0 K1_JOIN")
    srd(a, 16, 56, 256)
    a("v_mov_b32 v12, 0")
    a("s_mov_b32 s33, 0")
    a.label("K1_PZ")
    a("buffer_load_dword v15, v12, s[16:19], 0 offen sc1")
    a("s_add_u32 s33, s33, 1")
    a("s_waitcnt vmcnt(0)")
    a("v_cmp_eq_u32 vcc, 1, v15")
    a("s_cmp_gt_u32 s33, 0x40000")
    a("s_cbranch_scc1 K1_JOIN")
    a("s_cbranch_vccz K1_PZ")
    a("s_branch K1_JOIN")
    a.label("K1_MM")
    rdaddr()
    if CODE_TOUCH:
        a("s_getpc_b64 s[44:45]")
        a.label("K1_PC")
        a(f"s_sub_u32 s44, s44, K1_PC-{n}")
        a("s_subb_u32 s45, s45, 0")
        a("s_lshl_b32 s46, s22, 13")
        a("v_lshlrev_b32 v23, 7, v0")
        a("v_add_u32 v23, s46, v23")
        for i in range(CODE_TOUCH):
            a(f"v_min_u32 v24, CODE_END-{n}-4, v23")
            a("global_load_dword v31, v24, s[44:45]")
            a("v_add_u32 v23, 32768, v23")
    a(f"v_add_u32 v21, {2 * SLOT}, v20")
    a(f"v_add_u32 v22, {4 * SLOT}, v20")
    a("s_mov_b32 s30, 0x3f803f80")
    for i in range(24, 28):
        a(f"v_mov_b32 v{i}, 0")
    a("v_and_b32 v5, 31, v0")
    a("v_lshlrev_b32 v6, 3, v5")
    a(f"v_add_u32 v6, {SCR3}, v6")
    CF = 152
    for p in range(3):
        a(f"v_mov_b32 v{CF + 4 * p + 2}, 0")
        a(f"v_mov_b32 v{CF + 4 * p + 3}, 0")
    a("v_mov_b32 v150, 0")
    a("v_mov_b32 v151, 0")
    a("s_lshl_b32 s29, s22, 7")
    a(f"s_add_u32 s29, s29, {SCR2}")
    a("v_lshlrev_b32 v7, 2, v5")
    a("v_add_u32 v7, s29, v7")
    a("v_lshrrev_b32 v1, 5, v0")
    a("v_lshlrev_b32 v1, 4, v1")
    a("v_add_u32 v1, s29, v1")
    a("s_lshl_b32 s29, s23, 2")
    a("s_add_u32 s29, s29, s22")
    a("s_lshl_b32 s29, s29, 10")
    a("s_lshl_b32 s31, s24, 17")
    a("s_add_u32 s29, s29, s31")
    a("s_add_u32 s31, s29, 65536")
    a(f"s_add_u32 s32, s29, {KF}")
    a(f"s_add_u32 s33, s29, {KF + 65536}")
    a(f"s_add_u32 s34, s29, {VF}")
    a("v_lshlrev_b32 v2, 4, v0")
    a("v_bfe_u32 v3, v0, 4, 1")
    a("v_lshlrev_b32 v3, 16, v3")
    a("v_lshrrev_b32 v4, 5, v0")
    a("v_lshl_add_u32 v3, v4, 8, v3")
    a("v_and_b32 v4, 15, v0")
    a("v_lshl_add_u32 v3, v4, 4, v3")
    a("s_waitcnt lgkmcnt(0)")
    srd(a, 16, 58, WS_SIZE)
    a("s_lshl_b32 s36, s2, 2")
    a("s_add_u32 s36, s36, s22")
    a("s_cmp_lg_u32 s36, 3")
    a("s_cbranch_scc1 K1_NZ")
    a(f"s_mov_b32 s36, {FL2}")
    a("v_lshlrev_b32 v28, 7, v0")
    for i_ in range(2 * NREP):
        a("buffer_store_dwordx2 v[24:25], v28, s[16:19], s36 offen sc1")
        a("s_add_u32 s36, s36, 8192")
    srd(a, 8, 56, 256)
    a("v_mov_b32 v28, 1")
    a("s_waitcnt vmcnt(0)")
    a("buffer_store_dword v28, v24, s[8:11], 0 offen sc1")
    a.label("K1_NZ")
    TQ = {}
    if K1_CHIP:
        a("s_cmp_lt_u32 s22, 2")
        a("s_cbranch_scc1 K1_NC")
        srd(a, 8, 4, 2048 * 512 * 2)
        a("s_lshl_b32 s36, s2, 13")
        a("v_lshlrev_b32 v23, 7, v0")
        a("s_cmp_eq_u32 s22, 2")
        a("s_cbranch_scc1 K1_C2")
        srd(a, 8, 6, 512 * 1536 * 2)
        a("s_mul_i32 s36, s2, 6144")
        a("v_min_u32 v23, 47, v0")
        a("v_lshlrev_b32 v23, 7, v23")
        a.label("K1_C2")
        a(f"buffer_load_dword v30, v23, s[8:11], s36 offen {K1_CF}")
        a.label("K1_NC")
    if K1_TOUCH:
        srd(a, 8, 4, 2048 * 512 * 2)
        a("s_lshr_b32 s37, s2, 3")
        a("v_and_b32 v28, 3, v0")
        a("s_mov_b32 s39, 256")
        a("s_and_b32 s36, s2, 3")
        a("s_lshl_b32 s36, s36, 19")
        a("s_lshl_b32 s38, s37, 14")
        a("s_add_u32 s36, s36, s38")
        a("v_bfe_u32 v23, v0, 1, 4")
        a("v_lshlrev_b32 v23, 10, v23")
        a("v_and_b32 v29, 1, v0")
        a("v_lshl_add_u32 v23, v29, 7, v23")
        a("s_cmp_lg_u32 s22, 0")
        a("s_cbranch_scc1 K1_TD")
        srd(a, 8, 6, 512 * 1536 * 2)
        a(f"s_mov_b32 s39, {128 * 3072}")
        a("s_mul_i32 s36, s37, 12288")
        a("s_bfe_u32 s38, s2, 0x10002")
        a("s_lshl_b32 s38, s38, 9")
        a("s_add_u32 s36, s36, s38")
        a("v_lshrrev_b32 v23, 4, v0")
        a("v_mul_u32_u24 v23, 3072, v23")
        a("v_bfe_u32 v30, v0, 2, 2")
        a("v_min_u32 v30, 2, v30")
        a("v_lshl_add_u32 v23, v30, 10, v23")
        a("v_lshl_add_u32 v23, v28, 7, v23")
        a.label("K1_TD")
        def touch(n_):
            return ["s_cmp_ge_u32 s22, 2", f"s_cbranch_scc1 K1_TS{n_}",
                    "s_lshr_b32 s38, s40, 1", f"s_add_u32 s38, s38, {n_ + 1}", "s_and_b32 s38, s38, 3",
                    "s_mul_i32 s38, s38, s39", "s_add_u32 s38, s38, s36",
                    "buffer_load_dword v31, v23, s[8:11], s38 offen", f"K1_TS{n_}:"]
        for n_, when in enumerate(K1_TW):
            if when < 0:
                for x in touch(n_): a(x)
            else:
                TQ.setdefault(when, []).extend(touch(n_))
    XS = 184
    def xs_loads(r):
        return [f"buffer_load_dwordx4 {vr(XS + 4 * i, 4)}, v180, s[92:95], s{90 + r} offen offset:{i * 64}" for i in range(16)]
    def xs_dots(r):
        o = ["s_waitcnt vmcnt(0)"]
        for i in range(64):
            o += [f"v_dot2c_f32_bf16 v{24 + i % 2}, s30, v{XS + i}", f"v_dot2c_f32_bf16 v{26 + i % 2}, v{XS + i}, v{XS + i}"]
        o += ["s_nop 2", "v_add_f32 v24, v24, v25", "v_add_f32 v25, v26, v27", "s_nop 1",
              "v_add_f32_dpp v24, v24, v24 quad_perm:[1,0,3,2] row_mask:0xf bank_mask:0xf",
              "v_add_f32_dpp v25, v25, v25 quad_perm:[1,0,3,2] row_mask:0xf bank_mask:0xf", "s_nop 0",
              "v_add_f32_dpp v24, v24, v24 quad_perm:[2,3,0,1] row_mask:0xf bank_mask:0xf",
              "v_add_f32_dpp v25, v25, v25 quad_perm:[2,3,0,1] row_mask:0xf bank_mask:0xf",
              f"ds_write_b64 v181, v[24:25] offset:{r * 128}", "s_nop 0"]
        o += [f"v_mov_b32 v{i}, 0" for i in range(24, 28)]
        return o
    if K1_XS:
        srd(a, 92, 4, 2048 * 512 * 2)
        a("s_lshl_b32 s90, s23, 17")
        a("s_lshl_b32 s91, s22, 15")
        a("s_add_u32 s90, s90, s91")
        a("s_add_u32 s91, s90, 16384")
        a("v_lshrrev_b32 v181, 2, v0")
        a("v_lshlrev_b32 v180, 10, v181")
        a("v_and_b32 v182, 3, v0")
        a("v_lshl_add_u32 v180, v182, 4, v180")
        a("s_lshl_b32 s89, s22, 8")
        a(f"s_add_u32 s89, s89, {SCR3 + 768}")
        a("v_lshlrev_b32 v181, 3, v181")
        a("v_add_u32 v181, s89, v181")
        a("v_and_b32 v182, 31, v0")
        a("v_lshlrev_b32 v182, 3, v182")
        a("v_add_u32 v182, s89, v182")
        for x in xs_loads(0): a(x)
    ACC = 32
    def xf(ks): return 80 + (ks % 8) * 4
    def wf(ks, p): return 112 + (ks % 3) * 12 + p * 4
    def reads(ks):
        c, s = ks // 4, ks % 4
        slot = c % 5; st = slot // 2; off = (slot % 2) * SLOT
        out = [f"ds_read_b128 {vr(xf(ks), 4)}, v{8 + 4 * st + s} offset:{off}"]
        for p in range(3):
            for u in range(2):
                out.append(f"ds_read_b64_tr_b16 {vr(wf(ks, p) + 2 * u, 2)}, v{20 + st} offset:{off + 16384 + p * 4096 + s * 1024 + u * 256}")
        return out
    def mfmas(ks):
        X = vr(xf(ks), 4); out = []
        for p in range(3):
            D_ = vr(ACC + 16 * p, 16); W = vr(wf(ks, p), 4)
            A, B = (W, X) if p < 2 else (X, W)
            out.append(MF32(D_, A, B, "0" if ks == 0 else None))
        return out
    def dots(k0, k1_):
        for ks in range(k0, k1_):
            for i in range(4):
                a(f"v_dot2c_f32_bf16 v{24 + i % 2}, s30, v{xf(ks) + i}")
                a(f"v_dot2c_f32_bf16 v{26 + i % 2}, v{xf(ks) + i}, v{xf(ks) + i}")
    a("s_barrier")
    for r in reads(0) + reads(1): a(r)
    for x in TQ.get(0, []): a(x)
    for ks in range(32):
        c, s = ks // 4, ks % 4
        M = mfmas(ks); R = reads(ks + 2) if ks + 2 < 32 else []
        if s == 2:
            if not K1_XS: dots(max(ks - 3, 0), ks)
            if K1_XS and c == K1_XS[0]:
                for x in xs_dots(0) + xs_loads(1): a(x)
            if K1_XS and c == K1_XS[1]:
                for x in xs_dots(1): a(x)
            if K1_XS and c == 7: a("ds_read_b64 v[24:25], v182")
            a("s_waitcnt lgkmcnt(0)")
            if not K1_XS:
                dots(ks, ks + 1)
                if c == 7: dots(ks + 1, ks + 2)
            a(M[0])
            if c < 7:
                a("s_barrier")
                for x in TQ.get(c + 1, []): a(x)
        else:
            a(f"s_waitcnt lgkmcnt({7 if ks < 31 else 0})")
            a(M[0])
            if ks in (29, 31): a("s_barrier")
        E = []
        if ks >= 30:
            if ks == 30:
                E = ["v_add_f32 v24, v24, v25", "v_add_f32 v26, v26, v27", "v_mov_b32 v25, v24", "v_mov_b32 v27, v26", "s_nop 0",
                     "v_permlane32_swap_b32 v24, v25", "v_permlane32_swap_b32 v26, v27", "v_add_f32 v24, v24, v25", "v_add_f32 v26, v26, v27",
                     f"v_mul_f32 v24, {f32(1/512)}, v24", f"v_mul_f32 v26, {f32(1/512)}, v26", "v_fma_f32 v26, -v24, v24, v26",
                     "v_max_f32 v26, 0, v26", f"v_add_f32 v26, {f32(EPS)}, v26", "v_rsq_f32 v26, v26",
                     "v_mul_f32 v24, -0.5, v24", "ds_write_b32 v7, v26"]
                E = ["s_nop 1"] + E
                if K1_XS: E = ["v_mov_b32 v26, v25"] + E[10:]
            else:
                E = [f"ds_read_b64 {vr(CF + 4 * p, 2)}, v6 offset:{p * 256}" for p in range(3)]
                E += [f"ds_read_b128 {vr(164 + 4 * g, 4)}, v1 offset:{g * 32}" for g in range(4)]
                E += ["v_cvt_pk_bf16_f32 v25, v24, v24", "v_lshlrev_b32 v25, 16, v25",
                     "v_sub_f32 v27, v24, v25", "v_cvt_pk_bf16_f32 v148, v25, v27",
                     "v_mov_b32 v149, v148", f"v_mul_f32 v28, {f32(0.25 * LOG2E)}, v26", "v_mov_b32 v27, v26", "v_mov_b32 v29, v28"]
            R = E
            n3 = (len(R) + 2) // 3
        else:
            n3 = 3
        for r in R[:n3]: a(r)
        a(M[1])
        for r in R[n3:2 * n3]: a(r)
        a(M[2])
        for r in R[2 * n3:]: a(r)
    a("s_waitcnt lgkmcnt(4)")
    a(MF32(vr(ACC + 16, 16), vr(CF + 4, 4), vr(148, 4)))
    a(MF32(vr(ACC + 32, 16), vr(148, 4), vr(CF + 8, 4)))
    a(MF32(vr(ACC, 16), vr(CF, 4), vr(148, 4)))
    a("s_waitcnt lgkmcnt(0)")
    a("s_nop 8")
    for p in (1, 2, 0):
        b = ACC + 16 * p; o = 112 + 8 * p
        for i in range(0, 16, 2):
            sc = "v[28:29]" if p == 0 else "v[26:27]" if p == 1 else vr(164 + i, 2)
            if p == 1:
                a(f"v_mul_f32 v{b + i}, v26, v{b + i}")
                a(f"v_mul_f32 v{b + i + 1}, v26, v{b + i + 1}")
            else:
                a(f"v_pk_mul_f32 {vr(b + i, 2)}, {sc}, {vr(b + i, 2)}")
        for i in range(8):
            a(f"v_cvt_pk_bf16_f32 v{o+i}, v{b+2*i}, v{b+2*i+1}")
        if p < 2:
            a(f"buffer_store_dwordx4 {vr(o, 4)}, v2, s[16:19], s{29 if p == 0 else 32} offen sc1")
            a(f"buffer_store_dwordx4 {vr(o + 4, 4)}, v2, s[16:19], s{31 if p == 0 else 33} offen sc1")
        else:
            a(f"buffer_store_dwordx4 {vr(o, 4)}, v3, s[16:19], s34 offen sc1")
            a(f"buffer_store_dwordx4 {vr(o + 4, 4)}, v3, s[16:19], s34 offen offset:512 sc1")
    a.label("K1_JOIN")
    return a

def k234():
    a = k1(); n = NAME + "_kernel"
    Q = 4; NEGM = 16; S = [32, 48]; O = 64; P = 80; KR = 88; VR = 100; W = 128
    SCR = 131072
    K1C = 2 * math.sqrt(2 / math.pi) * LOG2E
    vm = []
    def V(ins, tag=None):
        a(ins); vm.append(tag)
    def vmwait(tag, extra=""):
        idx = max(i for i, t in enumerate(vm) if t == tag)
        a(f"s_waitcnt vmcnt({len(vm) - 1 - idx}){extra}")
    a("s_load_dwordx4 s[40:43], s[0:1], 32")
    a("s_load_dwordx2 s[44:45], s[0:1], 16")
    a("s_load_dwordx2 s[46:47], s[0:1], 0")
    a("s_load_dwordx2 s[48:49], s[0:1], 48")
    a("s_load_dwordx2 s[62:63], s[0:1], 56")
    a("s_lshl_b32 s31, s24, 8")
    a("s_lshl_b32 s30, s23, 2")
    a("s_add_u32 s31, s31, s30")
    a(f"s_add_u32 s31, s31, {FL1}")
    a("s_mov_b32 s22, s35")
    a("s_and_b32 s23, s2, 7")
    a("s_lshl_b32 s23, s23, 2")
    a("s_bfe_u32 s29, s2, 0x20003")
    a("s_add_u32 s23, s23, s29")
    a("s_lshr_b32 s24, s2, 5")
    a("s_lshl_b32 s25, s23, 16")
    a("v_lshlrev_b32 v2, 4, v0")
    a("s_lshl_b32 s26, s22, 10")
    a("s_add_u32 s27, s25, s26")
    a("s_lshl_b32 s28, s24, 13")
    a("s_add_u32 s28, s28, s27")
    a(f"s_add_u32 s27, s27, {KF}")
    a(f"s_add_u32 s30, s27, {VF - KF}")
    if KV_ROT:
        a(f"s_mul_i32 s61, s23, {KV_ROT}")
        a("s_and_b32 s61, s61, 7")
        a("s_lshl_b32 s61, s61, 13")
        a("s_add_u32 s52, s27, s61")
        a("s_add_u32 s53, s30, s61")
    srd(a, 8, 58, WS_SIZE)
    a("v_mov_b32 v12, 0")
    a("v_mov_b32 v13, 1")
    def signal(lbl, local=False):
        a("s_cmp_eq_u32 s22, 7")
        a(f"s_cbranch_scc0 {lbl}")
        a("v_lshlrev_b32 v12, 14, v0")
        a(f"s_mov_b64 exec, {(1 << NREP) - 1}")
        if ATOM:
            a(f"s_and_b32 s31, s31, {hex(0xffffff84 if '4' in lbl[-2:] else 0xffffff80)}")
            a("buffer_atomic_add v13, v12, s[8:11], s31 offen sc1")
        else: a("buffer_store_dword v13, v12, s[8:11], s31 offen sc1")
        a("s_mov_b64 exec, -1")
        a.label(lbl)
    def poll(lbl, sreg, nfl, sh=2):
        if ATOM:
            a("s_lshr_b32 s33, s2, 5")
            a(f"s_and_b32 s33, s33, {NREP - 1}")
            a("s_lshl_b32 s33, s33, 14")
            a("v_mov_b32 v1, s33")
            a("s_mov_b32 s33, 0")
            a("s_mov_b64 exec, 1")
            two = PIF == 2 and lbl != "K2_P4A"
            if two:
                a("v_mov_b32 v14, 0")
                a(f"buffer_atomic_add v14, v1, s[8:11], s{sreg} offen sc0 sc1")
                a("s_sleep 5")
            a.label(lbl)
            for cur, nxt in (((14, 15), (15, 14)) if two else ((15, 15),)):
                if POLL_SLEEP: a(f"s_sleep {POLL_SLEEP}")
                a(f"v_mov_b32 v{nxt}, 0")
                a(f"buffer_atomic_add v{nxt}, v1, s[8:11], s{sreg} offen sc0 sc1")
                a("s_add_u32 s33, s33, 1")
                a(f"s_waitcnt vmcnt({1 if two else 0})")
                a(f"v_cmp_eq_u32 vcc, {nfl}, v{cur}")
                a("s_nop 0")
                a(f"s_cbranch_vccnz {lbl}_X")
            a("s_cmp_lt_u32 s33, 0x40000")
            a(f"s_cbranch_scc1 {lbl}")
            a.label(f"{lbl}_X")
            a("s_mov_b64 exec, -1")
            return
        a(f"v_and_b32 v1, {nfl - 1}, v0")
        a(f"v_lshlrev_b32 v1, {sh}, v1")
        a("s_mov_b32 s33, 0")
        if POLL_PRE: a(f"s_sleep {POLL_PRE}")
        a.label(lbl)
        if POLL_SLEEP: a(f"s_sleep {POLL_SLEEP}")
        a(f"buffer_load_dword v15, v1, s[8:11], s{sreg} offen sc1")
        a("s_add_u32 s33, s33, 1")
        a("s_waitcnt vmcnt(0)")
        a("v_cmp_eq_u32 vcc, 1, v15")
        a("s_cmp_gt_u32 s33, 0x40000")
        a(f"s_cbranch_scc1 {lbl}_X")
        a("s_cmp_eq_u64 vcc, -1")
        a(f"s_cbranch_scc0 {lbl}")
        a.label(f"{lbl}_X")
    st(a, 'k1')
    def poll2(lbl, sreg, nfl, sh=2):
        if UNSAFE & {"K2_P1": 64, "K2_P2": 16, "K2_P3": 32, "K2_P4": 128}[lbl]: return
        if not POLL2: return poll(lbl, sreg, nfl, sh)
        a(f"v_and_b32 v1, {nfl - 1}, v0")
        a(f"v_lshlrev_b32 v1, {sh}, v1")
        a("s_mov_b32 s33, 0")
        a(f"buffer_load_dword v14, v1, s[8:11], s{sreg} offen sc1")
        a(f"s_sleep {POLL2}")
        a.label(lbl)
        for cur, nxt in ((14, 15), (15, 14)):
            a(f"buffer_load_dword v{nxt}, v1, s[8:11], s{sreg} offen sc1")
            a("s_waitcnt vmcnt(1)")
            a(f"v_cmp_eq_u32 vcc, 1, v{cur}")
            a("s_add_u32 s33, s33, 1")
            a("s_nop 0")
            a("s_cmp_eq_u64 vcc, -1")
            a(f"s_cbranch_scc1 {lbl}_X")
        a("s_cmp_lt_u32 s33, 0x80000")
        a(f"s_cbranch_scc1 {lbl}")
        a.label(f"{lbl}_X")
    a("s_waitcnt vmcnt(0) lgkmcnt(0)" if not UNSAFE & 1 else "s_waitcnt lgkmcnt(0)")
    a("s_barrier")
    st(a, 'k1b')
    signal("K2_S1")
    def kvdma(c, isv):
        a(f"s_add_u32 m0, s26, {c * 8192 + isv * 65536}")
        if KV_ROT:
            a(f"s_add_u32 s29, s61, {c * 8192}")
            a("s_and_b32 s29, s29, 0xffff")
            a(f"s_add_u32 s29, s29, s{30 if isv else 27}")
        else:
            a(f"s_add_u32 s29, s27, {c * 8192 + isv * (VF - KF)}")
        V("buffer_load_dwordx4 v2, s[8:11], s29 offen " + KV_SC + " lds", f"c{c}")
    a("s_and_b32 s36, s2, 3")
    a("s_lshl_b32 s36, s36, 2")
    a("s_bfe_u32 s29, s2, 0x20003")
    a("s_add_u32 s36, s36, s29")
    a("s_bfe_u32 s37, s2, 0x10002")
    a("s_lshl_b32 s37, s37, 3")
    a("s_add_u32 s37, s37, s24")
    a("s_min_u32 s38, s22, 6")
    a("s_mul_i32 s39, s37, 7")
    a("s_add_u32 s39, s39, s38")
    a("s_lshl_b32 s54, s39, 5")
    srd(a, 12, 40, 512 * 1792 * 2)
    srd(a, 16, 42, 512 * 1792 * 2)
    a("s_lshl_b32 s55, s22, 12")
    a(f"s_add_u32 s55, s55, {SCR}")
    a("v_lshrrev_b32 v8, 1, v0")
    a("v_mul_u32_u24 v8, 3584, v8")
    a("v_and_b32 v1, 1, v0")
    a("v_lshl_add_u32 v8, v1, 4, v8")
    a("v_lshrrev_b32 v11, 5, v0")
    a("v_bfe_u32 v1, v0, 2, 2")
    a("v_lshl_add_u32 v10, v11, 2, v1")
    a("v_lshlrev_b32 v9, 5, v10")
    a("v_and_b32 v1, 3, v0")
    a("v_lshl_add_u32 v9, v1, 3, v9")
    a("v_bfe_u32 v1, v0, 4, 1")
    a("v_lshl_add_u32 v9, v1, 10, v9")
    a("v_add_u32 v9, s55, v9")
    a("v_and_b32 v12, 15, v0")
    a("v_lshl_add_u32 v12, v11, 4, v12")
    a("v_lshlrev_b32 v12, 4, v12")
    a("v_add_u32 v3, 65536, v12")
    a("s_mov_b32 s34, 0x0000ffff")
    a("s_mov_b32 s35, 0x0000ffff")
    a(f"s_mov_b32 s50, {f32(2.0**60)}")
    if ONES2:
        a("v_and_b32 v1, 27, v0")
        a("v_cmp_eq_u32 vcc, 16, v1")
        a("v_mov_b32 v1, 0x3f803f80")
        a("s_nop 0")
        a(f"v_cndmask_b32 v{VR}, 0, v1, vcc")
        for i in range(1, 24):
            a(f"v_mov_b32 v{VR + i}, v{VR}")
    else:
      for i in range(24):
        a(f"v_mov_b32 v{VR + i}, 0x3f803f80")
    for i in range(16):
        a(f"v_mov_b32 v{O + i}, 0")
    for i in range(8, 16):
        a(f"v_mov_b32 v{S[1] + i}, 0")
    KA = 126; IX = 127
    a("v_and_b32 v1, 0x33, v0")
    a("v_bfe_u32 v14, v0, 2, 1")
    a("v_lshl_add_u32 v1, v14, 3, v1")
    a("v_bfe_u32 v14, v0, 3, 1")
    a("v_lshl_add_u32 v1, v14, 2, v1")
    a(f"v_lshlrev_b32 v{KA}, 4, v1")
    a(f"v_mov_b32 v{IX}, 0xdddddddd")
    def SMF(vreg, preg): return f"v_smfmac_f32_32x32x32_bf16 {vr(O, 16)}, {vr(vreg, 4)}, {vr(preg, 8)}, v{IX}"
    def kread(t): return f"ds_read_b128 {vr(KR + 4 * (t % 3), 4)}, v{KA} offset:{t * 1024}"
    def vread(t):
        return ["s_mov_b64 exec, s[34:35]"] + \
               [f"ds_read_b128 {vr(VR + 8 * (t % 3) + 4 * j, 4)}, v3 offset:{t * 1024 + j * 512}" for j in range(2)] + \
               ["s_mov_b64 exec, -1"]
    a("s_cmp_eq_u32 s22, 7")
    a("s_cbranch_scc0 K2_B1")
    a("s_lshr_b32 s29, s23, 1")
    a("s_lshl_b32 s29, s29, 8")
    a(f"s_add_u32 s29, s29, {FL1}")
    poll2("K2_P1", 29, 16)
    a.label("K2_B1")
    if COOP:
        a(f"v_mov_b32 v82, {SCR + 32768 - 16}")
        a("v_mov_b32 v83, 0")
        a("ds_write_b32 v82, v83")
    a("s_mov_b32 m0, s26")
    a("s_barrier")
    st(a, 't1')
    V(f"buffer_load_dwordx4 v2, s[8:11], s{52 if KV_ROT else 27} offen {KV_SC} lds", "c0")
    V(f"buffer_load_dwordx4 {vr(Q, 4)}, v2, s[8:11], s28 offen {KV_SC}", "c0")
    a("s_add_u32 m0, s26, 65536")
    a("s_nop 0")
    V(f"buffer_load_dwordx4 v2, s[8:11], s{53 if KV_ROT else 30} offen {KV_SC} lds", "c0")
    if not C1_LATE: kvdma(1, 0); kvdma(1, 1)
    a("v_add_u32 v1, s26, v2")
    a(f"s_waitcnt vmcnt({1 if C1_LATE else 3})")
    if C1_LATE: kvdma(1, 0); kvdma(1, 1)
    a(f"ds_read_b128 {vr(KR, 4)}, v1")
    a("s_waitcnt lgkmcnt(0)")
    s0 = S[0]
    a(MF32(vr(s0, 16), vr(KR, 4), vr(Q, 4), "0"))
    vmwait("c0")
    a("s_barrier")
    st(a, 'a0')
    a(kread(0)); a(kread(1))
    for x in vread(0): a(x)
    a(kread(2))
    for x in vread(1): a(x)
    for i in range(5):
        a(f"v_max3_f32 v{NEGM + i}, v{s0+3*i}, v{s0+3*i+1}, v{s0+3*i+2}")
    a(f"v_max3_f32 v14, v{NEGM}, v{NEGM+1}, v{s0+15}")
    a(f"v_max3_f32 v15, v{NEGM+2}, v{NEGM+3}, v{NEGM+4}")
    a("v_max_f32 v14, v14, v15")
    def set_negm():
        a("v_mov_b32 v15, v14")
        a("s_nop 1")
        a("v_permlane32_swap_b32 v14, v15")
        a("v_max_f32 v14, v14, v15")
        for i in range(16):
            a(f"v_sub_f32 v{NEGM + i}, 0, v14")
        a("s_nop 1")
    set_negm()
    a("s_waitcnt lgkmcnt(6)")
    a(MF32(vr(S[0], 16), vr(KR, 4), vr(Q, 4), vr(NEGM, 16)))
    a("s_nop 9")
    T0 = K2_T0
    cnt = [0]
    DMT = [T0 + int(K2_CAD * u) for u in range(18)]
    RDT = [min(DMT[u + 2] - 1, 62 - (15 - u)) for u in range(16)]; DMT = DMT[:16]
    SLT = [u % 2 for u in range(16)]
    if XSLOT:
        DMT, RDT, SLT = [], [], []
        free = {0: 0, 1: 0, 2: 24, 3: 24}; tnext = T0
        for u in range(16):
            sl = min(free, key=lambda k_: (max(free[k_], tnext), k_))
            td = max(free[sl], tnext)
            lag = XSLOT[0] if td < 21 else XSLOT[1]
            tr = min(td + lag, 62 - (15 - u))
            while tr in RDT: tr += 1
            DMT.append(td); RDT.append(tr); SLT.append(sl); free[sl] = tr + 1; tnext = td + XSLOT[2]
        a("s_lshl_b32 s56, s22, 11")
        a("s_sub_u32 s29, s56, s55")
        a("v_add_u32 v80, s29, v9")
        a("v_add_u32 v81, 65536, v80")
    assert len(set(RDT)) == 16 and max(RDT) <= 62 and RDT == sorted(RDT), (DMT, RDT)
    if COOP:
        DMT, RDT = [COOP[0]], [COOP[1]]
        a(f"s_mul_i32 s29, s36, {32 * 3584}")
        a("s_add_u32 s54, s54, s29")
        srd(a, 92, 58, WS_SIZE)
        a("s_cmp_eq_u32 s22, 7")
        a("s_cselect_b32 s94, 0, s94")
        a("s_lshl_b32 s90, s39, 15")
        a(f"s_add_u32 s90, s90, {WGF}")
        a("s_lshl_b32 s91, s37, 8")
        a(f"s_add_u32 s91, s91, {FL1 + 128}")
        a("v_mov_b32 v83, 0")
        a("v_mov_b32 v84, 1")
    SM0 = [("s55", 0), ("s55", 2048), ("s56", 0), ("s56", 65536)]
    SRD_ = [(9, 0), (9, 2048), (80, 0), (81, 0)]
    if W7_PF:
        a("s_cmp_eq_u32 s22, 7")
        a("s_cbranch_scc0 K2_NPF")
        a("s_mul_i32 s54, s37, 224")
        a(f"s_add_u32 s54, s54, {W7_PF * 32 * 3584}")
        a("v_lshrrev_b32 v8, 1, v0")
        a("v_mul_u32_u24 v8, 3584, v8")
        a("v_and_b32 v1, 1, v0")
        a("v_lshl_add_u32 v8, v1, 7, v8")
        a.label("K2_NPF")
    elif K2_W7S:
        a("s_cmp_eq_u32 s22, 7")
        a("s_cselect_b32 s14, 0, s14")
        a("s_cselect_b32 s18, 0, s18")
        if UNSAFE & 256:
            a("s_mov_b32 s14, 0")
            a("s_mov_b32 s18, 0")
    def b(ins):
        if K2_Y:
            if cnt[0] == 0: a("s_setprio 0")
            if cnt[0] == K2_Y: a("s_setprio 1")
            if cnt[0] == K2_Y2: a("s_setprio 2")
        cnt[0] += 1
        a(ins)
    for t in range(64):
        if t % K2_PER == 0: cnt[0] = 0
        Sc = S[t % 2]; Sn = S[(t + 1) % 2]
        E = lambda i: b(f"v_exp_f32 v{Sc+i}, v{Sc+i}")
        C = lambda i: b(f"v_cvt_pk_bf16_f32 v{P+i}, v{Sc+2*i}, v{Sc+2*i+1}")
        if t == 0: st(a, 'a1')
        if t == 16: st(a, 'a16')
        if t == 5: vmwait("c1"); a("s_barrier")
        if t == 13: vmwait("c5"); a("s_barrier")
        if COOP and t == COOP[3]:
            a("s_waitcnt vmcnt(0)")
            a("s_mov_b64 exec, 1")
            a("ds_add_rtn_u32 v85, v82, v84")
            a("s_waitcnt lgkmcnt(0)")
            a("v_cmp_eq_u32 vcc, 7, v85")
            a("s_nop 0")
            a("s_cbranch_vccz K2_NCA")
            a("buffer_atomic_add v84, v83, s[8:11], s91 offen sc1")
            a.label("K2_NCA")
            a("s_mov_b64 exec, -1")
        if COOP and t == COOP[4] - 3:
            a("v_mov_b32 v86, 0")
            a("s_cmp_eq_u32 s22, 7")
            a("s_cbranch_scc0 K2_NCQ")
            a("s_mov_b64 exec, 1")
            a("buffer_atomic_add v86, v83, s[8:11], s91 offen sc0 sc1")
            a("s_mov_b64 exec, -1")
            a.label("K2_NCQ")
        if COOP and t == COOP[4]:
            a("s_cmp_eq_u32 s22, 7")
            a("s_cbranch_scc0 K2_NCP")
            a("s_waitcnt vmcnt(0)")
            a("v_cmp_eq_u32 vcc, 16, v86")
            a("s_nop 0")
            a("s_cbranch_vccnz K2_NCP")
            poll("K2_PW", 91, 16)
            a.label("K2_NCP")
        if t == (COOP[4] if COOP else 24): vmwait("c7"); a("s_barrier")
        nrd = lambda u: (1 if u + 3 < 64 else 0) + (2 if u + 2 < 64 else 0)
        b(f"s_waitcnt lgkmcnt({nrd(t - 1) if t > 0 else 3})")
        for i in range(K2_E[0]): E(i)
        b(SMF(VR + 8 * ((t - 1) % 3) + 4, Sn + 8))
        for i in range(K2_E[0], K2_E[1]): E(i)
        if t < 63:
            b(MF32(vr(Sn, 16), vr(KR + 4 * ((t + 1) % 3), 4), vr(Q, 4), vr(NEGM, 16)))
            if t == 62: a("s_nop 3")
        u = RDT.index(t) if t in RDT else -1
        if u >= 0:
            vmwait(f"w{u}")
            for s in range(2):
                for e in range(2):
                    a(f"ds_read_b64_tr_b16 {vr(W + 8 * u + 4 * s + 2 * e, 2)}, v{SRD_[SLT[u]][0]} offset:{SRD_[SLT[u]][1] + s * 512 + e * 256}")
        if t + 3 < 64: b(kread(t + 3))
        if t + 2 < 64:
            for x in vread(t + 2): b(x)
        for i in range(K2_E[1], K2_E[2]): E(i)
        b(SMF(VR + 8 * (t % 3), Sc))
        if t < 12: kvdma(2 + t // 2, t % 2)
        u = DMT.index(t) if t in DMT else -1
        if u >= 0:
            a(f"s_add_u32 m0, {SM0[SLT[u]][0]}, {SM0[SLT[u]][1]}")
            a(f"s_add_u32 s29, s54, {u * 32 * 3584}")
            V(f"buffer_load_dwordx4 v8, s[12:15], s29 offen {NT_G} lds", f"w{u}")
            a(f"s_add_u32 m0, {SM0[SLT[u]][0]}, {SM0[SLT[u]][1] + 1024}")
            a("s_nop 0")
            V(f"buffer_load_dwordx4 v8, s[16:19], s29 offen {NT_G} lds", f"w{u}")
        if COOP and t == COOP[2]:
            a("s_lshl_b32 s29, s36, 11")
            a("s_add_u32 s29, s29, s90")
            for s in range(2):
                V(f"buffer_store_dwordx4 {vr(W + 4 * s, 4)}, v2, s[92:95], s29 offen offset:{s * 1024} sc1", "ws")
        if COOP and COOP[4] <= t < COOP[4] + 32:
            k_ = t - COOP[4]
            if k_ % 4 == 0 and k_: a("s_add_u32 s90, s90, 4096")
            V(f"buffer_load_dwordx4 {vr(W + 4 * k_, 4)}, v2, s[92:95], s90 offen offset:{(k_ % 4) * 1024} sc1", "wl")
        if PREOWN and t in (26, 29, 32, 35) and PREOWN & 1:
            k_ = (t - 26) // 3
            a(f"s_mul_i32 s29, s36, {4 * 112 * 1024}")
            a("s_lshl_b32 s33, s39, 10")
            a("s_add_u32 s29, s29, s33")
            a(f"s_add_u32 s29, s29, {GF + k_ * 112 * 1024}")
            V(f"buffer_store_dwordx4 {vr(Q, 4)}, v2, s[8:11], s29 offen sc1", "pre")
        if PREOWN & 2 and t == 38:
            a("s_lshl_b32 s29, s24, 3")
            a("s_add_u32 s29, s29, s22")
            a("s_lshl_b32 s29, s29, 15")
            a("s_lshl_b32 s33, s23, 10")
            a("s_add_u32 s29, s29, s33")
            a(f"s_add_u32 s29, s29, {OF}")
            V(f"buffer_store_dwordx4 {vr(Q, 4)}, v2, s[8:11], s29 offen sc1", "pre")
        if PREOWN & 4 and t == 43:
            a("s_lshl_b32 s29, s23, 1")
            a("s_lshr_b32 s33, s22, 2")
            a("s_add_u32 s29, s29, s33")
            a("s_lshl_b32 s29, s29, 15")
            a("s_lshl_b32 s33, s24, 12")
            a("s_add_u32 s29, s29, s33")
            a("s_and_b32 s33, s22, 3")
            a("s_lshl_b32 s33, s33, 10")
            a("s_add_u32 s29, s29, s33")
            a(f"s_add_u32 s29, s29, {HF}")
            V(f"buffer_store_dwordx4 {vr(Q, 4)}, v2, s[8:11], s29 offen sc1", "pre")
        if t == W7_MT:
            a("s_cmp_eq_u32 s22, 7")
            a("s_cbranch_scc0 K2_NMT")
            a("s_mul_i32 s29, s2, 7168")
            a("v_min_u32 v1, 55, v0")
            a("v_lshlrev_b32 v1, 7, v1")
            srd(a, 96, 40, 512 * 1792 * 2)
            a("buffer_load_dword v125, v1, s[96:99], s29 offen")
            srd(a, 96, 42, 512 * 1792 * 2)
            a("buffer_load_dword v125, v1, s[96:99], s29 offen")
            a.label("K2_NMT")
        if t == 40 and K2_TCH:
            srd(a, 96, 48, 1792 * 512 * 2)
            a("s_lshl_b32 s29, s2, 3")
            a("s_add_u32 s29, s29, s22")
            a("s_mul_i32 s29, s29, 896")
            a("v_min_u32 v12, 6, v0")
            a("v_lshlrev_b32 v12, 7, v12")
            V("buffer_load_dword v124, v12, s[96:99], s29 offen", "tch")
        if t == 59 and K2_TCH:
            a("s_lshr_b32 s29, s2, 3")
            a("s_lshl_b32 s29, s29, 14")
            a("s_lshl_b32 s31, s22, 11")
            a("s_add_u32 s29, s29, s31")
            srd(a, 96, 44, 512 * 512 * 2)
            a("v_and_b32 v12, 15, v0")
            a("v_lshlrev_b32 v12, 7, v12")
            V("buffer_load_dword v124, v12, s[96:99], s29 offen", "tch")

        for i in range(K2_E[2], 16): E(i)
    a("s_setprio 0")
    a("s_lshl_b32 s29, s24, 3")
    a("s_add_u32 s29, s29, s22")
    a(SMF(VR + 8 * (63 % 3) + 4, S[1] + 8))
    a("s_nop 7")
    a("s_lshl_b32 s31, s24, 8")
    a("s_lshl_b32 s30, s23, 2")
    a("s_add_u32 s31, s31, s30")
    a(f"s_add_u32 s31, s31, {FL2}")
    a("s_lshl_b32 s29, s29, 15")
    a("s_lshl_b32 s30, s23, 10")
    a("s_add_u32 s29, s29, s30")
    a(f"s_add_u32 s29, s29, {OF}")
    a("v_mov_b32 v12, 0")
    a("v_mov_b32 v13, 1")
    a("s_waitcnt lgkmcnt(0)")
    a("s_nop 0")
    a(f"v_cmp_gt_f32 vcc, s50, v{O + 8}")
    a("s_nop 1")
    a("s_cmp_eq_u64 vcc, -1")
    a("s_cbranch_scc0 K2_FALLBACK")
    a.label("K2_FIN")
    a(f"v_rcp_f32 v14, v{O + 8}")
    a("s_nop 0")
    for i in range(8):
        a(f"v_mul_f32 v{O+i}, v14, v{O+i}")
    for i in range(4):
        a(f"v_cvt_pk_bf16_f32 v{P+i}, v{O+2*i}, v{O+2*i+1}")
    a(f"buffer_store_dwordx4 {vr(P, 4)}, v2, s[8:11], s29 offen sc1")
    st(a, 'att')
    srd(a, 12, 44, 512 * 512 * 2)
    srd(a, 16, 46, 2048 * 512 * 2)
    a("s_and_b32 s25, s22, 1")
    a("s_bfe_u32 s26, s22, 0x10001")
    a("s_lshr_b32 s27, s22, 2")
    a("s_lshl_b32 s28, s24, 1")
    a("s_add_u32 s28, s28, s25")
    a("s_lshl_b32 s30, s23, 1")
    a("s_add_u32 s30, s30, s26")
    a("v_bfe_u32 v8, v0, 2, 3")
    a("v_lshlrev_b32 v8, 10, v8")
    a("v_lshl_add_u32 v8, v11, 6, v8")
    a("v_and_b32 v1, 3, v0")
    a("v_lshl_add_u32 v8, v1, 4, v8")
    a("v_lshlrev_b32 v9, 6, v10")
    a("v_lshl_add_u32 v9, v1, 3, v9")
    a("v_bfe_u32 v1, v0, 4, 1")
    a("v_lshl_add_u32 v9, v1, 5, v9")
    a("s_lshl_b32 s32, s25, 9")
    a("s_lshl_b32 s33, s27, 15")
    a("s_add_u32 s32, s32, s33")
    a("v_add_u32 v9, s32, v9")
    a("v_and_b32 v3, 31, v0")
    a("v_lshlrev_b32 v3, 10, v3")
    a("v_lshl_add_u32 v3, v11, 4, v3")
    a("s_lshl_b32 s51, s30, 15")
    a("s_lshl_b32 s33, s28, 6")
    a("s_add_u32 s51, s51, s33")
    RES = 112
    if not UNSAFE & 2: a("s_waitcnt vmcnt(0)")
    a("s_barrier")
    def dstore(ins):
        return [ins + " sc1"]
    signal("K2_S2")
    st(a, 'bA')
    A3 = 16; WO = 32; OB = 96
    def colsum():
        a("s_mov_b32 s56, 0x3f803f80")
        for i in range(4): a(f"v_mov_b32 v{124 + i}, 0")
        for i in range(128):
            a(f"v_dot2c_f32_bf16 v{124 + i % 4}, s56, v{W + i}")
        a("s_nop 2")
        a("v_add_f32 v124, v124, v125")
        a("v_add_f32 v126, v126, v127")
        a("v_add_f32 v126, v124, v126")
        a("v_cvt_pk_bf16_f32 v124, v126, v126")
        a("v_lshlrev_b32 v125, 16, v124")
        a("v_sub_f32 v125, v126, v125")
        a("v_cvt_pk_bf16_f32 v125, v125, v125")
        a("v_mov_b32 v126, 0")
        a("v_mov_b32 v127, 0")
    a("s_cmp_eq_u32 s22, 7")
    a("s_cbranch_scc1 K2_POLL2")
    a("s_cmp_ge_u32 s22, 4")
    a("s_cbranch_scc1 K2_CS")
    a("s_lshl_b32 s52, s22, 14")
    a("s_lshl_b32 s53, s22, 17")
    a("s_lshl_b32 s33, s24, 7")
    a("s_add_u32 s53, s53, s33")
    for i in range(16):
        a(f"s_add_u32 m0, s52, {i * 1024}")
        a(f"s_add_u32 s29, s53, {i * 8192}")
        a("buffer_load_dwordx4 v8, s[12:15], s29 offen lds")
    for j in range(2):
        a(f"buffer_load_dwordx4 {vr(RES + 4 * j, 4)}, v3, s[16:19], s51 offen offset:{j * 32}")
    a("s_waitcnt vmcnt(2)")
    a("s_branch K2_B2")
    a.label("K2_CS")
    colsum()
    if O_TCH >= 0:
        a("s_cmp_eq_u32 s22, 6")
        a("s_cbranch_scc0 K2_B2")
        if O_TCH: a(f"s_sleep {O_TCH}")
        a("s_lshl_b32 s29, s23, 16")
        a("s_lshl_b32 s33, s24, 13")
        a("s_add_u32 s29, s29, s33")
        a(f"s_add_u32 s29, s29, {OF}")
        a("v_lshlrev_b32 v1, 7, v0")
        a("buffer_load_dword v14, v1, s[8:11], s29 offen sc1")
    a("s_branch K2_B2")
    a.label("K2_POLL2")
    a("s_lshr_b32 s29, s23, 2")
    a("s_lshl_b32 s29, s29, 8")
    a(f"s_add_u32 s29, s29, {FL2}")
    poll2("K2_P2", 29, 32)
    a.label("K2_B2")
    a("s_lshl_b32 s29, s25, 15")
    a("s_lshr_b32 s33, s22, 1")
    a("s_lshl_b32 s33, s33, 12")
    a("s_add_u32 s29, s29, s33")
    a("s_lshl_b32 s33, s23, 16")
    a("s_add_u32 s33, s33, s29")
    a(f"s_add_u32 s33, s33, {OF}")
    a("s_add_u32 s52, s33, 16384")
    a(f"s_add_u32 m0, s29, {65536 + 16384}")
    st(a, 'p2')
    a("s_barrier")
    st(a, 't2')
    for i in range(4):
        a(f"buffer_load_dwordx4 v2, s[8:11], s52 offen offset:{i * 1024} {LD_SC} lds")
    a("s_add_u32 m0, s29, 65536")
    a("s_nop 0")
    for i in range(4):
        a(f"buffer_load_dwordx4 v2, s[8:11], s33 offen offset:{i * 1024} {LD_SC} lds")
    for s in range(16):
        for e in range(2):
            a(f"ds_read_b64_tr_b16 {vr(WO + 4 * s + 2 * e, 2)}, v9 offset:{(2 * s + e) * 1024}")
    a("s_lshl_b32 s29, s26, 15")
    a("s_lshl_b32 s33, s27, 14")
    a("s_add_u32 s29, s29, s33")
    a("s_add_u32 s29, s29, 65536")
    a("v_add_u32 v8, s29, v2")
    a("s_and_b32 s29, s22, 3")
    a("s_lshl_b32 s29, s29, 12")
    a(f"s_add_u32 s29, s29, {SCR}")
    a("v_add_u32 v9, s29, v2")
    def omm(first, hooks):
        rd = lambda s: f"ds_read_b128 {vr(OB + 4 * (s % 4), 4)}, v8 offset:{s * 1024}"
        for s in range(3): a(rd(s))
        for s in range(16):
            left = 15 - s
            if left >= 3: a(rd(s + 3))
            a(f"s_waitcnt lgkmcnt({min(left, 3) + hooks.get(('x', s), 0)})")
            a(MF32(vr(A3, 16), vr(WO + 4 * s, 4), vr(OB + 4 * (s % 4), 4), first if s == 0 else None))
            for x in hooks.get(s, []): a(x)
    a("s_cmp_lt_u32 s22, 4")
    a("s_cbranch_scc1 K2_O_LO")
    a("s_waitcnt vmcnt(4) lgkmcnt(0)")
    a("s_barrier")
    st(a, 'o0')
    omm("0", {O_B1: ["s_waitcnt vmcnt(0)", "s_barrier"]})
    st(a, 'om')
    a("s_nop 11")
    for q in range(4):
        a(f"ds_write_b128 v9, {vr(A3 + 4 * q, 4)} offset:{q * 1024}")
    a("s_waitcnt lgkmcnt(0)")
    a("s_barrier")
    a("s_lshr_b32 s31, s23, 1")
    a("s_lshl_b32 s31, s31, 8")
    a("s_and_b32 s33, s23, 1")
    a("s_lshl_b32 s33, s33, 3")
    a("s_add_u32 s33, s33, s24")
    a("s_lshl_b32 s33, s33, 2")
    a("s_add_u32 s31, s31, s33")
    a(f"s_add_u32 s31, s31, {FL3}")
    a("s_lshl_b32 s29, s36, 8")
    a(f"s_add_u32 s29, s29, {FL3}")
    a("s_barrier")
    signal("K2_S3", True)
    if H_TCH >= 0:
        a("s_cmp_lt_u32 s22, 6")
        a("s_cbranch_scc0 K2_NHT")
        if H_TCH: a(f"s_sleep {H_TCH}")
        a("s_lshl_b32 s52, s36, 17")
        a("s_lshl_b32 s33, s24, 14")
        a("s_add_u32 s52, s52, s33")
        a("s_and_b32 s33, s22, 1")
        a("s_lshl_b32 s33, s33, 13")
        a("s_add_u32 s52, s52, s33")
        a(f"s_add_u32 s52, s52, {HF}")
        a("v_lshlrev_b32 v1, 7, v0")
        a("buffer_load_dword v14, v1, s[8:11], s52 offen sc1")
        a.label("K2_NHT")
    a("s_cmp_eq_u32 s22, 7")
    a("s_cbranch_scc0 K2_B3")
    poll2("K2_P3", 29, 16)
    a("s_branch K2_B3")
    a.label("K2_O_LO")
    a("s_waitcnt vmcnt(8)")
    for j in range(2):
        a(f"v_permlane32_swap_b32 v{RES + 4 * j}, v{RES + 4 * j + 2}")
        a(f"v_permlane32_swap_b32 v{RES + 4 * j + 1}, v{RES + 4 * j + 3}")
    a("s_mov_b32 s29, 0xffff0000")
    for i in range(8):
        a(f"v_lshlrev_b32 v{A3 + 2 * i}, 16, v{RES + i}")
        a(f"v_and_b32 v{A3 + 1 + 2 * i}, s29, v{RES + i}")
    a("s_lshl_b32 s52, s30, 15")
    a("s_lshl_b32 s33, s28, 11")
    a("s_add_u32 s52, s52, s33")
    a(f"s_add_u32 s52, s52, {HF}")
    a("s_lshl_b32 s53, s30, 12")
    a("s_lshl_b32 s33, s28, 8")
    a("s_add_u32 s53, s53, s33")
    a(f"s_add_u32 s53, s53, {ST}")
    a("v_lshlrev_b32 v3, 3, v0")
    a("s_mov_b32 s29, 0x3f803f80")
    a("v_mov_b32 v14, 0")
    a("v_mov_b32 v15, 0")
    a("s_waitcnt vmcnt(4) lgkmcnt(0)")
    a("s_barrier")
    st(a, 'o0')
    a("s_waitcnt vmcnt(0)")
    a("s_barrier")
    if O_PRIO: a("s_setprio 2")
    omm(None, {13: ["s_barrier"] + [f"ds_read_b128 {vr(32 + 4 * q, 4)}, v9 offset:{q * 1024}" for q in range(4)],
               ('x', 14): 4, ('x', 15): 4})
    st(a, 'om')
    a("s_nop 10")
    o = 112
    for q in range(4):
        a(f"s_waitcnt lgkmcnt({3 - q})")
        for i in range(4 * q, 4 * q + 4):
            a(f"v_add_f32 v{A3 + i}, v{A3 + i}, v{32 + i}")
        for i in range(2 * q, 2 * q + 2):
            a(f"v_cvt_pk_bf16_f32 v{o + i}, v{A3 + 2 * i}, v{A3 + 2 * i + 1}")
        if q % 2:
            j = q // 2
            for x in dstore(f"buffer_store_dwordx4 {vr(o + 4 * j, 4)}, v2, s[8:11], s52 offen offset:{j * 1024}"): a(x)
    for i in range(8):
        a(f"v_dot2c_f32_bf16 v14, s29, v{o + i}")
        a(f"v_dot2c_f32_bf16 v15, v{o + i}, v{o + i}")
    a("s_nop 2")
    a("v_mov_b32 v16, v14")
    a("v_mov_b32 v17, v15")
    a("s_nop 0")
    a("v_permlane32_swap_b32 v14, v16")
    a("v_permlane32_swap_b32 v15, v17")
    a("v_add_f32 v14, v14, v16")
    a("v_add_f32 v15, v15, v17")
    a("s_mov_b64 exec, 0xffffffff")
    for x in dstore("buffer_store_dwordx2 v[14:15], v3, s[8:11], s53 offen"): a(x)
    a("s_mov_b64 exec, -1")
    a("s_setprio 0")
    if not UNSAFE & 4: a("s_waitcnt vmcnt(0)")
    a("s_barrier")
    colsum()
    a.label("K2_B3")
    st(a, 'hw')
    a("v_add_u32 v3, 65536, v2")
    a("v_and_b32 v8, 31, v0")
    a("v_lshlrev_b32 v8, 4, v8")
    a(f"v_add_u32 v8, {SCR}, v8")
    a(f"s_mul_i32 s32, s36, {4 * 112 * 1024}")
    a("s_lshl_b32 s33, s39, 10")
    a("s_add_u32 s32, s32, s33")
    a(f"s_add_u32 s32, s32, {GF}")
    a("s_and_b32 s25, s22, 3")
    a(f"s_and_b32 s57, s37, {G_PERM}")
    a("s_lshl_b32 s57, s57, 1")
    a("s_xor_b32 s33, s25, s57")
    a("s_lshl_b32 s30, s36, 2")
    a("s_add_u32 s30, s30, s33")
    a(f"s_mul_i32 s33, s57, {112 * 1024}")
    a(f"s_sub_u32 s56, {2 * 112 * 1024}, s33")
    a("s_add_u32 s56, s56, s32")
    a("s_add_u32 s32, s32, s33")
    CNT = SCR + 2048; SPARE = SCR + 4096; WD = 128; KS = 14
    a(f"v_mov_b32 v4, {CNT}")
    a("v_mov_b32 v5, 1")
    def hread(dst, tt, s):
        return f"ds_read_b128 {vr(dst, 4)}, v{2 + tt // 2} offset:{(tt % 2) * 32768 + s * 1024}"
    def epi(g, z, st, tt):
        u = g + 8; o = []
        ve, a0, a1 = f"v{st+1}", f"v{st+2}", f"v{st+3}"
        o += [f"v_mul_f32 v{z+i}, v{g+i}, v{g+i}" for i in range(8)]
        o += [f"v_fma_f32 v{z+i}, v{z+i}, {a1}, {a0}" for i in range(8)]
        o += [f"v_mul_f32 v{z+i}, v{z+i}, v{g+i}" for i in range(8)]
        for i in range(8):
            o += [f"v_exp_f32 v{z+i}, v{z+i}", f"v_mul_f32 v{g+i}, v{g+i}, v{u+i}"]
        o += [f"v_fma_f32 v{z+i}, v{z+i}, {ve}, {ve}" for i in range(8)]
        o += [f"v_rcp_f32 v{z+i}, v{z+i}" for i in range(8)]
        o += [f"s_add_u32 s29, s{32 if tt < 2 else 56}, {(tt % 2) * 112 * 1024}"]
        o += [f"v_mul_f32 v{g+i}, v{g+i}, v{z+i}" for i in range(8)]
        o += [f"v_cvt_pk_bf16_f32 v{u+i}, v{g+2*i}, v{g+2*i+1}" for i in range(4)]
        o += dstore(f"buffer_store_dwordx4 {vr(u, 4)}, v2, s[8:11], s29 offen")
        return o
    ACC = 16; HB = 32; ZB = 80; SB = 88; TB = 92; NR = 12; STR = [96, 100, 104, 108]
    a(f"v_mov_b32 v{TB + 2}, 0")
    a(f"v_mov_b32 v{TB + 3}, 0")
    def cwait(tag, off, val=7, reg=4):
        a("s_mov_b32 s33, 0")
        a.label(f"K2_WC{tag}")
        a(f"ds_read_b32 v6, v{reg} offset:{off}")
        a("s_add_u32 s33, s33, 1")
        a("s_waitcnt lgkmcnt(0)")
        a(f"v_cmp_eq_u32 vcc, {val}, v6")
        a("s_cmp_gt_u32 s33, 0x100000")
        a(f"s_cbranch_scc1 K2_WX{tag}")
        a(f"s_cbranch_vccnz K2_WX{tag}")
        a("s_sleep 2")
        a(f"s_branch K2_WC{tag}")
        a.label(f"K2_WX{tag}")
    ntile = [0]
    def tile(tt, hooks, pre=None, last=False, late=False):
        a("s_setprio 1")
        rd = lambda ks: hread(HB + 4 * (ks % NR), tt, ks)
        if pre is None:
            for ks in range(NR - 1): a(rd(ks))
        for ks in range(32):
            if ks + NR - 1 < 32: a(rd(ks + NR - 1))
            if ks % 4 == 0:
                a(f"s_waitcnt lgkmcnt({min(ks + NR - 1, 31) - (ks + 3)})")
            a(MF32(vr(ACC, 16), vr(W + 4 * ks, 4), vr(HB + 4 * (ks % NR), 4), "0" if ks == 0 else None))
            if G_NOP: a(f"s_nop {G_NOP}")
            if ks == G_P2: a("s_setprio 2")
            if ks == G_EA and tt == 2:
                a("s_waitcnt vmcnt(0)")
                a("s_mov_b64 exec, 1")
                a("ds_add_u32 v4, v5 offset:16")
                a("s_mov_b64 exec, -1")
            if ks == 28 and tt < 3:
                a("s_mov_b64 exec, 1")
                a(f"ds_add_u32 v4, v5 offset:{tt * 4}")
                a("s_mov_b64 exec, -1")
            if not late:
                if ks == 22: a(f"ds_read_b128 {vr(SB, 4)}, v8 offset:{tt * 512}")
                if ks == 29:
                    a(f"v_mov_b32 v{TB}, v{SB}")
                    a(f"v_mov_b32 v{TB + 1}, v{SB}")
            for x in hooks.get(ks, []): a(x)
        if late:
            a(f"ds_read_b128 {vr(SB, 4)}, v8 offset:{tt * 512}")
            a("s_waitcnt lgkmcnt(0)")
            a(f"v_mov_b32 v{TB}, v{SB}")
            a(f"v_mov_b32 v{TB + 1}, v{SB}")
            a("s_nop 1")
        a(MF32(vr(ACC, 16), vr(124, 4), vr(TB, 4)))
        a("s_setprio 0")
        for x in hooks.get("post", []): a(x)
        if tt == (1 if G_W7H else 2):
            ntile[0] += 1
            cwait(f"T{ntile[0]}", 24, 1)
        if not last:
            for ks in range(NR - 1): a(hread(HB + 4 * ks, tt + 1, ks))
        else:
            a("s_nop 10")
        for x in epi(ACC, ZB, SB, tt): a(x)
    a("s_lshl_b32 s26, s36, 17")
    a(f"s_add_u32 s26, s26, {HF}")
    a("s_lshl_b32 s33, s57, 15")
    a("s_sub_u32 s27, 65536, s33")
    a("s_add_u32 s27, s27, s26")
    a("s_add_u32 s26, s26, s33")
    a("s_lshl_b32 s28, s22, 12")
    a("s_add_u32 s29, s26, s28")
    a("s_mov_b32 m0, s28")
    a("s_lshl_b32 s52, s30, 12")
    a(f"s_add_u32 s52, s52, {ST}")
    a("s_lshl_b32 s53, s25, 9")
    a("v_add_u32 v9, s53, v8")
    a("v_and_b32 v1, 31, v0")
    a("v_lshlrev_b32 v1, 3, v1")
    a("v_lshl_add_u32 v1, v11, 11, v1")
    a("s_barrier")
    st(a, 't3')
    for i in range(4):
        a(f"buffer_load_dwordx4 v2, s[8:11], s29 offen offset:{i * 1024} {LD_SC} lds")
    a("s_cmp_lt_u32 s22, 4")
    a("s_cbranch_scc1 K2_GA")
    a("s_lshl_b32 s28, s25, 13")
    def hdma(tt, groups, base):
        for g in groups:
            a(f"s_add_u32 m0, {base}, {tt * 32768 + g * 4096}")
            a(f"s_add_u32 s29, s{26 if tt < 2 else 27}, {(tt % 2) * 32768 + g * 4096}")
            if base != "0": a(f"s_add_u32 s29, s29, {base}")
            for i in range(4):
                a(f"buffer_load_dwordx4 v2, s[8:11], s29 offen offset:{i * 1024} {LD_SC} lds")
    for q in range(8):
        a(f"buffer_load_dwordx2 {vr(STR[q // 2] + 2 * (q % 2), 2)}, v1, s[8:11], s52 offen offset:{q * 256} sc1")
    hdma(1, range(1), "s28")
    a("v_mov_b32 v6, 0")
    a("v_mov_b32 v7, 0")
    for q in range(4):
        a(f"ds_write_b64 v4, v[6:7] offset:{q * 8}")
    a("s_waitcnt vmcnt(12) lgkmcnt(0)")
    a("s_barrier")
    st(a, 'g1')
    hdma(1, range(1, 2), "s28")
    r0 = STR[0]
    SQ = []
    for q in range(1, 4):
        SQ += [f"v_add_f32 v{r0 + i}, v{r0 + i}, v{STR[q] + i}" for i in range(4)]
    SQ += [f"v_add_f32 v12, v{r0}, v{r0 + 2}", f"v_add_f32 v13, v{r0 + 1}, v{r0 + 3}",
           "v_mov_b32 v14, v12", "v_mov_b32 v15, v13", "s_nop 0",
           "v_permlane32_swap_b32 v12, v14", "v_permlane32_swap_b32 v13, v15",
           "v_add_f32 v12, v12, v14", "v_add_f32 v13, v13, v15",
           f"v_mul_f32 v12, {f32(-1/512)}, v12", f"v_mul_f32 v13, {f32(1/512)}, v13",
           "v_fma_f32 v13, -v12, v12, v13", "v_max_f32 v13, 0, v13", f"v_add_f32 v{r0 + 1}, {f32(EPS)}, v13",
           f"v_rsq_f32 v14, v{r0 + 1}", "v_cvt_pk_bf16_f32 v15, v12, v12", "v_lshlrev_b32 v15, 16, v15",
           "v_sub_f32 v12, v12, v15", f"v_cvt_pk_bf16_f32 v{r0}, v15, v12",
           f"v_mul_f32 v{r0 + 2}, {f32(-K1C)}, v14", "v_mul_f32 v14, v14, v14", f"v_mul_f32 v14, v14, v{r0 + 2}",
           f"v_mul_f32 v{r0 + 3}, {f32(0.044715)}, v14"]
    a("s_waitcnt vmcnt(8)")
    for x in SQ: a(x)
    a(f"ds_write_b128 v9, {vr(r0, 4)}")
    if not G_W7H: hdma(2, range(2), "s28")
    a("s_waitcnt lgkmcnt(0)")
    a("s_barrier")
    st(a, 'g2')
    a("s_cmp_eq_u32 s22, 7")
    a("s_cbranch_scc1 K2_W7")
    tile(0, {GB3: ["s_waitcnt vmcnt(0)", "s_barrier"]})
    tile(1, {}, pre=1); tile(2, {}, pre=1)
    tile(3, {}, pre=1, last=True)
    a("s_branch K2_DOWN")
    a.label("K2_W7")
    hdma(2 if G_W7H else 3, range(8), "0")
    a("s_waitcnt vmcnt(32)")
    a("s_barrier")
    if G_W7H: hdma(3, range(8), "0")
    srd(a, 12, 48, 1792 * 512 * 2)
    a("v_bfe_u32 v8, v0, 2, 3")
    a("v_lshlrev_b32 v8, 10, v8")
    a("v_lshl_add_u32 v8, v11, 6, v8")
    a("v_and_b32 v1, 3, v0")
    a("v_lshl_add_u32 v8, v1, 4, v8")
    a("v_lshlrev_b32 v9, 6, v10")
    a("v_lshl_add_u32 v9, v1, 3, v9")
    a("v_bfe_u32 v1, v0, 4, 1")
    a("v_lshl_add_u32 v9, v1, 5, v9")
    a(f"v_add_u32 v9, {SPARE}, v9")
    a("v_xor_b32 v7, 64, v8")
    a("s_lshl_b32 s26, s24, 7")
    ko = lambda s_: s_ + (7 if s_ >= 7 else 0)
    a("s_and_b32 s52, s23, 1")
    a(f"s_mul_i32 s27, s52, {7 * 16384}")
    a("s_add_u32 s27, s27, s26")
    for j in range(28):
        a(f"s_mov_b32 m0, {SPARE + j * 1024}")
        a(f"s_add_u32 s29, s27, {(84 + ko(j // 2)) * 16384 + (j % 2) * 8192}")
        a("buffer_load_dwordx4 v7, s[12:15], s29 offen lds")
    a("s_waitcnt vmcnt(28)")
    a("ds_write_b32 v4, v5 offset:24")
    a("s_waitcnt vmcnt(0)")
    for j in range(28):
        for e in range(2):
            a(f"ds_read_b64_tr_b16 {vr(WD + 8 * (j // 2) + 4 * e + 2 * (j % 2), 2)}, v9 offset:{j * 1024 + e * 512}")
    a("s_waitcnt lgkmcnt(0)")
    a("s_xor_b32 s53, s52, 1")
    a(f"s_mul_i32 s53, s53, {7 * 16384}")
    a("s_add_u32 s53, s53, s26")
    def sdma(w, j, lds):
        a(f"s_mov_b32 m0, {lds}")
        a(f"s_add_u32 s29, s{53 if w < 4 else 27}, {(28 * (w % 4) + ko(j // 2)) * 16384 + (j % 2) * 8192}")
        a(f"buffer_load_dwordx4 v{8 - w % 2}, s[12:15], s29 offen lds")
    for w in range(4):
        for j in range(7): sdma(w, j, SPARE + w * 7168 + j * 1024)
    for r in range(3):
        if r == 2:
            a("s_lshl_b32 s31, s36, 8")
            a("s_lshl_b32 s33, s37, 2")
            a("s_add_u32 s31, s31, s33")
            a(f"s_add_u32 s31, s31, {FL4 + 128}")
            a("v_mov_b32 v12, 0")
            a("v_mov_b32 v13, 1")
            cwait("A", 16)
            signal("K2_S4A")
        cwait(r, r * 4)
        for w in range(4): sdma(w, 7 + r, r * 32768 + 28672 + w * 1024)
        for j in range(28): sdma(4 + r, j, r * 32768 + j * 1024)
        if r == 2:
            a("s_waitcnt vmcnt(28)")
            a("ds_write_b32 v4, v5 offset:20")
    a("s_branch K2_DOWN")
    a.label("K2_GA")
    a("s_waitcnt vmcnt(0)")
    a("s_barrier")
    st(a, 'g1')
    tile(0, {31: ["s_barrier"]}, late=True, last=True)
    st(a, 'g2')
    a("s_barrier")
    tile(1, {}); tile(2, {}, pre=1)
    tile(3, {}, pre=1, last=True)
    a.label("K2_DOWN")
    st(a, 'gu')
    AC5 = 16; GS = [80, 88, 96, 104, 240, 248, 120]; NG = len(GS)
    srd(a, 12, 48, 1792 * 512 * 2)
    srd(a, 16, 62, 2048 * 512 * 2)
    a("s_lshl_b32 s31, s36, 8")
    a("s_lshl_b32 s33, s37, 2")
    a("s_add_u32 s31, s31, s33")
    a(f"s_add_u32 s31, s31, {FL4}")
    a("s_and_b32 s26, s22, 1")
    a("s_bfe_u32 s27, s22, 0x10001")
    a("s_lshl_b32 s28, s24, 1")
    a("s_add_u32 s28, s28, s26")
    a("s_lshl_b32 s30, s23, 1")
    a("s_add_u32 s30, s30, s27")
    a("s_lshr_b32 s33, s22, 2")
    a("s_xor_b32 s33, s33, s23")
    a("s_and_b32 s33, s33, 1")
    a("s_xor_b32 s57, s33, 1")
    a("s_lshl_b32 s33, s25, 2")
    a("s_add_u32 s33, s33, s57")
    a("s_mul_i32 s29, s33, 7168")
    a(f"s_mul_i32 s52, s30, {112 * 1024}")
    a("s_add_u32 s52, s52, s29")
    a(f"s_add_u32 s52, s52, {GF}")
    a("s_xor_b32 s53, s30, 1")
    a(f"s_mul_i32 s53, s53, {112 * 1024}")
    a("s_add_u32 s53, s53, s29")
    a(f"s_add_u32 s53, s53, {GF}")
    a(f"s_mul_i32 s29, s33, {7 * 16384}")
    a("s_lshl_b32 s54, s24, 7")
    a("s_add_u32 s54, s54, s29")
    a("s_lshl_b32 s55, s26, 6")
    a("s_lshl_b32 s32, s22, 12")
    a("v_bfe_u32 v8, v0, 2, 3")
    a("v_lshlrev_b32 v8, 10, v8")
    a("v_lshl_add_u32 v8, v11, 6, v8")
    a("v_and_b32 v1, 3, v0")
    a("v_lshl_add_u32 v8, v1, 4, v8")
    a("v_lshlrev_b32 v9, 6, v10")
    a("v_lshl_add_u32 v9, v1, 3, v9")
    a("v_bfe_u32 v1, v0, 4, 1")
    a("v_lshl_add_u32 v9, v1, 5, v9")
    a("v_xor_b32 v8, s55, v8")
    a("v_mov_b32 v12, 0")
    a("v_mov_b32 v13, 1")
    a("v_and_b32 v3, 31, v0")
    a("v_lshlrev_b32 v3, 10, v3")
    a("v_lshl_add_u32 v3, v11, 4, v3")
    def trd(j, reg, off):
        return [f"ds_read_b64_tr_b16 {vr(WD + 8 * (j // 2) + 4 * e + 2 * (j % 2), 2)}, v{reg} offset:{off + e * 512}" for e in range(2)]
    def wdma(j, sreg, off):
        a(f"s_add_u32 m0, s{sreg}, {off}")
        a(f"s_add_u32 s29, s54, {ko(j // 2) * 16384 + (j % 2) * 8192}")
        V("buffer_load_dwordx4 v8, s[12:15], s29 offen lds", "wd")
    def dumpaddr():
        for t in range(4):
            a(f"s_xor_b32 s29, s25, {t}")
            a("s_lshl_b32 s29, s29, 15")
            a("s_add_u32 s29, s29, s32")
            a(f"v_add_u32 v{4 + t}, s29, v2")
    gb = [0]
    def gload(s):
        k = ko(s) * 1024
        if k - gb[0] > 3072:
            a(f"s_add_u32 s52, s52, {k - gb[0]}")
            a(f"s_add_u32 s53, s53, {k - gb[0]}")
            gb[0] = k
        for i in range(2):
            V(f"buffer_load_dwordx4 {vr(GS[s % NG] + 4 * i, 4)}, v2, s[8:11], s{52 + i} offen offset:{k - gb[0]} sc1", f"g{s}")
    def kloop(hooks, fills):
        issued = NG; fq = []
        for s in range(KS):
            for x in hooks.get(s, []):
                x() if callable(x) else a(x)
            fq += fills.get(s, [])
            vmwait(f"g{s}")
            g = GS[s % NG]; w = WD + 8 * s
            B0, B1, A0, A1 = vr(g, 4), vr(g + 4, 4), vr(w, 4), vr(w + 4, 4)
            C = "0" if s == 0 else None
            for d_, A_, B_ in ((AC5 + 32, A0, B1), (AC5 + 16, A1, B0), (AC5 + 48, A1, B1), (AC5, A0, B0)):
                a(MF32(vr(d_, 16), A_, B_, C))
                for _ in range(5):
                    if fq: a(fq.pop(0))
            if issued < KS:
                gload(issued); issued += 1
        assert not fq
    def dump(ts):
        for t in ts:
            for q in range(4):
                a(f"ds_write_b128 v{4 + t}, {vr(AC5 + 16 * t + 4 * q, 4)} offset:{q * 1024}")
    a("s_cmp_lt_u32 s22, 4")
    a("s_cbranch_scc1 K2_DLO")
    a("s_lshl_b32 s29, s25, 15")
    a("v_add_u32 v9, s29, v9")
    a(f"v_mov_b32 v14, {CNT}")
    dumpaddr()
    if UNSAFE & 8:
        a("s_cmp_eq_u32 s22, 7")
        a("s_cbranch_scc0 K2_UZ")
    a("s_waitcnt vmcnt(0)")
    a.label("K2_UZ")
    a("s_barrier")
    signal("K2_S4", True)
    st(a, 'z0')
    del vm[:]; gb[0] = 0
    for s in range(NG): gload(s)
    a("s_cmp_eq_u32 s22, 7")
    a("s_cbranch_scc1 K2_D7")
    for j in range(28):
        for x in trd(j, 9, j * 1024): a(x)
    a.label("K2_D7")
    a("s_waitcnt lgkmcnt(0)")
    a("s_mov_b64 exec, 1")
    a("ds_add_u32 v14, v13 offset:28")
    a("s_mov_b64 exec, -1")
    if D_PRIO: a("s_setprio 2")
    kloop({D_ZS: ["s_barrier"]} if D_ZS >= 0 else {}, {})
    a("v_mov_b32 v15, v6")
    cwait("Z", 28, 8, 14)
    a("v_mov_b32 v6, v15")
    st(a, 't4'); st(a, 'dk'); st(a, 'db'); st(a, 'ds')
    a("s_nop 8")
    dump((2, 1, 3, 0))
    a("s_waitcnt lgkmcnt(0)")
    a("s_barrier")
    stamp_end(a, 0, 7, 8)
    a("s_endpgm")
    a.label("K2_DLO")
    del vm[:]; gb[0] = 0
    a("s_mul_i32 s26, s25, 7168")
    a(f"s_add_u32 s26, s26, {SPARE}")
    a("s_lshl_b32 s27, s25, 10")
    a("s_add_u32 s27, s27, 28672")
    a("s_lshl_b32 s28, s25, 13")
    a("s_add_u32 s28, s28, 98304")
    a("v_add_u32 v10, s26, v9")
    a("v_add_u32 v14, s27, v9")
    a("v_add_u32 v15, 65536, v14")
    a("v_add_u32 v9, s28, v9")
    SL = [(26, k * 1024, 10, k * 1024) for k in range(7)] + [(27, 0, 14, 0), (27, 32768, 14, 32768), (27, 65536, 15, 0)]
    cwait("R", 20, 1)
    for k in range(10):
        for x in trd(k, SL[k][2], SL[k][3]): a(x)
    a("s_waitcnt vmcnt(0) lgkmcnt(0)")
    for k in range(10): wdma(10 + k, SL[k][0], SL[k][1])
    a("s_cmp_eq_u32 s22, 3")
    a("s_cbranch_scc0 K2_NPA")
    a("v_mov_b32 v16, v15")
    a("s_lshr_b32 s29, s23, 1")
    a("s_lshl_b32 s29, s29, 8")
    a("s_xor_b32 s30, s57, 1")
    a("s_lshl_b32 s33, s30, 2")
    a("s_add_u32 s29, s29, s33")
    a(f"s_add_u32 s29, s29, {FL4 + 128}")
    poll("K2_P4A", 29, 8, 3)
    a("v_mov_b32 v15, v16")
    if G_ET:
        a("s_lshl_b32 s33, s24, 1")
        a("s_add_u32 s29, s30, s33")
        a("s_mul_i32 s29, s29, 7168")
        a(f"s_mul_i32 s33, s23, {224 * 1024}")
        a("s_add_u32 s29, s29, s33")
        a(f"s_add_u32 s29, s29, {GF}")
        a("v_min_u32 v1, 55, v0")
        a("v_lshlrev_b32 v1, 7, v1")
        a("buffer_load_dword v17, v1, s[8:11], s29 offen sc1")
        a(f"s_add_u32 s29, s29, {112 * 1024}")
        a("buffer_load_dword v17, v1, s[8:11], s29 offen sc1")
    a.label("K2_NPA")
    dumpaddr()
    a("s_barrier")
    st(a, 'z0')
    for k in range(8): wdma(20 + k, 28, k * 1024)
    a("s_waitcnt vmcnt(8)")
    for k in range(10):
        for x in trd(10 + k, SL[k][2], SL[k][3]): a(x)
    a("s_lshl_b32 s29, s25, 15")
    a("v_add_u32 v8, s29, v2")
    a(f"v_mov_b32 v12, {CNT + 12}")
    a("s_waitcnt vmcnt(0)")
    for k in range(8):
        for x in trd(20 + k, 9, k * 1024): a(x)
    for t in range(1, 4):
        a(f"s_xor_b32 s33, s25, {t}")
        a("s_lshl_b32 s33, s33, 12")
        a(f"v_add_u32 v{(10, 11, 4)[t - 1]}, s33, v8")
    a("s_waitcnt lgkmcnt(0)")
    a("s_mov_b64 exec, 1")
    a("ds_add_u32 v12, v13 offset:16")
    a("s_mov_b64 exec, -1")
    if D_ZS >= 0: a("s_barrier")
    a("s_cmp_eq_u32 s22, 0")
    a("s_cbranch_scc0 K2_DSP")
    a("s_lshr_b32 s29, s23, 1")
    a("s_lshl_b32 s29, s29, 8")
    a("s_lshl_b32 s33, s57, 2")
    a("s_add_u32 s29, s29, s33")
    a(f"s_add_u32 s29, s29, {FL4}")
    poll2("K2_P4", 29, 8, 3)
    a("ds_write_b32 v12, v13")
    a("s_branch K2_DGO")
    a.label("K2_DSP")
    a("s_mov_b32 s33, 0")
    a.label("K2_DSL")
    a("s_sleep 1")
    a("ds_read_b32 v15, v12")
    a("s_add_u32 s33, s33, 1")
    a("s_waitcnt lgkmcnt(0)")
    a("v_cmp_eq_u32 vcc, 1, v15")
    a("s_cmp_gt_u32 s33, 0x400000")
    a("s_cbranch_scc1 K2_DGO")
    a("s_cbranch_vccz K2_DSL")
    a.label("K2_DGO")
    st(a, 't4')
    del vm[:]
    for s in range(NG): gload(s)
    a("s_mov_b32 s56, 0xffff0000")
    a("s_waitcnt lgkmcnt(0)")
    F1 = [f"ds_read_b128 {vr(WD + 16 * p_ + 4 * q, 4)}, v8 offset:{16384 + p_ * 4096 + q * 1024}" for p_ in range(4) for q in range(4)]
    F2 = [f"v_add_f32 v{WD + i}, v{WD + i}, v{WD + 16 + i}" for i in range(16)]
    F2 += [f"v_add_f32 v{WD + 32 + i}, v{WD + 32 + i}, v{WD + 48 + i}" for i in range(16)]
    F2 += [f"v_add_f32 v{WD + i}, v{WD + i}, v{WD + 32 + i}" for i in range(16)]
    for i in range(8):
        F2 += [f"v_lshlrev_b32 v{WD + 16 + 2 * i}, 16, v{112 + i}", f"v_and_b32 v{WD + 17 + 2 * i}, s56, v{112 + i}"]
    F2 += [f"v_add_f32 v{WD + i}, v{WD + i}, v{WD + 16 + i}" for i in range(16)]
    kloop({8: ["s_barrier"], 10: ["s_waitcnt lgkmcnt(0)"]}, {8: F1, 10: F2}) if not D_LATE else kloop({9: ["s_barrier"], 10: ["s_waitcnt lgkmcnt(0)"]}, {9: F1, 10: F2})
    st(a, 'dk')
    dump((2, 1, 3))
    for i in range(16):
        a(f"v_add_f32 v{AC5 + i}, v{AC5 + i}, v{WD + i}")
    a("s_waitcnt lgkmcnt(0)")
    a("s_barrier")
    st(a, 'db')
    for t in range(3):
        for q in range(4):
            a(f"ds_read_b128 {vr(WD + 16 * t + 4 * q, 4)}, v{(10, 11, 4)[t]} offset:{q * 1024}")
    for t in range(3):
        a(f"s_waitcnt lgkmcnt({8 - 4 * t})")
        for i in range(0, 16, 2):
            a(f"v_pk_add_f32 {vr(AC5 + i, 2)}, {vr(AC5 + i, 2)}, {vr(WD + 16 * t + i, 2)}")
    o = AC5 + 16
    for i in range(8):
        a(f"v_cvt_pk_bf16_f32 v{o + i}, v{AC5 + 2 * i}, v{AC5 + 2 * i + 1}")
    a("s_nop 0")
    for j in range(2):
        a(f"v_permlane32_swap_b32 v{o + 4 * j}, v{o + 4 * j + 2}")
        a(f"v_permlane32_swap_b32 v{o + 4 * j + 1}, v{o + 4 * j + 3}")
    for j in range(2):
        a(f"buffer_store_dwordx4 {vr(o + 4 * j, 4)}, v3, s[16:19], s51 offen offset:{j * 32} {OUT_SC}")
    st(a, 'ds')
    stamp_end(a, 0, 7, 8)
    a("s_endpgm")
    a.label("K2_FALLBACK")
    a("v_mov_b32 v1, v2")
    a("v_mov_b32 v14, 0xff800000")
    a("s_mov_b32 s33, 0")
    a(f"s_add_u32 s52, s25, {KF}")
    a(f"s_add_u32 s53, s25, {VF - 65536}")
    a.label("K2_FB1")
    a(f"buffer_load_dwordx4 {vr(KR, 4)}, v1, s[8:11], s52 offen sc1")
    a("v_add_u32 v1, 1024, v1")
    a("s_waitcnt vmcnt(0)")
    a(MF32(vr(s0, 16), vr(KR, 4), vr(Q, 4), "0"))
    a("s_nop 11")
    for i in range(0, 16, 2):
        a(f"v_max3_f32 v14, v14, v{s0+i}, v{s0+i+1}")
    a("s_add_u32 s33, s33, 1")
    a("s_cmp_lt_u32 s33, 64")
    a("s_cbranch_scc1 K2_FB1")
    set_negm()
    for i in range(16):
        a(f"v_mov_b32 v{O + i}, 0")
    a("v_mov_b32 v1, v2")
    a("s_mov_b32 s33, 0")
    a.label("K2_FB2")
    a(f"buffer_load_dwordx4 {vr(KR, 4)}, v1, s[8:11], s52 offen sc1")
    a("s_mov_b64 exec, s[34:35]")
    a(f"buffer_load_dwordx4 {vr(VR, 4)}, v3, s[8:11], s53 offen sc1")
    a(f"buffer_load_dwordx4 {vr(VR + 4, 4)}, v3, s[8:11], s53 offen offset:512 sc1")
    a("s_mov_b64 exec, -1")
    a("v_add_u32 v1, 1024, v1")
    a("v_add_u32 v3, 1024, v3")
    a("s_waitcnt vmcnt(0)")
    a(MF32(vr(s0, 16), vr(KR, 4), vr(Q, 4), vr(NEGM, 16)))
    a("s_nop 11")
    for i in range(16): a(f"v_exp_f32 v{s0+i}, v{s0+i}")
    a("s_nop 0")
    for i in range(8): a(f"v_cvt_pk_bf16_f32 v{P+i}, v{s0+2*i}, v{s0+2*i+1}")
    a("s_nop 1")
    a(MF32(vr(O, 16), vr(VR, 4), vr(P, 4)))
    a(MF32(vr(O, 16), vr(VR + 4, 4), vr(P + 4, 4)))
    a("s_add_u32 s33, s33, 1")
    a("s_cmp_lt_u32 s33, 64")
    a("s_cbranch_scc1 K2_FB2")
    a("s_nop 11")
    a("s_branch K2_FIN")
    a.label("K2_END")
    a("s_endpgm")
    return n, a, kd(n, 256, 256), (256, 512, 163840)

def k5():
    a = Asm(); n = "k3_down_kernel"
    NS = 112; KS = 28; DEPTH = 8
    kernel_head(a, n)
    ACC = 16; GB = 80; WB = 144; RES = 160
    RED = 65536
    a("s_cmp_ge_u32 s2, 256")
    a("s_cbranch_scc1 K5_END")
    stamp(a, 0)
    if DBGK1:
        a("s_memrealtime s[64:65]")
        a("s_memtime s[66:67]")
    a("s_load_dwordx2 s[4:5], s[0:1], 72")
    a("s_load_dwordx4 s[40:43], s[0:1], 48")
    a("v_lshrrev_b32 v1, 6, v0")
    a("v_and_b32 v0, 63, v0")
    a("v_readfirstlane_b32 s22, v1")
    a("v_lshlrev_b32 v2, 4, v0")
    a("s_and_b32 s23, s2, 7")
    a("s_lshl_b32 s23, s23, 2")
    a("s_bfe_u32 s29, s2, 0x20003")
    a("s_add_u32 s23, s23, s29")
    a("s_lshr_b32 s24, s2, 5")
    a("s_and_b32 s25, s22, 1")
    a("s_lshr_b32 s26, s22, 1")
    a("s_lshl_b32 s27, s24, 1")
    a("s_add_u32 s27, s27, s25")
    a("s_lshl_b32 s28, s23, 1")
    a("s_add_u32 s28, s28, s26")
    a(f"s_mul_i32 s29, s22, {KS * 1024}")
    a(f"s_mul_i32 s32, s28, {NS * 1024}")
    a("s_add_u32 s32, s32, s29")
    a(f"s_add_u32 s32, s32, {GF}")
    a("s_xor_b32 s33, s28, 1")
    a(f"s_mul_i32 s33, s33, {NS * 1024}")
    a("s_add_u32 s33, s33, s29")
    a(f"s_add_u32 s33, s33, {GF}")
    a(f"s_mul_i32 s29, s22, {KS * 16384}")
    a("s_lshl_b32 s30, s27, 6")
    a("s_xor_b32 s31, s30, 64")
    a("s_add_u32 s30, s30, s29")
    a("s_add_u32 s31, s31, s29")
    a("s_lshl_b32 s36, s22, 14")
    a("v_bfe_u32 v8, v0, 2, 3")
    a("v_lshlrev_b32 v8, 10, v8")
    a("v_lshl_add_u32 v8, v11, 6, v8")
    a("v_and_b32 v1, 3, v0")
    a("v_lshl_add_u32 v8, v1, 4, v8")
    a("s_waitcnt lgkmcnt(0)")
    srd(a, 8, 4, WS_SIZE)
    srd(a, 16, 40, 1792 * 512 * 2)
    srd(a, 12, 42, 2048 * 512 * 2)
    def loads(s):
        b = GB + 8 * (s % DEPTH)
        if s % 4 == 0 and s > 0:
            a("s_add_u32 s32, s32, 4096")
            a("s_add_u32 s33, s33, 4096")
        for i in range(2):
            a(f"s_add_u32 m0, s36, {(s % DEPTH) * 2048 + i * 1024}")
            a(f"s_add_u32 s29, s{30 + i}, {s * 16384}")
            a("buffer_load_dwordx4 v8, s[16:19], s29 offen lds")
        for i in range(2):
            a(f"buffer_load_dwordx4 {vr(b + 4 * i, 4)}, v2, s[8:11], s{32 + i} offen offset:{(s % 4) * 1024}")
    for s in range(DEPTH - 1):
        loads(s)
    a("v_lshrrev_b32 v4, 5, v0")
    a("v_bfe_u32 v1, v0, 2, 2")
    a("v_lshl_add_u32 v9, v4, 2, v1")
    a("v_lshlrev_b32 v9, 6, v9")
    a("v_and_b32 v1, 3, v0")
    a("v_lshl_add_u32 v9, v1, 3, v9")
    a("v_bfe_u32 v1, v0, 4, 1")
    a("v_lshl_add_u32 v9, v1, 5, v9")
    a("v_add_u32 v9, s36, v9")
    a("v_and_b32 v3, 31, v0")
    a("v_lshlrev_b32 v3, 10, v3")
    a("v_lshl_add_u32 v3, v4, 4, v3")
    a("s_lshl_b32 s34, s28, 15")
    a("s_lshl_b32 s35, s27, 6")
    a("s_add_u32 s34, s34, s35")
    a("s_lshl_b32 s35, s28, 15")
    a("s_lshl_b32 s37, s27, 11")
    a("s_add_u32 s35, s35, s37")
    a(f"s_add_u32 s35, s35, {HF}")
    for t in range(1, 4):
        a(f"s_xor_b32 s29, s22, {t}")
        a("s_mul_i32 s29, s29, 12288")
        a(f"s_add_u32 s29, s29, {RED}")
        a(f"v_add_u32 v{4 + t}, s29, v2")
    a("s_mul_i32 s29, s22, 12288")
    a(f"s_add_u32 s29, s29, {RED}")
    a("v_add_u32 v4, s29, v2")
    def trreads(s):
        for i in range(2):
            for e in range(2):
                a(f"ds_read_b64_tr_b16 {vr(WB + 8 * (s % 2) + 4 * i + 2 * e, 2)}, v9 offset:{(s % DEPTH) * 2048 + i * 1024 + e * 512}")
    def mfmas(s):
        g = GB + 8 * (s % DEPTH); w = WB + 8 * (s % 2)
        B0, B1, A0, A1 = vr(g, 4), vr(g + 4, 4), vr(w, 4), vr(w + 4, 4)
        C = "0" if s == 0 else None
        a(MF32(vr(ACC, 16), A0, B0, C))
        a(MF32(vr(ACC + 32, 16), A0, B1, C))
        a(MF32(vr(ACC + 16, 16), A1, B0, C))
        a(MF32(vr(ACC + 48, 16), A1, B1, C))
    issued = DEPTH - 1; res = 0
    a(f"s_waitcnt vmcnt({(issued - 1) * 4})")
    st(a, 't1')
    trreads(0)
    for s in range(KS):
        if issued < KS:
            loads(issued); issued += 1
            if issued == KS:
                for j in range(2):
                    a(f"buffer_load_dwordx4 {vr(RES + 4 * j, 4)}, v2, s[8:11], s35 offen offset:{j * 1024}")
                res = 2
        if s + 1 < KS:
            a(f"s_waitcnt vmcnt({(issued - s - 2) * 4 + res})")
            trreads(s + 1)
            a("s_waitcnt lgkmcnt(4)")
        else:
            a("s_waitcnt lgkmcnt(0)")
        mfmas(s)
    st(a, 'att')
    a("s_waitcnt vmcnt(0)")
    a("s_mov_b32 s29, 0xffff0000")
    for i in range(8):
        a(f"v_lshlrev_b32 v{RES + 8 + 2 * i}, 16, v{RES + i}")
        a(f"v_and_b32 v{RES + 9 + 2 * i}, s29, v{RES + i}")
    for t in (2, 1, 3):
        for q in range(4):
            a(f"ds_write_b128 v{4 + t}, {vr(ACC + 16 * t + 4 * q, 4)} offset:{(t - 1) * 4096 + q * 1024}")
    for i in range(16):
        a(f"v_add_f32 v{ACC + i}, v{ACC + i}, v{RES + 8 + i}")
    a("s_waitcnt lgkmcnt(0)")
    a("s_barrier")
    for t in range(3):
        for q in range(4):
            a(f"ds_read_b128 {vr(GB + 16 * t + 4 * q, 4)}, v4 offset:{t * 4096 + q * 1024}")
    for t in range(3):
        a(f"s_waitcnt lgkmcnt({8 - 4 * t})")
        for i in range(0, 16, 2):
            a(f"v_pk_add_f32 {vr(ACC + i, 2)}, {vr(ACC + i, 2)}, {vr(GB + 16 * t + i, 2)}")
    o = ACC + 16
    for i in range(8):
        a(f"v_cvt_pk_bf16_f32 v{o + i}, v{ACC + 2 * i}, v{ACC + 2 * i + 1}")
    a("s_nop 0")
    for j in range(2):
        a(f"v_permlane32_swap_b32 v{o + 4 * j}, v{o + 4 * j + 2}")
        a(f"v_permlane32_swap_b32 v{o + 4 * j + 1}, v{o + 4 * j + 3}")
    for j in range(2):
        a(f"buffer_store_dwordx4 {vr(o + 4 * j, 4)}, v3, s[12:15], s34 offen offset:{j * 32}")
    stamp_end(a, 2, 3, 8)
    if DBGK1:
        a("s_waitcnt vmcnt(0)")
        a("s_memrealtime s[68:69]")
        a("s_memtime s[70:71]")
        a("s_load_dwordx2 s[72:73], s[0:1], 64")
        a("s_waitcnt lgkmcnt(0)")
        srd(a, 76, 72, 256)
        a("s_sub_u32 s70, s70, s66")
        a("s_cmp_lg_u32 s2, 0")
        a("s_cbranch_scc1 K5_END")
        a(f"s_mov_b32 s74, {DBGOFF}")
        a("v_mov_b32 v0, 0")
        a("buffer_load_dwordx4 v[4:7], v0, s[8:11], s74 offen")
        a("buffer_load_dwordx4 v[8:11], v0, s[8:11], s74 offen offset:16")
        a("s_waitcnt vmcnt(0)")
        a("v_sub_u32 v5, v5, v4")
        a("v_sub_u32 v8, v8, v4")
        a("v_sub_u32 v9, v9, v4")
        a("v_sub_u32 v12, s64, v4")
        a("v_sub_u32 v13, s68, v4")
        a("v_mov_b32 v14, s70")
        a("v_mov_b32 v15, 0")
        a("buffer_store_dwordx4 v[4:7], v0, s[76:79], 0 offen")
        a("buffer_store_dwordx4 v[8:11], v0, s[76:79], 0 offen offset:16")
        a("buffer_store_dwordx4 v[12:15], v0, s[76:79], 0 offen offset:32")
    a.label("K5_END")
    a("s_endpgm")
    return n, a, kd(n, 192, 192), (256, 256, RED + 49152)

DOC = """;
"""
def main(out):
    ks = [k234()]
    hdr = open("cdna_kernels/" + NAME + ".s.ref").read().split("\n")
    hdr = [l for l in hdr if l.startswith(";") and "@launch" not in l and "Override" not in l and "grid=ceil" not in l]
    txt = "\n".join(hdr) + "\n"
    for n, a, d, (g, b, lds) in ks:
        txt += f"; @launch {'kernel=' + n + ' ' if LIST else ''}grid=({g},1,1) block=({b},1,1) lds={lds}\n"
    txt += DOC
    txt += '.amdgcn_target "amdgcn-amd-amdhsa--gfx950"\n.text\n'
    bad = 0
    for ki, (n, a, d, _) in enumerate(ks):
        fl = ST_FLAGS[ki]
        if fl:
            a.lines = [l + " " + fl if ("buffer_store_dwordx" in l and "sc1" not in l) else l for l in a.lines]
        bad += check_hazards(a.lines, n)
        txt += a.text()
    txt += "CODE_END:\n"
    txt += '.section .rodata,"a"\n'
    for n, a, d, _ in ks:
        txt += ".p2align 6\n" + d
    open(out, "w").write(txt)
    print("hazards:", bad)

if __name__ == "__main__":
    if "stamp" in sys.argv: STAMP = True
    for arg in sys.argv[2:]:
        if "=" in arg:
            k_, v_ = arg.split("=", 1)
            globals()[k_] = eval(v_)
    main(sys.argv[1] if len(sys.argv) > 1 else "cdna_kernels/" + NAME + ".s")
```
